```python
import torch

def _softmax(x, axis=-1):
    return torch.softmax(x, dim=axis)

def _gelu(x):
    return torch.nn.functional.gelu(x, approximate='tanh')

def _silu(x):
    return torch.nn.functional.silu(x)

def _sigmoid(x):
    return torch.sigmoid(x)

def _layernorm(x, axis=-1, eps=1e-05):
    m = x.mean(dim=axis, keepdim=True)
    v = x.var(dim=axis, keepdim=True, unbiased=False)
    return (x - m) / torch.sqrt(v + eps)

def _scatter_add(tgt, idx, src, axis=0):
    return tgt.clone().index_add_(axis, idx, src)

def _segment_sum(src, seg, n):
    out = torch.zeros((n,) + src.shape[1:], dtype=src.dtype)
    return out.index_add_(0, seg, src)

def _pad(x, pw):
    flat = tuple((v for pair in reversed(pw) for v in pair))
    return torch.nn.functional.pad(x, flat)
kernel_name = 'interleave_layers__sliding_block__memory_aug_recurrent_mem_tr__prompt'

def setup_inputs():

    _w = lambda a: (lambda t: t.to(torch.bfloat16) if t.is_floating_point() else t)(torch.as_tensor(a))

    def _A_setup():
        B, S, D = (1, 2048, 576)
        return {'x': _w((lambda *s: torch.randn(*s, dtype=torch.bfloat16) * 0.05)(B, S, D)), 'wqkv': _w((lambda *s: torch.randn(*s, dtype=torch.bfloat16) * 0.05)(D, 3 * D)), 'wo': _w((lambda *s: torch.randn(*s, dtype=torch.bfloat16) * 0.05)(D, D))}
    _A_in = _A_setup()

    def _B_setup():
        B, S, Dm = (1, 2048, 576)
        H, Dh = (32, 128)
        M, seg = (8, 32)
        seg = min(seg, S)
        S = S // seg * seg
        return {'x': _w((lambda *s: torch.randn(*s, dtype=torch.bfloat16) * 0.05)(B, S, Dm)), 'mem0': _w((lambda *s: torch.randn(*s, dtype=torch.bfloat16) * 0.8)(B, M, Dm)), 'Wq': _w((lambda *s: torch.randn(*s, dtype=torch.bfloat16) * 1.6)(Dm, H, Dh) * Dm ** (-0.5)), 'Wk': _w((lambda *s: torch.randn(*s, dtype=torch.bfloat16) * 1.6)(Dm, H, Dh) * Dm ** (-0.5)), 'Wv': _w((lambda *s: torch.randn(*s, dtype=torch.bfloat16) * 0.8)(Dm, H, Dh) * Dm ** (-0.5)), 'Wo': _w((lambda *s: torch.randn(*s, dtype=torch.bfloat16) * 0.8)(H, Dh, Dm) * (H * Dh) ** (-0.5)), 'seg_len': seg}
    _B_in = _B_setup()
    return {'A_x': _A_in['x'], 'A_wqkv': _A_in['wqkv'], 'A_wo': _A_in['wo'], 'B_x': _B_in['x'], 'B_mem0': _B_in['mem0'], 'B_Wq': _B_in['Wq'], 'B_Wk': _B_in['Wk'], 'B_Wv': _B_in['Wv'], 'B_Wo': _B_in['Wo'], 'B_seg_len': _B_in['seg_len']}

def reference(A_x, A_wqkv, A_wo, B_x, B_mem0, B_Wq, B_Wk, B_Wv, B_Wo, B_seg_len):

    def _A_ref(x, wqkv, wo):
        B, S, D = x.shape
        H = 32
        Dh = D // H
        W = 256
        qkv = (lambda x, *d: x.permute(*d))((x @ wqkv).reshape(B, S, 3, H, Dh), 2, 0, 3, 1, 4)
        q, k, v = (qkv[0], qkv[1], qkv[2])
        scores = torch.einsum('bhqd,bhkd->bhqk', q, k) * Dh ** (-0.5)
        idx = torch.arange(S)
        mask = (idx[:, None] - idx[None, :] >= 0) & (idx[:, None] - idx[None, :] < W)
        scores = torch.where(mask[None, None], scores, -1000000000.0)
        p = _softmax(scores, axis=-1)
        o = torch.einsum('bhqk,bhkd->bhqd', p, v)
        return (lambda x, *d: x.permute(*d))(o, 0, 2, 1, 3).reshape(B, S, D) @ wo

    def _B_ref(x, mem0, Wq, Wk, Wv, Wo, seg_len):
        B, S, Dm = x.shape
        H, Dh = (Wq.shape[1], Wq.shape[2])
        M = mem0.shape[1]
        scale = Dh ** (-0.5)
        n_seg = S // seg_len
        L = M + seg_len
        idx = torch.arange(L)
        mask = (idx[:, None] < M) | (idx[:, None] >= idx[None, :])
        mem = mem0
        outs = []
        for s in range(n_seg):
            xs = x[:, s * seg_len:(s + 1) * seg_len, :].clone()
            h = torch.concatenate([mem, xs], axis=1)
            q = torch.einsum('btd,dhe->bhte', h, Wq)
            k = torch.einsum('btd,dhe->bhte', h, Wk)
            v = torch.einsum('btd,dhe->bhte', h, Wv)
            scores = torch.einsum('bhqe,bhke->bhqk', q, k) * scale
            scores = torch.where(mask[None, None], scores, -1000000000.0)
            p = _softmax(scores, axis=-1)
            o = torch.einsum('bhqk,bhke->bhqe', p, v)
            o = torch.einsum('bhte,hed->btd', o, Wo)
            mem = o[:, :M, :].clone()
            outs.append(o[:, M:, :])
        return torch.concatenate(outs, axis=1)
    x = A_x
    x = x + _A_ref(_layernorm(x, axis=-1), A_wqkv, A_wo)
    x = x + _B_ref(_layernorm(x, axis=-1), B_mem0, B_Wq, B_Wk, B_Wv, B_Wo, B_seg_len)
    x = x + _A_ref(_layernorm(x, axis=-1), A_wqkv, A_wo)
    x = x + _B_ref(_layernorm(x, axis=-1), B_mem0, B_Wq, B_Wk, B_Wv, B_Wo, B_seg_len)
    return x
```

```python
import re

def v(i, n=1):
    return f"v{i}" if n == 1 else f"v[{i}:{i+n-1}]"
def a(i, n=1):
    return f"a{i}" if n == 1 else f"a[{i}:{i+n-1}]"
def s(i, n=1):
    return f"s{i}" if n == 1 else f"s[{i}:{i+n-1}]"

_reg_re = re.compile(r'^(-|\|)?([vas])(\d+)\|?$')
_rng_re = re.compile(r'^(-|\|)?([vas])\[(\d+):(\d+)\]\|?$')

def regs_of(tok):
    tok = tok.strip()
    m = _reg_re.match(tok)
    if m:
        return {(m.group(2), int(m.group(3)))}
    m = _rng_re.match(tok)
    if m:
        return {(m.group(2), i) for i in range(int(m.group(3)), int(m.group(4)) + 1)}
    if tok in ('vcc', 'vcc_lo', 'vcc_hi'):
        return {('s', 'vcc')}
    if tok in ('exec', 'exec_lo', 'exec_hi'):
        return {('s', 'exec')}
    if tok == 'm0':
        return {('s', 'm0')}
    return set()

TRANS = ('v_exp_f32', 'v_log_f32', 'v_rcp_f32', 'v_rsq_f32', 'v_sqrt_f32', 'v_sin_f32', 'v_cos_f32')

class Ins:
    __slots__ = ('text', 'op', 'dst', 'src', 'kind', 'states', 'dpp', 'srcC', 'wide')
    def __init__(self, text):
        self.text = text
        t = text.split(';')[0].strip()
        parts = t.split(None, 1)
        self.op = op = parts[0]
        rest = parts[1] if len(parts) > 1 else ''
        ops = [x.strip() for x in rest.split(',')] if rest else []
        mods = ''
        if ops:
            last = ops[-1].split(None, 1)
            ops[-1] = last[0]
            mods = last[1] if len(last) > 1 else ''
        self.dpp = ('row_' in mods or 'quad_perm' in mods or 'wave_' in mods or op.endswith('_dpp'))
        self.dst = set(); self.src = set(); self.srcC = set(); self.states = 1; self.wide = False
        R = [regs_of(o) for o in ops]
        allr = set().union(*R) if R else set()
        if op == 's_nop':
            self.kind = 'nop'; self.states = int(ops[0], 0) + 1
        elif op.startswith('v_mfma') or op.startswith('v_smfmac'):
            self.kind = 'mfma'
            self.dst = R[0]; self.src = R[1] | R[2] | R[3]
            self.srcC = R[3] if op.startswith('v_mfma') else R[0]
            if op.startswith('v_smfmac'): self.src |= R[0]
        elif op.startswith('v_cmpx'):
            self.kind = 'valu'; self.dst = {('s', 'exec')} | (R[0] if ops and ops[0].startswith(('s','v'))and len(ops)==3 else set()); self.src = allr
        elif op.startswith('v_cmp'):
            self.kind = 'valu'; self.dst = R[0]; self.src = set().union(*R[1:])
        elif op.startswith('v_permlane') and 'swap' in op:
            self.kind = 'valu'; self.dst = R[0] | R[1]; self.src = R[0] | R[1]
        elif op.startswith('v_'):
            self.kind = 'valu'
            self.dst = R[0]; self.src = set().union(*R[1:]) if len(R) > 1 else set()
            if op.startswith(('v_fmac', 'v_mac', 'v_pk_fmac', 'v_dot2c', 'v_writelane')) or self.dpp:
                self.src |= R[0]
            if op.startswith('v_cndmask') and len(ops) == 3: self.src |= {('s', 'vcc')}
            if op.startswith(('v_add_co', 'v_addc_co', 'v_sub_co', 'v_subb_co')):
                self.dst = R[0] | R[1]; self.src = set().union(*R[2:])
        elif op.startswith(('global_store', 'buffer_store', 'ds_write', 'global_atomic', 'buffer_atomic', 'ds_add', 'ds_max', 'flat_store')):
            self.kind = 'vmem' if not op.startswith('ds_') else 'ds'
            self.src = allr
            ret = (' sc0' in ' ' + mods) and 'atomic' in op
            if ret: self.dst = R[0]
            self.wide = ('x3' in op or 'x4' in op)
        elif op.startswith(('global_load_lds', )) or (op.startswith('buffer_load') and re.search(r'\blds\b', mods)):
            self.kind = 'vmem'; self.src = allr | {('s', 'm0')}
        elif op.startswith(('global_load', 'buffer_load', 'flat_load')):
            self.kind = 'vmem'; self.dst = R[0]; self.src = set().union(*R[1:])
        elif op.startswith('ds_'):
            self.kind = 'ds'; self.dst = R[0]; self.src = set().union(*R[1:]) if len(R) > 1 else set()
        elif op.startswith('s_'):
            self.kind = 'salu'
            if op.startswith(('s_cmp', 's_cbranch', 's_branch', 's_waitcnt', 's_barrier', 's_endpgm', 's_sleep', 's_setprio', 's_bitcmp', 's_setreg')):
                self.src = allr
            else:
                self.dst = R[0] if R else set(); self.src = set().union(*R[1:]) if len(R) > 1 else set()
                if 'saveexec' in op: self.dst |= {('s', 'exec')}
        else:
            raise ValueError('unknown instr ' + text)

def isvreg(r): return r[0] in 'va'

def need(p, c):
    n = 0
    pv = {r for r in p.dst if isvreg(r)}
    ps = {r for r in p.dst if not isvreg(r)}
    if p.kind == 'valu':
        if c.kind == 'mfma' and pv & c.src: n = max(n, 2)
        if c.kind == 'mfma' and ('s', 'exec') in ps: n = max(n, 4)
        if c.kind == 'valu':
            if c.dpp and pv & c.src: n = max(n, 2)
            if c.dpp and ('s', 'exec') in ps: n = max(n, 5)
            if c.op.startswith('v_permlane') and pv & c.src: n = max(n, 2)
            if c.op.startswith('v_permlane') and ('s', 'exec') in ps: n = max(n, 4)
            if c.op.startswith(('v_readlane', 'v_readfirstlane')) and pv & c.src: n = max(n, 1)
            if c.op.startswith(('v_readlane', 'v_readfirstlane', 'v_writelane')) and (ps & c.src or ('s','exec') in ps): n = max(n, 4)
            if p.op.startswith(TRANS) and pv & c.src: n = max(n, 1)
            if ps & c.src: n = max(n, 2)
            if ('sdwa' in p.text or 'op_sel' in p.text) and pv & (c.src | c.dst): n = max(n, 1)
        if c.kind == 'vmem' and (ps & c.src): n = max(n, 5)
        if c.kind == 'salu' and (ps & c.src): n = max(n, 1)
    if p.kind == 'mfma':
        if c.kind == 'mfma':
            ab = c.src - c.srcC if c.srcC else c.src
            if p.dst & c.srcC:
                if p.dst != c.srcC: n = max(n, 6)
            toks = c.text.split(';')[0].split(None, 1)[1].split(',')
            AB = regs_of(toks[1]) | regs_of(toks[2])
            if c.op.startswith('v_smfmac'): AB |= regs_of(toks[3].strip().split()[0])
            if p.dst & AB: n = max(n, 8)
            if p.dst & c.dst and not (p.dst & c.srcC): n = max(n, 6)
        elif c.kind in ('valu', 'vmem', 'ds'):
            if p.dst & (c.src | c.dst): n = max(n, 8)
        if c.kind == 'valu' and p.srcC & c.dst: n = max(n, 3)
    if p.kind == 'vmem' and p.wide:
        if c.kind == 'valu' and p.src & {r for r in c.dst if isvreg(r)}: n = max(n, 2)
        elif c.dst and p.src & {r for r in c.dst if isvreg(r)}: n = max(n, 1)
    if p.kind == 'salu':
        if ('s', 'm0') in p.dst and c.kind in ('vmem', 'ds') and ('s', 'm0') in c.src: n = max(n, 1)
    return n

class Asm:
    def __init__(self):
        self.lines = []
        self.hist = []
        self.nlab = 0
        self.nins = 0
    def raw(self, t):
        self.lines.append(t)
    def comment(self, t):
        self.lines.append('; ' + t)
    def label(self, name):
        self.lines.append(name + ':')
    def newlabel(self, p='L'):
        self.nlab += 1
        return f'.{p}_{self.nlab}'
    def flush(self):
        self.hist = []
    def __call__(self, text):
        ins = Ins(text)
        req = 0
        dist = 0
        for p in reversed(self.hist):
            n = need(p, ins)
            if n - dist > req: req = n - dist
            dist += p.states
            if dist >= 10: break
        if req > 0:
            nop = Ins(f's_nop {req-1}')
            self.lines.append('\t' + nop.text)
            self.hist.append(nop)
            self.nins += 1
        self.lines.append('\t' + text)
        self.hist.append(ins)
        self.nins += 1
        if len(self.hist) > 24: self.hist = self.hist[-24:]
    def text(self):
        return '\n'.join(self.lines) + '\n'
```

```python
from asm import *
from common import *

S_KA = 0
S_WG = 2
S_WS = 4
S_SRD = 8
S_DBG = 12
S_ROLE = 14
S_WAVE = 15
S_XCC = 16
S_TMP = 17
S_SPIN = 20
S_PTR = 22
S_MODE = 24

MF = 'v_mfma_f32_16x16x32_bf16'
MF16 = 'v_mfma_f32_16x16x16_bf16'

def srd_from_ptr(A, sdst, sptr, size):
    A(f's_mov_b32 {s(sdst)}, {s(sptr)}')
    A(f's_and_b32 {s(sdst+1)}, {s(sptr+1)}, 0xffff')
    A(f's_mov_b32 {s(sdst+2)}, {hex(size)}')
    A(f's_mov_b32 {s(sdst+3)}, 0x00020000')

def load_ptr_srd(A, sdst, ka_off, size):
    A(f's_load_dwordx2 {s(S_PTR,2)}, {s(S_KA,2)}, {ka_off}')
    A('s_waitcnt lgkmcnt(0)')
    srd_from_ptr(A, sdst, S_PTR, size)

L_WO = 0
L_MEM = 147456
L_S = L_MEM + 9216
L_O = L_S + 5120

V_MEMRD, V_WO0, V_WO1, V_SW, V_SRX, V_SRM, V_OW, V_OR, V_PST, V_PLD, V_MST, V_T16, V_T4, V_L16 = range(14)
V_KX = 14
V_VX = 22
V_AV = 30
V_RING = 38
V_AQ = 50
V_QF = 66
V_KF = 70
V_T = 74
V_FLAG = 77
V_ZERO = 78
V_SC = 79
def WQ(t, ks): return a(t*72 + ks*4, 4)
def WK(t, ks):
    i = 144 + t*72 + ks*4
    return a(i, 4) if i < 256 else v(80 + i - 256, 4)
def WV(t, ks): return v(112 + t*72 + ks*4, 4)
def wreg(m, t, ks, half):
    if m == 0: return a(t*72 + ks*4 + 2*half, 2)
    if m == 1:
        i = 144 + t*72 + ks*4 + 2*half
        return a(i, 2) if i < 256 else v(80 + i - 256, 2)
    return v(112 + t*72 + ks*4 + 2*half, 2)

S_H = 26; S_L = 27; S_STEP = 28
S_PL = 30
S_PST = 38
S_PST2 = 49
S_MB0 = 39; S_MB1 = 40
S_MB0b = 41; S_MB1b = 42
S_MB0c = 43; S_MB1c = 44
S_KX = 45
S_KVM = 46
S_FLAGIN = 47
S_FLAGOUT = 48
S_T0 = 50
S_T1 = 52
S_EX8 = 54
S_EXM = 56
S_EXP = 58
S_EXS = 60
S_SOFF = 62
S_M0 = 63

def spin_check(A, retry_label, fail_label):
    A(f's_sub_u32 {s(S_SPIN)}, {s(S_SPIN)}, 1')
    A(f's_cmp_lg_u32 {s(S_SPIN)}, 0')
    A(f's_cbranch_scc1 {retry_label}')
    A(f's_branch {fail_label}')

def qkv_loader(A, dord):
    w = s(S_WAVE)
    LN, COL, G, TOK = 79, 78, 77, 76
    A(f'v_lshlrev_b32 v16, 1, {v(G)}')
    A(f'v_xor_b32 v16, v16, {v(COL)}')
    A(f'v_xor_b32 v17, 8, v16')
    A(f'v_lshlrev_b32 v16, 4, v16')
    A(f'v_lshlrev_b32 v17, 4, v17')
    A(f'v_lshlrev_b32 v18, 13, {v(G)}')
    A(f'v_add_u32 v14, v16, v18')
    A(f'v_add_u32 v15, v17, v18')
    A(f'v_lshrrev_b32 v16, 2, {v(COL)}')
    A(f'v_and_b32 v17, 3, {v(COL)}')
    if dord: A(f'v_lshrrev_b32 v18, 1, {v(G)}')
    else: A(f'v_and_b32 v18, 1, {v(G)}')
    A(f'v_lshlrev_b32 v18, 2, v18')
    A(f'v_or_b32 v18, v18, v16')
    A(f'v_lshlrev_b32 v18, 1, v18')
    A(f'v_lshrrev_b32 v19, 1, v17')
    A(f's_lshl_b32 {s(S_TMP)}, {w}, 2')
    A(f'v_add_u32 v19, {s(S_TMP)}, v19')
    A(f'v_and_b32 v17, 1, v17')
    A(f'v_lshlrev_b32 v17, 3, v17')
    A(f'v_lshlrev_b32 v20, {2 if dord else 3}, {v(G)}')
    A(f'v_add_u32 v20, v20, v16')
    A(f'v_lshlrev_b32 v20, 8, v20')
    A(f'v_add_u32 v20, v20, v17')
    A(f'v_xor_b32 v21, v19, v18')
    A(f'v_add_u32 v19, 2, v19')
    A(f'v_xor_b32 v22, v19, v18')
    A(f'v_lshlrev_b32 v21, 4, v21')
    A(f'v_lshlrev_b32 v22, 4, v22')
    A(f'v_add_u32 v21, v21, v20')
    A(f'v_add_u32 v22, v22, v20')
    A(f'v_add_u32 v23, 0x10000, v21')
    A(f'v_add_u32 v24, 0x10000, v22')
    for r in (21, 22, 23, 24):
        A(f'v_add_u32 {v(r+4)}, 73728, {v(r)}')
    KA = [KA_WQ, KA_WK, KA_WV]
    WSZ = 576*4096*2
    def issue_half(hf):
        m, part = hf // 2, hf % 2
        buf = hf % 2
        load_ptr_srd(A, S_SRD, KA[m], WSZ)
        A(f's_lshl_b32 {s(S_SOFF)}, {s(S_H)}, 8')
        A(f's_lshl_b32 {s(S_TMP)}, {w}, 15')
        A(f's_add_u32 {s(S_SOFF)}, {s(S_SOFF)}, {s(S_TMP)}')
        if part: A(f's_add_u32 {s(S_SOFF)}, {s(S_SOFF)}, {288*8192}')
        A(f's_lshl_b32 {s(S_M0)}, {w}, 10')
        if buf: A(f's_add_u32 {s(S_M0)}, {s(S_M0)}, 73728')
        for j in range(18):
            A(f's_mov_b32 m0, {s(S_M0)}')
            A(f'buffer_load_dwordx4 v29, {s(S_SRD,4)}, {s(S_SOFF)} offen lds')
            if j < 17:
                A(f's_add_u32 {s(S_SOFF)}, {s(S_SOFF)}, {16*8192}')
                A(f's_add_u32 {s(S_M0)}, {s(S_M0)}, 4096')
    A(f's_and_b32 {s(S_TMP)}, {w}, 2')
    A(f's_cmp_eq_u32 {s(S_TMP)}, 0')
    A(f's_cselect_b64 vcc, -1, 0')
    A(f'v_cndmask_b32 v29, v15, v14, vcc')
    def consume_half(hf):
        m, part = hf // 2, hf % 2
        buf = hf % 2
        for t in range(2):
            for k in range(9):
                ks = part*9 + k
                for half in range(2):
                    base = (21 + t) if k < 8 else (23 + t)
                    if buf: base += 4
                    off = (k % 8)*8192 + half*(4096 if dord else 1024)
                    A(f'ds_read_b64_tr_b16 {wreg(m, t, ks, half)}, {v(base)} offset:{off}')
                if k % 4 == 3: A('s_waitcnt lgkmcnt(8)')
        A('s_waitcnt lgkmcnt(0)')
    return issue_half, consume_half

def chain_init(A, cfg):
    w = s(S_WAVE)
    LN, COL, G, TOK = 79, 78, 77, 76
    A(f'v_and_b32 {v(LN)}, 63, v0')
    A(f'v_mov_b32 {v(75)}, v0')
    A(f'v_and_b32 {v(COL)}, 15, {v(LN)}')
    A(f'v_lshrrev_b32 {v(G)}, 4, {v(LN)}')
    A(f'v_and_b32 {v(TOK)}, 7, {v(LN)}')
    TID = 75
    issue_half, consume_half = qkv_loader(A, False)
    def issue_wo(buf):
        load_ptr_srd(A, S_SRD, KA_WO, 32*128*576*2)
        A(f's_mul_i32 {s(S_SOFF)}, {s(S_H)}, 147456')
        A(f's_lshl_b32 {s(S_M0)}, {w}, 10')
        if buf: A(f's_add_u32 {s(S_M0)}, {s(S_M0)}, 73728')
        A(f's_add_u32 {s(S_SOFF)}, {s(S_SOFF)}, {s(S_M0)}')
        for j in range(18):
            A(f's_mov_b32 m0, {s(S_M0)}')
            A(f'buffer_load_dwordx4 {v(V_L16)}, {s(S_SRD,4)}, {s(S_SOFF)} offen lds')
            if j < 17:
                A(f's_add_u32 {s(S_SOFF)}, {s(S_SOFF)}, 4096')
                A(f's_add_u32 {s(S_M0)}, {s(S_M0)}, 4096')
    A(f'v_lshlrev_b32 {v(V_L16)}, 4, {v(LN)}')
    issue_half(0)
    issue_half(1)
    for hf in range(6):
        A('s_waitcnt vmcnt(18)')
        A('s_barrier')
        consume_half(hf)
        A('s_barrier')
        if hf + 2 < 6: issue_half(hf + 2)
        else: issue_wo(hf % 2)
    A(f'v_lshrrev_b32 v16, 2, {v(COL)}')
    A(f'v_and_b32 v17, 3, {v(COL)}')
    A(f'v_lshlrev_b32 v18, 2, {v(G)}')
    A(f'v_add_u32 v18, v18, v16')
    A(f'v_mul_u32_u24 v18, 1152, v18')
    A(f'v_lshlrev_b32 v17, 3, v17')
    A(f'v_add_u32 v18, v18, v17')
    A(f's_mul_i32 {s(S_TMP)}, {w}, 288')
    A(f'v_add_u32 v18, {s(S_TMP)}, v18')
    A(f's_mul_i32 {s(S_TMP)}, {w}, 9216')
    A(f'v_add_u32 {v(V_WO0)}, {s(S_TMP)}, {v(V_L16)}')
    A(f'v_add_u32 {v(V_WO1)}, {2*36864}, {v(V_WO0)}')
    A(f'v_mov_b32 v19, {v(V_WO0)}')
    for ks in range(4):
        if ks == 0: A('s_waitcnt vmcnt(18)'); A('s_barrier')
        if ks == 2: A('s_waitcnt vmcnt(0)'); A('s_barrier')
        for t in range(9):
            A(f'ds_read_b64_tr_b16 {v(30+4*t,2)}, v18 offset:{t*32}')
            A(f'ds_read_b64_tr_b16 {v(30+4*t+2,2)}, v18 offset:{t*32 + 16*1152}')
        A('s_waitcnt lgkmcnt(0)')
        A('s_barrier')
        for t in range(9):
            A(f'ds_write_b128 v19, {v(30+4*t,4)} offset:{t*1024}')
        if ks < 3:
            A(f'v_add_u32 v18, 36864, v18')
            A(f'v_add_u32 v19, 36864, v19')
        A('s_waitcnt lgkmcnt(0)')
    A(f'v_lshlrev_b32 v16, 7, {v(G)}')
    A(f'v_lshlrev_b32 v17, 4, {v(TOK)}')
    A(f'v_add_u32 v16, v16, v17')
    A(f's_mul_i32 {s(S_TMP)}, {w}, 1280')
    A(f's_add_u32 {s(S_TMP)}, {s(S_TMP)}, {L_S}')
    A(f'v_add_u32 {v(V_SW)}, {s(S_TMP)}, v16')
    A(f'v_lshrrev_b32 v18, 3, {v(COL)}')
    A(f'v_lshlrev_b32 v18, 9, v18')
    A(f'v_add_u32 v18, v18, v16')
    A(f'v_add_u32 {v(V_SRX)}, {L_S}, v18')
    A(f'v_and_b32 v18, 1, {v(G)}')
    A(f'v_lshlrev_b32 v18, 7, v18')
    A(f'v_add_u32 v18, v18, v17')
    A(f'v_add_u32 {v(V_SRM)}, {L_S+1024}, v18')
    A(f'v_add_u32 {v(V_OR)}, {L_O}, v16')
    A(f's_lshl_b32 {s(S_TMP)}, {w}, 9')
    A(f'v_add_u32 {v(V_OW)}, {s(S_TMP)}, {v(V_OR)}')
    A(f'v_lshrrev_b32 v16, 1, {v(G)}')
    A(f'v_lshlrev_b32 v16, 8, v16')
    A(f'v_lshlrev_b32 v17, 5, {v(TOK)}')
    A(f'v_add_u32 v16, v16, v17')
    A(f'v_and_b32 v17, 1, {v(G)}')
    A(f'v_lshlrev_b32 v17, 4, v17')
    A(f'v_add_u32 v16, v16, v17')
    A(f'v_add_u32 {v(V_MEMRD)}, {L_MEM}, v16')
    A(f'v_lshlrev_b32 v16, 2, {v(TOK)}')
    A(f'v_add_u32 v16, v16, {v(G)}')
    A(f'v_lshlrev_b32 v16, 4, v16')
    A(f's_mul_i32 {s(S_TMP)}, {w}, {288*16}')
    A(f'v_add_u32 {v(V_PST)}, {s(S_TMP)}, v16')
    A(f's_mul_i32 {s(S_TMP)}, {s(S_H)}, 36')
    A(f's_mul_i32 {s(S_TMP+1)}, {w}, 9')
    A(f's_add_u32 {s(S_TMP)}, {s(S_TMP)}, {s(S_TMP+1)}')
    A(f'v_add_u32 v16, {s(S_TMP)}, {v(COL)}')
    A(f'v_mul_u32_u24 v17, 18432, {v(G)}')
    A(f'v_lshlrev_b32 v18, 4, v16')
    A(f'v_add_u32 {v(V_PLD)}, v17, v18')
    A(f'v_lshlrev_b32 v16, 3, v16')
    A(f'v_lshrrev_b32 v17, 1, {v(G)}')
    A(f'v_lshlrev_b32 v17, 2, v17')
    A(f'v_add_u32 {v(V_MST)}, v16, v17')
    A(f'v_lshlrev_b32 {v(V_T16)}, 4, {v(TID)}')
    A(f'v_lshlrev_b32 {v(V_T4)}, 2, {v(TID)}')
    A(f's_mul_i32 {s(S_TMP)}, {s(S_L)}, {PART_STRIDE}')
    A(f's_add_u32 {s(S_TMP)}, {s(S_TMP)}, {WS_PART}')
    for i in range(8):
        A(f's_add_u32 {s(S_PL+i)}, {s(S_TMP)}, {i*73728}')
    A(f's_mul_i32 {s(S_TMP+1)}, {s(S_H)}, 18432')
    A(f's_add_u32 {s(S_PST)}, {s(S_TMP)}, {s(S_TMP+1)}')
    A(f's_add_u32 {s(S_PST2)}, {s(S_PST)}, 4096')
    A(f's_mul_i32 {s(S_TMP)}, {s(S_L)}, {MEMB_STRIDE}')
    A(f's_add_u32 {s(S_MB0)}, {s(S_TMP)}, {WS_MEMB}')
    A(f's_add_u32 {s(S_MB1)}, {s(S_MB0)}, 9216')
    A(f's_add_u32 {s(S_MB0b)}, {s(S_MB0)}, 4096')
    A(f's_add_u32 {s(S_MB1b)}, {s(S_MB1)}, 4096')
    A(f's_add_u32 {s(S_MB0c)}, {s(S_MB0)}, 8192')
    A(f's_add_u32 {s(S_MB1c)}, {s(S_MB1)}, 8192')
    A(f's_mul_i32 {s(S_TMP)}, {s(S_L)}, {QKVX_STRIDE}')
    A(f's_mul_i32 {s(S_TMP+1)}, {s(S_H)}, 24576')
    A(f's_add_u32 {s(S_KX)}, {s(S_TMP)}, {s(S_TMP+1)}')
    A(f's_add_u32 {s(S_KX)}, {s(S_KX)}, {WS_QKVX}')
    A(f's_mul_i32 {s(S_TMP)}, {s(S_L)}, {KVM_STRIDE}')
    A(f's_lshl_b32 {s(S_TMP+1)}, {s(S_H)}, 13')
    A(f's_add_u32 {s(S_KVM)}, {s(S_TMP)}, {s(S_TMP+1)}')
    A(f's_lshl_b32 {s(S_TMP+1)}, {w}, 10')
    A(f's_add_u32 {s(S_KVM)}, {s(S_KVM)}, {s(S_TMP+1)}')
    A(f's_add_u32 {s(S_KVM)}, {s(S_KVM)}, {WS_KVM}')
    A(f's_lshl_b32 {s(S_TMP)}, {s(S_ROLE)}, 7')
    A(f's_lshl_b32 {s(S_TMP+1)}, {w}, 2')
    A(f's_add_u32 {s(S_FLAGOUT)}, {s(S_TMP)}, {s(S_TMP+1)}')
    A(f's_mul_i32 {s(S_TMP)}, {s(S_L)}, {R_B1[1]-R_B1[0]}')
    A(f's_add_u32 {s(S_TMP)}, {s(S_TMP)}, {s(S_H)}')
    A(f's_add_u32 {s(S_TMP)}, {s(S_TMP)}, {R_B1[0]}')
    A(f's_lshl_b32 {s(S_TMP)}, {s(S_TMP)}, 7')
    A(f's_add_u32 {s(S_FLAGIN)}, {s(S_TMP)}, {s(S_TMP+1)}')
    for sr, val in ((S_EX8, 0x00FF00FF00FF00FF), (S_EXM, 0x0000000000FF00FF), (S_EXP, 0x01FF01FF01FF01FF), (S_EXS, 0x000001FF000001FF)):
        A(f's_mov_b32 {s(sr)}, {hex(val & 0xffffffff)}')
        A(f's_mov_b32 {s(sr+1)}, {hex(val >> 32)}')
    load_ptr_srd(A, S_SRD, KA_MEM0, 8*576*2)
    for rnd in range(3):
        A(f'v_add_u32 v16, {256*rnd}, {v(TID)}')
        A(f'v_lshrrev_b32 v17, 4, v16')
        A(f'v_lshlrev_b32 v17, 5, v17')
        A(f'v_bfe_u32 v18, v16, 1, 3')
        A(f'v_mul_u32_u24 v18, 1152, v18')
        A(f'v_add_u32 v17, v17, v18')
        A(f'v_and_b32 v18, 1, v16')
        A(f'v_lshlrev_b32 v18, 4, v18')
        A(f'v_add_u32 v17, v17, v18')
        A(f'v_lshlrev_b32 v16, 4, v16')
        A(f'v_add_u32 v16, {L_MEM}, v16')
        if rnd == 2:
            A(f'v_cmp_gt_u32 vcc, 64, {v(TID)}')
            A(f's_and_saveexec_b64 {s(S_T0,2)}, vcc')
            lab = A.newlabel('skipm'); A(f's_cbranch_execz {lab}')
        A(f'buffer_load_dwordx4 v[20:23], v17, {s(S_SRD,4)}, 0 offen')
        A('s_waitcnt vmcnt(0)')
        A(f'ds_write_b128 v16, v[20:23]')
        if rnd == 2:
            A.label(lab)
            A(f's_mov_b64 exec, -1')
    A('s_waitcnt lgkmcnt(0)')
    A(f'v_mov_b32 {v(V_ZERO)}, 0')
    A(f'v_mov_b32 {v(V_SC)}, {hex(f32((128 ** -0.5) * 1.4426950408889634))}')

def kxvx_load(A):
    w = s(S_WAVE)
    A(f's_lshl_b32 {s(S_TMP)}, {w}, 10')
    A(f's_add_u32 {s(S_TMP)}, {s(S_TMP)}, {s(S_KX)}')
    A(f's_add_u32 {s(S_TMP+1)}, {s(S_TMP)}, 8192')
    A(f's_add_u32 {s(S_TMP+2)}, {s(S_TMP)}, {8192+4096}')
    A(f'buffer_load_dwordx4 {v(V_KX,4)}, {v(V_L16)}, {s(S_WS,4)}, {s(S_TMP+1)} offen')
    A(f'buffer_load_dwordx4 {v(V_KX+4,4)}, {v(V_L16)}, {s(S_WS,4)}, {s(S_TMP+2)} offen')
    A(f's_lshl_b32 {s(S_TMP)}, {w}, 11')
    A(f's_add_u32 {s(S_TMP)}, {s(S_TMP)}, {s(S_KX)}')
    A(f's_add_u32 {s(S_TMP+1)}, {s(S_TMP)}, 16384')
    A(f'buffer_load_dwordx4 {v(V_VX,4)}, {v(V_L16)}, {s(S_WS,4)}, {s(S_TMP+1)} offen')
    A(f'buffer_load_dwordx4 {v(V_VX+4,4)}, {v(V_L16)}, {s(S_WS,4)}, {s(S_TMP+1)} offen offset:1024')
    A(f's_add_u32 {s(S_KX)}, {s(S_KX)}, {32*24576}')

def stamp(A, cfg, idx):
    if not cfg.get('STAMPS'): return
    A(f's_memtime {s(S_T1,2)}')
    A('s_waitcnt lgkmcnt(0)')
    A(f's_mov_b32 {s(64+idx)}, {s(S_T1)}')

def chain_step(A, par, cfg, fail):
    tag = par ^ 1
    st = lambda f, sc1=False: f + (' sc1' if sc1 or cfg.get('SLOW') else '')
    SC = (128 ** -0.5) * 1.4426950408889634
    stamp(A, cfg, 0)
    A(f'v_mov_b32 {v(V_T)}, {s(S_STEP)}')
    for k in range(3):
        A(f'ds_read_b128 {v(V_RING+4*k,4)}, {v(V_MEMRD)} offset:{k*512}')
    A(f's_mov_b64 exec, 1')
    A(f'buffer_store_dword {v(V_T)}, {v(V_ZERO)}, {s(S_WS,4)}, {s(S_FLAGOUT)} offen sc1')
    if not cfg.get('NOB1'):
        A(f'buffer_load_dword {v(V_FLAG)}, {v(V_ZERO)}, {s(S_WS,4)}, {s(S_FLAGIN)} offen sc1')
    A(f's_mov_b64 exec, -1')
    aq0, aq1, ak0, ak1 = V_AQ, V_AQ+4, V_AQ+8, V_AQ+12
    for ks in range(18):
        slot = V_RING + 4*(ks % 3)
        A(f's_waitcnt lgkmcnt({min(2, 17-ks)})')
        c = lambda r: '0' if ks == 0 else v(r, 4)
        A(f'{MF} {v(aq0,4)}, {WQ(0,ks)}, {v(slot,4)}, {c(aq0)}')
        A(f'{MF} {v(aq1,4)}, {WQ(1,ks)}, {v(slot,4)}, {c(aq1)}')
        A(f'{MF} {v(ak0,4)}, {WK(0,ks)}, {v(slot,4)}, {c(ak0)}')
        A(f'{MF} {v(ak1,4)}, {WK(1,ks)}, {v(slot,4)}, {c(ak1)}')
        if ks + 3 < 18:
            A(f'ds_read_b128 {v(slot,4)}, {v(V_MEMRD)} offset:{(ks+3)*512}')
    stamp(A, cfg, 1)
    for k in range(3):
        A(f'ds_read_b128 {v(V_RING+4*k,4)}, {v(V_MEMRD)} offset:{k*512}')
    for i in range(2):
        A(f'v_cvt_pk_bf16_f32 {v(V_QF+i)}, {v(aq0+2*i)}, {v(aq0+2*i+1)}')
    for i in range(2):
        A(f'v_cvt_pk_bf16_f32 {v(V_QF+2+i)}, {v(aq1+2*i)}, {v(aq1+2*i+1)}')
    for i in range(2):
        A(f'v_cvt_pk_bf16_f32 {v(V_KF+i)}, {v(ak0+2*i)}, {v(ak0+2*i+1)}')
    for i in range(2):
        A(f'v_cvt_pk_bf16_f32 {v(V_KF+2+i)}, {v(ak1+2*i)}, {v(ak1+2*i+1)}')
    nout = 1 if cfg.get('NOB1') else 2
    A(f's_waitcnt vmcnt({nout})')
    A(f'{MF} {v(aq0,4)}, {v(V_KX,4)}, {v(V_QF,4)}, 0')
    A(f'{MF} {v(aq1,4)}, {v(V_KX+4,4)}, {v(V_QF,4)}, 0')
    A(f'{MF} {v(ak0,4)}, {v(V_KF,4)}, {v(V_QF,4)}, 0')
    A(f'buffer_store_dwordx4 {v(V_KF,4)}, {v(V_L16)}, {s(S_WS,4)}, {s(S_KVM)} offen sc1')
    vks = [0]
    def vm(n):
        for _ in range(n):
            ks = vks[0]
            if ks >= 18: return
            slot = V_RING + 4*(ks % 3)
            A(f's_waitcnt lgkmcnt({min(cfg_l[0], 17-ks) if cfg_l[0]==2 else cfg_l[0]})')
            c = lambda r: '0' if ks == 0 else v(r, 4)
            A(f'{MF} {v(V_AV,4)}, {v(slot,4)}, {WV(0,ks)}, {c(V_AV)}')
            A(f'{MF} {v(V_AV+4,4)}, {v(slot,4)}, {WV(1,ks)}, {c(V_AV+4)}')
            if ks + 3 < 18:
                A(f'ds_read_b128 {v(slot,4)}, {v(V_MEMRD)} offset:{(ks+3)*512}')
            vks[0] += 1
    cfg_l = [2]
    vm(1)
    A(f's_mov_b64 exec, {s(S_EX8,2)}')
    A(f'ds_write_b128 {v(V_SW)}, {v(aq0,4)}')
    A(f'ds_write_b128 {v(V_SW)}, {v(aq1,4)} offset:512')
    A(f's_mov_b64 exec, {s(S_EXM,2)}')
    A(f'ds_write_b128 {v(V_SW)}, {v(ak0,4)} offset:1024')
    A(f's_mov_b64 exec, -1')
    cfg_l[0] = 5; vm(1)
    cfg_l[0] = 5; vm(1)
    A('s_waitcnt lgkmcnt(2)')
    A('s_barrier')
    stamp(A, cfg, 2)
    XR = [V_AQ + 4*i for i in range(4)]
    MR = [V_QF, V_KF, V_KX, V_KX+4]
    for i in range(4):
        A(f'ds_read_b128 {v(XR[i],4)}, {v(V_SRX)} offset:{i*1280}')
        A(f'ds_read_b128 {v(MR[i],4)}, {v(V_SRM)} offset:{i*1280}')
    cfg_l[0] = 10; vm(1)
    cfg_l[0] = 10; vm(1)
    cfg_l[0] = 10; vm(1)
    A('s_waitcnt lgkmcnt(3)')
    stamp(A, cfg, 3)
    cfg_l[0] = 2
    x = XR[0]; m = MR[0]
    for r in range(4):
        A(f'v_add_f32 {v(x+r)}, {v(x+r)}, {v(XR[1]+r)}')
        A(f'v_add_f32 {v(XR[2]+r)}, {v(XR[2]+r)}, {v(XR[3]+r)}')
    for r in range(4):
        A(f'v_add_f32 {v(m+r)}, {v(m+r)}, {v(MR[1]+r)}')
        A(f'v_add_f32 {v(MR[2]+r)}, {v(MR[2]+r)}, {v(MR[3]+r)}')
    vm(1)
    for r in range(4):
        A(f'v_add_f32 {v(x+r)}, {v(x+r)}, {v(XR[2]+r)}')
        A(f'v_add_f32 {v(m+r)}, {v(m+r)}, {v(MR[2]+r)}')
    vm(1)
    T = V_T
    A(f'v_max3_f32 {v(T)}, {v(x)}, {v(x+1)}, {v(x+2)}')
    A(f'v_max3_f32 {v(T+1)}, {v(m)}, {v(m+1)}, {v(m+2)}')
    A(f'v_max3_f32 {v(T)}, {v(T)}, {v(x+3)}, {v(m+3)}')
    A(f'v_max_f32 {v(T)}, {v(T)}, {v(T+1)}')
    vm(1)
    A(f'v_max_f32_dpp {v(T)}, {v(T)}, {v(T)} row_ror:8 row_mask:0xf bank_mask:0xf')
    A(f'v_mov_b32 {v(T+1)}, {v(T)}')
    vm(1)
    A(f'v_permlane16_swap_b32 {v(T)}, {v(T+1)}')
    A(f'v_max_f32 {v(T)}, {v(T)}, {v(T+1)}')
    A(f'v_mov_b32 {v(T+1)}, {v(T)}')
    vm(1)
    A(f'v_permlane32_swap_b32 {v(T)}, {v(T+1)}')
    A(f'v_max_f32 {v(T)}, {v(T)}, {v(T+1)}')
    A(f'v_mul_f32 {v(T)}, {hex(f32(-SC))}, {v(T)}')
    A(f'v_add_f32 {v(T+1)}, -1.0, {v(T)}')
    vm(1)
    for r in range(4):
        A(f'v_fma_f32 {v(x+r)}, {v(x+r)}, {v(V_SC)}, {v(T)}')
        A(f'v_fma_f32 {v(m+r)}, {v(m+r)}, {v(V_SC)}, {v(T+1)}')
    vm(1)
    for r in range(4):
        A(f'v_exp_f32 {v(x+r)}, {v(x+r)}')
        A(f'v_exp_f32 {v(m+r)}, {v(m+r)}')
    vm(3)
    f = XR[1]; pm = XR[2]
    A(f'v_cvt_pk_bf16_f32 {v(f)}, {v(x)}, {v(x+1)}')
    A(f'v_cvt_pk_bf16_f32 {v(f+1)}, {v(x+2)}, {v(x+3)}')
    A(f'v_cvt_pk_bf16_f32 {v(f+2)}, {v(x)}, {v(x+1)}')
    A(f'v_cvt_pk_bf16_f32 {v(f+3)}, {v(x+2)}, {v(x+3)}')
    A(f'v_cvt_pk_bf16_f32 {v(pm)}, {v(m)}, {v(m+1)}')
    A(f'v_cvt_pk_bf16_f32 {v(pm+1)}, {v(m+2)}, {v(m+3)}')
    A(f'v_mov_b32_dpp {v(f+2)}, {v(f)} row_ror:8 row_mask:0xf bank_mask:0x3')
    A(f'v_mov_b32_dpp {v(f+3)}, {v(f+1)} row_ror:8 row_mask:0xf bank_mask:0x3')
    A(f'v_mov_b32_dpp {v(f)}, {v(f)} row_ror:8 row_mask:0xf bank_mask:0xc')
    A(f'v_mov_b32_dpp {v(f+1)}, {v(f+1)} row_ror:8 row_mask:0xf bank_mask:0xc')
    vm(18)
    stamp(A, cfg, 4)
    SUM = XR[3]
    A(f'v_add_f32 {v(SUM)}, {v(x)}, {v(x+1)}')
    A(f'v_add_f32 {v(SUM+1)}, {v(x+2)}, {v(x+3)}')
    A(f'v_add_f32 {v(SUM+2)}, {v(m)}, {v(m+1)}')
    A(f'v_add_f32 {v(SUM+3)}, {v(m+2)}, {v(m+3)}')
    vmf = MR[1]
    for i in range(4):
        A(f'v_cvt_pk_bf16_f32 {v(vmf+i)}, {v(V_AV+2*i)}, {v(V_AV+2*i+1)}')
    o0, o1 = MR[2], MR[3]
    A(f'{MF} {v(o0,4)}, {v(V_VX,4)}, {v(f,4)}, 0')
    A(f'{MF} {v(o1,4)}, {v(V_VX+4,4)}, {v(f,4)}, 0')
    A(f'{MF16} {v(o0,4)}, {v(vmf,2)}, {v(pm,2)}, {v(o0,4)}')
    A(f'{MF16} {v(o1,4)}, {v(vmf+2,2)}, {v(pm,2)}, {v(o1,4)}')
    A(f's_add_u32 {s(S_TMP)}, {s(S_KVM)}, 4096')
    A(f'buffer_store_dwordx4 {v(vmf,4)}, {v(V_L16)}, {s(S_WS,4)}, {s(S_TMP)} offen sc1')
    A(f's_add_u32 {s(S_KVM)}, {s(S_KVM)}, {32*8192}')
    A(f'v_add_f32 {v(SUM)}, {v(SUM)}, {v(SUM+1)}')
    A(f'v_add_f32 {v(SUM+2)}, {v(SUM+2)}, {v(SUM+3)}')
    A(f'v_add_f32_dpp {v(SUM)}, {v(SUM)}, {v(SUM)} row_ror:8 row_mask:0xf bank_mask:0xf')
    A(f'v_add_f32 {v(SUM)}, {v(SUM)}, {v(SUM+2)}')
    A(f'v_mov_b32 {v(SUM+1)}, {v(SUM)}')
    A(f'v_permlane16_swap_b32 {v(SUM)}, {v(SUM+1)}')
    A(f'v_add_f32 {v(SUM)}, {v(SUM)}, {v(SUM+1)}')
    A(f'v_mov_b32 {v(SUM+1)}, {v(SUM)}')
    A(f'v_permlane32_swap_b32 {v(SUM)}, {v(SUM+1)}')
    A(f'v_add_f32 {v(SUM)}, {v(SUM)}, {v(SUM+1)}')
    A(f'v_rcp_f32 {v(SUM)}, {v(SUM)}')
    for r in range(4):
        A(f'v_mul_f32 {v(o0+r)}, {v(o0+r)}, {v(SUM)}')
        A(f'v_mul_f32 {v(o1+r)}, {v(o1+r)}, {v(SUM)}')
    of = XR[0]
    A(f'v_cvt_pk_bf16_f32 {v(of)}, {v(o0)}, {v(o0+1)}')
    A(f'v_cvt_pk_bf16_f32 {v(of+1)}, {v(o0+2)}, {v(o0+3)}')
    A(f'v_cvt_pk_bf16_f32 {v(of+2)}, {v(o1)}, {v(o1+1)}')
    A(f'v_cvt_pk_bf16_f32 {v(of+3)}, {v(o1+2)}, {v(o1+3)}')
    A(f's_mov_b64 exec, {s(S_EX8,2)}')
    A(f'ds_write_b128 {v(V_OW)}, {v(of,4)}')
    A(f's_mov_b64 exec, -1')
    wo_seq = [(t, ks) for t in range(9) for ks in range(4)]
    def wo_read(i):
        t, ks = wo_seq[i]
        base = V_WO0 if ks < 2 else V_WO1
        A(f'ds_read_b128 {v(V_RING+4*(i%3),4)}, {v(base)} offset:{(ks%2)*36864 + t*1024}')
    for i in range(3): wo_read(i)
    if not cfg.get('NOB1'):
        lab_ok = A.newlabel('b1ok'); lab_re = A.newlabel('b1re')
        A('s_waitcnt vmcnt(2)')
        A(f's_add_u32 {s(S_TMP)}, {s(S_STEP)}, 2')
        A(f's_min_u32 {s(S_TMP)}, {s(S_TMP)}, 64')
        A(f's_mov_b64 exec, 1')
        A(f'v_cmp_gt_u32 vcc, {s(S_TMP)}, {v(V_FLAG)}')
        A(f's_cbranch_vccz {lab_ok}')
        A(f's_mov_b32 {s(S_SPIN)}, {SPIN_LIMIT}')
        A.label(lab_re)
        A(f'buffer_load_dword {v(V_FLAG)}, {v(V_ZERO)}, {s(S_WS,4)}, {s(S_FLAGIN)} offen sc1')
        A('s_waitcnt vmcnt(0)')
        A(f'v_cmp_gt_u32 vcc, {s(S_TMP)}, {v(V_FLAG)}')
        A(f's_cbranch_vccz {lab_ok}')
        spin_check(A, lab_re, fail)
        A.label(lab_ok)
        A(f's_mov_b64 exec, -1')
    skipk = A.newlabel('skipk')
    A(f's_cmp_eq_u32 {s(S_STEP)}, 63')
    A(f's_cbranch_scc1 {skipk}')
    kxvx_load(A)
    A.label(skipk)
    A('s_waitcnt lgkmcnt(3)')
    A('s_barrier')
    stamp(A, cfg, 5)
    OF = [V_AQ + 4*i for i in range(4)]
    for kk in range(4):
        A(f'ds_read_b128 {v(OF[kk],4)}, {v(V_OR)} offset:{kk*512}')
    ACC = [V_QF, V_KF, V_AV, V_AV+4]
    A(f's_mov_b64 exec, {s(S_EX8,2)}') if False else None
    nrd = 3
    def tag_store(t):
        acc = ACC[t % 4]
        if tag: A(f'v_or_b32 {v(acc)}, 1, {v(acc)}')
        else:   A(f'v_and_b32 {v(acc)}, -2, {v(acc)}')
        A(f's_mov_b64 exec, {s(S_EX8,2)}')
        if t < 8: A(st(f'buffer_store_dwordx4 {v(acc,4)}, {v(V_PST)}, {s(S_WS,4)}, {s(S_PST)} offen offset:{t*512}'))
        else: A(st(f'buffer_store_dwordx4 {v(acc,4)}, {v(V_PST)}, {s(S_WS,4)}, {s(S_PST2)} offen'))
        A(f's_mov_b64 exec, -1')
    for i, (t, ks) in enumerate(wo_seq):
        if i == 0: A('s_waitcnt lgkmcnt(3)')
        elif i == 1: A('s_waitcnt lgkmcnt(3)')
        elif i == 2: A('s_waitcnt lgkmcnt(3)')
        elif i == 3: A('s_waitcnt lgkmcnt(2)')
        else: A(f's_waitcnt lgkmcnt({min(2, 35-i)})')
        acc = ACC[t % 4]
        A(f'{MF} {v(acc,4)}, {v(V_RING+4*(i%3),4)}, {v(OF[ks],4)}, {"0" if ks==0 else v(acc,4)}')
        if i + 3 < 36: wo_read(i + 3)
        if ks == 3 and t >= 1: tag_store(t - 1)
    tag_store(8)
    stamp(A, cfg, 6)
    PB = [V_RING, V_RING+4, V_RING+8, V_AQ, V_AQ+4, V_AQ+8, V_AQ+12, V_QF]
    lp1 = A.newlabel('hop1')
    A(f's_mov_b32 {s(S_SPIN)}, {SPIN_LIMIT}')
    A(f's_mov_b64 exec, {s(S_EXP,2)}')
    A.label(lp1)
    for i in range(8):
        A(f'buffer_load_dwordx4 {v(PB[i],4)}, {v(V_PLD)}, {s(S_WS,4)}, {s(S_PL+i)} offen sc1')
    A('s_waitcnt vmcnt(0)')
    T = V_T
    if tag:
        A(f'v_and_b32 {v(T)}, {v(PB[0])}, {v(PB[1])}')
        A(f'v_and_b32 {v(T+1)}, {v(PB[2])}, {v(PB[3])}')
        A(f'v_and_b32 {v(T+2)}, {v(PB[4])}, {v(PB[5])}')
        A(f'v_and_b32 {v(T+3)}, {v(PB[6])}, {v(PB[7])}')
        A(f'v_and_b32 {v(T)}, {v(T)}, {v(T+1)}')
        A(f'v_and_b32 {v(T+2)}, {v(T+2)}, {v(T+3)}')
        A(f'v_and_b32 {v(T)}, {v(T)}, {v(T+2)}')
    else:
        A(f'v_or3_b32 {v(T)}, {v(PB[0])}, {v(PB[1])}, {v(PB[2])}')
        A(f'v_or3_b32 {v(T+1)}, {v(PB[3])}, {v(PB[4])}, {v(PB[5])}')
        A(f'v_or3_b32 {v(T)}, {v(T)}, {v(PB[6])}, {v(PB[7])}')
        A(f'v_or_b32 {v(T)}, {v(T)}, {v(T+1)}')
    A(f'v_and_b32 {v(T)}, 1, {v(T)}')
    A(f'v_cmp_ne_u32 vcc, {tag}, {v(T)}')
    lok = A.newlabel('h1ok')
    A(f's_cbranch_vccz {lok}')
    spin_check(A, lp1, fail)
    A.label(lok)
    stamp(A, cfg, 7)
    def padd(d, x_, y_):
        A(f'v_pk_add_f32 {v(d,2)}, {v(x_,2)}, {v(y_,2)}')
    for (d, o_) in ((0,1),(2,3),(4,5),(6,7),(0,2),(4,6),(0,4)):
        padd(PB[d], PB[d], PB[o_]); padd(PB[d]+2, PB[d]+2, PB[o_]+2)
    X = PB[0]
    A(f's_mov_b64 exec, -1')
    A(f'v_permlane32_swap_b32 {v(X)}, {v(X+2)}')
    A(f'v_permlane32_swap_b32 {v(X+1)}, {v(X+3)}')
    A(f'v_add_f32 {v(X)}, {v(X)}, {v(X+2)}')
    A(f'v_add_f32 {v(X+1)}, {v(X+1)}, {v(X+3)}')
    A(f'v_mov_b32 {v(X+2)}, {v(X)}')
    A(f'v_mov_b32 {v(X+3)}, {v(X+1)}')
    A(f'v_permlane16_swap_b32 {v(X)}, {v(X+2)}')
    A(f'v_permlane16_swap_b32 {v(X+1)}, {v(X+3)}')
    A(f'v_add_f32 {v(X)}, {v(X)}, {v(X+2)}')
    A(f'v_add_f32 {v(X+1)}, {v(X+1)}, {v(X+3)}')
    A(f'v_cvt_pk_bf16_f32 {v(X)}, {v(X)}, {v(X+1)}')
    A(f'v_mov_b32 {v(X+1)}, -1')
    new = [S_MB0, S_MB1][par ^ 1]; old = [S_MB0, S_MB1][par]
    A(f's_mov_b64 exec, {s(S_EXS,2)}')
    A(st(f'buffer_store_dword {v(X)}, {v(V_MST)}, {s(S_WS,4)}, {s(new)} offen'))
    A(st(f'buffer_store_dword {v(X+1)}, {v(V_MST)}, {s(S_WS,4)}, {s(old)} offen'))
    A(f's_mov_b64 exec, -1')
    stamp(A, cfg, 8)
    nb = [(S_MB0, S_MB0b, S_MB0c), (S_MB1, S_MB1b, S_MB1c)][par ^ 1]
    lp2 = A.newlabel('hop2')
    A(f's_mov_b32 {s(S_SPIN)}, {SPIN_LIMIT}')
    A.label(lp2)
    M0r, M1r, M2r = V_AQ, V_AQ+4, V_AQ+8
    A(f'buffer_load_dwordx4 {v(M0r,4)}, {v(V_T16)}, {s(S_WS,4)}, {s(nb[0])} offen sc1')
    A(f'buffer_load_dwordx4 {v(M1r,4)}, {v(V_T16)}, {s(S_WS,4)}, {s(nb[1])} offen sc1')
    A(f'buffer_load_dword {v(M2r)}, {v(V_T4)}, {s(S_WS,4)}, {s(nb[2])} offen sc1')
    A('s_waitcnt vmcnt(0)')
    A(f'v_max3_u32 {v(T)}, {v(M0r)}, {v(M0r+1)}, {v(M0r+2)}')
    A(f'v_max3_u32 {v(T+1)}, {v(M0r+3)}, {v(M1r)}, {v(M1r+1)}')
    A(f'v_max3_u32 {v(T+2)}, {v(M1r+2)}, {v(M1r+3)}, {v(M2r)}')
    A(f'v_max3_u32 {v(T)}, {v(T)}, {v(T+1)}, {v(T+2)}')
    A(f'v_cmp_eq_u32 vcc, -1, {v(T)}')
    lok2 = A.newlabel('h2ok')
    A(f's_cbranch_vccz {lok2}')
    spin_check(A, lp2, fail)
    A.label(lok2)
    A(f'v_add_u32 {v(T)}, {L_MEM}, {v(V_T16)}')
    A(f'v_add_u32 {v(T+1)}, {L_MEM+8192}, {v(V_T4)}')
    A(f'ds_write_b128 {v(T)}, {v(M0r,4)}')
    A(f'ds_write_b128 {v(T)}, {v(M1r,4)} offset:4096')
    A(f'ds_write_b32 {v(T+1)}, {v(M2r)}')
    A('s_waitcnt lgkmcnt(0)')
    A('s_barrier')
    stamp(A, cfg, 9)
    A(f's_add_u32 {s(S_STEP)}, {s(S_STEP)}, 1')

import struct
def f32(x): return struct.unpack('<I', struct.pack('<f', x))[0]

def chain_role(A, cfg, fail, done):
    chain_init(A, cfg)
    cfg['barrier_wait'](A)
    if not cfg.get('NOB1'):
        lab_re = A.newlabel('b1first'); lab_ok = A.newlabel('b1fok')
        A(f's_mov_b32 {s(S_SPIN)}, {SPIN_LIMIT}')
        A.label(lab_re)
        A(f'buffer_load_dword {v(V_FLAG)}, {v(V_ZERO)}, {s(S_WS,4)}, {s(S_FLAGIN)} offen sc1')
        A('s_waitcnt vmcnt(0)')
        A(f'v_cmp_gt_u32 vcc, 1, {v(V_FLAG)}')
        A(f's_cbranch_vccz {lab_ok}')
        spin_check(A, lab_re, fail)
        A.label(lab_ok)
    kxvx_load(A)
    A(f's_mov_b32 {s(S_STEP)}, 0')
    A('s_barrier')
    if cfg.get('STAMPS') or cfg.get('TOTAL'):
        A(f's_memtime {s(S_T0,2)}')
        A('s_waitcnt lgkmcnt(0)')
    loop = A.newlabel('chainloop')
    A.label(loop)
    chain_step(A, 0, cfg, fail)
    chain_step(A, 1, cfg, fail)
    A(f's_cmp_lt_u32 {s(S_STEP)}, 64')
    A(f's_cbranch_scc1 {loop}')
    A(f'v_mov_b32 {v(V_T)}, {s(S_STEP)}')
    A(f's_mov_b64 exec, 1')
    A(f'buffer_store_dword {v(V_T)}, {v(V_ZERO)}, {s(S_WS,4)}, {s(S_FLAGOUT)} offen sc1')
    A(f's_mov_b64 exec, -1')
    if cfg.get('STAMPS') or cfg.get('TOTAL'):
        A(f's_memtime {s(S_T1,2)}')
        A('s_waitcnt lgkmcnt(0)')
        A(f's_sub_u32 {s(S_T1)}, {s(S_T1)}, {s(S_T0)}')
        sk = A.newlabel('nostamp')
        A(f's_or_b32 {s(S_TMP)}, {s(S_ROLE)}, {s(S_WAVE)}')
        A(f's_cmp_lg_u32 {s(S_TMP)}, 0')
        A(f's_cbranch_scc1 {sk}')
        A(f'v_mov_b32 v14, {s(S_T1)}')
        A(f'v_mov_b32 v15, 0')
        A(f'global_store_dword v15, v14, {s(S_DBG,2)} offset:64')
        for i in range(10 if cfg.get('STAMPS') else 0):
            A(f's_sub_u32 {s(S_TMP)}, {s(64+i)}, {s(64)}')
            A(f'v_mov_b32 v14, {s(S_TMP)}')
            A(f'global_store_dword v15, v14, {s(S_DBG,2)} offset:{68+4*i}')
        A.label(sk)
    A(f's_branch {done}')
```

```python
KNAME = 'interleave_layers__sliding_block__memory_aug_recurrent_mem_tr__prompt'
KA_AX, KA_WQKV, KA_AWO, KA_BX, KA_MEM0, KA_WQ, KA_WK, KA_WV, KA_WO, KA_SEG, KA_OUT, KA_DBG, KA_WS = [8*i for i in range(13)]
WS_SIZE = 0x10000000
WS_FLAGS = 0
WS_PART = 0x10000
PART_STRIDE = 0x90000
WS_MEMB = 0x1F0000
MEMB_STRIDE = 0x8000
CLEAR_ONES_WG = 248
WS_QKVX = 0x200000
QKVX_STRIDE = 0x3000000
WS_KVM = WS_QKVX + 2*QKVX_STRIDE
KVM_STRIDE = 0x1000000
WS_NEXT = WS_KVM + 2*KVM_STRIDE
SEG_XN = 36864
SEG_QKVA = 3*36864
SEG_PA = 73728
SEG_X = 32*1152
SEG_OB = 262144
SEG_PB = 4*73728
_o = WS_NEXT
def _al(n, per):
    global _o
    r = _o; _o += per*64; _o = (_o + 4095) & ~4095
    return r
WS_XNA = [_al(0, SEG_XN) for l in range(2)]
WS_QKVA = [_al(0, SEG_QKVA) for l in range(2)]
WS_OA = [_al(0, SEG_XN) for l in range(2)]
WS_PA = [_al(0, SEG_PA) for l in range(2)]
WS_X1 = [_al(0, SEG_X) for l in range(2)]
WS_XNB = [_al(0, SEG_XN) for l in range(2)]
WS_OB = [_al(0, SEG_OB) for l in range(2)]
WS_PB = [_al(0, SEG_PB) for l in range(2)]
WS_X2 = _al(0, SEG_X)
WS_TIME = _o
_o += 256*512
assert _o <= WS_SIZE, hex(_o)
DBG_TICKET = 0
DBG_ARRIVE = 4
DBG_INIT0 = 44
SPIN_LIMIT = 400000
R_CHAIN = [0, 32]
R_B1 = [64, 96]
R_RA = [128, 192]
R_A1 = [132, 196]
R_ATTA = [141, 205]
R_A3 = [157, 221]
R_R0 = 160
R_ATTB = [164, 224]
R_B3 = [172, 232]
R_RB = [184, 244]
N_A1, N_ATTA, N_A3, N_ATTB, N_B3, N_RED = 9, 16, 3, 8, 12, 4
N_RB = 8

RINGS = dict(QKVA=4, OA=4, PA=4, OB=4, PB=4)
```

```python
from asm import *
from common import *
from chain import *

S_IDX = 26
S_SEG = 28
S_PREF = 29
S_FOUT = 30
S_SRC = 31
S_BUFW = 32
S_BUFC = 33
S_DST = 34
S_DST2 = 35
S_DST3 = 36
S_TGT = 37
S_A = 38; S_B = 39; S_C = 40; S_D = 41
S_EXLO = 42
S_BSUM = 44
S_CSUM = 45
S_X = 46

def lane_setup(A):
    A('v_and_b32 v79, 63, v0')
    A('v_mov_b32 v75, v0')
    A('v_and_b32 v78, 15, v79')
    A('v_lshrrev_b32 v77, 4, v79')
    A('v_and_b32 v76, 7, v79')

def flagaddr(A, vdst, role0, n, vlane=79, vt=74):
    A(f'v_min_u32 {v(vdst)}, {n-1}, {v(vlane)}')
    A(f'v_lshrrev_b32 {v(vt)}, 2, {v(vdst)}')
    if isinstance(role0, int): A(f'v_add_u32 {v(vt)}, {role0}, {v(vt)}')
    else: A(f'v_add_u32 {v(vt)}, {role0}, {v(vt)}')
    A(f'v_lshlrev_b32 {v(vt)}, 7, {v(vt)}')
    A(f'v_and_b32 {v(vdst)}, 3, {v(vdst)}')
    A(f'v_lshlrev_b32 {v(vdst)}, 2, {v(vdst)}')
    A(f'v_add_u32 {v(vdst)}, {v(vdst)}, {v(vt)}')

def own_flag(A):
    A(f's_lshl_b32 {s(S_FOUT)}, {s(S_ROLE)}, 7')
    A(f's_lshl_b32 {s(S_TMP)}, {s(S_WAVE)}, 2')
    A(f's_add_u32 {s(S_FOUT)}, {s(S_FOUT)}, {s(S_TMP)}')

def publish(A, sval, vt, vzero):
    A(f'v_mov_b32 {v(vt)}, {sval}')
    A('s_mov_b64 exec, 1')
    A(f'buffer_store_dword {v(vt)}, {v(vzero)}, {s(S_WS,4)}, {s(S_FOUT)} offen sc1')
    A('s_mov_b64 exec, -1')

def poll_block(A, cfg, vaddr, starget, vt, fail):
    if cfg.get('NOWAIT'): return
    re_ = A.newlabel('pre'); ok = A.newlabel('pok')
    A(f's_mov_b32 {s(S_SPIN)}, {SPIN_LIMIT}')
    A.label(re_)
    A(f'buffer_load_dword {v(vt)}, {v(vaddr)}, {s(S_WS,4)}, 0 offen sc1')
    A('s_waitcnt vmcnt(0)')
    A(f'v_cmp_gt_u32 vcc, {starget}, {v(vt)}')
    A(f's_cbranch_vccz {ok}')
    spin_check(A, re_, fail)
    A.label(ok)

def wreg_lin(i, n, vbase):
    return a(i, n) if i < 256 else v(vbase + i - 256, n)

def block_loader(A, blocks, ka, size, vtr=70, per_round=36):
    w = s(S_WAVE)
    load_ptr_srd(A, S_SRD, ka, size)
    A(f'v_lshrrev_b32 v72, 2, v78')
    A(f'v_lshlrev_b32 v73, 2, v77')
    A(f'v_add_u32 v72, v72, v73')
    A(f'v_lshlrev_b32 v72, 5, v72')
    A(f'v_and_b32 v73, 3, v78')
    A(f'v_lshlrev_b32 v73, 3, v73')
    A(f'v_add_u32 v72, v72, v73')
    A(f's_mul_i32 {s(S_TMP)}, {w}, 36864')
    A(f'v_add_u32 {v(vtr)}, {s(S_TMP)}, v72')
    for r0 in range(0, len(blocks), per_round):
        rb = blocks[r0:r0+per_round]
        for i, b in enumerate(rb):
            A(f's_mul_i32 {s(S_M0)}, {w}, 36864')
            if i: A(f's_add_u32 {s(S_M0)}, {s(S_M0)}, {i*1024}')
            b['issue'](A)
        A('s_waitcnt vmcnt(0)')
        for i, b in enumerate(rb):
            for half in range(2):
                A(f'ds_read_b64_tr_b16 {b["dst"](half)}, {v(vtr)} offset:{i*1024 + half*512}')
            if i % 4 == 3: A('s_waitcnt lgkmcnt(8)')
        A('s_waitcnt lgkmcnt(0)')

def dma16(A, vaddr, soff):
    A(f's_mov_b32 m0, {s(S_M0)}')
    A(f'buffer_load_dwordx4 {v(vaddr)}, {s(S_SRD,4)}, {soff} offen lds')

def gemm_loop(A, cfg, P, fail):
    NT, NKS, D = P['NT'], P['NKS'], P.get('D', 3)
    W, ACC, RING = P['W'], P['ACC'], P['RING']
    VL16, VRD, VPOLL, VFLAG, VZERO, VT = P['VL16'], P['VRD'], P['VPOLL'], P['VFLAG'], P['VZERO'], P['VT']
    NF = 2*NKS; NFW = NF//4
    nst = P['nst']
    KMID = P.get('KMID', NKS//2)
    w = s(S_WAVE)
    A(f's_mul_i32 {s(S_TMP)}, {w}, {NFW*1024}')
    A(f's_add_u32 {s(S_SRC)}, {s(S_SRC)}, {s(S_TMP)}')
    A(f's_mov_b32 {s(S_BUFW)}, {s(S_TMP)}')
    A(f's_lshl_b32 {s(S_BSUM)}, {s(S_TMP)}, 1')
    A(f's_add_u32 {s(S_BSUM)}, {s(S_BSUM)}, {NF*1024}')
    A(f's_mov_b32 {s(S_BUFC)}, 0')
    A(f's_mov_b32 {s(S_SEG)}, 0')
    A(f's_mov_b32 {s(S_PREF)}, 0')
    def dma():
        for j0 in range(0, NFW, 4):
            A(f's_add_u32 {s(S_TMP)}, {s(S_BUFW)}, {j0*1024}')
            A(f's_mov_b32 m0, {s(S_TMP)}')
            A(f's_add_u32 {s(S_TMP+1)}, {s(S_SRC)}, {j0*1024}')
            for j in range(j0, min(j0+4, NFW)):
                A(f'buffer_load_dwordx4 {v(VL16)}, {s(S_WS,4)}, {s(S_TMP+1)} offen offset:{(j-j0)*1024} lds')
        A(f's_add_u32 {s(S_SRC)}, {s(S_SRC)}, {P["src_stride"]}')
        A(f's_sub_u32 {s(S_BUFW)}, {s(S_BSUM)}, {s(S_BUFW)}')
    loop = A.newlabel('gloop'); pre = A.newlabel('gpref'); go = A.newlabel('ggo')
    A.label(loop)
    A(f's_cmp_lg_u32 {s(S_PREF)}, 0')
    A(f's_cbranch_scc1 {pre}')
    A(f's_add_u32 {s(S_TGT)}, {s(S_SEG)}, 1')
    poll_block(A, cfg, VPOLL, s(S_TGT), VFLAG, fail)
    dma()
    A('s_waitcnt vmcnt(0)')
    A(f's_branch {go}')
    A.label(pre)
    A(f's_waitcnt vmcnt({nst})')
    A.label(go)
    A('s_barrier')
    A(f's_mov_b32 {s(S_PREF)}, 0')
    A(f'v_add_u32 {v(VRD)}, {s(S_BUFC)}, {v(VL16)}')
    A(f's_sub_u32 {s(S_BUFC)}, {NF*1024}, {s(S_BUFC)}')
    if not cfg.get('NOWAIT'):
        A(f'buffer_load_dword {v(VFLAG)}, {v(VPOLL)}, {s(S_WS,4)}, 0 offen sc1')
    def rd(ks):
        for tt in range(2):
            A(f'ds_read_b128 {v(RING + (ks % D)*8 + tt*4, 4)}, {v(VRD)} offset:{(tt*NKS + ks)*1024}')
    for k in range(min(D, NKS)): rd(k)
    for ks in range(NKS):
        if ks == KMID:
            A('s_waitcnt vmcnt(0)')
            publish(A, s(S_SEG), VT, VZERO)
            sk = A.newlabel('gnopf')
            A(f's_cmp_ge_u32 {s(S_SEG)}, 63')
            A(f's_cbranch_scc1 {sk}')
            if not cfg.get('NOWAIT'):
                A(f's_add_u32 {s(S_TGT)}, {s(S_SEG)}, 2')
                A(f'v_cmp_gt_u32 vcc, {s(S_TGT)}, {v(VFLAG)}')
                A(f's_cbranch_vccnz {sk}')
            dma()
            A(f's_mov_b32 {s(S_PREF)}, 1')
            A.label(sk)
        A(f's_waitcnt lgkmcnt({2*min(D-1, NKS-1-ks)})')
        for t in range(NT):
            for tt in range(2):
                fr = v(RING + (ks % D)*8 + tt*4, 4)
                c = '0' if ks == 0 else v(ACC(t, tt), 4)
                if P['swap'](t): A(f'{MF} {v(ACC(t,tt),4)}, {fr}, {W(t,ks)}, {c}')
                else: A(f'{MF} {v(ACC(t,tt),4)}, {W(t,ks)}, {fr}, {c}')
        if ks + D < NKS: rd(ks + D)
    P['epilogue'](A)
    sk2 = A.newlabel('gnopub')
    A(f's_add_u32 {s(S_SEG)}, {s(S_SEG)}, 1')
    A(f's_cmp_lg_u32 {s(S_PREF)}, 0')
    A(f's_cbranch_scc1 {loop}')
    A('s_waitcnt vmcnt(0)')
    publish(A, s(S_SEG), VT, VZERO)
    A(f's_cmp_lt_u32 {s(S_SEG)}, 64')
    A(f's_cbranch_scc1 {loop}')

def cvt(A, d, x, y): A(f'v_cvt_pk_bf16_f32 {v(d)}, {v(x)}, {v(y)}')

def role_a1(A, cfg, fail, done):
    w = s(S_WAVE)
    lane_setup(A)
    S_M, S_TAU = S_A, S_B
    A(f's_mul_i32 {s(S_M)}, {s(S_IDX)}, 43')
    A(f's_lshr_b32 {s(S_M)}, {s(S_M)}, 7')
    A(f's_mul_i32 {s(S_TMP)}, {s(S_M)}, 3')
    A(f's_sub_u32 {s(S_TMP)}, {s(S_IDX)}, {s(S_TMP)}')
    A(f's_mul_i32 {s(S_TAU)}, {s(S_TMP)}, 12')
    A(f's_mul_i32 {s(S_TMP)}, {w}, 3')
    A(f's_add_u32 {s(S_TAU)}, {s(S_TAU)}, {s(S_TMP)}')
    A('v_lshrrev_b32 v68, 1, v79'); A('v_mul_u32_u24 v68, 3456, v68')
    A('v_and_b32 v72, 1, v79'); A('v_lshlrev_b32 v72, 4, v72'); A('v_add_u32 v68, v68, v72')
    A('v_lshrrev_b32 v69, 3, v79'); A('v_mul_u32_u24 v69, 3456, v69')
    A('v_mul_u32_u24 v72, 36, v76'); A('v_add_u32 v69, v69, v72')
    blocks = []
    for t in range(3):
        for ks in range(18):
            def issue(A, t=t, ks=ks):
                if ks == 0:
                    A(f's_add_u32 {s(S_C)}, {s(S_TAU)}, {t}')
                    A(f's_mul_i32 {s(S_D)}, {s(S_M)}, 1152')
                    A(f's_mul_i32 {s(S_TMP)}, {s(S_C)}, 36')
                    A(f's_sub_u32 {s(S_TMP+1)}, {s(S_C)}, 32')
                    A(f's_mul_i32 {s(S_TMP+1)}, {s(S_TMP+1)}, 288')
                    A(f's_add_u32 {s(S_TMP+1)}, {s(S_TMP+1)}, 32')
                    A(f's_cmp_ge_u32 {s(S_C)}, 32')
                    A(f's_cselect_b32 {s(S_TMP)}, {s(S_TMP+1)}, {s(S_TMP)}')
                    A(f's_add_u32 {s(S_D)}, {s(S_D)}, {s(S_TMP)}')
                lo = A.newlabel('a1lo'); en = A.newlabel('a1en')
                A(f's_add_u32 {s(S_SOFF)}, {s(S_D)}, {ks*32*3456}')
                A(f's_cmp_ge_u32 {s(S_C)}, 32')
                A(f's_cbranch_scc1 {lo}')
                dma16(A, 68, s(S_SOFF))
                A(f's_branch {en}')
                A.label(lo)
                for q in range(4):
                    A(f's_mov_b32 m0, {s(S_M0)}')
                    A(f'buffer_load_dword v69, {s(S_SRD,4)}, {s(S_SOFF)} offen lds')
                    if q < 3:
                        A(f's_add_u32 {s(S_SOFF)}, {s(S_SOFF)}, {8*3456}')
                        A(f's_add_u32 {s(S_M0)}, {s(S_M0)}, 256')
                A.label(en)
            blocks.append(dict(issue=issue, dst=lambda half, t=t, ks=ks: a(t*72 + ks*4 + 2*half, 2)))
    block_loader(A, blocks, KA_WQKV, 576*3456, per_round=27)
    VL16, VRD, VPOLL, VFLAG, VZERO, VT, VL8 = 60, 61, 62, 63, 64, 65, 66
    A(f'v_lshlrev_b32 {v(VL16)}, 4, v79')
    A(f'v_lshlrev_b32 {v(VL8)}, 3, v79')
    A(f'v_mov_b32 {v(VZERO)}, 0')
    sel_layer(A, S_TMP+2, [R_R0, R_RB[0]])
    flagaddr(A, VPOLL, s(S_TMP+2), 16)
    own_flag(A)
    sel_layer(A, S_SRC, WS_XNA)
    sel_layer(A, S_DST, WS_QKVA)
    A(f's_mul_i32 {s(S_TMP)}, {s(S_M)}, 36864')
    A(f's_add_u32 {s(S_DST)}, {s(S_DST)}, {s(S_TMP)}')
    A(f's_lshl_b32 {s(S_TMP)}, {s(S_TAU)}, 10')
    A(f's_add_u32 {s(S_DST)}, {s(S_DST)}, {s(S_TMP)}')
    cfg['barrier_wait'](A)
    ACC = lambda t, tt: t*8 + tt*4
    def epi(swap):
        def f(A):
            for t in range(3):
                b = t*8
                cvt(A, b, b, b+1); cvt(A, b+1, b+2, b+3); cvt(A, b+2, b+4, b+5); cvt(A, b+3, b+6, b+7)
                if swap:
                    A(f'buffer_store_dwordx4 {v(b,4)}, {v(VL16)}, {s(S_WS,4)}, {s(S_DST)} offen offset:{t*1024} sc1')
                else:
                    A(f'buffer_store_dwordx2 {v(b,2)}, {v(VL8)}, {s(S_WS,4)}, {s(S_DST)} offen offset:{t*1024} sc1')
                    A(f'buffer_store_dwordx2 {v(b+2,2)}, {v(VL8)}, {s(S_WS,4)}, {s(S_DST)} offen offset:{t*1024+512} sc1')
            A(f's_add_u32 {s(S_DST)}, {s(S_DST)}, {SEG_QKVA}')
        return f
    lv = A.newlabel('a1v')
    A(f's_cmp_eq_u32 {s(S_M)}, 2')
    A(f's_cbranch_scc1 {lv}')
    for swap in (False, True):
        if swap: A.label(lv); A.flush()
        P = dict(NT=3, NKS=18, D=3, W=lambda t, ks: a(t*72 + ks*4, 4), ACC=ACC, RING=24, VL16=VL16, VRD=VRD, VPOLL=VPOLL,
                 VFLAG=VFLAG, VZERO=VZERO, VT=VT, nst=(3 if swap else 6), swap=lambda t, sw=swap: sw, epilogue=epi(swap), src_stride=SEG_XN)
        gemm_loop(A, cfg, P, fail)
        A(f's_branch {done}')

def sel_layer(A, sdst, vals):
    A(f's_mul_i32 {s(sdst)}, {s(S_L)}, {hex(vals[1]-vals[0])}')
    A(f's_add_u32 {s(sdst)}, {s(sdst)}, {hex(vals[0])}')

def part_store_addr(A, vdst):
    A(f'v_lshrrev_b32 v72, 3, v78'); A(f'v_mul_u32_u24 v72, 18432, v72')
    A(f'v_lshlrev_b32 v73, 7, v77'); A(f'v_add_u32 v72, v72, v73')
    A(f'v_lshlrev_b32 v73, 4, v76'); A(f'v_add_u32 {v(vdst)}, v72, v73')

def part_epilogue(NT, VPS, stride):
    def f(A):
        A(f's_add_u32 {s(S_DST2)}, {s(S_DST)}, 36864')
        for t in range(NT):
            for tt in range(2):
                A(f'buffer_store_dwordx4 {v(t*8+tt*4,4)}, {v(VPS)}, {s(S_WS,4)}, {s(S_DST2 if tt else S_DST)} offen offset:{t*512} sc1')
        A(f's_add_u32 {s(S_DST)}, {s(S_DST)}, {stride}')
    return f

def role_a3(A, cfg, fail, done):
    w = s(S_WAVE)
    lane_setup(A)
    S_T0 = S_A
    A(f's_mul_i32 {s(S_T0)}, {s(S_IDX)}, 12')
    A(f's_mul_i32 {s(S_TMP)}, {w}, 3')
    A(f's_add_u32 {s(S_T0)}, {s(S_T0)}, {s(S_TMP)}')
    A(f's_lshl_b32 {s(S_B)}, {s(S_T0)}, 5')
    A('v_lshrrev_b32 v70, 1, v79')
    A('v_lshrrev_b32 v71, 4, v70')
    A('v_and_b32 v72, 15, v70')
    A('v_mul_u32_u24 v73, 18, v71'); A('v_add_u32 v73, v73, v72'); A('v_mul_u32_u24 v68, 1152, v73')
    A('v_mul_u32_u24 v73, 144, v71')
    A('v_lshrrev_b32 v71, 1, v72'); A('v_mul_u32_u24 v71, 18, v71'); A('v_add_u32 v73, v73, v71')
    A('v_and_b32 v71, 1, v72'); A('v_add_u32 v73, v73, v71'); A('v_add_u32 v73, 16, v73')
    A('v_mul_u32_u24 v69, 1152, v73')
    A('v_and_b32 v72, 1, v79'); A('v_lshlrev_b32 v72, 4, v72')
    A('v_add_u32 v68, v68, v72'); A('v_add_u32 v69, v69, v72')
    blocks = []
    for t in range(3):
        for ks in range(18):
            def issue(A, t=t, ks=ks):
                off = (ks*36*1152 if ks < 16 else (ks-16)*288*1152) + t*32
                A(f's_add_u32 {s(S_SOFF)}, {s(S_B)}, {off}')
                dma16(A, 68 if ks < 16 else 69, s(S_SOFF))
            blocks.append(dict(issue=issue, dst=lambda half, t=t, ks=ks: a(t*72 + ks*4 + 2*half, 2)))
    block_loader(A, blocks, KA_AWO, 576*1152, per_round=27)
    VL16, VRD, VPOLL, VFLAG, VZERO, VT, VPS = 60, 61, 62, 63, 64, 65, 66
    A(f'v_lshlrev_b32 {v(VL16)}, 4, v79')
    A(f'v_mov_b32 {v(VZERO)}, 0')
    sel_layer(A, S_TMP+2, R_ATTA)
    flagaddr(A, VPOLL, s(S_TMP+2), 64)
    own_flag(A)
    part_store_addr(A, VPS)
    sel_layer(A, S_SRC, WS_OA)
    sel_layer(A, S_DST, WS_PA)
    A(f's_lshl_b32 {s(S_TMP)}, {s(S_T0)}, 9')
    A(f's_add_u32 {s(S_DST)}, {s(S_DST)}, {s(S_TMP)}')
    cfg['barrier_wait'](A)
    P = dict(NT=3, NKS=18, D=3, W=lambda t, ks: a(t*72 + ks*4, 4), ACC=lambda t, tt: t*8+tt*4, RING=24, VL16=VL16, VRD=VRD, VPOLL=VPOLL,
             VFLAG=VFLAG, VZERO=VZERO, VT=VT, nst=6, swap=lambda t: False, epilogue=part_epilogue(3, VPS, SEG_PA), src_stride=SEG_XN)
    gemm_loop(A, cfg, P, fail)
    A(f's_branch {done}')

def role_b3(A, cfg, fail, done):
    w = s(S_WAVE)
    lane_setup(A)
    S_KQ, S_T0 = S_A, S_B
    A(f's_mul_i32 {s(S_KQ)}, {s(S_IDX)}, 43')
    A(f's_lshr_b32 {s(S_KQ)}, {s(S_KQ)}, 7')
    A(f's_mul_i32 {s(S_TMP)}, {s(S_KQ)}, 3')
    A(f's_sub_u32 {s(S_TMP)}, {s(S_IDX)}, {s(S_TMP)}')
    A(f's_mul_i32 {s(S_T0)}, {s(S_TMP)}, 12')
    A(f's_mul_i32 {s(S_TMP)}, {w}, 3')
    A(f's_add_u32 {s(S_T0)}, {s(S_T0)}, {s(S_TMP)}')
    A(f's_mul_i32 {s(S_C)}, {s(S_KQ)}, {1024*1152}')
    A(f's_lshl_b32 {s(S_TMP)}, {s(S_T0)}, 5')
    A(f's_add_u32 {s(S_C)}, {s(S_C)}, {s(S_TMP)}')
    A('v_lshrrev_b32 v68, 1, v79'); A('v_mul_u32_u24 v68, 1152, v68')
    A('v_and_b32 v72, 1, v79'); A('v_lshlrev_b32 v72, 4, v72'); A('v_add_u32 v68, v68, v72')
    WB = 128
    blocks = []
    for ks in range(32):
        for t in range(3):
            def issue(A, t=t, ks=ks):
                A(f's_add_u32 {s(S_SOFF)}, {s(S_C)}, {ks*32*1152 + t*32}')
                dma16(A, 68, s(S_SOFF))
            blocks.append(dict(issue=issue, dst=lambda half, t=t, ks=ks: wreg_lin(t*128 + ks*4 + 2*half, 2, WB)))
    block_loader(A, blocks, KA_WO, 4096*1152, per_round=32)
    VL16, VRD, VPOLL, VFLAG, VZERO, VT, VPS = 60, 61, 62, 63, 64, 65, 66
    A(f'v_lshlrev_b32 {v(VL16)}, 4, v79')
    A(f'v_mov_b32 {v(VZERO)}, 0')
    sel_layer(A, S_TMP+2, R_ATTB)
    A(f's_lshl_b32 {s(S_TMP)}, {s(S_KQ)}, 1')
    A(f's_add_u32 {s(S_TMP+2)}, {s(S_TMP+2)}, {s(S_TMP)}')
    flagaddr(A, VPOLL, s(S_TMP+2), 8)
    own_flag(A)
    part_store_addr(A, VPS)
    sel_layer(A, S_SRC, WS_OB)
    A(f's_lshl_b32 {s(S_TMP)}, {s(S_KQ)}, 16')
    A(f's_add_u32 {s(S_SRC)}, {s(S_SRC)}, {s(S_TMP)}')
    sel_layer(A, S_DST, WS_PB)
    A(f's_mul_i32 {s(S_TMP)}, {s(S_KQ)}, 73728')
    A(f's_add_u32 {s(S_DST)}, {s(S_DST)}, {s(S_TMP)}')
    A(f's_lshl_b32 {s(S_TMP)}, {s(S_T0)}, 9')
    A(f's_add_u32 {s(S_DST)}, {s(S_DST)}, {s(S_TMP)}')
    cfg['barrier_wait'](A)
    P = dict(NT=3, NKS=32, D=3, W=lambda t, ks: wreg_lin(t*128 + ks*4, 4, WB), ACC=lambda t, tt: t*8+tt*4, RING=24, VL16=VL16, VRD=VRD, VPOLL=VPOLL,
             VFLAG=VFLAG, VZERO=VZERO, VT=VT, nst=6, swap=lambda t: False, epilogue=part_epilogue(3, VPS, SEG_PB), src_stride=SEG_OB, KMID=10)
    gemm_loop(A, cfg, P, fail)
    A(f's_branch {done}')

def role_b1(A, cfg, fail, done):
    w = s(S_WAVE)
    lane_setup(A)
    issue_half, consume_half = qkv_loader(A, True)
    issue_half(0); issue_half(1)
    for hf in range(6):
        A(f's_waitcnt vmcnt({18 if hf < 5 else 0})')
        A('s_barrier')
        consume_half(hf)
        A('s_barrier')
        if hf + 2 < 6: issue_half(hf + 2)
    VL16, VRD, VPOLL, VFLAG, VZERO, VT = 64, 65, 66, 67, 68, 69
    A(f'v_lshlrev_b32 {v(VL16)}, 4, v79')
    A(f'v_mov_b32 {v(VZERO)}, 0')
    sel_layer(A, S_TMP+2, R_RA)
    flagaddr(A, VPOLL, s(S_TMP+2), 16)
    own_flag(A)
    sel_layer(A, S_SRC, WS_XNB)
    A(f's_mul_i32 {s(S_DST)}, {s(S_L)}, {QKVX_STRIDE}')
    A(f's_mul_i32 {s(S_TMP)}, {s(S_IDX)}, 24576')
    A(f's_add_u32 {s(S_DST)}, {s(S_DST)}, {s(S_TMP)}')
    A(f's_lshl_b32 {s(S_TMP)}, {w}, 10')
    A(f's_add_u32 {s(S_DST)}, {s(S_DST)}, {s(S_TMP)}')
    A(f's_add_u32 {s(S_DST)}, {s(S_DST)}, {WS_QKVX}')
    cfg['barrier_wait'](A)
    def W(t, ks): return [WQ, WK, WV][t//2](t % 2, ks)
    def ACC(t, tt):
        m = t//2
        return (m*2 + tt)*8 + (t % 2)*4 if m < 2 else 32 + (t % 2)*8 + tt*4
    def epi(A):
        for m in range(2):
            for tt in range(2):
                b = (m*2+tt)*8
                cvt(A, b, b, b+1); cvt(A, b+1, b+2, b+3); cvt(A, b+2, b+4, b+5); cvt(A, b+3, b+6, b+7)
                A(f's_add_u32 {s(S_DST2)}, {s(S_DST)}, {m*8192 + tt*4096}')
                A(f'buffer_store_dwordx4 {v(b,4)}, {v(VL16)}, {s(S_WS,4)}, {s(S_DST2)} offen sc1')
        A(f's_lshl_b32 {s(S_TMP)}, {w}, 10')
        A(f's_add_u32 {s(S_DST2)}, {s(S_DST)}, {s(S_TMP)}')
        A(f's_add_u32 {s(S_DST2)}, {s(S_DST2)}, 16384')
        for t in range(2):
            b = 32 + t*8
            cvt(A, b, b, b+1); cvt(A, b+1, b+2, b+3); cvt(A, b+2, b+4, b+5); cvt(A, b+3, b+6, b+7)
            A(f'buffer_store_dwordx4 {v(b,4)}, {v(VL16)}, {s(S_WS,4)}, {s(S_DST2)} offen offset:{t*1024} sc1')
        A(f's_add_u32 {s(S_DST)}, {s(S_DST)}, {32*24576}')
    P = dict(NT=6, NKS=18, D=2, W=W, ACC=ACC, RING=48, VL16=VL16, VRD=VRD, VPOLL=VPOLL, VFLAG=VFLAG, VZERO=VZERO, VT=VT,
             nst=6, swap=lambda t: t >= 4, epilogue=epi, src_stride=SEG_XN, KMID=6)
    gemm_loop(A, cfg, P, fail)
    A(f's_branch {done}')
```

```python
from roles import *

BIGNEG = 0xff7fffff

def xlane_sum(A, x, t, op='v_add_f32', ror8=True):
    if ror8: A(f'{op}_dpp {v(x)}, {v(x)}, {v(x)} row_ror:8 row_mask:0xf bank_mask:0xf')
    A(f'v_mov_b32 {v(t)}, {v(x)}')
    A(f'v_permlane16_swap_b32 {v(x)}, {v(t)}')
    A(f'{op} {v(x)}, {v(x)}, {v(t)}')
    A(f'v_mov_b32 {v(t)}, {v(x)}')
    A(f'v_permlane32_swap_b32 {v(x)}, {v(t)}')
    A(f'{op} {v(x)}, {v(x)}, {v(t)}')

def role_red(A, cfg, kind, l, fail, done):
    w = s(S_WAVE)
    nparts = {'R0': 0, 'RA': 1, 'RB': 4}[kind]
    final = (kind == 'RB' and l == 1)
    lane_setup(A)
    SX, SO = 48, 52
    S_XS, S_XD, S_PS, S_NS = S_A, S_B, S_C, S_D
    VXA, VPA, VNA, VPOLL, VFLAG, VZERO, VT, VST = 110, 111, 112, 113, 114, 115, 116, 117
    A('v_bfe_u32 v72, v79, 3, 2')
    A('v_lshrrev_b32 v73, 5, v79')
    A(f's_mul_i32 {s(S_TMP)}, {w}, 9')
    A(f'v_add_u32 v73, {s(S_TMP)}, v73')
    A(f'v_mul_u32_u24 {v(VXA)}, 1152, v76')
    A(f'v_lshlrev_b32 v74, 5, v73'); A(f'v_add_u32 {v(VXA)}, {v(VXA)}, v74')
    A(f'v_lshlrev_b32 v74, 3, v72'); A(f'v_add_u32 {v(VXA)}, {v(VXA)}, v74')
    A(f'v_lshlrev_b32 {v(VPA)}, 4, v79')
    A(f's_mul_i32 {s(S_TMP)}, {w}, 4608')
    A(f'v_add_u32 {v(VPA)}, {s(S_TMP)}, {v(VPA)}')
    A(f'v_lshrrev_b32 {v(VNA)}, 1, v73'); A(f'v_lshlrev_b32 {v(VNA)}, 10, {v(VNA)}')
    A(f'v_and_b32 v74, 1, v73'); A(f'v_lshlrev_b32 v74, 3, v74'); A(f'v_add_u32 {v(VNA)}, {v(VNA)}, v74')
    A(f'v_lshlrev_b32 v74, 4, v72'); A(f'v_add_u32 v74, v74, v76'); A(f'v_lshlrev_b32 v74, 4, v74')
    A(f'v_add_u32 {v(VNA)}, {v(VNA)}, v74')
    A(f's_and_b32 {s(S_TMP)}, {s(S_IDX)}, 1')
    A(f's_lshr_b32 {s(S_TMP+1)}, {s(S_IDX)}, 1')
    A(f's_lshl_b32 {s(S_TMP+2)}, {s(S_TMP)}, 7')
    A(f'v_add_u32 {v(VNA)}, {s(S_TMP+2)}, {v(VNA)}')
    A(f'v_lshlrev_b32 {v(VST)}, 3, v76')
    A(f'v_mov_b32 {v(VZERO)}, 0')
    A(f's_mul_i32 {s(S_XS)}, {s(S_IDX)}, {8*1152}')
    A(f's_mov_b32 {s(S_XD)}, {s(S_XS)}')
    A(f's_mul_i32 {s(S_PS)}, {s(S_IDX)}, 18432')
    A(f's_mul_i32 {s(S_NS)}, {s(S_TMP+1)}, 18432')
    XB = 2048*1152
    if kind == 'R0' or (kind == 'RA' and l == 0):
        A(f's_load_dwordx2 {s(S_PTR,2)}, {s(S_KA,2)}, {KA_AX}'); A('s_waitcnt lgkmcnt(0)')
        srd_from_ptr(A, SX, S_PTR, XB)
    else:
        for i in range(4): A(f's_mov_b32 {s(SX+i)}, {s(S_WS+i)}')
        A(f's_add_u32 {s(S_XS)}, {s(S_XS)}, {hex(WS_X2 if kind == "RA" else WS_X1[l])}')
    if final:
        A(f's_load_dwordx2 {s(S_PTR,2)}, {s(S_KA,2)}, {KA_OUT}'); A('s_waitcnt lgkmcnt(0)')
        srd_from_ptr(A, SO, S_PTR, XB)
    else:
        for i in range(4): A(f's_mov_b32 {s(SO+i)}, {s(S_WS+i)}')
        if kind != 'R0': A(f's_add_u32 {s(S_XD)}, {s(S_XD)}, {hex(WS_X1[l] if kind == "RA" else WS_X2)}')
    if nparts:
        A(f's_add_u32 {s(S_PS)}, {s(S_PS)}, {hex(WS_PA[l] if kind == "RA" else WS_PB[l])}')
        if kind == 'RA': flagaddr(A, VPOLL, R_A3[l], 12)
        else: flagaddr(A, VPOLL, R_B3[l], 48)
    if not final:
        A(f's_add_u32 {s(S_NS)}, {s(S_NS)}, {hex({"R0": WS_XNA[0], "RA": WS_XNB[l], "RB": WS_XNA[1]}[kind])}')
    own_flag(A)
    A(f's_mov_b32 {s(S_EXLO)}, -1'); A(f's_mov_b32 {s(S_EXLO+1)}, 0')
    cfg['barrier_wait'](A)
    A(f's_mov_b32 {s(S_SEG)}, 0')
    A(f's_mov_b32 {s(S_X)}, 0')
    loop = A.newlabel('rloop')
    A.label(loop)
    if nparts:
        A(f's_add_u32 {s(S_TGT)}, {s(S_SEG)}, 1')
        poll_block(A, cfg, VPOLL, s(S_TGT), VFLAG, fail)
    XR = 20; PR = 128
    def masked(i, f):
        if i == 4: A(f's_mov_b64 exec, {s(S_EXLO,2)}')
        f()
        if i == 4: A('s_mov_b64 exec, -1')
    for i in range(5):
        masked(i, lambda: A(f'buffer_load_dwordx2 {v(XR+2*i,2)}, {v(VXA)}, {s(SX,4)}, {s(S_XS)} offen offset:{i*64}'))
    for p in range(nparts):
        A(f's_add_u32 {s(S_TMP)}, {s(S_PS)}, {p*73728}')
        A(f's_add_u32 {s(S_TMP+1)}, {s(S_TMP)}, 4096')
        for i in range(5):
            masked(i, lambda: A(f'buffer_load_dwordx4 {v(PR+p*20+i*4,4)}, {v(VPA)}, {s(S_WS,4)}, {s(S_TMP+1 if i == 4 else S_TMP)} offen offset:{(i%4)*1024}'))
    A('s_waitcnt vmcnt(0)')
    HI = 118
    if True:
        A(f'v_mov_b32 {v(HI)}, 0xffff0000')
    for i in range(5):
        X = 4*i
        def body():
            A(f'v_lshlrev_b32 {v(X)}, 16, {v(XR+2*i)}')
            A(f'v_and_b32 {v(X+1)}, {v(HI)}, {v(XR+2*i)}')
            A(f'v_lshlrev_b32 {v(X+2)}, 16, {v(XR+2*i+1)}')
            A(f'v_and_b32 {v(X+3)}, {v(HI)}, {v(XR+2*i+1)}')
            if nparts:
                y = PR + i*4
                if nparts == 4:
                    for (d, o) in ((0, 1), (2, 3), (0, 2)):
                        for hh in (0, 2):
                            A(f'v_pk_add_f32 {v(y+d*20+hh,2)}, {v(y+d*20+hh,2)}, {v(y+o*20+hh,2)}')
                cvt(A, y, y, y+1); cvt(A, y+1, y+2, y+3)
                A(f'v_lshlrev_b32 {v(y+4-4+2)}, 16, {v(y)}') if False else None
                A(f'v_and_b32 {v(y+2)}, {v(HI)}, {v(y)}')
                A(f'v_and_b32 {v(y+3)}, {v(HI)}, {v(y+1)}')
                A(f'v_lshlrev_b32 {v(y)}, 16, {v(y)}')
                A(f'v_lshlrev_b32 {v(y+1)}, 16, {v(y+1)}')
                A(f'v_add_f32 {v(X)}, {v(X)}, {v(y)}')
                A(f'v_add_f32 {v(X+1)}, {v(X+1)}, {v(y+2)}')
                A(f'v_add_f32 {v(X+2)}, {v(X+2)}, {v(y+1)}')
                A(f'v_add_f32 {v(X+3)}, {v(X+3)}, {v(y+3)}')
                cvt(A, XR+2*i, X, X+1); cvt(A, XR+2*i+1, X+2, X+3)
                A(f'buffer_store_dwordx2 {v(XR+2*i,2)}, {v(VXA)}, {s(SO,4)}, {s(S_XD)} offen offset:{i*64}' + ('' if final else ' sc1'))
                if not final:
                    A(f'v_lshlrev_b32 {v(X)}, 16, {v(XR+2*i)}')
                    A(f'v_and_b32 {v(X+1)}, {v(HI)}, {v(XR+2*i)}')
                    A(f'v_lshlrev_b32 {v(X+2)}, 16, {v(XR+2*i+1)}')
                    A(f'v_and_b32 {v(X+3)}, {v(HI)}, {v(XR+2*i+1)}')
        masked(i, body)
    if not final:
        SM, M2, T1 = 40, 41, 42
        A(f'v_pk_add_f32 {v(44,2)}, {v(0,2)}, {v(2,2)}')
        for i in range(1, 4):
            A(f'v_pk_add_f32 {v(44,2)}, {v(44,2)}, {v(4*i,2)}')
            A(f'v_pk_add_f32 {v(44,2)}, {v(44,2)}, {v(4*i+2,2)}')
        def b4():
            A(f'v_pk_add_f32 {v(44,2)}, {v(44,2)}, {v(16,2)}')
            A(f'v_pk_add_f32 {v(44,2)}, {v(44,2)}, {v(18,2)}')
        masked(4, b4)
        A(f'v_add_f32 {v(SM)}, v44, v45')
        xlane_sum(A, SM, T1)
        A(f'v_mul_f32 {v(SM)}, {hex(f32(1.0/144))}, {v(SM)}')
        A(f'v_mov_b32 {v(M2)}, 0')
        for i in range(5):
            def b5():
                for r in range(4):
                    A(f'v_sub_f32 {v(46)}, {v(4*i+r)}, {v(SM)}')
                    A(f'v_fmac_f32 {v(M2)}, v46, v46')
            masked(i, b5)
        xlane_sum(A, M2, T1)
        A(f's_lshl_b32 {s(S_TMP)}, {w}, 6')
        A(f's_add_u32 {s(S_TMP)}, {s(S_TMP)}, {s(S_X)}')
        A(f'v_add_u32 {v(T1)}, {s(S_TMP)}, {v(VST)}')
        A('s_mov_b64 exec, 0xff')
        A(f'ds_write_b64 {v(T1)}, {v(SM,2)}')
        A('s_mov_b64 exec, -1')
        A(f'v_add_u32 {v(T1)}, {s(S_X)}, {v(VST)}')
        A('s_waitcnt lgkmcnt(0)')
        A('s_barrier')
        for ww in range(4):
            A(f'ds_read_b64 {v(48+2*ww,2)}, {v(T1)} offset:{ww*64}')
        A(f's_xor_b32 {s(S_X)}, {s(S_X)}, 256')
        A('s_waitcnt lgkmcnt(0)')
        A('v_add_f32 v56, v48, v50'); A('v_add_f32 v57, v52, v54'); A('v_add_f32 v56, v56, v57')
        A('v_mul_f32 v56, 0.25, v56')
        A('v_add_f32 v57, v49, v51'); A('v_add_f32 v58, v53, v55'); A('v_add_f32 v57, v57, v58')
        A('v_mov_b32 v58, 0')
        for ww in range(4):
            A(f'v_sub_f32 v59, {v(48+2*ww)}, v56')
            A(f'v_fmac_f32 v58, v59, v59')
        A(f'v_fmac_f32 v57, {hex(f32(144.0))}, v58')
        A(f'v_mov_b32 v59, {hex(f32(1e-5))}')
        A(f'v_fmac_f32 v59, {hex(f32(1.0/576))}, v57')
        A('v_rsq_f32 v59, v59')
        A(f's_add_u32 {s(S_TMP+1)}, {s(S_NS)}, 4096')
        for i in range(5):
            def b6():
                X = 4*i
                for r in range(4):
                    A(f'v_sub_f32 {v(X+r)}, {v(X+r)}, v56')
                for r in range(4):
                    A(f'v_mul_f32 {v(X+r)}, {v(X+r)}, v59')
                cvt(A, X, X, X+1); cvt(A, X+1, X+2, X+3)
                A(f'buffer_store_dwordx2 {v(X,2)}, {v(VNA)}, {s(S_WS,4)}, {s(S_TMP+1 if i == 4 else S_NS)} offen offset:{(i%4)*1024} sc1')
            masked(i, b6)
    A(f's_add_u32 {s(S_XS)}, {s(S_XS)}, {SEG_X}')
    A(f's_add_u32 {s(S_XD)}, {s(S_XD)}, {SEG_X}')
    A(f's_add_u32 {s(S_PS)}, {s(S_PS)}, {SEG_PA if kind == "RA" else SEG_PB}')
    A(f's_add_u32 {s(S_NS)}, {s(S_NS)}, {SEG_XN}')
    A(f's_add_u32 {s(S_SEG)}, {s(S_SEG)}, 1')
    if not final:
        A('s_waitcnt vmcnt(0)')
        publish(A, s(S_SEG), VT, VZERO)
    A(f's_cmp_lt_u32 {s(S_SEG)}, 64')
    A(f's_cbranch_scc1 {loop}')
    A(f's_branch {done}')

def causal_masks(A, sbase, vt=72):
    A(f'v_lshlrev_b32 {v(vt)}, 2, v77')
    for r in range(4):
        A(f'v_add_u32 {v(vt+1)}, {r}, {v(vt)}')
        A(f'v_cmp_gt_u32 {s(sbase+2*r,2)}, {v(vt+1)}, v78')

def role_attb(A, cfg, fail, done):
    w = s(S_WAVE)
    lane_setup(A)
    S_HH = S_A
    A(f's_lshl_b32 {s(S_HH)}, {s(S_IDX)}, 2')
    A(f's_add_u32 {s(S_HH)}, {s(S_HH)}, {w}')
    SMK = 46
    causal_masks(A, SMK)
    VL16, VP1, VP2, VFLAG, VZERO, VT, VSC, VNEG = 220, 221, 222, 223, 224, 225, 226, 227
    A(f'v_lshlrev_b32 {v(VL16)}, 4, v79')
    A(f'v_mov_b32 {v(VZERO)}, 0')
    A(f'v_mov_b32 {v(VSC)}, {hex(f32((128 ** -0.5) * 1.4426950408889634))}')
    A(f'v_mov_b32 {v(VNEG)}, {hex(BIGNEG)}')
    sel_layer(A, S_TMP+2, R_B1); A(f's_add_u32 {s(S_TMP+2)}, {s(S_TMP+2)}, {s(S_HH)}')
    flagaddr(A, VP1, s(S_TMP+2), 4)
    sel_layer(A, S_TMP+2, R_CHAIN); A(f's_add_u32 {s(S_TMP+2)}, {s(S_TMP+2)}, {s(S_HH)}')
    flagaddr(A, VP2, s(S_TMP+2), 4)
    own_flag(A)
    S_QX, S_KV, S_OB = S_B, S_C, S_D
    A(f's_mul_i32 {s(S_QX)}, {s(S_L)}, {QKVX_STRIDE}')
    A(f's_mul_i32 {s(S_TMP)}, {s(S_HH)}, 24576')
    A(f's_add_u32 {s(S_QX)}, {s(S_QX)}, {s(S_TMP)}')
    A(f's_add_u32 {s(S_QX)}, {s(S_QX)}, {WS_QKVX}')
    A(f's_mul_i32 {s(S_KV)}, {s(S_L)}, {KVM_STRIDE}')
    A(f's_lshl_b32 {s(S_TMP)}, {s(S_HH)}, 13')
    A(f's_add_u32 {s(S_KV)}, {s(S_KV)}, {s(S_TMP)}')
    A(f's_add_u32 {s(S_KV)}, {s(S_KV)}, {WS_KVM}')
    sel_layer(A, S_OB, WS_OB)
    A(f's_lshr_b32 {s(S_TMP)}, {s(S_HH)}, 3'); A(f's_lshl_b32 {s(S_TMP)}, {s(S_TMP)}, 16')
    A(f's_add_u32 {s(S_OB)}, {s(S_OB)}, {s(S_TMP)}')
    A(f's_and_b32 {s(S_TMP)}, {s(S_HH)}, 7'); A(f's_lshl_b32 {s(S_TMP)}, {s(S_TMP)}, 12')
    A(f's_add_u32 {s(S_OB)}, {s(S_OB)}, {s(S_TMP)}')
    cfg['barrier_wait'](A)
    A(f's_mov_b32 {s(S_SEG)}, 0')
    Q = lambda tt, kk: tt*16 + kk*4
    KX = lambda kt, kk: 32 + kt*16 + kk*4
    VX = lambda et: 64 + et*4
    KM = lambda kk: 96 + kk*4
    VM = lambda et: 112 + et*2
    S00, S01, S11, SM0, SM1 = 128, 132, 136, 140, 144
    O = lambda et, tt: 148 + ((tt*4 + et//2)*2 + (et & 1))*4
    loop = A.newlabel('bloop')
    A.label(loop)
    A(f's_add_u32 {s(S_TGT)}, {s(S_SEG)}, 1')
    poll_block(A, cfg, VP1, s(S_TGT), VFLAG, fail)
    for blk in range(6):
        A(f's_add_u32 {s(S_TMP)}, {s(S_QX)}, {blk*4096}')
        for j in range(4):
            A(f'buffer_load_dwordx4 {v((blk*4+j)*4,4)}, {v(VL16)}, {s(S_WS,4)}, {s(S_TMP)} offen offset:{j*1024}')
    A('s_waitcnt vmcnt(8)')
    for kk in range(4):
        for (acc, kt, tt) in ((S00, 0, 0), (S01, 0, 1), (S11, 1, 1)):
            A(f'{MF} {v(acc,4)}, {v(KX(kt,kk),4)}, {v(Q(tt,kk),4)}, {"0" if kk == 0 else v(acc,4)}')
    poll_block(A, cfg, VP2, s(S_TGT), VFLAG, fail)
    A(f's_add_u32 {s(S_TMP)}, {s(S_KV)}, 4096')
    for j in range(4): A(f'buffer_load_dwordx4 {v(KM(j),4)}, {v(VL16)}, {s(S_WS,4)}, {s(S_KV)} offen offset:{j*1024}')
    for j in range(4): A(f'buffer_load_dwordx4 {v(112+4*j,4)}, {v(VL16)}, {s(S_WS,4)}, {s(S_TMP)} offen offset:{j*1024}')
    for r in range(4):
        A(f'v_cndmask_b32 {v(S00+r)}, {v(S00+r)}, {v(VNEG)}, {s(SMK+2*r,2)}')
        A(f'v_cndmask_b32 {v(S11+r)}, {v(S11+r)}, {v(VNEG)}, {s(SMK+2*r,2)}')
    A('s_waitcnt vmcnt(4)')
    for kk in range(4):
        for (acc, tt) in ((SM0, 0), (SM1, 1)):
            A(f'{MF} {v(acc,4)}, {v(KM(kk),4)}, {v(Q(tt,kk),4)}, {"0" if kk == 0 else v(acc,4)}')
    MX = [0, 2]; T = 4; NM = [6, 8]; SUM = [10, 11]
    xs = [[S00], [S01, S11]]; ms = [SM0, SM1]
    for tt in range(2):
        vals = [x+r for x in xs[tt] + [ms[tt]] for r in range(4)]
        mx = MX[tt]
        A(f'v_max3_f32 {v(mx)}, {v(vals[0])}, {v(vals[1])}, {v(vals[2])}')
        rest = vals[3:]
        while len(rest) >= 2:
            A(f'v_max3_f32 {v(mx)}, {v(mx)}, {v(rest[0])}, {v(rest[1])}'); rest = rest[2:]
        if rest: A(f'v_max_f32 {v(mx)}, {v(mx)}, {v(rest[0])}')
    for tt in range(2):
        xlane_sum(A, MX[tt], T + tt, op='v_max_f32', ror8=False)
    for tt in range(2):
        A(f'v_mul_f32 {v(NM[tt])}, {hex(f32(-(128 ** -0.5) * 1.4426950408889634))}, {v(MX[tt])}')
        A(f'v_add_f32 {v(NM[tt]+1)}, -1.0, {v(NM[tt])}')
    for tt in range(2):
        for x in xs[tt]:
            for r in range(4): A(f'v_fma_f32 {v(x+r)}, {v(x+r)}, {v(VSC)}, {v(NM[tt])}')
        for r in range(4): A(f'v_fma_f32 {v(ms[tt]+r)}, {v(ms[tt]+r)}, {v(VSC)}, {v(NM[tt]+1)}')
    for tt in range(2):
        for x in xs[tt] + [ms[tt]]:
            for r in range(4): A(f'v_exp_f32 {v(x+r)}, {v(x+r)}')
    P0, P1, PM0, PM1 = 12, 16, 20, 22
    cvt(A, P0, S00, S00+1); cvt(A, P0+1, S00+2, S00+3)
    A(f'v_mov_b32 {v(P0+2)}, 0'); A(f'v_mov_b32 {v(P0+3)}, 0')
    cvt(A, P1, S01, S01+1); cvt(A, P1+1, S01+2, S01+3); cvt(A, P1+2, S11, S11+1); cvt(A, P1+3, S11+2, S11+3)
    cvt(A, PM0, SM0, SM0+1); cvt(A, PM0+1, SM0+2, SM0+3); cvt(A, PM1, SM1, SM1+1); cvt(A, PM1+1, SM1+2, SM1+3)
    for et in range(8):
        for tt in range(2):
            A(f'{MF} {v(O(et,tt),4)}, {v(VX(et),4)}, {v([P0,P1][tt],4)}, 0')
    for tt in range(2):
        vals = [x+r for x in xs[tt] + [ms[tt]] for r in range(4)]
        A(f'v_add_f32 {v(SUM[tt])}, {v(vals[0])}, {v(vals[1])}')
        for x in vals[2:]: A(f'v_add_f32 {v(SUM[tt])}, {v(SUM[tt])}, {v(x)}')
    A('s_waitcnt vmcnt(0)')
    for et in range(8):
        for tt in range(2):
            A(f'{MF16} {v(O(et,tt),4)}, {v(VM(et),2)}, {v([PM0,PM1][tt],2)}, {v(O(et,tt),4)}')
    for tt in range(2):
        xlane_sum(A, SUM[tt], T + tt, ror8=False)
    for tt in range(2): A(f'v_rcp_f32 {v(SUM[tt])}, {v(SUM[tt])}')
    for tt in range(2):
        A(f's_add_u32 {s(S_TMP)}, {s(S_OB)}, {tt*32768}')
        for kk in range(4):
            b = O(2*kk, tt)
            for r in range(8): A(f'v_mul_f32 {v(b+r)}, {v(b+r)}, {v(SUM[tt])}')
            cvt(A, b, b, b+1); cvt(A, b+1, b+2, b+3); cvt(A, b+2, b+4, b+5); cvt(A, b+3, b+6, b+7)
            A(f'buffer_store_dwordx4 {v(b,4)}, {v(VL16)}, {s(S_WS,4)}, {s(S_TMP)} offen offset:{kk*1024} sc1')
    A(f's_add_u32 {s(S_QX)}, {s(S_QX)}, {32*24576}')
    A(f's_add_u32 {s(S_KV)}, {s(S_KV)}, {32*8192}')
    A(f's_add_u32 {s(S_OB)}, {s(S_OB)}, {SEG_OB}')
    A(f's_add_u32 {s(S_SEG)}, {s(S_SEG)}, 1')
    A('s_waitcnt vmcnt(0)')
    publish(A, s(S_SEG), VT, VZERO)
    A(f's_cmp_lt_u32 {s(S_SEG)}, 64')
    A(f's_cbranch_scc1 {loop}')
    A(f's_branch {done}')

NSLOT = 10
def role_atta(A, cfg, fail, done):
    w = s(S_WAVE)
    lane_setup(A)
    S_HH, S_TT, S_HD = S_A, S_B, S_C
    A(f's_lshr_b32 {s(S_HH)}, {w}, 1')
    A(f's_and_b32 {s(S_TT)}, {w}, 1')
    A(f's_lshl_b32 {s(S_HD)}, {s(S_IDX)}, 1')
    A(f's_add_u32 {s(S_HD)}, {s(S_HD)}, {s(S_HH)}')
    SMK = 46
    causal_masks(A, SMK)
    VKB, VVB, VL8, VL16, VPOLL, VFLAG, VZERO, VT, VNEG, MK2, MK3, VO1, VO2 = 150, 151, 152, 153, 154, 155, 156, 157, 158, 159, 160, 161, 162
    SCP, NMP = 164, 166
    A(f'v_lshlrev_b32 {v(VL8)}, 3, v79')
    A(f'v_lshlrev_b32 {v(VL16)}, 4, v79')
    A(f's_lshl_b32 {s(S_TMP)}, {s(S_HH)}, 12')
    A(f'v_add_u32 {v(VKB)}, {s(S_TMP)}, {v(VL8)}')
    A(f'v_add_u32 {v(VVB)}, {s(S_TMP)}, {v(VL16)}')
    A(f'v_mov_b32 {v(VZERO)}, 0')
    A(f'v_mov_b32 {v(VNEG)}, {hex(BIGNEG)}')
    SC = (18 ** -0.5) * 1.4426950408889634
    A(f'v_mov_b32 {v(SCP)}, {hex(f32(SC))}'); A(f'v_mov_b32 {v(SCP+1)}, {hex(f32(SC))}')
    for i in range(4): A(f'v_mov_b32 {v(128+i)}, 0x3f803f80')
    A(f's_and_b32 {s(S_TMP)}, {s(S_IDX)}, 3')
    A(f'v_cmp_eq_u32 vcc, {s(S_TMP)}, v77')
    A(f's_mov_b64 {s(54,2)}, vcc')
    A(f'v_cndmask_b32 {v(MK2)}, 0, -1, vcc')
    A(f'v_mov_b32 {v(MK3)}, {v(MK2)}')
    A(f's_cmp_eq_u32 {s(S_HH)}, 0')
    A(f's_cselect_b32 {s(S_TMP)}, -1, 0')
    A(f'v_and_b32 {v(MK2)}, {s(S_TMP)}, {v(MK2)}')
    A(f's_not_b32 {s(S_TMP)}, {s(S_TMP)}')
    A(f'v_and_b32 {v(MK3)}, {s(S_TMP)}, {v(MK3)}')
    A(f's_cselect_b64 {s(56,2)}, 0, -1') if False else None
    A(f's_cmp_eq_u32 {s(S_HH)}, 0')
    A(f's_cselect_b64 {s(56,2)}, 0, -1')
    A(f's_lshl_b32 {s(S_TMP)}, {s(S_HH)}, 3')
    A(f'v_add_u32 {v(VO1)}, {s(S_TMP)}, {v(VL16)}')
    A(f's_bfe_u32 {s(S_TMP)}, {s(S_HD)}, 0x10003')
    A(f's_lshl_b32 {s(S_TMP)}, {s(S_TMP)}, 3')
    A(f's_lshl_b32 {s(S_TMP+1)}, {s(S_HH)}, 2')
    A(f's_add_u32 {s(S_TMP)}, {s(S_TMP)}, {s(S_TMP+1)}')
    A(f'v_add_u32 {v(VO2)}, {s(S_TMP)}, {v(VL16)}')
    S_O1, S_O2, S_D1, S_D2, S_Q1, S_Q2, S_LD = 58, 59, 60, 61, 64, 65, 66
    sel_layer(A, S_O1, WS_OA)
    A(f's_mul_i32 {s(S_TMP)}, {s(S_TT)}, 18432')
    A(f's_add_u32 {s(S_O1)}, {s(S_O1)}, {s(S_TMP)}')
    A(f's_lshr_b32 {s(S_TMP)}, {s(S_HD)}, 4'); A(f's_add_u32 {s(S_TMP)}, {s(S_TMP)}, 16'); A(f's_lshl_b32 {s(S_TMP)}, {s(S_TMP)}, 10')
    A(f's_add_u32 {s(S_O2)}, {s(S_O1)}, {s(S_TMP)}')
    A(f's_lshr_b32 {s(S_TMP)}, {s(S_HD)}, 1'); A(f's_lshl_b32 {s(S_TMP)}, {s(S_TMP)}, 10')
    A(f's_add_u32 {s(S_O1)}, {s(S_O1)}, {s(S_TMP)}')
    sel_layer(A, S_Q1, WS_QKVA)
    A(f's_lshl_b32 {s(S_TMP)}, {s(S_HD)}, 10')
    A(f's_lshr_b32 {s(S_TMP+1)}, {s(S_HD)}, 3'); A(f's_add_u32 {s(S_TMP+1)}, {s(S_TMP+1)}, 32'); A(f's_lshl_b32 {s(S_TMP+1)}, {s(S_TMP+1)}, 10')
    A(f's_add_u32 {s(S_Q2)}, {s(S_Q1)}, {s(S_TMP+1)}')
    A(f's_add_u32 {s(S_Q1)}, {s(S_Q1)}, {s(S_TMP)}')
    A(f's_add_u32 {s(S_TMP)}, {s(S_TT)}, 1'); A(f's_mul_i32 {s(S_TMP)}, {s(S_TMP)}, 36864')
    A(f's_add_u32 {s(S_D1)}, {s(S_Q1)}, {s(S_TMP)}')
    A(f's_add_u32 {s(S_D2)}, {s(S_Q2)}, {s(S_TMP)}')
    A(f's_lshl_b32 {s(S_TMP)}, {s(S_TT)}, 9')
    A(f's_add_u32 {s(S_Q1)}, {s(S_Q1)}, {s(S_TMP)}')
    A(f's_add_u32 {s(S_Q2)}, {s(S_Q2)}, {s(S_TMP)}')
    A(f's_lshl_b32 {s(S_LD)}, {s(S_HH)}, 12')
    A(f's_lshl_b32 {s(S_TMP)}, {s(S_TT)}, 11')
    A(f's_add_u32 {s(S_LD)}, {s(S_LD)}, {s(S_TMP)}')
    sel_layer(A, S_TMP+2, R_A1)
    flagaddr(A, VPOLL, s(S_TMP+2), 36)
    own_flag(A)
    for i in range(4): A(f'v_mov_b32 {v(i)}, 0')
    A('v_lshlrev_b32 v4, 4, v75')
    A('v_add_u32 v5, 0x10000, v4')
    for i in range(NSLOT*8192//4096):
        A(f'ds_write_b128 {"v4" if i < 16 else "v5"}, v[0:3] offset:{(i % 16)*4096}')
    A('s_waitcnt lgkmcnt(0)')
    cfg['barrier_wait'](A)
    A('s_barrier')
    S_SL = 68
    for m in range(9): A(f's_mov_b32 {s(S_SL+m)}, {((2+m) % NSLOT)*8192}')
    A(f's_mov_b32 {s(S_SEG)}, 0')
    l1 = A.newlabel('aatt1')
    A(f's_cmp_eq_u32 {s(S_TT)}, 1')
    A(f's_cbranch_scc1 {l1}')
    KR, VR, QF, OM, OL, OD, ONES = 72, 88, 112, 116, 120, 124, 128
    VK = lambda m: 132 + m
    VV = lambda m: 141 + m
    for tt in range(2):
        if tt: A.label(l1); A.flush()
        loop = A.newlabel('aloop')
        A.label(loop)
        A(f's_add_u32 {s(S_TGT)}, {s(S_SEG)}, 1')
        poll_block(A, cfg, VPOLL, s(S_TGT), VFLAG, fail)
        A(f's_add_u32 {s(S_TMP)}, {s(S_LD)}, {s(S_SL+8)}')
        A(f's_mov_b32 m0, {s(S_TMP)}')
        A(f'buffer_load_dwordx4 {v(VL16)}, {s(S_WS,4)}, {s(S_D1)} offen lds')
        A(f's_add_u32 {s(S_TMP)}, {s(S_TMP)}, 1024')
        A(f's_mov_b32 m0, {s(S_TMP)}')
        A(f'buffer_load_dwordx4 {v(VL16)}, {s(S_WS,4)}, {s(S_D2)} offen lds')
        A(f'buffer_load_dwordx2 {v(QF,2)}, {v(VL8)}, {s(S_WS,4)}, {s(S_Q1)} offen')
        A(f'buffer_load_dwordx2 {v(QF+2,2)}, {v(VL8)}, {s(S_WS,4)}, {s(S_Q2)} offen')
        for m in range(9):
            A(f'v_add_u32 {v(VK(m))}, {s(S_SL+m)}, {v(VKB)}')
            A(f'v_add_u32 {v(VV(m))}, {s(S_SL+m)}, {v(VVB)}')
        A('s_waitcnt vmcnt(0)')
        A(f'v_and_b32 {v(QF+2)}, {v(MK2)}, {v(QF+2)}')
        A(f'v_and_b32 {v(QF+3)}, {v(MK3)}, {v(QF+3)}')
        A('s_barrier')
        tiles = list(range(tt, tt+17))
        def kread(i):
            j = tiles[i]
            A(f'ds_read2st64_b64 {v(KR+4*(i%4),4)}, {v(VK(j>>1))} offset0:{j&1} offset1:{2+(j&1)}')
        for i in range(4): kread(i)
        for i in range(17):
            A(f's_waitcnt lgkmcnt({min(3, 16-i)})')
            A(f'{MF} {v(4*tiles[i],4)}, {v(KR+4*(i%4),4)}, {v(QF,4)}, 0')
            if i + 4 < 17: kread(i+4)
        def vread(m):
            A(f'ds_read_b128 {v(VR+8*(m%3),4)}, {v(VV(m))} offset:2048')
            A(f'ds_read_b128 {v(VR+8*(m%3)+4,4)}, {v(VV(m))} offset:3072')
        for m in range(3): vread(m)
        jf, jl = tiles[0], tiles[-1]
        for r in range(4):
            A(f'v_cndmask_b32 {v(4*jf+r)}, {v(VNEG)}, {v(4*jf+r)}, {s(SMK+2*r,2)}')
        for r in range(4):
            A(f'v_cndmask_b32 {v(4*jl+r)}, {v(4*jl+r)}, {v(VNEG)}, {s(SMK+2*r,2)}')
        lok = A.newlabel('aval')
        A(f's_cmp_ge_u32 {s(S_SEG)}, 8')
        A(f's_cbranch_scc1 {lok}')
        for m in range(8):
            A(f's_cmp_ge_u32 {s(S_SEG)}, {8-m}')
            A(f's_cbranch_scc1 {lok}')
            for j in (2*m, 2*m+1):
                if j in tiles:
                    for r in range(4): A(f'v_mov_b32 {v(4*j+r)}, {v(VNEG)}')
        A.label(lok)
        A('s_nop 7')
        vals = [4*j+r for j in tiles for r in range(4)]
        MX, MX2, T = 168, 169, 170
        A(f'v_max3_f32 {v(MX)}, {v(vals[0])}, {v(vals[1])}, {v(vals[2])}')
        A(f'v_max3_f32 {v(MX2)}, {v(vals[3])}, {v(vals[4])}, {v(vals[5])}')
        rest = vals[6:]; k = 0
        while len(rest) >= 2:
            d = [MX, MX2][k % 2]; k += 1
            A(f'v_max3_f32 {v(d)}, {v(d)}, {v(rest[0])}, {v(rest[1])}'); rest = rest[2:]
        assert not rest
        A(f'v_max_f32 {v(MX)}, {v(MX)}, {v(MX2)}')
        xlane_sum(A, MX, T, op='v_max_f32', ror8=False)
        A(f'v_mul_f32 {v(NMP)}, {hex(f32(-SC))}, {v(MX)}')
        A(f'v_mov_b32 {v(NMP+1)}, {v(NMP)}')
        for m in range(9):
            for j in (2*m, 2*m+1):
                if j in tiles:
                    for r in (0, 2): A(f'v_pk_fma_f32 {v(4*j+r,2)}, {v(4*j+r,2)}, {v(SCP,2)}, {v(NMP,2)}')
            for j in (2*m, 2*m+1):
                if j in tiles:
                    for r in range(4): A(f'v_exp_f32 {v(4*j+r)}, {v(4*j+r)}')
            b = 8*m
            if 2*m in tiles: cvt(A, b, b, b+1); cvt(A, b+1, b+2, b+3)
            else: A(f'v_mov_b32 {v(b)}, 0'); A(f'v_mov_b32 {v(b+1)}, 0')
            if 2*m+1 in tiles: cvt(A, b+2, b+4, b+5); cvt(A, b+3, b+6, b+7)
            else: A(f'v_mov_b32 {v(b+2)}, 0'); A(f'v_mov_b32 {v(b+3)}, 0')
            A(f's_waitcnt lgkmcnt({2*min(2, 8-m)})')
            c = lambda r: '0' if m == 0 else v(r, 4)
            A(f'{MF} {v(OM,4)}, {v(VR+8*(m%3),4)}, {v(b,4)}, {c(OM)}')
            A(f'{MF} {v(OL,4)}, {v(VR+8*(m%3)+4,4)}, {v(b,4)}, {c(OL)}')
            A(f'{MF} {v(OD,4)}, {v(ONES,4)}, {v(b,4)}, {c(OD)}')
            if m + 3 < 9: vread(m+3)
        A(f'v_rcp_f32 {v(T)}, {v(OD)}')
        for r in range(4):
            A(f'v_mul_f32 {v(OM+r)}, {v(OM+r)}, {v(T)}')
            A(f'v_mul_f32 {v(OL+r)}, {v(OL+r)}, {v(T)}')
        cvt(A, OM, OM, OM+1); cvt(A, OM+1, OM+2, OM+3)
        cvt(A, OL, OL, OL+1); cvt(A, OL+1, OL+2, OL+3)
        A(f'v_cndmask_b32 {v(OL)}, {v(OL)}, {v(OL+1)}, {s(56,2)}')
        A(f'buffer_store_dwordx2 {v(OM,2)}, {v(VO1)}, {s(S_WS,4)}, {s(S_O1)} offen sc1')
        A(f's_mov_b64 exec, {s(54,2)}')
        A(f'buffer_store_dword {v(OL)}, {v(VO2)}, {s(S_WS,4)}, {s(S_O2)} offen sc1')
        A('s_mov_b64 exec, -1')
        for r in (S_O1, S_O2): A(f's_add_u32 {s(r)}, {s(r)}, {SEG_XN}')
        for r in (S_D1, S_D2, S_Q1, S_Q2): A(f's_add_u32 {s(r)}, {s(r)}, {SEG_QKVA}')
        for m in range(9):
            A(f's_add_u32 {s(S_SL+m)}, {s(S_SL+m)}, 8192')
            A(f's_cmp_eq_u32 {s(S_SL+m)}, {NSLOT*8192}')
            A(f's_cselect_b32 {s(S_SL+m)}, 0, {s(S_SL+m)}')
        A(f's_add_u32 {s(S_SEG)}, {s(S_SEG)}, 1')
        A('s_waitcnt vmcnt(0)')
        publish(A, s(S_SEG), VT, VZERO)
        A(f's_cmp_lt_u32 {s(S_SEG)}, 64')
        A(f's_cbranch_scc1 {loop}')
        A(f's_branch {done}')
```

```python
import sys
from asm import *
from common import *
from chain import *
from roles import *
from roles2 import *

def barrier_arrive(A):
    A('s_waitcnt vmcnt(0)')
    A('s_barrier')
    skip = A.newlabel('gbskip')
    A(f's_cmp_lg_u32 {s(S_WAVE)}, 0')
    A(f's_cbranch_scc1 {skip}')
    A(f's_lshl_b32 {s(S_TMP)}, {s(S_XCC)}, 2')
    A(f'v_mov_b32 v2, {s(S_TMP)}')
    A(f'v_mov_b32 v3, 1')
    A(f's_mov_b64 exec, 1')
    A(f'global_atomic_add v2, v3, {s(S_DBG,2)} offset:{DBG_ARRIVE*4}')
    A(f's_mov_b64 exec, -1')
    A.label(skip)

def barrier_wait(A):
    re_ = A.newlabel('gbre'); ok = A.newlabel('gbok')
    A(f's_mov_b32 {s(S_SPIN)}, {SPIN_LIMIT}')
    A(f'v_and_b32 v72, 7, v79')
    A(f'v_lshlrev_b32 v72, 2, v72')
    A.label(re_)
    A(f'global_load_dword v73, v72, {s(S_DBG,2)} offset:{DBG_ARRIVE*4} sc1')
    A('s_waitcnt vmcnt(0)')
    A(f'v_readlane_b32 {s(S_TMP)}, v73, 0')
    for i in range(1, 8):
        A(f'v_readlane_b32 {s(S_TMP+1)}, v73, {i}')
        A(f's_add_u32 {s(S_TMP)}, {s(S_TMP)}, {s(S_TMP+1)}')
    A(f's_cmp_ge_u32 {s(S_TMP)}, 256')
    A(f's_cbranch_scc1 {ok}')
    spin_check(A, re_, 'L_FAIL')
    A.label(ok)

def build(cfg):
    A = Asm()
    A.raw(open('cdna_kernels/' + KNAME + '.s.ref').read().split('; Override launch')[0].rstrip('\n'))
    A.raw('; Override launch geometry by editing the next line (default: block=256,')
    A.raw('; @launch grid=(256,1,1) block=(256,1,1) lds=163840')
    A.raw('.amdgcn_target "amdgcn-amd-amdhsa--gfx950"')
    A.raw('.text')
    A.raw(f'.globl {KNAME}_kernel')
    A.raw('.p2align 8')
    A.raw(f'.type {KNAME}_kernel,@function')
    A.raw(f'{KNAME}_kernel:')
    A(f's_cmp_ge_u32 {s(S_WG)}, 256')
    A('s_cbranch_scc1 L_END')
    A(f's_load_dwordx2 {s(S_PTR,2)}, {s(S_KA,2)}, {KA_WS}')
    A(f's_load_dwordx2 {s(S_DBG,2)}, {s(S_KA,2)}, {KA_DBG}')
    A(f's_getreg_b32 {s(S_XCC)}, hwreg(HW_REG_XCC_ID, 0, 4)')
    A(f'v_lshrrev_b32 v1, 6, v0')
    A(f'v_readfirstlane_b32 {s(S_WAVE)}, v1')
    A('s_waitcnt lgkmcnt(0)')
    srd_from_ptr(A, S_WS, S_PTR, WS_SIZE)
    A(f's_and_b32 {s(S_XCC)}, {s(S_XCC)}, 7')
    sk = A.newlabel('tk')
    A(f's_cmp_lg_u32 {s(S_WAVE)}, 0')
    A(f's_cbranch_scc1 {sk}')
    A(f's_lshl_b32 {s(S_TMP)}, {s(S_XCC)}, 2')
    A(f'v_mov_b32 v2, {s(S_TMP)}')
    A(f'v_mov_b32 v3, 1')
    A(f's_mov_b64 exec, 1')
    A(f'global_atomic_add v4, v2, v3, {s(S_DBG,2)} offset:{DBG_TICKET*4} sc0')
    A('s_waitcnt vmcnt(0)')
    A(f'v_mov_b32 v5, 0')
    A(f'ds_write_b32 v5, v4')
    A(f's_mov_b64 exec, -1')
    A.label(sk)
    A(f's_cmp_ge_u32 {s(S_WG)}, {CLEAR_ONES_WG}')
    A(f's_cselect_b32 {s(S_TMP)}, -1, 0')
    for i in range(4): A(f'v_mov_b32 {v(4+i)}, {s(S_TMP)}')
    A(f's_lshl_b32 {s(S_TMP+1)}, {s(S_WG)}, 13')
    A(f'v_lshlrev_b32 v2, 4, v0')
    A(f'buffer_store_dwordx4 v[4:7], v2, {s(S_WS,4)}, {s(S_TMP+1)} offen sc1')
    A(f's_add_u32 {s(S_TMP+1)}, {s(S_TMP+1)}, 4096')
    A(f'buffer_store_dwordx4 v[4:7], v2, {s(S_WS,4)}, {s(S_TMP+1)} offen sc1')
    A('s_waitcnt lgkmcnt(0)')
    A('s_barrier')
    A(f'v_mov_b32 v5, 0')
    A(f'ds_read_b32 v4, v5')
    A('s_waitcnt lgkmcnt(0)')
    A(f'v_readfirstlane_b32 {s(S_ROLE)}, v4')
    barrier_arrive(A)
    A(f's_cmp_ge_u32 {s(S_ROLE)}, 32')
    A('s_cbranch_scc1 L_FAIL')
    A(f's_lshl_b32 {s(S_TMP)}, {s(S_XCC)}, 5')
    A(f's_add_u32 {s(S_ROLE)}, {s(S_ROLE)}, {s(S_TMP)}')
    cfg['barrier_wait'] = barrier_wait
    only = cfg.get('ONLY')
    T = []
    def add(name, r0, n, l, fn):
        if only is not None and name not in only.split(','): return
        T.append((name, r0, n, l, fn))
    for l in range(2):
        add('chain', R_CHAIN[l], 32, l, 'chain'); add('b1', R_B1[l], 32, l, 'b1')
        add('a1', R_A1[l], N_A1, l, 'a1'); add('atta', R_ATTA[l], N_ATTA, l, 'atta'); add('a3', R_A3[l], N_A3, l, 'a3')
        add('attb', R_ATTB[l], N_ATTB, l, 'attb'); add('b3', R_B3[l], N_B3, l, 'b3')
        add('ra', R_RA[l], 4, l, f'ra{l}'); add('rb', R_RB[l], 4, l, f'rb{l}')
    add('r0', R_R0, 4, 0, 'r0')
    for (name, r0, n, l, fn) in T:
        nx = A.newlabel('disp')
        A(f's_sub_u32 {s(S_IDX)}, {s(S_ROLE)}, {r0}')
        A(f's_cmp_ge_u32 {s(S_IDX)}, {n}')
        A(f's_cbranch_scc1 {nx}')
        A(f's_mov_b32 {s(S_L)}, {l}')
        A(f's_branch L_{fn.upper()}')
        A.label(nx)
    A('s_branch L_END')
    fns = {'chain': lambda: chain_role(A, cfg, 'L_FAIL', 'L_END'), 'b1': lambda: role_b1(A, cfg, 'L_FAIL', 'L_END'),
           'a1': lambda: role_a1(A, cfg, 'L_FAIL', 'L_END'), 'atta': lambda: role_atta(A, cfg, 'L_FAIL', 'L_END'),
           'a3': lambda: role_a3(A, cfg, 'L_FAIL', 'L_END'), 'attb': lambda: role_attb(A, cfg, 'L_FAIL', 'L_END'),
           'b3': lambda: role_b3(A, cfg, 'L_FAIL', 'L_END'),
           'ra0': lambda: role_red(A, cfg, 'RA', 0, 'L_FAIL', 'L_END'), 'ra1': lambda: role_red(A, cfg, 'RA', 1, 'L_FAIL', 'L_END'),
           'rb0': lambda: role_red(A, cfg, 'RB', 0, 'L_FAIL', 'L_END'), 'rb1': lambda: role_red(A, cfg, 'RB', 1, 'L_FAIL', 'L_END'),
           'r0': lambda: role_red(A, cfg, 'R0', 0, 'L_FAIL', 'L_END')}
    seen = []
    for (name, r0, n, l, fn) in T:
        if fn in seen: continue
        seen.append(fn)
        A.raw('.p2align 6')
        A.label(f'L_{fn.upper()}')
        A.flush()
        fns[fn]()
    A.label('L_FAIL')
    A.flush()
    A(f's_mov_b64 exec, 1')
    A(f'v_mov_b32 v1, 0')
    A(f'v_mov_b32 v2, 0xdead0000')
    A(f'v_or_b32 v2, {s(S_ROLE)}, v2')
    A(f'global_store_dword v1, v2, {s(S_DBG,2)} offset:124')
    A.label('L_END')
    A('s_endpgm')
    A.raw('.section .rodata,"a"')
    A.raw('.p2align 6')
    A.raw(f'.amdhsa_kernel {KNAME}_kernel')
    A.raw('  .amdhsa_next_free_vgpr 512')
    A.raw('  .amdhsa_next_free_sgpr 102')
    A.raw('  .amdhsa_accum_offset 256')
    A.raw('  .amdhsa_group_segment_fixed_size 0')
    A.raw('  .amdhsa_kernarg_size 104')
    A.raw('  .amdhsa_user_sgpr_count 2')
    A.raw('  .amdhsa_user_sgpr_kernarg_segment_ptr 1')
    A.raw('  .amdhsa_system_sgpr_workgroup_id_x 1')
    A.raw('.end_amdhsa_kernel')
    return A

if __name__ == '__main__':
    out = sys.argv[1]
    cfg = {}
    for kv in sys.argv[2:]:
        k, _, val = kv.partition('=')
        cfg[k] = (int(val) if val.lstrip('-').isdigit() else val) if val else 1
    A = build(cfg)
    open(out, 'w').write(A.text())
    print('instrs', A.nins)
```

```python
import re

def v(i, n=1):
    return f"v{i}" if n == 1 else f"v[{i}:{i+n-1}]"
def a(i, n=1):
    return f"a{i}" if n == 1 else f"a[{i}:{i+n-1}]"
def s(i, n=1):
    return f"s{i}" if n == 1 else f"s[{i}:{i+n-1}]"

_reg_re = re.compile(r'^(-|\|)?([vas])(\d+)\|?$')
_rng_re = re.compile(r'^(-|\|)?([vas])\[(\d+):(\d+)\]\|?$')

def regs_of(tok):
    tok = tok.strip()
    m = _reg_re.match(tok)
    if m:
        return {(m.group(2), int(m.group(3)))}
    m = _rng_re.match(tok)
    if m:
        return {(m.group(2), i) for i in range(int(m.group(3)), int(m.group(4)) + 1)}
    if tok in ('vcc', 'vcc_lo', 'vcc_hi'):
        return {('s', 'vcc')}
    if tok in ('exec', 'exec_lo', 'exec_hi'):
        return {('s', 'exec')}
    if tok == 'm0':
        return {('s', 'm0')}
    return set()

TRANS = ('v_exp_f32', 'v_log_f32', 'v_rcp_f32', 'v_rsq_f32', 'v_sqrt_f32', 'v_sin_f32', 'v_cos_f32')

class Ins:
    __slots__ = ('text', 'op', 'dst', 'src', 'kind', 'states', 'dpp', 'srcC', 'wide')
    def __init__(self, text):
        self.text = text
        t = text.split(';')[0].strip()
        parts = t.split(None, 1)
        self.op = op = parts[0]
        rest = parts[1] if len(parts) > 1 else ''
        ops = [x.strip() for x in rest.split(',')] if rest else []
        mods = ''
        if ops:
            last = ops[-1].split(None, 1)
            ops[-1] = last[0]
            mods = last[1] if len(last) > 1 else ''
        self.dpp = ('row_' in mods or 'quad_perm' in mods or 'wave_' in mods or op.endswith('_dpp'))
        self.dst = set(); self.src = set(); self.srcC = set(); self.states = 1; self.wide = False
        R = [regs_of(o) for o in ops]
        allr = set().union(*R) if R else set()
        if op == 's_nop':
            self.kind = 'nop'; self.states = int(ops[0], 0) + 1
        elif op.startswith('v_mfma') or op.startswith('v_smfmac'):
            self.kind = 'mfma'
            self.dst = R[0]; self.src = R[1] | R[2] | R[3]
            self.srcC = R[3] if op.startswith('v_mfma') else R[0]
            if op.startswith('v_smfmac'): self.src |= R[0]
        elif op.startswith('v_cmpx'):
            self.kind = 'valu'; self.dst = {('s', 'exec')} | (R[0] if ops and ops[0].startswith(('s','v'))and len(ops)==3 else set()); self.src = allr
        elif op.startswith('v_cmp'):
            self.kind = 'valu'; self.dst = R[0]; self.src = set().union(*R[1:])
        elif op.startswith('v_permlane') and 'swap' in op:
            self.kind = 'valu'; self.dst = R[0] | R[1]; self.src = R[0] | R[1]
        elif op.startswith('v_'):
            self.kind = 'valu'
            self.dst = R[0]; self.src = set().union(*R[1:]) if len(R) > 1 else set()
            if op.startswith(('v_fmac', 'v_mac', 'v_pk_fmac', 'v_dot2c', 'v_writelane')) or self.dpp:
                self.src |= R[0]
            if op.startswith('v_cndmask') and len(ops) == 3: self.src |= {('s', 'vcc')}
            if op.startswith(('v_add_co', 'v_addc_co', 'v_sub_co', 'v_subb_co')):
                self.dst = R[0] | R[1]; self.src = set().union(*R[2:])
        elif op.startswith(('global_store', 'buffer_store', 'ds_write', 'global_atomic', 'buffer_atomic', 'ds_add', 'ds_max', 'flat_store')):
            self.kind = 'vmem' if not op.startswith('ds_') else 'ds'
            self.src = allr
            ret = (' sc0' in ' ' + mods) and 'atomic' in op
            if ret: self.dst = R[0]
            self.wide = ('x3' in op or 'x4' in op)
        elif op.startswith(('global_load_lds', )) or (op.startswith('buffer_load') and re.search(r'\blds\b', mods)):
            self.kind = 'vmem'; self.src = allr | {('s', 'm0')}
        elif op.startswith(('global_load', 'buffer_load', 'flat_load')):
            self.kind = 'vmem'; self.dst = R[0]; self.src = set().union(*R[1:])
        elif op.startswith('ds_'):
            self.kind = 'ds'; self.dst = R[0]; self.src = set().union(*R[1:]) if len(R) > 1 else set()
        elif op.startswith('s_'):
            self.kind = 'salu'
            if op.startswith(('s_cmp', 's_cbranch', 's_branch', 's_waitcnt', 's_barrier', 's_endpgm', 's_sleep', 's_setprio', 's_bitcmp', 's_setreg')):
                self.src = allr
            else:
                self.dst = R[0] if R else set(); self.src = set().union(*R[1:]) if len(R) > 1 else set()
                if 'saveexec' in op: self.dst |= {('s', 'exec')}
        else:
            raise ValueError('unknown instr ' + text)

def isvreg(r): return r[0] in 'va'

def need(p, c):
    n = 0
    pv = {r for r in p.dst if isvreg(r)}
    ps = {r for r in p.dst if not isvreg(r)}
    if p.kind == 'valu':
        if c.kind == 'mfma' and pv & c.src: n = max(n, 2)
        if c.kind == 'mfma' and ('s', 'exec') in ps: n = max(n, 4)
        if c.kind == 'valu':
            if c.dpp and pv & c.src: n = max(n, 2)
            if c.dpp and ('s', 'exec') in ps: n = max(n, 5)
            if c.op.startswith('v_permlane') and pv & c.src: n = max(n, 2)
            if c.op.startswith('v_permlane') and ('s', 'exec') in ps: n = max(n, 4)
            if c.op.startswith(('v_readlane', 'v_readfirstlane')) and pv & c.src: n = max(n, 1)
            if c.op.startswith(('v_readlane', 'v_readfirstlane', 'v_writelane')) and (ps & c.src or ('s','exec') in ps): n = max(n, 4)
            if p.op.startswith(TRANS) and pv & c.src: n = max(n, 1)
            if ps & c.src: n = max(n, 2)
            if ('sdwa' in p.text or 'op_sel' in p.text) and pv & (c.src | c.dst): n = max(n, 1)
        if c.kind == 'vmem' and (ps & c.src): n = max(n, 5)
        if c.kind == 'salu' and (ps & c.src): n = max(n, 1)
    if p.kind == 'mfma':
        if c.kind == 'mfma':
            ab = c.src - c.srcC if c.srcC else c.src
            if p.dst & c.srcC:
                if p.dst != c.srcC: n = max(n, 6)
            toks = c.text.split(';')[0].split(None, 1)[1].split(',')
            AB = regs_of(toks[1]) | regs_of(toks[2])
            if c.op.startswith('v_smfmac'): AB |= regs_of(toks[3].strip().split()[0])
            if p.dst & AB: n = max(n, 8)
            if p.dst & c.dst and not (p.dst & c.srcC): n = max(n, 6)
        elif c.kind in ('valu', 'vmem', 'ds'):
            if p.dst & (c.src | c.dst): n = max(n, 8)
        if c.kind == 'valu' and p.srcC & c.dst: n = max(n, 3)
    if p.kind == 'vmem' and p.wide:
        if c.kind == 'valu' and p.src & {r for r in c.dst if isvreg(r)}: n = max(n, 2)
        elif c.dst and p.src & {r for r in c.dst if isvreg(r)}: n = max(n, 1)
    if p.kind == 'salu':
        if ('s', 'm0') in p.dst and c.kind in ('vmem', 'ds') and ('s', 'm0') in c.src: n = max(n, 1)
    return n

class Asm:
    def __init__(self):
        self.lines = []
        self.hist = []
        self.nlab = 0
        self.nins = 0
        self.smart = False
    def raw(self, t):
        self.lines.append(t)
    def comment(self, t):
        self.lines.append('; ' + t)
    def label(self, name):
        self.lines.append(name + ':')
    def newlabel(self, p='L'):
        self.nlab += 1
        return f'.{p}_{self.nlab}'
    def flush(self):
        self.hist = []
    def __call__(self, text):
        ins = Ins(text)
        req = 0
        dist = 0
        nm = 0; kafter = 0
        for p in reversed(self.hist):
            n = need(p, ins)
            d = dist
            if p.kind == 'mfma' and self.smart:
                if ins.kind == 'mfma': d = max(d, 4*nm + max(3, kafter))
                elif nm: d = max(d, 4*nm + kafter)
            if n - d > req: req = n - d
            dist += p.states
            if p.kind == 'mfma': nm += 1
            elif nm == 0: kafter += p.states
            if dist >= 10: break
        if req > 0:
            nop = Ins(f's_nop {req-1}')
            self.lines.append('\t' + nop.text)
            self.hist.append(nop)
            self.nins += 1
        self.lines.append('\t' + text)
        self.hist.append(ins)
        self.nins += 1
        if len(self.hist) > 24: self.hist = self.hist[-24:]
    def text(self):
        return '\n'.join(self.lines) + '\n'
```

```python
from asm import *
from common import *

S_KA = 0
S_WG = 2
S_WS = 4
S_SRD = 8
S_DBG = 12
S_ROLE = 14
S_WAVE = 15
S_XCC = 16
S_TMP = 17
S_SPIN = 20
S_PTR = 22
S_MODE = 24

MF = 'v_mfma_f32_16x16x32_bf16'
MF16 = 'v_mfma_f32_16x16x16_bf16'

def srd_from_ptr(A, sdst, sptr, size):
    A(f's_mov_b32 {s(sdst)}, {s(sptr)}')
    A(f's_and_b32 {s(sdst+1)}, {s(sptr+1)}, 0xffff')
    A(f's_mov_b32 {s(sdst+2)}, {hex(size)}')
    A(f's_mov_b32 {s(sdst+3)}, 0x00020000')

def load_ptr_srd(A, sdst, ka_off, size):
    A(f's_load_dwordx2 {s(S_PTR,2)}, {s(S_KA,2)}, {ka_off}')
    A('s_waitcnt lgkmcnt(0)')
    srd_from_ptr(A, sdst, S_PTR, size)

L_WO = 0
L_MEM = 147456
L_S = L_MEM + 9216
L_O = L_S + 5120

V_MEMRD, V_WO0, V_WO1, V_SW, V_SRX, V_SRM, V_OW, V_OR, V_PST, V_PLD, V_MST, V_T16, V_T4, V_L16 = range(14)
V_KX = 14
V_VX = 22
V_AV = 30
V_RING = 38
V_AQ = 50
V_QF = 66
V_KF = 70
V_T = 74
V_FLAG = 77
V_ZERO = 78
V_SC = 79
def WQ(t, ks): return a(t*72 + ks*4, 4)
def WK(t, ks):
    i = 144 + t*72 + ks*4
    return a(i, 4) if i < 256 else v(80 + i - 256, 4)
def WV(t, ks): return v(112 + t*72 + ks*4, 4)
def wreg(m, t, ks, half):
    if m == 0: return a(t*72 + ks*4 + 2*half, 2)
    if m == 1:
        i = 144 + t*72 + ks*4 + 2*half
        return a(i, 2) if i < 256 else v(80 + i - 256, 2)
    return v(112 + t*72 + ks*4 + 2*half, 2)

S_H = 26; S_L = 27; S_STEP = 28
S_PL = 30
S_PST = 38
S_PST2 = 49
S_MB0 = 39; S_MB1 = 40
S_MB0b = 41; S_MB1b = 42
S_MB0c = 43; S_MB1c = 44
S_KX = 45
S_KVM = 46
S_FLAGIN = 47
S_FLAGOUT = 48
S_T0 = 50
S_T1 = 52
S_EX8 = 54
S_EXM = 56
S_EXP = 58
S_EXS = 60
S_SOFF = 62
S_M0 = 63

def spin_check(A, retry_label, fail_label):
    A(f's_sub_u32 {s(S_SPIN)}, {s(S_SPIN)}, 1')
    A(f's_cmp_lg_u32 {s(S_SPIN)}, 0')
    A(f's_cbranch_scc1 {retry_label}')
    A(f's_branch {fail_label}')

def qkv_loader(A, dord):
    w = s(S_WAVE)
    LN, COL, G, TOK = 79, 78, 77, 76
    A(f'v_lshlrev_b32 v16, 1, {v(G)}')
    A(f'v_xor_b32 v16, v16, {v(COL)}')
    A(f'v_xor_b32 v17, 8, v16')
    A(f'v_lshlrev_b32 v16, 4, v16')
    A(f'v_lshlrev_b32 v17, 4, v17')
    A(f'v_lshlrev_b32 v18, 13, {v(G)}')
    A(f'v_add_u32 v14, v16, v18')
    A(f'v_add_u32 v15, v17, v18')
    A(f'v_lshrrev_b32 v16, 2, {v(COL)}')
    A(f'v_and_b32 v17, 3, {v(COL)}')
    if dord: A(f'v_lshrrev_b32 v18, 1, {v(G)}')
    else: A(f'v_and_b32 v18, 1, {v(G)}')
    A(f'v_lshlrev_b32 v18, 2, v18')
    A(f'v_or_b32 v18, v18, v16')
    A(f'v_lshlrev_b32 v18, 1, v18')
    A(f'v_lshrrev_b32 v19, 1, v17')
    A(f's_lshl_b32 {s(S_TMP)}, {w}, 2')
    A(f'v_add_u32 v19, {s(S_TMP)}, v19')
    A(f'v_and_b32 v17, 1, v17')
    A(f'v_lshlrev_b32 v17, 3, v17')
    A(f'v_lshlrev_b32 v20, {2 if dord else 3}, {v(G)}')
    A(f'v_add_u32 v20, v20, v16')
    A(f'v_lshlrev_b32 v20, 8, v20')
    A(f'v_add_u32 v20, v20, v17')
    A(f'v_xor_b32 v21, v19, v18')
    A(f'v_add_u32 v19, 2, v19')
    A(f'v_xor_b32 v22, v19, v18')
    A(f'v_lshlrev_b32 v21, 4, v21')
    A(f'v_lshlrev_b32 v22, 4, v22')
    A(f'v_add_u32 v21, v21, v20')
    A(f'v_add_u32 v22, v22, v20')
    A(f'v_add_u32 v23, 0x10000, v21')
    A(f'v_add_u32 v24, 0x10000, v22')
    for r in (21, 22, 23, 24):
        A(f'v_add_u32 {v(r+4)}, 73728, {v(r)}')
    KA = [KA_WQ, KA_WK, KA_WV]
    WSZ = 576*4096*2
    def issue_half(hf):
        m, part = hf // 2, hf % 2
        buf = hf % 2
        load_ptr_srd(A, S_SRD, KA[m], WSZ)
        A(f's_lshl_b32 {s(S_SOFF)}, {s(S_H)}, 8')
        A(f's_lshl_b32 {s(S_TMP)}, {w}, 15')
        A(f's_add_u32 {s(S_SOFF)}, {s(S_SOFF)}, {s(S_TMP)}')
        if part: A(f's_add_u32 {s(S_SOFF)}, {s(S_SOFF)}, {288*8192}')
        A(f's_lshl_b32 {s(S_M0)}, {w}, 10')
        if buf: A(f's_add_u32 {s(S_M0)}, {s(S_M0)}, 73728')
        for j in range(18):
            A(f's_mov_b32 m0, {s(S_M0)}')
            A(f'buffer_load_dwordx4 v29, {s(S_SRD,4)}, {s(S_SOFF)} offen lds')
            if j < 17:
                A(f's_add_u32 {s(S_SOFF)}, {s(S_SOFF)}, {16*8192}')
                A(f's_add_u32 {s(S_M0)}, {s(S_M0)}, 4096')
    A(f's_and_b32 {s(S_TMP)}, {w}, 2')
    A(f's_cmp_eq_u32 {s(S_TMP)}, 0')
    A(f's_cselect_b64 vcc, -1, 0')
    A(f'v_cndmask_b32 v29, v15, v14, vcc')
    def consume_half(hf):
        m, part = hf // 2, hf % 2
        buf = hf % 2
        for t in range(2):
            for k in range(9):
                ks = part*9 + k
                for half in range(2):
                    base = (21 + t) if k < 8 else (23 + t)
                    if buf: base += 4
                    off = (k % 8)*8192 + half*(4096 if dord else 1024)
                    A(f'ds_read_b64_tr_b16 {wreg(m, t, ks, half)}, {v(base)} offset:{off}')
                if k % 4 == 3: A('s_waitcnt lgkmcnt(8)')
        A('s_waitcnt lgkmcnt(0)')
    return issue_half, consume_half

S_TS = 96
def tstamp(A, cfg, slot, vt, vzero):
    if not cfg.get('TIME'): return
    if cfg.get('LEAN') and not (isinstance(slot, int) and slot >= 100): return
    sk = A.newlabel('ts')
    A(f's_cmp_lg_u32 {s(S_WAVE)}, 0')
    A(f's_cbranch_scc1 {sk}')
    A(f's_memrealtime {s(S_TS,2)}')
    A(f's_lshl_b32 {s(S_TS+2)}, {s(S_ROLE)}, 9')
    A(f's_add_u32 {s(S_TS+2)}, {s(S_TS+2)}, {hex(WS_TIME)}')
    if isinstance(slot, int): A(f's_add_u32 {s(S_TS+2)}, {s(S_TS+2)}, {slot*4}')
    else:
        A(f's_lshl_b32 {s(S_TS+3)}, {slot}, 2')
        A(f's_add_u32 {s(S_TS+2)}, {s(S_TS+2)}, {s(S_TS+3)}')
    A('s_waitcnt lgkmcnt(0)')
    A(f'v_mov_b32 {v(vt)}, {s(S_TS)}')
    A('s_mov_b64 exec, 1')
    A(f'buffer_store_dword {v(vt)}, {v(vzero)}, {s(S_WS,4)}, {s(S_TS+2)} offen')
    A('s_mov_b64 exec, -1')
    A.label(sk)

def fst(A, cfg, idx, sreg, val=32):
    if not cfg.get('FINE'): return
    sk = A.newlabel('fs')
    A(f's_cmp_lg_u32 {s(sreg)}, {val}')
    A(f's_cbranch_scc1 {sk}')
    A(f's_memrealtime {s(S_TS,2)}')
    A('s_waitcnt lgkmcnt(0)')
    A(f's_mov_b32 {s(80+idx)}, {s(S_TS)}')
    A.label(sk)

def chain_init(A, cfg):
    w = s(S_WAVE)
    LN, COL, G, TOK = 79, 78, 77, 76
    A(f'v_and_b32 {v(LN)}, 63, v0')
    A(f'v_mov_b32 {v(75)}, v0')
    A(f'v_and_b32 {v(COL)}, 15, {v(LN)}')
    A(f'v_lshrrev_b32 {v(G)}, 4, {v(LN)}')
    A(f'v_and_b32 {v(TOK)}, 7, {v(LN)}')
    TID = 75
    issue_half, consume_half = qkv_loader(A, False)
    def issue_wo(buf):
        load_ptr_srd(A, S_SRD, KA_WO, 32*128*576*2)
        A(f's_mul_i32 {s(S_SOFF)}, {s(S_H)}, 147456')
        A(f's_lshl_b32 {s(S_M0)}, {w}, 10')
        if buf: A(f's_add_u32 {s(S_M0)}, {s(S_M0)}, 73728')
        A(f's_add_u32 {s(S_SOFF)}, {s(S_SOFF)}, {s(S_M0)}')
        for j in range(18):
            A(f's_mov_b32 m0, {s(S_M0)}')
            A(f'buffer_load_dwordx4 {v(V_L16)}, {s(S_SRD,4)}, {s(S_SOFF)} offen lds')
            if j < 17:
                A(f's_add_u32 {s(S_SOFF)}, {s(S_SOFF)}, 4096')
                A(f's_add_u32 {s(S_M0)}, {s(S_M0)}, 4096')
    A(f'v_lshlrev_b32 {v(V_L16)}, 4, {v(LN)}')
    issue_half(0)
    issue_half(1)
    for hf in range(6):
        A('s_waitcnt vmcnt(18)')
        A('s_barrier')
        consume_half(hf)
        A('s_barrier')
        if hf + 2 < 6: issue_half(hf + 2)
        else: issue_wo(hf % 2)
    A(f'v_lshrrev_b32 v16, 2, {v(COL)}')
    A(f'v_and_b32 v17, 3, {v(COL)}')
    A(f'v_lshlrev_b32 v18, 2, {v(G)}')
    A(f'v_add_u32 v18, v18, v16')
    A(f'v_mul_u32_u24 v18, 1152, v18')
    A(f'v_lshlrev_b32 v17, 3, v17')
    A(f'v_add_u32 v18, v18, v17')
    A(f's_mul_i32 {s(S_TMP)}, {w}, 288')
    A(f'v_add_u32 v18, {s(S_TMP)}, v18')
    A(f's_mul_i32 {s(S_TMP)}, {w}, 9216')
    A(f'v_add_u32 {v(V_WO0)}, {s(S_TMP)}, {v(V_L16)}')
    A(f'v_add_u32 {v(V_WO1)}, {2*36864}, {v(V_WO0)}')
    A(f'v_mov_b32 v19, {v(V_WO0)}')
    for ks in range(4):
        if ks == 0: A('s_waitcnt vmcnt(18)'); A('s_barrier')
        if ks == 2: A('s_waitcnt vmcnt(0)'); A('s_barrier')
        for t in range(9):
            A(f'ds_read_b64_tr_b16 {v(30+4*t,2)}, v18 offset:{t*32}')
            A(f'ds_read_b64_tr_b16 {v(30+4*t+2,2)}, v18 offset:{t*32 + 16*1152}')
        A('s_waitcnt lgkmcnt(0)')
        A('s_barrier')
        for t in range(9):
            A(f'ds_write_b128 v19, {v(30+4*t,4)} offset:{t*1024}')
        if ks < 3:
            A(f'v_add_u32 v18, 36864, v18')
            A(f'v_add_u32 v19, 36864, v19')
        A('s_waitcnt lgkmcnt(0)')
    A(f'v_lshlrev_b32 v16, 7, {v(G)}')
    A(f'v_lshlrev_b32 v17, 4, {v(TOK)}')
    A(f'v_add_u32 v16, v16, v17')
    A(f's_mul_i32 {s(S_TMP)}, {w}, 1280')
    A(f's_add_u32 {s(S_TMP)}, {s(S_TMP)}, {L_S}')
    A(f'v_add_u32 {v(V_SW)}, {s(S_TMP)}, v16')
    A(f'v_lshrrev_b32 v18, 3, {v(COL)}')
    A(f'v_lshlrev_b32 v18, 9, v18')
    A(f'v_add_u32 v18, v18, v16')
    A(f'v_add_u32 {v(V_SRX)}, {L_S}, v18')
    A(f'v_and_b32 v18, 1, {v(G)}')
    A(f'v_lshlrev_b32 v18, 7, v18')
    A(f'v_add_u32 v18, v18, v17')
    A(f'v_add_u32 {v(V_SRM)}, {L_S+1024}, v18')
    A(f'v_add_u32 {v(V_OR)}, {L_O}, v16')
    A(f's_lshl_b32 {s(S_TMP)}, {w}, 9')
    A(f'v_add_u32 {v(V_OW)}, {s(S_TMP)}, {v(V_OR)}')
    A(f'v_lshrrev_b32 v16, 1, {v(G)}')
    A(f'v_lshlrev_b32 v16, 8, v16')
    A(f'v_lshlrev_b32 v17, 5, {v(TOK)}')
    A(f'v_add_u32 v16, v16, v17')
    A(f'v_and_b32 v17, 1, {v(G)}')
    A(f'v_lshlrev_b32 v17, 4, v17')
    A(f'v_add_u32 v16, v16, v17')
    A(f'v_add_u32 {v(V_MEMRD)}, {L_MEM}, v16')
    A(f'v_lshlrev_b32 v16, 2, {v(TOK)}')
    A(f'v_add_u32 v16, v16, {v(G)}')
    A(f'v_lshlrev_b32 v16, 4, v16')
    A(f's_mul_i32 {s(S_TMP)}, {w}, {288*16}')
    A(f'v_add_u32 {v(V_PST)}, {s(S_TMP)}, v16')
    A(f's_mul_i32 {s(S_TMP)}, {s(S_H)}, 36')
    A(f's_mul_i32 {s(S_TMP+1)}, {w}, 9')
    A(f's_add_u32 {s(S_TMP)}, {s(S_TMP)}, {s(S_TMP+1)}')
    A(f'v_add_u32 v16, {s(S_TMP)}, {v(COL)}')
    A(f'v_mul_u32_u24 v17, 18432, {v(G)}')
    A(f'v_lshlrev_b32 v18, 4, v16')
    A(f'v_add_u32 {v(V_PLD)}, v17, v18')
    A(f'v_lshlrev_b32 v16, 3, v16')
    A(f'v_lshrrev_b32 v17, 1, {v(G)}')
    A(f'v_lshlrev_b32 v17, 2, v17')
    A(f'v_add_u32 {v(V_MST)}, v16, v17')
    A(f'v_lshlrev_b32 {v(V_T16)}, 4, {v(TID)}')
    A(f'v_lshlrev_b32 {v(V_T4)}, 2, {v(TID)}')
    A(f's_mul_i32 {s(S_TMP)}, {s(S_L)}, {PART_STRIDE}')
    A(f's_add_u32 {s(S_TMP)}, {s(S_TMP)}, {WS_PART}')
    for i in range(8):
        A(f's_add_u32 {s(S_PL+i)}, {s(S_TMP)}, {i*73728}')
    A(f's_mul_i32 {s(S_TMP+1)}, {s(S_H)}, 18432')
    A(f's_add_u32 {s(S_PST)}, {s(S_TMP)}, {s(S_TMP+1)}')
    A(f's_add_u32 {s(S_PST2)}, {s(S_PST)}, 4096')
    A(f's_mul_i32 {s(S_TMP)}, {s(S_L)}, {MEMB_STRIDE}')
    A(f's_add_u32 {s(S_MB0)}, {s(S_TMP)}, {WS_MEMB}')
    A(f's_add_u32 {s(S_MB1)}, {s(S_MB0)}, 9216')
    A(f's_add_u32 {s(S_MB0b)}, {s(S_MB0)}, 4096')
    A(f's_add_u32 {s(S_MB1b)}, {s(S_MB1)}, 4096')
    A(f's_add_u32 {s(S_MB0c)}, {s(S_MB0)}, 8192')
    A(f's_add_u32 {s(S_MB1c)}, {s(S_MB1)}, 8192')
    A(f's_mul_i32 {s(S_TMP)}, {s(S_L)}, {QKVX_STRIDE}')
    A(f's_mul_i32 {s(S_TMP+1)}, {s(S_H)}, 24576')
    A(f's_add_u32 {s(S_KX)}, {s(S_TMP)}, {s(S_TMP+1)}')
    A(f's_add_u32 {s(S_KX)}, {s(S_KX)}, {WS_QKVX}')
    A(f's_mul_i32 {s(S_TMP)}, {s(S_L)}, {KVM_STRIDE}')
    A(f's_lshl_b32 {s(S_TMP+1)}, {s(S_H)}, 13')
    A(f's_add_u32 {s(S_KVM)}, {s(S_TMP)}, {s(S_TMP+1)}')
    A(f's_lshl_b32 {s(S_TMP+1)}, {w}, 10')
    A(f's_add_u32 {s(S_KVM)}, {s(S_KVM)}, {s(S_TMP+1)}')
    A(f's_add_u32 {s(S_KVM)}, {s(S_KVM)}, {WS_KVM}')
    A(f's_lshl_b32 {s(S_TMP)}, {s(S_ROLE)}, 7')
    A(f's_lshl_b32 {s(S_TMP+1)}, {w}, 2')
    A(f's_add_u32 {s(S_FLAGOUT)}, {s(S_TMP)}, {s(S_TMP+1)}')
    A(f's_mul_i32 {s(S_TMP)}, {s(S_L)}, {R_B1[1]-R_B1[0]}')
    A(f's_add_u32 {s(S_TMP)}, {s(S_TMP)}, {s(S_H)}')
    A(f's_add_u32 {s(S_TMP)}, {s(S_TMP)}, {R_B1[0]}')
    A(f's_lshl_b32 {s(S_TMP)}, {s(S_TMP)}, 7')
    A(f's_add_u32 {s(S_FLAGIN)}, {s(S_TMP)}, {s(S_TMP+1)}')
    for sr, val in ((S_EX8, 0x00FF00FF00FF00FF), (S_EXM, 0x0000000000FF00FF), (S_EXP, 0x01FF01FF01FF01FF), (S_EXS, 0x000001FF000001FF)):
        A(f's_mov_b32 {s(sr)}, {hex(val & 0xffffffff)}')
        A(f's_mov_b32 {s(sr+1)}, {hex(val >> 32)}')
    load_ptr_srd(A, S_SRD, KA_MEM0, 8*576*2)
    for rnd in range(3):
        A(f'v_add_u32 v16, {256*rnd}, {v(TID)}')
        A(f'v_lshrrev_b32 v17, 4, v16')
        A(f'v_lshlrev_b32 v17, 5, v17')
        A(f'v_bfe_u32 v18, v16, 1, 3')
        A(f'v_mul_u32_u24 v18, 1152, v18')
        A(f'v_add_u32 v17, v17, v18')
        A(f'v_and_b32 v18, 1, v16')
        A(f'v_lshlrev_b32 v18, 4, v18')
        A(f'v_add_u32 v17, v17, v18')
        A(f'v_lshlrev_b32 v16, 4, v16')
        A(f'v_add_u32 v16, {L_MEM}, v16')
        if rnd == 2:
            A(f'v_cmp_gt_u32 vcc, 64, {v(TID)}')
            A(f's_and_saveexec_b64 {s(S_T0,2)}, vcc')
            lab = A.newlabel('skipm'); A(f's_cbranch_execz {lab}')
        A(f'buffer_load_dwordx4 v[20:23], v17, {s(S_SRD,4)}, 0 offen')
        A('s_waitcnt vmcnt(0)')
        A(f'ds_write_b128 v16, v[20:23]')
        if rnd == 2:
            A.label(lab)
            A(f's_mov_b64 exec, -1')
    A('s_waitcnt lgkmcnt(0)')
    A(f'v_mov_b32 {v(V_ZERO)}, 0')
    A(f'v_mov_b32 {v(V_SC)}, {hex(f32((128 ** -0.5) * 1.4426950408889634))}')

def kxvx_load(A):
    w = s(S_WAVE)
    A(f's_lshl_b32 {s(S_TMP)}, {w}, 10')
    A(f's_add_u32 {s(S_TMP)}, {s(S_TMP)}, {s(S_KX)}')
    A(f's_add_u32 {s(S_TMP+1)}, {s(S_TMP)}, 8192')
    A(f's_add_u32 {s(S_TMP+2)}, {s(S_TMP)}, {8192+4096}')
    A(f'buffer_load_dwordx4 {v(V_KX,4)}, {v(V_L16)}, {s(S_WS,4)}, {s(S_TMP+1)} offen')
    A(f'buffer_load_dwordx4 {v(V_KX+4,4)}, {v(V_L16)}, {s(S_WS,4)}, {s(S_TMP+2)} offen')
    A(f's_lshl_b32 {s(S_TMP)}, {w}, 11')
    A(f's_add_u32 {s(S_TMP)}, {s(S_TMP)}, {s(S_KX)}')
    A(f's_add_u32 {s(S_TMP+1)}, {s(S_TMP)}, 16384')
    A(f'buffer_load_dwordx4 {v(V_VX,4)}, {v(V_L16)}, {s(S_WS,4)}, {s(S_TMP+1)} offen')
    A(f'buffer_load_dwordx4 {v(V_VX+4,4)}, {v(V_L16)}, {s(S_WS,4)}, {s(S_TMP+1)} offen offset:1024')
    A(f's_add_u32 {s(S_KX)}, {s(S_KX)}, {32*24576}')

def stamp(A, cfg, idx):
    if not cfg.get('STAMPS'): return
    A(f's_memtime {s(S_T1,2)}')
    A('s_waitcnt lgkmcnt(0)')
    A(f's_mov_b32 {s(64+idx)}, {s(S_T1)}')

def chain_step(A, par, cfg, fail):
    tag = par ^ 1
    st = lambda f, sc1=False: f + (' sc1' if sc1 or cfg.get('SLOW') else '')
    SC = (128 ** -0.5) * 1.4426950408889634
    stamp(A, cfg, 0)
    tstamp(A, cfg, s(S_STEP), V_T, V_ZERO)
    A(f'v_mov_b32 {v(V_T)}, {s(S_STEP)}')
    for k in range(3):
        A(f'ds_read_b128 {v(V_RING+4*k,4)}, {v(V_MEMRD)} offset:{k*512}')
    A(f's_mov_b64 exec, 1')
    A(f'buffer_store_dword {v(V_T)}, {v(V_ZERO)}, {s(S_WS,4)}, {s(S_FLAGOUT)} offen sc1')
    if not cfg.get('NOB1'):
        A(f'buffer_load_dword {v(V_FLAG)}, {v(V_ZERO)}, {s(S_WS,4)}, {s(S_FLAGIN)} offen sc1')
    A(f's_mov_b64 exec, -1')
    aq0, aq1, ak0, ak1 = V_AQ, V_AQ+4, V_AQ+8, V_AQ+12
    for ks in range(18):
        slot = V_RING + 4*(ks % 3)
        A(f's_waitcnt lgkmcnt({min(2, 17-ks)})')
        c = lambda r: '0' if ks == 0 else v(r, 4)
        A(f'{MF} {v(aq0,4)}, {WQ(0,ks)}, {v(slot,4)}, {c(aq0)}')
        A(f'{MF} {v(aq1,4)}, {WQ(1,ks)}, {v(slot,4)}, {c(aq1)}')
        A(f'{MF} {v(ak0,4)}, {WK(0,ks)}, {v(slot,4)}, {c(ak0)}')
        A(f'{MF} {v(ak1,4)}, {WK(1,ks)}, {v(slot,4)}, {c(ak1)}')
        if ks + 3 < 18:
            A(f'ds_read_b128 {v(slot,4)}, {v(V_MEMRD)} offset:{(ks+3)*512}')
    stamp(A, cfg, 1)
    for k in range(3):
        A(f'ds_read_b128 {v(V_RING+4*k,4)}, {v(V_MEMRD)} offset:{k*512}')
    for i in range(2):
        A(f'v_cvt_pk_bf16_f32 {v(V_QF+i)}, {v(aq0+2*i)}, {v(aq0+2*i+1)}')
    for i in range(2):
        A(f'v_cvt_pk_bf16_f32 {v(V_QF+2+i)}, {v(aq1+2*i)}, {v(aq1+2*i+1)}')
    for i in range(2):
        A(f'v_cvt_pk_bf16_f32 {v(V_KF+i)}, {v(ak0+2*i)}, {v(ak0+2*i+1)}')
    for i in range(2):
        A(f'v_cvt_pk_bf16_f32 {v(V_KF+2+i)}, {v(ak1+2*i)}, {v(ak1+2*i+1)}')
    nout = 1 if cfg.get('NOB1') else 2
    A(f's_waitcnt vmcnt({nout})')
    A(f'{MF} {v(aq0,4)}, {v(V_KX,4)}, {v(V_QF,4)}, 0')
    A(f'{MF} {v(aq1,4)}, {v(V_KX+4,4)}, {v(V_QF,4)}, 0')
    A(f'{MF} {v(ak0,4)}, {v(V_KF,4)}, {v(V_QF,4)}, 0')
    A(f'buffer_store_dwordx4 {v(V_KF,4)}, {v(V_L16)}, {s(S_WS,4)}, {s(S_KVM)} offen sc1')
    vks = [0]
    def vm(n):
        for _ in range(n):
            ks = vks[0]
            if ks >= 18: return
            slot = V_RING + 4*(ks % 3)
            A(f's_waitcnt lgkmcnt({min(cfg_l[0], 17-ks) if cfg_l[0]==2 else cfg_l[0]})')
            c = lambda r: '0' if ks == 0 else v(r, 4)
            A(f'{MF} {v(V_AV,4)}, {v(slot,4)}, {WV(0,ks)}, {c(V_AV)}')
            A(f'{MF} {v(V_AV+4,4)}, {v(slot,4)}, {WV(1,ks)}, {c(V_AV+4)}')
            if ks + 3 < 18:
                A(f'ds_read_b128 {v(slot,4)}, {v(V_MEMRD)} offset:{(ks+3)*512}')
            vks[0] += 1
    cfg_l = [2]
    vm(1)
    A(f's_mov_b64 exec, {s(S_EX8,2)}')
    A(f'ds_write_b128 {v(V_SW)}, {v(aq0,4)}')
    A(f'ds_write_b128 {v(V_SW)}, {v(aq1,4)} offset:512')
    A(f's_mov_b64 exec, {s(S_EXM,2)}')
    A(f'ds_write_b128 {v(V_SW)}, {v(ak0,4)} offset:1024')
    A(f's_mov_b64 exec, -1')
    cfg_l[0] = 5; vm(1)
    cfg_l[0] = 5; vm(1)
    A('s_waitcnt lgkmcnt(2)')
    A('s_barrier')
    stamp(A, cfg, 2)
    XR = [V_AQ + 4*i for i in range(4)]
    MR = [V_QF, V_KF, V_KX, V_KX+4]
    for i in range(4):
        A(f'ds_read_b128 {v(XR[i],4)}, {v(V_SRX)} offset:{i*1280}')
        A(f'ds_read_b128 {v(MR[i],4)}, {v(V_SRM)} offset:{i*1280}')
    cfg_l[0] = 10; vm(1)
    cfg_l[0] = 10; vm(1)
    cfg_l[0] = 10; vm(1)
    A('s_waitcnt lgkmcnt(3)')
    stamp(A, cfg, 3)
    cfg_l[0] = 2
    x = XR[0]; m = MR[0]
    for r in range(4):
        A(f'v_add_f32 {v(x+r)}, {v(x+r)}, {v(XR[1]+r)}')
        A(f'v_add_f32 {v(XR[2]+r)}, {v(XR[2]+r)}, {v(XR[3]+r)}')
    for r in range(4):
        A(f'v_add_f32 {v(m+r)}, {v(m+r)}, {v(MR[1]+r)}')
        A(f'v_add_f32 {v(MR[2]+r)}, {v(MR[2]+r)}, {v(MR[3]+r)}')
    vm(1)
    for r in range(4):
        A(f'v_add_f32 {v(x+r)}, {v(x+r)}, {v(XR[2]+r)}')
        A(f'v_add_f32 {v(m+r)}, {v(m+r)}, {v(MR[2]+r)}')
    vm(1)
    T = V_T
    A(f'v_max3_f32 {v(T)}, {v(x)}, {v(x+1)}, {v(x+2)}')
    A(f'v_max3_f32 {v(T+1)}, {v(m)}, {v(m+1)}, {v(m+2)}')
    A(f'v_max3_f32 {v(T)}, {v(T)}, {v(x+3)}, {v(m+3)}')
    A(f'v_max_f32 {v(T)}, {v(T)}, {v(T+1)}')
    vm(1)
    A(f'v_max_f32_dpp {v(T)}, {v(T)}, {v(T)} row_ror:8 row_mask:0xf bank_mask:0xf')
    A(f'v_mov_b32 {v(T+1)}, {v(T)}')
    vm(1)
    A(f'v_permlane16_swap_b32 {v(T)}, {v(T+1)}')
    A(f'v_max_f32 {v(T)}, {v(T)}, {v(T+1)}')
    A(f'v_mov_b32 {v(T+1)}, {v(T)}')
    vm(1)
    A(f'v_permlane32_swap_b32 {v(T)}, {v(T+1)}')
    A(f'v_max_f32 {v(T)}, {v(T)}, {v(T+1)}')
    A(f'v_mul_f32 {v(T)}, {hex(f32(-SC))}, {v(T)}')
    A(f'v_add_f32 {v(T+1)}, -1.0, {v(T)}')
    vm(1)
    for r in range(4):
        A(f'v_fma_f32 {v(x+r)}, {v(x+r)}, {v(V_SC)}, {v(T)}')
        A(f'v_fma_f32 {v(m+r)}, {v(m+r)}, {v(V_SC)}, {v(T+1)}')
    vm(1)
    for r in range(4):
        A(f'v_exp_f32 {v(x+r)}, {v(x+r)}')
        A(f'v_exp_f32 {v(m+r)}, {v(m+r)}')
    vm(3)
    f = XR[1]; pm = XR[2]
    A(f'v_cvt_pk_bf16_f32 {v(f)}, {v(x)}, {v(x+1)}')
    A(f'v_cvt_pk_bf16_f32 {v(f+1)}, {v(x+2)}, {v(x+3)}')
    A(f'v_cvt_pk_bf16_f32 {v(f+2)}, {v(x)}, {v(x+1)}')
    A(f'v_cvt_pk_bf16_f32 {v(f+3)}, {v(x+2)}, {v(x+3)}')
    A(f'v_cvt_pk_bf16_f32 {v(pm)}, {v(m)}, {v(m+1)}')
    A(f'v_cvt_pk_bf16_f32 {v(pm+1)}, {v(m+2)}, {v(m+3)}')
    A(f'v_mov_b32_dpp {v(f+2)}, {v(f)} row_ror:8 row_mask:0xf bank_mask:0x3')
    A(f'v_mov_b32_dpp {v(f+3)}, {v(f+1)} row_ror:8 row_mask:0xf bank_mask:0x3')
    A(f'v_mov_b32_dpp {v(f)}, {v(f)} row_ror:8 row_mask:0xf bank_mask:0xc')
    A(f'v_mov_b32_dpp {v(f+1)}, {v(f+1)} row_ror:8 row_mask:0xf bank_mask:0xc')
    vm(18)
    stamp(A, cfg, 4)
    SUM = XR[3]
    A(f'v_add_f32 {v(SUM)}, {v(x)}, {v(x+1)}')
    A(f'v_add_f32 {v(SUM+1)}, {v(x+2)}, {v(x+3)}')
    A(f'v_add_f32 {v(SUM+2)}, {v(m)}, {v(m+1)}')
    A(f'v_add_f32 {v(SUM+3)}, {v(m+2)}, {v(m+3)}')
    vmf = MR[1]
    for i in range(4):
        A(f'v_cvt_pk_bf16_f32 {v(vmf+i)}, {v(V_AV+2*i)}, {v(V_AV+2*i+1)}')
    o0, o1 = MR[2], MR[3]
    A(f'{MF} {v(o0,4)}, {v(V_VX,4)}, {v(f,4)}, 0')
    A(f'{MF} {v(o1,4)}, {v(V_VX+4,4)}, {v(f,4)}, 0')
    A(f'{MF16} {v(o0,4)}, {v(vmf,2)}, {v(pm,2)}, {v(o0,4)}')
    A(f'{MF16} {v(o1,4)}, {v(vmf+2,2)}, {v(pm,2)}, {v(o1,4)}')
    A(f's_add_u32 {s(S_TMP)}, {s(S_KVM)}, 4096')
    A(f'buffer_store_dwordx4 {v(vmf,4)}, {v(V_L16)}, {s(S_WS,4)}, {s(S_TMP)} offen sc1')
    A(f's_add_u32 {s(S_KVM)}, {s(S_KVM)}, {32*8192}')
    A(f'v_add_f32 {v(SUM)}, {v(SUM)}, {v(SUM+1)}')
    A(f'v_add_f32 {v(SUM+2)}, {v(SUM+2)}, {v(SUM+3)}')
    A(f'v_add_f32_dpp {v(SUM)}, {v(SUM)}, {v(SUM)} row_ror:8 row_mask:0xf bank_mask:0xf')
    A(f'v_add_f32 {v(SUM)}, {v(SUM)}, {v(SUM+2)}')
    A(f'v_mov_b32 {v(SUM+1)}, {v(SUM)}')
    A(f'v_permlane16_swap_b32 {v(SUM)}, {v(SUM+1)}')
    A(f'v_add_f32 {v(SUM)}, {v(SUM)}, {v(SUM+1)}')
    A(f'v_mov_b32 {v(SUM+1)}, {v(SUM)}')
    A(f'v_permlane32_swap_b32 {v(SUM)}, {v(SUM+1)}')
    A(f'v_add_f32 {v(SUM)}, {v(SUM)}, {v(SUM+1)}')
    A(f'v_rcp_f32 {v(SUM)}, {v(SUM)}')
    for r in range(4):
        A(f'v_mul_f32 {v(o0+r)}, {v(o0+r)}, {v(SUM)}')
        A(f'v_mul_f32 {v(o1+r)}, {v(o1+r)}, {v(SUM)}')
    of = XR[0]
    A(f'v_cvt_pk_bf16_f32 {v(of)}, {v(o0)}, {v(o0+1)}')
    A(f'v_cvt_pk_bf16_f32 {v(of+1)}, {v(o0+2)}, {v(o0+3)}')
    A(f'v_cvt_pk_bf16_f32 {v(of+2)}, {v(o1)}, {v(o1+1)}')
    A(f'v_cvt_pk_bf16_f32 {v(of+3)}, {v(o1+2)}, {v(o1+3)}')
    A(f's_mov_b64 exec, {s(S_EX8,2)}')
    A(f'ds_write_b128 {v(V_OW)}, {v(of,4)}')
    A(f's_mov_b64 exec, -1')
    wo_seq = [(t, ks) for t in range(9) for ks in range(4)]
    def wo_read(i):
        t, ks = wo_seq[i]
        base = V_WO0 if ks < 2 else V_WO1
        A(f'ds_read_b128 {v(V_RING+4*(i%3),4)}, {v(base)} offset:{(ks%2)*36864 + t*1024}')
    for i in range(3): wo_read(i)
    if not cfg.get('NOB1'):
        lab_ok = A.newlabel('b1ok'); lab_re = A.newlabel('b1re')
        A('s_waitcnt vmcnt(2)')
        A(f's_add_u32 {s(S_TMP)}, {s(S_STEP)}, 2')
        A(f's_min_u32 {s(S_TMP)}, {s(S_TMP)}, 64')
        A(f's_mov_b64 exec, 1')
        A(f'v_cmp_gt_u32 vcc, {s(S_TMP)}, {v(V_FLAG)}')
        A(f's_cbranch_vccz {lab_ok}')
        A(f's_mov_b32 {s(S_SPIN)}, {SPIN_LIMIT}')
        A.label(lab_re)
        A(f'buffer_load_dword {v(V_FLAG)}, {v(V_ZERO)}, {s(S_WS,4)}, {s(S_FLAGIN)} offen sc1')
        A('s_waitcnt vmcnt(0)')
        A(f'v_cmp_gt_u32 vcc, {s(S_TMP)}, {v(V_FLAG)}')
        A(f's_cbranch_vccz {lab_ok}')
        spin_check(A, lab_re, fail)
        A.label(lab_ok)
        A(f's_mov_b64 exec, -1')
    skipk = A.newlabel('skipk')
    A(f's_cmp_eq_u32 {s(S_STEP)}, 63')
    A(f's_cbranch_scc1 {skipk}')
    kxvx_load(A)
    A.label(skipk)
    A('s_waitcnt lgkmcnt(3)')
    A('s_barrier')
    stamp(A, cfg, 5)
    OF = [V_AQ + 4*i for i in range(4)]
    for kk in range(4):
        A(f'ds_read_b128 {v(OF[kk],4)}, {v(V_OR)} offset:{kk*512}')
    ACC = [V_QF, V_KF, V_AV, V_AV+4]
    A(f's_mov_b64 exec, {s(S_EX8,2)}') if False else None
    nrd = 3
    def tag_store(t):
        acc = ACC[t % 4]
        if tag: A(f'v_or_b32 {v(acc)}, 1, {v(acc)}')
        else:   A(f'v_and_b32 {v(acc)}, -2, {v(acc)}')
        A(f's_mov_b64 exec, {s(S_EX8,2)}')
        if t < 8: A(st(f'buffer_store_dwordx4 {v(acc,4)}, {v(V_PST)}, {s(S_WS,4)}, {s(S_PST)} offen offset:{t*512}'))
        else: A(st(f'buffer_store_dwordx4 {v(acc,4)}, {v(V_PST)}, {s(S_WS,4)}, {s(S_PST2)} offen'))
        A(f's_mov_b64 exec, -1')
    for i, (t, ks) in enumerate(wo_seq):
        if i == 0: A('s_waitcnt lgkmcnt(3)')
        elif i == 1: A('s_waitcnt lgkmcnt(3)')
        elif i == 2: A('s_waitcnt lgkmcnt(3)')
        elif i == 3: A('s_waitcnt lgkmcnt(2)')
        else: A(f's_waitcnt lgkmcnt({min(2, 35-i)})')
        acc = ACC[t % 4]
        A(f'{MF} {v(acc,4)}, {v(V_RING+4*(i%3),4)}, {v(OF[ks],4)}, {"0" if ks==0 else v(acc,4)}')
        if i + 3 < 36: wo_read(i + 3)
        if ks == 3 and t >= 1: tag_store(t - 1)
    tag_store(8)
    stamp(A, cfg, 6)
    PB = [V_RING, V_RING+4, V_RING+8, V_AQ, V_AQ+4, V_AQ+8, V_AQ+12, V_QF]
    lp1 = A.newlabel('hop1')
    A(f's_mov_b32 {s(S_SPIN)}, {SPIN_LIMIT}')
    A(f's_mov_b64 exec, {s(S_EXP,2)}')
    A.label(lp1)
    for i in range(8):
        A(f'buffer_load_dwordx4 {v(PB[i],4)}, {v(V_PLD)}, {s(S_WS,4)}, {s(S_PL+i)} offen sc1')
    A('s_waitcnt vmcnt(0)')
    T = V_T
    if tag:
        A(f'v_and_b32 {v(T)}, {v(PB[0])}, {v(PB[1])}')
        A(f'v_and_b32 {v(T+1)}, {v(PB[2])}, {v(PB[3])}')
        A(f'v_and_b32 {v(T+2)}, {v(PB[4])}, {v(PB[5])}')
        A(f'v_and_b32 {v(T+3)}, {v(PB[6])}, {v(PB[7])}')
        A(f'v_and_b32 {v(T)}, {v(T)}, {v(T+1)}')
        A(f'v_and_b32 {v(T+2)}, {v(T+2)}, {v(T+3)}')
        A(f'v_and_b32 {v(T)}, {v(T)}, {v(T+2)}')
    else:
        A(f'v_or3_b32 {v(T)}, {v(PB[0])}, {v(PB[1])}, {v(PB[2])}')
        A(f'v_or3_b32 {v(T+1)}, {v(PB[3])}, {v(PB[4])}, {v(PB[5])}')
        A(f'v_or3_b32 {v(T)}, {v(T)}, {v(PB[6])}, {v(PB[7])}')
        A(f'v_or_b32 {v(T)}, {v(T)}, {v(T+1)}')
    A(f'v_and_b32 {v(T)}, 1, {v(T)}')
    A(f'v_cmp_ne_u32 vcc, {tag}, {v(T)}')
    lok = A.newlabel('h1ok')
    A(f's_cbranch_vccz {lok}')
    spin_check(A, lp1, fail)
    A.label(lok)
    stamp(A, cfg, 7)
    def padd(d, x_, y_):
        A(f'v_pk_add_f32 {v(d,2)}, {v(x_,2)}, {v(y_,2)}')
    for (d, o_) in ((0,1),(2,3),(4,5),(6,7),(0,2),(4,6),(0,4)):
        padd(PB[d], PB[d], PB[o_]); padd(PB[d]+2, PB[d]+2, PB[o_]+2)
    X = PB[0]
    A(f's_mov_b64 exec, -1')
    A(f'v_permlane32_swap_b32 {v(X)}, {v(X+2)}')
    A(f'v_permlane32_swap_b32 {v(X+1)}, {v(X+3)}')
    A(f'v_add_f32 {v(X)}, {v(X)}, {v(X+2)}')
    A(f'v_add_f32 {v(X+1)}, {v(X+1)}, {v(X+3)}')
    A(f'v_mov_b32 {v(X+2)}, {v(X)}')
    A(f'v_mov_b32 {v(X+3)}, {v(X+1)}')
    A(f'v_permlane16_swap_b32 {v(X)}, {v(X+2)}')
    A(f'v_permlane16_swap_b32 {v(X+1)}, {v(X+3)}')
    A(f'v_add_f32 {v(X)}, {v(X)}, {v(X+2)}')
    A(f'v_add_f32 {v(X+1)}, {v(X+1)}, {v(X+3)}')
    A(f'v_cvt_pk_bf16_f32 {v(X)}, {v(X)}, {v(X+1)}')
    A(f'v_mov_b32 {v(X+1)}, -1')
    new = [S_MB0, S_MB1][par ^ 1]; old = [S_MB0, S_MB1][par]
    A(f's_mov_b64 exec, {s(S_EXS,2)}')
    A(st(f'buffer_store_dword {v(X)}, {v(V_MST)}, {s(S_WS,4)}, {s(new)} offen'))
    A(st(f'buffer_store_dword {v(X+1)}, {v(V_MST)}, {s(S_WS,4)}, {s(old)} offen'))
    A(f's_mov_b64 exec, -1')
    stamp(A, cfg, 8)
    nb = [(S_MB0, S_MB0b, S_MB0c), (S_MB1, S_MB1b, S_MB1c)][par ^ 1]
    lp2 = A.newlabel('hop2')
    A(f's_mov_b32 {s(S_SPIN)}, {SPIN_LIMIT}')
    A.label(lp2)
    M0r, M1r, M2r = V_AQ, V_AQ+4, V_AQ+8
    A(f'buffer_load_dwordx4 {v(M0r,4)}, {v(V_T16)}, {s(S_WS,4)}, {s(nb[0])} offen sc1')
    A(f'buffer_load_dwordx4 {v(M1r,4)}, {v(V_T16)}, {s(S_WS,4)}, {s(nb[1])} offen sc1')
    A(f'buffer_load_dword {v(M2r)}, {v(V_T4)}, {s(S_WS,4)}, {s(nb[2])} offen sc1')
    A('s_waitcnt vmcnt(0)')
    A(f'v_max3_u32 {v(T)}, {v(M0r)}, {v(M0r+1)}, {v(M0r+2)}')
    A(f'v_max3_u32 {v(T+1)}, {v(M0r+3)}, {v(M1r)}, {v(M1r+1)}')
    A(f'v_max3_u32 {v(T+2)}, {v(M1r+2)}, {v(M1r+3)}, {v(M2r)}')
    A(f'v_max3_u32 {v(T)}, {v(T)}, {v(T+1)}, {v(T+2)}')
    A(f'v_cmp_eq_u32 vcc, -1, {v(T)}')
    lok2 = A.newlabel('h2ok')
    A(f's_cbranch_vccz {lok2}')
    spin_check(A, lp2, fail)
    A.label(lok2)
    A(f'v_add_u32 {v(T)}, {L_MEM}, {v(V_T16)}')
    A(f'v_add_u32 {v(T+1)}, {L_MEM+8192}, {v(V_T4)}')
    A(f'ds_write_b128 {v(T)}, {v(M0r,4)}')
    A(f'ds_write_b128 {v(T)}, {v(M1r,4)} offset:4096')
    A(f'ds_write_b32 {v(T+1)}, {v(M2r)}')
    A('s_waitcnt lgkmcnt(0)')
    A('s_barrier')
    stamp(A, cfg, 9)
    A(f's_add_u32 {s(S_STEP)}, {s(S_STEP)}, 1')

import struct
def f32(x): return struct.unpack('<I', struct.pack('<f', x))[0]

def chain_role(A, cfg, fail, done):
    chain_init(A, cfg)
    cfg['barrier_wait'](A)
    if not cfg.get('NOB1'):
        lab_re = A.newlabel('b1first'); lab_ok = A.newlabel('b1fok')
        A(f's_mov_b32 {s(S_SPIN)}, {SPIN_LIMIT}')
        A.label(lab_re)
        A(f'buffer_load_dword {v(V_FLAG)}, {v(V_ZERO)}, {s(S_WS,4)}, {s(S_FLAGIN)} offen sc1')
        A('s_waitcnt vmcnt(0)')
        A(f'v_cmp_gt_u32 vcc, 1, {v(V_FLAG)}')
        A(f's_cbranch_vccz {lab_ok}')
        spin_check(A, lab_re, fail)
        A.label(lab_ok)
    kxvx_load(A)
    A(f's_mov_b32 {s(S_STEP)}, 0')
    A('s_barrier')
    if cfg.get('STAMPS') or cfg.get('TOTAL'):
        A(f's_memtime {s(S_T0,2)}')
        A('s_waitcnt lgkmcnt(0)')
    loop = A.newlabel('chainloop')
    A.label(loop)
    chain_step(A, 0, cfg, fail)
    chain_step(A, 1, cfg, fail)
    A(f's_cmp_lt_u32 {s(S_STEP)}, 64')
    A(f's_cbranch_scc1 {loop}')
    tstamp(A, cfg, 64, V_T, V_ZERO)
    A(f'v_mov_b32 {v(V_T)}, {s(S_STEP)}')
    A(f's_mov_b64 exec, 1')
    A(f'buffer_store_dword {v(V_T)}, {v(V_ZERO)}, {s(S_WS,4)}, {s(S_FLAGOUT)} offen sc1')
    A(f's_mov_b64 exec, -1')
    if cfg.get('STAMPS') or cfg.get('TOTAL'):
        A(f's_memtime {s(S_T1,2)}')
        A('s_waitcnt lgkmcnt(0)')
        A(f's_sub_u32 {s(S_T1)}, {s(S_T1)}, {s(S_T0)}')
        sk = A.newlabel('nostamp')
        A(f's_or_b32 {s(S_TMP)}, {s(S_ROLE)}, {s(S_WAVE)}')
        A(f's_cmp_lg_u32 {s(S_TMP)}, 0')
        A(f's_cbranch_scc1 {sk}')
        A(f'v_mov_b32 v14, {s(S_T1)}')
        A(f'v_mov_b32 v15, 0')
        A(f'global_store_dword v15, v14, {s(S_DBG,2)} offset:64')
        for i in range(10 if cfg.get('STAMPS') else 0):
            A(f's_sub_u32 {s(S_TMP)}, {s(64+i)}, {s(64)}')
            A(f'v_mov_b32 v14, {s(S_TMP)}')
            A(f'global_store_dword v15, v14, {s(S_DBG,2)} offset:{68+4*i}')
        A.label(sk)
    A(f's_branch {done}')
```

```python
from asm import *
from common import *
from chain import (S_KA, S_WG, S_WS, S_SRD, S_DBG, S_ROLE, S_WAVE, S_XCC, S_TMP, S_SPIN, S_PTR, S_MODE, MF, MF16,
                   srd_from_ptr, load_ptr_srd, spin_check, tstamp, fst, f32, S_SOFF, S_M0, S_TS)

SM = 'v_smfmac_f32_16x16x64_bf16'
L_MEM = 0
L_QK = 9216
L_O = 13312
L_KX = 15360
L_VX = L_KX + 8192
L_WO = 31744
L_STG = 16384

V_L16, V_L8, V_IDX, V_PLD, V_MST, V_QKW, V_OW, V_FLAG = range(8)
M = lambda k: 8 + 4*k
AQ0, AQ1, AK0, AK1, AV0 = 44, 48, 52, 56, 60
AV1 = AQ0
def WQ(t, ks): f = t*9 + ks; return a(8*f, 8)
def WK(t, ks):
    f = 18 + t*9 + ks
    return a(8*f, 8) if f < 32 else v(64 + 8*(f-32), 8)
def WV(t, ks): return v(96 + 72*t + 8*ks, 8)
def WOR(ks): return v(240 + 8*ks, 8)
def wsub(m, t, ks, i4):
    if m == 0: return a(8*(t*9+ks) + 2*i4, 2)
    if m == 1:
        f = 18 + t*9 + ks
        return a(8*f + 2*i4, 2) if f < 32 else v(64 + 8*(f-32) + 2*i4, 2)
    return v(96 + 72*t + 8*ks + 2*i4, 2)

S_H = 26; S_L = 27; S_STEP = 28
S_PL = 30
S_PST = 38; S_PST2 = 39
S_MSA = 40
S_MSB = 42
S_ML = 44
S_FLAGIN = 50; S_FLAGOUT = 51
S_KX = 52; S_KVM = 53
S_EXO = 54
S_EXS = 56
S_SC = 58
S_NSC = 60
S_HAS2 = 61
S_W1024 = 64; S_W256 = 65; S_VXO = 66; S_WBO = 67; S_KXM0 = 68; S_KVM2 = 69
S_T0 = 70
S_T1 = 72
S_MSK = 74
S_ST = 80

class LQ:
    def __init__(self, A): self.A = A; self.q = []
    def op(self, text, tag=None):
        self.A(text); self.q.append(tag if tag is not None else object())
    def wait(self, *tags):
        idx = [i for i, t in enumerate(self.q) if t in tags]
        if not idx: return
        i = max(idx)
        n = len(self.q) - 1 - i
        self.A(f's_waitcnt lgkmcnt({min(n, 15)})')
        keep = min(n, 15)
        self.q = self.q[len(self.q)-keep:] if keep else []
    def waitall(self):
        self.A('s_waitcnt lgkmcnt(0)'); self.q = []

def stamp(A, cfg, idx):
    if not cfg.get('STAMPS'): return
    A(f's_memtime {s(S_T1,2)}')
    A('s_waitcnt lgkmcnt(0)')
    A(f's_mov_b32 {s(S_ST+idx)}, {s(S_T1)}')

def chain_init(A, cfg):
    w = s(S_WAVE)
    TID, LN, COL, G = 63, 62, 61, 60
    A(f'v_mov_b32 {v(TID)}, v0')
    A(f'v_and_b32 {v(LN)}, 63, v0')
    A(f'v_and_b32 {v(COL)}, 15, {v(LN)}')
    A(f'v_lshrrev_b32 {v(G)}, 4, {v(LN)}')
    A(f'v_lshlrev_b32 v10, 1, {v(G)}')
    A(f'v_xor_b32 v10, v10, {v(COL)}')
    A(f'v_xor_b32 v11, 8, v10')
    A(f'v_lshlrev_b32 v10, 4, v10')
    A(f'v_lshlrev_b32 v11, 4, v11')
    A(f'v_lshlrev_b32 v12, 13, {v(G)}')
    A(f'v_add_u32 v8, v10, v12')
    A(f'v_add_u32 v9, v11, v12')
    A(f'v_lshrrev_b32 v10, 2, {v(COL)}')
    A(f'v_and_b32 v11, 3, {v(COL)}')
    A(f'v_and_b32 v12, 1, {v(G)}')
    A(f'v_lshlrev_b32 v12, 2, v12')
    A(f'v_or_b32 v12, v12, v10')
    A(f'v_lshlrev_b32 v12, 1, v12')
    A(f'v_lshrrev_b32 v13, 1, v11')
    A(f's_lshl_b32 {s(S_TMP)}, {w}, 2')
    A(f'v_add_u32 v13, {s(S_TMP)}, v13')
    A(f'v_and_b32 v11, 1, v11')
    A(f'v_lshlrev_b32 v11, 3, v11')
    A(f'v_lshlrev_b32 v14, 4, {v(G)}')
    A(f'v_add_u32 v14, v14, v10')
    A(f'v_lshlrev_b32 v14, 8, v14')
    A(f'v_add_u32 v14, v14, v11')
    A(f'v_xor_b32 v15, v13, v12')
    A(f'v_add_u32 v13, 2, v13')
    A(f'v_xor_b32 v16, v13, v12')
    A(f'v_lshlrev_b32 v15, 4, v15')
    A(f'v_lshlrev_b32 v16, 4, v16')
    A(f'v_add_u32 v15, v15, v14')
    A(f'v_add_u32 v16, v16, v14')
    BUF = [L_STG + 49152*b for b in range(3)]
    TR = lambda b, t: 20 + 2*b + t
    for b in range(3):
        A(f'v_add_u32 {v(TR(b,0))}, {BUF[b]}, v15')
        A(f'v_add_u32 {v(TR(b,1))}, {BUF[b]}, v16')
    KA = [KA_WQ, KA_WK, KA_WV]
    WSZ = 576*4096*2
    def issue_part(p):
        m, part = p // 3, p % 3
        load_ptr_srd(A, S_SRD, KA[m], WSZ)
        A(f's_lshl_b32 {s(S_SOFF)}, {s(S_H)}, 8')
        A(f's_lshl_b32 {s(S_TMP)}, {w}, 15')
        A(f's_add_u32 {s(S_SOFF)}, {s(S_SOFF)}, {s(S_TMP)}')
        if part: A(f's_add_u32 {s(S_SOFF)}, {s(S_SOFF)}, {part*192*8192}')
        A(f's_lshl_b32 {s(S_M0)}, {w}, 10')
        A(f's_add_u32 {s(S_M0)}, {s(S_M0)}, {BUF[p % 3]}')
        for j in range(12):
            A(f's_mov_b32 m0, {s(S_M0)}')
            A(f'buffer_load_dwordx4 {v(8 + (j & 1))}, {s(S_SRD,4)}, {s(S_SOFF)} offen lds')
            if j < 11:
                A(f's_add_u32 {s(S_SOFF)}, {s(S_SOFF)}, {16*8192}')
                A(f's_add_u32 {s(S_M0)}, {s(S_M0)}, 4096')
    def consume_part(p):
        m, part = p // 3, p % 3
        n = 0
        for t in range(2):
            for k in range(3):
                for i4 in range(4):
                    A(f'ds_read_b64_tr_b16 {wsub(m, t, part*3+k, i4)}, {v(TR(p % 3, t))} offset:{k*16384 + i4*1024}')
                    n += 1
                    if n % 8 == 0 and n < 24: A('s_waitcnt lgkmcnt(8)')
        A('s_waitcnt lgkmcnt(0)')
    def issue_wo(k):
        load_ptr_srd(A, S_SRD, KA_WO, 32*128*576*2)
        A(f's_mul_i32 {s(S_SOFF)}, {s(S_H)}, 147456')
        A(f's_lshl_b32 {s(S_M0)}, {w}, 10')
        A(f's_add_u32 {s(S_SOFF)}, {s(S_SOFF)}, {s(S_M0)}')
        if k: A(f's_add_u32 {s(S_SOFF)}, {s(S_SOFF)}, {k*36864}')
        A(f's_add_u32 {s(S_M0)}, {s(S_M0)}, {L_STG + k*36864}')
        for j in range(9):
            A(f's_mov_b32 m0, {s(S_M0)}')
            A(f'buffer_load_dwordx4 {v(V_L16)}, {s(S_SRD,4)}, {s(S_SOFF)} offen lds')
            if j < 8:
                A(f's_add_u32 {s(S_SOFF)}, {s(S_SOFF)}, 4096')
                A(f's_add_u32 {s(S_M0)}, {s(S_M0)}, 4096')
    A(f'v_lshlrev_b32 {v(V_L16)}, 4, {v(LN)}')
    A(f'v_lshlrev_b32 {v(V_L8)}, 3, {v(LN)}')
    for p in range(3): issue_part(p)
    pend = [12, 12, 12]
    for p in range(9):
        A(f's_waitcnt vmcnt({sum(pend[1:])})')
        pend = pend[1:]
        A('s_barrier')
        consume_part(p)
        A('s_barrier')
        if p + 3 < 9: issue_part(p + 3); pend.append(12)
        elif p == 6: issue_wo(0); pend.append(9)
        elif p == 7: issue_wo(1); pend.append(9)
        elif p == 8: issue_wo(2); issue_wo(3)
    A(f'v_lshrrev_b32 v10, 2, {v(COL)}')
    A(f'v_and_b32 v11, 3, {v(COL)}')
    A(f'v_lshlrev_b32 v12, 2, {v(G)}')
    A(f'v_add_u32 v12, v12, v10')
    A(f'v_mul_u32_u24 v12, 1152, v12')
    A(f'v_lshlrev_b32 v11, 3, v11')
    A(f'v_add_u32 v12, v12, v11')
    A(f's_mul_i32 {s(S_TMP)}, {w}, 288')
    A(f's_add_u32 {s(S_TMP)}, {s(S_TMP)}, {L_STG + 3*36864}')
    A(f'v_add_u32 v12, {s(S_TMP)}, v12')
    A(f's_lshl_b32 {s(S_WBO)}, {w}, 13')
    A(f's_add_u32 {s(S_WBO)}, {s(S_WBO)}, {L_WO}')
    A(f's_add_u32 {s(S_TMP)}, {s(S_WBO)}, {3*32768}')
    A(f'v_add_u32 v13, {s(S_TMP)}, {v(V_L16)}')
    A('s_waitcnt vmcnt(0)')
    A('s_barrier')
    for k in (3, 2, 1, 0):
        for t in range(9):
            d = 240 + 4*k if t == 0 else 20 + 4*t
            A(f'ds_read_b64_tr_b16 {v(d,2)}, v12 offset:{t*32}')
            A(f'ds_read_b64_tr_b16 {v(d+2,2)}, v12 offset:{t*32 + 16*1152}')
        A('s_waitcnt lgkmcnt(0)')
        A('s_barrier')
        for t in range(1, 9):
            A(f'ds_write_b128 v13, {v(20+4*t,4)} offset:{(t-1)*1024}')
        if k:
            A(f'v_subrev_u32 v12, 36864, v12')
            A(f'v_subrev_u32 v13, 32768, v13')
        A('s_waitcnt lgkmcnt(0)')
    A(f'v_and_b32 v10, 2, {v(LN)}')
    A(f'v_cmp_eq_u32 vcc, 0, v10')
    A(f'v_mov_b32 v11, 0xeeeeeeee')
    A(f'v_mov_b32 v12, 0x44444444')
    A(f'v_cndmask_b32 {v(V_IDX)}, v11, v12, vcc')
    A(f's_lshl_b32 {s(S_W1024)}, {w}, 10')
    A(f's_lshl_b32 {s(S_W256)}, {w}, 8')
    A(f'v_lshlrev_b32 v10, 5, {v(COL)}')
    A(f'v_lshlrev_b32 v11, 3, {v(G)}')
    A(f'v_add_u32 v10, v10, v11')
    A(f's_add_u32 {s(S_TMP)}, {s(S_W1024)}, {L_QK}')
    A(f'v_add_u32 {v(V_QKW)}, {s(S_TMP)}, v10')
    A(f'v_lshrrev_b32 v10, 1, {v(G)}'); A(f'v_lshlrev_b32 v10, 8, v10')
    A(f'v_and_b32 v11, 1, {v(G)}'); A(f'v_lshlrev_b32 v11, 3, v11')
    A(f'v_add_u32 v10, v10, v11')
    A(f'v_lshlrev_b32 v11, 4, {v(COL)}')
    A(f'v_add_u32 v10, v10, v11')
    A(f's_lshl_b32 {s(S_TMP)}, {w}, 9')
    A(f's_add_u32 {s(S_TMP)}, {s(S_TMP)}, {L_O - 32}')
    A(f'v_add_u32 {v(V_OW)}, {s(S_TMP)}, v10')
    A(f'v_lshrrev_b32 v10, 3, {v(LN)}'); A(f'v_mul_u32_u24 v10, 18432, v10')
    A(f'v_and_b32 v11, 7, {v(LN)}'); A(f'v_lshlrev_b32 v12, 4, v11')
    A(f'v_add_u32 {v(V_PLD)}, v10, v12')
    A(f'v_lshrrev_b32 v10, 2, v11'); A(f'v_lshlrev_b32 v10, 9, v10')
    A(f'v_and_b32 v12, 1, v11'); A(f'v_lshlrev_b32 v12, 5, v12'); A(f'v_add_u32 v10, v10, v12')
    A(f'v_lshrrev_b32 v12, 5, {v(LN)}'); A(f'v_lshlrev_b32 v12, 4, v12'); A(f'v_add_u32 v10, v10, v12')
    A(f'v_bfe_u32 v12, v11, 1, 1'); A(f'v_lshlrev_b32 v12, 2, v12'); A(f'v_add_u32 {v(V_MST)}, v10, v12')
    A(f's_mul_i32 {s(S_TMP)}, {s(S_L)}, {PART_STRIDE}')
    A(f's_add_u32 {s(S_TMP)}, {s(S_TMP)}, {WS_PART}')
    TA_, TB_, Q_ = 74, 75, 76
    A(f's_bfe_u32 {s(TB_)}, {s(S_H)}, 0x20002')
    A(f's_mul_i32 {s(TB_)}, {s(TB_)}, 9')
    A(f's_lshr_b32 {s(TA_)}, {s(S_H)}, 4')
    A(f's_add_u32 {s(TA_)}, {s(TA_)}, {s(TB_)}')
    A(f's_lshl_b32 {s(S_TMP+1)}, {w}, 1')
    A(f's_add_u32 {s(TA_)}, {s(TA_)}, {s(S_TMP+1)}')
    A(f's_add_u32 {s(TA_)}, {s(TA_)}, 1')
    A(f's_and_b32 {s(Q_)}, {s(S_H)}, 3')
    for dst, tt in ((S_TMP+1, TA_), (S_TMP+2, TB_)):
        A(f's_lshl_b32 {s(dst)}, {s(tt)}, 2')
        A(f's_add_u32 {s(dst)}, {s(dst)}, {s(Q_)}')
        A(f's_lshl_b32 {s(dst)}, {s(dst)}, 7')
        A(f's_add_u32 {s(dst)}, {s(dst)}, {s(S_TMP)}')
    for i in range(4):
        A(f's_add_u32 {s(S_PL+i)}, {s(S_TMP+1)}, {i*147456}')
        A(f's_add_u32 {s(S_PL+4+i)}, {s(S_TMP+2)}, {i*147456}')
    A(f's_mul_i32 {s(S_TMP+1)}, {s(S_H)}, 18432')
    A(f's_add_u32 {s(S_PST)}, {s(S_TMP)}, {s(S_TMP+1)}')
    A(f's_mul_i32 {s(S_TMP+1)}, {w}, 4608')
    A(f's_add_u32 {s(S_PST)}, {s(S_PST)}, {s(S_TMP+1)}')
    A(f's_add_u32 {s(S_PST2)}, {s(S_PST)}, 4096')
    A(f's_cmp_eq_u32 {w}, 0')
    A(f's_cselect_b32 {s(S_HAS2)}, 1, 0')
    A(f's_cmp_lt_u32 {s(S_H)}, 16')
    A(f's_cselect_b32 {s(S_HAS2)}, {s(S_HAS2)}, 0')
    def linepart(dst, sT, sG):
        A(f's_lshr_b32 {s(dst)}, {sT}, 2'); A(f's_lshl_b32 {s(dst)}, {s(dst)}, 10')
        A(f's_bfe_u32 {s(S_T0)}, {sT}, 0x10001'); A(f's_lshl_b32 {s(S_T0)}, {s(S_T0)}, 8'); A(f's_add_u32 {s(dst)}, {s(dst)}, {s(S_T0)}')
        A(f's_and_b32 {s(S_T0)}, {sT}, 1'); A(f's_lshl_b32 {s(S_T0)}, {s(S_T0)}, 3'); A(f's_add_u32 {s(dst)}, {s(dst)}, {s(S_T0)}')
        A(f's_lshl_b32 {s(S_T0)}, {sG}, 6'); A(f's_add_u32 {s(dst)}, {s(dst)}, {s(S_T0)}')
    A(f's_mul_i32 {s(S_TMP)}, {s(S_L)}, {MEMB_STRIDE}')
    A(f's_add_u32 {s(S_TMP)}, {s(S_TMP)}, {WS_MEMB}')
    linepart(S_MSA, s(TA_), s(Q_))
    A(f's_add_u32 {s(S_MSA)}, {s(S_MSA)}, {s(S_TMP)}')
    A(f's_add_u32 {s(S_MSA+1)}, {s(S_MSA)}, 9216')
    linepart(S_MSB, s(TB_), s(Q_))
    A(f's_add_u32 {s(S_MSB)}, {s(S_MSB)}, {s(S_TMP)}')
    A(f's_add_u32 {s(S_MSB+1)}, {s(S_MSB)}, 9216')
    for par in range(2):
        A(f's_add_u32 {s(S_ML+3*par)}, {s(S_TMP)}, {s(S_W1024)}')
        if par: A(f's_add_u32 {s(S_ML+3*par)}, {s(S_ML+3*par)}, 9216')
        A(f's_add_u32 {s(S_ML+3*par+1)}, {s(S_ML+3*par)}, 4096')
        A(f's_add_u32 {s(S_ML+3*par+2)}, {s(S_TMP)}, {s(S_W256)}')
        A(f's_add_u32 {s(S_ML+3*par+2)}, {s(S_ML+3*par+2)}, {8192 + 9216*par}')
    A(f's_mul_i32 {s(S_TMP)}, {s(S_L)}, {QKVX_STRIDE}')
    A(f's_mul_i32 {s(S_TMP+1)}, {s(S_H)}, 24576')
    A(f's_add_u32 {s(S_KX)}, {s(S_TMP)}, {s(S_TMP+1)}')
    A(f's_lshl_b32 {s(S_TMP+1)}, {w}, 12')
    A(f's_add_u32 {s(S_KX)}, {s(S_KX)}, {s(S_TMP+1)}')
    A(f's_add_u32 {s(S_KX)}, {s(S_KX)}, {WS_QKVX + 8192}')
    A(f's_add_u32 {s(S_KXM0)}, {s(S_TMP+1)}, {L_KX}')
    A(f's_lshl_b32 {s(S_VXO)}, {w}, 11')
    A(f's_mul_i32 {s(S_TMP)}, {s(S_L)}, {KVM_STRIDE}')
    A(f's_lshl_b32 {s(S_TMP+1)}, {s(S_H)}, 13')
    A(f's_add_u32 {s(S_TMP)}, {s(S_TMP)}, {s(S_TMP+1)}')
    A(f's_add_u32 {s(S_TMP)}, {s(S_TMP)}, {WS_KVM}')
    A(f's_add_u32 {s(S_KVM)}, {s(S_TMP)}, {s(S_W1024)}')
    A(f's_lshl_b32 {s(S_TMP+1)}, {w}, 9')
    A(f's_add_u32 {s(S_KVM2)}, {s(S_TMP)}, {s(S_TMP+1)}')
    A(f's_add_u32 {s(S_KVM2)}, {s(S_KVM2)}, 4096')
    A(f's_lshl_b32 {s(S_TMP)}, {s(S_ROLE)}, 7')
    A(f's_lshl_b32 {s(S_TMP+1)}, {w}, 2')
    A(f's_add_u32 {s(S_FLAGOUT)}, {s(S_TMP)}, {s(S_TMP+1)}')
    A(f's_mul_i32 {s(S_TMP)}, {s(S_L)}, {R_B1[1]-R_B1[0]}')
    A(f's_add_u32 {s(S_TMP)}, {s(S_TMP)}, {s(S_H)}')
    A(f's_add_u32 {s(S_TMP)}, {s(S_TMP)}, {R_B1[0]}')
    A(f's_lshl_b32 {s(S_TMP)}, {s(S_TMP)}, 7')
    A(f's_add_u32 {s(S_FLAGIN)}, {s(S_TMP)}, {s(S_TMP+1)}')
    for sr, val in ((S_EXO, 0xCCCCCCCCCCCCCCCC), (S_EXS, 0x000000FF000000FF)):
        A(f's_mov_b32 {s(sr)}, {hex(val & 0xffffffff)}')
        A(f's_mov_b32 {s(sr+1)}, {hex(val >> 32)}')
    SC = (128 ** -0.5) * 1.4426950408889634
    A(f's_mov_b32 {s(S_SC)}, {hex(f32(SC))}'); A(f's_mov_b32 {s(S_SC+1)}, {hex(f32(SC))}')
    A(f's_mov_b32 {s(S_NSC)}, {hex(f32(-SC))}')
    load_ptr_srd(A, S_SRD, KA_MEM0, 8*576*2)
    A(f'v_lshrrev_b32 v10, 2, {v(TID)}')
    A(f'v_and_b32 v11, 15, v10')
    A(f'v_lshrrev_b32 v12, 4, v10')
    A(f'v_lshrrev_b32 v13, 2, v11'); A(f'v_lshlrev_b32 v13, 1, v13')
    A(f'v_and_b32 v14, 1, v11'); A(f'v_add_u32 v13, v13, v14')
    A(f'v_mul_u32_u24 v13, 1152, v13')
    A(f'v_bfe_u32 v14, v11, 1, 1'); A(f'v_lshlrev_b32 v14, 2, v14'); A(f'v_add_u32 v13, v13, v14')
    A(f'v_and_b32 v14, 1, v12'); A(f'v_lshlrev_b32 v14, 6, v14'); A(f'v_add_u32 v13, v13, v14')
    A(f'v_lshrrev_b32 v14, 1, v12'); A(f'v_lshlrev_b32 v14, 4, v14'); A(f'v_add_u32 v13, v13, v14')
    A(f'v_bfe_u32 v14, {v(TID)}, 1, 1'); A(f'v_lshlrev_b32 v14, 5, v14'); A(f'v_add_u32 v13, v13, v14')
    A(f'v_and_b32 v14, 1, {v(TID)}'); A(f'v_lshlrev_b32 v14, 3, v14'); A(f'v_add_u32 v13, v13, v14')
    for ks in range(9):
        A(f'buffer_load_dword {v(20+ks)}, v13, {s(S_SRD,4)}, 0 offen offset:{ks*128}')
    A(f'v_lshlrev_b32 v14, 2, {v(TID)}')
    A('s_waitcnt vmcnt(0)')
    for ks in range(9):
        A(f'ds_write_b32 v14, {v(20+ks)} offset:{L_MEM + ks*1024}')
    A('s_waitcnt lgkmcnt(0)')

def kxvx_dma(A):
    A(f's_mov_b32 m0, {s(S_KXM0)}')
    for j in range(4):
        A(f'buffer_load_dwordx4 {v(V_L16)}, {s(S_WS,4)}, {s(S_KX)} offen offset:{j*1024} lds')
    A(f's_add_u32 {s(S_KX)}, {s(S_KX)}, {32*24576}')

def spin_dec(A, fail):
    A(f's_sub_u32 {s(S_SPIN)}, {s(S_SPIN)}, 1')
    A(f's_cbranch_scc1 {fail}')

ZB32 = [False]
def zero4(A, r):
    if ZB32[0]:
        for i in range(4): A(f'v_mov_b32 {v(r+i)}, 0')
    else:
        A(f'v_mov_b64 {v(r,2)}, 0'); A(f'v_mov_b64 {v(r+2,2)}, 0')

def chain_step(A, par, cfg, fail):
    tag = par ^ 1
    st = lambda f: f + (' sc1' if cfg.get('SLOW') else '')
    L = LQ(A)
    stamp(A, cfg, 0)
    for k in range(9):
        L.op(f'ds_read_b128 {v(M(k),4)}, {v(V_L16)} offset:{L_MEM + k*1024}', ('M', k))
    if not cfg.get('NOB1'):
        A(f's_mov_b64 exec, 1')
        A(f'buffer_load_dword {v(V_FLAG)}, {v(V_L16)}, {s(S_WS,4)}, {s(S_FLAGIN)} offen sc1')
        A(f's_mov_b64 exec, -1')
    def q(t, ks): A(f'{SM} {v([AQ0,AQ1][t],4)}, {v(M(ks),4)}, {WQ(t,ks)}, {v(V_IDX)}')
    def k_(t, ks): A(f'{SM} {v([AK0,AK1][t],4)}, {v(M(ks),4)}, {WK(t,ks)}, {v(V_IDX)}')
    def vv(t, ks): A(f'{SM} {v([AV0,AV1][t],4)}, {v(M(ks),4)}, {WV(t,ks)}, {v(V_IDX)}')
    for ks in range(7):
        L.wait(('M', ks))
        q(0, ks); k_(0, ks); q(1, ks); k_(1, ks)
    L.waitall()
    stamp(A, cfg, 1)
    q(0, 7); k_(0, 7); q(0, 8); k_(0, 8); q(1, 7); k_(1, 7)
    def post(t):
        aq, ak = [AQ0, AQ1][t], [AK0, AK1][t]
        A(f'v_pk_add_f32 {v(aq,2)}, {v(aq,2)}, {v(aq+2,2)}')
        A(f'v_pk_add_f32 {v(ak,2)}, {v(ak,2)}, {v(ak+2,2)}')
        A(f'v_cvt_pk_bf16_f32 {v(ak+2)}, {v(ak)}, {v(ak+1)}')
        A(f'v_cvt_pk_bf16_f32 {v(ak+3)}, {v(aq)}, {v(aq+1)}')
        L.op(f'ds_write_b64 {v(V_QKW)}, {v(ak+2,2)} offset:{t*512}')
    q(1, 8)
    post(0)
    k_(1, 8)
    zero4(A, AV1)
    vv(0, 0); vv(0, 1)
    post(1)
    vv(1, 0); vv(1, 1); vv(0, 2); vv(1, 2)
    L.waitall()
    A('s_barrier')
    stamp(A, cfg, 2)
    F = [AQ1, AK0, AK1, M(0)]
    def fread(c):
        L.op(f'ds_read_b64_tr_b16 {v(F[c],2)}, {v(V_L8)} offset:{L_QK + c*1024}', ('F', c, 0))
        L.op(f'ds_read_b64_tr_b16 {v(F[c]+2,2)}, {v(V_L8)} offset:{L_QK + c*1024 + 512}', ('F', c))
    KXR = {(0,0): M(1), (1,0): M(2), (0,1): M(3), (1,1): M(4), (0,2): M(5), (1,2): M(1), (0,3): M(2), (1,3): F[0]}
    def kxread(t, c):
        L.op(f'ds_read_b128 {v(KXR[(t,c)],4)}, {v(V_L16)} offset:{L_KX + (t*4+c)*1024}', ('KX', t, c))
    fread(0); kxread(0, 0); kxread(1, 0)
    vv(0, 3); fread(1)
    vv(1, 3); kxread(0, 1)
    vv(0, 4); fread(2)
    vv(1, 4); kxread(1, 1)
    vv(0, 5); fread(3)
    vv(1, 5); kxread(0, 2)
    for ks in (6, 7, 8): vv(0, ks); vv(1, ks)
    S0, S1, SMm = M(6), M(7), M(8)
    def smf(acc, areg, c):
        A(f'{MF} {v(acc,4)}, {v(areg,4)}, {v(F[c],4)}, {"0" if c == 0 else v(acc,4)}')
    stamp(A, cfg, 3)
    L.wait(('KX', 0, 0)); smf(S0, KXR[(0,0)], 0)
    L.wait(('KX', 1, 0)); smf(S1, KXR[(1,0)], 0)
    kxread(1, 2)
    smf(SMm, F[0], 0)
    kxread(0, 3)
    kxread(1, 3)
    L.wait(('KX', 0, 1)); smf(S0, KXR[(0,1)], 1)
    L.wait(('KX', 1, 1)); smf(S1, KXR[(1,1)], 1)
    smf(SMm, F[1], 1)
    VM = AV0 + 2
    A(f'v_pk_add_f32 {v(AV0,2)}, {v(AV0,2)}, {v(AV0+2,2)}')
    A(f'v_pk_add_f32 {v(AV1,2)}, {v(AV1,2)}, {v(AV1+2,2)}')
    L.wait(('KX', 0, 2)); smf(S0, KXR[(0,2)], 2)
    A(f'v_cvt_pk_bf16_f32 {v(VM)}, {v(AV0)}, {v(AV0+1)}')
    A(f'v_cvt_pk_bf16_f32 {v(VM+1)}, {v(AV1)}, {v(AV1+1)}')
    smf(SMm, F[2], 2)
    A(f'buffer_store_dwordx2 {v(VM,2)}, {v(V_L8)}, {s(S_WS,4)}, {s(S_KVM2)} offen sc1')
    L.wait(('KX', 1, 2)); smf(S1, KXR[(1,2)], 2)
    TA = AV1
    A(f'v_add_u32 {v(TA)}, {s(S_VXO)}, {v(V_L16)}')
    A(f'v_add_u32 {v(TA+1)}, {s(S_W1024)}, {v(V_L8)}')
    smf(SMm, F[3], 3)
    L.wait(('KX', 0, 3)); smf(S0, KXR[(0,3)], 3)
    L.wait(('KX', 1, 3)); smf(S1, KXR[(1,3)], 3)
    VX0, VX1, ONES, PX, PM, T = M(0), M(1), M(2), M(3), M(4), M(5)
    KMT = AK0
    L.op(f'ds_read_b128 {v(VX0,4)}, {v(TA)} offset:{L_VX}', 'VX0')
    L.op(f'ds_read_b128 {v(VX1,4)}, {v(TA)} offset:{L_VX + 1024}', 'VX1')
    L.op(f'ds_read_b64_tr_b16 {v(KMT,2)}, {v(TA+1)} offset:{L_QK}', 'KM0')
    L.op(f'ds_read_b64_tr_b16 {v(KMT+2,2)}, {v(TA+1)} offset:{L_QK + 512}', 'KM')
    for i in range(4): A(f'v_mov_b32 {v(ONES+i)}, 0x3f803f80')
    A(f'v_mov_b32 {v(PM+1)}, 0'); A(f'v_mov_b32 {v(PM+2)}, 0')
    stamp(A, cfg, 4)
    A(f'v_max3_f32 {v(T)}, {v(SMm)}, {v(SMm+1)}, {v(S0)}')
    A(f'v_max3_f32 {v(T+1)}, {v(S0+1)}, {v(S0+2)}, {v(S0+3)}')
    A(f'v_max3_f32 {v(T)}, {v(T)}, {v(S1)}, {v(S1+1)}')
    A(f'v_max3_f32 {v(T+1)}, {v(T+1)}, {v(S1+2)}, {v(S1+3)}')
    A(f'v_max_f32 {v(T)}, {v(T)}, {v(T+1)}')
    A(f'v_mov_b32 {v(T+1)}, {v(T)}')
    L.wait('KM')
    A(f'buffer_store_dwordx4 {v(KMT,4)}, {v(V_L16)}, {s(S_WS,4)}, {s(S_KVM)} offen sc1')
    A(f'v_permlane16_swap_b32 {v(T)}, {v(T+1)}')
    A(f'v_max_f32 {v(T)}, {v(T)}, {v(T+1)}')
    A(f'v_mov_b32 {v(T+1)}, {v(T)}')
    A(f's_add_u32 {s(S_KVM)}, {s(S_KVM)}, {32*8192}')
    A(f's_add_u32 {s(S_KVM2)}, {s(S_KVM2)}, {32*8192}')
    A(f'v_permlane32_swap_b32 {v(T)}, {v(T+1)}')
    A(f'v_max_f32 {v(T)}, {v(T)}, {v(T+1)}')
    A(f'v_mul_f32 {v(T)}, {s(S_NSC)}, {v(T)}')
    def pkfma(r): A(f'v_pk_fma_f32 {v(r,2)}, {v(r,2)}, {s(S_SC,2)}, {v(T,2)} op_sel_hi:[1,1,0]')
    pkfma(SMm); pkfma(S0); pkfma(S0+2); pkfma(S1); pkfma(S1+2)
    A(f'v_exp_f32 {v(SMm)}, {v(SMm)}'); A(f'v_exp_f32 {v(SMm+1)}, {v(SMm+1)}')
    A(f'v_exp_f32 {v(S0)}, {v(S0)}')
    A(f'v_cvt_pk_bf16_f32 {v(PM)}, {v(SMm)}, {v(SMm+1)}')
    A(f'v_exp_f32 {v(S0+1)}, {v(S0+1)}')
    A(f'v_mov_b32 {v(PM+3)}, {v(PM)}')
    A(f'v_exp_f32 {v(S0+2)}, {v(S0+2)}')
    O0, O1, SUM = AQ1, AK0, AK1
    A(f'{MF16} {v(SUM,4)}, {v(ONES,2)}, {v(PM,2)}, 0')
    A(f'v_exp_f32 {v(S0+3)}, {v(S0+3)}')
    A(f'{MF16} {v(O0,4)}, {v(VM,2)}, {v(PM,2)}, 0')
    A(f'v_exp_f32 {v(S1)}, {v(S1)}')
    A(f'v_cvt_pk_bf16_f32 {v(PX)}, {v(S0)}, {v(S0+1)}')
    A(f'{MF16} {v(O1,4)}, {v(VM,2)}, {v(PM+2,2)}, 0')
    A(f'v_exp_f32 {v(S1+1)}, {v(S1+1)}')
    A(f'v_cvt_pk_bf16_f32 {v(PX+1)}, {v(S0+2)}, {v(S0+3)}')
    A(f'v_exp_f32 {v(S1+2)}, {v(S1+2)}')
    A(f'v_exp_f32 {v(S1+3)}, {v(S1+3)}')
    A(f'v_cvt_pk_bf16_f32 {v(PX+2)}, {v(S1)}, {v(S1+1)}')
    A(f'v_cvt_pk_bf16_f32 {v(PX+3)}, {v(S1+2)}, {v(S1+3)}')
    L.wait('VX1')
    A(f'{MF} {v(SUM,4)}, {v(ONES,4)}, {v(PX,4)}, {v(SUM,4)}')
    A(f'{MF} {v(O0,4)}, {v(VX0,4)}, {v(PX,4)}, {v(O0,4)}')
    A(f'{MF} {v(O1,4)}, {v(VX1,4)}, {v(PX,4)}, {v(O1,4)}')
    WB0, WB1 = 46, 47
    A(f'v_add_u32 {v(WB0)}, {s(S_WBO)}, {v(V_L16)}')
    A(f'v_add_u32 {v(WB1)}, 0x10000, {v(WB0)}')
    A(f'v_rcp_f32 {v(SUM)}, {v(SUM)}')
    OFD = AV0
    A(f'v_pk_mul_f32 {v(O0,2)}, {v(O0,2)}, {v(SUM,2)} op_sel_hi:[1,0]')
    A(f'v_pk_mul_f32 {v(O0+2,2)}, {v(O0+2,2)}, {v(SUM,2)} op_sel_hi:[1,0]')
    A(f'v_pk_mul_f32 {v(O1,2)}, {v(O1,2)}, {v(SUM,2)} op_sel_hi:[1,0]')
    A(f'v_pk_mul_f32 {v(O1+2,2)}, {v(O1+2,2)}, {v(SUM,2)} op_sel_hi:[1,0]')
    A(f'v_cvt_pk_bf16_f32 {v(OFD)}, {v(O0)}, {v(O0+1)}')
    A(f'v_cvt_pk_bf16_f32 {v(OFD+1)}, {v(O1)}, {v(O1+1)}')
    A(f'v_cvt_pk_bf16_f32 {v(OFD+2)}, {v(O0+2)}, {v(O0+3)}')
    A(f'v_cvt_pk_bf16_f32 {v(OFD+3)}, {v(O1+2)}, {v(O1+3)}')
    A(f's_mov_b64 exec, {s(S_EXO,2)}')
    L.op(f'ds_write_b64 {v(V_OW)}, {v(OFD,2)}', 'ow0')
    L.op(f'ds_write_b64 {v(V_OW)}, {v(OFD+2,2)} offset:32', 'ow')
    A(f's_mov_b64 exec, -1')
    stamp(A, cfg, 5)
    NS = 4
    SL = lambda i: 8 + 8*i
    OF0, OF1 = 40, 56
    ACC = [48, 52]
    RT = [60, 62]
    def woread(f):
        t = f//2 + 1; ks = f % 2
        wb = WB0 if ks == 0 else WB1
        L.op(f'ds_read_b128 {v(SL(f % NS),4)}, {v(wb)} offset:{(t-1)*1024}', ('W', f, 0))
        L.op(f'ds_read_b128 {v(SL(f % NS)+4,4)}, {v(wb)} offset:{32768 + (t-1)*1024}', ('W', f))
    for f in range(NS): woread(f)
    zero4(A, ACC[0]); zero4(A, ACC[1])
    L.wait('ow')
    A('s_barrier')
    stamp(A, cfg, 6)
    L.op(f'ds_read_b128 {v(OF0,4)}, {v(V_L16)} offset:{L_O}', 'OF0')
    L.op(f'ds_read_b128 {v(OF1,4)}, {v(V_L16)} offset:{L_O + 1024}', 'OF1')
    skipk = A.newlabel('skipk')
    A(f's_cmp_eq_u32 {s(S_STEP)}, 63')
    A(f's_cbranch_scc1 {skipk}')
    if not cfg.get('NOB1'):
        lab_ok = A.newlabel('b1ok'); lab_re = A.newlabel('b1re')
        A('s_waitcnt vmcnt(2)')
        A(f's_add_u32 {s(S_TMP)}, {s(S_STEP)}, 2')
        A(f's_mov_b64 exec, 1')
        A(f'v_cmp_gt_u32 vcc, {s(S_TMP)}, {v(V_FLAG)}')
        A(f's_cbranch_vccz {lab_ok}')
        A(f's_mov_b32 {s(S_SPIN)}, {SPIN_LIMIT}')
        A.label(lab_re)
        A(f'buffer_load_dword {v(V_FLAG)}, {v(V_L16)}, {s(S_WS,4)}, {s(S_FLAGIN)} offen sc1')
        A('s_waitcnt vmcnt(0)')
        A(f'v_cmp_gt_u32 vcc, {s(S_TMP)}, {v(V_FLAG)}')
        A(f's_cbranch_vccz {lab_ok}')
        spin_check(A, lab_re, fail)
        A.label(lab_ok)
        A(f's_mov_b64 exec, -1')
    if not cfg.get('NOKX'): kxvx_dma(A)
    A.label(skipk)
    def tile_out(t):
        acc = ACC[t % 2]; r = RT[t % 2]
        if cfg.get('X_NOPK'):
            A(f'v_add_f32 {v(r)}, {v(acc)}, {v(acc+2)}'); A(f'v_add_f32 {v(r+1)}, {v(acc+1)}, {v(acc+3)}')
        else: A(f'v_pk_add_f32 {v(r,2)}, {v(acc,2)}, {v(acc+2,2)}')
        if t + 2 < 9 and not cfg.get('X_NOZERO'): zero4(A, acc)
        if tag: A(f'v_or_b32 {v(r)}, 1, {v(r)}')
        else:   A(f'v_and_b32 {v(r)}, -2, {v(r)}')
        if cfg.get('X_NOST') and t < 8: pass
        elif t < 8: A(st(f'buffer_store_dwordx2 {v(r,2)}, {v(V_L8)}, {s(S_WS,4)}, {s(S_PST)} offen offset:{t*512}'))
        else: A(st(f'buffer_store_dwordx2 {v(r,2)}, {v(V_L8)}, {s(S_WS,4)}, {s(S_PST2)} offen'))
    L.wait('OF0')
    A(f'{SM} {v(ACC[0],4)}, {v(OF0,4)}, {WOR(0)}, {v(V_IDX)}')
    L.wait('OF1')
    A(f'{SM} {v(ACC[0],4)}, {v(OF1,4)}, {WOR(1)}, {v(V_IDX)}')
    for f in range(16):
        t = f//2 + 1; ks = f % 2
        if not cfg.get('X_NOLDS') or f < NS: L.wait(('W', f))
        A(f'{SM} {v(ACC[t % 2],4)}, {v([OF0,OF1][ks],4)}, {v(SL(f % NS),8)}, {v(V_IDX)}')
        if f + NS < 16 and not cfg.get('X_NOLDS'): woread(f + NS)
        if ks == 1: tile_out(t - 1)
    tile_out(8)
    stamp(A, cfg, 7)
    if cfg.get('PREWAIT1'): A('s_waitcnt vmcnt(0)')
    stamp(A, cfg, 11)
    PA = [8 + 4*i for i in range(4)]; PB = [24 + 4*i for i in range(4)]
    T = 40
    new = par ^ 1; old = par
    def check(regs):
        els = [r + c for r in regs for c in (0, 2)]
        if tag:
            cur = els[:3]; rest = els[3:]
            A(f'v_bitop3_b32 {v(T)}, {v(cur[0])}, {v(cur[1])}, {v(cur[2])} bitop3:0x80')
            while len(rest) >= 2:
                A(f'v_bitop3_b32 {v(T)}, {v(T)}, {v(rest[0])}, {v(rest[1])} bitop3:0x80'); rest = rest[2:]
            if rest: A(f'v_and_b32 {v(T)}, {v(T)}, {v(rest[0])}')
        else:
            cur = els[:3]; rest = els[3:]
            A(f'v_or3_b32 {v(T)}, {v(cur[0])}, {v(cur[1])}, {v(cur[2])}')
            while len(rest) >= 2:
                A(f'v_or3_b32 {v(T)}, {v(T)}, {v(rest[0])}, {v(rest[1])}'); rest = rest[2:]
            if rest: A(f'v_or_b32 {v(T)}, {v(T)}, {v(rest[0])}')
        A(f'v_and_b32 {v(T)}, 1, {v(T)}')
        A(f'v_cmp_ne_u32 vcc, {tag}, {v(T)}')
    def reduce_line(P, msoff):
        for (d, o_) in ((0,1),(2,3),(0,2)):
            A(f'v_pk_add_f32 {v(P[d],2)}, {v(P[d],2)}, {v(P[o_],2)}')
            A(f'v_pk_add_f32 {v(P[d]+2,2)}, {v(P[d]+2,2)}, {v(P[o_]+2,2)}')
        X = P[0]
        A(f'v_permlane32_swap_b32 {v(X)}, {v(X+1)}')
        A(f'v_permlane32_swap_b32 {v(X+2)}, {v(X+3)}')
        A(f'v_add_f32 {v(X)}, {v(X)}, {v(X+1)}')
        A(f'v_add_f32 {v(X+2)}, {v(X+2)}, {v(X+3)}')
        A(f'v_permlane16_swap_b32 {v(X)}, {v(X+2)}')
        A(f'v_add_f32 {v(X)}, {v(X)}, {v(X+2)}')
        A(f'v_add_f32_dpp {v(X)}, {v(X)}, {v(X)} row_ror:8 row_mask:0xf bank_mask:0xf')
        A(f'v_mov_b32 {v(X+1)}, {v(X)}')
        A(f'v_permlane16_swap_b32 {v(X)}, {v(X+1)}')
        A(f'v_cvt_pk_bf16_f32 {v(X)}, {v(X)}, {v(X+1)}')
        A(f'v_mov_b32 {v(X+1)}, -1')
        A(f's_mov_b64 exec, {s(S_EXS,2)}')
        A(st(f'buffer_store_dword {v(X)}, {v(V_MST)}, {s(S_WS,4)}, {s(msoff+new)} offen'))
        A(st(f'buffer_store_dword {v(X+1)}, {v(V_MST)}, {s(S_WS,4)}, {s(msoff+old)} offen'))
        A(f's_mov_b64 exec, -1')
    def publish_flag():
        A(f's_add_u32 {s(S_TMP)}, {s(S_STEP)}, 1')
        A(f'v_mov_b32 {v(T+1)}, {s(S_TMP)}')
        A(f's_mov_b64 exec, 1')
        A(f'buffer_store_dword {v(T+1)}, {v(V_L16)}, {s(S_WS,4)}, {s(S_FLAGOUT)} offen sc1')
        A(f's_mov_b64 exec, -1')
    two = A.newlabel('h1two'); join = A.newlabel('h1join')
    A(f's_mov_b32 {s(S_SPIN)}, {SPIN_LIMIT}')
    A(f's_cmp_lg_u32 {s(S_HAS2)}, 0')
    A(f's_cbranch_scc1 {two}')
    for nl in (1, 2):
        if nl == 2: A.label(two); A.flush()
        lp = A.newlabel('hop1'); ok = A.newlabel('h1ok'); lw = A.newlabel('h1w')
        def h1loads():
            for i in range(4):
                A(f'buffer_load_dwordx4 {v(PA[i],4)}, {v(V_PLD)}, {s(S_WS,4)}, {s(S_PL+i)} offen sc1')
            if nl == 2:
                for i in range(4):
                    A(f'buffer_load_dwordx4 {v(PB[i],4)}, {v(V_PLD)}, {s(S_WS,4)}, {s(S_PL+4+i)} offen sc1')
        h1loads()
        for r in (AQ0, AQ1, AK0, AK1, AV0): zero4(A, r)
        A(f's_branch {lw}')
        A.label(lp)
        if not cfg.get('NOMASK'): A(f's_mov_b64 exec, vcc')
        spin_dec(A, fail)
        h1loads()
        A.label(lw)
        A('s_waitcnt vmcnt(0)')
        check(PA + (PB if nl == 2 else []))
        if not cfg.get('X_NOCHK'): A(f's_cbranch_vccnz {lp}')
        A(f's_mov_b64 exec, -1')
        if cfg.get('STAMPS'): A(f's_sub_u32 {s(S_ST+14)}, {SPIN_LIMIT}, {s(S_SPIN)}')
        stamp(A, cfg, 8)
        reduce_line(PA, S_MSA)
        if nl == 2: reduce_line(PB, S_MSB)
        if cfg.get('FLAGEARLY'): publish_flag()
        if nl == 1: A(f's_branch {join}')
    A.label(join); A.flush()
    stamp(A, cfg, 9)
    if cfg.get('PREWAIT2'): A('s_waitcnt vmcnt(0)')
    stamp(A, cfg, 12)
    R0, R1, R2 = 8, 12, 16
    TA0, TA1 = 20, 21
    A(f'v_add_u32 {v(TA0)}, {s(S_W1024)}, {v(V_L16)}')
    A(f'v_add_u32 {v(TA1)}, {s(S_W256)}, {v(V_L16)}')
    A(f'v_mov_b64 {v(R2,2)}, 0'); A(f'v_mov_b64 {v(R2+2,2)}, 0')
    lp2 = A.newlabel('hop2'); lw2 = A.newlabel('h2w')
    A(f's_mov_b32 {s(S_SPIN)}, {SPIN_LIMIT}')
    def h2loads(first):
        A(f'buffer_load_dwordx4 {v(R0,4)}, {v(V_L16)}, {s(S_WS,4)}, {s(S_ML+3*new)} offen sc1')
        A(f'buffer_load_dwordx4 {v(R1,4)}, {v(V_L16)}, {s(S_WS,4)}, {s(S_ML+3*new+1)} offen sc1')
        if first: A(f's_mov_b64 exec, 0xffff')
        else: A(f's_and_b64 exec, exec, 0xffff')
        A(f'buffer_load_dwordx4 {v(R2,4)}, {v(V_L16)}, {s(S_WS,4)}, {s(S_ML+3*new+2)} offen sc1')
        if first or cfg.get('NOMASK'): A(f's_mov_b64 exec, -1')
        else: A(f's_mov_b64 exec, {s(S_MSK,2)}')
    h2loads(True)
    A(f's_branch {lw2}')
    A.label(lp2)
    if not cfg.get('NOMASK'):
        A(f's_mov_b64 exec, vcc')
        A(f's_mov_b64 {s(S_MSK,2)}, vcc')
    spin_dec(A, fail)
    h2loads(False)
    A.label(lw2)
    A('s_waitcnt vmcnt(0)')
    T = 22
    A(f'v_max3_u32 {v(T)}, {v(R0)}, {v(R0+1)}, {v(R0+2)}')
    A(f'v_max3_u32 {v(T+1)}, {v(R0+3)}, {v(R1)}, {v(R1+1)}')
    A(f'v_max3_u32 {v(T)}, {v(T)}, {v(R1+2)}, {v(R1+3)}')
    A(f'v_max3_u32 {v(T+1)}, {v(T+1)}, {v(R2)}, {v(R2+1)}')
    A(f'v_max3_u32 {v(T)}, {v(T)}, {v(R2+2)}, {v(R2+3)}')
    A(f'v_max_u32 {v(T)}, {v(T)}, {v(T+1)}')
    A(f'v_cmp_eq_u32 vcc, -1, {v(T)}')
    A(f's_cbranch_vccnz {lp2}')
    A(f's_mov_b64 exec, -1')
    if cfg.get('STAMPS'):
        A(f's_sub_u32 {s(S_ST+15)}, {SPIN_LIMIT}, {s(S_SPIN)}')
        stamp(A, cfg, 13)
    if not cfg.get('FLAGEARLY'):
        T = 40; publish_flag()
    A(f'ds_write_b128 {v(TA0)}, {v(R0,4)} offset:{L_MEM}')
    A(f'ds_write_b128 {v(TA0)}, {v(R1,4)} offset:{L_MEM + 4096}')
    A(f's_mov_b64 exec, 0xffff')
    A(f'ds_write_b128 {v(TA1)}, {v(R2,4)} offset:{L_MEM + 8192}')
    A(f's_mov_b64 exec, -1')
    A(f's_add_u32 {s(S_STEP)}, {s(S_STEP)}, 1')
    tstamp(A, cfg, s(S_STEP), 24, V_L16)
    A('s_waitcnt lgkmcnt(0)')
    A('s_barrier')
    stamp(A, cfg, 10)

def chain_role(A, cfg, fail, done):
    A.smart = True
    ZB32[0] = bool(cfg.get('X_ZB32'))
    chain_init(A, cfg)
    cfg['barrier_wait_chain'](A)
    if not cfg.get('NOB1'):
        lab_re = A.newlabel('b1first'); lab_ok = A.newlabel('b1fok')
        A(f's_mov_b32 {s(S_SPIN)}, {SPIN_LIMIT}')
        A(f's_mov_b64 exec, 1')
        A.label(lab_re)
        A(f'buffer_load_dword {v(V_FLAG)}, {v(V_L16)}, {s(S_WS,4)}, {s(S_FLAGIN)} offen sc1')
        A('s_waitcnt vmcnt(0)')
        A(f'v_cmp_gt_u32 vcc, 1, {v(V_FLAG)}')
        A(f's_cbranch_vccz {lab_ok}')
        spin_check(A, lab_re, fail)
        A.label(lab_ok)
        A(f's_mov_b64 exec, -1')
    kxvx_dma(A)
    for r in (AQ0, AQ1, AK0, AK1, AV0): zero4(A, r)
    A(f's_mov_b32 {s(S_STEP)}, 0')
    tstamp(A, cfg, 0, 24, V_L16)
    A('s_waitcnt vmcnt(0)')
    A('s_barrier')
    if cfg.get('STAMPS') or cfg.get('TOTAL'):
        A(f's_memtime {s(S_T0,2)}')
        A('s_waitcnt lgkmcnt(0)')
    loop = A.newlabel('chainloop')
    A.label(loop)
    chain_step(A, 0, cfg, fail)
    chain_step(A, 1, cfg, fail)
    A(f's_cmp_lt_u32 {s(S_STEP)}, 64')
    A(f's_cbranch_scc1 {loop}')
    if cfg.get('STAMPS') or cfg.get('TOTAL'):
        A(f's_memtime {s(S_T1,2)}')
        A('s_waitcnt lgkmcnt(0)')
        A(f's_sub_u32 {s(S_T1)}, {s(S_T1)}, {s(S_T0)}')
        sk = A.newlabel('nostamp')
        A(f's_lshl_b32 {s(S_TMP)}, {s(S_ROLE)}, 2')
        A(f's_or_b32 {s(S_TMP)}, {s(S_TMP)}, {s(S_WAVE)}')
        A(f's_cmp_lg_u32 {s(S_TMP)}, {cfg.get("WHO", 0)}')
        A(f's_cbranch_scc1 {sk}')
        A(f'v_mov_b32 v14, {s(S_T1)}')
        A(f'v_mov_b32 v15, 0')
        A(f'global_store_dword v15, v14, {s(S_DBG,2)} offset:64')
        for i in range(16 if cfg.get('STAMPS') else 0):
            if i < 14: A(f's_sub_u32 {s(S_TMP)}, {s(S_ST+i)}, {s(S_ST)}')
            else: A(f's_mov_b32 {s(S_TMP)}, {s(S_ST+i)}')
            A(f'v_mov_b32 v14, {s(S_TMP)}')
            A(f'global_store_dword v15, v14, {s(S_DBG,2)} offset:{68+4*i}')
        A.label(sk)
    A.smart = False
    A(f's_branch {done}')
```

```python
from asm import *
from common import *
from chain import (dstamp, S_KA, S_WG, S_WS, S_SRD, S_DBG, S_ROLE, S_WAVE, S_XCC, S_TMP, S_SPIN, S_PTR, S_MODE, MF, MF16,
                   srd_from_ptr, load_ptr_srd, spin_check, tstamp, fst, f32, S_SOFF, S_M0, S_TS)

SM = 'v_smfmac_f32_16x16x64_bf16'
L_MEM = 0
L_QK = 9216
L_O = 13312
L_KX = 15360
L_VX = L_KX + 8192
L_WO = 31744
L_STG = 16384

V_L16, V_L8, V_IDX, V_PLD, V_MST, V_QKW, V_OW, V_FLAG = range(8)
M = lambda k: 8 + 4*k
AQ0, AQ1, AK0, AK1, AV0 = 44, 48, 52, 56, 60
AV1 = AQ0
def WQ(t, ks): f = t*9 + ks; return a(8*f, 8)
def WK(t, ks):
    f = 18 + t*9 + ks
    return a(8*f, 8) if f < 32 else v(64 + 8*(f-32), 8)
def WV(t, ks): return v(96 + 72*t + 8*ks, 8)
def WOR(ks): return v(240 + 8*ks, 8)
def wsub(m, t, ks, i4):
    if m == 0: return a(8*(t*9+ks) + 2*i4, 2)
    if m == 1:
        f = 18 + t*9 + ks
        return a(8*f + 2*i4, 2) if f < 32 else v(64 + 8*(f-32) + 2*i4, 2)
    return v(96 + 72*t + 8*ks + 2*i4, 2)

S_H = 26; S_L = 27; S_STEP = 28
S_PL = 30
S_PST = 38; S_PST2 = 39
S_MSA = 40
S_MSB = 42
S_ML = 44
S_FLAGIN = 50; S_FLAGOUT = 51
S_KX = 52; S_KVM = 53
S_EXO = 54
S_EXS = 56
S_SC = 58
S_NSC = 60
S_HAS2 = 61
S_W1024 = 64; S_W256 = 65; S_VXO = 66; S_WBO = 67; S_KXM0 = 68; S_KVM2 = 69
S_T0 = 70
S_T1 = 72
S_MSK = 74
S_M1 = 76
S_ONE = 78
S_ST = 80

class LQ:
    def __init__(self, A): self.A = A; self.q = []
    def op(self, text, tag=None):
        self.A(text); self.q.append(tag if tag is not None else object())
    def wait(self, *tags):
        idx = [i for i, t in enumerate(self.q) if t in tags]
        if not idx: return
        i = max(idx)
        n = len(self.q) - 1 - i
        self.A(f's_waitcnt lgkmcnt({min(n, 15)})')
        keep = min(n, 15)
        self.q = self.q[len(self.q)-keep:] if keep else []
    def waitall(self):
        self.A('s_waitcnt lgkmcnt(0)'); self.q = []

def stamp(A, cfg, idx):
    if not cfg.get('STAMPS'): return
    A(f's_memtime {s(S_T1,2)}')
    A('s_waitcnt lgkmcnt(0)')
    A(f's_mov_b32 {s(S_ST+idx)}, {s(S_T1)}')

def chain_init(A, cfg):
    w = s(S_WAVE)
    TID, LN, COL, G = 63, 62, 61, 60
    A(f'v_mov_b32 {v(TID)}, v0')
    A(f'v_and_b32 {v(LN)}, 63, v0')
    A(f'v_and_b32 {v(COL)}, 15, {v(LN)}')
    A(f'v_lshrrev_b32 {v(G)}, 4, {v(LN)}')
    A(f'v_lshlrev_b32 v10, 1, {v(G)}')
    A(f'v_xor_b32 v10, v10, {v(COL)}')
    A(f'v_xor_b32 v11, 8, v10')
    A(f'v_lshlrev_b32 v10, 4, v10')
    A(f'v_lshlrev_b32 v11, 4, v11')
    A(f'v_lshlrev_b32 v12, 13, {v(G)}')
    A(f'v_add_u32 v8, v10, v12')
    A(f'v_add_u32 v9, v11, v12')
    A(f'v_lshlrev_b32 v12, 17, {v(G)}')
    A(f'v_add_u32 v26, v10, v12')
    A(f'v_add_u32 v27, v11, v12')
    A(f'v_lshrrev_b32 v10, 2, {v(COL)}')
    A(f'v_and_b32 v11, 3, {v(COL)}')
    A(f'v_and_b32 v12, 1, {v(G)}')
    A(f'v_lshlrev_b32 v12, 2, v12')
    A(f'v_or_b32 v12, v12, v10')
    A(f'v_lshlrev_b32 v12, 1, v12')
    A(f'v_lshrrev_b32 v13, 1, v11')
    A(f's_lshl_b32 {s(S_TMP)}, {w}, 2')
    A(f'v_add_u32 v13, {s(S_TMP)}, v13')
    A(f'v_and_b32 v11, 1, v11')
    A(f'v_lshlrev_b32 v11, 3, v11')
    A(f'v_lshlrev_b32 v14, 4, {v(G)}')
    A(f'v_add_u32 v14, v14, v10')
    A(f'v_lshlrev_b32 v14, 8, v14')
    A(f'v_add_u32 v14, v14, v11')
    A(f'v_xor_b32 v15, v13, v12')
    A(f'v_add_u32 v13, 2, v13')
    A(f'v_xor_b32 v16, v13, v12')
    A(f'v_lshlrev_b32 v15, 4, v15')
    A(f'v_lshlrev_b32 v16, 4, v16')
    A(f'v_add_u32 v15, v15, v14')
    A(f'v_add_u32 v16, v16, v14')
    BUF = [L_STG + 49152*b for b in range(3)]
    TR = lambda b, t: 20 + 2*b + t
    for b in range(3):
        A(f'v_add_u32 {v(TR(b,0))}, {BUF[b]}, v15')
        A(f'v_add_u32 {v(TR(b,1))}, {BUF[b]}, v16')
    KA = [KA_WQ, KA_WK, KA_WV]
    WSZ = 576*4096*2
    def issue_part(p):
        m, part = p // 3, p % 3
        load_ptr_srd(A, S_SRD, KA[m], WSZ)
        A(f's_lshl_b32 {s(S_T0)}, {s(S_H)}, 8')
        A(f's_lshl_b32 {s(S_M0)}, {w}, 10')
        A(f's_add_u32 {s(S_M0)}, {s(S_M0)}, {BUF[p % 3]}')
        for j in range(12):
            b = part*3 + (j >> 2)
            if b < 8:
                row = 144*(b >> 1) + 16 + 64*(b & 1) + 4*(j & 3)
                A(f's_lshl_b32 {s(S_SOFF)}, {w}, 13')
                vreg = 26 + (j & 1)
            else:
                row = 144*(j & 3)
                A(f's_lshl_b32 {s(S_SOFF)}, {w}, 15')
                vreg = 8 + (j & 1)
            A(f's_add_u32 {s(S_SOFF)}, {s(S_SOFF)}, {s(S_T0)}')
            if row: A(f's_add_u32 {s(S_SOFF)}, {s(S_SOFF)}, {row*8192}')
            A(f's_mov_b32 m0, {s(S_M0)}')
            A(f'buffer_load_dwordx4 {v(vreg)}, {s(S_SRD,4)}, {s(S_SOFF)} offen lds')
            if j < 11: A(f's_add_u32 {s(S_M0)}, {s(S_M0)}, 4096')
    def consume_part(p):
        m, part = p // 3, p % 3
        n = 0
        for t in range(2):
            for k in range(3):
                for i4 in range(4):
                    A(f'ds_read_b64_tr_b16 {wsub(m, t, part*3+k, i4)}, {v(TR(p % 3, t))} offset:{k*16384 + i4*1024}')
                    n += 1
                    if n % 8 == 0 and n < 24: A('s_waitcnt lgkmcnt(8)')
        A('s_waitcnt lgkmcnt(0)')
    def issue_wo(k):
        load_ptr_srd(A, S_SRD, KA_WO, 32*128*576*2)
        A(f's_mul_i32 {s(S_SOFF)}, {s(S_H)}, 147456')
        A(f's_lshl_b32 {s(S_M0)}, {w}, 10')
        A(f's_add_u32 {s(S_SOFF)}, {s(S_SOFF)}, {s(S_M0)}')
        if k: A(f's_add_u32 {s(S_SOFF)}, {s(S_SOFF)}, {k*36864}')
        A(f's_add_u32 {s(S_M0)}, {s(S_M0)}, {L_STG + k*36864}')
        for j in range(9):
            A(f's_mov_b32 m0, {s(S_M0)}')
            A(f'buffer_load_dwordx4 {v(V_L16)}, {s(S_SRD,4)}, {s(S_SOFF)} offen lds')
            if j < 8:
                A(f's_add_u32 {s(S_SOFF)}, {s(S_SOFF)}, 4096')
                A(f's_add_u32 {s(S_M0)}, {s(S_M0)}, 4096')
    A(f'v_lshlrev_b32 {v(V_L16)}, 4, {v(LN)}')
    A(f'v_lshlrev_b32 {v(V_L8)}, 3, {v(LN)}')
    for p in range(3): issue_part(p)
    pend = [12, 12, 12]
    for p in range(9):
        A(f's_waitcnt vmcnt({sum(pend[1:])})')
        pend = pend[1:]
        A('s_barrier')
        consume_part(p)
        A('s_barrier')
        if p + 3 < 9: issue_part(p + 3); pend.append(12)
        elif p == 6: issue_wo(0); pend.append(9)
        elif p == 7: issue_wo(1); pend.append(9)
        elif p == 8: issue_wo(2); issue_wo(3)
    A(f'v_lshrrev_b32 v10, 2, {v(COL)}')
    A(f'v_and_b32 v11, 3, {v(COL)}')
    A(f'v_lshlrev_b32 v12, 2, {v(G)}')
    A(f'v_add_u32 v12, v12, v10')
    A(f'v_mul_u32_u24 v12, 1152, v12')
    A(f'v_lshlrev_b32 v11, 3, v11')
    A(f'v_add_u32 v12, v12, v11')
    A(f's_mul_i32 {s(S_TMP)}, {w}, 288')
    A(f's_add_u32 {s(S_TMP)}, {s(S_TMP)}, {L_STG + 3*36864}')
    A(f'v_add_u32 v12, {s(S_TMP)}, v12')
    A(f's_lshl_b32 {s(S_WBO)}, {w}, 13')
    A(f's_add_u32 {s(S_WBO)}, {s(S_WBO)}, {L_WO}')
    A(f's_add_u32 {s(S_TMP)}, {s(S_WBO)}, {3*32768}')
    A(f'v_add_u32 v13, {s(S_TMP)}, {v(V_L16)}')
    A('s_waitcnt vmcnt(0)')
    A('s_barrier')
    for k in (3, 2, 1, 0):
        for t in range(9):
            d = 240 + 4*k if t == 0 else 20 + 4*t
            A(f'ds_read_b64_tr_b16 {v(d,2)}, v12 offset:{t*32}')
            A(f'ds_read_b64_tr_b16 {v(d+2,2)}, v12 offset:{t*32 + 16*1152}')
        A('s_waitcnt lgkmcnt(0)')
        A('s_barrier')
        for t in range(1, 9):
            A(f'ds_write_b128 v13, {v(20+4*t,4)} offset:{(t-1)*1024}')
        if k:
            A(f'v_subrev_u32 v12, 36864, v12')
            A(f'v_subrev_u32 v13, 32768, v13')
        A('s_waitcnt lgkmcnt(0)')
    A(f'v_and_b32 v10, 2, {v(LN)}')
    A(f'v_cmp_eq_u32 vcc, 0, v10')
    A(f'v_mov_b32 v11, 0xeeeeeeee')
    A(f'v_mov_b32 v12, 0x44444444')
    A(f'v_cndmask_b32 {v(V_IDX)}, v11, v12, vcc')
    A(f's_lshl_b32 {s(S_W1024)}, {w}, 10')
    A(f's_lshl_b32 {s(S_W256)}, {w}, 8')
    A(f'v_lshlrev_b32 v10, 5, {v(COL)}')
    A(f'v_lshlrev_b32 v11, 3, {v(G)}')
    A(f'v_add_u32 v10, v10, v11')
    A(f's_add_u32 {s(S_TMP)}, {s(S_W1024)}, {L_QK}')
    A(f'v_add_u32 {v(V_QKW)}, {s(S_TMP)}, v10')
    A(f'v_lshrrev_b32 v10, 1, {v(G)}'); A(f'v_lshlrev_b32 v10, 8, v10')
    A(f'v_and_b32 v11, 1, {v(G)}'); A(f'v_lshlrev_b32 v11, 3, v11')
    A(f'v_add_u32 v10, v10, v11')
    A(f'v_lshlrev_b32 v11, 4, {v(COL)}')
    A(f'v_add_u32 v10, v10, v11')
    A(f's_lshl_b32 {s(S_TMP)}, {w}, 9')
    A(f's_add_u32 {s(S_TMP)}, {s(S_TMP)}, {L_O - 32}')
    A(f'v_add_u32 {v(V_OW)}, {s(S_TMP)}, v10')
    A(f'v_lshrrev_b32 v10, 3, {v(LN)}'); A(f'v_mul_u32_u24 v10, 9216, v10')
    A(f'v_and_b32 v11, 7, {v(LN)}'); A(f'v_lshlrev_b32 v12, 4, v11')
    A(f'v_add_u32 {v(V_PLD)}, v10, v12')
    A(f'v_bfe_u32 v12, v11, 1, 1'); A(f'v_lshlrev_b32 v10, 9, v12')
    A(f'v_bfe_u32 v12, {v(LN)}, 3, 1'); A(f'v_lshlrev_b32 v12, 5, v12'); A(f'v_add_u32 v10, v10, v12')
    A(f'v_bfe_u32 v12, {v(LN)}, 4, 1'); A(f'v_lshlrev_b32 v12, 4, v12'); A(f'v_add_u32 v10, v10, v12')
    A(f'v_and_b32 v12, 1, v11'); A(f'v_lshlrev_b32 v12, 2, v12'); A(f'v_add_u32 v10, v10, v12')
    A(f'v_lshrrev_b32 v12, 5, {v(LN)}'); A(f'v_lshlrev_b32 v12, 14, v12'); A(f'v_add_u32 v10, v10, v12')
    A(f'v_lshrrev_b32 v12, 2, v11')
    A(f's_cmp_eq_u32 {w}, 1')
    A(f's_cselect_b32 {s(S_TMP)}, 6, 3')
    A(f'v_lshlrev_b32 v12, {s(S_TMP)}, v12')
    A(f'v_add_u32 v10, v10, v12')
    A(f's_lshr_b32 {s(S_TMP)}, {s(S_H)}, 3'); A(f's_lshl_b32 {s(S_TMP)}, {s(S_TMP)}, 1')
    A(f's_and_b32 {s(S_TMP+1)}, {w}, 1'); A(f's_add_u32 {s(S_TMP)}, {s(S_TMP)}, {s(S_TMP+1)}')
    A(f's_lshl_b32 {s(S_TMP)}, {s(S_TMP)}, 10')
    A(f's_and_b32 {s(S_TMP+1)}, {s(S_H)}, 1'); A(f's_lshl_b32 {s(S_TMP+1)}, {s(S_TMP+1)}, 8'); A(f's_add_u32 {s(S_TMP)}, {s(S_TMP)}, {s(S_TMP+1)}')
    A(f's_bfe_u32 {s(S_TMP+1)}, {s(S_H)}, 0x20001'); A(f's_lshl_b32 {s(S_TMP+1)}, {s(S_TMP+1)}, 6'); A(f's_add_u32 {s(S_TMP)}, {s(S_TMP)}, {s(S_TMP+1)}')
    A(f's_bfe_u32 {s(S_TMP+1)}, {s(S_H)}, 0x10002'); A(f's_lshl_b32 {s(S_TMP+1)}, {s(S_TMP+1)}, 8')
    A(f's_and_b32 {s(S_TMP+2)}, {s(S_H)}, 1'); A(f's_lshl_b32 {s(S_TMP+2)}, {s(S_TMP+2)}, 7'); A(f's_add_u32 {s(S_TMP+1)}, {s(S_TMP+1)}, {s(S_TMP+2)}')
    A(f's_bfe_u32 {s(S_TMP+2)}, {s(S_H)}, 0x10001'); A(f's_lshl_b32 {s(S_TMP+2)}, {s(S_TMP+2)}, 3'); A(f's_add_u32 {s(S_TMP+1)}, {s(S_TMP+1)}, {s(S_TMP+2)}')
    A(f's_add_u32 {s(S_TMP+1)}, {s(S_TMP+1)}, 8192')
    A(f's_cmp_eq_u32 {w}, 1')
    A(f's_cselect_b32 {s(S_TMP)}, {s(S_TMP+1)}, {s(S_TMP)}')
    A(f'v_add_u32 {v(V_MST)}, {s(S_TMP)}, v10')
    A(f's_mul_i32 {s(S_TMP)}, {s(S_L)}, {PART_STRIDE}')
    A(f's_add_u32 {s(S_TMP)}, {s(S_TMP)}, {WS_PART}')
    A(f's_lshr_b32 {s(S_TMP+1)}, {s(S_H)}, 3'); A(f's_mul_i32 {s(S_TMP+1)}, {s(S_TMP+1)}, 2304')
    A(f's_and_b32 {s(S_TMP+2)}, {w}, 1'); A(f's_lshl_b32 {s(S_TMP+2)}, {s(S_TMP+2)}, 10'); A(f's_add_u32 {s(S_TMP+1)}, {s(S_TMP+1)}, {s(S_TMP+2)}')
    A(f's_and_b32 {s(S_TMP+2)}, {s(S_H)}, 7'); A(f's_lshl_b32 {s(S_TMP+2)}, {s(S_TMP+2)}, 7'); A(f's_add_u32 {s(S_TMP+1)}, {s(S_TMP+1)}, {s(S_TMP+2)}')
    A(f's_add_u32 {s(S_TMP+1)}, {s(S_TMP+1)}, 256')
    A(f's_bfe_u32 {s(S_PL)}, {s(S_H)}, 0x20001'); A(f's_mul_i32 {s(S_PL)}, {s(S_PL)}, 2304')
    A(f's_and_b32 {s(S_TMP+2)}, {s(S_H)}, 1'); A(f's_lshl_b32 {s(S_TMP+2)}, {s(S_TMP+2)}, 7'); A(f's_add_u32 {s(S_PL)}, {s(S_PL)}, {s(S_TMP+2)}')
    A(f's_cmp_eq_u32 {w}, 1')
    A(f's_cselect_b32 {s(S_TMP+1)}, {s(S_PL)}, {s(S_TMP+1)}')
    A(f's_add_u32 {s(S_TMP+1)}, {s(S_TMP+1)}, {s(S_TMP)}')
    for i in range(4): A(f's_add_u32 {s(S_PL+i)}, {s(S_TMP+1)}, {i*8*9216}')
    A(f's_mul_i32 {s(S_TMP+1)}, {s(S_H)}, 9216')
    A(f's_add_u32 {s(S_PST)}, {s(S_TMP)}, {s(S_TMP+1)}')
    A(f's_mul_i32 {s(S_TMP+1)}, {w}, 2304')
    A(f's_add_u32 {s(S_PST)}, {s(S_PST)}, {s(S_TMP+1)}')
    A(f's_cmp_lt_u32 {s(S_H)}, 8')
    A(f's_cselect_b32 {s(S_HAS2)}, 1, 2')
    A(f's_cmp_ge_u32 {w}, {s(S_HAS2)}')
    A(f's_cselect_b32 {s(S_HAS2)}, 1, 0')
    A(f's_mul_i32 {s(S_TMP)}, {s(S_L)}, {MEMB_STRIDE}')
    A(f's_add_u32 {s(S_MSA)}, {s(S_TMP)}, {WS_MEMB}')
    for par in range(2):
        A(f's_add_u32 {s(S_ML+3*par)}, {s(S_MSA)}, {s(S_W1024)}')
        if par: A(f's_add_u32 {s(S_ML+3*par)}, {s(S_ML+3*par)}, 0x4000')
        A(f's_add_u32 {s(S_ML+3*par+1)}, {s(S_ML+3*par)}, 4096')
        A(f's_add_u32 {s(S_ML+3*par+2)}, {s(S_MSA)}, {s(S_W256)}')
        A(f's_add_u32 {s(S_ML+3*par+2)}, {s(S_ML+3*par+2)}, {8192 + 0x4000*par}')
    A(f'v_xor_b32 {v(V_MST)}, 0x4000, {v(V_MST)}')
    A(f's_mul_i32 {s(S_TMP)}, {s(S_L)}, {QKVX_STRIDE}')
    A(f's_mul_i32 {s(S_TMP+1)}, {s(S_H)}, 24576')
    A(f's_add_u32 {s(S_KX)}, {s(S_TMP)}, {s(S_TMP+1)}')
    A(f's_lshl_b32 {s(S_TMP+1)}, {w}, 12')
    A(f's_add_u32 {s(S_KX)}, {s(S_KX)}, {s(S_TMP+1)}')
    A(f's_add_u32 {s(S_KX)}, {s(S_KX)}, {WS_QKVX + 8192}')
    A(f's_add_u32 {s(S_KXM0)}, {s(S_TMP+1)}, {L_KX}')
    A(f's_lshl_b32 {s(S_VXO)}, {w}, 11')
    A(f's_mul_i32 {s(S_TMP)}, {s(S_L)}, {KVM_STRIDE}')
    A(f's_lshl_b32 {s(S_TMP+1)}, {s(S_H)}, 13')
    A(f's_add_u32 {s(S_TMP)}, {s(S_TMP)}, {s(S_TMP+1)}')
    A(f's_add_u32 {s(S_TMP)}, {s(S_TMP)}, {WS_KVM}')
    A(f's_add_u32 {s(S_KVM)}, {s(S_TMP)}, {s(S_W1024)}')
    A(f's_lshl_b32 {s(S_TMP+1)}, {w}, 9')
    A(f's_add_u32 {s(S_KVM2)}, {s(S_TMP)}, {s(S_TMP+1)}')
    A(f's_add_u32 {s(S_KVM2)}, {s(S_KVM2)}, 4096')
    A(f's_lshl_b32 {s(S_TMP)}, {s(S_ROLE)}, 7')
    A(f's_lshl_b32 {s(S_TMP+1)}, {w}, 2')
    A(f's_add_u32 {s(S_FLAGOUT)}, {s(S_TMP)}, {s(S_TMP+1)}')
    A(f's_mul_i32 {s(S_TMP)}, {s(S_L)}, {R_B1[1]-R_B1[0]}')
    A(f's_add_u32 {s(S_TMP)}, {s(S_TMP)}, {s(S_H)}')
    A(f's_add_u32 {s(S_TMP)}, {s(S_TMP)}, {R_B1[0]}')
    A(f's_lshl_b32 {s(S_TMP)}, {s(S_TMP)}, 7')
    A(f's_add_u32 {s(S_FLAGIN)}, {s(S_TMP)}, {s(S_TMP+1)}')
    for sr, val in ((S_EXO, 0xCCCCCCCCCCCCCCCC), (S_EXS, 0x000000FF000000FF)):
        A(f's_mov_b32 {s(sr)}, {hex(val & 0xffffffff)}')
        A(f's_mov_b32 {s(sr+1)}, {hex(val >> 32)}')
    A(f's_mov_b32 {s(S_M1)}, 0x11111111'); A(f's_mov_b32 {s(S_M1+1)}, 0x11111111')
    A(f's_mov_b32 {s(S_ONE)}, 0x3f80')
    SC = (128 ** -0.5) * 1.4426950408889634
    A(f's_mov_b32 {s(S_SC)}, {hex(f32(SC))}'); A(f's_mov_b32 {s(S_SC+1)}, {hex(f32(SC))}')
    A(f's_mov_b32 {s(S_NSC)}, {hex(f32(-SC))}')
    load_ptr_srd(A, S_SRD, KA_MEM0, 8*576*2)
    A(f'v_lshrrev_b32 v10, 2, {v(TID)}')
    A(f'v_and_b32 v11, 15, v10')
    A(f'v_lshrrev_b32 v12, 4, v10')
    A(f'v_lshrrev_b32 v13, 2, v11'); A(f'v_lshlrev_b32 v13, 1, v13')
    A(f'v_and_b32 v14, 1, v11'); A(f'v_add_u32 v13, v13, v14')
    A(f'v_mul_u32_u24 v13, 1152, v13')
    A(f'v_bfe_u32 v15, v11, 1, 1')
    A(f'v_and_b32 v16, 1, {v(TID)}')
    A(f'v_lshrrev_b32 v17, 1, v12')
    A(f'v_bfe_u32 v18, {v(TID)}, 1, 1')
    A(f'v_and_b32 v19, 1, v12')
    A(f'v_lshlrev_b32 v29, 5, v15')
    for sh, r in ((0, 16), (1, 17), (2, 18), (3, 19)):
        A(f'v_lshlrev_b32 v30, {sh}, {v(r)}'); A(f'v_add_u32 v29, v29, v30')
    A(f'v_lshlrev_b32 v29, 1, v29'); A(f'v_add_u32 v29, v29, v13')
    A(f'v_lshlrev_b32 v30, 1, v19'); A(f'v_add_u32 v30, v30, v18'); A(f'v_mul_u32_u24 v30, 144, v30')
    for sh, r in ((1, 15), (2, 16), (3, 17)):
        A(f'v_lshlrev_b32 v31, {sh}, {v(r)}'); A(f'v_add_u32 v30, v30, v31')
    A(f'v_lshlrev_b32 v30, 1, v30'); A(f'v_add_u32 v30, v30, v13')
    for ks in range(8):
        base = 2*(144*(ks >> 1) + 16 + 64*(ks & 1))
        A(f'buffer_load_ushort {v(32+ks)}, v29, {s(S_SRD,4)}, 0 offen offset:{base}')
        A(f'buffer_load_ushort {v(40+ks)}, v29, {s(S_SRD,4)}, 0 offen offset:{base + 32}')
    A(f'buffer_load_dword v48, v30, {s(S_SRD,4)}, 0 offen')
    A(f'v_lshlrev_b32 v14, 2, {v(TID)}')
    A('s_waitcnt vmcnt(0)')
    for ks in range(8):
        A(f'v_lshl_or_b32 {v(32+ks)}, {v(40+ks)}, 16, {v(32+ks)}')
        A(f'ds_write_b32 v14, {v(32+ks)} offset:{L_MEM + ks*1024}')
    A(f'ds_write_b32 v14, v48 offset:{L_MEM + 8*1024}')
    A('s_waitcnt lgkmcnt(0)')

def kxvx_dma(A):
    A(f's_mov_b32 m0, {s(S_KXM0)}')
    for j in range(4):
        A(f'buffer_load_dwordx4 {v(V_L16)}, {s(S_WS,4)}, {s(S_KX)} offen offset:{j*1024} lds')
    A(f's_add_u32 {s(S_KX)}, {s(S_KX)}, {32*24576}')

def spin_dec(A, fail):
    A(f's_sub_u32 {s(S_SPIN)}, {s(S_SPIN)}, 1')
    A(f's_cbranch_scc1 {fail}')

ZB32 = [False]
def zero4(A, r):
    if ZB32[0]:
        for i in range(4): A(f'v_mov_b32 {v(r+i)}, 0')
    else:
        A(f'v_mov_b64 {v(r,2)}, 0'); A(f'v_mov_b64 {v(r+2,2)}, 0')

def chain_step(A, par, cfg, fail):
    tag = par ^ 1
    st = lambda f: f + (' sc1' if cfg.get('SLOW') else '')
    L = LQ(A)
    stamp(A, cfg, 0)
    for k in range(9):
        L.op(f'ds_read_b128 {v(M(k),4)}, {v(V_L16)} offset:{L_MEM + k*1024}', ('M', k))
    if not cfg.get('NOB1'):
        A(f's_mov_b64 exec, 1')
        A(f'buffer_load_dword {v(V_FLAG)}, {v(V_L16)}, {s(S_WS,4)}, {s(S_FLAGIN)} offen sc1')
        A(f's_mov_b64 exec, -1')
    def q(t, ks): A(f'{SM} {v([AQ0,AQ1][t],4)}, {v(M(ks),4)}, {WQ(t,ks)}, {v(V_IDX)}')
    def k_(t, ks): A(f'{SM} {v([AK0,AK1][t],4)}, {v(M(ks),4)}, {WK(t,ks)}, {v(V_IDX)}')
    def vv(t, ks): A(f'{SM} {v([AV0,AV1][t],4)}, {v(M(ks),4)}, {WV(t,ks)}, {v(V_IDX)}')
    for ks in range(7):
        L.wait(('M', ks))
        q(0, ks); k_(0, ks); q(1, ks); k_(1, ks)
    L.waitall()
    stamp(A, cfg, 1)
    q(0, 7); k_(0, 7); q(0, 8); k_(0, 8); q(1, 7); k_(1, 7)
    def post(t):
        aq, ak = [AQ0, AQ1][t], [AK0, AK1][t]
        for r in (ak, ak+1, aq, aq+1): A(f'v_add_f32 {v(r)}, {v(r)}, {v(r+2)}')
        A(f'v_cvt_pk_bf16_f32 {v(ak+2)}, {v(ak)}, {v(ak+1)}')
        A(f'v_cvt_pk_bf16_f32 {v(ak+3)}, {v(aq)}, {v(aq+1)}')
        L.op(f'ds_write_b64 {v(V_QKW)}, {v(ak+2,2)} offset:{t*512}')
    q(1, 8)
    post(0)
    k_(1, 8)
    zero4(A, AV1)
    vv(0, 0); vv(0, 1)
    post(1)
    vv(1, 0); vv(1, 1); vv(0, 2); vv(1, 2)
    L.waitall()
    A('s_barrier')
    stamp(A, cfg, 2)
    F = [AQ1, AK0, AK1, M(0)]
    def fread(c):
        L.op(f'ds_read_b64_tr_b16 {v(F[c],2)}, {v(V_L8)} offset:{L_QK + c*1024}', ('F', c, 0))
        L.op(f'ds_read_b64_tr_b16 {v(F[c]+2,2)}, {v(V_L8)} offset:{L_QK + c*1024 + 512}', ('F', c))
    KXR = {(0,0): M(1), (1,0): M(2), (0,1): M(3), (1,1): M(4), (0,2): M(5), (1,2): M(1), (0,3): M(2), (1,3): F[0]}
    def kxread(t, c):
        L.op(f'ds_read_b128 {v(KXR[(t,c)],4)}, {v(V_L16)} offset:{L_KX + (t*4+c)*1024}', ('KX', t, c))
    fread(0); kxread(0, 0); kxread(1, 0)
    vv(0, 3); fread(1)
    vv(1, 3); kxread(0, 1)
    vv(0, 4); fread(2)
    vv(1, 4); kxread(1, 1)
    vv(0, 5); fread(3)
    vv(1, 5); kxread(0, 2)
    for ks in (6, 7, 8): vv(0, ks); vv(1, ks)
    S0, S1, SMm = M(6), M(7), M(8)
    def smf(acc, areg, c):
        A(f'{MF} {v(acc,4)}, {v(areg,4)}, {v(F[c],4)}, {"0" if c == 0 else v(acc,4)}')
    stamp(A, cfg, 3)
    L.wait(('KX', 0, 0)); smf(S0, KXR[(0,0)], 0)
    L.wait(('KX', 1, 0)); smf(S1, KXR[(1,0)], 0)
    kxread(1, 2)
    smf(SMm, F[0], 0)
    kxread(0, 3)
    kxread(1, 3)
    L.wait(('KX', 0, 1)); smf(S0, KXR[(0,1)], 1)
    L.wait(('KX', 1, 1)); smf(S1, KXR[(1,1)], 1)
    smf(SMm, F[1], 1)
    VM = AV0 + 2
    for r in (AV0, AV0+1, AV1, AV1+1): A(f'v_add_f32 {v(r)}, {v(r)}, {v(r+2)}')
    L.wait(('KX', 0, 2)); smf(S0, KXR[(0,2)], 2)
    A(f'v_cvt_pk_bf16_f32 {v(VM)}, {v(AV0)}, {v(AV0+1)}')
    A(f'v_cvt_pk_bf16_f32 {v(VM+1)}, {v(AV1)}, {v(AV1+1)}')
    smf(SMm, F[2], 2)
    A(f'buffer_store_dwordx2 {v(VM,2)}, {v(V_L8)}, {s(S_WS,4)}, {s(S_KVM2)} offen sc1')
    L.wait(('KX', 1, 2)); smf(S1, KXR[(1,2)], 2)
    TA = AV1
    A(f'v_add_u32 {v(TA)}, {s(S_VXO)}, {v(V_L16)}')
    A(f'v_add_u32 {v(TA+1)}, {s(S_W1024)}, {v(V_L8)}')
    smf(SMm, F[3], 3)
    L.wait(('KX', 0, 3)); smf(S0, KXR[(0,3)], 3)
    L.wait(('KX', 1, 3)); smf(S1, KXR[(1,3)], 3)
    VX0, VX1, ONES, PX, PM, T = M(0), M(1), M(2), M(3), M(4), M(5)
    KMT = AK0
    L.op(f'ds_read_b128 {v(VX0,4)}, {v(TA)} offset:{L_VX}', 'VX0')
    L.op(f'ds_read_b128 {v(VX1,4)}, {v(TA)} offset:{L_VX + 1024}', 'VX1')
    L.op(f'ds_read_b64_tr_b16 {v(KMT,2)}, {v(TA+1)} offset:{L_QK}', 'KM0')
    L.op(f'ds_read_b64_tr_b16 {v(KMT+2,2)}, {v(TA+1)} offset:{L_QK + 512}', 'KM')
    for i in range(4): A(f'v_mov_b32 {v(ONES+i)}, 0x3f803f80')
    A(f'v_mov_b32 {v(PM+1)}, 0'); A(f'v_mov_b32 {v(PM+2)}, 0')
    stamp(A, cfg, 4)
    A(f'v_max3_f32 {v(T)}, {v(SMm)}, {v(SMm+1)}, {v(S0)}')
    A(f'v_max3_f32 {v(T+1)}, {v(S0+1)}, {v(S0+2)}, {v(S0+3)}')
    A(f'v_max3_f32 {v(T)}, {v(T)}, {v(S1)}, {v(S1+1)}')
    A(f'v_max3_f32 {v(T+1)}, {v(T+1)}, {v(S1+2)}, {v(S1+3)}')
    A(f'v_max_f32 {v(T)}, {v(T)}, {v(T+1)}')
    A(f'v_mov_b32 {v(T+1)}, {v(T)}')
    L.wait('KM')
    A(f'buffer_store_dwordx4 {v(KMT,4)}, {v(V_L16)}, {s(S_WS,4)}, {s(S_KVM)} offen sc1')
    A(f'v_permlane16_swap_b32 {v(T)}, {v(T+1)}')
    A(f'v_max_f32 {v(T)}, {v(T)}, {v(T+1)}')
    A(f'v_mov_b32 {v(T+1)}, {v(T)}')
    A(f's_add_u32 {s(S_KVM)}, {s(S_KVM)}, {32*8192}')
    A(f's_add_u32 {s(S_KVM2)}, {s(S_KVM2)}, {32*8192}')
    A(f'v_permlane32_swap_b32 {v(T)}, {v(T+1)}')
    A(f'v_max_f32 {v(T)}, {v(T)}, {v(T+1)}')
    A(f'v_mul_f32 {v(T)}, {s(S_NSC)}, {v(T)}')
    def pkfma(r): A(f'v_pk_fma_f32 {v(r,2)}, {v(r,2)}, {s(S_SC,2)}, {v(T,2)} op_sel_hi:[1,1,0]')
    pkfma(SMm); pkfma(S0); pkfma(S0+2); pkfma(S1); pkfma(S1+2)
    A(f'v_exp_f32 {v(SMm)}, {v(SMm)}'); A(f'v_exp_f32 {v(SMm+1)}, {v(SMm+1)}')
    A(f'v_exp_f32 {v(S0)}, {v(S0)}')
    A(f'v_cvt_pk_bf16_f32 {v(PM)}, {v(SMm)}, {v(SMm+1)}')
    A(f'v_exp_f32 {v(S0+1)}, {v(S0+1)}')
    A(f'v_mov_b32 {v(PM+3)}, {v(PM)}')
    A(f'v_exp_f32 {v(S0+2)}, {v(S0+2)}')
    O0, O1, SUM = AQ1, AK0, AK1
    A(f'{MF16} {v(SUM,4)}, {v(ONES,2)}, {v(PM,2)}, 0')
    A(f'v_exp_f32 {v(S0+3)}, {v(S0+3)}')
    A(f'{MF16} {v(O0,4)}, {v(VM,2)}, {v(PM,2)}, 0')
    A(f'v_exp_f32 {v(S1)}, {v(S1)}')
    A(f'v_cvt_pk_bf16_f32 {v(PX)}, {v(S0)}, {v(S0+1)}')
    A(f'{MF16} {v(O1,4)}, {v(VM,2)}, {v(PM+2,2)}, 0')
    A(f'v_exp_f32 {v(S1+1)}, {v(S1+1)}')
    A(f'v_cvt_pk_bf16_f32 {v(PX+1)}, {v(S0+2)}, {v(S0+3)}')
    A(f'v_exp_f32 {v(S1+2)}, {v(S1+2)}')
    A(f'v_exp_f32 {v(S1+3)}, {v(S1+3)}')
    A(f'v_cvt_pk_bf16_f32 {v(PX+2)}, {v(S1)}, {v(S1+1)}')
    A(f'v_cvt_pk_bf16_f32 {v(PX+3)}, {v(S1+2)}, {v(S1+3)}')
    L.wait('VX1')
    A(f'{MF} {v(SUM,4)}, {v(ONES,4)}, {v(PX,4)}, {v(SUM,4)}')
    A(f'{MF} {v(O0,4)}, {v(VX0,4)}, {v(PX,4)}, {v(O0,4)}')
    A(f'{MF} {v(O1,4)}, {v(VX1,4)}, {v(PX,4)}, {v(O1,4)}')
    WB0, WB1 = 46, 47
    A(f'v_add_u32 {v(WB0)}, {s(S_WBO)}, {v(V_L16)}')
    A(f'v_add_u32 {v(WB1)}, 0x10000, {v(WB0)}')
    A(f'v_rcp_f32 {v(SUM)}, {v(SUM)}')
    OFD = AV0
    A(f'v_pk_mul_f32 {v(O0,2)}, {v(O0,2)}, {v(SUM,2)} op_sel_hi:[1,0]')
    A(f'v_pk_mul_f32 {v(O0+2,2)}, {v(O0+2,2)}, {v(SUM,2)} op_sel_hi:[1,0]')
    A(f'v_pk_mul_f32 {v(O1,2)}, {v(O1,2)}, {v(SUM,2)} op_sel_hi:[1,0]')
    A(f'v_pk_mul_f32 {v(O1+2,2)}, {v(O1+2,2)}, {v(SUM,2)} op_sel_hi:[1,0]')
    A(f'v_cvt_pk_bf16_f32 {v(OFD)}, {v(O0)}, {v(O0+1)}')
    A(f'v_cvt_pk_bf16_f32 {v(OFD+1)}, {v(O1)}, {v(O1+1)}')
    A(f'v_cvt_pk_bf16_f32 {v(OFD+2)}, {v(O0+2)}, {v(O0+3)}')
    A(f'v_cvt_pk_bf16_f32 {v(OFD+3)}, {v(O1+2)}, {v(O1+3)}')
    A(f's_mov_b64 exec, {s(S_EXO,2)}')
    L.op(f'ds_write_b64 {v(V_OW)}, {v(OFD,2)}', 'ow0')
    L.op(f'ds_write_b64 {v(V_OW)}, {v(OFD+2,2)} offset:32', 'ow')
    A(f's_mov_b64 exec, -1')
    stamp(A, cfg, 5)
    NS = 4
    SL = lambda i: 8 + 8*i
    OF0, OF1 = 40, 56
    ACC = [48, 52]
    RT = 44
    X = 60
    def woread(f, hf=None):
        t = f//2 + 1; ks = f % 2
        wb = WB0 if ks == 0 else WB1
        L.op(f'ds_read_b128 {v(SL(f % NS),4)}, {v(wb)} offset:{(t-1)*1024}', ('W', f, 0))
        L.op(f'ds_read_b128 {v(SL(f % NS)+4,4)}, {v(wb)} offset:{32768 + (t-1)*1024}', ('W', f))
    for f in range(NS): woread(f)
    zero4(A, ACC[0]); zero4(A, ACC[1])
    L.wait('ow')
    A('s_barrier')
    stamp(A, cfg, 6)
    L.op(f'ds_read_b128 {v(OF0,4)}, {v(V_L16)} offset:{L_O}', 'OF0')
    L.op(f'ds_read_b128 {v(OF1,4)}, {v(V_L16)} offset:{L_O + 1024}', 'OF1')
    skipk = A.newlabel('skipk')
    A(f's_cmp_eq_u32 {s(S_STEP)}, 63')
    A(f's_cbranch_scc1 {skipk}')
    if not cfg.get('NOB1'):
        lab_ok = A.newlabel('b1ok'); lab_re = A.newlabel('b1re')
        A('s_waitcnt vmcnt(2)')
        A(f's_add_u32 {s(S_TMP)}, {s(S_STEP)}, 2')
        A(f's_mov_b64 exec, 1')
        A(f'v_cmp_gt_u32 vcc, {s(S_TMP)}, {v(V_FLAG)}')
        A(f's_cbranch_vccz {lab_ok}')
        A(f's_mov_b32 {s(S_SPIN)}, {SPIN_LIMIT}')
        A.label(lab_re)
        A(f'buffer_load_dword {v(V_FLAG)}, {v(V_L16)}, {s(S_WS,4)}, {s(S_FLAGIN)} offen sc1')
        A('s_waitcnt vmcnt(0)')
        A(f'v_cmp_gt_u32 vcc, {s(S_TMP)}, {v(V_FLAG)}')
        A(f's_cbranch_vccz {lab_ok}')
        spin_check(A, lab_re, fail)
        A.label(lab_ok)
        A(f's_mov_b64 exec, -1')
    if not cfg.get('NOKX'): kxvx_dma(A)
    A.label(skipk)
    def tile_out(t):
        acc = ACC[t % 2]; x = X + ((t - 1) % 4 if t else 0)
        A(f'v_add_f32 {v(RT)}, {v(acc)}, {v(acc+2)}')
        A(f'v_add_f32 {v(RT+1)}, {v(acc+1)}, {v(acc+3)}')
        if t + 2 < 9: zero4(A, acc)
        if t == 0: A(f'v_lshrrev_b32 {v(X+1)}, 2, {v(V_L16)}')
        A(f'v_cvt_pk_bf16_f32 {v(x)}, {v(RT)}, {v(RT+1)}')
        if t in (0, 1, 5):
            if not tag: A(f'v_add_u32 {v(RT)}, 0x10000, {v(RT)}')
            if t == 0: A(f's_mov_b64 exec, {s(S_M1,2)}')
            else: A('s_nop 0')
            if tag: A(f'v_or_b32_sdwa {v(x)}, {v(RT)}, 1 dst_sel:WORD_0 dst_unused:UNUSED_PRESERVE src0_sel:WORD_1 src1_sel:DWORD')
            else:   A(f'v_and_b32_sdwa {v(x)}, {v(RT)}, -2 dst_sel:WORD_0 dst_unused:UNUSED_PRESERVE src0_sel:WORD_1 src1_sel:DWORD')
            if t == 0: A(f's_mov_b64 exec, -1')
        if t == 0: A(st(f'buffer_store_dword {v(X)}, {v(X+1)}, {s(S_WS,4)}, {s(S_PST)} offen'))
        if t in (4, 8): A(st(f'buffer_store_dwordx4 {v(X,4)}, {v(V_L16)}, {s(S_WS,4)}, {s(S_PST)} offen offset:{256 if t == 4 else 1280}'))
    L.wait('OF0')
    A(f'{SM} {v(ACC[0],4)}, {v(OF0,4)}, {WOR(0)}, {v(V_IDX)}')
    L.wait('OF1')
    A(f'{SM} {v(ACC[0],4)}, {v(OF1,4)}, {WOR(1)}, {v(V_IDX)}')
    for f in range(16):
        t = f//2 + 1; ks = f % 2
        L.wait(('W', f))
        A(f'{SM} {v(ACC[t % 2],4)}, {v([OF0,OF1][ks],4)}, {v(SL(f % NS),8)}, {v(V_IDX)}')
        if f + NS < 16: woread(f + NS)
        if ks == 1: tile_out(t - 1)
    tile_out(8)
    stamp(A, cfg, 7)
    if cfg.get('PREWAIT1'): A('s_waitcnt vmcnt(0)')
    if cfg.get('PW1LATE'):
        pw = A.newlabel('pw1')
        A(f's_cmp_lg_u32 {s(S_WAVE)}, 3')
        A(f's_cbranch_scc1 {pw}')
        A('s_waitcnt vmcnt(0)')
        A.label(pw)
    stamp(A, cfg, 11)
    P = [8 + 4*i for i in range(4)]
    SEL, D, X0, HM, T = 24, 28, 32, 34, 35
    new = par ^ 1; old = par
    def publish_flag():
        A(f's_add_u32 {s(S_TMP)}, {s(S_STEP)}, 1')
        A(f'v_mov_b32 {v(T+1)}, {s(S_TMP)}')
        A(f's_mov_b64 exec, 1')
        A(f'buffer_store_dword {v(T+1)}, {v(V_L16)}, {s(S_WS,4)}, {s(S_FLAGOUT)} offen sc1')
        A(f's_mov_b64 exec, -1')
    noline = A.newlabel('h1none'); join = A.newlabel('h1join')
    A(f's_mov_b32 {s(S_SPIN)}, {SPIN_LIMIT}')
    A(f's_cmp_eq_u32 {s(S_HAS2)}, 0')
    A(f's_cbranch_scc1 {noline}')
    lp = A.newlabel('hop1'); lw = A.newlabel('h1w')
    def h1loads():
        for i in range(4):
            A(f'buffer_load_dwordx4 {v(P[i],4)}, {v(V_PLD)}, {s(S_WS,4)}, {s(S_PL+i)} offen sc1')
    h1loads()
    for r in (AQ0, AQ1, AK0, AK1, AV0): zero4(A, r)
    A(f'v_lshrrev_b32 {v(T)}, 2, {v(V_L16)}')
    A(f'v_and_b32 {v(T)}, 16, {v(T)}')
    A(f'v_lshlrev_b32 {v(T)}, {v(T)}, {s(S_ONE)}')
    A(f's_mov_b64 vcc, {s(S_M1,2)}')
    for r in range(4):
        A(f'v_cndmask_b32 {v(SEL+r)}, 0, {v(T)}, vcc')
        if r < 3: A(f's_lshl_b64 vcc, vcc, 1')
    A(f'v_bfe_i32 {v(HM)}, {v(V_L16)}, 9, 1')
    A(f's_branch {lw}')
    A.label(lp)
    if not cfg.get('NOMASK'): A(f's_mov_b64 exec, vcc')
    spin_dec(A, fail)
    h1loads()
    A.label(lw); A.flush()
    A('s_waitcnt vmcnt(0)')
    mf = lambda i: A(f'{MF} {v(D,4)}, {v(SEL,4)}, {v(P[i],4)}, {"0" if i == 0 else v(D,4)}')
    mf(0)
    if tag: A(f'v_bitop3_b32 {v(T)}, {v(P[0])}, {v(P[1])}, {v(P[2])} bitop3:0x80')
    else:   A(f'v_or3_b32 {v(T)}, {v(P[0])}, {v(P[1])}, {v(P[2])}')
    mf(1)
    if tag: A(f'v_bitop3_b32 {v(T)}, {v(T)}, {v(P[3])}, 1 bitop3:0x80')
    else:   A(f'v_bitop3_b32 {v(T)}, {v(T)}, {v(P[3])}, 1 bitop3:0xa8')
    mf(2)
    A(f'v_cmp_ne_u32 vcc, {tag}, {v(T)}')
    mf(3)
    if not cfg.get('X_NOCHK'): A(f's_cbranch_vccnz {lp}')
    A(f's_mov_b64 exec, -1')
    if cfg.get('STAMPS'): A(f's_sub_u32 {s(S_ST+14)}, {SPIN_LIMIT}, {s(S_SPIN)}')
    if cfg.get('CNT'):
        A(f's_sub_u32 {s(S_TMP)}, {SPIN_LIMIT}, {s(S_SPIN)}'); A(f's_add_u32 s92, s92, {s(S_TMP)}')
    stamp(A, cfg, 8)
    A(f'v_add_f32_dpp {v(X0)}, {v(D)}, {v(D)} row_ror:8 row_mask:0xf bank_mask:0x3')
    A(f'v_add_f32_dpp {v(X0+1)}, {v(D+1)}, {v(D+1)} row_ror:8 row_mask:0xf bank_mask:0x3')
    A(f'v_add_f32_dpp {v(X0)}, {v(D+2)}, {v(D+2)} row_ror:8 row_mask:0xf bank_mask:0xc')
    A(f'v_add_f32_dpp {v(X0+1)}, {v(D+3)}, {v(D+3)} row_ror:8 row_mask:0xf bank_mask:0xc')
    A(f'v_cvt_pk_bf16_f32 {v(X0)}, {v(X0)}, {v(X0+1)}')
    A(f'v_or_b32 {v(X0)}, {v(X0)}, {v(HM)}')
    A(st(f'buffer_store_dword {v(X0)}, {v(V_MST)}, {s(S_WS,4)}, {s(S_MSA)} offen'))
    A(f'v_xor_b32 {v(V_MST)}, 0x4000, {v(V_MST)}')
    A(f's_branch {join}')
    A.label(noline); A.flush()
    for r in (AQ0, AQ1, AK0, AK1, AV0): zero4(A, r)
    A.label(join); A.flush()
    if cfg.get('BAR2'): A('s_barrier')
    stamp(A, cfg, 9)
    if cfg.get('PREWAIT2'): A('s_waitcnt vmcnt(0)')
    stamp(A, cfg, 12)
    R0, R1, R2 = 8, 12, 16
    TA0, TA1 = 20, 21
    A(f'v_add_u32 {v(TA0)}, {s(S_W1024)}, {v(V_L16)}')
    A(f'v_add_u32 {v(TA1)}, {s(S_W256)}, {v(V_L16)}')
    A(f'v_mov_b64 {v(R2,2)}, 0'); A(f'v_mov_b64 {v(R2+2,2)}, 0')
    lp2 = A.newlabel('hop2'); lw2 = A.newlabel('h2w')
    A(f's_mov_b32 {s(S_SPIN)}, {SPIN_LIMIT}')
    def h2loads(first):
        A(f'buffer_load_dwordx4 {v(R0,4)}, {v(V_L16)}, {s(S_WS,4)}, {s(S_ML+3*new)} offen sc1')
        A(f'buffer_load_dwordx4 {v(R1,4)}, {v(V_L16)}, {s(S_WS,4)}, {s(S_ML+3*new+1)} offen sc1')
        if first: A(f's_mov_b64 exec, 0xffff')
        else: A(f's_and_b64 exec, exec, 0xffff')
        A(f'buffer_load_dwordx4 {v(R2,4)}, {v(V_L16)}, {s(S_WS,4)}, {s(S_ML+3*new+2)} offen sc1')
        if first or cfg.get('NOMASK'): A(f's_mov_b64 exec, -1')
        else: A(f's_mov_b64 exec, {s(S_MSK,2)}')
    h2loads(True)
    A(f's_branch {lw2}')
    A.label(lp2)
    if not cfg.get('NOMASK'):
        A(f's_mov_b64 exec, vcc')
        A(f's_mov_b64 {s(S_MSK,2)}, vcc')
    spin_dec(A, fail)
    h2loads(False)
    A.label(lw2)
    A('s_waitcnt vmcnt(0)')
    T = 22
    A(f'v_max3_u32 {v(T)}, {v(R0)}, {v(R0+1)}, {v(R0+2)}')
    A(f'v_max3_u32 {v(T+1)}, {v(R0+3)}, {v(R1)}, {v(R1+1)}')
    A(f'v_max3_u32 {v(T)}, {v(T)}, {v(R1+2)}, {v(R1+3)}')
    A(f'v_max3_u32 {v(T+1)}, {v(T+1)}, {v(R2)}, {v(R2+1)}')
    A(f'v_max3_u32 {v(T)}, {v(T)}, {v(R2+2)}, {v(R2+3)}')
    A(f'v_max_u32 {v(T)}, {v(T)}, {v(T+1)}')
    A(f'v_cmp_eq_u32 vcc, -1, {v(T)}')
    A(f's_cbranch_vccnz {lp2}')
    A(f's_mov_b64 exec, -1')
    if cfg.get('CNT'):
        A(f's_sub_u32 {s(S_TMP)}, {SPIN_LIMIT}, {s(S_SPIN)}'); A(f's_add_u32 s93, s93, {s(S_TMP)}')
    if cfg.get('STAMPS'):
        A(f's_sub_u32 {s(S_ST+15)}, {SPIN_LIMIT}, {s(S_SPIN)}')
        stamp(A, cfg, 13)
    if not cfg.get('FLAGEARLY'):
        T = 35; publish_flag()
    A(f'ds_write_b128 {v(TA0)}, {v(R0,4)} offset:{L_MEM}')
    A(f'ds_write_b128 {v(TA0)}, {v(R1,4)} offset:{L_MEM + 4096}')
    A(f's_mov_b64 exec, 0xffff')
    A(f'ds_write_b128 {v(TA1)}, {v(R2,4)} offset:{L_MEM + 8192}')
    A(f's_mov_b64 exec, -1')
    A(f's_add_u32 {s(S_STEP)}, {s(S_STEP)}, 1')
    tstamp(A, cfg, s(S_STEP), 24, V_L16)
    A('s_waitcnt lgkmcnt(0)')
    A('s_barrier')
    stamp(A, cfg, 10)

def chain_role(A, cfg, fail, done):
    A.smart = True
    ZB32[0] = bool(cfg.get('X_ZB32'))
    chain_init(A, cfg)
    cfg['barrier_wait_chain'](A)
    if not cfg.get('NOB1'):
        lab_re = A.newlabel('b1first'); lab_ok = A.newlabel('b1fok')
        A(f's_mov_b32 {s(S_SPIN)}, {SPIN_LIMIT}')
        A(f's_mov_b64 exec, 1')
        A.label(lab_re)
        A(f'buffer_load_dword {v(V_FLAG)}, {v(V_L16)}, {s(S_WS,4)}, {s(S_FLAGIN)} offen sc1')
        A('s_waitcnt vmcnt(0)')
        A(f'v_cmp_gt_u32 vcc, 1, {v(V_FLAG)}')
        A(f's_cbranch_vccz {lab_ok}')
        spin_check(A, lab_re, fail)
        A.label(lab_ok)
        A(f's_mov_b64 exec, -1')
    kxvx_dma(A)
    for r in (AQ0, AQ1, AK0, AK1, AV0): zero4(A, r)
    A(f's_mov_b32 {s(S_STEP)}, 0')
    tstamp(A, cfg, 0, 24, V_L16)
    dstamp(A, cfg, 1, 0, None, 24, 25); dstamp(A, cfg, 3, 32, None, 24, 25)
    dstamp(A, cfg, 0, 0, 94, 24, 25)
    A('s_waitcnt vmcnt(0)')
    A('s_barrier')
    if cfg.get('STAMPS') or cfg.get('TOTAL'):
        A(f's_memtime {s(S_T0,2)}')
        A('s_waitcnt lgkmcnt(0)')
    if cfg.get('CNT'): A('s_mov_b32 s92, 0'); A('s_mov_b32 s93, 0')
    loop = A.newlabel('chainloop')
    A.label(loop)
    chain_step(A, 0, cfg, fail)
    chain_step(A, 1, cfg, fail)
    A(f's_cmp_lt_u32 {s(S_STEP)}, 64')
    A(f's_cbranch_scc1 {loop}')
    if cfg.get('CNT'):
        A(f's_lshl_b32 {s(S_TMP)}, {s(S_ROLE)}, 9')
        A(f's_lshl_b32 {s(S_TMP+1)}, {s(S_WAVE)}, 3')
        A(f's_add_u32 {s(S_TMP)}, {s(S_TMP)}, {s(S_TMP+1)}')
        A(f's_add_u32 {s(S_TMP)}, {s(S_TMP)}, {hex(WS_TIME)}')
        A(f'v_mov_b32 v14, s92'); A(f'v_mov_b32 v15, s93'); A(f'v_mov_b32 v16, 0')
        A('s_mov_b64 exec, 1')
        A(f'buffer_store_dwordx2 v[14:15], v16, {s(S_WS,4)}, {s(S_TMP)} offen')
        A('s_mov_b64 exec, -1')
    if cfg.get('STAMPS') or cfg.get('TOTAL'):
        A(f's_memtime {s(S_T1,2)}')
        A('s_waitcnt lgkmcnt(0)')
        A(f's_sub_u32 {s(S_T1)}, {s(S_T1)}, {s(S_T0)}')
        sk = A.newlabel('nostamp')
        A(f's_lshl_b32 {s(S_TMP)}, {s(S_ROLE)}, 2')
        A(f's_or_b32 {s(S_TMP)}, {s(S_TMP)}, {s(S_WAVE)}')
        A(f's_cmp_lg_u32 {s(S_TMP)}, {cfg.get("WHO", 0)}')
        A(f's_cbranch_scc1 {sk}')
        A(f'v_mov_b32 v14, {s(S_T1)}')
        A(f'v_mov_b32 v15, 0')
        A(f'global_store_dword v15, v14, {s(S_DBG,2)} offset:64')
        for i in range(16 if cfg.get('STAMPS') else 0):
            if i < 14: A(f's_sub_u32 {s(S_TMP)}, {s(S_ST+i)}, {s(S_ST)}')
            else: A(f's_mov_b32 {s(S_TMP)}, {s(S_ST+i)}')
            A(f'v_mov_b32 v14, {s(S_TMP)}')
            A(f'global_store_dword v15, v14, {s(S_DBG,2)} offset:{68+4*i}')
        A.label(sk)
    A.smart = False
    A(f's_branch {done}')
```

```python
from asm import *
from common import *
from chain import *

S_IDX = 26
S_SEG = 28
S_PREF = 29
S_FOUT = 30
S_SRC = 31
S_BUFW = 32
S_BUFC = 33
S_DST = 34
S_DST2 = 35
S_DST3 = 36
S_TGT = 37
S_A = 38; S_B = 39; S_C = 40; S_D = 41
S_EXLO = 42
S_BSUM = 44
S_CSUM = 45
S_X = 46

def lane_setup(A):
    A('v_and_b32 v79, 63, v0')
    A('v_mov_b32 v75, v0')
    A('v_and_b32 v78, 15, v79')
    A('v_lshrrev_b32 v77, 4, v79')
    A('v_and_b32 v76, 7, v79')

def flagaddr(A, vdst, role0, n, vlane=79, vt=74):
    A(f'v_min_u32 {v(vdst)}, {n-1}, {v(vlane)}')
    A(f'v_lshrrev_b32 {v(vt)}, 2, {v(vdst)}')
    if isinstance(role0, int): A(f'v_add_u32 {v(vt)}, {role0}, {v(vt)}')
    else: A(f'v_add_u32 {v(vt)}, {role0}, {v(vt)}')
    A(f'v_lshlrev_b32 {v(vt)}, 7, {v(vt)}')
    A(f'v_and_b32 {v(vdst)}, 3, {v(vdst)}')
    A(f'v_lshlrev_b32 {v(vdst)}, 2, {v(vdst)}')
    A(f'v_add_u32 {v(vdst)}, {v(vdst)}, {v(vt)}')

def own_flag(A):
    A(f's_lshl_b32 {s(S_FOUT)}, {s(S_ROLE)}, 7')
    A(f's_lshl_b32 {s(S_TMP)}, {s(S_WAVE)}, 2')
    A(f's_add_u32 {s(S_FOUT)}, {s(S_FOUT)}, {s(S_TMP)}')

CFG = {}
def publish(A, sval, vt, vzero, ts=True):
    if ts: tstamp(A, CFG, sval, vt, vzero)
    A(f'v_mov_b32 {v(vt)}, {sval}')
    A('s_mov_b64 exec, 1')
    A(f'buffer_store_dword {v(vt)}, {v(vzero)}, {s(S_WS,4)}, {s(S_FOUT)} offen sc1')
    A('s_mov_b64 exec, -1')

def poll_block(A, cfg, vaddr, starget, vt, fail):
    if cfg.get('NOWAIT'): return
    re_ = A.newlabel('pre'); ok = A.newlabel('pok')
    A(f's_mov_b32 {s(S_SPIN)}, {SPIN_LIMIT}')
    A.label(re_)
    A(f'buffer_load_dword {v(vt)}, {v(vaddr)}, {s(S_WS,4)}, 0 offen sc1')
    A('s_waitcnt vmcnt(0)')
    A(f'v_cmp_gt_u32 vcc, {starget}, {v(vt)}')
    A(f's_cbranch_vccz {ok}')
    spin_check(A, re_, fail)
    A.label(ok)

def wreg_lin(i, n, vbase):
    return a(i, n) if i < 256 else v(vbase + i - 256, n)

def block_loader(A, blocks, ka, size, vtr=70, per_round=36):
    w = s(S_WAVE)
    load_ptr_srd(A, S_SRD, ka, size)
    A(f'v_lshrrev_b32 v72, 2, v78')
    A(f'v_lshlrev_b32 v73, 2, v77')
    A(f'v_add_u32 v72, v72, v73')
    A(f'v_lshlrev_b32 v72, 5, v72')
    A(f'v_and_b32 v73, 3, v78')
    A(f'v_lshlrev_b32 v73, 3, v73')
    A(f'v_add_u32 v72, v72, v73')
    A(f's_mul_i32 {s(S_TMP)}, {w}, 36864')
    A(f'v_add_u32 {v(vtr)}, {s(S_TMP)}, v72')
    for r0 in range(0, len(blocks), per_round):
        rb = blocks[r0:r0+per_round]
        for i, b in enumerate(rb):
            A(f's_mul_i32 {s(S_M0)}, {w}, 36864')
            if i: A(f's_add_u32 {s(S_M0)}, {s(S_M0)}, {i*1024}')
            b['issue'](A)
        A('s_waitcnt vmcnt(0)')
        for i, b in enumerate(rb):
            for half in range(2):
                A(f'ds_read_b64_tr_b16 {b["dst"](half)}, {v(vtr)} offset:{i*1024 + half*512}')
            if i % 4 == 3: A('s_waitcnt lgkmcnt(8)')
        A('s_waitcnt lgkmcnt(0)')

def dma16(A, vaddr, soff):
    A(f's_mov_b32 m0, {s(S_M0)}')
    A(f'buffer_load_dwordx4 {v(vaddr)}, {s(S_SRD,4)}, {soff} offen lds')

def gemm_loop(A, cfg, P, fail):
    NT, NKS, D = P['NT'], P['NKS'], P.get('D', 3)
    W, ACC, RING = P['W'], P['ACC'], P['RING']
    VL16, VRD, VPOLL, VFLAG, VZERO, VT = P['VL16'], P['VRD'], P['VPOLL'], P['VFLAG'], P['VZERO'], P['VT']
    NF = 2*NKS; NFW = NF//4
    nst = P['nst']
    KMID = P.get('KMID', NKS//2)
    w = s(S_WAVE)
    A(f's_mul_i32 {s(S_TMP)}, {w}, {NFW*1024}')
    A(f's_add_u32 {s(S_SRC)}, {s(S_SRC)}, {s(S_TMP)}')
    A(f's_mov_b32 {s(S_BUFW)}, {s(S_TMP)}')
    A(f's_lshl_b32 {s(S_BSUM)}, {s(S_TMP)}, 1')
    A(f's_add_u32 {s(S_BSUM)}, {s(S_BSUM)}, {NF*1024}')
    A(f's_mov_b32 {s(S_BUFC)}, 0')
    A(f's_mov_b32 {s(S_SEG)}, 0')
    A(f's_mov_b32 {s(S_PREF)}, 0')
    def dma():
        for j0 in range(0, NFW, 4):
            A(f's_add_u32 {s(S_TMP)}, {s(S_BUFW)}, {j0*1024}')
            A(f's_mov_b32 m0, {s(S_TMP)}')
            A(f's_add_u32 {s(S_TMP+1)}, {s(S_SRC)}, {j0*1024}')
            for j in range(j0, min(j0+4, NFW)):
                A(f'buffer_load_dwordx4 {v(VL16)}, {s(S_WS,4)}, {s(S_TMP+1)} offen offset:{(j-j0)*1024} lds')
        A(f's_add_u32 {s(S_SRC)}, {s(S_SRC)}, {P["src_stride"]}')
        A(f's_sub_u32 {s(S_BUFW)}, {s(S_BSUM)}, {s(S_BUFW)}')
    loop = A.newlabel('gloop'); pre = A.newlabel('gpref'); go = A.newlabel('ggo')
    A.label(loop)
    A(f's_cmp_lg_u32 {s(S_PREF)}, 0')
    A(f's_cbranch_scc1 {pre}')
    A(f's_add_u32 {s(S_TGT)}, {s(S_SEG)}, 1')
    fst(A, cfg, 0, S_SEG)
    poll_block(A, cfg, VPOLL, s(S_TGT), VFLAG, fail)
    fst(A, cfg, 1, S_SEG)
    dma()
    A('s_waitcnt vmcnt(0)')
    A(f's_branch {go}')
    A.label(pre)
    A(f's_waitcnt vmcnt({nst})')
    A.label(go)
    fst(A, cfg, 2, S_SEG)
    A('s_barrier')
    fst(A, cfg, 3, S_SEG)
    A(f's_mov_b32 {s(S_PREF)}, 0')
    A(f'v_add_u32 {v(VRD)}, {s(S_BUFC)}, {v(VL16)}')
    A(f's_sub_u32 {s(S_BUFC)}, {NF*1024}, {s(S_BUFC)}')
    if not cfg.get('NOWAIT'):
        A(f'buffer_load_dword {v(VFLAG)}, {v(VPOLL)}, {s(S_WS,4)}, 0 offen sc1')
    def rd(ks):
        for tt in range(2):
            A(f'ds_read_b128 {v(RING + (ks % D)*8 + tt*4, 4)}, {v(VRD)} offset:{(tt*NKS + ks)*1024}')
    for k in range(min(D, NKS)): rd(k)
    for ks in range(NKS):
        if ks == KMID:
            A('s_waitcnt vmcnt(0)')
            publish(A, s(S_SEG), VT, VZERO, ts=False)
            sk = A.newlabel('gnopf')
            A(f's_cmp_ge_u32 {s(S_SEG)}, 63')
            A(f's_cbranch_scc1 {sk}')
            if not cfg.get('NOWAIT'):
                A(f's_add_u32 {s(S_TGT)}, {s(S_SEG)}, 2')
                A(f'v_cmp_gt_u32 vcc, {s(S_TGT)}, {v(VFLAG)}')
                A(f's_cbranch_vccnz {sk}')
            dma()
            A(f's_mov_b32 {s(S_PREF)}, 1')
            A.label(sk)
        A(f's_waitcnt lgkmcnt({2*min(D-1, NKS-1-ks)})')
        for t in range(NT):
            for tt in range(2):
                fr = v(RING + (ks % D)*8 + tt*4, 4)
                c = '0' if ks == 0 else v(ACC(t, tt), 4)
                if P['swap'](t): A(f'{MF} {v(ACC(t,tt),4)}, {fr}, {W(t,ks)}, {c}')
                else: A(f'{MF} {v(ACC(t,tt),4)}, {W(t,ks)}, {fr}, {c}')
        if ks + D < NKS: rd(ks + D)
    tstamp(A, cfg, s(S_SEG), VT, VZERO)
    fst(A, cfg, 4, S_SEG)
    P['epilogue'](A)
    fst(A, cfg, 5, S_SEG)
    sk2 = A.newlabel('gnopub')
    A(f's_add_u32 {s(S_SEG)}, {s(S_SEG)}, 1')
    A(f's_cmp_lg_u32 {s(S_PREF)}, 0')
    A(f's_cbranch_scc1 {loop}')
    A('s_waitcnt vmcnt(0)')
    fst(A, cfg, 6, S_SEG, 33)
    publish(A, s(S_SEG), VT, VZERO, ts=False)
    A(f's_cmp_lt_u32 {s(S_SEG)}, 64')
    A(f's_cbranch_scc1 {loop}')

def cvt(A, d, x, y): A(f'v_cvt_pk_bf16_f32 {v(d)}, {v(x)}, {v(y)}')

def role_a1(A, cfg, fail, done):
    w = s(S_WAVE)
    lane_setup(A)
    S_M, S_TAU = S_A, S_B
    A(f's_mul_i32 {s(S_M)}, {s(S_IDX)}, 43')
    A(f's_lshr_b32 {s(S_M)}, {s(S_M)}, 7')
    A(f's_mul_i32 {s(S_TMP)}, {s(S_M)}, 3')
    A(f's_sub_u32 {s(S_TMP)}, {s(S_IDX)}, {s(S_TMP)}')
    A(f's_mul_i32 {s(S_TAU)}, {s(S_TMP)}, 12')
    A(f's_mul_i32 {s(S_TMP)}, {w}, 3')
    A(f's_add_u32 {s(S_TAU)}, {s(S_TAU)}, {s(S_TMP)}')
    A('v_lshrrev_b32 v68, 1, v79'); A('v_mul_u32_u24 v68, 3456, v68')
    A('v_and_b32 v72, 1, v79'); A('v_lshlrev_b32 v72, 4, v72'); A('v_add_u32 v68, v68, v72')
    A('v_lshrrev_b32 v69, 3, v79'); A('v_mul_u32_u24 v69, 3456, v69')
    A('v_mul_u32_u24 v72, 36, v76'); A('v_add_u32 v69, v69, v72')
    blocks = []
    for t in range(3):
        for ks in range(18):
            def issue(A, t=t, ks=ks):
                if ks == 0:
                    A(f's_add_u32 {s(S_C)}, {s(S_TAU)}, {t}')
                    A(f's_mul_i32 {s(S_D)}, {s(S_M)}, 1152')
                    A(f's_mul_i32 {s(S_TMP)}, {s(S_C)}, 36')
                    A(f's_sub_u32 {s(S_TMP+1)}, {s(S_C)}, 32')
                    A(f's_mul_i32 {s(S_TMP+1)}, {s(S_TMP+1)}, 288')
                    A(f's_add_u32 {s(S_TMP+1)}, {s(S_TMP+1)}, 32')
                    A(f's_cmp_ge_u32 {s(S_C)}, 32')
                    A(f's_cselect_b32 {s(S_TMP)}, {s(S_TMP+1)}, {s(S_TMP)}')
                    A(f's_add_u32 {s(S_D)}, {s(S_D)}, {s(S_TMP)}')
                lo = A.newlabel('a1lo'); en = A.newlabel('a1en')
                A(f's_add_u32 {s(S_SOFF)}, {s(S_D)}, {ks*32*3456}')
                A(f's_cmp_ge_u32 {s(S_C)}, 32')
                A(f's_cbranch_scc1 {lo}')
                dma16(A, 68, s(S_SOFF))
                A(f's_branch {en}')
                A.label(lo)
                for q in range(4):
                    A(f's_mov_b32 m0, {s(S_M0)}')
                    A(f'buffer_load_dword v69, {s(S_SRD,4)}, {s(S_SOFF)} offen lds')
                    if q < 3:
                        A(f's_add_u32 {s(S_SOFF)}, {s(S_SOFF)}, {8*3456}')
                        A(f's_add_u32 {s(S_M0)}, {s(S_M0)}, 256')
                A.label(en)
            blocks.append(dict(issue=issue, dst=lambda half, t=t, ks=ks: a(t*72 + ks*4 + 2*half, 2)))
    block_loader(A, blocks, KA_WQKV, 576*3456, per_round=27)
    VL16, VRD, VPOLL, VFLAG, VZERO, VT, VL8 = 60, 61, 62, 63, 64, 65, 66
    A(f'v_lshlrev_b32 {v(VL16)}, 4, v79')
    A(f'v_lshlrev_b32 {v(VL8)}, 3, v79')
    A(f'v_mov_b32 {v(VZERO)}, 0')
    sel_layer(A, S_TMP+2, [R_R0, R_RB[0]])
    flagaddr(A, VPOLL, s(S_TMP+2), 16)
    own_flag(A)
    sel_layer(A, S_SRC, WS_XNA)
    sel_layer(A, S_DST, WS_QKVA)
    A(f's_mul_i32 {s(S_TMP)}, {s(S_M)}, 36864')
    A(f's_add_u32 {s(S_DST)}, {s(S_DST)}, {s(S_TMP)}')
    A(f's_lshl_b32 {s(S_TMP)}, {s(S_TAU)}, 10')
    A(f's_add_u32 {s(S_DST)}, {s(S_DST)}, {s(S_TMP)}')
    cfg['barrier_wait'](A)
    ACC = lambda t, tt: t*8 + tt*4
    def epi(swap):
        def f(A):
            for t in range(3):
                b = t*8
                cvt(A, b, b, b+1); cvt(A, b+1, b+2, b+3); cvt(A, b+2, b+4, b+5); cvt(A, b+3, b+6, b+7)
                if swap:
                    A(f'buffer_store_dwordx4 {v(b,4)}, {v(VL16)}, {s(S_WS,4)}, {s(S_DST)} offen offset:{t*1024} sc1')
                else:
                    A(f'buffer_store_dwordx2 {v(b,2)}, {v(VL8)}, {s(S_WS,4)}, {s(S_DST)} offen offset:{t*1024} sc1')
                    A(f'buffer_store_dwordx2 {v(b+2,2)}, {v(VL8)}, {s(S_WS,4)}, {s(S_DST)} offen offset:{t*1024+512} sc1')
            A(f's_add_u32 {s(S_DST)}, {s(S_DST)}, {SEG_QKVA}')
        return f
    lv = A.newlabel('a1v')
    A(f's_cmp_eq_u32 {s(S_M)}, 2')
    A(f's_cbranch_scc1 {lv}')
    for swap in (False, True):
        if swap: A.label(lv); A.flush()
        P = dict(NT=3, NKS=18, D=3, W=lambda t, ks: a(t*72 + ks*4, 4), ACC=ACC, RING=24, VL16=VL16, VRD=VRD, VPOLL=VPOLL,
                 VFLAG=VFLAG, VZERO=VZERO, VT=VT, nst=(3 if swap else 6), swap=lambda t, sw=swap: sw, epilogue=epi(swap), src_stride=SEG_XN)
        gemm_loop(A, cfg, P, fail)
        A(f's_branch {done}')

def sel_layer(A, sdst, vals):
    A(f's_mul_i32 {s(sdst)}, {s(S_L)}, {hex(vals[1]-vals[0])}')
    A(f's_add_u32 {s(sdst)}, {s(sdst)}, {hex(vals[0])}')

def part_store_addr(A, vdst):
    A(f'v_lshrrev_b32 v72, 3, v78'); A(f'v_mul_u32_u24 v72, 18432, v72')
    A(f'v_lshlrev_b32 v73, 7, v77'); A(f'v_add_u32 v72, v72, v73')
    A(f'v_lshlrev_b32 v73, 4, v76'); A(f'v_add_u32 {v(vdst)}, v72, v73')

def part_epilogue(NT, VPS, stride):
    def f(A):
        A(f's_add_u32 {s(S_DST2)}, {s(S_DST)}, 36864')
        for t in range(NT):
            for tt in range(2):
                A(f'buffer_store_dwordx4 {v(t*8+tt*4,4)}, {v(VPS)}, {s(S_WS,4)}, {s(S_DST2 if tt else S_DST)} offen offset:{t*512} sc1')
        A(f's_add_u32 {s(S_DST)}, {s(S_DST)}, {stride}')
    return f

def role_a3(A, cfg, fail, done):
    w = s(S_WAVE)
    lane_setup(A)
    S_T0 = S_A
    A(f's_mul_i32 {s(S_T0)}, {s(S_IDX)}, 12')
    A(f's_mul_i32 {s(S_TMP)}, {w}, 3')
    A(f's_add_u32 {s(S_T0)}, {s(S_T0)}, {s(S_TMP)}')
    A(f's_lshl_b32 {s(S_B)}, {s(S_T0)}, 5')
    A('v_lshrrev_b32 v70, 1, v79')
    A('v_lshrrev_b32 v71, 4, v70')
    A('v_and_b32 v72, 15, v70')
    A('v_mul_u32_u24 v73, 18, v71'); A('v_add_u32 v73, v73, v72'); A('v_mul_u32_u24 v68, 1152, v73')
    A('v_mul_u32_u24 v73, 144, v71')
    A('v_lshrrev_b32 v71, 1, v72'); A('v_mul_u32_u24 v71, 18, v71'); A('v_add_u32 v73, v73, v71')
    A('v_and_b32 v71, 1, v72'); A('v_add_u32 v73, v73, v71'); A('v_add_u32 v73, 16, v73')
    A('v_mul_u32_u24 v69, 1152, v73')
    A('v_and_b32 v72, 1, v79'); A('v_lshlrev_b32 v72, 4, v72')
    A('v_add_u32 v68, v68, v72'); A('v_add_u32 v69, v69, v72')
    blocks = []
    for t in range(3):
        for ks in range(18):
            def issue(A, t=t, ks=ks):
                off = (ks*36*1152 if ks < 16 else (ks-16)*288*1152) + t*32
                A(f's_add_u32 {s(S_SOFF)}, {s(S_B)}, {off}')
                dma16(A, 68 if ks < 16 else 69, s(S_SOFF))
            blocks.append(dict(issue=issue, dst=lambda half, t=t, ks=ks: a(t*72 + ks*4 + 2*half, 2)))
    block_loader(A, blocks, KA_AWO, 576*1152, per_round=27)
    VL16, VRD, VPOLL, VFLAG, VZERO, VT, VPS = 60, 61, 62, 63, 64, 65, 66
    A(f'v_lshlrev_b32 {v(VL16)}, 4, v79')
    A(f'v_mov_b32 {v(VZERO)}, 0')
    sel_layer(A, S_TMP+2, R_ATTA)
    flagaddr(A, VPOLL, s(S_TMP+2), 64)
    own_flag(A)
    part_store_addr(A, VPS)
    sel_layer(A, S_SRC, WS_OA)
    sel_layer(A, S_DST, WS_PA)
    A(f's_lshl_b32 {s(S_TMP)}, {s(S_T0)}, 9')
    A(f's_add_u32 {s(S_DST)}, {s(S_DST)}, {s(S_TMP)}')
    cfg['barrier_wait'](A)
    P = dict(NT=3, NKS=18, D=3, W=lambda t, ks: a(t*72 + ks*4, 4), ACC=lambda t, tt: t*8+tt*4, RING=24, VL16=VL16, VRD=VRD, VPOLL=VPOLL,
             VFLAG=VFLAG, VZERO=VZERO, VT=VT, nst=6, swap=lambda t: False, epilogue=part_epilogue(3, VPS, SEG_PA), src_stride=SEG_XN)
    gemm_loop(A, cfg, P, fail)
    A(f's_branch {done}')

def role_b3(A, cfg, fail, done):
    w = s(S_WAVE)
    lane_setup(A)
    S_KQ, S_T0 = S_A, S_B
    A(f's_mul_i32 {s(S_KQ)}, {s(S_IDX)}, 43')
    A(f's_lshr_b32 {s(S_KQ)}, {s(S_KQ)}, 7')
    A(f's_mul_i32 {s(S_TMP)}, {s(S_KQ)}, 3')
    A(f's_sub_u32 {s(S_TMP)}, {s(S_IDX)}, {s(S_TMP)}')
    A(f's_mul_i32 {s(S_T0)}, {s(S_TMP)}, 12')
    A(f's_mul_i32 {s(S_TMP)}, {w}, 3')
    A(f's_add_u32 {s(S_T0)}, {s(S_T0)}, {s(S_TMP)}')
    A(f's_mul_i32 {s(S_C)}, {s(S_KQ)}, {1024*1152}')
    A(f's_lshl_b32 {s(S_TMP)}, {s(S_T0)}, 5')
    A(f's_add_u32 {s(S_C)}, {s(S_C)}, {s(S_TMP)}')
    A('v_lshrrev_b32 v68, 1, v79'); A('v_mul_u32_u24 v68, 1152, v68')
    A('v_and_b32 v72, 1, v79'); A('v_lshlrev_b32 v72, 4, v72'); A('v_add_u32 v68, v68, v72')
    WB = 128
    blocks = []
    for ks in range(32):
        for t in range(3):
            def issue(A, t=t, ks=ks):
                A(f's_add_u32 {s(S_SOFF)}, {s(S_C)}, {ks*32*1152 + t*32}')
                dma16(A, 68, s(S_SOFF))
            blocks.append(dict(issue=issue, dst=lambda half, t=t, ks=ks: wreg_lin(t*128 + ks*4 + 2*half, 2, WB)))
    block_loader(A, blocks, KA_WO, 4096*1152, per_round=32)
    VL16, VRD, VPOLL, VFLAG, VZERO, VT, VPS = 60, 61, 62, 63, 64, 65, 66
    A(f'v_lshlrev_b32 {v(VL16)}, 4, v79')
    A(f'v_mov_b32 {v(VZERO)}, 0')
    sel_layer(A, S_TMP+2, R_ATTB)
    A(f's_lshl_b32 {s(S_TMP)}, {s(S_KQ)}, 1')
    A(f's_add_u32 {s(S_TMP+2)}, {s(S_TMP+2)}, {s(S_TMP)}')
    flagaddr(A, VPOLL, s(S_TMP+2), 8)
    own_flag(A)
    part_store_addr(A, VPS)
    sel_layer(A, S_SRC, WS_OB)
    A(f's_lshl_b32 {s(S_TMP)}, {s(S_KQ)}, 16')
    A(f's_add_u32 {s(S_SRC)}, {s(S_SRC)}, {s(S_TMP)}')
    sel_layer(A, S_DST, WS_PB)
    A(f's_mul_i32 {s(S_TMP)}, {s(S_KQ)}, 73728')
    A(f's_add_u32 {s(S_DST)}, {s(S_DST)}, {s(S_TMP)}')
    A(f's_lshl_b32 {s(S_TMP)}, {s(S_T0)}, 9')
    A(f's_add_u32 {s(S_DST)}, {s(S_DST)}, {s(S_TMP)}')
    cfg['barrier_wait'](A)
    P = dict(NT=3, NKS=32, D=3, W=lambda t, ks: wreg_lin(t*128 + ks*4, 4, WB), ACC=lambda t, tt: t*8+tt*4, RING=24, VL16=VL16, VRD=VRD, VPOLL=VPOLL,
             VFLAG=VFLAG, VZERO=VZERO, VT=VT, nst=6, swap=lambda t: False, epilogue=part_epilogue(3, VPS, SEG_PB), src_stride=SEG_OB, KMID=10)
    gemm_loop(A, cfg, P, fail)
    A(f's_branch {done}')

def role_b1(A, cfg, fail, done):
    w = s(S_WAVE)
    lane_setup(A)
    issue_half, consume_half = qkv_loader(A, True)
    issue_half(0); issue_half(1)
    for hf in range(6):
        A(f's_waitcnt vmcnt({18 if hf < 5 else 0})')
        A('s_barrier')
        consume_half(hf)
        A('s_barrier')
        if hf + 2 < 6: issue_half(hf + 2)
    VL16, VRD, VPOLL, VFLAG, VZERO, VT = 64, 65, 66, 67, 68, 69
    A(f'v_lshlrev_b32 {v(VL16)}, 4, v79')
    A(f'v_mov_b32 {v(VZERO)}, 0')
    sel_layer(A, S_TMP+2, R_RA)
    flagaddr(A, VPOLL, s(S_TMP+2), 16)
    own_flag(A)
    sel_layer(A, S_SRC, WS_XNB)
    A(f's_mul_i32 {s(S_DST)}, {s(S_L)}, {QKVX_STRIDE}')
    A(f's_mul_i32 {s(S_TMP)}, {s(S_IDX)}, 24576')
    A(f's_add_u32 {s(S_DST)}, {s(S_DST)}, {s(S_TMP)}')
    A(f's_lshl_b32 {s(S_TMP)}, {w}, 10')
    A(f's_add_u32 {s(S_DST)}, {s(S_DST)}, {s(S_TMP)}')
    A(f's_add_u32 {s(S_DST)}, {s(S_DST)}, {WS_QKVX}')
    cfg['barrier_wait'](A)
    def W(t, ks): return [WQ, WK, WV][t//2](t % 2, ks)
    def ACC(t, tt):
        m = t//2
        return (m*2 + tt)*8 + (t % 2)*4 if m < 2 else 32 + (t % 2)*8 + tt*4
    def epi(A):
        for m in range(2):
            for tt in range(2):
                b = (m*2+tt)*8
                cvt(A, b, b, b+1); cvt(A, b+1, b+2, b+3); cvt(A, b+2, b+4, b+5); cvt(A, b+3, b+6, b+7)
                A(f's_add_u32 {s(S_DST2)}, {s(S_DST)}, {m*8192 + tt*4096}')
                A(f'buffer_store_dwordx4 {v(b,4)}, {v(VL16)}, {s(S_WS,4)}, {s(S_DST2)} offen sc1')
        A(f's_lshl_b32 {s(S_TMP)}, {w}, 10')
        A(f's_add_u32 {s(S_DST2)}, {s(S_DST)}, {s(S_TMP)}')
        A(f's_add_u32 {s(S_DST2)}, {s(S_DST2)}, 16384')
        for t in range(2):
            b = 32 + t*8
            cvt(A, b, b, b+1); cvt(A, b+1, b+2, b+3); cvt(A, b+2, b+4, b+5); cvt(A, b+3, b+6, b+7)
            A(f'buffer_store_dwordx4 {v(b,4)}, {v(VL16)}, {s(S_WS,4)}, {s(S_DST2)} offen offset:{t*1024} sc1')
        A(f's_add_u32 {s(S_DST)}, {s(S_DST)}, {32*24576}')
    P = dict(NT=6, NKS=18, D=2, W=W, ACC=ACC, RING=48, VL16=VL16, VRD=VRD, VPOLL=VPOLL, VFLAG=VFLAG, VZERO=VZERO, VT=VT,
             nst=6, swap=lambda t: t >= 4, epilogue=epi, src_stride=SEG_XN, KMID=6)
    gemm_loop(A, cfg, P, fail)
    A(f's_branch {done}')
```

```python
from roles import *

BIGNEG = 0xff7fffff

def xlane_sum(A, x, t, op='v_add_f32', ror8=True):
    if ror8: A(f'{op}_dpp {v(x)}, {v(x)}, {v(x)} row_ror:8 row_mask:0xf bank_mask:0xf')
    A(f'v_mov_b32 {v(t)}, {v(x)}')
    A(f'v_permlane16_swap_b32 {v(x)}, {v(t)}')
    A(f'{op} {v(x)}, {v(x)}, {v(t)}')
    A(f'v_mov_b32 {v(t)}, {v(x)}')
    A(f'v_permlane32_swap_b32 {v(x)}, {v(t)}')
    A(f'{op} {v(x)}, {v(x)}, {v(t)}')

def role_red(A, cfg, kind, l, fail, done):
    w = s(S_WAVE)
    nparts = {'R0': 0, 'RA': 1, 'RB': 4}[kind]
    final = (kind == 'RB' and l == 1)
    lane_setup(A)
    SX, SO = 48, 52
    S_XS, S_XD, S_PS, S_NS = S_A, S_B, S_C, S_D
    VXA, VPA, VNA, VPOLL, VFLAG, VZERO, VT, VST = 110, 111, 112, 113, 114, 115, 116, 117
    A('v_bfe_u32 v72, v79, 3, 2')
    A('v_lshrrev_b32 v73, 5, v79')
    A(f's_mul_i32 {s(S_TMP)}, {w}, 9')
    A(f'v_add_u32 v73, {s(S_TMP)}, v73')
    A(f'v_mul_u32_u24 {v(VXA)}, 1152, v76')
    A(f'v_lshlrev_b32 v74, 5, v73'); A(f'v_add_u32 {v(VXA)}, {v(VXA)}, v74')
    A(f'v_lshlrev_b32 v74, 3, v72'); A(f'v_add_u32 {v(VXA)}, {v(VXA)}, v74')
    A(f'v_lshlrev_b32 {v(VPA)}, 4, v79')
    A(f's_mul_i32 {s(S_TMP)}, {w}, 4608')
    A(f'v_add_u32 {v(VPA)}, {s(S_TMP)}, {v(VPA)}')
    A(f'v_lshrrev_b32 {v(VNA)}, 1, v73'); A(f'v_lshlrev_b32 {v(VNA)}, 10, {v(VNA)}')
    A(f'v_and_b32 v74, 1, v73'); A(f'v_lshlrev_b32 v74, 3, v74'); A(f'v_add_u32 {v(VNA)}, {v(VNA)}, v74')
    A(f'v_lshlrev_b32 v74, 4, v72'); A(f'v_add_u32 v74, v74, v76'); A(f'v_lshlrev_b32 v74, 4, v74')
    A(f'v_add_u32 {v(VNA)}, {v(VNA)}, v74')
    A(f's_and_b32 {s(S_TMP)}, {s(S_IDX)}, 1')
    A(f's_lshr_b32 {s(S_TMP+1)}, {s(S_IDX)}, 1')
    A(f's_lshl_b32 {s(S_TMP+2)}, {s(S_TMP)}, 7')
    A(f'v_add_u32 {v(VNA)}, {s(S_TMP+2)}, {v(VNA)}')
    A(f'v_lshlrev_b32 {v(VST)}, 3, v76')
    A(f'v_mov_b32 {v(VZERO)}, 0')
    A(f's_mul_i32 {s(S_XS)}, {s(S_IDX)}, {8*1152}')
    A(f's_mov_b32 {s(S_XD)}, {s(S_XS)}')
    A(f's_mul_i32 {s(S_PS)}, {s(S_IDX)}, 18432')
    A(f's_mul_i32 {s(S_NS)}, {s(S_TMP+1)}, 18432')
    XB = 2048*1152
    if kind == 'R0' or (kind == 'RA' and l == 0):
        A(f's_load_dwordx2 {s(S_PTR,2)}, {s(S_KA,2)}, {KA_AX}'); A('s_waitcnt lgkmcnt(0)')
        srd_from_ptr(A, SX, S_PTR, XB)
    else:
        for i in range(4): A(f's_mov_b32 {s(SX+i)}, {s(S_WS+i)}')
        A(f's_add_u32 {s(S_XS)}, {s(S_XS)}, {hex(WS_X2 if kind == "RA" else WS_X1[l])}')
    if final:
        A(f's_load_dwordx2 {s(S_PTR,2)}, {s(S_KA,2)}, {KA_OUT}'); A('s_waitcnt lgkmcnt(0)')
        srd_from_ptr(A, SO, S_PTR, XB)
    else:
        for i in range(4): A(f's_mov_b32 {s(SO+i)}, {s(S_WS+i)}')
        if kind != 'R0': A(f's_add_u32 {s(S_XD)}, {s(S_XD)}, {hex(WS_X1[l] if kind == "RA" else WS_X2)}')
    if nparts:
        A(f's_add_u32 {s(S_PS)}, {s(S_PS)}, {hex(WS_PA[l] if kind == "RA" else WS_PB[l])}')
        if kind == 'RA': flagaddr(A, VPOLL, R_A3[l], 12)
        else: flagaddr(A, VPOLL, R_B3[l], 48)
    if not final:
        A(f's_add_u32 {s(S_NS)}, {s(S_NS)}, {hex({"R0": WS_XNA[0], "RA": WS_XNB[l], "RB": WS_XNA[1]}[kind])}')
    own_flag(A)
    A(f's_mov_b32 {s(S_EXLO)}, -1'); A(f's_mov_b32 {s(S_EXLO+1)}, 0')
    cfg['barrier_wait'](A)
    A(f's_mov_b32 {s(S_SEG)}, 0')
    A(f's_mov_b32 {s(S_X)}, 0')
    loop = A.newlabel('rloop')
    A.label(loop)
    fst(A, cfg, 0, S_SEG)
    if nparts:
        A(f's_add_u32 {s(S_TGT)}, {s(S_SEG)}, 1')
        poll_block(A, cfg, VPOLL, s(S_TGT), VFLAG, fail)
    fst(A, cfg, 1, S_SEG)
    XR = 20; PR = 128
    def masked(i, f):
        if i == 4: A(f's_mov_b64 exec, {s(S_EXLO,2)}')
        f()
        if i == 4: A('s_mov_b64 exec, -1')
    for i in range(5):
        masked(i, lambda: A(f'buffer_load_dwordx2 {v(XR+2*i,2)}, {v(VXA)}, {s(SX,4)}, {s(S_XS)} offen offset:{i*64}'))
    for p in range(nparts):
        A(f's_add_u32 {s(S_TMP)}, {s(S_PS)}, {p*73728}')
        A(f's_add_u32 {s(S_TMP+1)}, {s(S_TMP)}, 4096')
        for i in range(5):
            masked(i, lambda: A(f'buffer_load_dwordx4 {v(PR+p*20+i*4,4)}, {v(VPA)}, {s(S_WS,4)}, {s(S_TMP+1 if i == 4 else S_TMP)} offen offset:{(i%4)*1024}'))
    A('s_waitcnt vmcnt(0)')
    fst(A, cfg, 2, S_SEG)
    HI = 118
    if True:
        A(f'v_mov_b32 {v(HI)}, 0xffff0000')
    for i in range(5):
        X = 4*i
        def body():
            A(f'v_lshlrev_b32 {v(X)}, 16, {v(XR+2*i)}')
            A(f'v_and_b32 {v(X+1)}, {v(HI)}, {v(XR+2*i)}')
            A(f'v_lshlrev_b32 {v(X+2)}, 16, {v(XR+2*i+1)}')
            A(f'v_and_b32 {v(X+3)}, {v(HI)}, {v(XR+2*i+1)}')
            if nparts:
                y = PR + i*4
                if nparts == 4:
                    for (d, o) in ((0, 1), (2, 3), (0, 2)):
                        for hh in (0, 2):
                            A(f'v_pk_add_f32 {v(y+d*20+hh,2)}, {v(y+d*20+hh,2)}, {v(y+o*20+hh,2)}')
                cvt(A, y, y, y+1); cvt(A, y+1, y+2, y+3)
                A(f'v_lshlrev_b32 {v(y+4-4+2)}, 16, {v(y)}') if False else None
                A(f'v_and_b32 {v(y+2)}, {v(HI)}, {v(y)}')
                A(f'v_and_b32 {v(y+3)}, {v(HI)}, {v(y+1)}')
                A(f'v_lshlrev_b32 {v(y)}, 16, {v(y)}')
                A(f'v_lshlrev_b32 {v(y+1)}, 16, {v(y+1)}')
                A(f'v_add_f32 {v(X)}, {v(X)}, {v(y)}')
                A(f'v_add_f32 {v(X+1)}, {v(X+1)}, {v(y+2)}')
                A(f'v_add_f32 {v(X+2)}, {v(X+2)}, {v(y+1)}')
                A(f'v_add_f32 {v(X+3)}, {v(X+3)}, {v(y+3)}')
                cvt(A, XR+2*i, X, X+1); cvt(A, XR+2*i+1, X+2, X+3)
                A(f'buffer_store_dwordx2 {v(XR+2*i,2)}, {v(VXA)}, {s(SO,4)}, {s(S_XD)} offen offset:{i*64}' + ('' if final else ' sc1'))
                if not final:
                    A(f'v_lshlrev_b32 {v(X)}, 16, {v(XR+2*i)}')
                    A(f'v_and_b32 {v(X+1)}, {v(HI)}, {v(XR+2*i)}')
                    A(f'v_lshlrev_b32 {v(X+2)}, 16, {v(XR+2*i+1)}')
                    A(f'v_and_b32 {v(X+3)}, {v(HI)}, {v(XR+2*i+1)}')
        masked(i, body)
    if not final:
        SM, M2, T1 = 40, 41, 42
        A(f'v_pk_add_f32 {v(44,2)}, {v(0,2)}, {v(2,2)}')
        for i in range(1, 4):
            A(f'v_pk_add_f32 {v(44,2)}, {v(44,2)}, {v(4*i,2)}')
            A(f'v_pk_add_f32 {v(44,2)}, {v(44,2)}, {v(4*i+2,2)}')
        def b4():
            A(f'v_pk_add_f32 {v(44,2)}, {v(44,2)}, {v(16,2)}')
            A(f'v_pk_add_f32 {v(44,2)}, {v(44,2)}, {v(18,2)}')
        masked(4, b4)
        A(f'v_add_f32 {v(SM)}, v44, v45')
        xlane_sum(A, SM, T1)
        A(f'v_mul_f32 {v(SM)}, {hex(f32(1.0/144))}, {v(SM)}')
        A(f'v_mov_b32 {v(M2)}, 0')
        for i in range(5):
            def b5():
                for r in range(4):
                    A(f'v_sub_f32 {v(46)}, {v(4*i+r)}, {v(SM)}')
                    A(f'v_fmac_f32 {v(M2)}, v46, v46')
            masked(i, b5)
        xlane_sum(A, M2, T1)
        A(f's_lshl_b32 {s(S_TMP)}, {w}, 6')
        A(f's_add_u32 {s(S_TMP)}, {s(S_TMP)}, {s(S_X)}')
        A(f'v_add_u32 {v(T1)}, {s(S_TMP)}, {v(VST)}')
        A('s_mov_b64 exec, 0xff')
        A(f'ds_write_b64 {v(T1)}, {v(SM,2)}')
        A('s_mov_b64 exec, -1')
        A(f'v_add_u32 {v(T1)}, {s(S_X)}, {v(VST)}')
        A('s_waitcnt lgkmcnt(0)')
        fst(A, cfg, 3, S_SEG)
        A('s_barrier')
        fst(A, cfg, 4, S_SEG)
        for ww in range(4):
            A(f'ds_read_b64 {v(48+2*ww,2)}, {v(T1)} offset:{ww*64}')
        A(f's_xor_b32 {s(S_X)}, {s(S_X)}, 256')
        A('s_waitcnt lgkmcnt(0)')
        A('v_add_f32 v56, v48, v50'); A('v_add_f32 v57, v52, v54'); A('v_add_f32 v56, v56, v57')
        A('v_mul_f32 v56, 0.25, v56')
        A('v_add_f32 v57, v49, v51'); A('v_add_f32 v58, v53, v55'); A('v_add_f32 v57, v57, v58')
        A('v_mov_b32 v58, 0')
        for ww in range(4):
            A(f'v_sub_f32 v59, {v(48+2*ww)}, v56')
            A(f'v_fmac_f32 v58, v59, v59')
        A(f'v_fmac_f32 v57, {hex(f32(144.0))}, v58')
        A(f'v_mov_b32 v59, {hex(f32(1e-5))}')
        A(f'v_fmac_f32 v59, {hex(f32(1.0/576))}, v57')
        A('v_rsq_f32 v59, v59')
        A(f's_add_u32 {s(S_TMP+1)}, {s(S_NS)}, 4096')
        for i in range(5):
            def b6():
                X = 4*i
                for r in range(4):
                    A(f'v_sub_f32 {v(X+r)}, {v(X+r)}, v56')
                for r in range(4):
                    A(f'v_mul_f32 {v(X+r)}, {v(X+r)}, v59')
                cvt(A, X, X, X+1); cvt(A, X+1, X+2, X+3)
                A(f'buffer_store_dwordx2 {v(X,2)}, {v(VNA)}, {s(S_WS,4)}, {s(S_TMP+1 if i == 4 else S_NS)} offen offset:{(i%4)*1024} sc1')
            masked(i, b6)
    fst(A, cfg, 5, S_SEG)
    A(f's_add_u32 {s(S_XS)}, {s(S_XS)}, {SEG_X}')
    A(f's_add_u32 {s(S_XD)}, {s(S_XD)}, {SEG_X}')
    A(f's_add_u32 {s(S_PS)}, {s(S_PS)}, {SEG_PA if kind == "RA" else SEG_PB}')
    A(f's_add_u32 {s(S_NS)}, {s(S_NS)}, {SEG_XN}')
    A(f's_add_u32 {s(S_SEG)}, {s(S_SEG)}, 1')
    if not final:
        A('s_waitcnt vmcnt(0)')
        fst(A, cfg, 6, S_SEG, 33)
        publish(A, s(S_SEG), VT, VZERO)
    A(f's_cmp_lt_u32 {s(S_SEG)}, 64')
    A(f's_cbranch_scc1 {loop}')
    A(f's_branch {done}')

def causal_masks(A, sbase, vt=72):
    A(f'v_lshlrev_b32 {v(vt)}, 2, v77')
    for r in range(4):
        A(f'v_add_u32 {v(vt+1)}, {r}, {v(vt)}')
        A(f'v_cmp_gt_u32 {s(sbase+2*r,2)}, {v(vt+1)}, v78')

def role_attb(A, cfg, fail, done):
    w = s(S_WAVE)
    lane_setup(A)
    S_HH = S_A
    A(f's_lshl_b32 {s(S_HH)}, {s(S_IDX)}, 2')
    A(f's_add_u32 {s(S_HH)}, {s(S_HH)}, {w}')
    SMK = 46
    causal_masks(A, SMK)
    VL16, VP1, VP2, VFLAG, VZERO, VT, VSC, VNEG, VL8 = 220, 221, 222, 223, 224, 225, 226, 227, 228
    NEWKV = not cfg.get('OLDCHAIN')
    A(f'v_lshlrev_b32 {v(VL16)}, 4, v79')
    A(f'v_lshlrev_b32 {v(VL8)}, 3, v79')
    A(f'v_mov_b32 {v(VZERO)}, 0')
    A(f'v_mov_b32 {v(VSC)}, {hex(f32((128 ** -0.5) * 1.4426950408889634))}')
    A(f'v_mov_b32 {v(VNEG)}, {hex(BIGNEG)}')
    sel_layer(A, S_TMP+2, R_B1); A(f's_add_u32 {s(S_TMP+2)}, {s(S_TMP+2)}, {s(S_HH)}')
    flagaddr(A, VP1, s(S_TMP+2), 4)
    sel_layer(A, S_TMP+2, R_CHAIN); A(f's_add_u32 {s(S_TMP+2)}, {s(S_TMP+2)}, {s(S_HH)}')
    flagaddr(A, VP2, s(S_TMP+2), 4)
    own_flag(A)
    S_QX, S_KV, S_OB = S_B, S_C, S_D
    A(f's_mul_i32 {s(S_QX)}, {s(S_L)}, {QKVX_STRIDE}')
    A(f's_mul_i32 {s(S_TMP)}, {s(S_HH)}, 24576')
    A(f's_add_u32 {s(S_QX)}, {s(S_QX)}, {s(S_TMP)}')
    A(f's_add_u32 {s(S_QX)}, {s(S_QX)}, {WS_QKVX}')
    A(f's_mul_i32 {s(S_KV)}, {s(S_L)}, {KVM_STRIDE}')
    A(f's_lshl_b32 {s(S_TMP)}, {s(S_HH)}, 13')
    A(f's_add_u32 {s(S_KV)}, {s(S_KV)}, {s(S_TMP)}')
    A(f's_add_u32 {s(S_KV)}, {s(S_KV)}, {WS_KVM}')
    sel_layer(A, S_OB, WS_OB)
    A(f's_lshr_b32 {s(S_TMP)}, {s(S_HH)}, 3'); A(f's_lshl_b32 {s(S_TMP)}, {s(S_TMP)}, 16')
    A(f's_add_u32 {s(S_OB)}, {s(S_OB)}, {s(S_TMP)}')
    A(f's_and_b32 {s(S_TMP)}, {s(S_HH)}, 7'); A(f's_lshl_b32 {s(S_TMP)}, {s(S_TMP)}, 12')
    A(f's_add_u32 {s(S_OB)}, {s(S_OB)}, {s(S_TMP)}')
    cfg['barrier_wait'](A)
    A(f's_mov_b32 {s(S_SEG)}, 0')
    Q = lambda tt, kk: tt*16 + kk*4
    KX = lambda kt, kk: 32 + kt*16 + kk*4
    VX = lambda et: 64 + et*4
    KM = lambda kk: 96 + kk*4
    VM = lambda et: 112 + et*2
    S00, S01, S11, SM0, SM1 = 128, 132, 136, 140, 144
    O = lambda et, tt: 148 + ((tt*4 + et//2)*2 + (et & 1))*4
    loop = A.newlabel('bloop')
    A.label(loop)
    A(f's_add_u32 {s(S_TGT)}, {s(S_SEG)}, 1')
    fst(A, cfg, 0, S_SEG)
    poll_block(A, cfg, VP1, s(S_TGT), VFLAG, fail)
    fst(A, cfg, 1, S_SEG)
    for blk in range(6):
        A(f's_add_u32 {s(S_TMP)}, {s(S_QX)}, {blk*4096}')
        for j in range(4):
            A(f'buffer_load_dwordx4 {v((blk*4+j)*4,4)}, {v(VL16)}, {s(S_WS,4)}, {s(S_TMP)} offen offset:{j*1024}')
    A('s_waitcnt vmcnt(8)')
    for kk in range(4):
        for (acc, kt, tt) in ((S00, 0, 0), (S01, 0, 1), (S11, 1, 1)):
            A(f'{MF} {v(acc,4)}, {v(KX(kt,kk),4)}, {v(Q(tt,kk),4)}, {"0" if kk == 0 else v(acc,4)}')
    fst(A, cfg, 2, S_SEG)
    poll_block(A, cfg, VP2, s(S_TGT), VFLAG, fail)
    fst(A, cfg, 3, S_SEG)
    A(f's_add_u32 {s(S_TMP)}, {s(S_KV)}, 4096')
    for j in range(4): A(f'buffer_load_dwordx4 {v(KM(j),4)}, {v(VL16)}, {s(S_WS,4)}, {s(S_KV)} offen offset:{j*1024}')
    if NEWKV:
        for j in range(4): A(f'buffer_load_dwordx2 {v(112+2*j,2)}, {v(VL8)}, {s(S_WS,4)}, {s(S_TMP)} offen offset:{j*512}')
    else:
        for j in range(4): A(f'buffer_load_dwordx4 {v(112+4*j,4)}, {v(VL16)}, {s(S_WS,4)}, {s(S_TMP)} offen offset:{j*1024}')
    for r in range(4):
        A(f'v_cndmask_b32 {v(S00+r)}, {v(S00+r)}, {v(VNEG)}, {s(SMK+2*r,2)}')
        A(f'v_cndmask_b32 {v(S11+r)}, {v(S11+r)}, {v(VNEG)}, {s(SMK+2*r,2)}')
    A('s_waitcnt vmcnt(4)')
    fst(A, cfg, 4, S_SEG)
    for kk in range(4):
        for (acc, tt) in ((SM0, 0), (SM1, 1)):
            A(f'{MF} {v(acc,4)}, {v(KM(kk),4)}, {v(Q(tt,kk),4)}, {"0" if kk == 0 else v(acc,4)}')
    MX = [0, 2]; T = 4; NM = [6, 8]; SUM = [10, 11]
    xs = [[S00], [S01, S11]]; ms = [SM0, SM1]
    NM_ = 2 if NEWKV else 4
    allv = lambda tt: [x+r for x in xs[tt] for r in range(4)] + [ms[tt]+r for r in range(NM_)]
    for tt in range(2):
        vals = allv(tt)
        mx = MX[tt]
        A(f'v_max3_f32 {v(mx)}, {v(vals[0])}, {v(vals[1])}, {v(vals[2])}')
        rest = vals[3:]
        while len(rest) >= 2:
            A(f'v_max3_f32 {v(mx)}, {v(mx)}, {v(rest[0])}, {v(rest[1])}'); rest = rest[2:]
        if rest: A(f'v_max_f32 {v(mx)}, {v(mx)}, {v(rest[0])}')
    for tt in range(2):
        xlane_sum(A, MX[tt], T + tt, op='v_max_f32', ror8=False)
    for tt in range(2):
        A(f'v_mul_f32 {v(NM[tt])}, {hex(f32(-(128 ** -0.5) * 1.4426950408889634))}, {v(MX[tt])}')
        if not NEWKV: A(f'v_add_f32 {v(NM[tt]+1)}, -1.0, {v(NM[tt])}')
    for tt in range(2):
        for x in xs[tt]:
            for r in range(4): A(f'v_fma_f32 {v(x+r)}, {v(x+r)}, {v(VSC)}, {v(NM[tt])}')
        for r in range(NM_): A(f'v_fma_f32 {v(ms[tt]+r)}, {v(ms[tt]+r)}, {v(VSC)}, {v(NM[tt] + (0 if NEWKV else 1))}')
    for tt in range(2):
        for x in allv(tt): A(f'v_exp_f32 {v(x)}, {v(x)}')
    P0, P1, PM0, PM1 = 12, 16, 20, (24 if NEWKV else 22)
    cvt(A, P0, S00, S00+1); cvt(A, P0+1, S00+2, S00+3)
    A(f'v_mov_b32 {v(P0+2)}, 0'); A(f'v_mov_b32 {v(P0+3)}, 0')
    cvt(A, P1, S01, S01+1); cvt(A, P1+1, S01+2, S01+3); cvt(A, P1+2, S11, S11+1); cvt(A, P1+3, S11+2, S11+3)
    if NEWKV:
        for (pm, sm) in ((PM0, SM0), (PM1, SM1)):
            cvt(A, pm, sm, sm+1); A(f'v_mov_b32 {v(pm+1)}, 0'); A(f'v_mov_b32 {v(pm+2)}, 0'); A(f'v_mov_b32 {v(pm+3)}, {v(pm)}')
    else:
        cvt(A, PM0, SM0, SM0+1); cvt(A, PM0+1, SM0+2, SM0+3); cvt(A, PM1, SM1, SM1+1); cvt(A, PM1+1, SM1+2, SM1+3)
    for et in range(8):
        for tt in range(2):
            A(f'{MF} {v(O(et,tt),4)}, {v(VX(et),4)}, {v([P0,P1][tt],4)}, 0')
    for tt in range(2):
        vals = allv(tt)
        A(f'v_add_f32 {v(SUM[tt])}, {v(vals[0])}, {v(vals[1])}')
        for x in vals[2:]: A(f'v_add_f32 {v(SUM[tt])}, {v(SUM[tt])}, {v(x)}')
    A('s_waitcnt vmcnt(0)')
    for et in range(8):
        for tt in range(2):
            if NEWKV: A(f'{MF16} {v(O(et,tt),4)}, {v(112 + 2*(et>>1),2)}, {v([PM0,PM1][tt] + 2*(et&1),2)}, {v(O(et,tt),4)}')
            else: A(f'{MF16} {v(O(et,tt),4)}, {v(VM(et),2)}, {v([PM0,PM1][tt],2)}, {v(O(et,tt),4)}')
    for tt in range(2):
        xlane_sum(A, SUM[tt], T + tt, ror8=False)
    for tt in range(2): A(f'v_rcp_f32 {v(SUM[tt])}, {v(SUM[tt])}')
    for tt in range(2):
        A(f's_add_u32 {s(S_TMP)}, {s(S_OB)}, {tt*32768}')
        for kk in range(4):
            b = O(2*kk, tt)
            for r in range(8): A(f'v_mul_f32 {v(b+r)}, {v(b+r)}, {v(SUM[tt])}')
            cvt(A, b, b, b+1); cvt(A, b+1, b+2, b+3); cvt(A, b+2, b+4, b+5); cvt(A, b+3, b+6, b+7)
            A(f'buffer_store_dwordx4 {v(b,4)}, {v(VL16)}, {s(S_WS,4)}, {s(S_TMP)} offen offset:{kk*1024} sc1')
    fst(A, cfg, 5, S_SEG)
    A(f's_add_u32 {s(S_QX)}, {s(S_QX)}, {32*24576}')
    A(f's_add_u32 {s(S_KV)}, {s(S_KV)}, {32*8192}')
    A(f's_add_u32 {s(S_OB)}, {s(S_OB)}, {SEG_OB}')
    A(f's_add_u32 {s(S_SEG)}, {s(S_SEG)}, 1')
    A('s_waitcnt vmcnt(0)')
    fst(A, cfg, 6, S_SEG, 33)
    publish(A, s(S_SEG), VT, VZERO)
    A(f's_cmp_lt_u32 {s(S_SEG)}, 64')
    A(f's_cbranch_scc1 {loop}')
    A(f's_branch {done}')

NSLOT = 10
def role_atta(A, cfg, fail, done):
    w = s(S_WAVE)
    lane_setup(A)
    S_HH, S_TT, S_HD = S_A, S_B, S_C
    A(f's_lshr_b32 {s(S_HH)}, {w}, 1')
    A(f's_and_b32 {s(S_TT)}, {w}, 1')
    A(f's_lshl_b32 {s(S_HD)}, {s(S_IDX)}, 1')
    A(f's_add_u32 {s(S_HD)}, {s(S_HD)}, {s(S_HH)}')
    SMK = 46
    causal_masks(A, SMK)
    VKB, VVB, VL8, VL16, VPOLL, VFLAG, VZERO, VT, VNEG, MK2, MK3, VO1, VO2 = 150, 151, 152, 153, 154, 155, 156, 157, 158, 159, 160, 161, 162
    SCP, NMP = 164, 166
    A(f'v_lshlrev_b32 {v(VL8)}, 3, v79')
    A(f'v_lshlrev_b32 {v(VL16)}, 4, v79')
    A(f's_lshl_b32 {s(S_TMP)}, {s(S_HH)}, 12')
    A(f'v_add_u32 {v(VKB)}, {s(S_TMP)}, {v(VL8)}')
    A(f'v_add_u32 {v(VVB)}, {s(S_TMP)}, {v(VL16)}')
    A(f'v_mov_b32 {v(VZERO)}, 0')
    A(f'v_mov_b32 {v(VNEG)}, {hex(BIGNEG)}')
    SC = (18 ** -0.5) * 1.4426950408889634
    A(f'v_mov_b32 {v(SCP)}, {hex(f32(SC))}'); A(f'v_mov_b32 {v(SCP+1)}, {hex(f32(SC))}')
    for i in range(4): A(f'v_mov_b32 {v(128+i)}, 0x3f803f80')
    A(f's_and_b32 {s(S_TMP)}, {s(S_IDX)}, 3')
    A(f'v_cmp_eq_u32 vcc, {s(S_TMP)}, v77')
    A(f's_mov_b64 {s(54,2)}, vcc')
    A(f'v_cndmask_b32 {v(MK2)}, 0, -1, vcc')
    A(f'v_mov_b32 {v(MK3)}, {v(MK2)}')
    A(f's_cmp_eq_u32 {s(S_HH)}, 0')
    A(f's_cselect_b32 {s(S_TMP)}, -1, 0')
    A(f'v_and_b32 {v(MK2)}, {s(S_TMP)}, {v(MK2)}')
    A(f's_not_b32 {s(S_TMP)}, {s(S_TMP)}')
    A(f'v_and_b32 {v(MK3)}, {s(S_TMP)}, {v(MK3)}')
    A(f's_cselect_b64 {s(56,2)}, 0, -1') if False else None
    A(f's_cmp_eq_u32 {s(S_HH)}, 0')
    A(f's_cselect_b64 {s(56,2)}, 0, -1')
    A(f's_lshl_b32 {s(S_TMP)}, {s(S_HH)}, 3')
    A(f'v_add_u32 {v(VO1)}, {s(S_TMP)}, {v(VL16)}')
    A(f's_bfe_u32 {s(S_TMP)}, {s(S_HD)}, 0x10003')
    A(f's_lshl_b32 {s(S_TMP)}, {s(S_TMP)}, 3')
    A(f's_lshl_b32 {s(S_TMP+1)}, {s(S_HH)}, 2')
    A(f's_add_u32 {s(S_TMP)}, {s(S_TMP)}, {s(S_TMP+1)}')
    A(f'v_add_u32 {v(VO2)}, {s(S_TMP)}, {v(VL16)}')
    S_O1, S_O2, S_D1, S_D2, S_Q1, S_Q2, S_LD = 58, 59, 60, 61, 64, 65, 66
    sel_layer(A, S_O1, WS_OA)
    A(f's_mul_i32 {s(S_TMP)}, {s(S_TT)}, 18432')
    A(f's_add_u32 {s(S_O1)}, {s(S_O1)}, {s(S_TMP)}')
    A(f's_lshr_b32 {s(S_TMP)}, {s(S_HD)}, 4'); A(f's_add_u32 {s(S_TMP)}, {s(S_TMP)}, 16'); A(f's_lshl_b32 {s(S_TMP)}, {s(S_TMP)}, 10')
    A(f's_add_u32 {s(S_O2)}, {s(S_O1)}, {s(S_TMP)}')
    A(f's_lshr_b32 {s(S_TMP)}, {s(S_HD)}, 1'); A(f's_lshl_b32 {s(S_TMP)}, {s(S_TMP)}, 10')
    A(f's_add_u32 {s(S_O1)}, {s(S_O1)}, {s(S_TMP)}')
    sel_layer(A, S_Q1, WS_QKVA)
    A(f's_lshl_b32 {s(S_TMP)}, {s(S_HD)}, 10')
    A(f's_lshr_b32 {s(S_TMP+1)}, {s(S_HD)}, 3'); A(f's_add_u32 {s(S_TMP+1)}, {s(S_TMP+1)}, 32'); A(f's_lshl_b32 {s(S_TMP+1)}, {s(S_TMP+1)}, 10')
    A(f's_add_u32 {s(S_Q2)}, {s(S_Q1)}, {s(S_TMP+1)}')
    A(f's_add_u32 {s(S_Q1)}, {s(S_Q1)}, {s(S_TMP)}')
    A(f's_add_u32 {s(S_TMP)}, {s(S_TT)}, 1'); A(f's_mul_i32 {s(S_TMP)}, {s(S_TMP)}, 36864')
    A(f's_add_u32 {s(S_D1)}, {s(S_Q1)}, {s(S_TMP)}')
    A(f's_add_u32 {s(S_D2)}, {s(S_Q2)}, {s(S_TMP)}')
    A(f's_lshl_b32 {s(S_TMP)}, {s(S_TT)}, 9')
    A(f's_add_u32 {s(S_Q1)}, {s(S_Q1)}, {s(S_TMP)}')
    A(f's_add_u32 {s(S_Q2)}, {s(S_Q2)}, {s(S_TMP)}')
    A(f's_lshl_b32 {s(S_LD)}, {s(S_HH)}, 12')
    A(f's_lshl_b32 {s(S_TMP)}, {s(S_TT)}, 11')
    A(f's_add_u32 {s(S_LD)}, {s(S_LD)}, {s(S_TMP)}')
    sel_layer(A, S_TMP+2, R_A1)
    flagaddr(A, VPOLL, s(S_TMP+2), 36)
    own_flag(A)
    for i in range(4): A(f'v_mov_b32 {v(i)}, 0')
    A('v_lshlrev_b32 v4, 4, v75')
    A('v_add_u32 v5, 0x10000, v4')
    for i in range(NSLOT*8192//4096):
        A(f'ds_write_b128 {"v4" if i < 16 else "v5"}, v[0:3] offset:{(i % 16)*4096}')
    A('s_waitcnt lgkmcnt(0)')
    cfg['barrier_wait'](A)
    A('s_barrier')
    S_SL = 68
    for m in range(9): A(f's_mov_b32 {s(S_SL+m)}, {((2+m) % NSLOT)*8192}')
    A(f's_mov_b32 {s(S_SEG)}, 0')
    l1 = A.newlabel('aatt1')
    A(f's_cmp_eq_u32 {s(S_TT)}, 1')
    A(f's_cbranch_scc1 {l1}')
    KR, VR, QF, OM, OL, OD, ONES = 72, 88, 112, 116, 120, 124, 128
    VK = lambda m: 132 + m
    VV = lambda m: 141 + m
    for tt in range(2):
        if tt: A.label(l1); A.flush()
        loop = A.newlabel('aloop')
        A.label(loop)
        A(f's_add_u32 {s(S_TGT)}, {s(S_SEG)}, 1')
        fst(A, cfg, 0, S_SEG)
        poll_block(A, cfg, VPOLL, s(S_TGT), VFLAG, fail)
        fst(A, cfg, 1, S_SEG)
        A(f's_add_u32 {s(S_TMP)}, {s(S_LD)}, {s(S_SL+8)}')
        A(f's_mov_b32 m0, {s(S_TMP)}')
        A(f'buffer_load_dwordx4 {v(VL16)}, {s(S_WS,4)}, {s(S_D1)} offen lds')
        A(f's_add_u32 {s(S_TMP)}, {s(S_TMP)}, 1024')
        A(f's_mov_b32 m0, {s(S_TMP)}')
        A(f'buffer_load_dwordx4 {v(VL16)}, {s(S_WS,4)}, {s(S_D2)} offen lds')
        A(f'buffer_load_dwordx2 {v(QF,2)}, {v(VL8)}, {s(S_WS,4)}, {s(S_Q1)} offen')
        A(f'buffer_load_dwordx2 {v(QF+2,2)}, {v(VL8)}, {s(S_WS,4)}, {s(S_Q2)} offen')
        for m in range(9):
            A(f'v_add_u32 {v(VK(m))}, {s(S_SL+m)}, {v(VKB)}')
            A(f'v_add_u32 {v(VV(m))}, {s(S_SL+m)}, {v(VVB)}')
        A('s_waitcnt vmcnt(0)')
        fst(A, cfg, 2, S_SEG)
        A(f'v_and_b32 {v(QF+2)}, {v(MK2)}, {v(QF+2)}')
        A(f'v_and_b32 {v(QF+3)}, {v(MK3)}, {v(QF+3)}')
        A('s_barrier')
        fst(A, cfg, 3, S_SEG)
        tiles = list(range(tt, tt+17))
        def kread(i):
            j = tiles[i]
            A(f'ds_read2st64_b64 {v(KR+4*(i%4),4)}, {v(VK(j>>1))} offset0:{j&1} offset1:{2+(j&1)}')
        for i in range(4): kread(i)
        for i in range(17):
            A(f's_waitcnt lgkmcnt({min(3, 16-i)})')
            A(f'{MF} {v(4*tiles[i],4)}, {v(KR+4*(i%4),4)}, {v(QF,4)}, 0')
            if i + 4 < 17: kread(i+4)
        def vread(m):
            A(f'ds_read_b128 {v(VR+8*(m%3),4)}, {v(VV(m))} offset:2048')
            A(f'ds_read_b128 {v(VR+8*(m%3)+4,4)}, {v(VV(m))} offset:3072')
        for m in range(3): vread(m)
        jf, jl = tiles[0], tiles[-1]
        for r in range(4):
            A(f'v_cndmask_b32 {v(4*jf+r)}, {v(VNEG)}, {v(4*jf+r)}, {s(SMK+2*r,2)}')
        for r in range(4):
            A(f'v_cndmask_b32 {v(4*jl+r)}, {v(4*jl+r)}, {v(VNEG)}, {s(SMK+2*r,2)}')
        lok = A.newlabel('aval')
        A(f's_cmp_ge_u32 {s(S_SEG)}, 8')
        A(f's_cbranch_scc1 {lok}')
        for m in range(8):
            A(f's_cmp_ge_u32 {s(S_SEG)}, {8-m}')
            A(f's_cbranch_scc1 {lok}')
            for j in (2*m, 2*m+1):
                if j in tiles:
                    for r in range(4): A(f'v_mov_b32 {v(4*j+r)}, {v(VNEG)}')
        A.label(lok)
        A('s_nop 7')
        fst(A, cfg, 4, S_SEG)
        vals = [4*j+r for j in tiles for r in range(4)]
        MX, MX2, T = 168, 169, 170
        A(f'v_max3_f32 {v(MX)}, {v(vals[0])}, {v(vals[1])}, {v(vals[2])}')
        A(f'v_max3_f32 {v(MX2)}, {v(vals[3])}, {v(vals[4])}, {v(vals[5])}')
        rest = vals[6:]; k = 0
        while len(rest) >= 2:
            d = [MX, MX2][k % 2]; k += 1
            A(f'v_max3_f32 {v(d)}, {v(d)}, {v(rest[0])}, {v(rest[1])}'); rest = rest[2:]
        assert not rest
        A(f'v_max_f32 {v(MX)}, {v(MX)}, {v(MX2)}')
        xlane_sum(A, MX, T, op='v_max_f32', ror8=False)
        A(f'v_mul_f32 {v(NMP)}, {hex(f32(-SC))}, {v(MX)}')
        A(f'v_mov_b32 {v(NMP+1)}, {v(NMP)}')
        for m in range(9):
            for j in (2*m, 2*m+1):
                if j in tiles:
                    for r in (0, 2): A(f'v_pk_fma_f32 {v(4*j+r,2)}, {v(4*j+r,2)}, {v(SCP,2)}, {v(NMP,2)}')
            for j in (2*m, 2*m+1):
                if j in tiles:
                    for r in range(4): A(f'v_exp_f32 {v(4*j+r)}, {v(4*j+r)}')
            b = 8*m
            if 2*m in tiles: cvt(A, b, b, b+1); cvt(A, b+1, b+2, b+3)
            else: A(f'v_mov_b32 {v(b)}, 0'); A(f'v_mov_b32 {v(b+1)}, 0')
            if 2*m+1 in tiles: cvt(A, b+2, b+4, b+5); cvt(A, b+3, b+6, b+7)
            else: A(f'v_mov_b32 {v(b+2)}, 0'); A(f'v_mov_b32 {v(b+3)}, 0')
            A(f's_waitcnt lgkmcnt({2*min(2, 8-m)})')
            c = lambda r: '0' if m == 0 else v(r, 4)
            A(f'{MF} {v(OM,4)}, {v(VR+8*(m%3),4)}, {v(b,4)}, {c(OM)}')
            A(f'{MF} {v(OL,4)}, {v(VR+8*(m%3)+4,4)}, {v(b,4)}, {c(OL)}')
            A(f'{MF} {v(OD,4)}, {v(ONES,4)}, {v(b,4)}, {c(OD)}')
            if m + 3 < 9: vread(m+3)
        A(f'v_rcp_f32 {v(T)}, {v(OD)}')
        for r in range(4):
            A(f'v_mul_f32 {v(OM+r)}, {v(OM+r)}, {v(T)}')
            A(f'v_mul_f32 {v(OL+r)}, {v(OL+r)}, {v(T)}')
        cvt(A, OM, OM, OM+1); cvt(A, OM+1, OM+2, OM+3)
        cvt(A, OL, OL, OL+1); cvt(A, OL+1, OL+2, OL+3)
        A(f'v_cndmask_b32 {v(OL)}, {v(OL)}, {v(OL+1)}, {s(56,2)}')
        A(f'buffer_store_dwordx2 {v(OM,2)}, {v(VO1)}, {s(S_WS,4)}, {s(S_O1)} offen sc1')
        A(f's_mov_b64 exec, {s(54,2)}')
        A(f'buffer_store_dword {v(OL)}, {v(VO2)}, {s(S_WS,4)}, {s(S_O2)} offen sc1')
        A('s_mov_b64 exec, -1')
        fst(A, cfg, 5, S_SEG)
        for r in (S_O1, S_O2): A(f's_add_u32 {s(r)}, {s(r)}, {SEG_XN}')
        for r in (S_D1, S_D2, S_Q1, S_Q2): A(f's_add_u32 {s(r)}, {s(r)}, {SEG_QKVA}')
        for m in range(9):
            A(f's_add_u32 {s(S_SL+m)}, {s(S_SL+m)}, 8192')
            A(f's_cmp_eq_u32 {s(S_SL+m)}, {NSLOT*8192}')
            A(f's_cselect_b32 {s(S_SL+m)}, 0, {s(S_SL+m)}')
        A(f's_add_u32 {s(S_SEG)}, {s(S_SEG)}, 1')
        A('s_waitcnt vmcnt(0)')
        fst(A, cfg, 6, S_SEG, 33)
        publish(A, s(S_SEG), VT, VZERO)
        A(f's_cmp_lt_u32 {s(S_SEG)}, 64')
        A(f's_cbranch_scc1 {loop}')
        A(f's_branch {done}')
```

```python
import sys
from asm import *
from common import *
from chain import *
from roles import *
from roles2 import *
import chain2, chain3

def barrier_arrive(A):
    A('s_waitcnt vmcnt(0)')
    A('s_barrier')
    skip = A.newlabel('gbskip')
    A(f's_cmp_lg_u32 {s(S_WAVE)}, 0')
    A(f's_cbranch_scc1 {skip}')
    A(f's_lshl_b32 {s(S_TMP)}, {s(S_XCC)}, 2')
    A(f'v_mov_b32 v2, {s(S_TMP)}')
    A(f'v_mov_b32 v3, 1')
    A(f's_mov_b64 exec, 1')
    A(f'global_atomic_add v2, v3, {s(S_DBG,2)} offset:{DBG_ARRIVE*4}')
    A(f's_mov_b64 exec, -1')
    A.label(skip)

def barrier_wait(A, vl='v79', sh=0, va=72, vb=73, vz=74):
    re_ = A.newlabel('gbre'); ok = A.newlabel('gbok')
    A(f'v_mov_b32 {v(vz)}, 0')
    tstamp(A, CFG, 100, va, vz)
    A(f's_mov_b32 {s(S_SPIN)}, {SPIN_LIMIT}')
    if sh: A(f'v_lshrrev_b32 {v(va)}, {sh}, {vl}'); A(f'v_and_b32 {v(va)}, 7, {v(va)}')
    else: A(f'v_and_b32 {v(va)}, 7, {vl}')
    A(f'v_lshlrev_b32 {v(va)}, 2, {v(va)}')
    A.label(re_)
    A(f'global_load_dword {v(vb)}, {v(va)}, {s(S_DBG,2)} offset:{DBG_ARRIVE*4} sc1')
    A('s_waitcnt vmcnt(0)')
    A(f'v_readlane_b32 {s(S_TMP)}, {v(vb)}, 0')
    for i in range(1, 8):
        A(f'v_readlane_b32 {s(S_TMP+1)}, {v(vb)}, {i}')
        A(f's_add_u32 {s(S_TMP)}, {s(S_TMP)}, {s(S_TMP+1)}')
    A(f's_cmp_ge_u32 {s(S_TMP)}, 256')
    A(f's_cbranch_scc1 {ok}')
    spin_check(A, re_, 'L_FAIL')
    A.label(ok)
    tstamp(A, CFG, 101, va, vz)

def build(cfg):
    A = Asm()
    CFG.clear(); CFG.update(cfg)
    A.raw(open('cdna_kernels/' + KNAME + '.s.ref').read().split('; Override launch')[0].rstrip('\n'))
    A.raw('; Override launch geometry by editing the next line (default: block=256,')
    A.raw('; @launch grid=(256,1,1) block=(256,1,1) lds=163840')
    A.raw('.amdgcn_target "amdgcn-amd-amdhsa--gfx950"')
    A.raw('.text')
    A.raw(f'.globl {KNAME}_kernel')
    A.raw('.p2align 8')
    A.raw(f'.type {KNAME}_kernel,@function')
    A.raw(f'{KNAME}_kernel:')
    A(f's_cmp_ge_u32 {s(S_WG)}, 256')
    A('s_cbranch_scc1 L_END')
    A(f's_load_dwordx2 {s(S_PTR,2)}, {s(S_KA,2)}, {KA_WS}')
    A(f's_load_dwordx2 {s(S_DBG,2)}, {s(S_KA,2)}, {KA_DBG}')
    A(f's_getreg_b32 {s(S_XCC)}, hwreg(HW_REG_XCC_ID, 0, 4)')
    A(f'v_lshrrev_b32 v1, 6, v0')
    A(f'v_readfirstlane_b32 {s(S_WAVE)}, v1')
    A('s_waitcnt lgkmcnt(0)')
    srd_from_ptr(A, S_WS, S_PTR, WS_SIZE)
    A(f's_and_b32 {s(S_XCC)}, {s(S_XCC)}, 7')
    sk = A.newlabel('tk')
    A(f's_cmp_lg_u32 {s(S_WAVE)}, 0')
    A(f's_cbranch_scc1 {sk}')
    A(f's_lshl_b32 {s(S_TMP)}, {s(S_XCC)}, 2')
    A(f'v_mov_b32 v2, {s(S_TMP)}')
    A(f'v_mov_b32 v3, 1')
    A(f's_mov_b64 exec, 1')
    A(f'global_atomic_add v4, v2, v3, {s(S_DBG,2)} offset:{DBG_TICKET*4} sc0')
    A('s_waitcnt vmcnt(0)')
    A(f'v_mov_b32 v5, 0')
    A(f'ds_write_b32 v5, v4')
    A(f's_mov_b64 exec, -1')
    A.label(sk)
    A(f's_cmp_ge_u32 {s(S_WG)}, {CLEAR_ONES_WG}')
    A(f's_cselect_b32 {s(S_TMP)}, -1, 0')
    for i in range(4): A(f'v_mov_b32 {v(4+i)}, {s(S_TMP)}')
    A(f's_lshl_b32 {s(S_TMP+1)}, {s(S_WG)}, 13')
    A(f'v_lshlrev_b32 v2, 4, v0')
    A(f'buffer_store_dwordx4 v[4:7], v2, {s(S_WS,4)}, {s(S_TMP+1)} offen sc1')
    A(f's_add_u32 {s(S_TMP+1)}, {s(S_TMP+1)}, 4096')
    A(f'buffer_store_dwordx4 v[4:7], v2, {s(S_WS,4)}, {s(S_TMP+1)} offen sc1')
    A('s_waitcnt lgkmcnt(0)')
    A('s_barrier')
    A(f'v_mov_b32 v5, 0')
    A(f'ds_read_b32 v4, v5')
    A('s_waitcnt lgkmcnt(0)')
    A(f'v_readfirstlane_b32 {s(S_ROLE)}, v4')
    barrier_arrive(A)
    A(f's_cmp_ge_u32 {s(S_ROLE)}, 32')
    A('s_cbranch_scc1 L_FAIL')
    A(f's_lshl_b32 {s(S_TMP)}, {s(S_XCC)}, 5')
    A(f's_add_u32 {s(S_ROLE)}, {s(S_ROLE)}, {s(S_TMP)}')
    cfg['barrier_wait'] = barrier_wait
    cfg['barrier_wait_chain'] = lambda A: barrier_wait(A, 'v0', 4, 8, 9, 10)
    A('v_mov_b32 v74, 0')
    tstamp(A, CFG, 102, 72, 74)
    DONE = 'L_DUMP' if cfg.get('FINE') else 'L_END'
    only = cfg.get('ONLY')
    T = []
    def add(name, r0, n, l, fn):
        if only is not None and name not in only.split(','): return
        T.append((name, r0, n, l, fn))
    for l in range(2):
        add('chain', R_CHAIN[l], 32, l, 'chain'); add('b1', R_B1[l], 32, l, 'b1')
        add('a1', R_A1[l], N_A1, l, 'a1'); add('atta', R_ATTA[l], N_ATTA, l, 'atta'); add('a3', R_A3[l], N_A3, l, 'a3')
        add('attb', R_ATTB[l], N_ATTB, l, 'attb'); add('b3', R_B3[l], N_B3, l, 'b3')
        add('ra', R_RA[l], 4, l, f'ra{l}'); add('rb', R_RB[l], N_RB, l, f'rb{l}')
    add('r0', R_R0, 4, 0, 'r0')
    for (name, r0, n, l, fn) in T:
        nx = A.newlabel('disp')
        A(f's_sub_u32 {s(S_IDX)}, {s(S_ROLE)}, {r0}')
        A(f's_cmp_ge_u32 {s(S_IDX)}, {n}')
        A(f's_cbranch_scc1 {nx}')
        A(f's_mov_b32 {s(S_L)}, {l}')
        A(f's_branch L_{fn.upper()}')
        A.label(nx)
    A('s_branch L_END')
    role_red = role_red2 if not cfg.get('OLDRED') else globals()['role_red']
    fns = {'chain': lambda: (chain_role if cfg.get('OLDCHAIN') else chain2.chain_role if cfg.get('CHAIN2') else chain3.chain_role)(A, cfg, 'L_FAIL', DONE), 'b1': lambda: role_b1(A, cfg, 'L_FAIL', DONE),
           'a1': lambda: role_a1(A, cfg, 'L_FAIL', DONE), 'atta': lambda: role_atta(A, cfg, 'L_FAIL', DONE),
           'a3': lambda: role_a3(A, cfg, 'L_FAIL', DONE), 'attb': lambda: role_attb(A, cfg, 'L_FAIL', DONE),
           'b3': lambda: role_b3(A, cfg, 'L_FAIL', DONE),
           'ra0': lambda: role_red(A, cfg, 'RA', 0, 'L_FAIL', DONE), 'ra1': lambda: role_red(A, cfg, 'RA', 1, 'L_FAIL', DONE),
           'rb0': lambda: role_red(A, cfg, 'RB', 0, 'L_FAIL', DONE), 'rb1': lambda: role_red(A, cfg, 'RB', 1, 'L_FAIL', DONE),
           'r0': lambda: role_red(A, cfg, 'R0', 0, 'L_FAIL', DONE)}
    seen = []
    for (name, r0, n, l, fn) in T:
        if fn in seen: continue
        seen.append(fn)
        A.raw('.p2align 6')
        A.label(f'L_{fn.upper()}')
        A.flush()
        fns[fn]()
    if cfg.get('FINE'):
        A.label('L_DUMP'); A.flush()
        A('v_mov_b32 v1, 0')
        for i in range(12):
            A(f's_mov_b32 {s(S_TS)}, {s(80+i)}')
            sk = A.newlabel('dmp')
            A(f's_cmp_lg_u32 {s(S_WAVE)}, 0'); A(f's_cbranch_scc1 {sk}')
            A(f's_lshl_b32 {s(S_TS+2)}, {s(S_ROLE)}, 9')
            A(f's_add_u32 {s(S_TS+2)}, {s(S_TS+2)}, {hex(WS_TIME + (110+i)*4)}')
            A(f'v_mov_b32 v2, {s(S_TS)}')
            A('s_mov_b64 exec, 1')
            A(f'buffer_store_dword v2, v1, {s(S_WS,4)}, {s(S_TS+2)} offen')
            A.label(sk)
        A('s_branch L_END')
    A.label('L_FAIL')
    A.flush()
    A(f's_mov_b64 exec, 1')
    A(f'v_mov_b32 v1, 0')
    A(f'v_mov_b32 v2, 0xdead0000')
    A(f'v_or_b32 v2, {s(S_ROLE)}, v2')
    A(f'global_store_dword v1, v2, {s(S_DBG,2)} offset:160')
    A.label('L_END')
    A('s_endpgm')
    A.raw('.section .rodata,"a"')
    A.raw('.p2align 6')
    A.raw(f'.amdhsa_kernel {KNAME}_kernel')
    A.raw('  .amdhsa_next_free_vgpr 512')
    A.raw('  .amdhsa_next_free_sgpr 102')
    A.raw('  .amdhsa_accum_offset 256')
    A.raw('  .amdhsa_group_segment_fixed_size 0')
    A.raw('  .amdhsa_kernarg_size 104')
    A.raw('  .amdhsa_user_sgpr_count 2')
    A.raw('  .amdhsa_user_sgpr_kernarg_segment_ptr 1')
    A.raw('  .amdhsa_system_sgpr_workgroup_id_x 1')
    A.raw('.end_amdhsa_kernel')
    return A

if __name__ == '__main__':
    out = sys.argv[1]
    cfg = {}
    for kv in sys.argv[2:]:
        k, _, val = kv.partition('=')
        cfg[k] = (int(val) if val.lstrip('-').isdigit() else val) if val else 1
    if not cfg.get('RAW'):
        for k in ('PREWAIT1', 'PREWAIT2', 'BAR2', 'NTQ'): cfg.setdefault(k, 1)
    A = build(cfg)
    open(out, 'w').write(A.text())
    print('instrs', A.nins)
```

```python
from asm import *
from common import *
from chain import *

S_IDX = 26
S_SEG = 28
S_PREF = 29
S_FOUT = 30
S_SRC = 31
S_BUFW = 32
S_BUFC = 33
S_DST = 34
S_DST2 = 35
S_DST3 = 36
S_TGT = 37
S_A = 38; S_B = 39; S_C = 40; S_D = 41
S_EXLO = 42
S_BSUM = 44
S_CSUM = 45
S_X = 46

def lane_setup(A):
    A('v_and_b32 v79, 63, v0')
    A('v_mov_b32 v75, v0')
    A('v_and_b32 v78, 15, v79')
    A('v_lshrrev_b32 v77, 4, v79')
    A('v_and_b32 v76, 7, v79')

def flagaddr(A, vdst, role0, n, vlane=79, vt=74):
    A(f'v_min_u32 {v(vdst)}, {n-1}, {v(vlane)}')
    A(f'v_lshrrev_b32 {v(vt)}, 2, {v(vdst)}')
    if isinstance(role0, int): A(f'v_add_u32 {v(vt)}, {role0}, {v(vt)}')
    else: A(f'v_add_u32 {v(vt)}, {role0}, {v(vt)}')
    A(f'v_lshlrev_b32 {v(vt)}, 7, {v(vt)}')
    A(f'v_and_b32 {v(vdst)}, 3, {v(vdst)}')
    A(f'v_lshlrev_b32 {v(vdst)}, 2, {v(vdst)}')
    A(f'v_add_u32 {v(vdst)}, {v(vdst)}, {v(vt)}')

def own_flag(A):
    A(f's_lshl_b32 {s(S_FOUT)}, {s(S_ROLE)}, 7')
    A(f's_lshl_b32 {s(S_TMP)}, {s(S_WAVE)}, 2')
    A(f's_add_u32 {s(S_FOUT)}, {s(S_FOUT)}, {s(S_TMP)}')

CFG = {}
SCOPE = [' sc1']
def set_scope(intra):
    SCOPE[0] = '' if (intra and not CFG.get('ALLSC1')) else ' sc1'
def publish(A, sval, vt, vzero, ts=True):
    if ts: tstamp(A, CFG, sval, vt, vzero)
    A(f'v_mov_b32 {v(vt)}, {sval}')
    A('s_mov_b64 exec, 1')
    A(f'buffer_store_dword {v(vt)}, {v(vzero)}, {s(S_WS,4)}, {s(S_FOUT)} offen' + SCOPE[0])
    A('s_mov_b64 exec, -1')

def poll_block(A, cfg, vaddr, starget, vt, fail):
    if cfg.get('NOWAIT'): return
    re_ = A.newlabel('pre'); ok = A.newlabel('pok')
    A(f's_mov_b32 {s(S_SPIN)}, {SPIN_LIMIT}')
    A.label(re_)
    A(f'buffer_load_dword {v(vt)}, {v(vaddr)}, {s(S_WS,4)}, 0 offen sc1')
    A('s_waitcnt vmcnt(0)')
    A(f'v_cmp_gt_u32 vcc, {starget}, {v(vt)}')
    A(f's_cbranch_vccz {ok}')
    spin_check(A, re_, fail)
    A.label(ok)

def poll_issue(A, cfg, vaddr, vt):
    if cfg.get('NOWAIT'): return
    A(f'buffer_load_dword {v(vt)}, {v(vaddr)}, {s(S_WS,4)}, 0 offen sc1')

def poll_check(A, cfg, vaddr, starget, vt, fail):
    if cfg.get('NOWAIT'): return
    ok = A.newlabel('pck')
    A(f'v_cmp_gt_u32 vcc, {starget}, {v(vt)}')
    A(f's_cbranch_vccz {ok}')
    poll_block(A, cfg, vaddr, starget, vt, fail)
    A.label(ok)

def wreg_lin(i, n, vbase):
    return a(i, n) if i < 256 else v(vbase + i - 256, n)

def block_loader(A, blocks, ka, size, vtr=70, per_round=36):
    w = s(S_WAVE)
    load_ptr_srd(A, S_SRD, ka, size)
    A(f'v_lshrrev_b32 v72, 2, v78')
    A(f'v_lshlrev_b32 v73, 2, v77')
    A(f'v_add_u32 v72, v72, v73')
    A(f'v_lshlrev_b32 v72, 5, v72')
    A(f'v_and_b32 v73, 3, v78')
    A(f'v_lshlrev_b32 v73, 3, v73')
    A(f'v_add_u32 v72, v72, v73')
    A(f's_mul_i32 {s(S_TMP)}, {w}, 36864')
    A(f'v_add_u32 {v(vtr)}, {s(S_TMP)}, v72')
    for r0 in range(0, len(blocks), per_round):
        rb = blocks[r0:r0+per_round]
        for i, b in enumerate(rb):
            A(f's_mul_i32 {s(S_M0)}, {w}, 36864')
            if i: A(f's_add_u32 {s(S_M0)}, {s(S_M0)}, {i*1024}')
            b['issue'](A)
        A('s_waitcnt vmcnt(0)')
        for i, b in enumerate(rb):
            for half in range(2):
                A(f'ds_read_b64_tr_b16 {b["dst"](half)}, {v(vtr)} offset:{i*1024 + half*512}')
            if i % 4 == 3: A('s_waitcnt lgkmcnt(8)')
        A('s_waitcnt lgkmcnt(0)')

def dma16(A, vaddr, soff):
    A(f's_mov_b32 m0, {s(S_M0)}')
    A(f'buffer_load_dwordx4 {v(vaddr)}, {s(S_SRD,4)}, {soff} offen lds')

def gemm_loop(A, cfg, P, fail):
    NT, NKS, D = P['NT'], P['NKS'], P.get('D', 3)
    W, ACC, RING = P['W'], P['ACC'], P['RING']
    VL16, VRD, VPOLL, VFLAG, VZERO, VT = P['VL16'], P['VRD'], P['VPOLL'], P['VFLAG'], P['VZERO'], P['VT']
    NF = 2*NKS; NFW = NF//4
    nst = P['nst']
    KMID = P.get('KMID', NKS//2)
    w = s(S_WAVE)
    A(f's_mul_i32 {s(S_TMP)}, {w}, {NFW*1024}')
    A(f's_add_u32 {s(S_SRC)}, {s(S_SRC)}, {s(S_TMP)}')
    A(f's_mov_b32 {s(S_BUFW)}, {s(S_TMP)}')
    A(f's_lshl_b32 {s(S_BSUM)}, {s(S_TMP)}, 1')
    A(f's_add_u32 {s(S_BSUM)}, {s(S_BSUM)}, {NF*1024}')
    A(f's_mov_b32 {s(S_BUFC)}, 0')
    A(f's_mov_b32 {s(S_SEG)}, 0')
    A(f's_mov_b32 {s(S_PREF)}, 0')
    def dma():
        for j0 in range(0, NFW, 4):
            A(f's_add_u32 {s(S_TMP)}, {s(S_BUFW)}, {j0*1024}')
            A(f's_mov_b32 m0, {s(S_TMP)}')
            A(f's_add_u32 {s(S_TMP+1)}, {s(S_SRC)}, {j0*1024}')
            for j in range(j0, min(j0+4, NFW)):
                A(f'buffer_load_dwordx4 {v(VL16)}, {s(S_WS,4)}, {s(S_TMP+1)} offen offset:{(j-j0)*1024} lds')
        A(f's_add_u32 {s(S_SRC)}, {s(S_SRC)}, {P["src_stride"]}')
        A(f's_sub_u32 {s(S_BUFW)}, {s(S_BSUM)}, {s(S_BUFW)}')
    loop = A.newlabel('gloop'); pre = A.newlabel('gpref'); go = A.newlabel('ggo')
    A.label(loop)
    A(f's_cmp_lg_u32 {s(S_PREF)}, 0')
    A(f's_cbranch_scc1 {pre}')
    A(f's_add_u32 {s(S_TGT)}, {s(S_SEG)}, 1')
    fst(A, cfg, 0, S_SEG)
    poll_block(A, cfg, VPOLL, s(S_TGT), VFLAG, fail)
    fst(A, cfg, 1, S_SEG)
    dma()
    A('s_waitcnt vmcnt(0)')
    A(f's_branch {go}')
    A.label(pre)
    A(f's_waitcnt vmcnt({nst})')
    A.label(go)
    fst(A, cfg, 2, S_SEG)
    A('s_barrier')
    fst(A, cfg, 3, S_SEG)
    A(f's_mov_b32 {s(S_PREF)}, 0')
    A(f'v_add_u32 {v(VRD)}, {s(S_BUFC)}, {v(VL16)}')
    A(f's_sub_u32 {s(S_BUFC)}, {NF*1024}, {s(S_BUFC)}')
    if not cfg.get('NOWAIT'):
        A(f'buffer_load_dword {v(VFLAG)}, {v(P.get("VPOLLN", VPOLL))}, {s(S_WS,4)}, 0 offen sc1')
    def rd(ks):
        for tt in range(2):
            A(f'ds_read_b128 {v(RING + (ks % D)*8 + tt*4, 4)}, {v(VRD)} offset:{(tt*NKS + ks)*1024}')
    for k in range(min(D, NKS)): rd(k)
    for ks in range(NKS):
        if ks == KMID:
            A('s_waitcnt vmcnt(0)')
            publish(A, s(S_SEG), VT, VZERO, ts=False)
            sk = A.newlabel('gnopf')
            A(f's_cmp_ge_u32 {s(S_SEG)}, 63')
            A(f's_cbranch_scc1 {sk}')
            if not cfg.get('NOWAIT'):
                A(f's_add_u32 {s(S_TGT)}, {s(S_SEG)}, 2')
                A(f'v_cmp_gt_u32 vcc, {s(S_TGT)}, {v(VFLAG)}')
                A(f's_cbranch_vccnz {sk}')
            dma()
            A(f's_mov_b32 {s(S_PREF)}, 1')
            A.label(sk)
        A(f's_waitcnt lgkmcnt({2*min(D-1, NKS-1-ks)})')
        for t in range(NT):
            for tt in range(2):
                fr = v(RING + (ks % D)*8 + tt*4, 4)
                c = '0' if ks == 0 else v(ACC(t, tt), 4)
                if P['swap'](t): A(f'{MF} {v(ACC(t,tt),4)}, {fr}, {W(t,ks)}, {c}')
                else: A(f'{MF} {v(ACC(t,tt),4)}, {W(t,ks)}, {fr}, {c}')
        if ks + D < NKS: rd(ks + D)
    tstamp(A, cfg, s(S_SEG), VT, VZERO)
    fst(A, cfg, 4, S_SEG)
    P['epilogue'](A)
    fst(A, cfg, 5, S_SEG)
    sk2 = A.newlabel('gnopub')
    if 'VPOLLN' in P:
        A(f'v_xor_b32 {v(VPOLL)}, {s(P["SPX"])}, {v(VPOLL)}')
        A(f'v_xor_b32 {v(P["VPOLLN"])}, {s(P["SPX"])}, {v(P["VPOLLN"])}')
    A(f's_add_u32 {s(S_SEG)}, {s(S_SEG)}, 1')
    A(f's_cmp_lg_u32 {s(S_PREF)}, 0')
    A(f's_cbranch_scc1 {loop}')
    A('s_waitcnt vmcnt(0)')
    fst(A, cfg, 6, S_SEG, 33)
    publish(A, s(S_SEG), VT, VZERO, ts=False)
    A(f's_cmp_lt_u32 {s(S_SEG)}, 64')
    A(f's_cbranch_scc1 {loop}')

def cvt(A, d, x, y): A(f'v_cvt_pk_bf16_f32 {v(d)}, {v(x)}, {v(y)}')

def role_a1(A, cfg, fail, done):
    set_scope(True)
    w = s(S_WAVE)
    lane_setup(A)
    S_M, S_TAU = S_A, S_B
    A(f's_mul_i32 {s(S_M)}, {s(S_IDX)}, 43')
    A(f's_lshr_b32 {s(S_M)}, {s(S_M)}, 7')
    A(f's_mul_i32 {s(S_TMP)}, {s(S_M)}, 3')
    A(f's_sub_u32 {s(S_TMP)}, {s(S_IDX)}, {s(S_TMP)}')
    A(f's_mul_i32 {s(S_TAU)}, {s(S_TMP)}, 12')
    A(f's_mul_i32 {s(S_TMP)}, {w}, 3')
    A(f's_add_u32 {s(S_TAU)}, {s(S_TAU)}, {s(S_TMP)}')
    A('v_lshrrev_b32 v68, 1, v79'); A('v_mul_u32_u24 v68, 3456, v68')
    A('v_and_b32 v72, 1, v79'); A('v_lshlrev_b32 v72, 4, v72'); A('v_add_u32 v68, v68, v72')
    A('v_lshrrev_b32 v69, 3, v79'); A('v_mul_u32_u24 v69, 3456, v69')
    A('v_mul_u32_u24 v72, 36, v76'); A('v_add_u32 v69, v69, v72')
    blocks = []
    for t in range(3):
        for ks in range(18):
            def issue(A, t=t, ks=ks):
                if ks == 0:
                    A(f's_add_u32 {s(S_C)}, {s(S_TAU)}, {t}')
                    A(f's_mul_i32 {s(S_D)}, {s(S_M)}, 1152')
                    A(f's_mul_i32 {s(S_TMP)}, {s(S_C)}, 36')
                    A(f's_sub_u32 {s(S_TMP+1)}, {s(S_C)}, 32')
                    A(f's_mul_i32 {s(S_TMP+1)}, {s(S_TMP+1)}, 288')
                    A(f's_add_u32 {s(S_TMP+1)}, {s(S_TMP+1)}, 32')
                    A(f's_cmp_ge_u32 {s(S_C)}, 32')
                    A(f's_cselect_b32 {s(S_TMP)}, {s(S_TMP+1)}, {s(S_TMP)}')
                    A(f's_add_u32 {s(S_D)}, {s(S_D)}, {s(S_TMP)}')
                lo = A.newlabel('a1lo'); en = A.newlabel('a1en')
                A(f's_add_u32 {s(S_SOFF)}, {s(S_D)}, {ks*32*3456}')
                A(f's_cmp_ge_u32 {s(S_C)}, 32')
                A(f's_cbranch_scc1 {lo}')
                dma16(A, 68, s(S_SOFF))
                A(f's_branch {en}')
                A.label(lo)
                for q in range(4):
                    A(f's_mov_b32 m0, {s(S_M0)}')
                    A(f'buffer_load_dword v69, {s(S_SRD,4)}, {s(S_SOFF)} offen lds')
                    if q < 3:
                        A(f's_add_u32 {s(S_SOFF)}, {s(S_SOFF)}, {8*3456}')
                        A(f's_add_u32 {s(S_M0)}, {s(S_M0)}, 256')
                A.label(en)
            blocks.append(dict(issue=issue, dst=lambda half, t=t, ks=ks: a(t*72 + ks*4 + 2*half, 2)))
    block_loader(A, blocks, KA_WQKV, 576*3456, per_round=27)
    VL16, VRD, VPOLL, VFLAG, VZERO, VT, VL8 = 60, 61, 62, 63, 64, 65, 66
    A(f'v_lshlrev_b32 {v(VL16)}, 4, v79')
    A(f'v_lshlrev_b32 {v(VL8)}, 3, v79')
    A(f'v_mov_b32 {v(VZERO)}, 0')
    sel_layer(A, S_TMP+2, [R_R0, R_RB[0]])
    flagaddr(A, VPOLL, s(S_TMP+2), 16)
    VPOLLN, SPX = 67, S_X
    A(f's_lshl_b32 {s(SPX)}, {s(S_L)}, 9')
    A(f'v_xor_b32 {v(VPOLLN)}, {s(SPX)}, {v(VPOLL)}')
    own_flag(A)
    sel_layer(A, S_SRC, WS_XNA)
    sel_layer(A, S_DST, WS_QKVA)
    A(f's_mul_i32 {s(S_TMP)}, {s(S_M)}, 36864')
    A(f's_add_u32 {s(S_DST)}, {s(S_DST)}, {s(S_TMP)}')
    A(f's_lshl_b32 {s(S_TMP)}, {s(S_TAU)}, 10')
    A(f's_add_u32 {s(S_DST)}, {s(S_DST)}, {s(S_TMP)}')
    cfg['barrier_wait'](A)
    ACC = lambda t, tt: t*8 + tt*4
    def epi(swap):
        def f(A):
            for t in range(3):
                b = t*8
                cvt(A, b, b, b+1); cvt(A, b+1, b+2, b+3); cvt(A, b+2, b+4, b+5); cvt(A, b+3, b+6, b+7)
                if swap:
                    A(f'buffer_store_dwordx4 {v(b,4)}, {v(VL16)}, {s(S_WS,4)}, {s(S_DST)} offen offset:{t*1024}' + SCOPE[0])
                else:
                    A(f'buffer_store_dwordx2 {v(b,2)}, {v(VL8)}, {s(S_WS,4)}, {s(S_DST)} offen offset:{t*1024}' + SCOPE[0])
                    A(f'buffer_store_dwordx2 {v(b+2,2)}, {v(VL8)}, {s(S_WS,4)}, {s(S_DST)} offen offset:{t*1024+512}' + SCOPE[0])
            A(f's_add_u32 {s(S_DST)}, {s(S_DST)}, {SEG_QKVA}')
        return f
    lv = A.newlabel('a1v')
    A(f's_cmp_eq_u32 {s(S_M)}, 2')
    A(f's_cbranch_scc1 {lv}')
    for swap in (False, True):
        if swap: A.label(lv); A.flush()
        P = dict(NT=3, NKS=18, D=3, W=lambda t, ks: a(t*72 + ks*4, 4), ACC=ACC, RING=24, VL16=VL16, VRD=VRD, VPOLL=VPOLL,
                 VFLAG=VFLAG, VZERO=VZERO, VT=VT, nst=(3 if swap else 6), swap=lambda t, sw=swap: sw, epilogue=epi(swap), src_stride=SEG_XN,
                 VPOLLN=VPOLLN, SPX=SPX)
        gemm_loop(A, cfg, P, fail)
        A(f's_branch {done}')

def sel_layer(A, sdst, vals):
    A(f's_mul_i32 {s(sdst)}, {s(S_L)}, {hex(vals[1]-vals[0])}')
    A(f's_add_u32 {s(sdst)}, {s(sdst)}, {hex(vals[0])}')

def part_store_addr(A, vdst):
    A(f'v_lshrrev_b32 v72, 3, v78'); A(f'v_mul_u32_u24 v72, 18432, v72')
    A(f'v_lshlrev_b32 v73, 7, v77'); A(f'v_add_u32 v72, v72, v73')
    A(f'v_lshlrev_b32 v73, 4, v76'); A(f'v_add_u32 {v(vdst)}, v72, v73')

def part_epilogue(NT, VPS, stride):
    def f(A):
        A(f's_add_u32 {s(S_DST2)}, {s(S_DST)}, 36864')
        for t in range(NT):
            for tt in range(2):
                A(f'buffer_store_dwordx4 {v(t*8+tt*4,4)}, {v(VPS)}, {s(S_WS,4)}, {s(S_DST2 if tt else S_DST)} offen offset:{t*512}' + SCOPE[0])
        A(f's_add_u32 {s(S_DST)}, {s(S_DST)}, {stride}')
    return f

def role_a3(A, cfg, fail, done):
    set_scope(True)
    w = s(S_WAVE)
    lane_setup(A)
    S_T0 = S_A
    A(f's_mul_i32 {s(S_T0)}, {s(S_IDX)}, 12')
    A(f's_mul_i32 {s(S_TMP)}, {w}, 3')
    A(f's_add_u32 {s(S_T0)}, {s(S_T0)}, {s(S_TMP)}')
    A(f's_lshl_b32 {s(S_B)}, {s(S_T0)}, 5')
    A('v_lshrrev_b32 v70, 1, v79')
    A('v_lshrrev_b32 v71, 4, v70')
    A('v_and_b32 v72, 15, v70')
    A('v_mul_u32_u24 v73, 18, v71'); A('v_add_u32 v73, v73, v72'); A('v_mul_u32_u24 v68, 1152, v73')
    A('v_mul_u32_u24 v73, 144, v71')
    A('v_lshrrev_b32 v71, 1, v72'); A('v_mul_u32_u24 v71, 18, v71'); A('v_add_u32 v73, v73, v71')
    A('v_and_b32 v71, 1, v72'); A('v_add_u32 v73, v73, v71'); A('v_add_u32 v73, 16, v73')
    A('v_mul_u32_u24 v69, 1152, v73')
    A('v_and_b32 v72, 1, v79'); A('v_lshlrev_b32 v72, 4, v72')
    A('v_add_u32 v68, v68, v72'); A('v_add_u32 v69, v69, v72')
    blocks = []
    for t in range(3):
        for ks in range(18):
            def issue(A, t=t, ks=ks):
                off = (ks*36*1152 if ks < 16 else (ks-16)*288*1152) + t*32
                A(f's_add_u32 {s(S_SOFF)}, {s(S_B)}, {off}')
                dma16(A, 68 if ks < 16 else 69, s(S_SOFF))
            blocks.append(dict(issue=issue, dst=lambda half, t=t, ks=ks: a(t*72 + ks*4 + 2*half, 2)))
    block_loader(A, blocks, KA_AWO, 576*1152, per_round=27)
    VL16, VRD, VPOLL, VFLAG, VZERO, VT, VPS = 60, 61, 62, 63, 64, 65, 66
    A(f'v_lshlrev_b32 {v(VL16)}, 4, v79')
    A(f'v_mov_b32 {v(VZERO)}, 0')
    sel_layer(A, S_TMP+2, R_ATTA)
    flagaddr(A, VPOLL, s(S_TMP+2), 64)
    own_flag(A)
    part_store_addr(A, VPS)
    sel_layer(A, S_SRC, WS_OA)
    sel_layer(A, S_DST, WS_PA)
    A(f's_lshl_b32 {s(S_TMP)}, {s(S_T0)}, 9')
    A(f's_add_u32 {s(S_DST)}, {s(S_DST)}, {s(S_TMP)}')
    cfg['barrier_wait'](A)
    P = dict(NT=3, NKS=18, D=3, W=lambda t, ks: a(t*72 + ks*4, 4), ACC=lambda t, tt: t*8+tt*4, RING=24, VL16=VL16, VRD=VRD, VPOLL=VPOLL,
             VFLAG=VFLAG, VZERO=VZERO, VT=VT, nst=6, swap=lambda t: False, epilogue=part_epilogue(3, VPS, SEG_PA), src_stride=SEG_XN)
    gemm_loop(A, cfg, P, fail)
    A(f's_branch {done}')

def role_b3(A, cfg, fail, done):
    set_scope(True)
    w = s(S_WAVE)
    lane_setup(A)
    S_KQ, S_T0 = S_A, S_B
    A(f's_mul_i32 {s(S_KQ)}, {s(S_IDX)}, 43')
    A(f's_lshr_b32 {s(S_KQ)}, {s(S_KQ)}, 7')
    A(f's_mul_i32 {s(S_TMP)}, {s(S_KQ)}, 3')
    A(f's_sub_u32 {s(S_TMP)}, {s(S_IDX)}, {s(S_TMP)}')
    A(f's_mul_i32 {s(S_T0)}, {s(S_TMP)}, 12')
    A(f's_mul_i32 {s(S_TMP)}, {w}, 3')
    A(f's_add_u32 {s(S_T0)}, {s(S_T0)}, {s(S_TMP)}')
    A(f's_mul_i32 {s(S_C)}, {s(S_KQ)}, {1024*1152}')
    A(f's_lshl_b32 {s(S_TMP)}, {s(S_T0)}, 5')
    A(f's_add_u32 {s(S_C)}, {s(S_C)}, {s(S_TMP)}')
    A('v_lshrrev_b32 v68, 1, v79'); A('v_mul_u32_u24 v68, 1152, v68')
    A('v_and_b32 v72, 1, v79'); A('v_lshlrev_b32 v72, 4, v72'); A('v_add_u32 v68, v68, v72')
    WB = 128
    blocks = []
    for ks in range(32):
        for t in range(3):
            def issue(A, t=t, ks=ks):
                A(f's_add_u32 {s(S_SOFF)}, {s(S_C)}, {ks*32*1152 + t*32}')
                dma16(A, 68, s(S_SOFF))
            blocks.append(dict(issue=issue, dst=lambda half, t=t, ks=ks: wreg_lin(t*128 + ks*4 + 2*half, 2, WB)))
    block_loader(A, blocks, KA_WO, 4096*1152, per_round=32)
    VL16, VRD, VPOLL, VFLAG, VZERO, VT, VPS = 60, 61, 62, 63, 64, 65, 66
    A(f'v_lshlrev_b32 {v(VL16)}, 4, v79')
    A(f'v_mov_b32 {v(VZERO)}, 0')
    sel_layer(A, S_TMP+2, R_ATTB)
    A(f's_lshl_b32 {s(S_TMP)}, {s(S_KQ)}, 1')
    A(f's_add_u32 {s(S_TMP+2)}, {s(S_TMP+2)}, {s(S_TMP)}')
    flagaddr(A, VPOLL, s(S_TMP+2), 8)
    own_flag(A)
    part_store_addr(A, VPS)
    sel_layer(A, S_SRC, WS_OB)
    A(f's_lshl_b32 {s(S_TMP)}, {s(S_KQ)}, 16')
    A(f's_add_u32 {s(S_SRC)}, {s(S_SRC)}, {s(S_TMP)}')
    sel_layer(A, S_DST, WS_PB)
    A(f's_mul_i32 {s(S_TMP)}, {s(S_KQ)}, 73728')
    A(f's_add_u32 {s(S_DST)}, {s(S_DST)}, {s(S_TMP)}')
    A(f's_lshl_b32 {s(S_TMP)}, {s(S_T0)}, 9')
    A(f's_add_u32 {s(S_DST)}, {s(S_DST)}, {s(S_TMP)}')
    cfg['barrier_wait'](A)
    P = dict(NT=3, NKS=32, D=3, W=lambda t, ks: wreg_lin(t*128 + ks*4, 4, WB), ACC=lambda t, tt: t*8+tt*4, RING=24, VL16=VL16, VRD=VRD, VPOLL=VPOLL,
             VFLAG=VFLAG, VZERO=VZERO, VT=VT, nst=6, swap=lambda t: False, epilogue=part_epilogue(3, VPS, SEG_PB), src_stride=SEG_OB, KMID=10)
    gemm_loop(A, cfg, P, fail)
    A(f's_branch {done}')

def role_b1(A, cfg, fail, done):
    set_scope(False)
    w = s(S_WAVE)
    lane_setup(A)
    issue_half, consume_half = qkv_loader(A, True)
    issue_half(0); issue_half(1)
    for hf in range(6):
        A(f's_waitcnt vmcnt({18 if hf < 5 else 0})')
        A('s_barrier')
        consume_half(hf)
        A('s_barrier')
        if hf + 2 < 6: issue_half(hf + 2)
    VL16, VRD, VPOLL, VFLAG, VZERO, VT = 64, 65, 66, 67, 68, 69
    A(f'v_lshlrev_b32 {v(VL16)}, 4, v79')
    A(f'v_mov_b32 {v(VZERO)}, 0')
    sel_layer(A, S_TMP+2, R_RA)
    flagaddr(A, VPOLL, s(S_TMP+2), 16)
    own_flag(A)
    sel_layer(A, S_SRC, WS_XNB)
    A(f's_mul_i32 {s(S_DST)}, {s(S_L)}, {QKVX_STRIDE}')
    A(f's_mul_i32 {s(S_TMP)}, {s(S_IDX)}, 24576')
    A(f's_add_u32 {s(S_DST)}, {s(S_DST)}, {s(S_TMP)}')
    A(f's_lshl_b32 {s(S_TMP)}, {w}, 10')
    A(f's_add_u32 {s(S_DST)}, {s(S_DST)}, {s(S_TMP)}')
    A(f's_add_u32 {s(S_DST)}, {s(S_DST)}, {WS_QKVX}')
    cfg['barrier_wait'](A)
    def W(t, ks): return [WQ, WK, WV][t//2](t % 2, ks)
    def ACC(t, tt):
        m = t//2
        return (m*2 + tt)*8 + (t % 2)*4 if m < 2 else 32 + (t % 2)*8 + tt*4
    def epi(A):
        for m in range(2):
            for tt in range(2):
                b = (m*2+tt)*8
                cvt(A, b, b, b+1); cvt(A, b+1, b+2, b+3); cvt(A, b+2, b+4, b+5); cvt(A, b+3, b+6, b+7)
                A(f's_add_u32 {s(S_DST2)}, {s(S_DST)}, {m*8192 + tt*4096}')
                A(f'buffer_store_dwordx4 {v(b,4)}, {v(VL16)}, {s(S_WS,4)}, {s(S_DST2)} offen sc1')
        A(f's_lshl_b32 {s(S_TMP)}, {w}, 10')
        A(f's_add_u32 {s(S_DST2)}, {s(S_DST)}, {s(S_TMP)}')
        A(f's_add_u32 {s(S_DST2)}, {s(S_DST2)}, 16384')
        for t in range(2):
            b = 32 + t*8
            cvt(A, b, b, b+1); cvt(A, b+1, b+2, b+3); cvt(A, b+2, b+4, b+5); cvt(A, b+3, b+6, b+7)
            A(f'buffer_store_dwordx4 {v(b,4)}, {v(VL16)}, {s(S_WS,4)}, {s(S_DST2)} offen offset:{t*1024} sc1')
        A(f's_add_u32 {s(S_DST)}, {s(S_DST)}, {32*24576}')
    P = dict(NT=6, NKS=18, D=2, W=W, ACC=ACC, RING=48, VL16=VL16, VRD=VRD, VPOLL=VPOLL, VFLAG=VFLAG, VZERO=VZERO, VT=VT,
             nst=6, swap=lambda t: t >= 4, epilogue=epi, src_stride=SEG_XN, KMID=6)
    gemm_loop(A, cfg, P, fail)
    A(f's_branch {done}')
```

```python
from roles import *

BIGNEG = 0xff7fffff

def xlane_sum(A, x, t, op='v_add_f32', ror8=True):
    if ror8: A(f'{op}_dpp {v(x)}, {v(x)}, {v(x)} row_ror:8 row_mask:0xf bank_mask:0xf')
    A(f'v_mov_b32 {v(t)}, {v(x)}')
    A(f'v_permlane16_swap_b32 {v(x)}, {v(t)}')
    A(f'{op} {v(x)}, {v(x)}, {v(t)}')
    A(f'v_mov_b32 {v(t)}, {v(x)}')
    A(f'v_permlane32_swap_b32 {v(x)}, {v(t)}')
    A(f'{op} {v(x)}, {v(x)}, {v(t)}')

def role_red(A, cfg, kind, l, fail, done):
    set_scope(False)
    w = s(S_WAVE)
    nparts = {'R0': 0, 'RA': 1, 'RB': 4}[kind]
    final = (kind == 'RB' and l == 1)
    ALT = 2 if kind == 'RB' else 1
    lane_setup(A)
    S_PAR = S_X + 1
    A(f's_lshr_b32 {s(S_PAR)}, {s(S_IDX)}, 2')
    A(f's_and_b32 {s(S_IDX)}, {s(S_IDX)}, 3')
    SX, SO = 48, 52
    S_XS, S_XD, S_PS, S_NS = S_A, S_B, S_C, S_D
    VXA, VPA, VNA, VPOLL, VFLAG, VZERO, VT, VST = 110, 111, 112, 113, 114, 115, 116, 117
    A('v_bfe_u32 v72, v79, 3, 2')
    A('v_lshrrev_b32 v73, 5, v79')
    A(f's_mul_i32 {s(S_TMP)}, {w}, 9')
    A(f'v_add_u32 v73, {s(S_TMP)}, v73')
    A(f'v_mul_u32_u24 {v(VXA)}, 1152, v76')
    A(f'v_lshlrev_b32 v74, 5, v73'); A(f'v_add_u32 {v(VXA)}, {v(VXA)}, v74')
    A(f'v_lshlrev_b32 v74, 3, v72'); A(f'v_add_u32 {v(VXA)}, {v(VXA)}, v74')
    A(f'v_lshlrev_b32 {v(VPA)}, 4, v79')
    A(f's_mul_i32 {s(S_TMP)}, {w}, 4608')
    A(f'v_add_u32 {v(VPA)}, {s(S_TMP)}, {v(VPA)}')
    A(f'v_lshrrev_b32 {v(VNA)}, 1, v73'); A(f'v_lshlrev_b32 {v(VNA)}, 10, {v(VNA)}')
    A(f'v_and_b32 v74, 1, v73'); A(f'v_lshlrev_b32 v74, 3, v74'); A(f'v_add_u32 {v(VNA)}, {v(VNA)}, v74')
    A(f'v_lshlrev_b32 v74, 4, v72'); A(f'v_add_u32 v74, v74, v76'); A(f'v_lshlrev_b32 v74, 4, v74')
    A(f'v_add_u32 {v(VNA)}, {v(VNA)}, v74')
    A(f's_and_b32 {s(S_TMP)}, {s(S_IDX)}, 1')
    A(f's_lshr_b32 {s(S_TMP+1)}, {s(S_IDX)}, 1')
    A(f's_lshl_b32 {s(S_TMP+2)}, {s(S_TMP)}, 7')
    A(f'v_add_u32 {v(VNA)}, {s(S_TMP+2)}, {v(VNA)}')
    A(f'v_lshlrev_b32 {v(VST)}, 3, v76')
    A(f'v_mov_b32 {v(VZERO)}, 0')
    A(f's_mul_i32 {s(S_XS)}, {s(S_IDX)}, {8*1152}')
    A(f's_mov_b32 {s(S_XD)}, {s(S_XS)}')
    A(f's_mul_i32 {s(S_PS)}, {s(S_IDX)}, 18432')
    A(f's_mul_i32 {s(S_NS)}, {s(S_TMP+1)}, 18432')
    XB = 2048*1152
    if kind == 'R0' or (kind == 'RA' and l == 0):
        A(f's_load_dwordx2 {s(S_PTR,2)}, {s(S_KA,2)}, {KA_AX}'); A('s_waitcnt lgkmcnt(0)')
        srd_from_ptr(A, SX, S_PTR, XB)
    else:
        for i in range(4): A(f's_mov_b32 {s(SX+i)}, {s(S_WS+i)}')
        A(f's_add_u32 {s(S_XS)}, {s(S_XS)}, {hex(WS_X2 if kind == "RA" else WS_X1[l])}')
    if final:
        A(f's_load_dwordx2 {s(S_PTR,2)}, {s(S_KA,2)}, {KA_OUT}'); A('s_waitcnt lgkmcnt(0)')
        srd_from_ptr(A, SO, S_PTR, XB)
    else:
        for i in range(4): A(f's_mov_b32 {s(SO+i)}, {s(S_WS+i)}')
        if kind != 'R0': A(f's_add_u32 {s(S_XD)}, {s(S_XD)}, {hex(WS_X1[l] if kind == "RA" else WS_X2)}')
    if nparts:
        A(f's_add_u32 {s(S_PS)}, {s(S_PS)}, {hex(WS_PA[l] if kind == "RA" else WS_PB[l])}')
        if kind == 'RA': flagaddr(A, VPOLL, R_A3[l], 12)
        else: flagaddr(A, VPOLL, R_B3[l], 48)
    if not final:
        A(f's_add_u32 {s(S_NS)}, {s(S_NS)}, {hex({"R0": WS_XNA[0], "RA": WS_XNB[l], "RB": WS_XNA[1]}[kind])}')
    own_flag(A)
    A(f's_mov_b32 {s(S_EXLO)}, -1'); A(f's_mov_b32 {s(S_EXLO+1)}, 0')
    if ALT == 2:
        for (r, st) in ((S_XS, SEG_X), (S_XD, SEG_X), (S_PS, SEG_PA if kind == "RA" else SEG_PB), (S_NS, SEG_XN)):
            A(f's_mul_i32 {s(S_TMP)}, {s(S_PAR)}, {st}'); A(f's_add_u32 {s(r)}, {s(r)}, {s(S_TMP)}')
    cfg['barrier_wait'](A)
    A(f's_mov_b32 {s(S_SEG)}, {s(S_PAR)}')
    A(f's_mov_b32 {s(S_X)}, 0')
    if nparts:
        A(f's_add_u32 {s(S_TGT)}, {s(S_SEG)}, 1')
        poll_block(A, cfg, VPOLL, s(S_TGT), VFLAG, fail)
    loop = A.newlabel('rloop')
    A.label(loop)
    fst(A, cfg, 1, S_SEG)
    XR = 20; PR = 128
    def masked(i, f):
        if i == 4: A(f's_mov_b64 exec, {s(S_EXLO,2)}')
        f()
        if i == 4: A('s_mov_b64 exec, -1')
    for i in range(5):
        masked(i, lambda: A(f'buffer_load_dwordx2 {v(XR+2*i,2)}, {v(VXA)}, {s(SX,4)}, {s(S_XS)} offen offset:{i*64}'))
    for p in range(nparts):
        A(f's_add_u32 {s(S_TMP)}, {s(S_PS)}, {p*73728}')
        A(f's_add_u32 {s(S_TMP+1)}, {s(S_TMP)}, 4096')
        for i in range(5):
            masked(i, lambda: A(f'buffer_load_dwordx4 {v(PR+p*20+i*4,4)}, {v(VPA)}, {s(S_WS,4)}, {s(S_TMP+1 if i == 4 else S_TMP)} offen offset:{(i%4)*1024}'))
    A('s_waitcnt vmcnt(0)')
    fst(A, cfg, 2, S_SEG)
    HI = 118
    if True:
        A(f'v_mov_b32 {v(HI)}, 0xffff0000')
    for i in range(5):
        X = 4*i
        def body():
            A(f'v_lshlrev_b32 {v(X)}, 16, {v(XR+2*i)}')
            A(f'v_and_b32 {v(X+1)}, {v(HI)}, {v(XR+2*i)}')
            A(f'v_lshlrev_b32 {v(X+2)}, 16, {v(XR+2*i+1)}')
            A(f'v_and_b32 {v(X+3)}, {v(HI)}, {v(XR+2*i+1)}')
            if nparts:
                y = PR + i*4
                if nparts == 4:
                    for (d, o) in ((0, 1), (2, 3), (0, 2)):
                        for hh in (0, 2):
                            A(f'v_pk_add_f32 {v(y+d*20+hh,2)}, {v(y+d*20+hh,2)}, {v(y+o*20+hh,2)}')
                cvt(A, y, y, y+1); cvt(A, y+1, y+2, y+3)
                A(f'v_lshlrev_b32 {v(y+4-4+2)}, 16, {v(y)}') if False else None
                A(f'v_and_b32 {v(y+2)}, {v(HI)}, {v(y)}')
                A(f'v_and_b32 {v(y+3)}, {v(HI)}, {v(y+1)}')
                A(f'v_lshlrev_b32 {v(y)}, 16, {v(y)}')
                A(f'v_lshlrev_b32 {v(y+1)}, 16, {v(y+1)}')
                A(f'v_add_f32 {v(X)}, {v(X)}, {v(y)}')
                A(f'v_add_f32 {v(X+1)}, {v(X+1)}, {v(y+2)}')
                A(f'v_add_f32 {v(X+2)}, {v(X+2)}, {v(y+1)}')
                A(f'v_add_f32 {v(X+3)}, {v(X+3)}, {v(y+3)}')
                cvt(A, XR+2*i, X, X+1); cvt(A, XR+2*i+1, X+2, X+3)
                A(f'buffer_store_dwordx2 {v(XR+2*i,2)}, {v(VXA)}, {s(SO,4)}, {s(S_XD)} offen offset:{i*64}' + ('' if final else ' sc1'))
                if not final:
                    A(f'v_lshlrev_b32 {v(X)}, 16, {v(XR+2*i)}')
                    A(f'v_and_b32 {v(X+1)}, {v(HI)}, {v(XR+2*i)}')
                    A(f'v_lshlrev_b32 {v(X+2)}, 16, {v(XR+2*i+1)}')
                    A(f'v_and_b32 {v(X+3)}, {v(HI)}, {v(XR+2*i+1)}')
        masked(i, body)
    if not final:
        SM, M2, T1 = 40, 41, 42
        A(f'v_pk_add_f32 {v(44,2)}, {v(0,2)}, {v(2,2)}')
        for i in range(1, 4):
            A(f'v_pk_add_f32 {v(44,2)}, {v(44,2)}, {v(4*i,2)}')
            A(f'v_pk_add_f32 {v(44,2)}, {v(44,2)}, {v(4*i+2,2)}')
        def b4():
            A(f'v_pk_add_f32 {v(44,2)}, {v(44,2)}, {v(16,2)}')
            A(f'v_pk_add_f32 {v(44,2)}, {v(44,2)}, {v(18,2)}')
        masked(4, b4)
        A(f'v_add_f32 {v(SM)}, v44, v45')
        xlane_sum(A, SM, T1)
        A(f'v_mul_f32 {v(SM)}, {hex(f32(1.0/144))}, {v(SM)}')
        A(f'v_mov_b32 {v(M2)}, 0')
        for i in range(5):
            def b5():
                for r in range(4):
                    A(f'v_sub_f32 {v(46)}, {v(4*i+r)}, {v(SM)}')
                    A(f'v_fmac_f32 {v(M2)}, v46, v46')
            masked(i, b5)
        xlane_sum(A, M2, T1)
        A(f's_lshl_b32 {s(S_TMP)}, {w}, 6')
        A(f's_add_u32 {s(S_TMP)}, {s(S_TMP)}, {s(S_X)}')
        A(f'v_add_u32 {v(T1)}, {s(S_TMP)}, {v(VST)}')
        A('s_mov_b64 exec, 0xff')
        A(f'ds_write_b64 {v(T1)}, {v(SM,2)}')
        A('s_mov_b64 exec, -1')
        A(f'v_add_u32 {v(T1)}, {s(S_X)}, {v(VST)}')
        A('s_waitcnt lgkmcnt(0)')
        fst(A, cfg, 3, S_SEG)
        A('s_barrier')
        fst(A, cfg, 4, S_SEG)
        for ww in range(4):
            A(f'ds_read_b64 {v(48+2*ww,2)}, {v(T1)} offset:{ww*64}')
        A(f's_xor_b32 {s(S_X)}, {s(S_X)}, 256')
        A('s_waitcnt lgkmcnt(0)')
        A('v_add_f32 v56, v48, v50'); A('v_add_f32 v57, v52, v54'); A('v_add_f32 v56, v56, v57')
        A('v_mul_f32 v56, 0.25, v56')
        A('v_add_f32 v57, v49, v51'); A('v_add_f32 v58, v53, v55'); A('v_add_f32 v57, v57, v58')
        A('v_mov_b32 v58, 0')
        for ww in range(4):
            A(f'v_sub_f32 v59, {v(48+2*ww)}, v56')
            A(f'v_fmac_f32 v58, v59, v59')
        A(f'v_fmac_f32 v57, {hex(f32(144.0))}, v58')
        A(f'v_mov_b32 v59, {hex(f32(1e-5))}')
        A(f'v_fmac_f32 v59, {hex(f32(1.0/576))}, v57')
        A('v_rsq_f32 v59, v59')
        A(f's_add_u32 {s(S_TMP+1)}, {s(S_NS)}, 4096')
        for i in range(5):
            def b6():
                X = 4*i
                for r in range(4):
                    A(f'v_sub_f32 {v(X+r)}, {v(X+r)}, v56')
                for r in range(4):
                    A(f'v_mul_f32 {v(X+r)}, {v(X+r)}, v59')
                cvt(A, X, X, X+1); cvt(A, X+1, X+2, X+3)
                A(f'buffer_store_dwordx2 {v(X,2)}, {v(VNA)}, {s(S_WS,4)}, {s(S_TMP+1 if i == 4 else S_NS)} offen offset:{(i%4)*1024} sc1')
            masked(i, b6)
    fst(A, cfg, 5, S_SEG)
    if nparts: poll_issue(A, cfg, VPOLL, VFLAG)
    A(f's_add_u32 {s(S_XS)}, {s(S_XS)}, {ALT*SEG_X}')
    A(f's_add_u32 {s(S_XD)}, {s(S_XD)}, {ALT*SEG_X}')
    A(f's_add_u32 {s(S_PS)}, {s(S_PS)}, {ALT*(SEG_PA if kind == "RA" else SEG_PB)}')
    A(f's_add_u32 {s(S_NS)}, {s(S_NS)}, {ALT*SEG_XN}')
    A(f's_add_u32 {s(S_TMP)}, {s(S_SEG)}, 1')
    A(f's_add_u32 {s(S_SEG)}, {s(S_SEG)}, {ALT}')
    A('s_waitcnt vmcnt(0)')
    fst(A, cfg, 6, S_SEG, 32+ALT)
    if not final: publish(A, s(S_TMP), VT, VZERO)
    elif cfg.get('TIME'): tstamp(A, CFG, s(S_TMP), VT, VZERO)
    A(f's_cmp_ge_u32 {s(S_SEG)}, 64')
    A(f's_cbranch_scc1 {done}')
    if nparts:
        A(f's_add_u32 {s(S_TGT)}, {s(S_SEG)}, 1')
        poll_check(A, cfg, VPOLL, s(S_TGT), VFLAG, fail)
    A(f's_branch {loop}')

def causal_masks(A, sbase, vt=72):
    A(f'v_lshlrev_b32 {v(vt)}, 2, v77')
    for r in range(4):
        A(f'v_add_u32 {v(vt+1)}, {r}, {v(vt)}')
        A(f'v_cmp_gt_u32 {s(sbase+2*r,2)}, {v(vt+1)}, v78')

def role_attb(A, cfg, fail, done):
    set_scope(True)
    w = s(S_WAVE)
    lane_setup(A)
    S_HH = S_A
    A(f's_lshl_b32 {s(S_HH)}, {s(S_IDX)}, 2')
    A(f's_add_u32 {s(S_HH)}, {s(S_HH)}, {w}')
    SMK = 46
    causal_masks(A, SMK)
    VL16, VP1, VP2, VFLAG, VZERO, VT, VSC, VNEG, VL8 = 220, 221, 222, 223, 224, 225, 226, 227, 228
    NEWKV = not cfg.get('OLDCHAIN')
    A(f'v_lshlrev_b32 {v(VL16)}, 4, v79')
    A(f'v_lshlrev_b32 {v(VL8)}, 3, v79')
    A(f'v_mov_b32 {v(VZERO)}, 0')
    A(f'v_mov_b32 {v(VSC)}, {hex(f32((128 ** -0.5) * 1.4426950408889634))}')
    A(f'v_mov_b32 {v(VNEG)}, {hex(BIGNEG)}')
    sel_layer(A, S_TMP+2, R_B1); A(f's_add_u32 {s(S_TMP+2)}, {s(S_TMP+2)}, {s(S_HH)}')
    flagaddr(A, VP1, s(S_TMP+2), 4)
    sel_layer(A, S_TMP+2, R_CHAIN); A(f's_add_u32 {s(S_TMP+2)}, {s(S_TMP+2)}, {s(S_HH)}')
    flagaddr(A, VP2, s(S_TMP+2), 4)
    own_flag(A)
    S_QX, S_KV, S_OB = S_B, S_C, S_D
    A(f's_mul_i32 {s(S_QX)}, {s(S_L)}, {QKVX_STRIDE}')
    A(f's_mul_i32 {s(S_TMP)}, {s(S_HH)}, 24576')
    A(f's_add_u32 {s(S_QX)}, {s(S_QX)}, {s(S_TMP)}')
    A(f's_add_u32 {s(S_QX)}, {s(S_QX)}, {WS_QKVX}')
    A(f's_mul_i32 {s(S_KV)}, {s(S_L)}, {KVM_STRIDE}')
    A(f's_lshl_b32 {s(S_TMP)}, {s(S_HH)}, 13')
    A(f's_add_u32 {s(S_KV)}, {s(S_KV)}, {s(S_TMP)}')
    A(f's_add_u32 {s(S_KV)}, {s(S_KV)}, {WS_KVM}')
    sel_layer(A, S_OB, WS_OB)
    A(f's_lshr_b32 {s(S_TMP)}, {s(S_HH)}, 3'); A(f's_lshl_b32 {s(S_TMP)}, {s(S_TMP)}, 16')
    A(f's_add_u32 {s(S_OB)}, {s(S_OB)}, {s(S_TMP)}')
    A(f's_and_b32 {s(S_TMP)}, {s(S_HH)}, 7'); A(f's_lshl_b32 {s(S_TMP)}, {s(S_TMP)}, 12')
    A(f's_add_u32 {s(S_OB)}, {s(S_OB)}, {s(S_TMP)}')
    cfg['barrier_wait'](A)
    A(f's_mov_b32 {s(S_SEG)}, 0')
    Q = lambda tt, kk: tt*16 + kk*4
    KX = lambda kt, kk: 32 + kt*16 + kk*4
    VX = lambda et: 64 + et*4
    KM = lambda kk: 96 + kk*4
    VM = lambda et: 112 + et*2
    S00, S01, S11, SM0, SM1 = 128, 132, 136, 140, 144
    O = lambda et, tt: 148 + ((tt*4 + et//2)*2 + (et & 1))*4
    XT = 0
    def qkvx_loads():
        for blk in range(6):
            A(f's_add_u32 {s(S_TMP)}, {s(S_QX)}, {blk*4096}')
            for j in range(4):
                A(f'buffer_load_dwordx4 {v((blk*4+j)*4,4)}, {v(VL16)}, {s(S_WS,4)}, {s(S_TMP)} offen offset:{j*1024}')
        A(f's_add_u32 {s(S_QX)}, {s(S_QX)}, {32*24576}')
    def kvm_loads():
        A(f's_add_u32 {s(S_TMP)}, {s(S_KV)}, 4096')
        for j in range(4): A(f'buffer_load_dwordx4 {v(KM(j),4)}, {v(VL16)}, {s(S_WS,4)}, {s(S_KV)} offen offset:{j*1024}')
        if NEWKV:
            for j in range(4): A(f'buffer_load_dwordx2 {v(112+2*j,2)}, {v(VL8)}, {s(S_WS,4)}, {s(S_TMP)} offen offset:{j*512}')
        else:
            for j in range(4): A(f'buffer_load_dwordx4 {v(112+4*j,4)}, {v(VL16)}, {s(S_WS,4)}, {s(S_TMP)} offen offset:{j*1024}')
        A(f's_add_u32 {s(S_KV)}, {s(S_KV)}, {32*8192}')
    def sx_mfma():
        for kk in range(4):
            for (acc, kt, tt) in ((S00, 0, 0), (S01, 0, 1), (S11, 1, 1)):
                A(f'{MF} {v(acc,4)}, {v(KX(kt,kk),4)}, {v(Q(tt,kk),4)}, {"0" if kk == 0 else v(acc,4)}')
    A(f's_mov_b32 {s(S_TGT)}, 1')
    poll_block(A, cfg, VP1, s(S_TGT), VFLAG, fail)
    qkvx_loads()
    A('s_waitcnt vmcnt(8)')
    slow = A.newlabel('bslow'); join = A.newlabel('bjoin'); loop = A.newlabel('bloop')
    A(f's_branch {slow}_2')
    A.label(loop); A.flush()
    fst(A, cfg, 0, S_SEG)
    if not cfg.get('NOWAIT'):
        A(f'v_cmp_gt_u32 vcc, {s(S_TGT)}, {v(VFLAG)}')
        A(f's_cbranch_vccnz {slow}')
    kvm_loads()
    A(f's_waitcnt vmcnt({8 + 8 + 1 + XT})')
    sx_mfma()
    A('s_nop 7')
    A(f's_branch {join}')
    A.label(slow); A.flush()
    A(f's_waitcnt vmcnt({8 + 1 + XT})')
    A.label(slow + '_2'); A.flush()
    sx_mfma()
    poll_block(A, cfg, VP2, s(S_TGT), VFLAG, fail)
    kvm_loads()
    A.label(join); A.flush()
    fst(A, cfg, 3, S_SEG)
    for r in range(4):
        A(f'v_cndmask_b32 {v(S00+r)}, {v(S00+r)}, {v(VNEG)}, {s(SMK+2*r,2)}')
        A(f'v_cndmask_b32 {v(S11+r)}, {v(S11+r)}, {v(VNEG)}, {s(SMK+2*r,2)}')
    A('s_waitcnt vmcnt(4)')
    fst(A, cfg, 4, S_SEG)
    for kk in range(4):
        for (acc, tt) in ((SM0, 0), (SM1, 1)):
            A(f'{MF} {v(acc,4)}, {v(KM(kk),4)}, {v(Q(tt,kk),4)}, {"0" if kk == 0 else v(acc,4)}')
    MX = [230, 232]; T = 234; NM = [236, 237]; SUM = [238, 239]
    xs = [[S00], [S01, S11]]; ms = [SM0, SM1]
    NM_ = 2 if NEWKV else 4
    assert NEWKV
    allv = lambda tt: [x+r for x in xs[tt] for r in range(4)] + [ms[tt]+r for r in range(NM_)]
    for tt in range(2):
        vals = allv(tt)
        mx = MX[tt]
        A(f'v_max3_f32 {v(mx)}, {v(vals[0])}, {v(vals[1])}, {v(vals[2])}')
        rest = vals[3:]
        while len(rest) >= 2:
            A(f'v_max3_f32 {v(mx)}, {v(mx)}, {v(rest[0])}, {v(rest[1])}'); rest = rest[2:]
        if rest: A(f'v_max_f32 {v(mx)}, {v(mx)}, {v(rest[0])}')
    for tt in range(2):
        xlane_sum(A, MX[tt], T + tt, op='v_max_f32', ror8=False)
    for tt in range(2):
        A(f'v_mul_f32 {v(NM[tt])}, {hex(f32(-(128 ** -0.5) * 1.4426950408889634))}, {v(MX[tt])}')
    for tt in range(2):
        for x in allv(tt): A(f'v_fma_f32 {v(x)}, {v(x)}, {v(VSC)}, {v(NM[tt])}')
    for tt in range(2):
        for x in allv(tt): A(f'v_exp_f32 {v(x)}, {v(x)}')
    P0, P1, PM0, PM1 = 240, 244, 248, 252
    cvt(A, P0, S00, S00+1); cvt(A, P0+1, S00+2, S00+3)
    A(f'v_mov_b32 {v(P0+2)}, 0'); A(f'v_mov_b32 {v(P0+3)}, 0')
    cvt(A, P1, S01, S01+1); cvt(A, P1+1, S01+2, S01+3); cvt(A, P1+2, S11, S11+1); cvt(A, P1+3, S11+2, S11+3)
    for (pm, sm) in ((PM0, SM0), (PM1, SM1)):
        cvt(A, pm, sm, sm+1); A(f'v_mov_b32 {v(pm+1)}, 0'); A(f'v_mov_b32 {v(pm+2)}, 0'); A(f'v_mov_b32 {v(pm+3)}, {v(pm)}')
    for et in range(8):
        for tt in range(2):
            A(f'{MF} {v(O(et,tt),4)}, {v(VX(et),4)}, {v([P0,P1][tt],4)}, 0')
    for tt in range(2):
        vals = allv(tt)
        A(f'v_add_f32 {v(SUM[tt])}, {v(vals[0])}, {v(vals[1])}')
        for x in vals[2:]: A(f'v_add_f32 {v(SUM[tt])}, {v(SUM[tt])}, {v(x)}')
    A('s_waitcnt vmcnt(0)')
    for et in range(8):
        for tt in range(2):
            A(f'{MF16} {v(O(et,tt),4)}, {v(112 + 2*(et>>1),2)}, {v([PM0,PM1][tt] + 2*(et&1),2)}, {v(O(et,tt),4)}')
    for tt in range(2):
        xlane_sum(A, SUM[tt], T + tt, ror8=False)
    for tt in range(2): A(f'v_rcp_f32 {v(SUM[tt])}, {v(SUM[tt])}')
    for tt in range(2):
        A(f's_add_u32 {s(S_TMP)}, {s(S_OB)}, {tt*32768}')
        for kk in range(4):
            b = O(2*kk, tt)
            for r in range(8): A(f'v_mul_f32 {v(b+r)}, {v(b+r)}, {v(SUM[tt])}')
            cvt(A, b, b, b+1); cvt(A, b+1, b+2, b+3); cvt(A, b+2, b+4, b+5); cvt(A, b+3, b+6, b+7)
            A(f'buffer_store_dwordx4 {v(b,4)}, {v(VL16)}, {s(S_WS,4)}, {s(S_TMP)} offen offset:{kk*1024}' + SCOPE[0])
    fst(A, cfg, 5, S_SEG)
    A(f's_add_u32 {s(S_OB)}, {s(S_OB)}, {SEG_OB}')
    A(f's_add_u32 {s(S_SEG)}, {s(S_SEG)}, 1')
    last = A.newlabel('blast')
    A(f's_cmp_ge_u32 {s(S_SEG)}, 64')
    A(f's_cbranch_scc1 {last}')
    poll_issue(A, cfg, VP2, VFLAG)
    qkvx_loads()
    A('s_waitcnt vmcnt(24)')
    fst(A, cfg, 6, S_SEG, 33)
    publish(A, s(S_SEG), VT, VZERO)
    A(f's_add_u32 {s(S_TGT)}, {s(S_SEG)}, 1')
    A(f's_branch {loop}')
    A.label(last); A.flush()
    A('s_waitcnt vmcnt(0)')
    publish(A, s(S_SEG), VT, VZERO)
    A(f's_branch {done}')

NSLOT = 10
def role_atta(A, cfg, fail, done):
    set_scope(True)
    w = s(S_WAVE)
    lane_setup(A)
    S_HH, S_TT, S_HD = S_A, S_B, S_C
    A(f's_lshr_b32 {s(S_HH)}, {w}, 1')
    A(f's_and_b32 {s(S_TT)}, {w}, 1')
    A(f's_lshl_b32 {s(S_HD)}, {s(S_IDX)}, 1')
    A(f's_add_u32 {s(S_HD)}, {s(S_HD)}, {s(S_HH)}')
    SMK = 46
    causal_masks(A, SMK)
    VKB, VVB, VL8, VL16, VPOLL, VFLAG, VZERO, VT, VNEG, MK2, MK3, VO1, VO2 = 150, 151, 152, 153, 154, 155, 156, 157, 158, 159, 160, 161, 162
    SCP, NMP = 164, 166
    A(f'v_lshlrev_b32 {v(VL8)}, 3, v79')
    A(f'v_lshlrev_b32 {v(VL16)}, 4, v79')
    A(f's_lshl_b32 {s(S_TMP)}, {s(S_HH)}, 12')
    A(f'v_add_u32 {v(VKB)}, {s(S_TMP)}, {v(VL8)}')
    A(f'v_add_u32 {v(VVB)}, {s(S_TMP)}, {v(VL16)}')
    A(f'v_mov_b32 {v(VZERO)}, 0')
    A(f'v_mov_b32 {v(VNEG)}, {hex(BIGNEG)}')
    SC = (18 ** -0.5) * 1.4426950408889634
    A(f'v_mov_b32 {v(SCP)}, {hex(f32(SC))}'); A(f'v_mov_b32 {v(SCP+1)}, {hex(f32(SC))}')
    for i in range(4): A(f'v_mov_b32 {v(128+i)}, 0x3f803f80')
    A(f's_and_b32 {s(S_TMP)}, {s(S_IDX)}, 3')
    A(f'v_cmp_eq_u32 vcc, {s(S_TMP)}, v77')
    A(f's_mov_b64 {s(54,2)}, vcc')
    A(f'v_cndmask_b32 {v(MK2)}, 0, -1, vcc')
    A(f'v_mov_b32 {v(MK3)}, {v(MK2)}')
    A(f's_cmp_eq_u32 {s(S_HH)}, 0')
    A(f's_cselect_b32 {s(S_TMP)}, -1, 0')
    A(f'v_and_b32 {v(MK2)}, {s(S_TMP)}, {v(MK2)}')
    A(f's_not_b32 {s(S_TMP)}, {s(S_TMP)}')
    A(f'v_and_b32 {v(MK3)}, {s(S_TMP)}, {v(MK3)}')
    A(f's_cselect_b64 {s(56,2)}, 0, -1') if False else None
    A(f's_cmp_eq_u32 {s(S_HH)}, 0')
    A(f's_cselect_b64 {s(56,2)}, 0, -1')
    A(f's_lshl_b32 {s(S_TMP)}, {s(S_HH)}, 3')
    A(f'v_add_u32 {v(VO1)}, {s(S_TMP)}, {v(VL16)}')
    A(f's_bfe_u32 {s(S_TMP)}, {s(S_HD)}, 0x10003')
    A(f's_lshl_b32 {s(S_TMP)}, {s(S_TMP)}, 3')
    A(f's_lshl_b32 {s(S_TMP+1)}, {s(S_HH)}, 2')
    A(f's_add_u32 {s(S_TMP)}, {s(S_TMP)}, {s(S_TMP+1)}')
    A(f'v_add_u32 {v(VO2)}, {s(S_TMP)}, {v(VL16)}')
    S_O1, S_O2, S_D1, S_D2, S_Q1, S_Q2, S_LD = 58, 59, 60, 61, 64, 65, 66
    sel_layer(A, S_O1, WS_OA)
    A(f's_mul_i32 {s(S_TMP)}, {s(S_TT)}, 18432')
    A(f's_add_u32 {s(S_O1)}, {s(S_O1)}, {s(S_TMP)}')
    A(f's_lshr_b32 {s(S_TMP)}, {s(S_HD)}, 4'); A(f's_add_u32 {s(S_TMP)}, {s(S_TMP)}, 16'); A(f's_lshl_b32 {s(S_TMP)}, {s(S_TMP)}, 10')
    A(f's_add_u32 {s(S_O2)}, {s(S_O1)}, {s(S_TMP)}')
    A(f's_lshr_b32 {s(S_TMP)}, {s(S_HD)}, 1'); A(f's_lshl_b32 {s(S_TMP)}, {s(S_TMP)}, 10')
    A(f's_add_u32 {s(S_O1)}, {s(S_O1)}, {s(S_TMP)}')
    sel_layer(A, S_Q1, WS_QKVA)
    A(f's_lshl_b32 {s(S_TMP)}, {s(S_HD)}, 10')
    A(f's_lshr_b32 {s(S_TMP+1)}, {s(S_HD)}, 3'); A(f's_add_u32 {s(S_TMP+1)}, {s(S_TMP+1)}, 32'); A(f's_lshl_b32 {s(S_TMP+1)}, {s(S_TMP+1)}, 10')
    A(f's_add_u32 {s(S_Q2)}, {s(S_Q1)}, {s(S_TMP+1)}')
    A(f's_add_u32 {s(S_Q1)}, {s(S_Q1)}, {s(S_TMP)}')
    A(f's_add_u32 {s(S_TMP)}, {s(S_TT)}, 1'); A(f's_mul_i32 {s(S_TMP)}, {s(S_TMP)}, 36864')
    A(f's_add_u32 {s(S_D1)}, {s(S_Q1)}, {s(S_TMP)}')
    A(f's_add_u32 {s(S_D2)}, {s(S_Q2)}, {s(S_TMP)}')
    A(f's_lshl_b32 {s(S_TMP)}, {s(S_TT)}, 9')
    A(f's_add_u32 {s(S_Q1)}, {s(S_Q1)}, {s(S_TMP)}')
    A(f's_add_u32 {s(S_Q2)}, {s(S_Q2)}, {s(S_TMP)}')
    A(f's_lshl_b32 {s(S_LD)}, {s(S_HH)}, 12')
    A(f's_lshl_b32 {s(S_TMP)}, {s(S_TT)}, 11')
    A(f's_add_u32 {s(S_LD)}, {s(S_LD)}, {s(S_TMP)}')
    sel_layer(A, S_TMP+2, R_A1)
    flagaddr(A, VPOLL, s(S_TMP+2), 36)
    own_flag(A)
    for i in range(4): A(f'v_mov_b32 {v(i)}, 0')
    A('v_lshlrev_b32 v4, 4, v75')
    A('v_add_u32 v5, 0x10000, v4')
    for i in range(NSLOT*8192//4096):
        A(f'ds_write_b128 {"v4" if i < 16 else "v5"}, v[0:3] offset:{(i % 16)*4096}')
    A('s_waitcnt lgkmcnt(0)')
    cfg['barrier_wait'](A)
    A('s_barrier')
    S_SL = 68
    for m in range(9): A(f's_mov_b32 {s(S_SL+m)}, {((2+m) % NSLOT)*8192}')
    A(f's_mov_b32 {s(S_SEG)}, 0')
    l1 = A.newlabel('aatt1')
    A(f's_cmp_eq_u32 {s(S_TT)}, 1')
    A(f's_cbranch_scc1 {l1}')
    KR, VR, QF, OM, OL, OD, ONES = 72, 88, 112, 116, 120, 124, 128
    VK = lambda m: 132 + m
    VV = lambda m: 141 + m
    for tt in range(2):
        if tt: A.label(l1); A.flush()
        loop = A.newlabel('aloop')
        A(f's_add_u32 {s(S_TGT)}, {s(S_SEG)}, 1')
        poll_block(A, cfg, VPOLL, s(S_TGT), VFLAG, fail)
        A.label(loop)
        fst(A, cfg, 1, S_SEG)
        A(f's_add_u32 {s(S_TMP)}, {s(S_LD)}, {s(S_SL+8)}')
        A(f's_mov_b32 m0, {s(S_TMP)}')
        A(f'buffer_load_dwordx4 {v(VL16)}, {s(S_WS,4)}, {s(S_D1)} offen lds')
        A(f's_add_u32 {s(S_TMP)}, {s(S_TMP)}, 1024')
        A(f's_mov_b32 m0, {s(S_TMP)}')
        A(f'buffer_load_dwordx4 {v(VL16)}, {s(S_WS,4)}, {s(S_D2)} offen lds')
        A(f'buffer_load_dwordx2 {v(QF,2)}, {v(VL8)}, {s(S_WS,4)}, {s(S_Q1)} offen')
        A(f'buffer_load_dwordx2 {v(QF+2,2)}, {v(VL8)}, {s(S_WS,4)}, {s(S_Q2)} offen')
        for m in range(9):
            A(f'v_add_u32 {v(VK(m))}, {s(S_SL+m)}, {v(VKB)}')
            A(f'v_add_u32 {v(VV(m))}, {s(S_SL+m)}, {v(VVB)}')
        A('s_waitcnt vmcnt(0)')
        fst(A, cfg, 2, S_SEG)
        A(f'v_and_b32 {v(QF+2)}, {v(MK2)}, {v(QF+2)}')
        A(f'v_and_b32 {v(QF+3)}, {v(MK3)}, {v(QF+3)}')
        A('s_barrier')
        fst(A, cfg, 3, S_SEG)
        tiles = list(range(tt, tt+17))
        def kread(i):
            j = tiles[i]
            A(f'ds_read2st64_b64 {v(KR+4*(i%4),4)}, {v(VK(j>>1))} offset0:{j&1} offset1:{2+(j&1)}')
        for i in range(4): kread(i)
        for i in range(17):
            A(f's_waitcnt lgkmcnt({min(3, 16-i)})')
            A(f'{MF} {v(4*tiles[i],4)}, {v(KR+4*(i%4),4)}, {v(QF,4)}, 0')
            if i + 4 < 17: kread(i+4)
        def vread(m):
            A(f'ds_read_b128 {v(VR+8*(m%3),4)}, {v(VV(m))} offset:2048')
            A(f'ds_read_b128 {v(VR+8*(m%3)+4,4)}, {v(VV(m))} offset:3072')
        for m in range(3): vread(m)
        jf, jl = tiles[0], tiles[-1]
        for r in range(4):
            A(f'v_cndmask_b32 {v(4*jf+r)}, {v(VNEG)}, {v(4*jf+r)}, {s(SMK+2*r,2)}')
        for r in range(4):
            A(f'v_cndmask_b32 {v(4*jl+r)}, {v(4*jl+r)}, {v(VNEG)}, {s(SMK+2*r,2)}')
        lok = A.newlabel('aval')
        A(f's_cmp_ge_u32 {s(S_SEG)}, 8')
        A(f's_cbranch_scc1 {lok}')
        for m in range(8):
            A(f's_cmp_ge_u32 {s(S_SEG)}, {8-m}')
            A(f's_cbranch_scc1 {lok}')
            for j in (2*m, 2*m+1):
                if j in tiles:
                    for r in range(4): A(f'v_mov_b32 {v(4*j+r)}, {v(VNEG)}')
        A.label(lok)
        A('s_nop 7')
        fst(A, cfg, 4, S_SEG)
        vals = [4*j+r for j in tiles for r in range(4)]
        MX, MX2, T = 168, 169, 170
        A(f'v_max3_f32 {v(MX)}, {v(vals[0])}, {v(vals[1])}, {v(vals[2])}')
        A(f'v_max3_f32 {v(MX2)}, {v(vals[3])}, {v(vals[4])}, {v(vals[5])}')
        rest = vals[6:]; k = 0
        while len(rest) >= 2:
            d = [MX, MX2][k % 2]; k += 1
            A(f'v_max3_f32 {v(d)}, {v(d)}, {v(rest[0])}, {v(rest[1])}'); rest = rest[2:]
        assert not rest
        A(f'v_max_f32 {v(MX)}, {v(MX)}, {v(MX2)}')
        xlane_sum(A, MX, T, op='v_max_f32', ror8=False)
        A(f'v_mul_f32 {v(NMP)}, {hex(f32(-SC))}, {v(MX)}')
        A(f'v_mov_b32 {v(NMP+1)}, {v(NMP)}')
        for m in range(9):
            for j in (2*m, 2*m+1):
                if j in tiles:
                    for r in (0, 2): A(f'v_pk_fma_f32 {v(4*j+r,2)}, {v(4*j+r,2)}, {v(SCP,2)}, {v(NMP,2)}')
            for j in (2*m, 2*m+1):
                if j in tiles:
                    for r in range(4): A(f'v_exp_f32 {v(4*j+r)}, {v(4*j+r)}')
            b = 8*m
            if 2*m in tiles: cvt(A, b, b, b+1); cvt(A, b+1, b+2, b+3)
            else: A(f'v_mov_b32 {v(b)}, 0'); A(f'v_mov_b32 {v(b+1)}, 0')
            if 2*m+1 in tiles: cvt(A, b+2, b+4, b+5); cvt(A, b+3, b+6, b+7)
            else: A(f'v_mov_b32 {v(b+2)}, 0'); A(f'v_mov_b32 {v(b+3)}, 0')
            A(f's_waitcnt lgkmcnt({2*min(2, 8-m)})')
            c = lambda r: '0' if m == 0 else v(r, 4)
            A(f'{MF} {v(OM,4)}, {v(VR+8*(m%3),4)}, {v(b,4)}, {c(OM)}')
            A(f'{MF} {v(OL,4)}, {v(VR+8*(m%3)+4,4)}, {v(b,4)}, {c(OL)}')
            A(f'{MF} {v(OD,4)}, {v(ONES,4)}, {v(b,4)}, {c(OD)}')
            if m + 3 < 9: vread(m+3)
        A(f'v_rcp_f32 {v(T)}, {v(OD)}')
        for r in range(4):
            A(f'v_mul_f32 {v(OM+r)}, {v(OM+r)}, {v(T)}')
            A(f'v_mul_f32 {v(OL+r)}, {v(OL+r)}, {v(T)}')
        cvt(A, OM, OM, OM+1); cvt(A, OM+1, OM+2, OM+3)
        cvt(A, OL, OL, OL+1); cvt(A, OL+1, OL+2, OL+3)
        A(f'v_cndmask_b32 {v(OL)}, {v(OL)}, {v(OL+1)}, {s(56,2)}')
        A(f'buffer_store_dwordx2 {v(OM,2)}, {v(VO1)}, {s(S_WS,4)}, {s(S_O1)} offen' + SCOPE[0])
        A(f's_mov_b64 exec, {s(54,2)}')
        A(f'buffer_store_dword {v(OL)}, {v(VO2)}, {s(S_WS,4)}, {s(S_O2)} offen' + SCOPE[0])
        A('s_mov_b64 exec, -1')
        fst(A, cfg, 5, S_SEG)
        poll_issue(A, cfg, VPOLL, VFLAG)
        for r in (S_O1, S_O2): A(f's_add_u32 {s(r)}, {s(r)}, {SEG_XN}')
        for r in (S_D1, S_D2, S_Q1, S_Q2): A(f's_add_u32 {s(r)}, {s(r)}, {SEG_QKVA}')
        for m in range(9):
            A(f's_add_u32 {s(S_SL+m)}, {s(S_SL+m)}, 8192')
            A(f's_cmp_eq_u32 {s(S_SL+m)}, {NSLOT*8192}')
            A(f's_cselect_b32 {s(S_SL+m)}, 0, {s(S_SL+m)}')
        A(f's_add_u32 {s(S_SEG)}, {s(S_SEG)}, 1')
        A('s_waitcnt vmcnt(0)')
        fst(A, cfg, 6, S_SEG, 33)
        publish(A, s(S_SEG), VT, VZERO)
        A(f's_cmp_ge_u32 {s(S_SEG)}, 64')
        A(f's_cbranch_scc1 {done}')
        A(f's_add_u32 {s(S_TGT)}, {s(S_SEG)}, 1')
        poll_check(A, cfg, VPOLL, s(S_TGT), VFLAG, fail)
        A(f's_branch {loop}')
```

```python
from roles import *

BIGNEG = 0xff7fffff

def xlane_sum(A, x, t, op='v_add_f32', ror8=True):
    if ror8: A(f'{op}_dpp {v(x)}, {v(x)}, {v(x)} row_ror:8 row_mask:0xf bank_mask:0xf')
    A(f'v_mov_b32 {v(t)}, {v(x)}')
    A(f'v_permlane16_swap_b32 {v(x)}, {v(t)}')
    A(f'{op} {v(x)}, {v(x)}, {v(t)}')
    A(f'v_mov_b32 {v(t)}, {v(x)}')
    A(f'v_permlane32_swap_b32 {v(x)}, {v(t)}')
    A(f'{op} {v(x)}, {v(x)}, {v(t)}')

def role_red(A, cfg, kind, l, fail, done):
    set_scope(False)
    w = s(S_WAVE)
    nparts = {'R0': 0, 'RA': 1, 'RB': 4}[kind]
    final = (kind == 'RB' and l == 1)
    ALT = 2 if kind == 'RB' else 1
    lane_setup(A)
    S_PAR = S_X + 1
    A(f's_lshr_b32 {s(S_PAR)}, {s(S_IDX)}, 2')
    A(f's_and_b32 {s(S_IDX)}, {s(S_IDX)}, 3')
    SX, SO = 48, 52
    S_XS, S_XD, S_PS, S_NS = S_A, S_B, S_C, S_D
    VXA, VPA, VNA, VPOLL, VFLAG, VZERO, VT, VST = 110, 111, 112, 113, 114, 115, 116, 117
    A('v_bfe_u32 v72, v79, 3, 2')
    A('v_lshrrev_b32 v73, 5, v79')
    A(f's_mul_i32 {s(S_TMP)}, {w}, 9')
    A(f'v_add_u32 v73, {s(S_TMP)}, v73')
    A(f'v_mul_u32_u24 {v(VXA)}, 1152, v76')
    A(f'v_lshlrev_b32 v74, 5, v73'); A(f'v_add_u32 {v(VXA)}, {v(VXA)}, v74')
    A(f'v_lshlrev_b32 v74, 3, v72'); A(f'v_add_u32 {v(VXA)}, {v(VXA)}, v74')
    A(f'v_lshlrev_b32 {v(VPA)}, 4, v79')
    A(f's_mul_i32 {s(S_TMP)}, {w}, 4608')
    A(f'v_add_u32 {v(VPA)}, {s(S_TMP)}, {v(VPA)}')
    A(f'v_lshrrev_b32 {v(VNA)}, 1, v73'); A(f'v_lshlrev_b32 {v(VNA)}, 10, {v(VNA)}')
    A(f'v_and_b32 v74, 1, v73'); A(f'v_lshlrev_b32 v74, 3, v74'); A(f'v_add_u32 {v(VNA)}, {v(VNA)}, v74')
    A(f'v_lshlrev_b32 v74, 4, v72'); A(f'v_add_u32 v74, v74, v76'); A(f'v_lshlrev_b32 v74, 4, v74')
    A(f'v_add_u32 {v(VNA)}, {v(VNA)}, v74')
    A(f's_and_b32 {s(S_TMP)}, {s(S_IDX)}, 1')
    A(f's_lshr_b32 {s(S_TMP+1)}, {s(S_IDX)}, 1')
    A(f's_lshl_b32 {s(S_TMP+2)}, {s(S_TMP)}, 7')
    A(f'v_add_u32 {v(VNA)}, {s(S_TMP+2)}, {v(VNA)}')
    A(f'v_lshlrev_b32 {v(VST)}, 3, v76')
    A(f'v_mov_b32 {v(VZERO)}, 0')
    A(f's_mul_i32 {s(S_XS)}, {s(S_IDX)}, {8*1152}')
    A(f's_mov_b32 {s(S_XD)}, {s(S_XS)}')
    A(f's_mul_i32 {s(S_PS)}, {s(S_IDX)}, 18432')
    A(f's_mul_i32 {s(S_NS)}, {s(S_TMP+1)}, 18432')
    XB = 2048*1152
    if kind == 'R0' or (kind == 'RA' and l == 0):
        A(f's_load_dwordx2 {s(S_PTR,2)}, {s(S_KA,2)}, {KA_AX}'); A('s_waitcnt lgkmcnt(0)')
        srd_from_ptr(A, SX, S_PTR, XB)
    else:
        for i in range(4): A(f's_mov_b32 {s(SX+i)}, {s(S_WS+i)}')
        A(f's_add_u32 {s(S_XS)}, {s(S_XS)}, {hex(WS_X2 if kind == "RA" else WS_X1[l])}')
    if final:
        A(f's_load_dwordx2 {s(S_PTR,2)}, {s(S_KA,2)}, {KA_OUT}'); A('s_waitcnt lgkmcnt(0)')
        srd_from_ptr(A, SO, S_PTR, XB)
    else:
        for i in range(4): A(f's_mov_b32 {s(SO+i)}, {s(S_WS+i)}')
        if kind != 'R0': A(f's_add_u32 {s(S_XD)}, {s(S_XD)}, {hex(WS_X1[l] if kind == "RA" else WS_X2)}')
    if nparts:
        A(f's_add_u32 {s(S_PS)}, {s(S_PS)}, {hex(WS_PA[l] if kind == "RA" else WS_PB[l])}')
        if kind == 'RA': flagaddr(A, VPOLL, R_A3[l], 12)
        else: flagaddr(A, VPOLL, R_B3[l], 48)
    if not final:
        A(f's_add_u32 {s(S_NS)}, {s(S_NS)}, {hex({"R0": WS_XNA[0], "RA": WS_XNB[l], "RB": WS_XNA[1]}[kind])}')
    own_flag(A)
    A(f's_mov_b32 {s(S_EXLO)}, -1'); A(f's_mov_b32 {s(S_EXLO+1)}, 0')
    if ALT == 2:
        for (r, st) in ((S_XS, SEG_X), (S_XD, SEG_X), (S_PS, SEG_PA if kind == "RA" else SEG_PB), (S_NS, SEG_XN)):
            A(f's_mul_i32 {s(S_TMP)}, {s(S_PAR)}, {st}'); A(f's_add_u32 {s(r)}, {s(r)}, {s(S_TMP)}')
    cfg['barrier_wait'](A)
    A(f's_mov_b32 {s(S_SEG)}, {s(S_PAR)}')
    A(f's_mov_b32 {s(S_X)}, 0')
    if nparts:
        A(f's_add_u32 {s(S_TGT)}, {s(S_SEG)}, 1')
        poll_block(A, cfg, VPOLL, s(S_TGT), VFLAG, fail)
    loop = A.newlabel('rloop')
    A.label(loop)
    fst(A, cfg, 1, S_SEG)
    XR = 20; PR = 128
    def masked(i, f):
        if i == 4: A(f's_mov_b64 exec, {s(S_EXLO,2)}')
        f()
        if i == 4: A('s_mov_b64 exec, -1')
    for i in range(5):
        masked(i, lambda: A(f'buffer_load_dwordx2 {v(XR+2*i,2)}, {v(VXA)}, {s(SX,4)}, {s(S_XS)} offen offset:{i*64}'))
    for p in range(nparts):
        A(f's_add_u32 {s(S_TMP)}, {s(S_PS)}, {p*73728}')
        A(f's_add_u32 {s(S_TMP+1)}, {s(S_TMP)}, 4096')
        for i in range(5):
            masked(i, lambda: A(f'buffer_load_dwordx4 {v(PR+p*20+i*4,4)}, {v(VPA)}, {s(S_WS,4)}, {s(S_TMP+1 if i == 4 else S_TMP)} offen offset:{(i%4)*1024}'))
    A('s_waitcnt vmcnt(0)')
    fst(A, cfg, 2, S_SEG)
    HI = 118
    if True:
        A(f'v_mov_b32 {v(HI)}, 0xffff0000')
    for i in range(5):
        X = 4*i
        def body():
            A(f'v_lshlrev_b32 {v(X)}, 16, {v(XR+2*i)}')
            A(f'v_and_b32 {v(X+1)}, {v(HI)}, {v(XR+2*i)}')
            A(f'v_lshlrev_b32 {v(X+2)}, 16, {v(XR+2*i+1)}')
            A(f'v_and_b32 {v(X+3)}, {v(HI)}, {v(XR+2*i+1)}')
            if nparts:
                y = PR + i*4
                if nparts == 4:
                    for (d, o) in ((0, 1), (2, 3), (0, 2)):
                        for hh in (0, 2):
                            A(f'v_pk_add_f32 {v(y+d*20+hh,2)}, {v(y+d*20+hh,2)}, {v(y+o*20+hh,2)}')
                cvt(A, y, y, y+1); cvt(A, y+1, y+2, y+3)
                A(f'v_lshlrev_b32 {v(y+4-4+2)}, 16, {v(y)}') if False else None
                A(f'v_and_b32 {v(y+2)}, {v(HI)}, {v(y)}')
                A(f'v_and_b32 {v(y+3)}, {v(HI)}, {v(y+1)}')
                A(f'v_lshlrev_b32 {v(y)}, 16, {v(y)}')
                A(f'v_lshlrev_b32 {v(y+1)}, 16, {v(y+1)}')
                A(f'v_add_f32 {v(X)}, {v(X)}, {v(y)}')
                A(f'v_add_f32 {v(X+1)}, {v(X+1)}, {v(y+2)}')
                A(f'v_add_f32 {v(X+2)}, {v(X+2)}, {v(y+1)}')
                A(f'v_add_f32 {v(X+3)}, {v(X+3)}, {v(y+3)}')
                cvt(A, XR+2*i, X, X+1); cvt(A, XR+2*i+1, X+2, X+3)
                A(f'buffer_store_dwordx2 {v(XR+2*i,2)}, {v(VXA)}, {s(SO,4)}, {s(S_XD)} offen offset:{i*64}' + ('' if final else ' sc1'))
                if not final:
                    A(f'v_lshlrev_b32 {v(X)}, 16, {v(XR+2*i)}')
                    A(f'v_and_b32 {v(X+1)}, {v(HI)}, {v(XR+2*i)}')
                    A(f'v_lshlrev_b32 {v(X+2)}, 16, {v(XR+2*i+1)}')
                    A(f'v_and_b32 {v(X+3)}, {v(HI)}, {v(XR+2*i+1)}')
        masked(i, body)
    if not final:
        SM, M2, T1 = 40, 41, 42
        A(f'v_pk_add_f32 {v(44,2)}, {v(0,2)}, {v(2,2)}')
        for i in range(1, 4):
            A(f'v_pk_add_f32 {v(44,2)}, {v(44,2)}, {v(4*i,2)}')
            A(f'v_pk_add_f32 {v(44,2)}, {v(44,2)}, {v(4*i+2,2)}')
        def b4():
            A(f'v_pk_add_f32 {v(44,2)}, {v(44,2)}, {v(16,2)}')
            A(f'v_pk_add_f32 {v(44,2)}, {v(44,2)}, {v(18,2)}')
        masked(4, b4)
        A(f'v_add_f32 {v(SM)}, v44, v45')
        xlane_sum(A, SM, T1)
        A(f'v_mul_f32 {v(SM)}, {hex(f32(1.0/144))}, {v(SM)}')
        A(f'v_mov_b32 {v(M2)}, 0')
        for i in range(5):
            def b5():
                for r in range(4):
                    A(f'v_sub_f32 {v(46)}, {v(4*i+r)}, {v(SM)}')
                    A(f'v_fmac_f32 {v(M2)}, v46, v46')
            masked(i, b5)
        xlane_sum(A, M2, T1)
        A(f's_lshl_b32 {s(S_TMP)}, {w}, 6')
        A(f's_add_u32 {s(S_TMP)}, {s(S_TMP)}, {s(S_X)}')
        A(f'v_add_u32 {v(T1)}, {s(S_TMP)}, {v(VST)}')
        A('s_mov_b64 exec, 0xff')
        A(f'ds_write_b64 {v(T1)}, {v(SM,2)}')
        A('s_mov_b64 exec, -1')
        A(f'v_add_u32 {v(T1)}, {s(S_X)}, {v(VST)}')
        A('s_waitcnt lgkmcnt(0)')
        fst(A, cfg, 3, S_SEG)
        A('s_barrier')
        fst(A, cfg, 4, S_SEG)
        for ww in range(4):
            A(f'ds_read_b64 {v(48+2*ww,2)}, {v(T1)} offset:{ww*64}')
        A(f's_xor_b32 {s(S_X)}, {s(S_X)}, 256')
        A('s_waitcnt lgkmcnt(0)')
        A('v_add_f32 v56, v48, v50'); A('v_add_f32 v57, v52, v54'); A('v_add_f32 v56, v56, v57')
        A('v_mul_f32 v56, 0.25, v56')
        A('v_add_f32 v57, v49, v51'); A('v_add_f32 v58, v53, v55'); A('v_add_f32 v57, v57, v58')
        A('v_mov_b32 v58, 0')
        for ww in range(4):
            A(f'v_sub_f32 v59, {v(48+2*ww)}, v56')
            A(f'v_fmac_f32 v58, v59, v59')
        A(f'v_fmac_f32 v57, {hex(f32(144.0))}, v58')
        A(f'v_mov_b32 v59, {hex(f32(1e-5))}')
        A(f'v_fmac_f32 v59, {hex(f32(1.0/576))}, v57')
        A('v_rsq_f32 v59, v59')
        A(f's_add_u32 {s(S_TMP+1)}, {s(S_NS)}, 4096')
        for i in range(5):
            def b6():
                X = 4*i
                for r in range(4):
                    A(f'v_sub_f32 {v(X+r)}, {v(X+r)}, v56')
                for r in range(4):
                    A(f'v_mul_f32 {v(X+r)}, {v(X+r)}, v59')
                cvt(A, X, X, X+1); cvt(A, X+1, X+2, X+3)
                A(f'buffer_store_dwordx2 {v(X,2)}, {v(VNA)}, {s(S_WS,4)}, {s(S_TMP+1 if i == 4 else S_NS)} offen offset:{(i%4)*1024} sc1')
            masked(i, b6)
    fst(A, cfg, 5, S_SEG)
    if nparts: poll_issue(A, cfg, VPOLL, VFLAG)
    A(f's_add_u32 {s(S_XS)}, {s(S_XS)}, {ALT*SEG_X}')
    A(f's_add_u32 {s(S_XD)}, {s(S_XD)}, {ALT*SEG_X}')
    A(f's_add_u32 {s(S_PS)}, {s(S_PS)}, {ALT*(SEG_PA if kind == "RA" else SEG_PB)}')
    A(f's_add_u32 {s(S_NS)}, {s(S_NS)}, {ALT*SEG_XN}')
    A(f's_add_u32 {s(S_TMP)}, {s(S_SEG)}, 1')
    A(f's_add_u32 {s(S_SEG)}, {s(S_SEG)}, {ALT}')
    A('s_waitcnt vmcnt(0)')
    fst(A, cfg, 6, S_SEG, 32+ALT)
    if not final: publish(A, s(S_TMP), VT, VZERO)
    elif cfg.get('TIME'): tstamp(A, CFG, s(S_TMP), VT, VZERO)
    A(f's_cmp_ge_u32 {s(S_SEG)}, 64')
    A(f's_cbranch_scc1 {done}')
    if nparts:
        A(f's_add_u32 {s(S_TGT)}, {s(S_SEG)}, 1')
        poll_check(A, cfg, VPOLL, s(S_TGT), VFLAG, fail)
    A(f's_branch {loop}')


def role_red2(A, cfg, kind, l, fail, done):
    set_scope(False)
    w = s(S_WAVE)
    nparts = {'R0': 0, 'RA': 1, 'RB': 4}[kind]
    final = (kind == 'RB' and l == 1)
    ALT = 2 if kind == 'RB' else 1
    xgate = not (kind == 'R0' or (kind == 'RA' and l == 0))
    lane_setup(A)
    S_PAR = S_X + 1; S_HAVE = S_X
    A(f's_lshr_b32 {s(S_PAR)}, {s(S_IDX)}, 2')
    A(f's_and_b32 {s(S_IDX)}, {s(S_IDX)}, 3')
    SX, SO = 48, 52
    S_PM = 56
    S_XS, S_XD, S_PS, S_NS = S_A, S_B, S_C, S_D
    VXA, VPA, VNW, VPOLL, VFLAG, VZERO, VT, VST, HI, VL16, VNG, VTG, VTOG, VP2, VF2 = range(96, 111)
    L_ST, L_XO, L_NO = 0, 1024, 10240
    A('v_bfe_u32 v72, v79, 3, 2')
    A('v_lshrrev_b32 v73, 5, v79')
    A(f'v_lshlrev_b32 {v(VNG)}, 10, v73')
    A(f'v_lshlrev_b32 v74, 8, v72'); A(f'v_add_u32 {v(VNG)}, {v(VNG)}, v74')
    A(f'v_lshlrev_b32 v74, 4, v76'); A(f'v_add_u32 {v(VNG)}, {v(VNG)}, v74')
    A(f's_mul_i32 {s(S_TMP)}, {w}, 9')
    A(f'v_add_u32 v73, {s(S_TMP)}, v73')
    A(f'v_mul_u32_u24 {v(VXA)}, 1152, v76')
    A(f'v_lshlrev_b32 v74, 5, v73'); A(f'v_add_u32 {v(VXA)}, {v(VXA)}, v74')
    A(f'v_lshlrev_b32 v74, 3, v72'); A(f'v_add_u32 {v(VXA)}, {v(VXA)}, v74')
    A(f'v_lshlrev_b32 {v(VL16)}, 4, v79')
    A(f's_mul_i32 {s(S_TMP)}, {w}, 4608')
    A(f'v_add_u32 {v(VPA)}, {s(S_TMP)}, {v(VL16)}')
    A(f'v_lshrrev_b32 {v(VNW)}, 1, v73'); A(f'v_lshlrev_b32 {v(VNW)}, 9, {v(VNW)}')
    A(f'v_and_b32 v74, 1, v73'); A(f'v_lshlrev_b32 v74, 3, v74'); A(f'v_add_u32 {v(VNW)}, {v(VNW)}, v74')
    A(f'v_lshlrev_b32 v74, 7, v72'); A(f'v_add_u32 {v(VNW)}, {v(VNW)}, v74')
    A(f'v_lshlrev_b32 v74, 4, v76'); A(f'v_add_u32 {v(VNW)}, {v(VNW)}, v74')
    A(f'v_add_u32 {v(VNW)}, {L_NO}, {v(VNW)}')
    A(f's_and_b32 {s(S_TMP)}, {s(S_IDX)}, 1')
    A(f's_lshr_b32 {s(S_TMP+1)}, {s(S_IDX)}, 1')
    A(f's_lshl_b32 {s(S_TMP+2)}, {s(S_TMP)}, 7')
    A(f'v_add_u32 {v(VNG)}, {s(S_TMP+2)}, {v(VNG)}')
    A(f'v_lshlrev_b32 {v(VST)}, 3, v76')
    A(f'v_mov_b32 {v(VZERO)}, 0')
    A(f'v_mov_b32 {v(HI)}, 0xffff0000')
    A(f's_mul_i32 {s(S_XS)}, {s(S_IDX)}, {8*1152}')
    A(f's_mov_b32 {s(S_XD)}, {s(S_XS)}')
    A(f's_mul_i32 {s(S_PS)}, {s(S_IDX)}, 18432')
    A(f's_mul_i32 {s(S_NS)}, {s(S_TMP+1)}, 18432')
    XB = 2048*1152
    if not xgate:
        A(f's_load_dwordx2 {s(S_PTR,2)}, {s(S_KA,2)}, {KA_AX}'); A('s_waitcnt lgkmcnt(0)')
        srd_from_ptr(A, SX, S_PTR, XB)
    else:
        for i in range(4): A(f's_mov_b32 {s(SX+i)}, {s(S_WS+i)}')
        A(f's_add_u32 {s(S_XS)}, {s(S_XS)}, {hex(WS_X2 if kind == "RA" else WS_X1[l])}')
    if final:
        A(f's_load_dwordx2 {s(S_PTR,2)}, {s(S_KA,2)}, {KA_OUT}'); A('s_waitcnt lgkmcnt(0)')
        srd_from_ptr(A, SO, S_PTR, XB)
    else:
        for i in range(4): A(f's_mov_b32 {s(SO+i)}, {s(S_WS+i)}')
        if kind != 'R0': A(f's_add_u32 {s(S_XD)}, {s(S_XD)}, {hex(WS_X1[l] if kind == "RA" else WS_X2)}')
    if nparts:
        A(f's_add_u32 {s(S_PS)}, {s(S_PS)}, {hex(WS_PA[l] if kind == "RA" else WS_PB[l])}')
        if kind == 'RA': flagaddr(A, VPOLL, R_A3[l], 12)
        else: flagaddr(A, VPOLL, R_B3[l], 48)
        A(f's_mov_b32 {s(S_PM)}, -1'); A(f's_mov_b32 {s(S_PM+1)}, 0xffff')
        if xgate:
            A(f'v_and_b32 v72, 15, v79')
            flagaddr(A, VP2, R_RB[0] if kind == 'RA' else R_RA[l], 16, vlane=72)
            if kind == 'RA': A(f'v_xor_b32 {v(VP2)}, 512, {v(VP2)}')
            A(f'v_cndmask_b32 {v(VPOLL)}, {v(VP2)}, {v(VPOLL)}, {s(S_PM,2)}')
            A(f'v_mov_b32 {v(VTOG)}, {512 if kind == "RA" else 0}')
            A(f'v_cndmask_b32 {v(VTOG)}, {v(VTOG)}, 0, {s(S_PM,2)}')
    if not final:
        A(f's_add_u32 {s(S_NS)}, {s(S_NS)}, {hex({"R0": WS_XNA[0], "RA": WS_XNB[l], "RB": WS_XNA[1]}[kind])}')
    own_flag(A)
    A(f's_mov_b32 {s(S_EXLO)}, -1'); A(f's_mov_b32 {s(S_EXLO+1)}, 0')
    if ALT == 2:
        for (r, st) in ((S_XS, SEG_X), (S_XD, SEG_X), (S_PS, SEG_PB), (S_NS, SEG_XN)):
            A(f's_mul_i32 {s(S_TMP)}, {s(S_PAR)}, {st}'); A(f's_add_u32 {s(r)}, {s(r)}, {s(S_TMP)}')
    S_C0 = 60
    A(f's_lshl_b32 {s(S_C0)}, {w}, 10')
    A(f's_lshl_b32 {s(S_C0+1)}, {w}, 11')
    VRD = 111
    A(f'v_add_u32 {v(VRD)}, {s(S_C0)}, {v(VL16)}')
    XR = 20; XP = 30; PR = 128
    def masked(i, f):
        if i == 4: A(f's_mov_b64 exec, {s(S_EXLO,2)}')
        f()
        if i == 4: A('s_mov_b64 exec, -1')
    def xloads():
        for i in range(5):
            masked(i, lambda: A(f'buffer_load_dwordx2 {v(XP+2*i,2)}, {v(VXA)}, {s(SX,4)}, {s(S_XS)} offen offset:{i*64}'))
        A(f's_add_u32 {s(S_XS)}, {s(S_XS)}, {ALT*SEG_X}')
    def set_targets():
        A(f's_add_u32 {s(S_TGT)}, {s(S_SEG)}, 1')
        if xgate:
            A(f's_add_u32 {s(S_TMP+1)}, {s(S_SEG)}, {ALT+1}')
            A(f'v_mov_b32 {v(VTG)}, {s(S_TGT)}')
            A(f'v_mov_b32 {v(VT)}, {s(S_TMP+1)}')
            A(f'v_cndmask_b32 {v(VTG)}, {v(VT)}, {v(VTG)}, {s(S_PM,2)}')
    def pcheck():
        if cfg.get('NOWAIT'): return
        ok = A.newlabel('rok'); re_ = A.newlabel('rre')
        def test():
            if xgate:
                A(f'v_cmp_gt_u32 vcc, {v(VTG)}, {v(VFLAG)}')
                A(f's_and_b64 {s(58,2)}, vcc, {s(S_PM,2)}')
                A(f's_cbranch_scc0 {ok}')
            else:
                A(f'v_cmp_gt_u32 vcc, {s(S_TGT)}, {v(VFLAG)}')
                A(f's_cbranch_vccz {ok}')
        test()
        A(f's_mov_b32 {s(S_SPIN)}, {SPIN_LIMIT}')
        A.label(re_)
        A(f'buffer_load_dword {v(VFLAG)}, {v(VPOLL)}, {s(S_WS,4)}, 0 offen sc1')
        A('s_waitcnt vmcnt(0)')
        test()
        spin_check(A, re_, fail)
        A.label(ok)
    cfg['barrier_wait'](A)
    A(f's_mov_b32 {s(S_SEG)}, {s(S_PAR)}')
    A(f's_mov_b32 {s(S_HAVE)}, 0')
    if not xgate:
        xloads(); A(f's_mov_b32 {s(S_HAVE)}, 1')
    set_targets()
    if nparts:
        poll_issue(A, cfg, VPOLL, VFLAG)
        A('s_waitcnt vmcnt(0)')
        pcheck()
    else:
        A('s_waitcnt vmcnt(0)')
    loop = A.newlabel('rloop')
    A.label(loop); A.flush()
    fst(A, cfg, 1, S_SEG)
    if xgate:
        hv = A.newlabel('rhave')
        A(f's_cmp_lg_u32 {s(S_HAVE)}, 0')
        A(f's_cbranch_scc1 {hv}')
        if not cfg.get('NOWAIT'):
            re_ = A.newlabel('rxre'); ok = A.newlabel('rxok')
            A(f'v_xor_b32 {v(VP2)}, {v(VTOG)}, {v(VPOLL)}')
            A(f's_mov_b32 {s(S_SPIN)}, {SPIN_LIMIT}')
            A.label(re_)
            A(f'buffer_load_dword {v(VF2)}, {v(VP2)}, {s(S_WS,4)}, 0 offen sc1')
            A('s_waitcnt vmcnt(0)')
            A(f'v_cmp_gt_u32 vcc, {s(S_TGT)}, {v(VF2)}')
            A(f's_andn2_b64 {s(58,2)}, vcc, {s(S_PM,2)}')
            A(f's_cbranch_scc0 {ok}')
            spin_check(A, re_, fail)
            A.label(ok)
        xloads()
        A('s_waitcnt vmcnt(0)')
        A.label(hv); A.flush()
    for i in range(10): A(f'v_mov_b32 {v(XR+i)}, {v(XP+i)}')
    for p in range(nparts):
        A(f's_add_u32 {s(S_TMP)}, {s(S_PS)}, {p*73728}')
        A(f's_add_u32 {s(S_TMP+1)}, {s(S_TMP)}, 4096')
        for i in range(5):
            masked(i, lambda: A(f'buffer_load_dwordx4 {v(PR+p*20+i*4,4)}, {v(VPA)}, {s(S_WS,4)}, {s(S_TMP+1 if i == 4 else S_TMP)} offen offset:{(i%4)*1024}'))
    nopf = A.newlabel('rnopf'); pfd = A.newlabel('rpfd')
    A(f's_mov_b32 {s(S_HAVE)}, 0')
    A(f's_cmp_ge_u32 {s(S_SEG)}, {64 - ALT}')
    A(f's_cbranch_scc1 {nopf}')
    if xgate and not cfg.get('NOWAIT'):
        A(f'v_cmp_gt_u32 vcc, {v(VTG)}, {v(VFLAG)}')
        A(f's_andn2_b64 {s(58,2)}, vcc, {s(S_PM,2)}')
        A(f's_cbranch_scc1 {nopf}')
    xloads()
    A(f's_mov_b32 {s(S_HAVE)}, 1')
    if nparts: A('s_waitcnt vmcnt(5)')
    A(f's_branch {pfd}')
    A.label(nopf); A.flush()
    if nparts: A('s_waitcnt vmcnt(0)')
    A.label(pfd); A.flush()
    fst(A, cfg, 2, S_SEG)
    if final: A('s_barrier')
    for i in range(5):
        X = 4*i
        def body():
            A(f'v_lshlrev_b32 {v(X)}, 16, {v(XR+2*i)}')
            A(f'v_and_b32 {v(X+1)}, {v(HI)}, {v(XR+2*i)}')
            A(f'v_lshlrev_b32 {v(X+2)}, 16, {v(XR+2*i+1)}')
            A(f'v_and_b32 {v(X+3)}, {v(HI)}, {v(XR+2*i+1)}')
            if nparts:
                y = PR + i*4
                if nparts == 4:
                    for (d, o) in ((0, 1), (2, 3), (0, 2)):
                        for hh in (0, 2):
                            A(f'v_pk_add_f32 {v(y+d*20+hh,2)}, {v(y+d*20+hh,2)}, {v(y+o*20+hh,2)}')
                cvt(A, y, y, y+1); cvt(A, y+1, y+2, y+3)
                A(f'v_and_b32 {v(y+2)}, {v(HI)}, {v(y)}')
                A(f'v_and_b32 {v(y+3)}, {v(HI)}, {v(y+1)}')
                A(f'v_lshlrev_b32 {v(y)}, 16, {v(y)}')
                A(f'v_lshlrev_b32 {v(y+1)}, 16, {v(y+1)}')
                A(f'v_add_f32 {v(X)}, {v(X)}, {v(y)}')
                A(f'v_add_f32 {v(X+1)}, {v(X+1)}, {v(y+2)}')
                A(f'v_add_f32 {v(X+2)}, {v(X+2)}, {v(y+1)}')
                A(f'v_add_f32 {v(X+3)}, {v(X+3)}, {v(y+3)}')
                cvt(A, XR+2*i, X, X+1); cvt(A, XR+2*i+1, X+2, X+3)
                A(f'ds_write_b64 {v(VXA)}, {v(XR+2*i,2)} offset:{L_XO + i*64}')
                if not final:
                    A(f'v_lshlrev_b32 {v(X)}, 16, {v(XR+2*i)}')
                    A(f'v_and_b32 {v(X+1)}, {v(HI)}, {v(XR+2*i)}')
                    A(f'v_lshlrev_b32 {v(X+2)}, 16, {v(XR+2*i+1)}')
                    A(f'v_and_b32 {v(X+3)}, {v(HI)}, {v(XR+2*i+1)}')
        masked(i, body)
    OC = 60
    def chunk_out(lbase, extra_wave, gv, gsrd, gs, gmul, scope):
        ex = A.newlabel('rex'); ex2 = A.newlabel('rex2')
        A(f'ds_read_b128 {v(OC,4)}, {v(VRD)} offset:{lbase}')
        A(f'ds_read_b128 {v(OC+4,4)}, {v(VRD)} offset:{lbase + 4096}')
        A(f's_add_u32 {s(S_TMP)}, {gs}, {s(S_C0 if gmul == 1024 else S_C0+1)}')
        A(f's_add_u32 {s(S_TMP+1)}, {s(S_TMP)}, {4*gmul}')
        A(f's_cmp_lg_u32 {w}, {extra_wave}')
        A(f's_cbranch_scc1 {ex}')
        A(f'ds_read_b128 {v(OC+8,4)}, {v(VL16)} offset:{lbase + 8192}')
        A(f's_add_u32 {s(S_TMP+2)}, {gs}, {8*gmul}')
        A('s_waitcnt lgkmcnt(0)')
        A(f'buffer_store_dwordx4 {v(OC+8,4)}, {v(gv)}, {s(gsrd,4)}, {s(S_TMP+2)} offen' + scope)
        A.label(ex); A.flush()
        A('s_waitcnt lgkmcnt(0)')
        A(f'buffer_store_dwordx4 {v(OC,4)}, {v(gv)}, {s(gsrd,4)}, {s(S_TMP)} offen' + scope)
        A(f'buffer_store_dwordx4 {v(OC+4,4)}, {v(gv)}, {s(gsrd,4)}, {s(S_TMP+1)} offen' + scope)
    if final:
        A('s_waitcnt lgkmcnt(0)')
        A('s_barrier')
        chunk_out(L_XO, 0, VL16, SO, s(S_XD), 1024, '')
    else:
        SM, M2, T1 = 40, 41, 42
        A(f'v_pk_add_f32 {v(44,2)}, {v(0,2)}, {v(2,2)}')
        for i in range(1, 4):
            A(f'v_pk_add_f32 {v(44,2)}, {v(44,2)}, {v(4*i,2)}')
            A(f'v_pk_add_f32 {v(44,2)}, {v(44,2)}, {v(4*i+2,2)}')
        def b4():
            A(f'v_pk_add_f32 {v(44,2)}, {v(44,2)}, {v(16,2)}')
            A(f'v_pk_add_f32 {v(44,2)}, {v(44,2)}, {v(18,2)}')
        masked(4, b4)
        A(f'v_add_f32 {v(SM)}, v44, v45')
        xlane_sum(A, SM, T1)
        A(f'v_mul_f32 {v(SM)}, {hex(f32(1.0/144))}, {v(SM)}')
        A(f'v_mov_b32 {v(M2)}, 0')
        for i in range(5):
            def b5():
                for r in range(4):
                    A(f'v_sub_f32 {v(46)}, {v(4*i+r)}, {v(SM)}')
                    A(f'v_fmac_f32 {v(M2)}, v46, v46')
            masked(i, b5)
        xlane_sum(A, M2, T1)
        A(f'v_add_u32 {v(T1)}, {s(S_C0)}, {v(VST)}') if False else None
        A(f's_lshl_b32 {s(S_TMP)}, {w}, 6')
        A(f'v_add_u32 {v(T1)}, {s(S_TMP)}, {v(VST)}')
        A('s_mov_b64 exec, 0xff')
        A(f'ds_write_b64 {v(T1)}, {v(SM,2)} offset:{L_ST}')
        A('s_mov_b64 exec, -1')
        A('s_waitcnt lgkmcnt(0)')
        fst(A, cfg, 3, S_SEG)
        A('s_barrier')
        fst(A, cfg, 4, S_SEG)
        for ww in range(4):
            A(f'ds_read_b64 {v(48+2*ww,2)}, {v(VST)} offset:{L_ST + ww*64}')
        if nparts: chunk_out(L_XO, 0, VL16, SO, s(S_XD), 1024, ' sc1')
        else: A('s_waitcnt lgkmcnt(0)')
        A('v_add_f32 v56, v48, v50'); A('v_add_f32 v57, v52, v54'); A('v_add_f32 v56, v56, v57')
        A('v_mul_f32 v56, 0.25, v56')
        A('v_add_f32 v57, v49, v51'); A('v_add_f32 v58, v53, v55'); A('v_add_f32 v57, v57, v58')
        A('v_mov_b32 v58, 0')
        for ww in range(4):
            A(f'v_sub_f32 v59, {v(48+2*ww)}, v56')
            A(f'v_fmac_f32 v58, v59, v59')
        A(f'v_fmac_f32 v57, {hex(f32(144.0))}, v58')
        A(f'v_mov_b32 v59, {hex(f32(1e-5))}')
        A(f'v_fmac_f32 v59, {hex(f32(1.0/576))}, v57')
        A('v_rsq_f32 v59, v59')
        for i in range(5):
            def b6():
                X = 4*i
                for r in range(4):
                    A(f'v_sub_f32 {v(X+r)}, {v(X+r)}, v56')
                for r in range(4):
                    A(f'v_mul_f32 {v(X+r)}, {v(X+r)}, v59')
                cvt(A, X, X, X+1); cvt(A, X+1, X+2, X+3)
                A(f'ds_write_b64 {v(VNW)}, {v(X,2)} offset:{i*512}')
            masked(i, b6)
        A('s_waitcnt lgkmcnt(0)')
        A('s_barrier')
        chunk_out(L_NO, 1, VNG, S_WS, s(S_NS), 2048, ' sc1')
    fst(A, cfg, 5, S_SEG)
    A(f's_add_u32 {s(S_XD)}, {s(S_XD)}, {ALT*SEG_X}')
    A(f's_add_u32 {s(S_PS)}, {s(S_PS)}, {ALT*(SEG_PA if kind == "RA" else SEG_PB)}')
    A(f's_add_u32 {s(S_NS)}, {s(S_NS)}, {ALT*SEG_XN}')
    A(f's_add_u32 {s(S_C0+2)}, {s(S_SEG)}, 1')
    A(f's_add_u32 {s(S_SEG)}, {s(S_SEG)}, {ALT}')
    if xgate: A(f'v_xor_b32 {v(VPOLL)}, {v(VTOG)}, {v(VPOLL)}')
    if nparts: poll_issue(A, cfg, VPOLL, VFLAG)
    set_targets()
    A('s_waitcnt vmcnt(0)')
    fst(A, cfg, 6, S_SEG, 32+ALT)
    if not final: publish(A, s(S_C0+2), VT, VZERO)
    elif cfg.get('TIME'): tstamp(A, CFG, s(S_C0+2), VT, VZERO)
    A(f's_cmp_ge_u32 {s(S_SEG)}, 64')
    A(f's_cbranch_scc1 {done}')
    if nparts: pcheck()
    A(f's_branch {loop}')

def causal_masks(A, sbase, vt=72):
    A(f'v_lshlrev_b32 {v(vt)}, 2, v77')
    for r in range(4):
        A(f'v_add_u32 {v(vt+1)}, {r}, {v(vt)}')
        A(f'v_cmp_gt_u32 {s(sbase+2*r,2)}, {v(vt+1)}, v78')

def role_attb(A, cfg, fail, done):
    set_scope(True)
    w = s(S_WAVE)
    lane_setup(A)
    S_HH = S_A
    A(f's_lshl_b32 {s(S_HH)}, {s(S_IDX)}, 2')
    A(f's_add_u32 {s(S_HH)}, {s(S_HH)}, {w}')
    SMK = 46
    causal_masks(A, SMK)
    VL16, VP1, VP2, VFLAG, VZERO, VT, VSC, VNEG, VL8 = 220, 221, 222, 223, 224, 225, 226, 227, 228
    NEWKV = not cfg.get('OLDCHAIN')
    A(f'v_lshlrev_b32 {v(VL16)}, 4, v79')
    A(f'v_lshlrev_b32 {v(VL8)}, 3, v79')
    A(f'v_mov_b32 {v(VZERO)}, 0')
    A(f'v_mov_b32 {v(VSC)}, {hex(f32((128 ** -0.5) * 1.4426950408889634))}')
    A(f'v_mov_b32 {v(VNEG)}, {hex(BIGNEG)}')
    sel_layer(A, S_TMP+2, R_B1); A(f's_add_u32 {s(S_TMP+2)}, {s(S_TMP+2)}, {s(S_HH)}')
    flagaddr(A, VP1, s(S_TMP+2), 4)
    sel_layer(A, S_TMP+2, R_CHAIN); A(f's_add_u32 {s(S_TMP+2)}, {s(S_TMP+2)}, {s(S_HH)}')
    flagaddr(A, VP2, s(S_TMP+2), 4)
    own_flag(A)
    S_QX, S_KV, S_OB = S_B, S_C, S_D
    A(f's_mul_i32 {s(S_QX)}, {s(S_L)}, {QKVX_STRIDE}')
    A(f's_mul_i32 {s(S_TMP)}, {s(S_HH)}, 24576')
    A(f's_add_u32 {s(S_QX)}, {s(S_QX)}, {s(S_TMP)}')
    A(f's_add_u32 {s(S_QX)}, {s(S_QX)}, {WS_QKVX}')
    A(f's_mul_i32 {s(S_KV)}, {s(S_L)}, {KVM_STRIDE}')
    A(f's_lshl_b32 {s(S_TMP)}, {s(S_HH)}, 13')
    A(f's_add_u32 {s(S_KV)}, {s(S_KV)}, {s(S_TMP)}')
    A(f's_add_u32 {s(S_KV)}, {s(S_KV)}, {WS_KVM}')
    sel_layer(A, S_OB, WS_OB)
    A(f's_lshr_b32 {s(S_TMP)}, {s(S_HH)}, 3'); A(f's_lshl_b32 {s(S_TMP)}, {s(S_TMP)}, 16')
    A(f's_add_u32 {s(S_OB)}, {s(S_OB)}, {s(S_TMP)}')
    A(f's_and_b32 {s(S_TMP)}, {s(S_HH)}, 7'); A(f's_lshl_b32 {s(S_TMP)}, {s(S_TMP)}, 12')
    A(f's_add_u32 {s(S_OB)}, {s(S_OB)}, {s(S_TMP)}')
    cfg['barrier_wait'](A)
    A(f's_mov_b32 {s(S_SEG)}, 0')
    Q = lambda tt, kk: tt*16 + kk*4
    KX = lambda kt, kk: 32 + kt*16 + kk*4
    VX = lambda et: 64 + et*4
    KM = lambda kk: 96 + kk*4
    VM = lambda et: 112 + et*2
    S00, S01, S11, SM0, SM1 = 128, 132, 136, 140, 144
    O = lambda et, tt: 148 + ((tt*4 + et//2)*2 + (et & 1))*4
    XT = 0
    def qkvx_loads():
        for blk in range(6):
            A(f's_add_u32 {s(S_TMP)}, {s(S_QX)}, {blk*4096}')
            for j in range(4):
                A(f'buffer_load_dwordx4 {v((blk*4+j)*4,4)}, {v(VL16)}, {s(S_WS,4)}, {s(S_TMP)} offen offset:{j*1024}')
        A(f's_add_u32 {s(S_QX)}, {s(S_QX)}, {32*24576}')
    def kvm_loads():
        A(f's_add_u32 {s(S_TMP)}, {s(S_KV)}, 4096')
        for j in range(4): A(f'buffer_load_dwordx4 {v(KM(j),4)}, {v(VL16)}, {s(S_WS,4)}, {s(S_KV)} offen offset:{j*1024}')
        if NEWKV:
            for j in range(4): A(f'buffer_load_dwordx2 {v(112+2*j,2)}, {v(VL8)}, {s(S_WS,4)}, {s(S_TMP)} offen offset:{j*512}')
        else:
            for j in range(4): A(f'buffer_load_dwordx4 {v(112+4*j,4)}, {v(VL16)}, {s(S_WS,4)}, {s(S_TMP)} offen offset:{j*1024}')
        A(f's_add_u32 {s(S_KV)}, {s(S_KV)}, {32*8192}')
    def sx_mfma():
        for kk in range(4):
            for (acc, kt, tt) in ((S00, 0, 0), (S01, 0, 1), (S11, 1, 1)):
                A(f'{MF} {v(acc,4)}, {v(KX(kt,kk),4)}, {v(Q(tt,kk),4)}, {"0" if kk == 0 else v(acc,4)}')
    A(f's_mov_b32 {s(S_TGT)}, 1')
    poll_block(A, cfg, VP1, s(S_TGT), VFLAG, fail)
    qkvx_loads()
    A('s_waitcnt vmcnt(8)')
    slow = A.newlabel('bslow'); join = A.newlabel('bjoin'); loop = A.newlabel('bloop')
    A(f's_branch {slow}_2')
    A.label(loop); A.flush()
    fst(A, cfg, 0, S_SEG)
    if not cfg.get('NOWAIT'):
        A(f'v_cmp_gt_u32 vcc, {s(S_TGT)}, {v(VFLAG)}')
        A(f's_cbranch_vccnz {slow}')
    kvm_loads()
    A(f's_waitcnt vmcnt({8 + 8 + 1 + XT})')
    sx_mfma()
    A('s_nop 7')
    A(f's_branch {join}')
    A.label(slow); A.flush()
    A(f's_waitcnt vmcnt({8 + 1 + XT})')
    A.label(slow + '_2'); A.flush()
    sx_mfma()
    poll_block(A, cfg, VP2, s(S_TGT), VFLAG, fail)
    kvm_loads()
    A.label(join); A.flush()
    fst(A, cfg, 3, S_SEG)
    for r in range(4):
        A(f'v_cndmask_b32 {v(S00+r)}, {v(S00+r)}, {v(VNEG)}, {s(SMK+2*r,2)}')
        A(f'v_cndmask_b32 {v(S11+r)}, {v(S11+r)}, {v(VNEG)}, {s(SMK+2*r,2)}')
    A('s_waitcnt vmcnt(4)')
    fst(A, cfg, 4, S_SEG)
    for kk in range(4):
        for (acc, tt) in ((SM0, 0), (SM1, 1)):
            A(f'{MF} {v(acc,4)}, {v(KM(kk),4)}, {v(Q(tt,kk),4)}, {"0" if kk == 0 else v(acc,4)}')
    MX = [230, 232]; T = 234; NM = [236, 237]; SUM = [238, 239]
    xs = [[S00], [S01, S11]]; ms = [SM0, SM1]
    NM_ = 2 if NEWKV else 4
    assert NEWKV
    allv = lambda tt: [x+r for x in xs[tt] for r in range(4)] + [ms[tt]+r for r in range(NM_)]
    for tt in range(2):
        vals = allv(tt)
        mx = MX[tt]
        A(f'v_max3_f32 {v(mx)}, {v(vals[0])}, {v(vals[1])}, {v(vals[2])}')
        rest = vals[3:]
        while len(rest) >= 2:
            A(f'v_max3_f32 {v(mx)}, {v(mx)}, {v(rest[0])}, {v(rest[1])}'); rest = rest[2:]
        if rest: A(f'v_max_f32 {v(mx)}, {v(mx)}, {v(rest[0])}')
    for tt in range(2):
        xlane_sum(A, MX[tt], T + tt, op='v_max_f32', ror8=False)
    for tt in range(2):
        A(f'v_mul_f32 {v(NM[tt])}, {hex(f32(-(128 ** -0.5) * 1.4426950408889634))}, {v(MX[tt])}')
    for tt in range(2):
        for x in allv(tt): A(f'v_fma_f32 {v(x)}, {v(x)}, {v(VSC)}, {v(NM[tt])}')
    for tt in range(2):
        for x in allv(tt): A(f'v_exp_f32 {v(x)}, {v(x)}')
    P0, P1, PM0, PM1 = 240, 244, 248, 252
    cvt(A, P0, S00, S00+1); cvt(A, P0+1, S00+2, S00+3)
    A(f'v_mov_b32 {v(P0+2)}, 0'); A(f'v_mov_b32 {v(P0+3)}, 0')
    cvt(A, P1, S01, S01+1); cvt(A, P1+1, S01+2, S01+3); cvt(A, P1+2, S11, S11+1); cvt(A, P1+3, S11+2, S11+3)
    for (pm, sm) in ((PM0, SM0), (PM1, SM1)):
        cvt(A, pm, sm, sm+1); A(f'v_mov_b32 {v(pm+1)}, 0'); A(f'v_mov_b32 {v(pm+2)}, 0'); A(f'v_mov_b32 {v(pm+3)}, {v(pm)}')
    for et in range(8):
        for tt in range(2):
            A(f'{MF} {v(O(et,tt),4)}, {v(VX(et),4)}, {v([P0,P1][tt],4)}, 0')
    for tt in range(2):
        vals = allv(tt)
        A(f'v_add_f32 {v(SUM[tt])}, {v(vals[0])}, {v(vals[1])}')
        for x in vals[2:]: A(f'v_add_f32 {v(SUM[tt])}, {v(SUM[tt])}, {v(x)}')
    A('s_waitcnt vmcnt(0)')
    for et in range(8):
        for tt in range(2):
            A(f'{MF16} {v(O(et,tt),4)}, {v(112 + 2*(et>>1),2)}, {v([PM0,PM1][tt] + 2*(et&1),2)}, {v(O(et,tt),4)}')
    for tt in range(2):
        xlane_sum(A, SUM[tt], T + tt, ror8=False)
    for tt in range(2): A(f'v_rcp_f32 {v(SUM[tt])}, {v(SUM[tt])}')
    for tt in range(2):
        A(f's_add_u32 {s(S_TMP)}, {s(S_OB)}, {tt*32768}')
        for kk in range(4):
            b = O(2*kk, tt)
            for r in range(8): A(f'v_mul_f32 {v(b+r)}, {v(b+r)}, {v(SUM[tt])}')
            cvt(A, b, b, b+1); cvt(A, b+1, b+2, b+3); cvt(A, b+2, b+4, b+5); cvt(A, b+3, b+6, b+7)
            A(f'buffer_store_dwordx4 {v(b,4)}, {v(VL16)}, {s(S_WS,4)}, {s(S_TMP)} offen offset:{kk*1024}' + SCOPE[0])
    fst(A, cfg, 5, S_SEG)
    A(f's_add_u32 {s(S_OB)}, {s(S_OB)}, {SEG_OB}')
    A(f's_add_u32 {s(S_SEG)}, {s(S_SEG)}, 1')
    last = A.newlabel('blast')
    A(f's_cmp_ge_u32 {s(S_SEG)}, 64')
    A(f's_cbranch_scc1 {last}')
    poll_issue(A, cfg, VP2, VFLAG)
    qkvx_loads()
    A('s_waitcnt vmcnt(24)')
    fst(A, cfg, 6, S_SEG, 33)
    publish(A, s(S_SEG), VT, VZERO)
    A(f's_add_u32 {s(S_TGT)}, {s(S_SEG)}, 1')
    A(f's_branch {loop}')
    A.label(last); A.flush()
    A('s_waitcnt vmcnt(0)')
    publish(A, s(S_SEG), VT, VZERO)
    A(f's_branch {done}')

NSLOT = 10
def role_atta(A, cfg, fail, done):
    set_scope(True)
    w = s(S_WAVE)
    lane_setup(A)
    S_HH, S_TT, S_HD = S_A, S_B, S_C
    A(f's_lshr_b32 {s(S_HH)}, {w}, 1')
    A(f's_and_b32 {s(S_TT)}, {w}, 1')
    A(f's_lshl_b32 {s(S_HD)}, {s(S_IDX)}, 1')
    A(f's_add_u32 {s(S_HD)}, {s(S_HD)}, {s(S_HH)}')
    SMK = 46
    causal_masks(A, SMK)
    VKB, VVB, VL8, VL16, VPOLL, VFLAG, VZERO, VT, VNEG, MK2, MK3, VO1, VO2 = 150, 151, 152, 153, 154, 155, 156, 157, 158, 159, 160, 161, 162
    SCP, NMP = 164, 166
    A(f'v_lshlrev_b32 {v(VL8)}, 3, v79')
    A(f'v_lshlrev_b32 {v(VL16)}, 4, v79')
    A(f's_lshl_b32 {s(S_TMP)}, {s(S_HH)}, 12')
    A(f'v_add_u32 {v(VKB)}, {s(S_TMP)}, {v(VL8)}')
    A(f'v_add_u32 {v(VVB)}, {s(S_TMP)}, {v(VL16)}')
    A(f'v_mov_b32 {v(VZERO)}, 0')
    A(f'v_mov_b32 {v(VNEG)}, {hex(BIGNEG)}')
    SC = (18 ** -0.5) * 1.4426950408889634
    A(f'v_mov_b32 {v(SCP)}, {hex(f32(SC))}'); A(f'v_mov_b32 {v(SCP+1)}, {hex(f32(SC))}')
    for i in range(4): A(f'v_mov_b32 {v(128+i)}, 0x3f803f80')
    A(f's_and_b32 {s(S_TMP)}, {s(S_IDX)}, 3')
    A(f'v_cmp_eq_u32 vcc, {s(S_TMP)}, v77')
    A(f's_mov_b64 {s(54,2)}, vcc')
    A(f'v_cndmask_b32 {v(MK2)}, 0, -1, vcc')
    A(f'v_mov_b32 {v(MK3)}, {v(MK2)}')
    A(f's_cmp_eq_u32 {s(S_HH)}, 0')
    A(f's_cselect_b32 {s(S_TMP)}, -1, 0')
    A(f'v_and_b32 {v(MK2)}, {s(S_TMP)}, {v(MK2)}')
    A(f's_not_b32 {s(S_TMP)}, {s(S_TMP)}')
    A(f'v_and_b32 {v(MK3)}, {s(S_TMP)}, {v(MK3)}')
    A(f's_cselect_b64 {s(56,2)}, 0, -1') if False else None
    A(f's_cmp_eq_u32 {s(S_HH)}, 0')
    A(f's_cselect_b64 {s(56,2)}, 0, -1')
    A(f's_lshl_b32 {s(S_TMP)}, {s(S_HH)}, 3')
    A(f'v_add_u32 {v(VO1)}, {s(S_TMP)}, {v(VL16)}')
    A(f's_bfe_u32 {s(S_TMP)}, {s(S_HD)}, 0x10003')
    A(f's_lshl_b32 {s(S_TMP)}, {s(S_TMP)}, 3')
    A(f's_lshl_b32 {s(S_TMP+1)}, {s(S_HH)}, 2')
    A(f's_add_u32 {s(S_TMP)}, {s(S_TMP)}, {s(S_TMP+1)}')
    A(f'v_add_u32 {v(VO2)}, {s(S_TMP)}, {v(VL16)}')
    S_O1, S_O2, S_D1, S_D2, S_Q1, S_Q2, S_LD = 58, 59, 60, 61, 64, 65, 66
    sel_layer(A, S_O1, WS_OA)
    A(f's_mul_i32 {s(S_TMP)}, {s(S_TT)}, 18432')
    A(f's_add_u32 {s(S_O1)}, {s(S_O1)}, {s(S_TMP)}')
    A(f's_lshr_b32 {s(S_TMP)}, {s(S_HD)}, 4'); A(f's_add_u32 {s(S_TMP)}, {s(S_TMP)}, 16'); A(f's_lshl_b32 {s(S_TMP)}, {s(S_TMP)}, 10')
    A(f's_add_u32 {s(S_O2)}, {s(S_O1)}, {s(S_TMP)}')
    A(f's_lshr_b32 {s(S_TMP)}, {s(S_HD)}, 1'); A(f's_lshl_b32 {s(S_TMP)}, {s(S_TMP)}, 10')
    A(f's_add_u32 {s(S_O1)}, {s(S_O1)}, {s(S_TMP)}')
    sel_layer(A, S_Q1, WS_QKVA)
    A(f's_lshl_b32 {s(S_TMP)}, {s(S_HD)}, 10')
    A(f's_lshr_b32 {s(S_TMP+1)}, {s(S_HD)}, 3'); A(f's_add_u32 {s(S_TMP+1)}, {s(S_TMP+1)}, 32'); A(f's_lshl_b32 {s(S_TMP+1)}, {s(S_TMP+1)}, 10')
    A(f's_add_u32 {s(S_Q2)}, {s(S_Q1)}, {s(S_TMP+1)}')
    A(f's_add_u32 {s(S_Q1)}, {s(S_Q1)}, {s(S_TMP)}')
    A(f's_add_u32 {s(S_TMP)}, {s(S_TT)}, 1'); A(f's_mul_i32 {s(S_TMP)}, {s(S_TMP)}, 36864')
    A(f's_add_u32 {s(S_D1)}, {s(S_Q1)}, {s(S_TMP)}')
    A(f's_add_u32 {s(S_D2)}, {s(S_Q2)}, {s(S_TMP)}')
    A(f's_lshl_b32 {s(S_TMP)}, {s(S_TT)}, 9')
    A(f's_add_u32 {s(S_Q1)}, {s(S_Q1)}, {s(S_TMP)}')
    A(f's_add_u32 {s(S_Q2)}, {s(S_Q2)}, {s(S_TMP)}')
    A(f's_lshl_b32 {s(S_LD)}, {s(S_HH)}, 12')
    A(f's_lshl_b32 {s(S_TMP)}, {s(S_TT)}, 11')
    A(f's_add_u32 {s(S_LD)}, {s(S_LD)}, {s(S_TMP)}')
    sel_layer(A, S_TMP+2, R_A1)
    flagaddr(A, VPOLL, s(S_TMP+2), 36)
    own_flag(A)
    for i in range(4): A(f'v_mov_b32 {v(i)}, 0')
    A('v_lshlrev_b32 v4, 4, v75')
    A('v_add_u32 v5, 0x10000, v4')
    for i in range(NSLOT*8192//4096):
        A(f'ds_write_b128 {"v4" if i < 16 else "v5"}, v[0:3] offset:{(i % 16)*4096}')
    A('s_waitcnt lgkmcnt(0)')
    cfg['barrier_wait'](A)
    A('s_barrier')
    S_SL = 68
    for m in range(9): A(f's_mov_b32 {s(S_SL+m)}, {((2+m) % NSLOT)*8192}')
    A(f's_mov_b32 {s(S_SEG)}, 0')
    l1 = A.newlabel('aatt1')
    A(f's_cmp_eq_u32 {s(S_TT)}, 1')
    A(f's_cbranch_scc1 {l1}')
    KR, VR, QF, OM, OL, OD, ONES = 72, 88, 112, 116, 120, 124, 128
    VK = lambda m: 132 + m
    VV = lambda m: 141 + m
    for tt in range(2):
        if tt: A.label(l1); A.flush()
        loop = A.newlabel('aloop')
        A(f's_add_u32 {s(S_TGT)}, {s(S_SEG)}, 1')
        poll_block(A, cfg, VPOLL, s(S_TGT), VFLAG, fail)
        A.label(loop)
        fst(A, cfg, 1, S_SEG)
        A(f's_add_u32 {s(S_TMP)}, {s(S_LD)}, {s(S_SL+8)}')
        A(f's_mov_b32 m0, {s(S_TMP)}')
        A(f'buffer_load_dwordx4 {v(VL16)}, {s(S_WS,4)}, {s(S_D1)} offen lds')
        A(f's_add_u32 {s(S_TMP)}, {s(S_TMP)}, 1024')
        A(f's_mov_b32 m0, {s(S_TMP)}')
        A(f'buffer_load_dwordx4 {v(VL16)}, {s(S_WS,4)}, {s(S_D2)} offen lds')
        A(f'buffer_load_dwordx2 {v(QF,2)}, {v(VL8)}, {s(S_WS,4)}, {s(S_Q1)} offen')
        A(f'buffer_load_dwordx2 {v(QF+2,2)}, {v(VL8)}, {s(S_WS,4)}, {s(S_Q2)} offen')
        for m in range(9):
            A(f'v_add_u32 {v(VK(m))}, {s(S_SL+m)}, {v(VKB)}')
            A(f'v_add_u32 {v(VV(m))}, {s(S_SL+m)}, {v(VVB)}')
        A('s_waitcnt vmcnt(0)')
        fst(A, cfg, 2, S_SEG)
        A(f'v_and_b32 {v(QF+2)}, {v(MK2)}, {v(QF+2)}')
        A(f'v_and_b32 {v(QF+3)}, {v(MK3)}, {v(QF+3)}')
        A('s_barrier')
        fst(A, cfg, 3, S_SEG)
        tiles = list(range(tt, tt+17))
        def kread(i):
            j = tiles[i]
            A(f'ds_read2st64_b64 {v(KR+4*(i%4),4)}, {v(VK(j>>1))} offset0:{j&1} offset1:{2+(j&1)}')
        for i in range(4): kread(i)
        for i in range(17):
            A(f's_waitcnt lgkmcnt({min(3, 16-i)})')
            A(f'{MF} {v(4*tiles[i],4)}, {v(KR+4*(i%4),4)}, {v(QF,4)}, 0')
            if i + 4 < 17: kread(i+4)
        def vread(m):
            A(f'ds_read_b128 {v(VR+8*(m%3),4)}, {v(VV(m))} offset:2048')
            A(f'ds_read_b128 {v(VR+8*(m%3)+4,4)}, {v(VV(m))} offset:3072')
        for m in range(3): vread(m)
        jf, jl = tiles[0], tiles[-1]
        for r in range(4):
            A(f'v_cndmask_b32 {v(4*jf+r)}, {v(VNEG)}, {v(4*jf+r)}, {s(SMK+2*r,2)}')
        for r in range(4):
            A(f'v_cndmask_b32 {v(4*jl+r)}, {v(4*jl+r)}, {v(VNEG)}, {s(SMK+2*r,2)}')
        lok = A.newlabel('aval')
        A(f's_cmp_ge_u32 {s(S_SEG)}, 8')
        A(f's_cbranch_scc1 {lok}')
        for m in range(8):
            A(f's_cmp_ge_u32 {s(S_SEG)}, {8-m}')
            A(f's_cbranch_scc1 {lok}')
            for j in (2*m, 2*m+1):
                if j in tiles:
                    for r in range(4): A(f'v_mov_b32 {v(4*j+r)}, {v(VNEG)}')
        A.label(lok)
        A('s_nop 7')
        fst(A, cfg, 4, S_SEG)
        vals = [4*j+r for j in tiles for r in range(4)]
        MX, MX2, T = 168, 169, 170
        A(f'v_max3_f32 {v(MX)}, {v(vals[0])}, {v(vals[1])}, {v(vals[2])}')
        A(f'v_max3_f32 {v(MX2)}, {v(vals[3])}, {v(vals[4])}, {v(vals[5])}')
        rest = vals[6:]; k = 0
        while len(rest) >= 2:
            d = [MX, MX2][k % 2]; k += 1
            A(f'v_max3_f32 {v(d)}, {v(d)}, {v(rest[0])}, {v(rest[1])}'); rest = rest[2:]
        assert not rest
        A(f'v_max_f32 {v(MX)}, {v(MX)}, {v(MX2)}')
        xlane_sum(A, MX, T, op='v_max_f32', ror8=False)
        A(f'v_mul_f32 {v(NMP)}, {hex(f32(-SC))}, {v(MX)}')
        A(f'v_mov_b32 {v(NMP+1)}, {v(NMP)}')
        for m in range(9):
            for j in (2*m, 2*m+1):
                if j in tiles:
                    for r in (0, 2): A(f'v_pk_fma_f32 {v(4*j+r,2)}, {v(4*j+r,2)}, {v(SCP,2)}, {v(NMP,2)}')
            for j in (2*m, 2*m+1):
                if j in tiles:
                    for r in range(4): A(f'v_exp_f32 {v(4*j+r)}, {v(4*j+r)}')
            b = 8*m
            if 2*m in tiles: cvt(A, b, b, b+1); cvt(A, b+1, b+2, b+3)
            else: A(f'v_mov_b32 {v(b)}, 0'); A(f'v_mov_b32 {v(b+1)}, 0')
            if 2*m+1 in tiles: cvt(A, b+2, b+4, b+5); cvt(A, b+3, b+6, b+7)
            else: A(f'v_mov_b32 {v(b+2)}, 0'); A(f'v_mov_b32 {v(b+3)}, 0')
            A(f's_waitcnt lgkmcnt({2*min(2, 8-m)})')
            c = lambda r: '0' if m == 0 else v(r, 4)
            A(f'{MF} {v(OM,4)}, {v(VR+8*(m%3),4)}, {v(b,4)}, {c(OM)}')
            A(f'{MF} {v(OL,4)}, {v(VR+8*(m%3)+4,4)}, {v(b,4)}, {c(OL)}')
            A(f'{MF} {v(OD,4)}, {v(ONES,4)}, {v(b,4)}, {c(OD)}')
            if m + 3 < 9: vread(m+3)
        A(f'v_rcp_f32 {v(T)}, {v(OD)}')
        for r in range(4):
            A(f'v_mul_f32 {v(OM+r)}, {v(OM+r)}, {v(T)}')
            A(f'v_mul_f32 {v(OL+r)}, {v(OL+r)}, {v(T)}')
        cvt(A, OM, OM, OM+1); cvt(A, OM+1, OM+2, OM+3)
        cvt(A, OL, OL, OL+1); cvt(A, OL+1, OL+2, OL+3)
        A(f'v_cndmask_b32 {v(OL)}, {v(OL)}, {v(OL+1)}, {s(56,2)}')
        A(f'buffer_store_dwordx2 {v(OM,2)}, {v(VO1)}, {s(S_WS,4)}, {s(S_O1)} offen' + SCOPE[0])
        A(f's_mov_b64 exec, {s(54,2)}')
        A(f'buffer_store_dword {v(OL)}, {v(VO2)}, {s(S_WS,4)}, {s(S_O2)} offen' + SCOPE[0])
        A('s_mov_b64 exec, -1')
        fst(A, cfg, 5, S_SEG)
        poll_issue(A, cfg, VPOLL, VFLAG)
        for r in (S_O1, S_O2): A(f's_add_u32 {s(r)}, {s(r)}, {SEG_XN}')
        for r in (S_D1, S_D2, S_Q1, S_Q2): A(f's_add_u32 {s(r)}, {s(r)}, {SEG_QKVA}')
        for m in range(9):
            A(f's_add_u32 {s(S_SL+m)}, {s(S_SL+m)}, 8192')
            A(f's_cmp_eq_u32 {s(S_SL+m)}, {NSLOT*8192}')
            A(f's_cselect_b32 {s(S_SL+m)}, 0, {s(S_SL+m)}')
        A(f's_add_u32 {s(S_SEG)}, {s(S_SEG)}, 1')
        A('s_waitcnt vmcnt(0)')
        fst(A, cfg, 6, S_SEG, 33)
        publish(A, s(S_SEG), VT, VZERO)
        A(f's_cmp_ge_u32 {s(S_SEG)}, 64')
        A(f's_cbranch_scc1 {done}')
        A(f's_add_u32 {s(S_TGT)}, {s(S_SEG)}, 1')
        poll_check(A, cfg, VPOLL, s(S_TGT), VFLAG, fail)
        A(f's_branch {loop}')
```

```python
from asm import *
from common import *
from chain import *

S_IDX = 26
S_SEG = 28
S_PREF = 29
S_FOUT = 30
S_SRC = 31
S_BUFW = 32
S_BUFC = 33
S_DST = 34
S_DST2 = 35
S_DST3 = 36
S_TGT = 37
S_A = 38; S_B = 39; S_C = 40; S_D = 41
S_EXLO = 42
S_BSUM = 44
S_CSUM = 45
S_X = 46

def lane_setup(A):
    A('v_and_b32 v79, 63, v0')
    A('v_mov_b32 v75, v0')
    A('v_and_b32 v78, 15, v79')
    A('v_lshrrev_b32 v77, 4, v79')
    A('v_and_b32 v76, 7, v79')

def flagaddr(A, vdst, role0, n, vlane=79, vt=74):
    A(f'v_min_u32 {v(vdst)}, {n-1}, {v(vlane)}')
    A(f'v_lshrrev_b32 {v(vt)}, 2, {v(vdst)}')
    if isinstance(role0, int): A(f'v_add_u32 {v(vt)}, {role0}, {v(vt)}')
    else: A(f'v_add_u32 {v(vt)}, {role0}, {v(vt)}')
    A(f'v_lshlrev_b32 {v(vt)}, 7, {v(vt)}')
    A(f'v_and_b32 {v(vdst)}, 3, {v(vdst)}')
    A(f'v_lshlrev_b32 {v(vdst)}, 2, {v(vdst)}')
    A(f'v_add_u32 {v(vdst)}, {v(vdst)}, {v(vt)}')

def own_flag(A):
    A(f's_lshl_b32 {s(S_FOUT)}, {s(S_ROLE)}, 7')
    A(f's_lshl_b32 {s(S_TMP)}, {s(S_WAVE)}, 2')
    A(f's_add_u32 {s(S_FOUT)}, {s(S_FOUT)}, {s(S_TMP)}')

CFG = {}
SCOPE = [' sc1']
def set_scope(intra):
    SCOPE[0] = '' if (intra and not CFG.get('ALLSC1')) else ' sc1'
def publish(A, sval, vt, vzero, ts=True):
    if ts: tstamp(A, CFG, sval, vt, vzero)
    A(f'v_mov_b32 {v(vt)}, {sval}')
    A('s_mov_b64 exec, 1')
    A(f'buffer_store_dword {v(vt)}, {v(vzero)}, {s(S_WS,4)}, {s(S_FOUT)} offen' + SCOPE[0])
    A('s_mov_b64 exec, -1')

def poll_block(A, cfg, vaddr, starget, vt, fail):
    if cfg.get('NOWAIT'): return
    re_ = A.newlabel('pre'); ok = A.newlabel('pok')
    A(f's_mov_b32 {s(S_SPIN)}, {SPIN_LIMIT}')
    A.label(re_)
    A(f'buffer_load_dword {v(vt)}, {v(vaddr)}, {s(S_WS,4)}, 0 offen sc1')
    A('s_waitcnt vmcnt(0)')
    A(f'v_cmp_gt_u32 vcc, {starget}, {v(vt)}')
    A(f's_cbranch_vccz {ok}')
    spin_check(A, re_, fail)
    A.label(ok)

def poll_issue(A, cfg, vaddr, vt):
    if cfg.get('NOWAIT'): return
    A(f'buffer_load_dword {v(vt)}, {v(vaddr)}, {s(S_WS,4)}, 0 offen sc1')

def poll_check(A, cfg, vaddr, starget, vt, fail):
    if cfg.get('NOWAIT'): return
    ok = A.newlabel('pck')
    A(f'v_cmp_gt_u32 vcc, {starget}, {v(vt)}')
    A(f's_cbranch_vccz {ok}')
    poll_block(A, cfg, vaddr, starget, vt, fail)
    A.label(ok)

def ring(name):
    if CFG.get('NORING'): return 64
    return int(CFG.get('R_' + name, RINGS[name]))

def ring_off(A, sdst, sbase, sidx, R, stride):
    if R < 64: A(f's_and_b32 {s(sdst)}, {sidx}, {R-1}'); A(f's_mul_i32 {s(sdst)}, {s(sdst)}, {stride}')
    else: A(f's_mul_i32 {s(sdst)}, {sidx}, {stride}')
    if sbase is not None: A(f's_add_u32 {s(sdst)}, {s(sdst)}, {s(sbase)}')

def down_check(A, cfg, vaddr, vt, sseg, back, stmp, fail):
    if cfg.get('NOWAIT') or back >= 63: return
    A(f's_sub_i32 {s(stmp)}, {sseg}, {back}')
    A(f's_max_i32 {s(stmp)}, {s(stmp)}, 0')
    poll_check(A, cfg, vaddr, s(stmp), vt, fail)

def pretouch(A, regions, nwaves, sgw, vl16, vdummy):
    for (sbase, size) in regions:
        lp = A.newlabel('pt')
        A(f's_lshl_b32 {s(S_TMP)}, {s(sgw)}, 10')
        A(f's_add_u32 {s(S_TMP)}, {s(S_TMP)}, {s(sbase)}')
        A(f's_add_u32 {s(S_TMP+1)}, {s(sbase)}, {size}')
        A.label(lp)
        A(f'buffer_load_dwordx4 {v(vdummy,4)}, {v(vl16)}, {s(S_WS,4)}, {s(S_TMP)} offen')
        A(f's_add_u32 {s(S_TMP)}, {s(S_TMP)}, {nwaves*1024}')
        A(f's_cmp_lt_u32 {s(S_TMP)}, {s(S_TMP+1)}')
        A(f's_cbranch_scc1 {lp}')
    A('s_waitcnt vmcnt(0)')

def wreg_lin(i, n, vbase):
    return a(i, n) if i < 256 else v(vbase + i - 256, n)

def block_loader(A, blocks, ka, size, vtr=70, per_round=36):
    w = s(S_WAVE)
    load_ptr_srd(A, S_SRD, ka, size)
    A(f'v_lshrrev_b32 v72, 2, v78')
    A(f'v_lshlrev_b32 v73, 2, v77')
    A(f'v_add_u32 v72, v72, v73')
    A(f'v_lshlrev_b32 v72, 5, v72')
    A(f'v_and_b32 v73, 3, v78')
    A(f'v_lshlrev_b32 v73, 3, v73')
    A(f'v_add_u32 v72, v72, v73')
    A(f's_mul_i32 {s(S_TMP)}, {w}, 36864')
    A(f'v_add_u32 {v(vtr)}, {s(S_TMP)}, v72')
    for r0 in range(0, len(blocks), per_round):
        rb = blocks[r0:r0+per_round]
        for i, b in enumerate(rb):
            A(f's_mul_i32 {s(S_M0)}, {w}, 36864')
            if i: A(f's_add_u32 {s(S_M0)}, {s(S_M0)}, {i*1024}')
            b['issue'](A)
        A('s_waitcnt vmcnt(0)')
        for i, b in enumerate(rb):
            for half in range(2):
                A(f'ds_read_b64_tr_b16 {b["dst"](half)}, {v(vtr)} offset:{i*1024 + half*512}')
            if i % 4 == 3: A('s_waitcnt lgkmcnt(8)')
        A('s_waitcnt lgkmcnt(0)')

def dma16(A, vaddr, soff):
    A(f's_mov_b32 m0, {s(S_M0)}')
    A(f'buffer_load_dwordx4 {v(vaddr)}, {s(S_SRD,4)}, {soff} offen lds')

def gemm_loop(A, cfg, P, fail):
    NT, NKS, D = P['NT'], P['NKS'], P.get('D', 3)
    W, ACC, RING = P['W'], P['ACC'], P['RING']
    VL16, VRD, VPOLL, VFLAG, VZERO, VT = P['VL16'], P['VRD'], P['VPOLL'], P['VFLAG'], P['VZERO'], P['VT']
    NF = 2*NKS; NFW = NF//4
    nst = P['nst']
    KMID = P.get('KMID', NKS//2)
    w = s(S_WAVE)
    A(f's_mul_i32 {s(S_TMP)}, {w}, {NFW*1024}')
    A(f's_add_u32 {s(S_SRC)}, {s(S_SRC)}, {s(S_TMP)}')
    A(f's_mov_b32 {s(S_BUFW)}, {s(S_TMP)}')
    A(f's_lshl_b32 {s(S_BSUM)}, {s(S_TMP)}, 1')
    A(f's_add_u32 {s(S_BSUM)}, {s(S_BSUM)}, {NF*1024}')
    A(f's_mov_b32 {s(S_BUFC)}, 0')
    A(f's_mov_b32 {s(S_SEG)}, 0')
    A(f's_mov_b32 {s(S_PREF)}, 0')
    S_SRCB, S_DSTB, S_NSRC, S_TD = 54, 55, 56, 57
    SR = P.get('src_ring', 64); DR = P.get('dst_ring', 64); DOWN = P.get('down')
    if SR < 64:
        A(f's_mov_b32 {s(S_SRCB)}, {s(S_SRC)}'); A(f's_mov_b32 {s(S_NSRC)}, 0')
    if DR < 64: A(f's_mov_b32 {s(S_DSTB)}, {s(S_DST)}')
    lsc = ' sc1' if SR < 64 else ''
    def dma():
        if SR < 64:
            ring_off(A, S_SRC, S_SRCB, s(S_NSRC), SR, P['src_stride'])
            A(f's_add_u32 {s(S_NSRC)}, {s(S_NSRC)}, 1')
        for j0 in range(0, NFW, 4):
            A(f's_add_u32 {s(S_TMP)}, {s(S_BUFW)}, {j0*1024}')
            A(f's_mov_b32 m0, {s(S_TMP)}')
            A(f's_add_u32 {s(S_TMP+1)}, {s(S_SRC)}, {j0*1024}')
            for j in range(j0, min(j0+4, NFW)):
                A(f'buffer_load_dwordx4 {v(VL16)}, {s(S_WS,4)}, {s(S_TMP+1)} offen offset:{(j-j0)*1024}{lsc} lds')
        if SR >= 64: A(f's_add_u32 {s(S_SRC)}, {s(S_SRC)}, {P["src_stride"]}')
        A(f's_sub_u32 {s(S_BUFW)}, {s(S_BSUM)}, {s(S_BUFW)}')
    loop = A.newlabel('gloop'); pre = A.newlabel('gpref'); go = A.newlabel('ggo')
    A.label(loop)
    A(f's_cmp_lg_u32 {s(S_PREF)}, 0')
    A(f's_cbranch_scc1 {pre}')
    A(f's_add_u32 {s(S_TGT)}, {s(S_SEG)}, 1')
    fst(A, cfg, 0, S_SEG)
    poll_block(A, cfg, VPOLL, s(S_TGT), VFLAG, fail)
    fst(A, cfg, 1, S_SEG)
    dma()
    A('s_waitcnt vmcnt(0)')
    A(f's_branch {go}')
    A.label(pre)
    A(f's_waitcnt vmcnt({nst})')
    A.label(go)
    fst(A, cfg, 2, S_SEG)
    A('s_barrier')
    fst(A, cfg, 3, S_SEG)
    A(f's_mov_b32 {s(S_PREF)}, 0')
    A(f'v_add_u32 {v(VRD)}, {s(S_BUFC)}, {v(VL16)}')
    A(f's_sub_u32 {s(S_BUFC)}, {NF*1024}, {s(S_BUFC)}')
    if not cfg.get('NOWAIT'):
        A(f'buffer_load_dword {v(VFLAG)}, {v(P.get("VPOLLN", VPOLL))}, {s(S_WS,4)}, 0 offen sc1')
        if DOWN and DR < 64: poll_issue(A, cfg, DOWN['VP'], DOWN['VF'])
    def rd(ks):
        for tt in range(2):
            A(f'ds_read_b128 {v(RING + (ks % D)*8 + tt*4, 4)}, {v(VRD)} offset:{(tt*NKS + ks)*1024}')
    for k in range(min(D, NKS)): rd(k)
    for ks in range(NKS):
        if ks == KMID:
            A('s_waitcnt vmcnt(0)')
            publish(A, s(S_SEG), VT, VZERO, ts=False)
            sk = A.newlabel('gnopf')
            A(f's_cmp_ge_u32 {s(S_SEG)}, 63')
            A(f's_cbranch_scc1 {sk}')
            if not cfg.get('NOWAIT'):
                A(f's_add_u32 {s(S_TGT)}, {s(S_SEG)}, 2')
                A(f'v_cmp_gt_u32 vcc, {s(S_TGT)}, {v(VFLAG)}')
                A(f's_cbranch_vccnz {sk}')
            dma()
            A(f's_mov_b32 {s(S_PREF)}, 1')
            A.label(sk)
        A(f's_waitcnt lgkmcnt({2*min(D-1, NKS-1-ks)})')
        for t in range(NT):
            for tt in range(2):
                fr = v(RING + (ks % D)*8 + tt*4, 4)
                c = '0' if ks == 0 else v(ACC(t, tt), 4)
                if P['swap'](t): A(f'{MF} {v(ACC(t,tt),4)}, {fr}, {W(t,ks)}, {c}')
                else: A(f'{MF} {v(ACC(t,tt),4)}, {W(t,ks)}, {fr}, {c}')
        if ks + D < NKS: rd(ks + D)
    tstamp(A, cfg, s(S_SEG), VT, VZERO)
    fst(A, cfg, 4, S_SEG)
    if DR < 64:
        down_check(A, cfg, DOWN['VP'], DOWN['VF'], s(S_SEG), DOWN['back'], S_TD, fail)
        ring_off(A, S_DST, S_DSTB, s(S_SEG), DR, P['dst_stride'])
    P['epilogue'](A)
    fst(A, cfg, 5, S_SEG)
    sk2 = A.newlabel('gnopub')
    if 'VPOLLN' in P:
        A(f'v_xor_b32 {v(VPOLL)}, {s(P["SPX"])}, {v(VPOLL)}')
        A(f'v_xor_b32 {v(P["VPOLLN"])}, {s(P["SPX"])}, {v(P["VPOLLN"])}')
    A(f's_add_u32 {s(S_SEG)}, {s(S_SEG)}, 1')
    A(f's_cmp_lg_u32 {s(S_PREF)}, 0')
    A(f's_cbranch_scc1 {loop}')
    A('s_waitcnt vmcnt(0)')
    fst(A, cfg, 6, S_SEG, 33)
    publish(A, s(S_SEG), VT, VZERO, ts=False)
    A(f's_cmp_lt_u32 {s(S_SEG)}, 64')
    A(f's_cbranch_scc1 {loop}')

def cvt(A, d, x, y): A(f'v_cvt_pk_bf16_f32 {v(d)}, {v(x)}, {v(y)}')

def role_a1(A, cfg, fail, done):
    set_scope(True)
    w = s(S_WAVE)
    lane_setup(A)
    S_M, S_TAU = S_A, S_B
    A(f's_mul_i32 {s(S_M)}, {s(S_IDX)}, 43')
    A(f's_lshr_b32 {s(S_M)}, {s(S_M)}, 7')
    A(f's_mul_i32 {s(S_TMP)}, {s(S_M)}, 3')
    A(f's_sub_u32 {s(S_TMP)}, {s(S_IDX)}, {s(S_TMP)}')
    A(f's_mul_i32 {s(S_TAU)}, {s(S_TMP)}, 12')
    A(f's_mul_i32 {s(S_TMP)}, {w}, 3')
    A(f's_add_u32 {s(S_TAU)}, {s(S_TAU)}, {s(S_TMP)}')
    A('v_lshrrev_b32 v68, 1, v79'); A('v_mul_u32_u24 v68, 3456, v68')
    A('v_and_b32 v72, 1, v79'); A('v_lshlrev_b32 v72, 4, v72'); A('v_add_u32 v68, v68, v72')
    A('v_lshrrev_b32 v69, 3, v79'); A('v_mul_u32_u24 v69, 3456, v69')
    A('v_mul_u32_u24 v72, 36, v76'); A('v_add_u32 v69, v69, v72')
    blocks = []
    for t in range(3):
        for ks in range(18):
            def issue(A, t=t, ks=ks):
                if ks == 0:
                    A(f's_add_u32 {s(S_C)}, {s(S_TAU)}, {t}')
                    A(f's_mul_i32 {s(S_D)}, {s(S_M)}, 1152')
                    A(f's_mul_i32 {s(S_TMP)}, {s(S_C)}, 36')
                    A(f's_sub_u32 {s(S_TMP+1)}, {s(S_C)}, 32')
                    A(f's_mul_i32 {s(S_TMP+1)}, {s(S_TMP+1)}, 288')
                    A(f's_add_u32 {s(S_TMP+1)}, {s(S_TMP+1)}, 32')
                    A(f's_cmp_ge_u32 {s(S_C)}, 32')
                    A(f's_cselect_b32 {s(S_TMP)}, {s(S_TMP+1)}, {s(S_TMP)}')
                    A(f's_add_u32 {s(S_D)}, {s(S_D)}, {s(S_TMP)}')
                lo = A.newlabel('a1lo'); en = A.newlabel('a1en')
                A(f's_add_u32 {s(S_SOFF)}, {s(S_D)}, {ks*32*3456}')
                A(f's_cmp_ge_u32 {s(S_C)}, 32')
                A(f's_cbranch_scc1 {lo}')
                dma16(A, 68, s(S_SOFF))
                A(f's_branch {en}')
                A.label(lo)
                for q in range(4):
                    A(f's_mov_b32 m0, {s(S_M0)}')
                    A(f'buffer_load_dword v69, {s(S_SRD,4)}, {s(S_SOFF)} offen lds')
                    if q < 3:
                        A(f's_add_u32 {s(S_SOFF)}, {s(S_SOFF)}, {8*3456}')
                        A(f's_add_u32 {s(S_M0)}, {s(S_M0)}, 256')
                A.label(en)
            blocks.append(dict(issue=issue, dst=lambda half, t=t, ks=ks: a(t*72 + ks*4 + 2*half, 2)))
    block_loader(A, blocks, KA_WQKV, 576*3456, per_round=27)
    VL16, VRD, VPOLL, VFLAG, VZERO, VT, VL8 = 60, 61, 62, 63, 64, 65, 66
    A(f'v_lshlrev_b32 {v(VL16)}, 4, v79')
    A(f'v_lshlrev_b32 {v(VL8)}, 3, v79')
    A(f'v_mov_b32 {v(VZERO)}, 0')
    sel_layer(A, S_TMP+2, [R_R0, R_RB[0]])
    flagaddr(A, VPOLL, s(S_TMP+2), 16)
    VPOLLN, SPX = 67, S_X
    A(f's_lshl_b32 {s(SPX)}, {s(S_L)}, 9')
    A(f'v_xor_b32 {v(VPOLLN)}, {s(SPX)}, {v(VPOLL)}')
    VPD, VFD = 68, 69
    sel_layer(A, S_TMP+2, R_ATTA)
    flagaddr(A, VPD, s(S_TMP+2), 64)
    own_flag(A)
    sel_layer(A, S_SRC, WS_XNA)
    sel_layer(A, S_DST, WS_QKVA)
    A(f's_mul_i32 {s(S_TMP)}, {s(S_M)}, 36864')
    A(f's_add_u32 {s(S_DST)}, {s(S_DST)}, {s(S_TMP)}')
    A(f's_lshl_b32 {s(S_TMP)}, {s(S_TAU)}, 10')
    A(f's_add_u32 {s(S_DST)}, {s(S_DST)}, {s(S_TMP)}')
    cfg['barrier_wait'](A)
    ACC = lambda t, tt: t*8 + tt*4
    def epi(swap):
        def f(A):
            for t in range(3):
                b = t*8
                cvt(A, b, b, b+1); cvt(A, b+1, b+2, b+3); cvt(A, b+2, b+4, b+5); cvt(A, b+3, b+6, b+7)
                if swap:
                    A(f'buffer_store_dwordx4 {v(b,4)}, {v(VL16)}, {s(S_WS,4)}, {s(S_DST)} offen offset:{t*1024}' + SCOPE[0])
                else:
                    A(f'buffer_store_dwordx2 {v(b,2)}, {v(VL8)}, {s(S_WS,4)}, {s(S_DST)} offen offset:{t*1024}' + SCOPE[0])
                    A(f'buffer_store_dwordx2 {v(b+2,2)}, {v(VL8)}, {s(S_WS,4)}, {s(S_DST)} offen offset:{t*1024+512}' + SCOPE[0])
            A(f's_add_u32 {s(S_DST)}, {s(S_DST)}, {SEG_QKVA}')
        return f
    lv = A.newlabel('a1v')
    A(f's_cmp_eq_u32 {s(S_M)}, 2')
    A(f's_cbranch_scc1 {lv}')
    for swap in (False, True):
        if swap: A.label(lv); A.flush()
        P = dict(NT=3, NKS=18, D=3, W=lambda t, ks: a(t*72 + ks*4, 4), ACC=ACC, RING=24, VL16=VL16, VRD=VRD, VPOLL=VPOLL,
                 VFLAG=VFLAG, VZERO=VZERO, VT=VT, nst=(3 if swap else 6), swap=lambda t, sw=swap: sw, epilogue=epi(swap), src_stride=SEG_XN,
                 VPOLLN=VPOLLN, SPX=SPX, dst_ring=ring('QKVA'), dst_stride=SEG_QKVA, down=dict(VP=VPD, VF=VFD, back=ring('QKVA')-1))
        gemm_loop(A, cfg, P, fail)
        A(f's_branch {done}')

def sel_layer(A, sdst, vals):
    A(f's_mul_i32 {s(sdst)}, {s(S_L)}, {hex(vals[1]-vals[0])}')
    A(f's_add_u32 {s(sdst)}, {s(sdst)}, {hex(vals[0])}')

def part_store_addr(A, vdst):
    A(f'v_lshrrev_b32 v72, 3, v78'); A(f'v_mul_u32_u24 v72, 18432, v72')
    A(f'v_lshlrev_b32 v73, 7, v77'); A(f'v_add_u32 v72, v72, v73')
    A(f'v_lshlrev_b32 v73, 4, v76'); A(f'v_add_u32 {v(vdst)}, v72, v73')

def part_epilogue(NT, VPS, stride):
    def f(A):
        A(f's_add_u32 {s(S_DST2)}, {s(S_DST)}, 36864')
        for t in range(NT):
            for tt in range(2):
                A(f'buffer_store_dwordx4 {v(t*8+tt*4,4)}, {v(VPS)}, {s(S_WS,4)}, {s(S_DST2 if tt else S_DST)} offen offset:{t*512}' + SCOPE[0])
        A(f's_add_u32 {s(S_DST)}, {s(S_DST)}, {stride}')
    return f

def role_a3(A, cfg, fail, done):
    set_scope(True)
    w = s(S_WAVE)
    lane_setup(A)
    S_T0 = S_A
    A(f's_mul_i32 {s(S_T0)}, {s(S_IDX)}, 12')
    A(f's_mul_i32 {s(S_TMP)}, {w}, 3')
    A(f's_add_u32 {s(S_T0)}, {s(S_T0)}, {s(S_TMP)}')
    A(f's_lshl_b32 {s(S_B)}, {s(S_T0)}, 5')
    A('v_lshrrev_b32 v70, 1, v79')
    A('v_lshrrev_b32 v71, 4, v70')
    A('v_and_b32 v72, 15, v70')
    A('v_mul_u32_u24 v73, 18, v71'); A('v_add_u32 v73, v73, v72'); A('v_mul_u32_u24 v68, 1152, v73')
    A('v_mul_u32_u24 v73, 144, v71')
    A('v_lshrrev_b32 v71, 1, v72'); A('v_mul_u32_u24 v71, 18, v71'); A('v_add_u32 v73, v73, v71')
    A('v_and_b32 v71, 1, v72'); A('v_add_u32 v73, v73, v71'); A('v_add_u32 v73, 16, v73')
    A('v_mul_u32_u24 v69, 1152, v73')
    A('v_and_b32 v72, 1, v79'); A('v_lshlrev_b32 v72, 4, v72')
    A('v_add_u32 v68, v68, v72'); A('v_add_u32 v69, v69, v72')
    blocks = []
    for t in range(3):
        for ks in range(18):
            def issue(A, t=t, ks=ks):
                off = (ks*36*1152 if ks < 16 else (ks-16)*288*1152) + t*32
                A(f's_add_u32 {s(S_SOFF)}, {s(S_B)}, {off}')
                dma16(A, 68 if ks < 16 else 69, s(S_SOFF))
            blocks.append(dict(issue=issue, dst=lambda half, t=t, ks=ks: a(t*72 + ks*4 + 2*half, 2)))
    block_loader(A, blocks, KA_AWO, 576*1152, per_round=27)
    VL16, VRD, VPOLL, VFLAG, VZERO, VT, VPS = 60, 61, 62, 63, 64, 65, 66
    A(f'v_lshlrev_b32 {v(VL16)}, 4, v79')
    A(f'v_mov_b32 {v(VZERO)}, 0')
    sel_layer(A, S_TMP+2, R_ATTA)
    flagaddr(A, VPOLL, s(S_TMP+2), 64)
    VPD, VFD = 67, 68
    sel_layer(A, S_TMP+2, R_RA)
    flagaddr(A, VPD, s(S_TMP+2), 16)
    own_flag(A)
    part_store_addr(A, VPS)
    sel_layer(A, S_SRC, WS_OA)
    sel_layer(A, S_DST, WS_PA)
    A(f's_lshl_b32 {s(S_TMP)}, {s(S_T0)}, 9')
    A(f's_add_u32 {s(S_DST)}, {s(S_DST)}, {s(S_TMP)}')
    cfg['barrier_wait'](A)
    P = dict(NT=3, NKS=18, D=3, W=lambda t, ks: a(t*72 + ks*4, 4), ACC=lambda t, tt: t*8+tt*4, RING=24, VL16=VL16, VRD=VRD, VPOLL=VPOLL,
             VFLAG=VFLAG, VZERO=VZERO, VT=VT, nst=6, swap=lambda t: False, epilogue=part_epilogue(3, VPS, SEG_PA), src_stride=SEG_XN,
             src_ring=ring('OA'), dst_ring=ring('PA'), dst_stride=SEG_PA, down=dict(VP=VPD, VF=VFD, back=ring('PA')-1))
    gemm_loop(A, cfg, P, fail)
    A(f's_branch {done}')

def role_b3(A, cfg, fail, done):
    set_scope(True)
    w = s(S_WAVE)
    lane_setup(A)
    S_KQ, S_T0 = S_A, S_B
    A(f's_mul_i32 {s(S_KQ)}, {s(S_IDX)}, 43')
    A(f's_lshr_b32 {s(S_KQ)}, {s(S_KQ)}, 7')
    A(f's_mul_i32 {s(S_TMP)}, {s(S_KQ)}, 3')
    A(f's_sub_u32 {s(S_TMP)}, {s(S_IDX)}, {s(S_TMP)}')
    A(f's_mul_i32 {s(S_T0)}, {s(S_TMP)}, 12')
    A(f's_mul_i32 {s(S_TMP)}, {w}, 3')
    A(f's_add_u32 {s(S_T0)}, {s(S_T0)}, {s(S_TMP)}')
    A(f's_mul_i32 {s(S_C)}, {s(S_KQ)}, {1024*1152}')
    A(f's_lshl_b32 {s(S_TMP)}, {s(S_T0)}, 5')
    A(f's_add_u32 {s(S_C)}, {s(S_C)}, {s(S_TMP)}')
    A('v_lshrrev_b32 v68, 1, v79'); A('v_mul_u32_u24 v68, 1152, v68')
    A('v_and_b32 v72, 1, v79'); A('v_lshlrev_b32 v72, 4, v72'); A('v_add_u32 v68, v68, v72')
    WB = 128
    blocks = []
    for ks in range(32):
        for t in range(3):
            def issue(A, t=t, ks=ks):
                A(f's_add_u32 {s(S_SOFF)}, {s(S_C)}, {ks*32*1152 + t*32}')
                dma16(A, 68, s(S_SOFF))
            blocks.append(dict(issue=issue, dst=lambda half, t=t, ks=ks: wreg_lin(t*128 + ks*4 + 2*half, 2, WB)))
    block_loader(A, blocks, KA_WO, 4096*1152, per_round=32)
    VL16, VRD, VPOLL, VFLAG, VZERO, VT, VPS = 60, 61, 62, 63, 64, 65, 66
    A(f'v_lshlrev_b32 {v(VL16)}, 4, v79')
    A(f'v_mov_b32 {v(VZERO)}, 0')
    sel_layer(A, S_TMP+2, R_ATTB)
    A(f's_lshl_b32 {s(S_TMP)}, {s(S_KQ)}, 1')
    A(f's_add_u32 {s(S_TMP+2)}, {s(S_TMP+2)}, {s(S_TMP)}')
    flagaddr(A, VPOLL, s(S_TMP+2), 8)
    VPD, VFD = 67, 68
    sel_layer(A, S_TMP+2, R_RB)
    flagaddr(A, VPD, s(S_TMP+2), 32)
    own_flag(A)
    part_store_addr(A, VPS)
    sel_layer(A, S_SRC, WS_OB)
    A(f's_lshl_b32 {s(S_TMP)}, {s(S_KQ)}, 16')
    A(f's_add_u32 {s(S_SRC)}, {s(S_SRC)}, {s(S_TMP)}')
    sel_layer(A, S_DST, WS_PB)
    A(f's_mul_i32 {s(S_TMP)}, {s(S_KQ)}, 73728')
    A(f's_add_u32 {s(S_DST)}, {s(S_DST)}, {s(S_TMP)}')
    A(f's_lshl_b32 {s(S_TMP)}, {s(S_T0)}, 9')
    A(f's_add_u32 {s(S_DST)}, {s(S_DST)}, {s(S_TMP)}')
    cfg['barrier_wait'](A)
    P = dict(NT=3, NKS=32, D=3, W=lambda t, ks: wreg_lin(t*128 + ks*4, 4, WB), ACC=lambda t, tt: t*8+tt*4, RING=24, VL16=VL16, VRD=VRD, VPOLL=VPOLL,
             VFLAG=VFLAG, VZERO=VZERO, VT=VT, nst=6, swap=lambda t: False, epilogue=part_epilogue(3, VPS, SEG_PB), src_stride=SEG_OB, KMID=10,
             src_ring=ring('OB'), dst_ring=ring('PB'), dst_stride=SEG_PB, down=dict(VP=VPD, VF=VFD, back=ring('PB')))
    gemm_loop(A, cfg, P, fail)
    A(f's_branch {done}')

def role_b1(A, cfg, fail, done):
    set_scope(False)
    w = s(S_WAVE)
    lane_setup(A)
    issue_half, consume_half = qkv_loader(A, True)
    issue_half(0); issue_half(1)
    for hf in range(6):
        A(f's_waitcnt vmcnt({18 if hf < 5 else 0})')
        A('s_barrier')
        consume_half(hf)
        A('s_barrier')
        if hf + 2 < 6: issue_half(hf + 2)
    VL16, VRD, VPOLL, VFLAG, VZERO, VT = 64, 65, 66, 67, 68, 69
    A(f'v_lshlrev_b32 {v(VL16)}, 4, v79')
    A(f'v_mov_b32 {v(VZERO)}, 0')
    sel_layer(A, S_TMP+2, R_RA)
    flagaddr(A, VPOLL, s(S_TMP+2), 16)
    own_flag(A)
    sel_layer(A, S_SRC, WS_XNB)
    A(f's_mul_i32 {s(S_DST)}, {s(S_L)}, {QKVX_STRIDE}')
    A(f's_mul_i32 {s(S_TMP)}, {s(S_IDX)}, 24576')
    A(f's_add_u32 {s(S_DST)}, {s(S_DST)}, {s(S_TMP)}')
    A(f's_lshl_b32 {s(S_TMP)}, {w}, 10')
    A(f's_add_u32 {s(S_DST)}, {s(S_DST)}, {s(S_TMP)}')
    A(f's_add_u32 {s(S_DST)}, {s(S_DST)}, {WS_QKVX}')
    cfg['barrier_wait'](A)
    def W(t, ks): return [WQ, WK, WV][t//2](t % 2, ks)
    def ACC(t, tt):
        m = t//2
        return (m*2 + tt)*8 + (t % 2)*4 if m < 2 else 32 + (t % 2)*8 + tt*4
    def epi(A):
        for m in range(2):
            for tt in range(2):
                b = (m*2+tt)*8
                cvt(A, b, b, b+1); cvt(A, b+1, b+2, b+3); cvt(A, b+2, b+4, b+5); cvt(A, b+3, b+6, b+7)
                A(f's_add_u32 {s(S_DST2)}, {s(S_DST)}, {m*8192 + tt*4096}')
                A(f'buffer_store_dwordx4 {v(b,4)}, {v(VL16)}, {s(S_WS,4)}, {s(S_DST2)} offen sc1')
        A(f's_lshl_b32 {s(S_TMP)}, {w}, 10')
        A(f's_add_u32 {s(S_DST2)}, {s(S_DST)}, {s(S_TMP)}')
        A(f's_add_u32 {s(S_DST2)}, {s(S_DST2)}, 16384')
        for t in range(2):
            b = 32 + t*8
            cvt(A, b, b, b+1); cvt(A, b+1, b+2, b+3); cvt(A, b+2, b+4, b+5); cvt(A, b+3, b+6, b+7)
            A(f'buffer_store_dwordx4 {v(b,4)}, {v(VL16)}, {s(S_WS,4)}, {s(S_DST2)} offen offset:{t*1024} sc1')
        A(f's_add_u32 {s(S_DST)}, {s(S_DST)}, {32*24576}')
    P = dict(NT=6, NKS=18, D=2, W=W, ACC=ACC, RING=48, VL16=VL16, VRD=VRD, VPOLL=VPOLL, VFLAG=VFLAG, VZERO=VZERO, VT=VT,
             nst=6, swap=lambda t: t >= 4, epilogue=epi, src_stride=SEG_XN, KMID=6)
    gemm_loop(A, cfg, P, fail)
    A(f's_branch {done}')
```

```python
from roles import *

BIGNEG = 0xff7fffff

def xlane_sum(A, x, t, op='v_add_f32', ror8=True):
    if ror8: A(f'{op}_dpp {v(x)}, {v(x)}, {v(x)} row_ror:8 row_mask:0xf bank_mask:0xf')
    A(f'v_mov_b32 {v(t)}, {v(x)}')
    A(f'v_permlane16_swap_b32 {v(x)}, {v(t)}')
    A(f'{op} {v(x)}, {v(x)}, {v(t)}')
    A(f'v_mov_b32 {v(t)}, {v(x)}')
    A(f'v_permlane32_swap_b32 {v(x)}, {v(t)}')
    A(f'{op} {v(x)}, {v(x)}, {v(t)}')

def role_red(A, cfg, kind, l, fail, done):
    set_scope(False)
    w = s(S_WAVE)
    nparts = {'R0': 0, 'RA': 1, 'RB': 4}[kind]
    final = (kind == 'RB' and l == 1)
    ALT = 2 if kind == 'RB' else 1
    lane_setup(A)
    S_PAR = S_X + 1
    A(f's_lshr_b32 {s(S_PAR)}, {s(S_IDX)}, 2')
    A(f's_and_b32 {s(S_IDX)}, {s(S_IDX)}, 3')
    SX, SO = 48, 52
    S_XS, S_XD, S_PS, S_NS = S_A, S_B, S_C, S_D
    VXA, VPA, VNA, VPOLL, VFLAG, VZERO, VT, VST = 110, 111, 112, 113, 114, 115, 116, 117
    A('v_bfe_u32 v72, v79, 3, 2')
    A('v_lshrrev_b32 v73, 5, v79')
    A(f's_mul_i32 {s(S_TMP)}, {w}, 9')
    A(f'v_add_u32 v73, {s(S_TMP)}, v73')
    A(f'v_mul_u32_u24 {v(VXA)}, 1152, v76')
    A(f'v_lshlrev_b32 v74, 5, v73'); A(f'v_add_u32 {v(VXA)}, {v(VXA)}, v74')
    A(f'v_lshlrev_b32 v74, 3, v72'); A(f'v_add_u32 {v(VXA)}, {v(VXA)}, v74')
    A(f'v_lshlrev_b32 {v(VPA)}, 4, v79')
    A(f's_mul_i32 {s(S_TMP)}, {w}, 4608')
    A(f'v_add_u32 {v(VPA)}, {s(S_TMP)}, {v(VPA)}')
    A(f'v_lshrrev_b32 {v(VNA)}, 1, v73'); A(f'v_lshlrev_b32 {v(VNA)}, 10, {v(VNA)}')
    A(f'v_and_b32 v74, 1, v73'); A(f'v_lshlrev_b32 v74, 3, v74'); A(f'v_add_u32 {v(VNA)}, {v(VNA)}, v74')
    A(f'v_lshlrev_b32 v74, 4, v72'); A(f'v_add_u32 v74, v74, v76'); A(f'v_lshlrev_b32 v74, 4, v74')
    A(f'v_add_u32 {v(VNA)}, {v(VNA)}, v74')
    A(f's_and_b32 {s(S_TMP)}, {s(S_IDX)}, 1')
    A(f's_lshr_b32 {s(S_TMP+1)}, {s(S_IDX)}, 1')
    A(f's_lshl_b32 {s(S_TMP+2)}, {s(S_TMP)}, 7')
    A(f'v_add_u32 {v(VNA)}, {s(S_TMP+2)}, {v(VNA)}')
    A(f'v_lshlrev_b32 {v(VST)}, 3, v76')
    A(f'v_mov_b32 {v(VZERO)}, 0')
    A(f's_mul_i32 {s(S_XS)}, {s(S_IDX)}, {8*1152}')
    A(f's_mov_b32 {s(S_XD)}, {s(S_XS)}')
    A(f's_mul_i32 {s(S_PS)}, {s(S_IDX)}, 18432')
    A(f's_mul_i32 {s(S_NS)}, {s(S_TMP+1)}, 18432')
    XB = 2048*1152
    if kind == 'R0' or (kind == 'RA' and l == 0):
        A(f's_load_dwordx2 {s(S_PTR,2)}, {s(S_KA,2)}, {KA_AX}'); A('s_waitcnt lgkmcnt(0)')
        srd_from_ptr(A, SX, S_PTR, XB)
    else:
        for i in range(4): A(f's_mov_b32 {s(SX+i)}, {s(S_WS+i)}')
        A(f's_add_u32 {s(S_XS)}, {s(S_XS)}, {hex(WS_X2 if kind == "RA" else WS_X1[l])}')
    if final:
        A(f's_load_dwordx2 {s(S_PTR,2)}, {s(S_KA,2)}, {KA_OUT}'); A('s_waitcnt lgkmcnt(0)')
        srd_from_ptr(A, SO, S_PTR, XB)
    else:
        for i in range(4): A(f's_mov_b32 {s(SO+i)}, {s(S_WS+i)}')
        if kind != 'R0': A(f's_add_u32 {s(S_XD)}, {s(S_XD)}, {hex(WS_X1[l] if kind == "RA" else WS_X2)}')
    if nparts:
        A(f's_add_u32 {s(S_PS)}, {s(S_PS)}, {hex(WS_PA[l] if kind == "RA" else WS_PB[l])}')
        if kind == 'RA': flagaddr(A, VPOLL, R_A3[l], 12)
        else: flagaddr(A, VPOLL, R_B3[l], 48)
    if not final:
        A(f's_add_u32 {s(S_NS)}, {s(S_NS)}, {hex({"R0": WS_XNA[0], "RA": WS_XNB[l], "RB": WS_XNA[1]}[kind])}')
    own_flag(A)
    A(f's_mov_b32 {s(S_EXLO)}, -1'); A(f's_mov_b32 {s(S_EXLO+1)}, 0')
    if ALT == 2:
        for (r, st) in ((S_XS, SEG_X), (S_XD, SEG_X), (S_PS, SEG_PA if kind == "RA" else SEG_PB), (S_NS, SEG_XN)):
            A(f's_mul_i32 {s(S_TMP)}, {s(S_PAR)}, {st}'); A(f's_add_u32 {s(r)}, {s(r)}, {s(S_TMP)}')
    cfg['barrier_wait'](A)
    A(f's_mov_b32 {s(S_SEG)}, {s(S_PAR)}')
    A(f's_mov_b32 {s(S_X)}, 0')
    if nparts:
        A(f's_add_u32 {s(S_TGT)}, {s(S_SEG)}, 1')
        poll_block(A, cfg, VPOLL, s(S_TGT), VFLAG, fail)
    loop = A.newlabel('rloop')
    A.label(loop)
    fst(A, cfg, 1, S_SEG)
    XR = 20; PR = 128
    def masked(i, f):
        if i == 4: A(f's_mov_b64 exec, {s(S_EXLO,2)}')
        f()
        if i == 4: A('s_mov_b64 exec, -1')
    for i in range(5):
        masked(i, lambda: A(f'buffer_load_dwordx2 {v(XR+2*i,2)}, {v(VXA)}, {s(SX,4)}, {s(S_XS)} offen offset:{i*64}'))
    for p in range(nparts):
        A(f's_add_u32 {s(S_TMP)}, {s(S_PS)}, {p*73728}')
        A(f's_add_u32 {s(S_TMP+1)}, {s(S_TMP)}, 4096')
        for i in range(5):
            masked(i, lambda: A(f'buffer_load_dwordx4 {v(PR+p*20+i*4,4)}, {v(VPA)}, {s(S_WS,4)}, {s(S_TMP+1 if i == 4 else S_TMP)} offen offset:{(i%4)*1024}'))
    A('s_waitcnt vmcnt(0)')
    fst(A, cfg, 2, S_SEG)
    HI = 118
    if True:
        A(f'v_mov_b32 {v(HI)}, 0xffff0000')
    for i in range(5):
        X = 4*i
        def body():
            A(f'v_lshlrev_b32 {v(X)}, 16, {v(XR+2*i)}')
            A(f'v_and_b32 {v(X+1)}, {v(HI)}, {v(XR+2*i)}')
            A(f'v_lshlrev_b32 {v(X+2)}, 16, {v(XR+2*i+1)}')
            A(f'v_and_b32 {v(X+3)}, {v(HI)}, {v(XR+2*i+1)}')
            if nparts:
                y = PR + i*4
                if nparts == 4:
                    for (d, o) in ((0, 1), (2, 3), (0, 2)):
                        for hh in (0, 2):
                            A(f'v_pk_add_f32 {v(y+d*20+hh,2)}, {v(y+d*20+hh,2)}, {v(y+o*20+hh,2)}')
                cvt(A, y, y, y+1); cvt(A, y+1, y+2, y+3)
                A(f'v_lshlrev_b32 {v(y+4-4+2)}, 16, {v(y)}') if False else None
                A(f'v_and_b32 {v(y+2)}, {v(HI)}, {v(y)}')
                A(f'v_and_b32 {v(y+3)}, {v(HI)}, {v(y+1)}')
                A(f'v_lshlrev_b32 {v(y)}, 16, {v(y)}')
                A(f'v_lshlrev_b32 {v(y+1)}, 16, {v(y+1)}')
                A(f'v_add_f32 {v(X)}, {v(X)}, {v(y)}')
                A(f'v_add_f32 {v(X+1)}, {v(X+1)}, {v(y+2)}')
                A(f'v_add_f32 {v(X+2)}, {v(X+2)}, {v(y+1)}')
                A(f'v_add_f32 {v(X+3)}, {v(X+3)}, {v(y+3)}')
                cvt(A, XR+2*i, X, X+1); cvt(A, XR+2*i+1, X+2, X+3)
                A(f'buffer_store_dwordx2 {v(XR+2*i,2)}, {v(VXA)}, {s(SO,4)}, {s(S_XD)} offen offset:{i*64}' + ('' if final else ' sc1'))
                if not final:
                    A(f'v_lshlrev_b32 {v(X)}, 16, {v(XR+2*i)}')
                    A(f'v_and_b32 {v(X+1)}, {v(HI)}, {v(XR+2*i)}')
                    A(f'v_lshlrev_b32 {v(X+2)}, 16, {v(XR+2*i+1)}')
                    A(f'v_and_b32 {v(X+3)}, {v(HI)}, {v(XR+2*i+1)}')
        masked(i, body)
    if not final:
        SM, M2, T1 = 40, 41, 42
        A(f'v_pk_add_f32 {v(44,2)}, {v(0,2)}, {v(2,2)}')
        for i in range(1, 4):
            A(f'v_pk_add_f32 {v(44,2)}, {v(44,2)}, {v(4*i,2)}')
            A(f'v_pk_add_f32 {v(44,2)}, {v(44,2)}, {v(4*i+2,2)}')
        def b4():
            A(f'v_pk_add_f32 {v(44,2)}, {v(44,2)}, {v(16,2)}')
            A(f'v_pk_add_f32 {v(44,2)}, {v(44,2)}, {v(18,2)}')
        masked(4, b4)
        A(f'v_add_f32 {v(SM)}, v44, v45')
        xlane_sum(A, SM, T1)
        A(f'v_mul_f32 {v(SM)}, {hex(f32(1.0/144))}, {v(SM)}')
        A(f'v_mov_b32 {v(M2)}, 0')
        for i in range(5):
            def b5():
                for r in range(4):
                    A(f'v_sub_f32 {v(46)}, {v(4*i+r)}, {v(SM)}')
                    A(f'v_fmac_f32 {v(M2)}, v46, v46')
            masked(i, b5)
        xlane_sum(A, M2, T1)
        A(f's_lshl_b32 {s(S_TMP)}, {w}, 6')
        A(f's_add_u32 {s(S_TMP)}, {s(S_TMP)}, {s(S_X)}')
        A(f'v_add_u32 {v(T1)}, {s(S_TMP)}, {v(VST)}')
        A('s_mov_b64 exec, 0xff')
        A(f'ds_write_b64 {v(T1)}, {v(SM,2)}')
        A('s_mov_b64 exec, -1')
        A(f'v_add_u32 {v(T1)}, {s(S_X)}, {v(VST)}')
        A('s_waitcnt lgkmcnt(0)')
        fst(A, cfg, 3, S_SEG)
        A('s_barrier')
        fst(A, cfg, 4, S_SEG)
        for ww in range(4):
            A(f'ds_read_b64 {v(48+2*ww,2)}, {v(T1)} offset:{ww*64}')
        A(f's_xor_b32 {s(S_X)}, {s(S_X)}, 256')
        A('s_waitcnt lgkmcnt(0)')
        A('v_add_f32 v56, v48, v50'); A('v_add_f32 v57, v52, v54'); A('v_add_f32 v56, v56, v57')
        A('v_mul_f32 v56, 0.25, v56')
        A('v_add_f32 v57, v49, v51'); A('v_add_f32 v58, v53, v55'); A('v_add_f32 v57, v57, v58')
        A('v_mov_b32 v58, 0')
        for ww in range(4):
            A(f'v_sub_f32 v59, {v(48+2*ww)}, v56')
            A(f'v_fmac_f32 v58, v59, v59')
        A(f'v_fmac_f32 v57, {hex(f32(144.0))}, v58')
        A(f'v_mov_b32 v59, {hex(f32(1e-5))}')
        A(f'v_fmac_f32 v59, {hex(f32(1.0/576))}, v57')
        A('v_rsq_f32 v59, v59')
        A(f's_add_u32 {s(S_TMP+1)}, {s(S_NS)}, 4096')
        for i in range(5):
            def b6():
                X = 4*i
                for r in range(4):
                    A(f'v_sub_f32 {v(X+r)}, {v(X+r)}, v56')
                for r in range(4):
                    A(f'v_mul_f32 {v(X+r)}, {v(X+r)}, v59')
                cvt(A, X, X, X+1); cvt(A, X+1, X+2, X+3)
                A(f'buffer_store_dwordx2 {v(X,2)}, {v(VNA)}, {s(S_WS,4)}, {s(S_TMP+1 if i == 4 else S_NS)} offen offset:{(i%4)*1024} sc1')
            masked(i, b6)
    fst(A, cfg, 5, S_SEG)
    if nparts: poll_issue(A, cfg, VPOLL, VFLAG)
    A(f's_add_u32 {s(S_XS)}, {s(S_XS)}, {ALT*SEG_X}')
    A(f's_add_u32 {s(S_XD)}, {s(S_XD)}, {ALT*SEG_X}')
    A(f's_add_u32 {s(S_PS)}, {s(S_PS)}, {ALT*(SEG_PA if kind == "RA" else SEG_PB)}')
    A(f's_add_u32 {s(S_NS)}, {s(S_NS)}, {ALT*SEG_XN}')
    A(f's_add_u32 {s(S_TMP)}, {s(S_SEG)}, 1')
    A(f's_add_u32 {s(S_SEG)}, {s(S_SEG)}, {ALT}')
    A('s_waitcnt vmcnt(0)')
    fst(A, cfg, 6, S_SEG, 32+ALT)
    if not final: publish(A, s(S_TMP), VT, VZERO)
    elif cfg.get('TIME'): tstamp(A, CFG, s(S_TMP), VT, VZERO)
    A(f's_cmp_ge_u32 {s(S_SEG)}, 64')
    A(f's_cbranch_scc1 {done}')
    if nparts:
        A(f's_add_u32 {s(S_TGT)}, {s(S_SEG)}, 1')
        poll_check(A, cfg, VPOLL, s(S_TGT), VFLAG, fail)
    A(f's_branch {loop}')


def role_red2(A, cfg, kind, l, fail, done):
    set_scope(False)
    w = s(S_WAVE)
    nparts = {'R0': 0, 'RA': 1, 'RB': 4}[kind]
    final = (kind == 'RB' and l == 1)
    ALT = 2 if kind == 'RB' else 1
    xgate = not (kind == 'R0' or (kind == 'RA' and l == 0))
    lane_setup(A)
    S_PAR = S_X + 1; S_HAVE = S_X
    A(f's_lshr_b32 {s(S_PAR)}, {s(S_IDX)}, 2')
    A(f's_and_b32 {s(S_IDX)}, {s(S_IDX)}, 3')
    SX, SO = 48, 52
    S_PM = 56
    S_XS, S_XD, S_PS, S_NS = S_A, S_B, S_C, S_D
    VXA, VPA, VNW, VPOLL, VFLAG, VZERO, VT, VST, HI, VL16, VNG, VTG, VTOG, VP2, VF2 = range(96, 111)
    L_ST, L_XO, L_NO = 0, 1024, 10240
    A('v_bfe_u32 v72, v79, 3, 2')
    A('v_lshrrev_b32 v73, 5, v79')
    A(f'v_lshlrev_b32 {v(VNG)}, 10, v73')
    A(f'v_lshlrev_b32 v74, 8, v72'); A(f'v_add_u32 {v(VNG)}, {v(VNG)}, v74')
    A(f'v_lshlrev_b32 v74, 4, v76'); A(f'v_add_u32 {v(VNG)}, {v(VNG)}, v74')
    A(f's_mul_i32 {s(S_TMP)}, {w}, 9')
    A(f'v_add_u32 v73, {s(S_TMP)}, v73')
    A(f'v_mul_u32_u24 {v(VXA)}, 1152, v76')
    A(f'v_lshlrev_b32 v74, 5, v73'); A(f'v_add_u32 {v(VXA)}, {v(VXA)}, v74')
    A(f'v_lshlrev_b32 v74, 3, v72'); A(f'v_add_u32 {v(VXA)}, {v(VXA)}, v74')
    A(f'v_lshlrev_b32 {v(VL16)}, 4, v79')
    A(f's_mul_i32 {s(S_TMP)}, {w}, 4608')
    A(f'v_add_u32 {v(VPA)}, {s(S_TMP)}, {v(VL16)}')
    A(f'v_lshrrev_b32 {v(VNW)}, 1, v73'); A(f'v_lshlrev_b32 {v(VNW)}, 9, {v(VNW)}')
    A(f'v_and_b32 v74, 1, v73'); A(f'v_lshlrev_b32 v74, 3, v74'); A(f'v_add_u32 {v(VNW)}, {v(VNW)}, v74')
    A(f'v_lshlrev_b32 v74, 7, v72'); A(f'v_add_u32 {v(VNW)}, {v(VNW)}, v74')
    A(f'v_lshlrev_b32 v74, 4, v76'); A(f'v_add_u32 {v(VNW)}, {v(VNW)}, v74')
    A(f'v_add_u32 {v(VNW)}, {L_NO}, {v(VNW)}')
    A(f's_and_b32 {s(S_TMP)}, {s(S_IDX)}, 1')
    A(f's_lshr_b32 {s(S_TMP+1)}, {s(S_IDX)}, 1')
    A(f's_lshl_b32 {s(S_TMP+2)}, {s(S_TMP)}, 7')
    A(f'v_add_u32 {v(VNG)}, {s(S_TMP+2)}, {v(VNG)}')
    A(f'v_lshlrev_b32 {v(VST)}, 3, v76')
    A(f'v_mov_b32 {v(VZERO)}, 0')
    A(f'v_mov_b32 {v(HI)}, 0xffff0000')
    A(f's_mul_i32 {s(S_XS)}, {s(S_IDX)}, {8*1152}')
    A(f's_mov_b32 {s(S_XD)}, {s(S_XS)}')
    A(f's_mul_i32 {s(S_PS)}, {s(S_IDX)}, 18432')
    A(f's_mul_i32 {s(S_NS)}, {s(S_TMP+1)}, 18432')
    XB = 2048*1152
    if not xgate:
        A(f's_load_dwordx2 {s(S_PTR,2)}, {s(S_KA,2)}, {KA_AX}'); A('s_waitcnt lgkmcnt(0)')
        srd_from_ptr(A, SX, S_PTR, XB)
    else:
        for i in range(4): A(f's_mov_b32 {s(SX+i)}, {s(S_WS+i)}')
        A(f's_add_u32 {s(S_XS)}, {s(S_XS)}, {hex(WS_X2 if kind == "RA" else WS_X1[l])}')
    if final:
        A(f's_load_dwordx2 {s(S_PTR,2)}, {s(S_KA,2)}, {KA_OUT}'); A('s_waitcnt lgkmcnt(0)')
        srd_from_ptr(A, SO, S_PTR, XB)
    else:
        for i in range(4): A(f's_mov_b32 {s(SO+i)}, {s(S_WS+i)}')
        if kind != 'R0': A(f's_add_u32 {s(S_XD)}, {s(S_XD)}, {hex(WS_X1[l] if kind == "RA" else WS_X2)}')
    if nparts:
        A(f's_add_u32 {s(S_PS)}, {s(S_PS)}, {hex(WS_PA[l] if kind == "RA" else WS_PB[l])}')
        if kind == 'RA': flagaddr(A, VPOLL, R_A3[l], 12)
        else: flagaddr(A, VPOLL, R_B3[l], 48)
        A(f's_mov_b32 {s(S_PM)}, -1'); A(f's_mov_b32 {s(S_PM+1)}, 0xffff')
        if xgate:
            A(f'v_and_b32 v72, 15, v79')
            flagaddr(A, VP2, R_RB[0] if kind == 'RA' else R_RA[l], 16, vlane=72)
            if kind == 'RA': A(f'v_xor_b32 {v(VP2)}, 512, {v(VP2)}')
            A(f'v_cndmask_b32 {v(VPOLL)}, {v(VP2)}, {v(VPOLL)}, {s(S_PM,2)}')
            A(f'v_mov_b32 {v(VTOG)}, {512 if kind == "RA" else 0}')
            A(f'v_cndmask_b32 {v(VTOG)}, {v(VTOG)}, 0, {s(S_PM,2)}')
    if not final:
        A(f's_add_u32 {s(S_NS)}, {s(S_NS)}, {hex({"R0": WS_XNA[0], "RA": WS_XNB[l], "RB": WS_XNA[1]}[kind])}')
    own_flag(A)
    A(f's_mov_b32 {s(S_EXLO)}, -1'); A(f's_mov_b32 {s(S_EXLO+1)}, 0')
    if ALT == 2:
        for (r, st) in ((S_XS, SEG_X), (S_XD, SEG_X), (S_NS, SEG_XN)):
            A(f's_mul_i32 {s(S_TMP)}, {s(S_PAR)}, {st}'); A(f's_add_u32 {s(r)}, {s(r)}, {s(S_TMP)}')
    S_C0 = 60
    A(f's_lshl_b32 {s(S_C0)}, {w}, 10')
    A(f's_lshl_b32 {s(S_C0+1)}, {w}, 11')
    VRD = 111
    A(f'v_add_u32 {v(VRD)}, {s(S_C0)}, {v(VL16)}')
    XR = 20; XP = 30; PR = 128
    def masked(i, f):
        if i == 4: A(f's_mov_b64 exec, {s(S_EXLO,2)}')
        f()
        if i == 4: A('s_mov_b64 exec, -1')
    def xloads():
        for i in range(5):
            masked(i, lambda: A(f'buffer_load_dwordx2 {v(XP+2*i,2)}, {v(VXA)}, {s(SX,4)}, {s(S_XS)} offen offset:{i*64}'))
        A(f's_add_u32 {s(S_XS)}, {s(S_XS)}, {ALT*SEG_X}')
    def set_targets():
        A(f's_add_u32 {s(S_TGT)}, {s(S_SEG)}, 1')
        if xgate:
            A(f's_add_u32 {s(S_TMP+1)}, {s(S_SEG)}, {ALT+1}')
            A(f'v_mov_b32 {v(VTG)}, {s(S_TGT)}')
            A(f'v_mov_b32 {v(VT)}, {s(S_TMP+1)}')
            A(f'v_cndmask_b32 {v(VTG)}, {v(VT)}, {v(VTG)}, {s(S_PM,2)}')
    def pcheck():
        if cfg.get('NOWAIT'): return
        ok = A.newlabel('rok'); re_ = A.newlabel('rre')
        def test():
            if xgate:
                A(f'v_cmp_gt_u32 vcc, {v(VTG)}, {v(VFLAG)}')
                A(f's_and_b64 {s(58,2)}, vcc, {s(S_PM,2)}')
                A(f's_cbranch_scc0 {ok}')
            else:
                A(f'v_cmp_gt_u32 vcc, {s(S_TGT)}, {v(VFLAG)}')
                A(f's_cbranch_vccz {ok}')
        test()
        A(f's_mov_b32 {s(S_SPIN)}, {SPIN_LIMIT}')
        A.label(re_)
        A(f'buffer_load_dword {v(VFLAG)}, {v(VPOLL)}, {s(S_WS,4)}, 0 offen sc1')
        A('s_waitcnt vmcnt(0)')
        test()
        spin_check(A, re_, fail)
        A.label(ok)
    cfg['barrier_wait'](A)
    A(f's_mov_b32 {s(S_SEG)}, {s(S_PAR)}')
    A(f's_mov_b32 {s(S_HAVE)}, 0')
    if not xgate:
        xloads(); A(f's_mov_b32 {s(S_HAVE)}, 1')
    set_targets()
    if nparts:
        poll_issue(A, cfg, VPOLL, VFLAG)
        A('s_waitcnt vmcnt(0)')
        pcheck()
    else:
        A('s_waitcnt vmcnt(0)')
    loop = A.newlabel('rloop')
    A.label(loop); A.flush()
    fst(A, cfg, 1, S_SEG)
    if xgate:
        hv = A.newlabel('rhave')
        A(f's_cmp_lg_u32 {s(S_HAVE)}, 0')
        A(f's_cbranch_scc1 {hv}')
        if not cfg.get('NOWAIT'):
            re_ = A.newlabel('rxre'); ok = A.newlabel('rxok')
            A(f'v_xor_b32 {v(VP2)}, {v(VTOG)}, {v(VPOLL)}')
            A(f's_mov_b32 {s(S_SPIN)}, {SPIN_LIMIT}')
            A.label(re_)
            A(f'buffer_load_dword {v(VF2)}, {v(VP2)}, {s(S_WS,4)}, 0 offen sc1')
            A('s_waitcnt vmcnt(0)')
            A(f'v_cmp_gt_u32 vcc, {s(S_TGT)}, {v(VF2)}')
            A(f's_andn2_b64 {s(58,2)}, vcc, {s(S_PM,2)}')
            A(f's_cbranch_scc0 {ok}')
            spin_check(A, re_, fail)
            A.label(ok)
        xloads()
        A('s_waitcnt vmcnt(0)')
        A.label(hv); A.flush()
    for i in range(10): A(f'v_mov_b32 {v(XR+i)}, {v(XP+i)}')
    PRING = ring('PA' if kind == 'RA' else 'PB') if nparts else 64
    if nparts: ring_off(A, S_C0+3, S_PS, s(S_SEG), PRING, SEG_PA if kind == 'RA' else SEG_PB)
    psc = ' sc1' if PRING < 64 else ''
    for p in range(nparts):
        A(f's_add_u32 {s(S_TMP)}, {s(S_C0+3)}, {p*73728}')
        A(f's_add_u32 {s(S_TMP+1)}, {s(S_TMP)}, 4096')
        for i in range(5):
            masked(i, lambda: A(f'buffer_load_dwordx4 {v(PR+p*20+i*4,4)}, {v(VPA)}, {s(S_WS,4)}, {s(S_TMP+1 if i == 4 else S_TMP)} offen offset:{(i%4)*1024}{psc}'))
    nopf = A.newlabel('rnopf'); pfd = A.newlabel('rpfd')
    A(f's_mov_b32 {s(S_HAVE)}, 0')
    A(f's_cmp_ge_u32 {s(S_SEG)}, {64 - ALT}')
    A(f's_cbranch_scc1 {nopf}')
    if xgate and not cfg.get('NOWAIT'):
        A(f'v_cmp_gt_u32 vcc, {v(VTG)}, {v(VFLAG)}')
        A(f's_andn2_b64 {s(58,2)}, vcc, {s(S_PM,2)}')
        A(f's_cbranch_scc1 {nopf}')
    xloads()
    A(f's_mov_b32 {s(S_HAVE)}, 1')
    if nparts: A('s_waitcnt vmcnt(5)')
    A(f's_branch {pfd}')
    A.label(nopf); A.flush()
    if nparts: A('s_waitcnt vmcnt(0)')
    A.label(pfd); A.flush()
    fst(A, cfg, 2, S_SEG)
    if final: A('s_barrier')
    for i in range(5):
        X = 4*i
        def body():
            A(f'v_lshlrev_b32 {v(X)}, 16, {v(XR+2*i)}')
            A(f'v_and_b32 {v(X+1)}, {v(HI)}, {v(XR+2*i)}')
            A(f'v_lshlrev_b32 {v(X+2)}, 16, {v(XR+2*i+1)}')
            A(f'v_and_b32 {v(X+3)}, {v(HI)}, {v(XR+2*i+1)}')
            if nparts:
                y = PR + i*4
                if nparts == 4:
                    for (d, o) in ((0, 1), (2, 3), (0, 2)):
                        for hh in (0, 2):
                            A(f'v_pk_add_f32 {v(y+d*20+hh,2)}, {v(y+d*20+hh,2)}, {v(y+o*20+hh,2)}')
                cvt(A, y, y, y+1); cvt(A, y+1, y+2, y+3)
                A(f'v_and_b32 {v(y+2)}, {v(HI)}, {v(y)}')
                A(f'v_and_b32 {v(y+3)}, {v(HI)}, {v(y+1)}')
                A(f'v_lshlrev_b32 {v(y)}, 16, {v(y)}')
                A(f'v_lshlrev_b32 {v(y+1)}, 16, {v(y+1)}')
                A(f'v_add_f32 {v(X)}, {v(X)}, {v(y)}')
                A(f'v_add_f32 {v(X+1)}, {v(X+1)}, {v(y+2)}')
                A(f'v_add_f32 {v(X+2)}, {v(X+2)}, {v(y+1)}')
                A(f'v_add_f32 {v(X+3)}, {v(X+3)}, {v(y+3)}')
                cvt(A, XR+2*i, X, X+1); cvt(A, XR+2*i+1, X+2, X+3)
                A(f'ds_write_b64 {v(VXA)}, {v(XR+2*i,2)} offset:{L_XO + i*64}')
                if not final:
                    A(f'v_lshlrev_b32 {v(X)}, 16, {v(XR+2*i)}')
                    A(f'v_and_b32 {v(X+1)}, {v(HI)}, {v(XR+2*i)}')
                    A(f'v_lshlrev_b32 {v(X+2)}, 16, {v(XR+2*i+1)}')
                    A(f'v_and_b32 {v(X+3)}, {v(HI)}, {v(XR+2*i+1)}')
        masked(i, body)
    OC = 60
    def chunk_out(lbase, extra_wave, gv, gsrd, gs, gmul, scope):
        ex = A.newlabel('rex'); ex2 = A.newlabel('rex2')
        A(f'ds_read_b128 {v(OC,4)}, {v(VRD)} offset:{lbase}')
        A(f'ds_read_b128 {v(OC+4,4)}, {v(VRD)} offset:{lbase + 4096}')
        A(f's_add_u32 {s(S_TMP)}, {gs}, {s(S_C0 if gmul == 1024 else S_C0+1)}')
        A(f's_add_u32 {s(S_TMP+1)}, {s(S_TMP)}, {4*gmul}')
        A(f's_cmp_lg_u32 {w}, {extra_wave}')
        A(f's_cbranch_scc1 {ex}')
        A(f'ds_read_b128 {v(OC+8,4)}, {v(VL16)} offset:{lbase + 8192}')
        A(f's_add_u32 {s(S_TMP+2)}, {gs}, {8*gmul}')
        A('s_waitcnt lgkmcnt(0)')
        A(f'buffer_store_dwordx4 {v(OC+8,4)}, {v(gv)}, {s(gsrd,4)}, {s(S_TMP+2)} offen' + scope)
        A.label(ex); A.flush()
        A('s_waitcnt lgkmcnt(0)')
        A(f'buffer_store_dwordx4 {v(OC,4)}, {v(gv)}, {s(gsrd,4)}, {s(S_TMP)} offen' + scope)
        A(f'buffer_store_dwordx4 {v(OC+4,4)}, {v(gv)}, {s(gsrd,4)}, {s(S_TMP+1)} offen' + scope)
    if final:
        A('s_waitcnt lgkmcnt(0)')
        A('s_barrier')
        chunk_out(L_XO, 0, VL16, SO, s(S_XD), 1024, '')
    else:
        SM, M2, T1 = 40, 41, 42
        A(f'v_pk_add_f32 {v(44,2)}, {v(0,2)}, {v(2,2)}')
        for i in range(1, 4):
            A(f'v_pk_add_f32 {v(44,2)}, {v(44,2)}, {v(4*i,2)}')
            A(f'v_pk_add_f32 {v(44,2)}, {v(44,2)}, {v(4*i+2,2)}')
        def b4():
            A(f'v_pk_add_f32 {v(44,2)}, {v(44,2)}, {v(16,2)}')
            A(f'v_pk_add_f32 {v(44,2)}, {v(44,2)}, {v(18,2)}')
        masked(4, b4)
        A(f'v_add_f32 {v(SM)}, v44, v45')
        xlane_sum(A, SM, T1)
        A(f'v_mul_f32 {v(SM)}, {hex(f32(1.0/144))}, {v(SM)}')
        A(f'v_mov_b32 {v(M2)}, 0')
        for i in range(5):
            def b5():
                for r in range(4):
                    A(f'v_sub_f32 {v(46)}, {v(4*i+r)}, {v(SM)}')
                    A(f'v_fmac_f32 {v(M2)}, v46, v46')
            masked(i, b5)
        xlane_sum(A, M2, T1)
        A(f'v_add_u32 {v(T1)}, {s(S_C0)}, {v(VST)}') if False else None
        A(f's_lshl_b32 {s(S_TMP)}, {w}, 6')
        A(f'v_add_u32 {v(T1)}, {s(S_TMP)}, {v(VST)}')
        A('s_mov_b64 exec, 0xff')
        A(f'ds_write_b64 {v(T1)}, {v(SM,2)} offset:{L_ST}')
        A('s_mov_b64 exec, -1')
        A('s_waitcnt lgkmcnt(0)')
        fst(A, cfg, 3, S_SEG)
        A('s_barrier')
        fst(A, cfg, 4, S_SEG)
        for ww in range(4):
            A(f'ds_read_b64 {v(48+2*ww,2)}, {v(VST)} offset:{L_ST + ww*64}')
        if nparts: chunk_out(L_XO, 0, VL16, SO, s(S_XD), 1024, ' sc1')
        else: A('s_waitcnt lgkmcnt(0)')
        A('v_add_f32 v56, v48, v50'); A('v_add_f32 v57, v52, v54'); A('v_add_f32 v56, v56, v57')
        A('v_mul_f32 v56, 0.25, v56')
        A('v_add_f32 v57, v49, v51'); A('v_add_f32 v58, v53, v55'); A('v_add_f32 v57, v57, v58')
        A('v_mov_b32 v58, 0')
        for ww in range(4):
            A(f'v_sub_f32 v59, {v(48+2*ww)}, v56')
            A(f'v_fmac_f32 v58, v59, v59')
        A(f'v_fmac_f32 v57, {hex(f32(144.0))}, v58')
        A(f'v_mov_b32 v59, {hex(f32(1e-5))}')
        A(f'v_fmac_f32 v59, {hex(f32(1.0/576))}, v57')
        A('v_rsq_f32 v59, v59')
        for i in range(5):
            def b6():
                X = 4*i
                for r in range(4):
                    A(f'v_sub_f32 {v(X+r)}, {v(X+r)}, v56')
                for r in range(4):
                    A(f'v_mul_f32 {v(X+r)}, {v(X+r)}, v59')
                cvt(A, X, X, X+1); cvt(A, X+1, X+2, X+3)
                A(f'ds_write_b64 {v(VNW)}, {v(X,2)} offset:{i*512}')
            masked(i, b6)
        A('s_waitcnt lgkmcnt(0)')
        A('s_barrier')
        chunk_out(L_NO, 1, VNG, S_WS, s(S_NS), 2048, ' sc1')
    fst(A, cfg, 5, S_SEG)
    A(f's_add_u32 {s(S_XD)}, {s(S_XD)}, {ALT*SEG_X}')
    A(f's_add_u32 {s(S_NS)}, {s(S_NS)}, {ALT*SEG_XN}')
    A(f's_add_u32 {s(S_C0+2)}, {s(S_SEG)}, 1')
    A(f's_add_u32 {s(S_SEG)}, {s(S_SEG)}, {ALT}')
    if xgate: A(f'v_xor_b32 {v(VPOLL)}, {v(VTOG)}, {v(VPOLL)}')
    if nparts: poll_issue(A, cfg, VPOLL, VFLAG)
    set_targets()
    A('s_waitcnt vmcnt(0)')
    fst(A, cfg, 6, S_SEG, 32+ALT)
    publish(A, s(S_C0+2), VT, VZERO)
    A(f's_cmp_ge_u32 {s(S_SEG)}, 64')
    A(f's_cbranch_scc1 {done}')
    if nparts: pcheck()
    A(f's_branch {loop}')

def causal_masks(A, sbase, vt=72):
    A(f'v_lshlrev_b32 {v(vt)}, 2, v77')
    for r in range(4):
        A(f'v_add_u32 {v(vt+1)}, {r}, {v(vt)}')
        A(f'v_cmp_gt_u32 {s(sbase+2*r,2)}, {v(vt+1)}, v78')

def role_attb(A, cfg, fail, done):
    set_scope(True)
    w = s(S_WAVE)
    lane_setup(A)
    S_HH = S_A
    A(f's_lshl_b32 {s(S_HH)}, {s(S_IDX)}, 2')
    A(f's_add_u32 {s(S_HH)}, {s(S_HH)}, {w}')
    SMK = 46
    causal_masks(A, SMK)
    VL16, VP1, VP2, VFLAG, VZERO, VT, VSC, VNEG, VL8 = 220, 221, 222, 223, 224, 225, 226, 227, 228
    NEWKV = not cfg.get('OLDCHAIN')
    A(f'v_lshlrev_b32 {v(VL16)}, 4, v79')
    A(f'v_lshlrev_b32 {v(VL8)}, 3, v79')
    A(f'v_mov_b32 {v(VZERO)}, 0')
    A(f'v_mov_b32 {v(VSC)}, {hex(f32((128 ** -0.5) * 1.4426950408889634))}')
    A(f'v_mov_b32 {v(VNEG)}, {hex(BIGNEG)}')
    sel_layer(A, S_TMP+2, R_B1); A(f's_add_u32 {s(S_TMP+2)}, {s(S_TMP+2)}, {s(S_HH)}')
    flagaddr(A, VP1, s(S_TMP+2), 4)
    sel_layer(A, S_TMP+2, R_CHAIN); A(f's_add_u32 {s(S_TMP+2)}, {s(S_TMP+2)}, {s(S_HH)}')
    flagaddr(A, VP2, s(S_TMP+2), 4)
    VPD, VFD = 212, 213
    sel_layer(A, S_TMP+2, R_B3)
    A(f's_lshr_b32 {s(S_TMP)}, {s(S_IDX)}, 1'); A(f's_mul_i32 {s(S_TMP)}, {s(S_TMP)}, 3')
    A(f's_add_u32 {s(S_TMP+2)}, {s(S_TMP+2)}, {s(S_TMP)}')
    flagaddr(A, VPD, s(S_TMP+2), 12)
    own_flag(A)
    ROB = ring('OB')
    if ROB < 64:
        sel_layer(A, 60, WS_OB); sel_layer(A, 61, WS_PB)
        A(f's_lshl_b32 {s(62)}, {s(S_IDX)}, 2'); A(f's_add_u32 {s(62)}, {s(62)}, {w}')
    S_QX, S_KV, S_OB = S_B, S_C, S_D
    A(f's_mul_i32 {s(S_QX)}, {s(S_L)}, {QKVX_STRIDE}')
    A(f's_mul_i32 {s(S_TMP)}, {s(S_HH)}, 24576')
    A(f's_add_u32 {s(S_QX)}, {s(S_QX)}, {s(S_TMP)}')
    A(f's_add_u32 {s(S_QX)}, {s(S_QX)}, {WS_QKVX}')
    A(f's_mul_i32 {s(S_KV)}, {s(S_L)}, {KVM_STRIDE}')
    A(f's_lshl_b32 {s(S_TMP)}, {s(S_HH)}, 13')
    A(f's_add_u32 {s(S_KV)}, {s(S_KV)}, {s(S_TMP)}')
    A(f's_add_u32 {s(S_KV)}, {s(S_KV)}, {WS_KVM}')
    sel_layer(A, S_OB, WS_OB)
    A(f's_lshr_b32 {s(S_TMP)}, {s(S_HH)}, 3'); A(f's_lshl_b32 {s(S_TMP)}, {s(S_TMP)}, 16')
    A(f's_add_u32 {s(S_OB)}, {s(S_OB)}, {s(S_TMP)}')
    A(f's_and_b32 {s(S_TMP)}, {s(S_HH)}, 7'); A(f's_lshl_b32 {s(S_TMP)}, {s(S_TMP)}, 12')
    A(f's_add_u32 {s(S_OB)}, {s(S_OB)}, {s(S_TMP)}')
    cfg['barrier_wait'](A)
    if ROB < 64 and not cfg.get('SLOWV'): pretouch(A, [(60, ROB*SEG_OB), (61, ring('PB')*SEG_PB)], 32, 62, VL16, 0)
    A(f's_mov_b32 {s(S_SEG)}, 0')
    Q = lambda tt, kk: tt*16 + kk*4
    KX = lambda kt, kk: 32 + kt*16 + kk*4
    VX = lambda et: 64 + et*4
    KM = lambda kk: 96 + kk*4
    VM = lambda et: 112 + et*2
    S00, S01, S11, SM0, SM1 = 128, 132, 136, 140, 144
    O = lambda et, tt: 148 + ((tt*4 + et//2)*2 + (et & 1))*4
    XT = 0
    def qkvx_loads():
        for blk in range(6):
            A(f's_add_u32 {s(S_TMP)}, {s(S_QX)}, {blk*4096}')
            for j in range(4):
                A(f'buffer_load_dwordx4 {v((blk*4+j)*4,4)}, {v(VL16)}, {s(S_WS,4)}, {s(S_TMP)} offen offset:{j*1024}' + (' nt' if cfg.get('NTQ') else ''))
        A(f's_add_u32 {s(S_QX)}, {s(S_QX)}, {32*24576}')
    DP = 1 if (ROB < 64 and not cfg.get('NOWAIT')) else 0
    def kvm_loads():
        if DP: poll_issue(A, cfg, VPD, VFD)
        A(f's_add_u32 {s(S_TMP)}, {s(S_KV)}, 4096')
        for j in range(4): A(f'buffer_load_dwordx4 {v(KM(j),4)}, {v(VL16)}, {s(S_WS,4)}, {s(S_KV)} offen offset:{j*1024}')
        if NEWKV:
            for j in range(4): A(f'buffer_load_dwordx2 {v(112+2*j,2)}, {v(VL8)}, {s(S_WS,4)}, {s(S_TMP)} offen offset:{j*512}')
        else:
            for j in range(4): A(f'buffer_load_dwordx4 {v(112+4*j,4)}, {v(VL16)}, {s(S_WS,4)}, {s(S_TMP)} offen offset:{j*1024}')
        A(f's_add_u32 {s(S_KV)}, {s(S_KV)}, {32*8192}')
    qsc = ' nt' if cfg.get('NTQ') else ''
    def sx_mfma():
        for kk in range(4):
            for (acc, kt, tt) in ((S00, 0, 0), (S01, 0, 1), (S11, 1, 1)):
                A(f'{MF} {v(acc,4)}, {v(KX(kt,kk),4)}, {v(Q(tt,kk),4)}, {"0" if kk == 0 else v(acc,4)}')
    A(f's_mov_b32 {s(S_TGT)}, 1')
    poll_block(A, cfg, VP1, s(S_TGT), VFLAG, fail)
    qkvx_loads()
    A('s_waitcnt vmcnt(8)')
    slow = A.newlabel('bslow'); join = A.newlabel('bjoin'); loop = A.newlabel('bloop')
    A(f's_branch {slow}_2')
    A.label(loop); A.flush()
    fst(A, cfg, 0, S_SEG)
    if not cfg.get('NOWAIT'):
        A(f'v_cmp_gt_u32 vcc, {s(S_TGT)}, {v(VFLAG)}')
        A(f's_cbranch_vccnz {slow}')
    kvm_loads()
    A(f's_waitcnt vmcnt({8 + 8 + 1 + XT + DP})')
    sx_mfma()
    A('s_nop 7')
    A(f's_branch {join}')
    A.label(slow); A.flush()
    A(f's_waitcnt vmcnt({8 + 1 + XT})')
    A.label(slow + '_2'); A.flush()
    sx_mfma()
    poll_block(A, cfg, VP2, s(S_TGT), VFLAG, fail)
    kvm_loads()
    A.label(join); A.flush()
    fst(A, cfg, 3, S_SEG)
    for r in range(4):
        A(f'v_cndmask_b32 {v(S00+r)}, {v(S00+r)}, {v(VNEG)}, {s(SMK+2*r,2)}')
        A(f'v_cndmask_b32 {v(S11+r)}, {v(S11+r)}, {v(VNEG)}, {s(SMK+2*r,2)}')
    A('s_waitcnt vmcnt(4)')
    fst(A, cfg, 4, S_SEG)
    for kk in range(4):
        for (acc, tt) in ((SM0, 0), (SM1, 1)):
            A(f'{MF} {v(acc,4)}, {v(KM(kk),4)}, {v(Q(tt,kk),4)}, {"0" if kk == 0 else v(acc,4)}')
    MX = [230, 232]; T = 234; NM = [236, 237]; SUM = [238, 239]
    xs = [[S00], [S01, S11]]; ms = [SM0, SM1]
    NM_ = 2 if NEWKV else 4
    assert NEWKV
    allv = lambda tt: [x+r for x in xs[tt] for r in range(4)] + [ms[tt]+r for r in range(NM_)]
    for tt in range(2):
        vals = allv(tt)
        mx = MX[tt]
        A(f'v_max3_f32 {v(mx)}, {v(vals[0])}, {v(vals[1])}, {v(vals[2])}')
        rest = vals[3:]
        while len(rest) >= 2:
            A(f'v_max3_f32 {v(mx)}, {v(mx)}, {v(rest[0])}, {v(rest[1])}'); rest = rest[2:]
        if rest: A(f'v_max_f32 {v(mx)}, {v(mx)}, {v(rest[0])}')
    for tt in range(2):
        xlane_sum(A, MX[tt], T + tt, op='v_max_f32', ror8=False)
    for tt in range(2):
        A(f'v_mul_f32 {v(NM[tt])}, {hex(f32(-(128 ** -0.5) * 1.4426950408889634))}, {v(MX[tt])}')
    for tt in range(2):
        for x in allv(tt): A(f'v_fma_f32 {v(x)}, {v(x)}, {v(VSC)}, {v(NM[tt])}')
    for tt in range(2):
        for x in allv(tt): A(f'v_exp_f32 {v(x)}, {v(x)}')
    P0, P1, PM0, PM1 = 240, 244, 248, 252
    cvt(A, P0, S00, S00+1); cvt(A, P0+1, S00+2, S00+3)
    A(f'v_mov_b32 {v(P0+2)}, 0'); A(f'v_mov_b32 {v(P0+3)}, 0')
    cvt(A, P1, S01, S01+1); cvt(A, P1+1, S01+2, S01+3); cvt(A, P1+2, S11, S11+1); cvt(A, P1+3, S11+2, S11+3)
    for (pm, sm) in ((PM0, SM0), (PM1, SM1)):
        cvt(A, pm, sm, sm+1); A(f'v_mov_b32 {v(pm+1)}, 0'); A(f'v_mov_b32 {v(pm+2)}, 0'); A(f'v_mov_b32 {v(pm+3)}, {v(pm)}')
    for et in range(8):
        for tt in range(2):
            A(f'{MF} {v(O(et,tt),4)}, {v(VX(et),4)}, {v([P0,P1][tt],4)}, 0')
    for tt in range(2):
        vals = allv(tt)
        A(f'v_add_f32 {v(SUM[tt])}, {v(vals[0])}, {v(vals[1])}')
        for x in vals[2:]: A(f'v_add_f32 {v(SUM[tt])}, {v(SUM[tt])}, {v(x)}')
    A('s_waitcnt vmcnt(0)')
    for et in range(8):
        for tt in range(2):
            A(f'{MF16} {v(O(et,tt),4)}, {v(112 + 2*(et>>1),2)}, {v([PM0,PM1][tt] + 2*(et&1),2)}, {v(O(et,tt),4)}')
    for tt in range(2):
        xlane_sum(A, SUM[tt], T + tt, ror8=False)
    for tt in range(2): A(f'v_rcp_f32 {v(SUM[tt])}, {v(SUM[tt])}')
    if ROB < 64: down_check(A, cfg, VPD, VFD, s(S_SEG), ROB-1, 60, fail)
    jitter(A)
    ring_off(A, 61, S_OB, s(S_SEG), ROB, SEG_OB)
    for tt in range(2):
        A(f's_add_u32 {s(S_TMP)}, {s(61)}, {tt*32768}')
        for kk in range(4):
            b = O(2*kk, tt)
            for r in range(8): A(f'v_mul_f32 {v(b+r)}, {v(b+r)}, {v(SUM[tt])}')
            cvt(A, b, b, b+1); cvt(A, b+1, b+2, b+3); cvt(A, b+2, b+4, b+5); cvt(A, b+3, b+6, b+7)
            A(f'buffer_store_dwordx4 {v(b,4)}, {v(VL16)}, {s(S_WS,4)}, {s(S_TMP)} offen offset:{kk*1024}' + SCOPE[0])
    fst(A, cfg, 5, S_SEG)
    A(f's_add_u32 {s(S_SEG)}, {s(S_SEG)}, 1')
    last = A.newlabel('blast')
    A(f's_cmp_ge_u32 {s(S_SEG)}, 64')
    A(f's_cbranch_scc1 {last}')
    poll_issue(A, cfg, VP2, VFLAG)
    qkvx_loads()
    A('s_waitcnt vmcnt(24)')
    fst(A, cfg, 6, S_SEG, 33)
    publish(A, s(S_SEG), VT, VZERO)
    A(f's_add_u32 {s(S_TGT)}, {s(S_SEG)}, 1')
    A(f's_branch {loop}')
    A.label(last); A.flush()
    A('s_waitcnt vmcnt(0)')
    publish(A, s(S_SEG), VT, VZERO)
    A(f's_branch {done}')

NSLOT = 10
def role_atta(A, cfg, fail, done):
    set_scope(True)
    w = s(S_WAVE)
    lane_setup(A)
    S_HH, S_TT, S_HD = S_A, S_B, S_C
    A(f's_lshr_b32 {s(S_HH)}, {w}, 1')
    A(f's_and_b32 {s(S_TT)}, {w}, 1')
    A(f's_lshl_b32 {s(S_HD)}, {s(S_IDX)}, 1')
    A(f's_add_u32 {s(S_HD)}, {s(S_HD)}, {s(S_HH)}')
    SMK = 46
    causal_masks(A, SMK)
    VKB, VVB, VL8, VL16, VPOLL, VFLAG, VZERO, VT, VNEG, MK2, MK3, VO1, VO2 = 150, 151, 152, 153, 154, 155, 156, 157, 158, 159, 160, 161, 162
    SCP, NMP = 164, 166
    A(f'v_lshlrev_b32 {v(VL8)}, 3, v79')
    A(f'v_lshlrev_b32 {v(VL16)}, 4, v79')
    A(f's_lshl_b32 {s(S_TMP)}, {s(S_HH)}, 12')
    A(f'v_add_u32 {v(VKB)}, {s(S_TMP)}, {v(VL8)}')
    A(f'v_add_u32 {v(VVB)}, {s(S_TMP)}, {v(VL16)}')
    A(f'v_mov_b32 {v(VZERO)}, 0')
    A(f'v_mov_b32 {v(VNEG)}, {hex(BIGNEG)}')
    SC = (18 ** -0.5) * 1.4426950408889634
    A(f'v_mov_b32 {v(SCP)}, {hex(f32(SC))}'); A(f'v_mov_b32 {v(SCP+1)}, {hex(f32(SC))}')
    for i in range(4): A(f'v_mov_b32 {v(128+i)}, 0x3f803f80')
    A(f's_and_b32 {s(S_TMP)}, {s(S_IDX)}, 3')
    A(f'v_cmp_eq_u32 vcc, {s(S_TMP)}, v77')
    A(f's_mov_b64 {s(54,2)}, vcc')
    A(f'v_cndmask_b32 {v(MK2)}, 0, -1, vcc')
    A(f'v_mov_b32 {v(MK3)}, {v(MK2)}')
    A(f's_cmp_eq_u32 {s(S_HH)}, 0')
    A(f's_cselect_b32 {s(S_TMP)}, -1, 0')
    A(f'v_and_b32 {v(MK2)}, {s(S_TMP)}, {v(MK2)}')
    A(f's_not_b32 {s(S_TMP)}, {s(S_TMP)}')
    A(f'v_and_b32 {v(MK3)}, {s(S_TMP)}, {v(MK3)}')
    A(f's_cselect_b64 {s(56,2)}, 0, -1') if False else None
    A(f's_cmp_eq_u32 {s(S_HH)}, 0')
    A(f's_cselect_b64 {s(56,2)}, 0, -1')
    A(f's_lshl_b32 {s(S_TMP)}, {s(S_HH)}, 3')
    A(f'v_add_u32 {v(VO1)}, {s(S_TMP)}, {v(VL16)}')
    A(f's_bfe_u32 {s(S_TMP)}, {s(S_HD)}, 0x10003')
    A(f's_lshl_b32 {s(S_TMP)}, {s(S_TMP)}, 3')
    A(f's_lshl_b32 {s(S_TMP+1)}, {s(S_HH)}, 2')
    A(f's_add_u32 {s(S_TMP)}, {s(S_TMP)}, {s(S_TMP+1)}')
    A(f'v_add_u32 {v(VO2)}, {s(S_TMP)}, {v(VL16)}')
    S_O1, S_O2, S_D1, S_D2, S_Q1, S_Q2, S_LD = 58, 59, 60, 61, 64, 65, 66
    sel_layer(A, S_O1, WS_OA)
    A(f's_mul_i32 {s(S_TMP)}, {s(S_TT)}, 18432')
    A(f's_add_u32 {s(S_O1)}, {s(S_O1)}, {s(S_TMP)}')
    A(f's_lshr_b32 {s(S_TMP)}, {s(S_HD)}, 4'); A(f's_add_u32 {s(S_TMP)}, {s(S_TMP)}, 16'); A(f's_lshl_b32 {s(S_TMP)}, {s(S_TMP)}, 10')
    A(f's_add_u32 {s(S_O2)}, {s(S_O1)}, {s(S_TMP)}')
    A(f's_lshr_b32 {s(S_TMP)}, {s(S_HD)}, 1'); A(f's_lshl_b32 {s(S_TMP)}, {s(S_TMP)}, 10')
    A(f's_add_u32 {s(S_O1)}, {s(S_O1)}, {s(S_TMP)}')
    sel_layer(A, S_Q1, WS_QKVA)
    A(f's_lshl_b32 {s(S_TMP)}, {s(S_HD)}, 10')
    A(f's_lshr_b32 {s(S_TMP+1)}, {s(S_HD)}, 3'); A(f's_add_u32 {s(S_TMP+1)}, {s(S_TMP+1)}, 32'); A(f's_lshl_b32 {s(S_TMP+1)}, {s(S_TMP+1)}, 10')
    A(f's_add_u32 {s(S_Q2)}, {s(S_Q1)}, {s(S_TMP+1)}')
    A(f's_add_u32 {s(S_Q1)}, {s(S_Q1)}, {s(S_TMP)}')
    A(f's_add_u32 {s(S_TMP)}, {s(S_TT)}, 1'); A(f's_mul_i32 {s(S_TMP)}, {s(S_TMP)}, 36864')
    A(f's_add_u32 {s(S_D1)}, {s(S_Q1)}, {s(S_TMP)}')
    A(f's_add_u32 {s(S_D2)}, {s(S_Q2)}, {s(S_TMP)}')
    A(f's_lshl_b32 {s(S_TMP)}, {s(S_TT)}, 9')
    A(f's_add_u32 {s(S_Q1)}, {s(S_Q1)}, {s(S_TMP)}')
    A(f's_add_u32 {s(S_Q2)}, {s(S_Q2)}, {s(S_TMP)}')
    A(f's_lshl_b32 {s(S_LD)}, {s(S_HH)}, 12')
    A(f's_lshl_b32 {s(S_TMP)}, {s(S_TT)}, 11')
    A(f's_add_u32 {s(S_LD)}, {s(S_LD)}, {s(S_TMP)}')
    sel_layer(A, S_TMP+2, R_A1)
    flagaddr(A, VPOLL, s(S_TMP+2), 36)
    VPD, VFD = 172, 173
    sel_layer(A, S_TMP+2, R_A3)
    flagaddr(A, VPD, s(S_TMP+2), 12)
    own_flag(A)
    RQ, RO = ring('QKVA'), ring('OA')
    S_OFQ, S_OFO = 77, 78
    if RQ < 64:
        sel_layer(A, 77, WS_QKVA); sel_layer(A, 78, WS_OA); sel_layer(A, 79, WS_PA)
        A(f's_lshl_b32 {s(67)}, {s(S_IDX)}, 2'); A(f's_add_u32 {s(67)}, {s(67)}, {w}')
    for i in range(4): A(f'v_mov_b32 {v(i)}, 0')
    A('v_lshlrev_b32 v4, 4, v75')
    A('v_add_u32 v5, 0x10000, v4')
    for i in range(NSLOT*8192//4096):
        A(f'ds_write_b128 {"v4" if i < 16 else "v5"}, v[0:3] offset:{(i % 16)*4096}')
    A('s_waitcnt lgkmcnt(0)')
    cfg['barrier_wait'](A)
    if RQ < 64 and not cfg.get('SLOWV'): pretouch(A, [(77, RQ*SEG_QKVA), (78, RO*SEG_XN), (79, ring('PA')*SEG_PA)], 64, 67, VL16, 112)
    A('s_barrier')
    S_SL = 68
    for m in range(9): A(f's_mov_b32 {s(S_SL+m)}, {((2+m) % NSLOT)*8192}')
    A(f's_mov_b32 {s(S_SEG)}, 0')
    l1 = A.newlabel('aatt1')
    A(f's_cmp_eq_u32 {s(S_TT)}, 1')
    A(f's_cbranch_scc1 {l1}')
    KR, VR, QF, OM, OL, OD, ONES = 72, 88, 112, 116, 120, 124, 128
    VK = lambda m: 132 + m
    VV = lambda m: 141 + m
    for tt in range(2):
        if tt: A.label(l1); A.flush()
        loop = A.newlabel('aloop')
        A(f's_add_u32 {s(S_TGT)}, {s(S_SEG)}, 1')
        poll_block(A, cfg, VPOLL, s(S_TGT), VFLAG, fail)
        A.label(loop)
        fst(A, cfg, 1, S_SEG)
        ring_off(A, S_OFQ, None, s(S_SEG), RQ, SEG_QKVA)
        ring_off(A, S_OFO, None, s(S_SEG), RO, SEG_XN)
        asc = ' sc1' if RQ < 64 else ''
        A(f's_add_u32 {s(S_TMP)}, {s(S_LD)}, {s(S_SL+8)}')
        A(f's_mov_b32 m0, {s(S_TMP)}')
        A(f's_add_u32 {s(S_TMP+1)}, {s(S_D1)}, {s(S_OFQ)}')
        A(f'buffer_load_dwordx4 {v(VL16)}, {s(S_WS,4)}, {s(S_TMP+1)} offen{asc} lds')
        A(f's_add_u32 {s(S_TMP)}, {s(S_TMP)}, 1024')
        A(f's_mov_b32 m0, {s(S_TMP)}')
        A(f's_add_u32 {s(S_TMP+1)}, {s(S_D2)}, {s(S_OFQ)}')
        A(f'buffer_load_dwordx4 {v(VL16)}, {s(S_WS,4)}, {s(S_TMP+1)} offen{asc} lds')
        A(f's_add_u32 {s(S_TMP+1)}, {s(S_Q1)}, {s(S_OFQ)}')
        A(f'buffer_load_dwordx2 {v(QF,2)}, {v(VL8)}, {s(S_WS,4)}, {s(S_TMP+1)} offen{asc}')
        A(f's_add_u32 {s(S_TMP+1)}, {s(S_Q2)}, {s(S_OFQ)}')
        A(f'buffer_load_dwordx2 {v(QF+2,2)}, {v(VL8)}, {s(S_WS,4)}, {s(S_TMP+1)} offen{asc}')
        if RO < 64: poll_issue(A, cfg, VPD, VFD)
        for m in range(9):
            A(f'v_add_u32 {v(VK(m))}, {s(S_SL+m)}, {v(VKB)}')
            A(f'v_add_u32 {v(VV(m))}, {s(S_SL+m)}, {v(VVB)}')
        A('s_waitcnt vmcnt(0)')
        fst(A, cfg, 2, S_SEG)
        A(f'v_and_b32 {v(QF+2)}, {v(MK2)}, {v(QF+2)}')
        A(f'v_and_b32 {v(QF+3)}, {v(MK3)}, {v(QF+3)}')
        A('s_barrier')
        fst(A, cfg, 3, S_SEG)
        tiles = list(range(tt, tt+17))
        def kread(i):
            j = tiles[i]
            A(f'ds_read2st64_b64 {v(KR+4*(i%4),4)}, {v(VK(j>>1))} offset0:{j&1} offset1:{2+(j&1)}')
        for i in range(4): kread(i)
        for i in range(17):
            A(f's_waitcnt lgkmcnt({min(3, 16-i)})')
            A(f'{MF} {v(4*tiles[i],4)}, {v(KR+4*(i%4),4)}, {v(QF,4)}, 0')
            if i + 4 < 17: kread(i+4)
        def vread(m):
            A(f'ds_read_b128 {v(VR+8*(m%3),4)}, {v(VV(m))} offset:2048')
            A(f'ds_read_b128 {v(VR+8*(m%3)+4,4)}, {v(VV(m))} offset:3072')
        for m in range(3): vread(m)
        jf, jl = tiles[0], tiles[-1]
        for r in range(4):
            A(f'v_cndmask_b32 {v(4*jf+r)}, {v(VNEG)}, {v(4*jf+r)}, {s(SMK+2*r,2)}')
        for r in range(4):
            A(f'v_cndmask_b32 {v(4*jl+r)}, {v(4*jl+r)}, {v(VNEG)}, {s(SMK+2*r,2)}')
        lok = A.newlabel('aval')
        A(f's_cmp_ge_u32 {s(S_SEG)}, 8')
        A(f's_cbranch_scc1 {lok}')
        for m in range(8):
            A(f's_cmp_ge_u32 {s(S_SEG)}, {8-m}')
            A(f's_cbranch_scc1 {lok}')
            for j in (2*m, 2*m+1):
                if j in tiles:
                    for r in range(4): A(f'v_mov_b32 {v(4*j+r)}, {v(VNEG)}')
        A.label(lok)
        A('s_nop 7')
        fst(A, cfg, 4, S_SEG)
        vals = [4*j+r for j in tiles for r in range(4)]
        MX, MX2, T = 168, 169, 170
        A(f'v_max3_f32 {v(MX)}, {v(vals[0])}, {v(vals[1])}, {v(vals[2])}')
        A(f'v_max3_f32 {v(MX2)}, {v(vals[3])}, {v(vals[4])}, {v(vals[5])}')
        rest = vals[6:]; k = 0
        while len(rest) >= 2:
            d = [MX, MX2][k % 2]; k += 1
            A(f'v_max3_f32 {v(d)}, {v(d)}, {v(rest[0])}, {v(rest[1])}'); rest = rest[2:]
        assert not rest
        A(f'v_max_f32 {v(MX)}, {v(MX)}, {v(MX2)}')
        xlane_sum(A, MX, T, op='v_max_f32', ror8=False)
        A(f'v_mul_f32 {v(NMP)}, {hex(f32(-SC))}, {v(MX)}')
        A(f'v_mov_b32 {v(NMP+1)}, {v(NMP)}')
        for m in range(9):
            for j in (2*m, 2*m+1):
                if j in tiles:
                    for r in (0, 2): A(f'v_pk_fma_f32 {v(4*j+r,2)}, {v(4*j+r,2)}, {v(SCP,2)}, {v(NMP,2)}')
            for j in (2*m, 2*m+1):
                if j in tiles:
                    for r in range(4): A(f'v_exp_f32 {v(4*j+r)}, {v(4*j+r)}')
            b = 8*m
            if 2*m in tiles: cvt(A, b, b, b+1); cvt(A, b+1, b+2, b+3)
            else: A(f'v_mov_b32 {v(b)}, 0'); A(f'v_mov_b32 {v(b+1)}, 0')
            if 2*m+1 in tiles: cvt(A, b+2, b+4, b+5); cvt(A, b+3, b+6, b+7)
            else: A(f'v_mov_b32 {v(b+2)}, 0'); A(f'v_mov_b32 {v(b+3)}, 0')
            A(f's_waitcnt lgkmcnt({2*min(2, 8-m)})')
            c = lambda r: '0' if m == 0 else v(r, 4)
            A(f'{MF} {v(OM,4)}, {v(VR+8*(m%3),4)}, {v(b,4)}, {c(OM)}')
            A(f'{MF} {v(OL,4)}, {v(VR+8*(m%3)+4,4)}, {v(b,4)}, {c(OL)}')
            A(f'{MF} {v(OD,4)}, {v(ONES,4)}, {v(b,4)}, {c(OD)}')
            if m + 3 < 9: vread(m+3)
        A(f'v_rcp_f32 {v(T)}, {v(OD)}')
        for r in range(4):
            A(f'v_mul_f32 {v(OM+r)}, {v(OM+r)}, {v(T)}')
            A(f'v_mul_f32 {v(OL+r)}, {v(OL+r)}, {v(T)}')
        cvt(A, OM, OM, OM+1); cvt(A, OM+1, OM+2, OM+3)
        cvt(A, OL, OL, OL+1); cvt(A, OL+1, OL+2, OL+3)
        A(f'v_cndmask_b32 {v(OL)}, {v(OL)}, {v(OL+1)}, {s(56,2)}')
        if RO < 64: down_check(A, cfg, VPD, VFD, s(S_SEG), RO-1, S_OFQ, fail)
        jitter(A)
        A(f's_add_u32 {s(S_TMP)}, {s(S_O1)}, {s(S_OFO)}')
        A(f's_add_u32 {s(S_TMP+1)}, {s(S_O2)}, {s(S_OFO)}')
        A(f'buffer_store_dwordx2 {v(OM,2)}, {v(VO1)}, {s(S_WS,4)}, {s(S_TMP)} offen' + SCOPE[0])
        A(f's_mov_b64 exec, {s(54,2)}')
        A(f'buffer_store_dword {v(OL)}, {v(VO2)}, {s(S_WS,4)}, {s(S_TMP+1)} offen' + SCOPE[0])
        A('s_mov_b64 exec, -1')
        fst(A, cfg, 5, S_SEG)
        poll_issue(A, cfg, VPOLL, VFLAG)
        for m in range(9):
            A(f's_add_u32 {s(S_SL+m)}, {s(S_SL+m)}, 8192')
            A(f's_cmp_eq_u32 {s(S_SL+m)}, {NSLOT*8192}')
            A(f's_cselect_b32 {s(S_SL+m)}, 0, {s(S_SL+m)}')
        A(f's_add_u32 {s(S_SEG)}, {s(S_SEG)}, 1')
        A('s_waitcnt vmcnt(0)')
        fst(A, cfg, 6, S_SEG, 33)
        publish(A, s(S_SEG), VT, VZERO)
        A(f's_cmp_ge_u32 {s(S_SEG)}, 64')
        A(f's_cbranch_scc1 {done}')
        A(f's_add_u32 {s(S_TGT)}, {s(S_SEG)}, 1')
        poll_check(A, cfg, VPOLL, s(S_TGT), VFLAG, fail)
        A(f's_branch {loop}')
```

```python
from asm import *
from common import *

S_KA = 0
S_WG = 2
S_WS = 4
S_SRD = 8
S_DBG = 12
S_ROLE = 14
S_WAVE = 15
S_XCC = 16
S_TMP = 17
S_SPIN = 20
S_PTR = 22
S_MODE = 24

MF = 'v_mfma_f32_16x16x32_bf16'
MF16 = 'v_mfma_f32_16x16x16_bf16'

def srd_from_ptr(A, sdst, sptr, size):
    A(f's_mov_b32 {s(sdst)}, {s(sptr)}')
    A(f's_and_b32 {s(sdst+1)}, {s(sptr+1)}, 0xffff')
    A(f's_mov_b32 {s(sdst+2)}, {hex(size)}')
    A(f's_mov_b32 {s(sdst+3)}, 0x00020000')

def load_ptr_srd(A, sdst, ka_off, size):
    A(f's_load_dwordx2 {s(S_PTR,2)}, {s(S_KA,2)}, {ka_off}')
    A('s_waitcnt lgkmcnt(0)')
    srd_from_ptr(A, sdst, S_PTR, size)

L_WO = 0
L_MEM = 147456
L_S = L_MEM + 9216
L_O = L_S + 5120

V_MEMRD, V_WO0, V_WO1, V_SW, V_SRX, V_SRM, V_OW, V_OR, V_PST, V_PLD, V_MST, V_T16, V_T4, V_L16 = range(14)
V_KX = 14
V_VX = 22
V_AV = 30
V_RING = 38
V_AQ = 50
V_QF = 66
V_KF = 70
V_T = 74
V_FLAG = 77
V_ZERO = 78
V_SC = 79
def WQ(t, ks): return a(t*72 + ks*4, 4)
def WK(t, ks):
    i = 144 + t*72 + ks*4
    return a(i, 4) if i < 256 else v(80 + i - 256, 4)
def WV(t, ks): return v(112 + t*72 + ks*4, 4)
def wreg(m, t, ks, half):
    if m == 0: return a(t*72 + ks*4 + 2*half, 2)
    if m == 1:
        i = 144 + t*72 + ks*4 + 2*half
        return a(i, 2) if i < 256 else v(80 + i - 256, 2)
    return v(112 + t*72 + ks*4 + 2*half, 2)

S_H = 26; S_L = 27; S_STEP = 28
S_PL = 30
S_PST = 38
S_PST2 = 49
S_MB0 = 39; S_MB1 = 40
S_MB0b = 41; S_MB1b = 42
S_MB0c = 43; S_MB1c = 44
S_KX = 45
S_KVM = 46
S_FLAGIN = 47
S_FLAGOUT = 48
S_T0 = 50
S_T1 = 52
S_EX8 = 54
S_EXM = 56
S_EXP = 58
S_EXS = 60
S_SOFF = 62
S_M0 = 63

def spin_check(A, retry_label, fail_label):
    A(f's_sub_u32 {s(S_SPIN)}, {s(S_SPIN)}, 1')
    A(f's_cmp_lg_u32 {s(S_SPIN)}, 0')
    A(f's_cbranch_scc1 {retry_label}')
    A(f's_branch {fail_label}')

def qkv_loader(A, dord):
    w = s(S_WAVE)
    LN, COL, G, TOK = 79, 78, 77, 76
    A(f'v_lshlrev_b32 v16, 1, {v(G)}')
    A(f'v_xor_b32 v16, v16, {v(COL)}')
    A(f'v_xor_b32 v17, 8, v16')
    A(f'v_lshlrev_b32 v16, 4, v16')
    A(f'v_lshlrev_b32 v17, 4, v17')
    A(f'v_lshlrev_b32 v18, 13, {v(G)}')
    A(f'v_add_u32 v14, v16, v18')
    A(f'v_add_u32 v15, v17, v18')
    A(f'v_lshrrev_b32 v16, 2, {v(COL)}')
    A(f'v_and_b32 v17, 3, {v(COL)}')
    if dord: A(f'v_lshrrev_b32 v18, 1, {v(G)}')
    else: A(f'v_and_b32 v18, 1, {v(G)}')
    A(f'v_lshlrev_b32 v18, 2, v18')
    A(f'v_or_b32 v18, v18, v16')
    A(f'v_lshlrev_b32 v18, 1, v18')
    A(f'v_lshrrev_b32 v19, 1, v17')
    A(f's_lshl_b32 {s(S_TMP)}, {w}, 2')
    A(f'v_add_u32 v19, {s(S_TMP)}, v19')
    A(f'v_and_b32 v17, 1, v17')
    A(f'v_lshlrev_b32 v17, 3, v17')
    A(f'v_lshlrev_b32 v20, {2 if dord else 3}, {v(G)}')
    A(f'v_add_u32 v20, v20, v16')
    A(f'v_lshlrev_b32 v20, 8, v20')
    A(f'v_add_u32 v20, v20, v17')
    A(f'v_xor_b32 v21, v19, v18')
    A(f'v_add_u32 v19, 2, v19')
    A(f'v_xor_b32 v22, v19, v18')
    A(f'v_lshlrev_b32 v21, 4, v21')
    A(f'v_lshlrev_b32 v22, 4, v22')
    A(f'v_add_u32 v21, v21, v20')
    A(f'v_add_u32 v22, v22, v20')
    A(f'v_add_u32 v23, 0x10000, v21')
    A(f'v_add_u32 v24, 0x10000, v22')
    for r in (21, 22, 23, 24):
        A(f'v_add_u32 {v(r+4)}, 73728, {v(r)}')
    KA = [KA_WQ, KA_WK, KA_WV]
    WSZ = 576*4096*2
    def issue_half(hf):
        m, part = hf // 2, hf % 2
        buf = hf % 2
        load_ptr_srd(A, S_SRD, KA[m], WSZ)
        A(f's_lshl_b32 {s(S_SOFF)}, {s(S_H)}, 8')
        A(f's_lshl_b32 {s(S_TMP)}, {w}, 15')
        A(f's_add_u32 {s(S_SOFF)}, {s(S_SOFF)}, {s(S_TMP)}')
        if part: A(f's_add_u32 {s(S_SOFF)}, {s(S_SOFF)}, {288*8192}')
        A(f's_lshl_b32 {s(S_M0)}, {w}, 10')
        if buf: A(f's_add_u32 {s(S_M0)}, {s(S_M0)}, 73728')
        for j in range(18):
            A(f's_mov_b32 m0, {s(S_M0)}')
            A(f'buffer_load_dwordx4 v29, {s(S_SRD,4)}, {s(S_SOFF)} offen lds')
            if j < 17:
                A(f's_add_u32 {s(S_SOFF)}, {s(S_SOFF)}, {16*8192}')
                A(f's_add_u32 {s(S_M0)}, {s(S_M0)}, 4096')
    A(f's_and_b32 {s(S_TMP)}, {w}, 2')
    A(f's_cmp_eq_u32 {s(S_TMP)}, 0')
    A(f's_cselect_b64 vcc, -1, 0')
    A(f'v_cndmask_b32 v29, v15, v14, vcc')
    def consume_half(hf):
        m, part = hf // 2, hf % 2
        buf = hf % 2
        for t in range(2):
            for k in range(9):
                ks = part*9 + k
                for half in range(2):
                    base = (21 + t) if k < 8 else (23 + t)
                    if buf: base += 4
                    off = (k % 8)*8192 + half*(4096 if dord else 1024)
                    A(f'ds_read_b64_tr_b16 {wreg(m, t, ks, half)}, {v(base)} offset:{off}')
                if k % 4 == 3: A('s_waitcnt lgkmcnt(8)')
        A('s_waitcnt lgkmcnt(0)')
    return issue_half, consume_half

S_TS = 96
def tstamp(A, cfg, slot, vt, vzero):
    if not cfg.get('TIME'): return
    if cfg.get('LEAN') and not (isinstance(slot, int) and slot >= 100): return
    sk = A.newlabel('ts')
    A(f's_cmp_lg_u32 {s(S_WAVE)}, 0')
    A(f's_cbranch_scc1 {sk}')
    A(f's_memrealtime {s(S_TS,2)}')
    A(f's_lshl_b32 {s(S_TS+2)}, {s(S_ROLE)}, 9')
    A(f's_add_u32 {s(S_TS+2)}, {s(S_TS+2)}, {hex(WS_TIME)}')
    if isinstance(slot, int): A(f's_add_u32 {s(S_TS+2)}, {s(S_TS+2)}, {slot*4}')
    else:
        A(f's_lshl_b32 {s(S_TS+3)}, {slot}, 2')
        A(f's_add_u32 {s(S_TS+2)}, {s(S_TS+2)}, {s(S_TS+3)}')
    A('s_waitcnt lgkmcnt(0)')
    A(f'v_mov_b32 {v(vt)}, {s(S_TS)}')
    A('s_mov_b64 exec, 1')
    A(f'buffer_store_dword {v(vt)}, {v(vzero)}, {s(S_WS,4)}, {s(S_TS+2)} offen')
    A('s_mov_b64 exec, -1')
    A.label(sk)

def dstamp(A, cfg, slot, role, sreg=None, va=None, vb=None):
    if not cfg.get('DBGT'): return
    sk = A.newlabel('ds')
    A(f's_cmp_lg_u32 {s(S_ROLE)}, {role}'); A(f's_cbranch_scc1 {sk}')
    A(f's_cmp_lg_u32 {s(S_WAVE)}, 0'); A(f's_cbranch_scc1 {sk}')
    if sreg is None:
        A(f's_memrealtime {s(S_TS,2)}'); A('s_waitcnt lgkmcnt(0)'); sreg = S_TS
    A(f'v_mov_b32 {v(va)}, {s(sreg)}'); A(f'v_mov_b32 {v(vb)}, 0')
    A('s_mov_b64 exec, 1')
    A(f'global_store_dword {v(vb)}, {v(va)}, {s(S_DBG,2)} offset:{4*slot}')
    A('s_mov_b64 exec, -1')
    A.label(sk)

def fst(A, cfg, idx, sreg, val=32):
    if not cfg.get('FINE'): return
    sk = A.newlabel('fs')
    A(f's_cmp_lg_u32 {s(sreg)}, {val}')
    A(f's_cbranch_scc1 {sk}')
    A(f's_memrealtime {s(S_TS,2)}')
    A('s_waitcnt lgkmcnt(0)')
    A(f's_mov_b32 {s(80+idx)}, {s(S_TS)}')
    A.label(sk)

def chain_init(A, cfg):
    w = s(S_WAVE)
    LN, COL, G, TOK = 79, 78, 77, 76
    A(f'v_and_b32 {v(LN)}, 63, v0')
    A(f'v_mov_b32 {v(75)}, v0')
    A(f'v_and_b32 {v(COL)}, 15, {v(LN)}')
    A(f'v_lshrrev_b32 {v(G)}, 4, {v(LN)}')
    A(f'v_and_b32 {v(TOK)}, 7, {v(LN)}')
    TID = 75
    issue_half, consume_half = qkv_loader(A, False)
    def issue_wo(buf):
        load_ptr_srd(A, S_SRD, KA_WO, 32*128*576*2)
        A(f's_mul_i32 {s(S_SOFF)}, {s(S_H)}, 147456')
        A(f's_lshl_b32 {s(S_M0)}, {w}, 10')
        if buf: A(f's_add_u32 {s(S_M0)}, {s(S_M0)}, 73728')
        A(f's_add_u32 {s(S_SOFF)}, {s(S_SOFF)}, {s(S_M0)}')
        for j in range(18):
            A(f's_mov_b32 m0, {s(S_M0)}')
            A(f'buffer_load_dwordx4 {v(V_L16)}, {s(S_SRD,4)}, {s(S_SOFF)} offen lds')
            if j < 17:
                A(f's_add_u32 {s(S_SOFF)}, {s(S_SOFF)}, 4096')
                A(f's_add_u32 {s(S_M0)}, {s(S_M0)}, 4096')
    A(f'v_lshlrev_b32 {v(V_L16)}, 4, {v(LN)}')
    issue_half(0)
    issue_half(1)
    for hf in range(6):
        A('s_waitcnt vmcnt(18)')
        A('s_barrier')
        consume_half(hf)
        A('s_barrier')
        if hf + 2 < 6: issue_half(hf + 2)
        else: issue_wo(hf % 2)
    A(f'v_lshrrev_b32 v16, 2, {v(COL)}')
    A(f'v_and_b32 v17, 3, {v(COL)}')
    A(f'v_lshlrev_b32 v18, 2, {v(G)}')
    A(f'v_add_u32 v18, v18, v16')
    A(f'v_mul_u32_u24 v18, 1152, v18')
    A(f'v_lshlrev_b32 v17, 3, v17')
    A(f'v_add_u32 v18, v18, v17')
    A(f's_mul_i32 {s(S_TMP)}, {w}, 288')
    A(f'v_add_u32 v18, {s(S_TMP)}, v18')
    A(f's_mul_i32 {s(S_TMP)}, {w}, 9216')
    A(f'v_add_u32 {v(V_WO0)}, {s(S_TMP)}, {v(V_L16)}')
    A(f'v_add_u32 {v(V_WO1)}, {2*36864}, {v(V_WO0)}')
    A(f'v_mov_b32 v19, {v(V_WO0)}')
    for ks in range(4):
        if ks == 0: A('s_waitcnt vmcnt(18)'); A('s_barrier')
        if ks == 2: A('s_waitcnt vmcnt(0)'); A('s_barrier')
        for t in range(9):
            A(f'ds_read_b64_tr_b16 {v(30+4*t,2)}, v18 offset:{t*32}')
            A(f'ds_read_b64_tr_b16 {v(30+4*t+2,2)}, v18 offset:{t*32 + 16*1152}')
        A('s_waitcnt lgkmcnt(0)')
        A('s_barrier')
        for t in range(9):
            A(f'ds_write_b128 v19, {v(30+4*t,4)} offset:{t*1024}')
        if ks < 3:
            A(f'v_add_u32 v18, 36864, v18')
            A(f'v_add_u32 v19, 36864, v19')
        A('s_waitcnt lgkmcnt(0)')
    A(f'v_lshlrev_b32 v16, 7, {v(G)}')
    A(f'v_lshlrev_b32 v17, 4, {v(TOK)}')
    A(f'v_add_u32 v16, v16, v17')
    A(f's_mul_i32 {s(S_TMP)}, {w}, 1280')
    A(f's_add_u32 {s(S_TMP)}, {s(S_TMP)}, {L_S}')
    A(f'v_add_u32 {v(V_SW)}, {s(S_TMP)}, v16')
    A(f'v_lshrrev_b32 v18, 3, {v(COL)}')
    A(f'v_lshlrev_b32 v18, 9, v18')
    A(f'v_add_u32 v18, v18, v16')
    A(f'v_add_u32 {v(V_SRX)}, {L_S}, v18')
    A(f'v_and_b32 v18, 1, {v(G)}')
    A(f'v_lshlrev_b32 v18, 7, v18')
    A(f'v_add_u32 v18, v18, v17')
    A(f'v_add_u32 {v(V_SRM)}, {L_S+1024}, v18')
    A(f'v_add_u32 {v(V_OR)}, {L_O}, v16')
    A(f's_lshl_b32 {s(S_TMP)}, {w}, 9')
    A(f'v_add_u32 {v(V_OW)}, {s(S_TMP)}, {v(V_OR)}')
    A(f'v_lshrrev_b32 v16, 1, {v(G)}')
    A(f'v_lshlrev_b32 v16, 8, v16')
    A(f'v_lshlrev_b32 v17, 5, {v(TOK)}')
    A(f'v_add_u32 v16, v16, v17')
    A(f'v_and_b32 v17, 1, {v(G)}')
    A(f'v_lshlrev_b32 v17, 4, v17')
    A(f'v_add_u32 v16, v16, v17')
    A(f'v_add_u32 {v(V_MEMRD)}, {L_MEM}, v16')
    A(f'v_lshlrev_b32 v16, 2, {v(TOK)}')
    A(f'v_add_u32 v16, v16, {v(G)}')
    A(f'v_lshlrev_b32 v16, 4, v16')
    A(f's_mul_i32 {s(S_TMP)}, {w}, {288*16}')
    A(f'v_add_u32 {v(V_PST)}, {s(S_TMP)}, v16')
    A(f's_mul_i32 {s(S_TMP)}, {s(S_H)}, 36')
    A(f's_mul_i32 {s(S_TMP+1)}, {w}, 9')
    A(f's_add_u32 {s(S_TMP)}, {s(S_TMP)}, {s(S_TMP+1)}')
    A(f'v_add_u32 v16, {s(S_TMP)}, {v(COL)}')
    A(f'v_mul_u32_u24 v17, 18432, {v(G)}')
    A(f'v_lshlrev_b32 v18, 4, v16')
    A(f'v_add_u32 {v(V_PLD)}, v17, v18')
    A(f'v_lshlrev_b32 v16, 3, v16')
    A(f'v_lshrrev_b32 v17, 1, {v(G)}')
    A(f'v_lshlrev_b32 v17, 2, v17')
    A(f'v_add_u32 {v(V_MST)}, v16, v17')
    A(f'v_lshlrev_b32 {v(V_T16)}, 4, {v(TID)}')
    A(f'v_lshlrev_b32 {v(V_T4)}, 2, {v(TID)}')
    A(f's_mul_i32 {s(S_TMP)}, {s(S_L)}, {PART_STRIDE}')
    A(f's_add_u32 {s(S_TMP)}, {s(S_TMP)}, {WS_PART}')
    for i in range(8):
        A(f's_add_u32 {s(S_PL+i)}, {s(S_TMP)}, {i*73728}')
    A(f's_mul_i32 {s(S_TMP+1)}, {s(S_H)}, 18432')
    A(f's_add_u32 {s(S_PST)}, {s(S_TMP)}, {s(S_TMP+1)}')
    A(f's_add_u32 {s(S_PST2)}, {s(S_PST)}, 4096')
    A(f's_mul_i32 {s(S_TMP)}, {s(S_L)}, {MEMB_STRIDE}')
    A(f's_add_u32 {s(S_MB0)}, {s(S_TMP)}, {WS_MEMB}')
    A(f's_add_u32 {s(S_MB1)}, {s(S_MB0)}, 9216')
    A(f's_add_u32 {s(S_MB0b)}, {s(S_MB0)}, 4096')
    A(f's_add_u32 {s(S_MB1b)}, {s(S_MB1)}, 4096')
    A(f's_add_u32 {s(S_MB0c)}, {s(S_MB0)}, 8192')
    A(f's_add_u32 {s(S_MB1c)}, {s(S_MB1)}, 8192')
    A(f's_mul_i32 {s(S_TMP)}, {s(S_L)}, {QKVX_STRIDE}')
    A(f's_mul_i32 {s(S_TMP+1)}, {s(S_H)}, 24576')
    A(f's_add_u32 {s(S_KX)}, {s(S_TMP)}, {s(S_TMP+1)}')
    A(f's_add_u32 {s(S_KX)}, {s(S_KX)}, {WS_QKVX}')
    A(f's_mul_i32 {s(S_TMP)}, {s(S_L)}, {KVM_STRIDE}')
    A(f's_lshl_b32 {s(S_TMP+1)}, {s(S_H)}, 13')
    A(f's_add_u32 {s(S_KVM)}, {s(S_TMP)}, {s(S_TMP+1)}')
    A(f's_lshl_b32 {s(S_TMP+1)}, {w}, 10')
    A(f's_add_u32 {s(S_KVM)}, {s(S_KVM)}, {s(S_TMP+1)}')
    A(f's_add_u32 {s(S_KVM)}, {s(S_KVM)}, {WS_KVM}')
    A(f's_lshl_b32 {s(S_TMP)}, {s(S_ROLE)}, 7')
    A(f's_lshl_b32 {s(S_TMP+1)}, {w}, 2')
    A(f's_add_u32 {s(S_FLAGOUT)}, {s(S_TMP)}, {s(S_TMP+1)}')
    A(f's_mul_i32 {s(S_TMP)}, {s(S_L)}, {R_B1[1]-R_B1[0]}')
    A(f's_add_u32 {s(S_TMP)}, {s(S_TMP)}, {s(S_H)}')
    A(f's_add_u32 {s(S_TMP)}, {s(S_TMP)}, {R_B1[0]}')
    A(f's_lshl_b32 {s(S_TMP)}, {s(S_TMP)}, 7')
    A(f's_add_u32 {s(S_FLAGIN)}, {s(S_TMP)}, {s(S_TMP+1)}')
    for sr, val in ((S_EX8, 0x00FF00FF00FF00FF), (S_EXM, 0x0000000000FF00FF), (S_EXP, 0x01FF01FF01FF01FF), (S_EXS, 0x000001FF000001FF)):
        A(f's_mov_b32 {s(sr)}, {hex(val & 0xffffffff)}')
        A(f's_mov_b32 {s(sr+1)}, {hex(val >> 32)}')
    load_ptr_srd(A, S_SRD, KA_MEM0, 8*576*2)
    for rnd in range(3):
        A(f'v_add_u32 v16, {256*rnd}, {v(TID)}')
        A(f'v_lshrrev_b32 v17, 4, v16')
        A(f'v_lshlrev_b32 v17, 5, v17')
        A(f'v_bfe_u32 v18, v16, 1, 3')
        A(f'v_mul_u32_u24 v18, 1152, v18')
        A(f'v_add_u32 v17, v17, v18')
        A(f'v_and_b32 v18, 1, v16')
        A(f'v_lshlrev_b32 v18, 4, v18')
        A(f'v_add_u32 v17, v17, v18')
        A(f'v_lshlrev_b32 v16, 4, v16')
        A(f'v_add_u32 v16, {L_MEM}, v16')
        if rnd == 2:
            A(f'v_cmp_gt_u32 vcc, 64, {v(TID)}')
            A(f's_and_saveexec_b64 {s(S_T0,2)}, vcc')
            lab = A.newlabel('skipm'); A(f's_cbranch_execz {lab}')
        A(f'buffer_load_dwordx4 v[20:23], v17, {s(S_SRD,4)}, 0 offen')
        A('s_waitcnt vmcnt(0)')
        A(f'ds_write_b128 v16, v[20:23]')
        if rnd == 2:
            A.label(lab)
            A(f's_mov_b64 exec, -1')
    A('s_waitcnt lgkmcnt(0)')
    A(f'v_mov_b32 {v(V_ZERO)}, 0')
    A(f'v_mov_b32 {v(V_SC)}, {hex(f32((128 ** -0.5) * 1.4426950408889634))}')

def kxvx_load(A):
    w = s(S_WAVE)
    A(f's_lshl_b32 {s(S_TMP)}, {w}, 10')
    A(f's_add_u32 {s(S_TMP)}, {s(S_TMP)}, {s(S_KX)}')
    A(f's_add_u32 {s(S_TMP+1)}, {s(S_TMP)}, 8192')
    A(f's_add_u32 {s(S_TMP+2)}, {s(S_TMP)}, {8192+4096}')
    A(f'buffer_load_dwordx4 {v(V_KX,4)}, {v(V_L16)}, {s(S_WS,4)}, {s(S_TMP+1)} offen')
    A(f'buffer_load_dwordx4 {v(V_KX+4,4)}, {v(V_L16)}, {s(S_WS,4)}, {s(S_TMP+2)} offen')
    A(f's_lshl_b32 {s(S_TMP)}, {w}, 11')
    A(f's_add_u32 {s(S_TMP)}, {s(S_TMP)}, {s(S_KX)}')
    A(f's_add_u32 {s(S_TMP+1)}, {s(S_TMP)}, 16384')
    A(f'buffer_load_dwordx4 {v(V_VX,4)}, {v(V_L16)}, {s(S_WS,4)}, {s(S_TMP+1)} offen')
    A(f'buffer_load_dwordx4 {v(V_VX+4,4)}, {v(V_L16)}, {s(S_WS,4)}, {s(S_TMP+1)} offen offset:1024')
    A(f's_add_u32 {s(S_KX)}, {s(S_KX)}, {32*24576}')

def stamp(A, cfg, idx):
    if not cfg.get('STAMPS'): return
    A(f's_memtime {s(S_T1,2)}')
    A('s_waitcnt lgkmcnt(0)')
    A(f's_mov_b32 {s(64+idx)}, {s(S_T1)}')

def chain_step(A, par, cfg, fail):
    tag = par ^ 1
    st = lambda f, sc1=False: f + (' sc1' if sc1 or cfg.get('SLOW') else '')
    SC = (128 ** -0.5) * 1.4426950408889634
    stamp(A, cfg, 0)
    tstamp(A, cfg, s(S_STEP), V_T, V_ZERO)
    A(f'v_mov_b32 {v(V_T)}, {s(S_STEP)}')
    for k in range(3):
        A(f'ds_read_b128 {v(V_RING+4*k,4)}, {v(V_MEMRD)} offset:{k*512}')
    A(f's_mov_b64 exec, 1')
    A(f'buffer_store_dword {v(V_T)}, {v(V_ZERO)}, {s(S_WS,4)}, {s(S_FLAGOUT)} offen sc1')
    if not cfg.get('NOB1'):
        A(f'buffer_load_dword {v(V_FLAG)}, {v(V_ZERO)}, {s(S_WS,4)}, {s(S_FLAGIN)} offen sc1')
    A(f's_mov_b64 exec, -1')
    aq0, aq1, ak0, ak1 = V_AQ, V_AQ+4, V_AQ+8, V_AQ+12
    for ks in range(18):
        slot = V_RING + 4*(ks % 3)
        A(f's_waitcnt lgkmcnt({min(2, 17-ks)})')
        c = lambda r: '0' if ks == 0 else v(r, 4)
        A(f'{MF} {v(aq0,4)}, {WQ(0,ks)}, {v(slot,4)}, {c(aq0)}')
        A(f'{MF} {v(aq1,4)}, {WQ(1,ks)}, {v(slot,4)}, {c(aq1)}')
        A(f'{MF} {v(ak0,4)}, {WK(0,ks)}, {v(slot,4)}, {c(ak0)}')
        A(f'{MF} {v(ak1,4)}, {WK(1,ks)}, {v(slot,4)}, {c(ak1)}')
        if ks + 3 < 18:
            A(f'ds_read_b128 {v(slot,4)}, {v(V_MEMRD)} offset:{(ks+3)*512}')
    stamp(A, cfg, 1)
    for k in range(3):
        A(f'ds_read_b128 {v(V_RING+4*k,4)}, {v(V_MEMRD)} offset:{k*512}')
    for i in range(2):
        A(f'v_cvt_pk_bf16_f32 {v(V_QF+i)}, {v(aq0+2*i)}, {v(aq0+2*i+1)}')
    for i in range(2):
        A(f'v_cvt_pk_bf16_f32 {v(V_QF+2+i)}, {v(aq1+2*i)}, {v(aq1+2*i+1)}')
    for i in range(2):
        A(f'v_cvt_pk_bf16_f32 {v(V_KF+i)}, {v(ak0+2*i)}, {v(ak0+2*i+1)}')
    for i in range(2):
        A(f'v_cvt_pk_bf16_f32 {v(V_KF+2+i)}, {v(ak1+2*i)}, {v(ak1+2*i+1)}')
    nout = 1 if cfg.get('NOB1') else 2
    A(f's_waitcnt vmcnt({nout})')
    A(f'{MF} {v(aq0,4)}, {v(V_KX,4)}, {v(V_QF,4)}, 0')
    A(f'{MF} {v(aq1,4)}, {v(V_KX+4,4)}, {v(V_QF,4)}, 0')
    A(f'{MF} {v(ak0,4)}, {v(V_KF,4)}, {v(V_QF,4)}, 0')
    A(f'buffer_store_dwordx4 {v(V_KF,4)}, {v(V_L16)}, {s(S_WS,4)}, {s(S_KVM)} offen sc1')
    vks = [0]
    def vm(n):
        for _ in range(n):
            ks = vks[0]
            if ks >= 18: return
            slot = V_RING + 4*(ks % 3)
            A(f's_waitcnt lgkmcnt({min(cfg_l[0], 17-ks) if cfg_l[0]==2 else cfg_l[0]})')
            c = lambda r: '0' if ks == 0 else v(r, 4)
            A(f'{MF} {v(V_AV,4)}, {v(slot,4)}, {WV(0,ks)}, {c(V_AV)}')
            A(f'{MF} {v(V_AV+4,4)}, {v(slot,4)}, {WV(1,ks)}, {c(V_AV+4)}')
            if ks + 3 < 18:
                A(f'ds_read_b128 {v(slot,4)}, {v(V_MEMRD)} offset:{(ks+3)*512}')
            vks[0] += 1
    cfg_l = [2]
    vm(1)
    A(f's_mov_b64 exec, {s(S_EX8,2)}')
    A(f'ds_write_b128 {v(V_SW)}, {v(aq0,4)}')
    A(f'ds_write_b128 {v(V_SW)}, {v(aq1,4)} offset:512')
    A(f's_mov_b64 exec, {s(S_EXM,2)}')
    A(f'ds_write_b128 {v(V_SW)}, {v(ak0,4)} offset:1024')
    A(f's_mov_b64 exec, -1')
    cfg_l[0] = 5; vm(1)
    cfg_l[0] = 5; vm(1)
    A('s_waitcnt lgkmcnt(2)')
    A('s_barrier')
    stamp(A, cfg, 2)
    XR = [V_AQ + 4*i for i in range(4)]
    MR = [V_QF, V_KF, V_KX, V_KX+4]
    for i in range(4):
        A(f'ds_read_b128 {v(XR[i],4)}, {v(V_SRX)} offset:{i*1280}')
        A(f'ds_read_b128 {v(MR[i],4)}, {v(V_SRM)} offset:{i*1280}')
    cfg_l[0] = 10; vm(1)
    cfg_l[0] = 10; vm(1)
    cfg_l[0] = 10; vm(1)
    A('s_waitcnt lgkmcnt(3)')
    stamp(A, cfg, 3)
    cfg_l[0] = 2
    x = XR[0]; m = MR[0]
    for r in range(4):
        A(f'v_add_f32 {v(x+r)}, {v(x+r)}, {v(XR[1]+r)}')
        A(f'v_add_f32 {v(XR[2]+r)}, {v(XR[2]+r)}, {v(XR[3]+r)}')
    for r in range(4):
        A(f'v_add_f32 {v(m+r)}, {v(m+r)}, {v(MR[1]+r)}')
        A(f'v_add_f32 {v(MR[2]+r)}, {v(MR[2]+r)}, {v(MR[3]+r)}')
    vm(1)
    for r in range(4):
        A(f'v_add_f32 {v(x+r)}, {v(x+r)}, {v(XR[2]+r)}')
        A(f'v_add_f32 {v(m+r)}, {v(m+r)}, {v(MR[2]+r)}')
    vm(1)
    T = V_T
    A(f'v_max3_f32 {v(T)}, {v(x)}, {v(x+1)}, {v(x+2)}')
    A(f'v_max3_f32 {v(T+1)}, {v(m)}, {v(m+1)}, {v(m+2)}')
    A(f'v_max3_f32 {v(T)}, {v(T)}, {v(x+3)}, {v(m+3)}')
    A(f'v_max_f32 {v(T)}, {v(T)}, {v(T+1)}')
    vm(1)
    A(f'v_max_f32_dpp {v(T)}, {v(T)}, {v(T)} row_ror:8 row_mask:0xf bank_mask:0xf')
    A(f'v_mov_b32 {v(T+1)}, {v(T)}')
    vm(1)
    A(f'v_permlane16_swap_b32 {v(T)}, {v(T+1)}')
    A(f'v_max_f32 {v(T)}, {v(T)}, {v(T+1)}')
    A(f'v_mov_b32 {v(T+1)}, {v(T)}')
    vm(1)
    A(f'v_permlane32_swap_b32 {v(T)}, {v(T+1)}')
    A(f'v_max_f32 {v(T)}, {v(T)}, {v(T+1)}')
    A(f'v_mul_f32 {v(T)}, {hex(f32(-SC))}, {v(T)}')
    A(f'v_add_f32 {v(T+1)}, -1.0, {v(T)}')
    vm(1)
    for r in range(4):
        A(f'v_fma_f32 {v(x+r)}, {v(x+r)}, {v(V_SC)}, {v(T)}')
        A(f'v_fma_f32 {v(m+r)}, {v(m+r)}, {v(V_SC)}, {v(T+1)}')
    vm(1)
    for r in range(4):
        A(f'v_exp_f32 {v(x+r)}, {v(x+r)}')
        A(f'v_exp_f32 {v(m+r)}, {v(m+r)}')
    vm(3)
    f = XR[1]; pm = XR[2]
    A(f'v_cvt_pk_bf16_f32 {v(f)}, {v(x)}, {v(x+1)}')
    A(f'v_cvt_pk_bf16_f32 {v(f+1)}, {v(x+2)}, {v(x+3)}')
    A(f'v_cvt_pk_bf16_f32 {v(f+2)}, {v(x)}, {v(x+1)}')
    A(f'v_cvt_pk_bf16_f32 {v(f+3)}, {v(x+2)}, {v(x+3)}')
    A(f'v_cvt_pk_bf16_f32 {v(pm)}, {v(m)}, {v(m+1)}')
    A(f'v_cvt_pk_bf16_f32 {v(pm+1)}, {v(m+2)}, {v(m+3)}')
    A(f'v_mov_b32_dpp {v(f+2)}, {v(f)} row_ror:8 row_mask:0xf bank_mask:0x3')
    A(f'v_mov_b32_dpp {v(f+3)}, {v(f+1)} row_ror:8 row_mask:0xf bank_mask:0x3')
    A(f'v_mov_b32_dpp {v(f)}, {v(f)} row_ror:8 row_mask:0xf bank_mask:0xc')
    A(f'v_mov_b32_dpp {v(f+1)}, {v(f+1)} row_ror:8 row_mask:0xf bank_mask:0xc')
    vm(18)
    stamp(A, cfg, 4)
    SUM = XR[3]
    A(f'v_add_f32 {v(SUM)}, {v(x)}, {v(x+1)}')
    A(f'v_add_f32 {v(SUM+1)}, {v(x+2)}, {v(x+3)}')
    A(f'v_add_f32 {v(SUM+2)}, {v(m)}, {v(m+1)}')
    A(f'v_add_f32 {v(SUM+3)}, {v(m+2)}, {v(m+3)}')
    vmf = MR[1]
    for i in range(4):
        A(f'v_cvt_pk_bf16_f32 {v(vmf+i)}, {v(V_AV+2*i)}, {v(V_AV+2*i+1)}')
    o0, o1 = MR[2], MR[3]
    A(f'{MF} {v(o0,4)}, {v(V_VX,4)}, {v(f,4)}, 0')
    A(f'{MF} {v(o1,4)}, {v(V_VX+4,4)}, {v(f,4)}, 0')
    A(f'{MF16} {v(o0,4)}, {v(vmf,2)}, {v(pm,2)}, {v(o0,4)}')
    A(f'{MF16} {v(o1,4)}, {v(vmf+2,2)}, {v(pm,2)}, {v(o1,4)}')
    A(f's_add_u32 {s(S_TMP)}, {s(S_KVM)}, 4096')
    A(f'buffer_store_dwordx4 {v(vmf,4)}, {v(V_L16)}, {s(S_WS,4)}, {s(S_TMP)} offen sc1')
    A(f's_add_u32 {s(S_KVM)}, {s(S_KVM)}, {32*8192}')
    A(f'v_add_f32 {v(SUM)}, {v(SUM)}, {v(SUM+1)}')
    A(f'v_add_f32 {v(SUM+2)}, {v(SUM+2)}, {v(SUM+3)}')
    A(f'v_add_f32_dpp {v(SUM)}, {v(SUM)}, {v(SUM)} row_ror:8 row_mask:0xf bank_mask:0xf')
    A(f'v_add_f32 {v(SUM)}, {v(SUM)}, {v(SUM+2)}')
    A(f'v_mov_b32 {v(SUM+1)}, {v(SUM)}')
    A(f'v_permlane16_swap_b32 {v(SUM)}, {v(SUM+1)}')
    A(f'v_add_f32 {v(SUM)}, {v(SUM)}, {v(SUM+1)}')
    A(f'v_mov_b32 {v(SUM+1)}, {v(SUM)}')
    A(f'v_permlane32_swap_b32 {v(SUM)}, {v(SUM+1)}')
    A(f'v_add_f32 {v(SUM)}, {v(SUM)}, {v(SUM+1)}')
    A(f'v_rcp_f32 {v(SUM)}, {v(SUM)}')
    for r in range(4):
        A(f'v_mul_f32 {v(o0+r)}, {v(o0+r)}, {v(SUM)}')
        A(f'v_mul_f32 {v(o1+r)}, {v(o1+r)}, {v(SUM)}')
    of = XR[0]
    A(f'v_cvt_pk_bf16_f32 {v(of)}, {v(o0)}, {v(o0+1)}')
    A(f'v_cvt_pk_bf16_f32 {v(of+1)}, {v(o0+2)}, {v(o0+3)}')
    A(f'v_cvt_pk_bf16_f32 {v(of+2)}, {v(o1)}, {v(o1+1)}')
    A(f'v_cvt_pk_bf16_f32 {v(of+3)}, {v(o1+2)}, {v(o1+3)}')
    A(f's_mov_b64 exec, {s(S_EX8,2)}')
    A(f'ds_write_b128 {v(V_OW)}, {v(of,4)}')
    A(f's_mov_b64 exec, -1')
    wo_seq = [(t, ks) for t in range(9) for ks in range(4)]
    def wo_read(i):
        t, ks = wo_seq[i]
        base = V_WO0 if ks < 2 else V_WO1
        A(f'ds_read_b128 {v(V_RING+4*(i%3),4)}, {v(base)} offset:{(ks%2)*36864 + t*1024}')
    for i in range(3): wo_read(i)
    if not cfg.get('NOB1'):
        lab_ok = A.newlabel('b1ok'); lab_re = A.newlabel('b1re')
        A('s_waitcnt vmcnt(2)')
        A(f's_add_u32 {s(S_TMP)}, {s(S_STEP)}, 2')
        A(f's_min_u32 {s(S_TMP)}, {s(S_TMP)}, 64')
        A(f's_mov_b64 exec, 1')
        A(f'v_cmp_gt_u32 vcc, {s(S_TMP)}, {v(V_FLAG)}')
        A(f's_cbranch_vccz {lab_ok}')
        A(f's_mov_b32 {s(S_SPIN)}, {SPIN_LIMIT}')
        A.label(lab_re)
        A(f'buffer_load_dword {v(V_FLAG)}, {v(V_ZERO)}, {s(S_WS,4)}, {s(S_FLAGIN)} offen sc1')
        A('s_waitcnt vmcnt(0)')
        A(f'v_cmp_gt_u32 vcc, {s(S_TMP)}, {v(V_FLAG)}')
        A(f's_cbranch_vccz {lab_ok}')
        spin_check(A, lab_re, fail)
        A.label(lab_ok)
        A(f's_mov_b64 exec, -1')
    skipk = A.newlabel('skipk')
    A(f's_cmp_eq_u32 {s(S_STEP)}, 63')
    A(f's_cbranch_scc1 {skipk}')
    kxvx_load(A)
    A.label(skipk)
    A('s_waitcnt lgkmcnt(3)')
    A('s_barrier')
    stamp(A, cfg, 5)
    OF = [V_AQ + 4*i for i in range(4)]
    for kk in range(4):
        A(f'ds_read_b128 {v(OF[kk],4)}, {v(V_OR)} offset:{kk*512}')
    ACC = [V_QF, V_KF, V_AV, V_AV+4]
    A(f's_mov_b64 exec, {s(S_EX8,2)}') if False else None
    nrd = 3
    def tag_store(t):
        acc = ACC[t % 4]
        if tag: A(f'v_or_b32 {v(acc)}, 1, {v(acc)}')
        else:   A(f'v_and_b32 {v(acc)}, -2, {v(acc)}')
        A(f's_mov_b64 exec, {s(S_EX8,2)}')
        if t < 8: A(st(f'buffer_store_dwordx4 {v(acc,4)}, {v(V_PST)}, {s(S_WS,4)}, {s(S_PST)} offen offset:{t*512}'))
        else: A(st(f'buffer_store_dwordx4 {v(acc,4)}, {v(V_PST)}, {s(S_WS,4)}, {s(S_PST2)} offen'))
        A(f's_mov_b64 exec, -1')
    for i, (t, ks) in enumerate(wo_seq):
        if i == 0: A('s_waitcnt lgkmcnt(3)')
        elif i == 1: A('s_waitcnt lgkmcnt(3)')
        elif i == 2: A('s_waitcnt lgkmcnt(3)')
        elif i == 3: A('s_waitcnt lgkmcnt(2)')
        else: A(f's_waitcnt lgkmcnt({min(2, 35-i)})')
        acc = ACC[t % 4]
        A(f'{MF} {v(acc,4)}, {v(V_RING+4*(i%3),4)}, {v(OF[ks],4)}, {"0" if ks==0 else v(acc,4)}')
        if i + 3 < 36: wo_read(i + 3)
        if ks == 3 and t >= 1: tag_store(t - 1)
    tag_store(8)
    stamp(A, cfg, 6)
    PB = [V_RING, V_RING+4, V_RING+8, V_AQ, V_AQ+4, V_AQ+8, V_AQ+12, V_QF]
    lp1 = A.newlabel('hop1')
    A(f's_mov_b32 {s(S_SPIN)}, {SPIN_LIMIT}')
    A(f's_mov_b64 exec, {s(S_EXP,2)}')
    A.label(lp1)
    for i in range(8):
        A(f'buffer_load_dwordx4 {v(PB[i],4)}, {v(V_PLD)}, {s(S_WS,4)}, {s(S_PL+i)} offen sc1')
    A('s_waitcnt vmcnt(0)')
    T = V_T
    if tag:
        A(f'v_and_b32 {v(T)}, {v(PB[0])}, {v(PB[1])}')
        A(f'v_and_b32 {v(T+1)}, {v(PB[2])}, {v(PB[3])}')
        A(f'v_and_b32 {v(T+2)}, {v(PB[4])}, {v(PB[5])}')
        A(f'v_and_b32 {v(T+3)}, {v(PB[6])}, {v(PB[7])}')
        A(f'v_and_b32 {v(T)}, {v(T)}, {v(T+1)}')
        A(f'v_and_b32 {v(T+2)}, {v(T+2)}, {v(T+3)}')
        A(f'v_and_b32 {v(T)}, {v(T)}, {v(T+2)}')
    else:
        A(f'v_or3_b32 {v(T)}, {v(PB[0])}, {v(PB[1])}, {v(PB[2])}')
        A(f'v_or3_b32 {v(T+1)}, {v(PB[3])}, {v(PB[4])}, {v(PB[5])}')
        A(f'v_or3_b32 {v(T)}, {v(T)}, {v(PB[6])}, {v(PB[7])}')
        A(f'v_or_b32 {v(T)}, {v(T)}, {v(T+1)}')
    A(f'v_and_b32 {v(T)}, 1, {v(T)}')
    A(f'v_cmp_ne_u32 vcc, {tag}, {v(T)}')
    lok = A.newlabel('h1ok')
    A(f's_cbranch_vccz {lok}')
    spin_check(A, lp1, fail)
    A.label(lok)
    stamp(A, cfg, 7)
    def padd(d, x_, y_):
        A(f'v_pk_add_f32 {v(d,2)}, {v(x_,2)}, {v(y_,2)}')
    for (d, o_) in ((0,1),(2,3),(4,5),(6,7),(0,2),(4,6),(0,4)):
        padd(PB[d], PB[d], PB[o_]); padd(PB[d]+2, PB[d]+2, PB[o_]+2)
    X = PB[0]
    A(f's_mov_b64 exec, -1')
    A(f'v_permlane32_swap_b32 {v(X)}, {v(X+2)}')
    A(f'v_permlane32_swap_b32 {v(X+1)}, {v(X+3)}')
    A(f'v_add_f32 {v(X)}, {v(X)}, {v(X+2)}')
    A(f'v_add_f32 {v(X+1)}, {v(X+1)}, {v(X+3)}')
    A(f'v_mov_b32 {v(X+2)}, {v(X)}')
    A(f'v_mov_b32 {v(X+3)}, {v(X+1)}')
    A(f'v_permlane16_swap_b32 {v(X)}, {v(X+2)}')
    A(f'v_permlane16_swap_b32 {v(X+1)}, {v(X+3)}')
    A(f'v_add_f32 {v(X)}, {v(X)}, {v(X+2)}')
    A(f'v_add_f32 {v(X+1)}, {v(X+1)}, {v(X+3)}')
    A(f'v_cvt_pk_bf16_f32 {v(X)}, {v(X)}, {v(X+1)}')
    A(f'v_mov_b32 {v(X+1)}, -1')
    new = [S_MB0, S_MB1][par ^ 1]; old = [S_MB0, S_MB1][par]
    A(f's_mov_b64 exec, {s(S_EXS,2)}')
    A(st(f'buffer_store_dword {v(X)}, {v(V_MST)}, {s(S_WS,4)}, {s(new)} offen'))
    A(st(f'buffer_store_dword {v(X+1)}, {v(V_MST)}, {s(S_WS,4)}, {s(old)} offen'))
    A(f's_mov_b64 exec, -1')
    stamp(A, cfg, 8)
    nb = [(S_MB0, S_MB0b, S_MB0c), (S_MB1, S_MB1b, S_MB1c)][par ^ 1]
    lp2 = A.newlabel('hop2')
    A(f's_mov_b32 {s(S_SPIN)}, {SPIN_LIMIT}')
    A.label(lp2)
    M0r, M1r, M2r = V_AQ, V_AQ+4, V_AQ+8
    A(f'buffer_load_dwordx4 {v(M0r,4)}, {v(V_T16)}, {s(S_WS,4)}, {s(nb[0])} offen sc1')
    A(f'buffer_load_dwordx4 {v(M1r,4)}, {v(V_T16)}, {s(S_WS,4)}, {s(nb[1])} offen sc1')
    A(f'buffer_load_dword {v(M2r)}, {v(V_T4)}, {s(S_WS,4)}, {s(nb[2])} offen sc1')
    A('s_waitcnt vmcnt(0)')
    A(f'v_max3_u32 {v(T)}, {v(M0r)}, {v(M0r+1)}, {v(M0r+2)}')
    A(f'v_max3_u32 {v(T+1)}, {v(M0r+3)}, {v(M1r)}, {v(M1r+1)}')
    A(f'v_max3_u32 {v(T+2)}, {v(M1r+2)}, {v(M1r+3)}, {v(M2r)}')
    A(f'v_max3_u32 {v(T)}, {v(T)}, {v(T+1)}, {v(T+2)}')
    A(f'v_cmp_eq_u32 vcc, -1, {v(T)}')
    lok2 = A.newlabel('h2ok')
    A(f's_cbranch_vccz {lok2}')
    spin_check(A, lp2, fail)
    A.label(lok2)
    A(f'v_add_u32 {v(T)}, {L_MEM}, {v(V_T16)}')
    A(f'v_add_u32 {v(T+1)}, {L_MEM+8192}, {v(V_T4)}')
    A(f'ds_write_b128 {v(T)}, {v(M0r,4)}')
    A(f'ds_write_b128 {v(T)}, {v(M1r,4)} offset:4096')
    A(f'ds_write_b32 {v(T+1)}, {v(M2r)}')
    A('s_waitcnt lgkmcnt(0)')
    A('s_barrier')
    stamp(A, cfg, 9)
    A(f's_add_u32 {s(S_STEP)}, {s(S_STEP)}, 1')

import struct
def f32(x): return struct.unpack('<I', struct.pack('<f', x))[0]

def chain_role(A, cfg, fail, done):
    chain_init(A, cfg)
    cfg['barrier_wait'](A)
    if not cfg.get('NOB1'):
        lab_re = A.newlabel('b1first'); lab_ok = A.newlabel('b1fok')
        A(f's_mov_b32 {s(S_SPIN)}, {SPIN_LIMIT}')
        A.label(lab_re)
        A(f'buffer_load_dword {v(V_FLAG)}, {v(V_ZERO)}, {s(S_WS,4)}, {s(S_FLAGIN)} offen sc1')
        A('s_waitcnt vmcnt(0)')
        A(f'v_cmp_gt_u32 vcc, 1, {v(V_FLAG)}')
        A(f's_cbranch_vccz {lab_ok}')
        spin_check(A, lab_re, fail)
        A.label(lab_ok)
    kxvx_load(A)
    A(f's_mov_b32 {s(S_STEP)}, 0')
    A('s_barrier')
    if cfg.get('STAMPS') or cfg.get('TOTAL'):
        A(f's_memtime {s(S_T0,2)}')
        A('s_waitcnt lgkmcnt(0)')
    loop = A.newlabel('chainloop')
    A.label(loop)
    chain_step(A, 0, cfg, fail)
    chain_step(A, 1, cfg, fail)
    A(f's_cmp_lt_u32 {s(S_STEP)}, 64')
    A(f's_cbranch_scc1 {loop}')
    tstamp(A, cfg, 64, V_T, V_ZERO)
    A(f'v_mov_b32 {v(V_T)}, {s(S_STEP)}')
    A(f's_mov_b64 exec, 1')
    A(f'buffer_store_dword {v(V_T)}, {v(V_ZERO)}, {s(S_WS,4)}, {s(S_FLAGOUT)} offen sc1')
    A(f's_mov_b64 exec, -1')
    if cfg.get('STAMPS') or cfg.get('TOTAL'):
        A(f's_memtime {s(S_T1,2)}')
        A('s_waitcnt lgkmcnt(0)')
        A(f's_sub_u32 {s(S_T1)}, {s(S_T1)}, {s(S_T0)}')
        sk = A.newlabel('nostamp')
        A(f's_or_b32 {s(S_TMP)}, {s(S_ROLE)}, {s(S_WAVE)}')
        A(f's_cmp_lg_u32 {s(S_TMP)}, 0')
        A(f's_cbranch_scc1 {sk}')
        A(f'v_mov_b32 v14, {s(S_T1)}')
        A(f'v_mov_b32 v15, 0')
        A(f'global_store_dword v15, v14, {s(S_DBG,2)} offset:64')
        for i in range(10 if cfg.get('STAMPS') else 0):
            A(f's_sub_u32 {s(S_TMP)}, {s(64+i)}, {s(64)}')
            A(f'v_mov_b32 v14, {s(S_TMP)}')
            A(f'global_store_dword v15, v14, {s(S_DBG,2)} offset:{68+4*i}')
        A.label(sk)
    A(f's_branch {done}')
```

```python
import sys
from asm import *
from common import *
from chain import *
from roles import *
from roles2 import *
import chain2, chain3

def barrier_arrive(A):
    A('s_waitcnt vmcnt(0)')
    A('s_barrier')
    skip = A.newlabel('gbskip')
    A(f's_cmp_lg_u32 {s(S_WAVE)}, 0')
    A(f's_cbranch_scc1 {skip}')
    A(f's_lshl_b32 {s(S_TMP)}, {s(S_XCC)}, 2')
    A(f'v_mov_b32 v2, {s(S_TMP)}')
    A(f'v_mov_b32 v3, 1')
    A(f's_mov_b64 exec, 1')
    A(f'global_atomic_add v2, v3, {s(S_DBG,2)} offset:{DBG_ARRIVE*4}')
    A(f's_mov_b64 exec, -1')
    A.label(skip)

def barrier_wait(A, vl='v79', sh=0, va=72, vb=73, vz=74):
    re_ = A.newlabel('gbre'); ok = A.newlabel('gbok')
    A(f'v_mov_b32 {v(vz)}, 0')
    tstamp(A, CFG, 100, va, vz)
    A(f's_mov_b32 {s(S_SPIN)}, {SPIN_LIMIT}')
    if sh: A(f'v_lshrrev_b32 {v(va)}, {sh}, {vl}'); A(f'v_and_b32 {v(va)}, 7, {v(va)}')
    else: A(f'v_and_b32 {v(va)}, 7, {vl}')
    A(f'v_lshlrev_b32 {v(va)}, 2, {v(va)}')
    A.label(re_)
    A(f'global_load_dword {v(vb)}, {v(va)}, {s(S_DBG,2)} offset:{DBG_ARRIVE*4} sc1')
    A('s_waitcnt vmcnt(0)')
    A(f'v_readlane_b32 {s(S_TMP)}, {v(vb)}, 0')
    for i in range(1, 8):
        A(f'v_readlane_b32 {s(S_TMP+1)}, {v(vb)}, {i}')
        A(f's_add_u32 {s(S_TMP)}, {s(S_TMP)}, {s(S_TMP+1)}')
    A(f's_cmp_ge_u32 {s(S_TMP)}, 256')
    A(f's_cbranch_scc1 {ok}')
    spin_check(A, re_, 'L_FAIL')
    A.label(ok)
    tstamp(A, CFG, 101, va, vz)

def build(cfg):
    A = Asm()
    CFG.clear(); CFG.update(cfg)
    A.raw(open('cdna_kernels/' + KNAME + '.s.ref').read().split('; Override launch')[0].rstrip('\n'))
    A.raw('; Override launch geometry by editing the next line (default: block=256,')
    A.raw('; @launch grid=(256,1,1) block=(256,1,1) lds=163840')
    A.raw('.amdgcn_target "amdgcn-amd-amdhsa--gfx950"')
    A.raw('.text')
    A.raw(f'.globl {KNAME}_kernel')
    A.raw('.p2align 8')
    A.raw(f'.type {KNAME}_kernel,@function')
    A.raw(f'{KNAME}_kernel:')
    A(f's_cmp_ge_u32 {s(S_WG)}, 256')
    A('s_cbranch_scc1 L_END')
    A(f's_load_dwordx2 {s(S_PTR,2)}, {s(S_KA,2)}, {KA_WS}')
    A(f's_load_dwordx2 {s(S_DBG,2)}, {s(S_KA,2)}, {KA_DBG}')
    if cfg.get('DBGT'): A('s_memrealtime s[94:95]')
    A(f's_getreg_b32 {s(S_XCC)}, hwreg(HW_REG_XCC_ID, 0, 4)')
    A(f'v_lshrrev_b32 v1, 6, v0')
    A(f'v_readfirstlane_b32 {s(S_WAVE)}, v1')
    A('s_waitcnt lgkmcnt(0)')
    srd_from_ptr(A, S_WS, S_PTR, WS_SIZE)
    A(f's_and_b32 {s(S_XCC)}, {s(S_XCC)}, 7')
    sk = A.newlabel('tk')
    A(f's_cmp_lg_u32 {s(S_WAVE)}, 0')
    A(f's_cbranch_scc1 {sk}')
    A(f's_lshl_b32 {s(S_TMP)}, {s(S_XCC)}, 2')
    A(f'v_mov_b32 v2, {s(S_TMP)}')
    A(f'v_mov_b32 v3, 1')
    A(f's_mov_b64 exec, 1')
    A(f'global_atomic_add v4, v2, v3, {s(S_DBG,2)} offset:{DBG_TICKET*4} sc0')
    A('s_waitcnt vmcnt(0)')
    A(f'v_mov_b32 v5, 0')
    A(f'ds_write_b32 v5, v4')
    A(f's_mov_b64 exec, -1')
    A.label(sk)
    A(f's_cmp_ge_u32 {s(S_WG)}, {CLEAR_ONES_WG}')
    A(f's_cselect_b32 {s(S_TMP)}, -1, 0')
    for i in range(4): A(f'v_mov_b32 {v(4+i)}, {s(S_TMP)}')
    A(f's_lshl_b32 {s(S_TMP+1)}, {s(S_WG)}, 13')
    A(f'v_lshlrev_b32 v2, 4, v0')
    A(f'buffer_store_dwordx4 v[4:7], v2, {s(S_WS,4)}, {s(S_TMP+1)} offen sc1')
    A(f's_add_u32 {s(S_TMP+1)}, {s(S_TMP+1)}, 4096')
    A(f'buffer_store_dwordx4 v[4:7], v2, {s(S_WS,4)}, {s(S_TMP+1)} offen sc1')
    A('s_waitcnt lgkmcnt(0)')
    A('s_barrier')
    A(f'v_mov_b32 v5, 0')
    A(f'ds_read_b32 v4, v5')
    A('s_waitcnt lgkmcnt(0)')
    A(f'v_readfirstlane_b32 {s(S_ROLE)}, v4')
    barrier_arrive(A)
    A(f's_cmp_ge_u32 {s(S_ROLE)}, 32')
    A('s_cbranch_scc1 L_FAIL')
    A(f's_lshl_b32 {s(S_TMP)}, {s(S_XCC)}, 5')
    A(f's_add_u32 {s(S_ROLE)}, {s(S_ROLE)}, {s(S_TMP)}')
    cfg['barrier_wait'] = barrier_wait
    cfg['barrier_wait_chain'] = lambda A: barrier_wait(A, 'v0', 4, 8, 9, 10)
    A('v_mov_b32 v74, 0')
    tstamp(A, CFG, 102, 72, 74)
    DONE = 'L_DUMP' if cfg.get('FINE') else 'L_ENDT' if cfg.get('DBGT') else 'L_END'
    only = cfg.get('ONLY')
    T = []
    def add(name, r0, n, l, fn):
        if only is not None and name not in only.split(','): return
        T.append((name, r0, n, l, fn))
    for l in range(2):
        add('chain', R_CHAIN[l], 32, l, 'chain'); add('b1', R_B1[l], 32, l, 'b1')
        add('a1', R_A1[l], N_A1, l, 'a1'); add('atta', R_ATTA[l], N_ATTA, l, 'atta'); add('a3', R_A3[l], N_A3, l, 'a3')
        add('attb', R_ATTB[l], N_ATTB, l, 'attb'); add('b3', R_B3[l], N_B3, l, 'b3')
        add('ra', R_RA[l], 4, l, f'ra{l}'); add('rb', R_RB[l], N_RB, l, f'rb{l}')
    add('r0', R_R0, 4, 0, 'r0')
    for (name, r0, n, l, fn) in T:
        nx = A.newlabel('disp')
        A(f's_sub_u32 {s(S_IDX)}, {s(S_ROLE)}, {r0}')
        A(f's_cmp_ge_u32 {s(S_IDX)}, {n}')
        A(f's_cbranch_scc1 {nx}')
        A(f's_mov_b32 {s(S_L)}, {l}')
        A(f's_branch L_{fn.upper()}')
        A.label(nx)
    A('s_branch L_END')
    role_red = role_red2 if not cfg.get('OLDRED') else globals()['role_red']
    fns = {'chain': lambda: (chain_role if cfg.get('OLDCHAIN') else chain2.chain_role if cfg.get('CHAIN2') else chain3.chain_role)(A, cfg, 'L_FAIL', DONE), 'b1': lambda: role_b1(A, cfg, 'L_FAIL', DONE),
           'a1': lambda: role_a1(A, cfg, 'L_FAIL', DONE), 'atta': lambda: role_atta(A, cfg, 'L_FAIL', DONE),
           'a3': lambda: role_a3(A, cfg, 'L_FAIL', DONE), 'attb': lambda: role_attb(A, cfg, 'L_FAIL', DONE),
           'b3': lambda: role_b3(A, cfg, 'L_FAIL', DONE),
           'ra0': lambda: role_red(A, cfg, 'RA', 0, 'L_FAIL', DONE), 'ra1': lambda: role_red(A, cfg, 'RA', 1, 'L_FAIL', DONE),
           'rb0': lambda: role_red(A, cfg, 'RB', 0, 'L_FAIL', DONE), 'rb1': lambda: role_red(A, cfg, 'RB', 1, 'L_FAIL', DONE),
           'r0': lambda: role_red(A, cfg, 'R0', 0, 'L_FAIL', DONE)}
    seen = []
    for (name, r0, n, l, fn) in T:
        if fn in seen: continue
        seen.append(fn)
        A.raw('.p2align 6')
        A.label(f'L_{fn.upper()}')
        A.flush()
        fns[fn]()
    if cfg.get('FINE'):
        A.label('L_DUMP'); A.flush()
        A('v_mov_b32 v1, 0')
        for i in range(12):
            A(f's_mov_b32 {s(S_TS)}, {s(80+i)}')
            sk = A.newlabel('dmp')
            A(f's_cmp_lg_u32 {s(S_WAVE)}, 0'); A(f's_cbranch_scc1 {sk}')
            A(f's_lshl_b32 {s(S_TS+2)}, {s(S_ROLE)}, 9')
            A(f's_add_u32 {s(S_TS+2)}, {s(S_TS+2)}, {hex(WS_TIME + (110+i)*4)}')
            A(f'v_mov_b32 v2, {s(S_TS)}')
            A('s_mov_b64 exec, 1')
            A(f'buffer_store_dword v2, v1, {s(S_WS,4)}, {s(S_TS+2)} offen')
            A.label(sk)
        A('s_branch L_END')
    A.label('L_FAIL')
    A.flush()
    A(f's_mov_b64 exec, 1')
    A(f'v_mov_b32 v1, 0')
    A(f'v_mov_b32 v2, 0xdead0000')
    A(f'v_or_b32 v2, {s(S_ROLE)}, v2')
    A(f'global_store_dword v1, v2, {s(S_DBG,2)} offset:160')
    A.label('L_END')
    A('s_endpgm')
    A.label('L_ENDT'); A.flush()
    dstamp(A, cfg, 5, 248, None, 10, 11)
    dstamp(A, cfg, 2, 0, None, 10, 11)
    dstamp(A, cfg, 4, 32, None, 10, 11)
    dstamp(A, cfg, 6, 244, None, 10, 11)
    A('s_endpgm')
    A.raw('.section .rodata,"a"')
    A.raw('.p2align 6')
    A.raw(f'.amdhsa_kernel {KNAME}_kernel')
    A.raw('  .amdhsa_next_free_vgpr 512')
    A.raw('  .amdhsa_next_free_sgpr 102')
    A.raw('  .amdhsa_accum_offset 256')
    A.raw('  .amdhsa_group_segment_fixed_size 0')
    A.raw('  .amdhsa_kernarg_size 104')
    A.raw('  .amdhsa_user_sgpr_count 2')
    A.raw('  .amdhsa_user_sgpr_kernarg_segment_ptr 1')
    A.raw('  .amdhsa_system_sgpr_workgroup_id_x 1')
    A.raw('.end_amdhsa_kernel')
    return A

if __name__ == '__main__':
    out = sys.argv[1]
    cfg = {}
    for kv in sys.argv[2:]:
        k, _, val = kv.partition('=')
        cfg[k] = (int(val) if val.lstrip('-').isdigit() else val) if val else 1
    if not cfg.get('RAW'):
        for k in ('PREWAIT1', 'PREWAIT2', 'BAR2', 'NTQ'): cfg.setdefault(k, 1)
    A = build(cfg)
    open(out, 'w').write(A.text())
    print('instrs', A.nins)
```

```python
import re

def v(i, n=1):
    return f"v{i}" if n == 1 else f"v[{i}:{i+n-1}]"
def a(i, n=1):
    return f"a{i}" if n == 1 else f"a[{i}:{i+n-1}]"
def s(i, n=1):
    return f"s{i}" if n == 1 else f"s[{i}:{i+n-1}]"

_reg_re = re.compile(r'^(-|\|)?([vas])(\d+)\|?$')
_rng_re = re.compile(r'^(-|\|)?([vas])\[(\d+):(\d+)\]\|?$')

def regs_of(tok):
    tok = tok.strip()
    m = _reg_re.match(tok)
    if m:
        return {(m.group(2), int(m.group(3)))}
    m = _rng_re.match(tok)
    if m:
        return {(m.group(2), i) for i in range(int(m.group(3)), int(m.group(4)) + 1)}
    if tok in ('vcc', 'vcc_lo', 'vcc_hi'):
        return {('s', 'vcc')}
    if tok in ('exec', 'exec_lo', 'exec_hi'):
        return {('s', 'exec')}
    if tok == 'm0':
        return {('s', 'm0')}
    return set()

TRANS = ('v_exp_f32', 'v_log_f32', 'v_rcp_f32', 'v_rsq_f32', 'v_sqrt_f32', 'v_sin_f32', 'v_cos_f32')

class Ins:
    __slots__ = ('text', 'op', 'dst', 'src', 'kind', 'states', 'dpp', 'srcC', 'wide')
    def __init__(self, text):
        self.text = text
        t = text.split(';')[0].strip()
        parts = t.split(None, 1)
        self.op = op = parts[0]
        rest = parts[1] if len(parts) > 1 else ''
        ops = [x.strip() for x in rest.split(',')] if rest else []
        mods = ''
        if ops:
            last = ops[-1].split(None, 1)
            ops[-1] = last[0]
            mods = last[1] if len(last) > 1 else ''
        self.dpp = ('row_' in mods or 'quad_perm' in mods or 'wave_' in mods or op.endswith('_dpp'))
        self.dst = set(); self.src = set(); self.srcC = set(); self.states = 1; self.wide = False
        R = [regs_of(o) for o in ops]
        allr = set().union(*R) if R else set()
        if op == 's_nop':
            self.kind = 'nop'; self.states = int(ops[0], 0) + 1
        elif op.startswith('v_mfma') or op.startswith('v_smfmac'):
            self.kind = 'mfma'
            self.dst = R[0]; self.src = R[1] | R[2] | R[3]
            self.srcC = R[3] if op.startswith('v_mfma') else R[0]
            if op.startswith('v_smfmac'): self.src |= R[0]
        elif op.startswith('v_cmpx'):
            self.kind = 'valu'; self.dst = {('s', 'exec')} | (R[0] if ops and ops[0].startswith(('s','v'))and len(ops)==3 else set()); self.src = allr
        elif op.startswith('v_cmp'):
            self.kind = 'valu'; self.dst = R[0]; self.src = set().union(*R[1:])
        elif op.startswith('v_permlane') and 'swap' in op:
            self.kind = 'valu'; self.dst = R[0] | R[1]; self.src = R[0] | R[1]
        elif op.startswith('v_'):
            self.kind = 'valu'
            self.dst = R[0]; self.src = set().union(*R[1:]) if len(R) > 1 else set()
            if op.startswith(('v_fmac', 'v_mac', 'v_pk_fmac', 'v_dot2c', 'v_writelane')) or self.dpp:
                self.src |= R[0]
            if op.startswith('v_cndmask') and len(ops) == 3: self.src |= {('s', 'vcc')}
            if op.startswith(('v_add_co', 'v_addc_co', 'v_sub_co', 'v_subb_co')):
                self.dst = R[0] | R[1]; self.src = set().union(*R[2:])
        elif op.startswith(('global_store', 'buffer_store', 'ds_write', 'global_atomic', 'buffer_atomic', 'ds_add', 'ds_max', 'flat_store')):
            self.kind = 'vmem' if not op.startswith('ds_') else 'ds'
            self.src = allr
            ret = (' sc0' in ' ' + mods) and 'atomic' in op
            if ret: self.dst = R[0]
            self.wide = ('x3' in op or 'x4' in op)
        elif op.startswith(('global_load_lds', )) or (op.startswith('buffer_load') and re.search(r'\blds\b', mods)):
            self.kind = 'vmem'; self.src = allr | {('s', 'm0')}
        elif op.startswith(('global_load', 'buffer_load', 'flat_load')):
            self.kind = 'vmem'; self.dst = R[0]; self.src = set().union(*R[1:])
        elif op.startswith('ds_'):
            self.kind = 'ds'; self.dst = R[0]; self.src = set().union(*R[1:]) if len(R) > 1 else set()
        elif op.startswith('s_'):
            self.kind = 'salu'
            if op.startswith(('s_cmp', 's_cbranch', 's_branch', 's_waitcnt', 's_barrier', 's_endpgm', 's_sleep', 's_setprio', 's_bitcmp', 's_setreg')):
                self.src = allr
            else:
                self.dst = R[0] if R else set(); self.src = set().union(*R[1:]) if len(R) > 1 else set()
                if 'saveexec' in op: self.dst |= {('s', 'exec')}
        else:
            raise ValueError('unknown instr ' + text)

def isvreg(r): return r[0] in 'va'

def need(p, c):
    n = 0
    pv = {r for r in p.dst if isvreg(r)}
    ps = {r for r in p.dst if not isvreg(r)}
    if p.kind == 'valu':
        if c.kind == 'mfma' and pv & c.src: n = max(n, 2)
        if c.kind == 'mfma' and ('s', 'exec') in ps: n = max(n, 4)
        if c.kind == 'valu':
            if c.dpp and pv & c.src: n = max(n, 2)
            if c.dpp and ('s', 'exec') in ps: n = max(n, 5)
            if c.op.startswith('v_permlane') and pv & c.src: n = max(n, 2)
            if c.op.startswith('v_permlane') and ('s', 'exec') in ps: n = max(n, 4)
            if c.op.startswith(('v_readlane', 'v_readfirstlane')) and pv & c.src: n = max(n, 1)
            if c.op.startswith(('v_readlane', 'v_readfirstlane', 'v_writelane')) and (ps & c.src or ('s','exec') in ps): n = max(n, 4)
            if p.op.startswith(TRANS) and pv & c.src: n = max(n, 1)
            if ps & c.src: n = max(n, 2)
            if ('sdwa' in p.text or 'op_sel' in p.text) and pv & (c.src | c.dst): n = max(n, 1)
        if c.kind == 'vmem' and (ps & c.src): n = max(n, 5)
        if c.kind == 'salu' and (ps & c.src): n = max(n, 1)
    if p.kind == 'mfma':
        if c.kind == 'mfma':
            ab = c.src - c.srcC if c.srcC else c.src
            if p.dst & c.srcC:
                if p.dst != c.srcC: n = max(n, 6)
            toks = c.text.split(';')[0].split(None, 1)[1].split(',')
            AB = regs_of(toks[1]) | regs_of(toks[2])
            if c.op.startswith('v_smfmac'): AB |= regs_of(toks[3].strip().split()[0])
            if p.dst & AB: n = max(n, 8)
            if p.dst & c.dst and not (p.dst & c.srcC): n = max(n, 6)
        elif c.kind in ('valu', 'vmem', 'ds'):
            if p.dst & (c.src | c.dst): n = max(n, 8)
        if c.kind == 'valu' and p.srcC & c.dst: n = max(n, 3)
    if p.kind == 'vmem' and p.wide:
        if c.kind == 'valu' and p.src & {r for r in c.dst if isvreg(r)}: n = max(n, 2)
        elif c.dst and p.src & {r for r in c.dst if isvreg(r)}: n = max(n, 1)
    if p.kind == 'salu':
        if ('s', 'm0') in p.dst and c.kind in ('vmem', 'ds') and ('s', 'm0') in c.src: n = max(n, 1)
    return n

class Asm:
    def __init__(self):
        self.lines = []
        self.hist = []
        self.nlab = 0
        self.nins = 0
        self.smart = False
        self.saved = None
    def mute(self):
        self.saved = self.lines; self.lines = []
    def unmute(self):
        m = self.lines; self.lines = self.saved; self.saved = None; return m
    def raw(self, t):
        self.lines.append(t)
    def comment(self, t):
        self.lines.append('; ' + t)
    def label(self, name):
        self.lines.append(name + ':')
    def newlabel(self, p='L'):
        self.nlab += 1
        return f'.{p}_{self.nlab}'
    def flush(self):
        self.hist = []
    def __call__(self, text):
        ins = Ins(text)
        req = 0
        dist = 0
        nm = 0; kafter = 0
        for p in reversed(self.hist):
            n = need(p, ins)
            d = dist
            if p.kind == 'mfma' and self.smart:
                if ins.kind == 'mfma': d = max(d, 4*nm + max(3, kafter))
                elif nm: d = max(d, 4*nm + kafter)
            if n - d > req: req = n - d
            dist += p.states
            if p.kind == 'mfma': nm += 1
            elif nm == 0: kafter += p.states
            if dist >= 10: break
        if req > 0:
            nop = Ins(f's_nop {req-1}')
            self.lines.append('\t' + nop.text)
            self.hist.append(nop)
            self.nins += 1
        self.lines.append('\t' + text)
        self.hist.append(ins)
        self.nins += 1
        if len(self.hist) > 24: self.hist = self.hist[-24:]
    def text(self):
        return '\n'.join(self.lines) + '\n'
```

```python
import sys
from asm import *
from common import *
from chain import *
from roles import *
from roles2 import *
import chain2, chain3

def barrier_arrive(A):
    A('s_waitcnt vmcnt(0)')
    A('s_barrier')
    skip = A.newlabel('gbskip')
    A(f's_cmp_lg_u32 {s(S_WAVE)}, 0')
    A(f's_cbranch_scc1 {skip}')
    A(f's_lshl_b32 {s(S_TMP)}, {s(S_XCC)}, 2')
    A(f'v_mov_b32 v2, {s(S_TMP)}')
    A(f'v_mov_b32 v3, 1')
    A(f's_mov_b64 exec, 1')
    A(f'global_atomic_add v2, v3, {s(S_DBG,2)} offset:{DBG_ARRIVE*4}')
    A(f's_mov_b64 exec, -1')
    A.label(skip)

TWIN = {}
def norm(lines):
    import re
    return [re.sub(r'\.[A-Za-z0-9]+_\d+', '.L', x) for x in lines]

def barrier_wait(A, vl='v79', sh=0, va=72, vb=73, vz=74):
    re_ = A.newlabel('gbre'); ok = A.newlabel('gbok')
    A(f'v_mov_b32 {v(vz)}, 0')
    tstamp(A, CFG, 100, va, vz)
    A(f's_mov_b32 {s(S_SPIN)}, {SPIN_LIMIT}')
    if sh: A(f'v_lshrrev_b32 {v(va)}, {sh}, {vl}'); A(f'v_and_b32 {v(va)}, 7, {v(va)}')
    else: A(f'v_and_b32 {v(va)}, 7, {vl}')
    A(f'v_lshlrev_b32 {v(va)}, 2, {v(va)}')
    A.label(re_)
    A(f'global_load_dword {v(vb)}, {v(va)}, {s(S_DBG,2)} offset:{DBG_ARRIVE*4} sc1')
    A('s_waitcnt vmcnt(0)')
    A(f'v_readlane_b32 {s(S_TMP)}, {v(vb)}, 0')
    for i in range(1, 8):
        A(f'v_readlane_b32 {s(S_TMP+1)}, {v(vb)}, {i}')
        A(f's_add_u32 {s(S_TMP)}, {s(S_TMP)}, {s(S_TMP+1)}')
    A(f's_cmp_ge_u32 {s(S_TMP)}, 256')
    A(f's_cbranch_scc1 {ok}')
    spin_check(A, re_, 'L_FAIL')
    A.label(ok)
    tstamp(A, CFG, 101, va, vz)
    tw = TWIN.get('cur')
    if tw:
        name, slow = tw
        if not slow:
            A(f'v_cmp_ne_u32 vcc, 32, {v(vb)}')
            TWIN['pre'] = norm(A.lines[TWIN['start']:])
            A(f's_cbranch_vccnz {name}')
        else:
            A(f'v_cmp_ne_u32 vcc, 32, {v(vb)}')
            m = norm(A.unmute())
            assert m == TWIN['pre'], 'twin prefix differs'
            A.label(name); A.flush()

def build(cfg):
    A = Asm()
    CFG.clear(); CFG.update(cfg)
    JIT[0] = int(cfg.get('JITTER', 0))
    A.raw(open('cdna_kernels/' + KNAME + '.s.ref').read().split('; Override launch')[0].rstrip('\n'))
    A.raw('; Override launch geometry by editing the next line (default: block=256,')
    A.raw('; @launch grid=(256,1,1) block=(256,1,1) lds=163840')
    A.raw('.amdgcn_target "amdgcn-amd-amdhsa--gfx950"')
    A.raw('.text')
    A.raw(f'.globl {KNAME}_kernel')
    A.raw('.p2align 8')
    A.raw(f'.type {KNAME}_kernel,@function')
    A.raw(f'{KNAME}_kernel:')
    A(f's_cmp_ge_u32 {s(S_WG)}, 256')
    A('s_cbranch_scc1 L_END')
    A(f's_load_dwordx2 {s(S_PTR,2)}, {s(S_KA,2)}, {KA_WS}')
    A(f's_load_dwordx2 {s(S_DBG,2)}, {s(S_KA,2)}, {KA_DBG}')
    if cfg.get('DBGT'): A('s_memrealtime s[94:95]')
    A(f's_getreg_b32 {s(S_XCC)}, hwreg(HW_REG_XCC_ID, 0, 4)')
    A(f'v_lshrrev_b32 v1, 6, v0')
    A(f'v_readfirstlane_b32 {s(S_WAVE)}, v1')
    A('s_waitcnt lgkmcnt(0)')
    srd_from_ptr(A, S_WS, S_PTR, WS_SIZE)
    A(f's_and_b32 {s(S_XCC)}, {s(S_XCC)}, 7')
    if cfg.get('FAKEXCC') == 1: A(f's_lshr_b32 {s(S_XCC)}, {s(S_WG)}, 4'); A(f's_min_u32 {s(S_XCC)}, {s(S_XCC)}, 7')
    if cfg.get('FAKEXCC') == 2: A(f's_cmp_eq_u32 {s(S_WG)}, 0'); A(f's_cselect_b32 {s(S_TMP)}, 1, 0'); A(f's_xor_b32 {s(S_XCC)}, {s(S_XCC)}, {s(S_TMP)}')
    sk = A.newlabel('tk')
    A(f's_cmp_lg_u32 {s(S_WAVE)}, 0')
    A(f's_cbranch_scc1 {sk}')
    A(f's_lshl_b32 {s(S_TMP)}, {s(S_XCC)}, 2')
    A(f'v_mov_b32 v2, {s(S_TMP)}')
    A(f'v_mov_b32 v3, 1')
    A(f's_mov_b64 exec, 1')
    A(f'global_atomic_add v4, v2, v3, {s(S_DBG,2)} offset:{DBG_TICKET*4} sc0')
    A('s_waitcnt vmcnt(0)')
    A(f'v_mov_b32 v5, 0')
    A(f'ds_write_b32 v5, v4')
    A(f's_mov_b64 exec, -1')
    A.label(sk)
    A(f's_cmp_ge_u32 {s(S_WG)}, {CLEAR_ONES_WG}')
    A(f's_cselect_b32 {s(S_TMP)}, -1, 0')
    for i in range(4): A(f'v_mov_b32 {v(4+i)}, {s(S_TMP)}')
    A(f's_lshl_b32 {s(S_TMP+1)}, {s(S_WG)}, 13')
    A(f'v_lshlrev_b32 v2, 4, v0')
    A(f'buffer_store_dwordx4 v[4:7], v2, {s(S_WS,4)}, {s(S_TMP+1)} offen sc1')
    A(f's_add_u32 {s(S_TMP+1)}, {s(S_TMP+1)}, 4096')
    A(f'buffer_store_dwordx4 v[4:7], v2, {s(S_WS,4)}, {s(S_TMP+1)} offen sc1')
    A('s_waitcnt lgkmcnt(0)')
    A('s_barrier')
    A(f'v_mov_b32 v5, 0')
    A(f'ds_read_b32 v4, v5')
    A('s_waitcnt lgkmcnt(0)')
    A(f'v_readfirstlane_b32 {s(S_ROLE)}, v4')
    barrier_arrive(A)
    A(f's_cmp_ge_u32 {s(S_ROLE)}, 32')
    A('s_cbranch_scc1 L_OVER')
    A(f's_lshl_b32 {s(S_TMP)}, {s(S_XCC)}, 5')
    A(f's_add_u32 {s(S_ROLE)}, {s(S_ROLE)}, {s(S_TMP)}')
    A.label('L_HAVEROLE'); A.flush()
    cfg['barrier_wait'] = barrier_wait
    cfg['barrier_wait_chain'] = lambda A: barrier_wait(A, 'v0', 4, 8, 9, 10)
    A('v_mov_b32 v74, 0')
    tstamp(A, CFG, 102, 72, 74)
    DONE = 'L_DUMP' if cfg.get('FINE') else 'L_ENDT' if cfg.get('DBGT') else 'L_END'
    only = cfg.get('ONLY')
    T = []
    def add(name, r0, n, l, fn):
        if only is not None and name not in only.split(','): return
        T.append((name, r0, n, l, fn))
    for l in range(2):
        add('chain', R_CHAIN[l], 32, l, 'chain'); add('b1', R_B1[l], 32, l, 'b1')
        add('a1', R_A1[l], N_A1, l, 'a1'); add('atta', R_ATTA[l], N_ATTA, l, 'atta'); add('a3', R_A3[l], N_A3, l, 'a3')
        add('attb', R_ATTB[l], N_ATTB, l, 'attb'); add('b3', R_B3[l], N_B3, l, 'b3')
        add('ra', R_RA[l], 4, l, f'ra{l}'); add('rb', R_RB[l], N_RB, l, f'rb{l}')
    add('r0', R_R0, 4, 0, 'r0')
    for (name, r0, n, l, fn) in T:
        nx = A.newlabel('disp')
        A(f's_sub_u32 {s(S_IDX)}, {s(S_ROLE)}, {r0}')
        A(f's_cmp_ge_u32 {s(S_IDX)}, {n}')
        A(f's_cbranch_scc1 {nx}')
        A(f's_mov_b32 {s(S_L)}, {l}')
        A(f's_branch L_{fn.upper()}')
        A.label(nx)
    A('s_branch L_END')
    role_red = role_red2 if not cfg.get('OLDRED') else globals()['role_red']
    fns = {'chain': lambda: (chain_role if cfg.get('OLDCHAIN') else chain2.chain_role if cfg.get('CHAIN2') else chain3.chain_role)(A, cfg, 'L_FAIL', DONE), 'b1': lambda: role_b1(A, cfg, 'L_FAIL', DONE),
           'a1': lambda: role_a1(A, cfg, 'L_FAIL', DONE), 'atta': lambda: role_atta(A, cfg, 'L_FAIL', DONE),
           'a3': lambda: role_a3(A, cfg, 'L_FAIL', DONE), 'attb': lambda: role_attb(A, cfg, 'L_FAIL', DONE),
           'b3': lambda: role_b3(A, cfg, 'L_FAIL', DONE),
           'ra0': lambda: role_red(A, cfg, 'RA', 0, 'L_FAIL', DONE), 'ra1': lambda: role_red(A, cfg, 'RA', 1, 'L_FAIL', DONE),
           'rb0': lambda: role_red(A, cfg, 'RB', 0, 'L_FAIL', DONE), 'rb1': lambda: role_red(A, cfg, 'RB', 1, 'L_FAIL', DONE),
           'r0': lambda: role_red(A, cfg, 'R0', 0, 'L_FAIL', DONE)}
    seen = []
    for (name, r0, n, l, fn) in T:
        if fn in seen: continue
        seen.append(fn)
        A.raw('.p2align 6')
        A.label(f'L_{fn.upper()}')
        A.flush()
        twin = fn in ('chain', 'a1', 'atta', 'a3', 'attb', 'b3') and not cfg.get('NOTWIN')
        TWIN.clear()
        if twin: TWIN.update(cur=(f'L_{fn.upper()}_DEV', False), start=len(A.lines))
        fns[fn]()
        if twin:
            keys = ('ALLSC1', 'SLOW', 'SLOWV')
            old_ = {k: cfg.get(k) for k in keys}
            for k in keys: cfg[k] = 1; CFG[k] = 1
            TWIN['cur'] = (f'L_{fn.upper()}_DEV', True)
            A.mute(); A.flush()
            fns[fn]()
            assert A.saved is None
            for k in keys:
                for d in (cfg, CFG):
                    if old_[k] is None: d.pop(k, None)
                    else: d[k] = old_[k]
        TWIN.clear()
    if cfg.get('FINE'):
        A.label('L_DUMP'); A.flush()
        A('v_mov_b32 v1, 0')
        for i in range(12):
            A(f's_mov_b32 {s(S_TS)}, {s(80+i)}')
            sk = A.newlabel('dmp')
            A(f's_cmp_lg_u32 {s(S_WAVE)}, 0'); A(f's_cbranch_scc1 {sk}')
            A(f's_lshl_b32 {s(S_TS+2)}, {s(S_ROLE)}, 9')
            A(f's_add_u32 {s(S_TS+2)}, {s(S_TS+2)}, {hex(WS_TIME + (110+i)*4)}')
            A(f'v_mov_b32 v2, {s(S_TS)}')
            A('s_mov_b64 exec, 1')
            A(f'buffer_store_dword v2, v1, {s(S_WS,4)}, {s(S_TS+2)} offen')
            A.label(sk)
        A('s_branch L_END')
    A.label('L_OVER'); A.flush()
    A(f's_mov_b32 {s(S_SPIN)}, {SPIN_LIMIT}')
    A('v_and_b32 v2, 7, v0')
    A('v_lshlrev_b32 v2, 2, v2')
    ore = A.newlabel('ovre'); ook = A.newlabel('ovok')
    A.label(ore)
    A(f'global_load_dword v3, v2, {s(S_DBG,2)} offset:{DBG_ARRIVE*4} sc1')
    A('s_waitcnt vmcnt(0)')
    A(f'v_readlane_b32 {s(S_TMP)}, v3, 0')
    for i in range(1, 8):
        A(f'v_readlane_b32 {s(S_TMP+1)}, v3, {i}')
        A(f's_add_u32 {s(S_TMP)}, {s(S_TMP)}, {s(S_TMP+1)}')
    A(f's_cmp_ge_u32 {s(S_TMP)}, 256')
    A(f's_cbranch_scc1 {ook}')
    spin_check(A, ore, 'L_FAIL')
    A.label(ook); A.flush()
    A(f's_sub_u32 {s(S_ROLE)}, {s(S_ROLE)}, 32')
    for j in range(7):
        A(f'v_readlane_b32 {s(S_TMP)}, v3, {j}')
        A(f's_max_u32 {s(S_TMP)}, {s(S_TMP)}, 32')
        A(f's_sub_u32 {s(S_TMP)}, {s(S_TMP)}, 32')
        A(f's_cmp_gt_u32 {s(S_XCC)}, {j}')
        A(f's_cselect_b32 {s(S_TMP)}, {s(S_TMP)}, 0')
        A(f's_add_u32 {s(S_ROLE)}, {s(S_ROLE)}, {s(S_TMP)}')
    for j in range(8):
        nx = A.newlabel('ovn')
        A(f'v_readlane_b32 {s(S_TMP)}, v3, {j}')
        A(f's_min_u32 {s(S_TMP)}, {s(S_TMP)}, 32')
        A(f's_sub_u32 {s(S_TMP+1)}, 32, {s(S_TMP)}')
        A(f's_cmp_ge_u32 {s(S_ROLE)}, {s(S_TMP+1)}')
        A(f's_cbranch_scc1 {nx}')
        A(f's_add_u32 {s(S_ROLE)}, {s(S_ROLE)}, {s(S_TMP)}')
        A(f's_add_u32 {s(S_ROLE)}, {s(S_ROLE)}, {32*j}')
        A('s_branch L_HAVEROLE')
        A.label(nx)
        A(f's_sub_u32 {s(S_ROLE)}, {s(S_ROLE)}, {s(S_TMP+1)}')
    A.label('L_FAIL')
    A.flush()
    A(f's_mov_b64 exec, 1')
    A(f'v_mov_b32 v1, 0')
    A(f'v_mov_b32 v2, 0xdead0000')
    A(f'v_or_b32 v2, {s(S_ROLE)}, v2')
    A(f'global_store_dword v1, v2, {s(S_DBG,2)} offset:160')
    A.label('L_END')
    A('s_endpgm')
    A.label('L_ENDT'); A.flush()
    dstamp(A, cfg, 5, 248, None, 10, 11)
    dstamp(A, cfg, 2, 0, None, 10, 11)
    dstamp(A, cfg, 4, 32, None, 10, 11)
    dstamp(A, cfg, 6, 244, None, 10, 11)
    A('s_endpgm')
    A.raw('.section .rodata,"a"')
    A.raw('.p2align 6')
    A.raw(f'.amdhsa_kernel {KNAME}_kernel')
    A.raw('  .amdhsa_next_free_vgpr 512')
    A.raw('  .amdhsa_next_free_sgpr 102')
    A.raw('  .amdhsa_accum_offset 256')
    A.raw('  .amdhsa_group_segment_fixed_size 0')
    A.raw('  .amdhsa_kernarg_size 104')
    A.raw('  .amdhsa_user_sgpr_count 2')
    A.raw('  .amdhsa_user_sgpr_kernarg_segment_ptr 1')
    A.raw('  .amdhsa_system_sgpr_workgroup_id_x 1')
    A.raw('.end_amdhsa_kernel')
    return A

if __name__ == '__main__':
    out = sys.argv[1]
    cfg = {}
    for kv in sys.argv[2:]:
        k, _, val = kv.partition('=')
        cfg[k] = (int(val) if val.lstrip('-').isdigit() else val) if val else 1
    if not cfg.get('RAW'):
        for k in ('PREWAIT1', 'PREWAIT2', 'BAR2', 'NTQ'): cfg.setdefault(k, 1)
    A = build(cfg)
    open(out, 'w').write(A.text())
    print('instrs', A.nins)
```

```python
from asm import *
from common import *

S_KA = 0
S_WG = 2
S_WS = 4
S_SRD = 8
S_DBG = 12
S_ROLE = 14
S_WAVE = 15
S_XCC = 16
S_TMP = 17
S_SPIN = 20
S_PTR = 22
S_MODE = 24

MF = 'v_mfma_f32_16x16x32_bf16'
MF16 = 'v_mfma_f32_16x16x16_bf16'

def srd_from_ptr(A, sdst, sptr, size):
    A(f's_mov_b32 {s(sdst)}, {s(sptr)}')
    A(f's_and_b32 {s(sdst+1)}, {s(sptr+1)}, 0xffff')
    A(f's_mov_b32 {s(sdst+2)}, {hex(size)}')
    A(f's_mov_b32 {s(sdst+3)}, 0x00020000')

def load_ptr_srd(A, sdst, ka_off, size):
    A(f's_load_dwordx2 {s(S_PTR,2)}, {s(S_KA,2)}, {ka_off}')
    A('s_waitcnt lgkmcnt(0)')
    srd_from_ptr(A, sdst, S_PTR, size)

L_WO = 0
L_MEM = 147456
L_S = L_MEM + 9216
L_O = L_S + 5120

V_MEMRD, V_WO0, V_WO1, V_SW, V_SRX, V_SRM, V_OW, V_OR, V_PST, V_PLD, V_MST, V_T16, V_T4, V_L16 = range(14)
V_KX = 14
V_VX = 22
V_AV = 30
V_RING = 38
V_AQ = 50
V_QF = 66
V_KF = 70
V_T = 74
V_FLAG = 77
V_ZERO = 78
V_SC = 79
def WQ(t, ks): return a(t*72 + ks*4, 4)
def WK(t, ks):
    i = 144 + t*72 + ks*4
    return a(i, 4) if i < 256 else v(80 + i - 256, 4)
def WV(t, ks): return v(112 + t*72 + ks*4, 4)
def wreg(m, t, ks, half):
    if m == 0: return a(t*72 + ks*4 + 2*half, 2)
    if m == 1:
        i = 144 + t*72 + ks*4 + 2*half
        return a(i, 2) if i < 256 else v(80 + i - 256, 2)
    return v(112 + t*72 + ks*4 + 2*half, 2)

S_H = 26; S_L = 27; S_STEP = 28
S_PL = 30
S_PST = 38
S_PST2 = 49
S_MB0 = 39; S_MB1 = 40
S_MB0b = 41; S_MB1b = 42
S_MB0c = 43; S_MB1c = 44
S_KX = 45
S_KVM = 46
S_FLAGIN = 47
S_FLAGOUT = 48
S_T0 = 50
S_T1 = 52
S_EX8 = 54
S_EXM = 56
S_EXP = 58
S_EXS = 60
S_SOFF = 62
S_M0 = 63

JIT = [0]
def jitter(A):
    if not JIT[0]: return
    lp = A.newlabel('jit'); en = A.newlabel('jite')
    A('s_memtime s[96:97]')
    A('s_waitcnt lgkmcnt(0)')
    A('s_lshr_b32 s96, s96, 3')
    A(f's_and_b32 s96, s96, {JIT[0]}')
    A('s_cmp_lt_u32 s96, 8') if JIT[0] > 15 else None
    A(f's_cbranch_scc0 {en}') if JIT[0] > 15 else None
    A.label(lp)
    A('s_cmp_eq_u32 s96, 0')
    A(f's_cbranch_scc1 {en}')
    A('s_sleep 6')
    A('s_sub_u32 s96, s96, 1')
    A(f's_branch {lp}')
    A.label(en)

def spin_check(A, retry_label, fail_label):
    A(f's_sub_u32 {s(S_SPIN)}, {s(S_SPIN)}, 1')
    A(f's_cmp_lg_u32 {s(S_SPIN)}, 0')
    A(f's_cbranch_scc1 {retry_label}')
    A(f's_branch {fail_label}')

def qkv_loader(A, dord):
    w = s(S_WAVE)
    LN, COL, G, TOK = 79, 78, 77, 76
    A(f'v_lshlrev_b32 v16, 1, {v(G)}')
    A(f'v_xor_b32 v16, v16, {v(COL)}')
    A(f'v_xor_b32 v17, 8, v16')
    A(f'v_lshlrev_b32 v16, 4, v16')
    A(f'v_lshlrev_b32 v17, 4, v17')
    A(f'v_lshlrev_b32 v18, 13, {v(G)}')
    A(f'v_add_u32 v14, v16, v18')
    A(f'v_add_u32 v15, v17, v18')
    A(f'v_lshrrev_b32 v16, 2, {v(COL)}')
    A(f'v_and_b32 v17, 3, {v(COL)}')
    if dord: A(f'v_lshrrev_b32 v18, 1, {v(G)}')
    else: A(f'v_and_b32 v18, 1, {v(G)}')
    A(f'v_lshlrev_b32 v18, 2, v18')
    A(f'v_or_b32 v18, v18, v16')
    A(f'v_lshlrev_b32 v18, 1, v18')
    A(f'v_lshrrev_b32 v19, 1, v17')
    A(f's_lshl_b32 {s(S_TMP)}, {w}, 2')
    A(f'v_add_u32 v19, {s(S_TMP)}, v19')
    A(f'v_and_b32 v17, 1, v17')
    A(f'v_lshlrev_b32 v17, 3, v17')
    A(f'v_lshlrev_b32 v20, {2 if dord else 3}, {v(G)}')
    A(f'v_add_u32 v20, v20, v16')
    A(f'v_lshlrev_b32 v20, 8, v20')
    A(f'v_add_u32 v20, v20, v17')
    A(f'v_xor_b32 v21, v19, v18')
    A(f'v_add_u32 v19, 2, v19')
    A(f'v_xor_b32 v22, v19, v18')
    A(f'v_lshlrev_b32 v21, 4, v21')
    A(f'v_lshlrev_b32 v22, 4, v22')
    A(f'v_add_u32 v21, v21, v20')
    A(f'v_add_u32 v22, v22, v20')
    A(f'v_add_u32 v23, 0x10000, v21')
    A(f'v_add_u32 v24, 0x10000, v22')
    for r in (21, 22, 23, 24):
        A(f'v_add_u32 {v(r+4)}, 73728, {v(r)}')
    KA = [KA_WQ, KA_WK, KA_WV]
    WSZ = 576*4096*2
    def issue_half(hf):
        m, part = hf // 2, hf % 2
        buf = hf % 2
        load_ptr_srd(A, S_SRD, KA[m], WSZ)
        A(f's_lshl_b32 {s(S_SOFF)}, {s(S_H)}, 8')
        A(f's_lshl_b32 {s(S_TMP)}, {w}, 15')
        A(f's_add_u32 {s(S_SOFF)}, {s(S_SOFF)}, {s(S_TMP)}')
        if part: A(f's_add_u32 {s(S_SOFF)}, {s(S_SOFF)}, {288*8192}')
        A(f's_lshl_b32 {s(S_M0)}, {w}, 10')
        if buf: A(f's_add_u32 {s(S_M0)}, {s(S_M0)}, 73728')
        for j in range(18):
            A(f's_mov_b32 m0, {s(S_M0)}')
            A(f'buffer_load_dwordx4 v29, {s(S_SRD,4)}, {s(S_SOFF)} offen lds')
            if j < 17:
                A(f's_add_u32 {s(S_SOFF)}, {s(S_SOFF)}, {16*8192}')
                A(f's_add_u32 {s(S_M0)}, {s(S_M0)}, 4096')
    A(f's_and_b32 {s(S_TMP)}, {w}, 2')
    A(f's_cmp_eq_u32 {s(S_TMP)}, 0')
    A(f's_cselect_b64 vcc, -1, 0')
    A(f'v_cndmask_b32 v29, v15, v14, vcc')
    def consume_half(hf):
        m, part = hf // 2, hf % 2
        buf = hf % 2
        for t in range(2):
            for k in range(9):
                ks = part*9 + k
                for half in range(2):
                    base = (21 + t) if k < 8 else (23 + t)
                    if buf: base += 4
                    off = (k % 8)*8192 + half*(4096 if dord else 1024)
                    A(f'ds_read_b64_tr_b16 {wreg(m, t, ks, half)}, {v(base)} offset:{off}')
                if k % 4 == 3: A('s_waitcnt lgkmcnt(8)')
        A('s_waitcnt lgkmcnt(0)')
    return issue_half, consume_half

S_TS = 96
def tstamp(A, cfg, slot, vt, vzero):
    if not cfg.get('TIME'): return
    if cfg.get('LEAN') and not (isinstance(slot, int) and slot >= 100): return
    sk = A.newlabel('ts')
    A(f's_cmp_lg_u32 {s(S_WAVE)}, 0')
    A(f's_cbranch_scc1 {sk}')
    A(f's_memrealtime {s(S_TS,2)}')
    A(f's_lshl_b32 {s(S_TS+2)}, {s(S_ROLE)}, 9')
    A(f's_add_u32 {s(S_TS+2)}, {s(S_TS+2)}, {hex(WS_TIME)}')
    if isinstance(slot, int): A(f's_add_u32 {s(S_TS+2)}, {s(S_TS+2)}, {slot*4}')
    else:
        A(f's_lshl_b32 {s(S_TS+3)}, {slot}, 2')
        A(f's_add_u32 {s(S_TS+2)}, {s(S_TS+2)}, {s(S_TS+3)}')
    A('s_waitcnt lgkmcnt(0)')
    A(f'v_mov_b32 {v(vt)}, {s(S_TS)}')
    A('s_mov_b64 exec, 1')
    A(f'buffer_store_dword {v(vt)}, {v(vzero)}, {s(S_WS,4)}, {s(S_TS+2)} offen')
    A('s_mov_b64 exec, -1')
    A.label(sk)

def dstamp(A, cfg, slot, role, sreg=None, va=None, vb=None):
    if not cfg.get('DBGT'): return
    sk = A.newlabel('ds')
    A(f's_cmp_lg_u32 {s(S_ROLE)}, {role}'); A(f's_cbranch_scc1 {sk}')
    A(f's_cmp_lg_u32 {s(S_WAVE)}, 0'); A(f's_cbranch_scc1 {sk}')
    if sreg is None:
        A(f's_memrealtime {s(S_TS,2)}'); A('s_waitcnt lgkmcnt(0)'); sreg = S_TS
    A(f'v_mov_b32 {v(va)}, {s(sreg)}'); A(f'v_mov_b32 {v(vb)}, 0')
    A('s_mov_b64 exec, 1')
    A(f'global_store_dword {v(vb)}, {v(va)}, {s(S_DBG,2)} offset:{4*slot}')
    A('s_mov_b64 exec, -1')
    A.label(sk)

def fst(A, cfg, idx, sreg, val=32):
    if not cfg.get('FINE'): return
    sk = A.newlabel('fs')
    A(f's_cmp_lg_u32 {s(sreg)}, {val}')
    A(f's_cbranch_scc1 {sk}')
    A(f's_memrealtime {s(S_TS,2)}')
    A('s_waitcnt lgkmcnt(0)')
    A(f's_mov_b32 {s(80+idx)}, {s(S_TS)}')
    A.label(sk)

def chain_init(A, cfg):
    w = s(S_WAVE)
    LN, COL, G, TOK = 79, 78, 77, 76
    A(f'v_and_b32 {v(LN)}, 63, v0')
    A(f'v_mov_b32 {v(75)}, v0')
    A(f'v_and_b32 {v(COL)}, 15, {v(LN)}')
    A(f'v_lshrrev_b32 {v(G)}, 4, {v(LN)}')
    A(f'v_and_b32 {v(TOK)}, 7, {v(LN)}')
    TID = 75
    issue_half, consume_half = qkv_loader(A, False)
    def issue_wo(buf):
        load_ptr_srd(A, S_SRD, KA_WO, 32*128*576*2)
        A(f's_mul_i32 {s(S_SOFF)}, {s(S_H)}, 147456')
        A(f's_lshl_b32 {s(S_M0)}, {w}, 10')
        if buf: A(f's_add_u32 {s(S_M0)}, {s(S_M0)}, 73728')
        A(f's_add_u32 {s(S_SOFF)}, {s(S_SOFF)}, {s(S_M0)}')
        for j in range(18):
            A(f's_mov_b32 m0, {s(S_M0)}')
            A(f'buffer_load_dwordx4 {v(V_L16)}, {s(S_SRD,4)}, {s(S_SOFF)} offen lds')
            if j < 17:
                A(f's_add_u32 {s(S_SOFF)}, {s(S_SOFF)}, 4096')
                A(f's_add_u32 {s(S_M0)}, {s(S_M0)}, 4096')
    A(f'v_lshlrev_b32 {v(V_L16)}, 4, {v(LN)}')
    issue_half(0)
    issue_half(1)
    for hf in range(6):
        A('s_waitcnt vmcnt(18)')
        A('s_barrier')
        consume_half(hf)
        A('s_barrier')
        if hf + 2 < 6: issue_half(hf + 2)
        else: issue_wo(hf % 2)
    A(f'v_lshrrev_b32 v16, 2, {v(COL)}')
    A(f'v_and_b32 v17, 3, {v(COL)}')
    A(f'v_lshlrev_b32 v18, 2, {v(G)}')
    A(f'v_add_u32 v18, v18, v16')
    A(f'v_mul_u32_u24 v18, 1152, v18')
    A(f'v_lshlrev_b32 v17, 3, v17')
    A(f'v_add_u32 v18, v18, v17')
    A(f's_mul_i32 {s(S_TMP)}, {w}, 288')
    A(f'v_add_u32 v18, {s(S_TMP)}, v18')
    A(f's_mul_i32 {s(S_TMP)}, {w}, 9216')
    A(f'v_add_u32 {v(V_WO0)}, {s(S_TMP)}, {v(V_L16)}')
    A(f'v_add_u32 {v(V_WO1)}, {2*36864}, {v(V_WO0)}')
    A(f'v_mov_b32 v19, {v(V_WO0)}')
    for ks in range(4):
        if ks == 0: A('s_waitcnt vmcnt(18)'); A('s_barrier')
        if ks == 2: A('s_waitcnt vmcnt(0)'); A('s_barrier')
        for t in range(9):
            A(f'ds_read_b64_tr_b16 {v(30+4*t,2)}, v18 offset:{t*32}')
            A(f'ds_read_b64_tr_b16 {v(30+4*t+2,2)}, v18 offset:{t*32 + 16*1152}')
        A('s_waitcnt lgkmcnt(0)')
        A('s_barrier')
        for t in range(9):
            A(f'ds_write_b128 v19, {v(30+4*t,4)} offset:{t*1024}')
        if ks < 3:
            A(f'v_add_u32 v18, 36864, v18')
            A(f'v_add_u32 v19, 36864, v19')
        A('s_waitcnt lgkmcnt(0)')
    A(f'v_lshlrev_b32 v16, 7, {v(G)}')
    A(f'v_lshlrev_b32 v17, 4, {v(TOK)}')
    A(f'v_add_u32 v16, v16, v17')
    A(f's_mul_i32 {s(S_TMP)}, {w}, 1280')
    A(f's_add_u32 {s(S_TMP)}, {s(S_TMP)}, {L_S}')
    A(f'v_add_u32 {v(V_SW)}, {s(S_TMP)}, v16')
    A(f'v_lshrrev_b32 v18, 3, {v(COL)}')
    A(f'v_lshlrev_b32 v18, 9, v18')
    A(f'v_add_u32 v18, v18, v16')
    A(f'v_add_u32 {v(V_SRX)}, {L_S}, v18')
    A(f'v_and_b32 v18, 1, {v(G)}')
    A(f'v_lshlrev_b32 v18, 7, v18')
    A(f'v_add_u32 v18, v18, v17')
    A(f'v_add_u32 {v(V_SRM)}, {L_S+1024}, v18')
    A(f'v_add_u32 {v(V_OR)}, {L_O}, v16')
    A(f's_lshl_b32 {s(S_TMP)}, {w}, 9')
    A(f'v_add_u32 {v(V_OW)}, {s(S_TMP)}, {v(V_OR)}')
    A(f'v_lshrrev_b32 v16, 1, {v(G)}')
    A(f'v_lshlrev_b32 v16, 8, v16')
    A(f'v_lshlrev_b32 v17, 5, {v(TOK)}')
    A(f'v_add_u32 v16, v16, v17')
    A(f'v_and_b32 v17, 1, {v(G)}')
    A(f'v_lshlrev_b32 v17, 4, v17')
    A(f'v_add_u32 v16, v16, v17')
    A(f'v_add_u32 {v(V_MEMRD)}, {L_MEM}, v16')
    A(f'v_lshlrev_b32 v16, 2, {v(TOK)}')
    A(f'v_add_u32 v16, v16, {v(G)}')
    A(f'v_lshlrev_b32 v16, 4, v16')
    A(f's_mul_i32 {s(S_TMP)}, {w}, {288*16}')
    A(f'v_add_u32 {v(V_PST)}, {s(S_TMP)}, v16')
    A(f's_mul_i32 {s(S_TMP)}, {s(S_H)}, 36')
    A(f's_mul_i32 {s(S_TMP+1)}, {w}, 9')
    A(f's_add_u32 {s(S_TMP)}, {s(S_TMP)}, {s(S_TMP+1)}')
    A(f'v_add_u32 v16, {s(S_TMP)}, {v(COL)}')
    A(f'v_mul_u32_u24 v17, 18432, {v(G)}')
    A(f'v_lshlrev_b32 v18, 4, v16')
    A(f'v_add_u32 {v(V_PLD)}, v17, v18')
    A(f'v_lshlrev_b32 v16, 3, v16')
    A(f'v_lshrrev_b32 v17, 1, {v(G)}')
    A(f'v_lshlrev_b32 v17, 2, v17')
    A(f'v_add_u32 {v(V_MST)}, v16, v17')
    A(f'v_lshlrev_b32 {v(V_T16)}, 4, {v(TID)}')
    A(f'v_lshlrev_b32 {v(V_T4)}, 2, {v(TID)}')
    A(f's_mul_i32 {s(S_TMP)}, {s(S_L)}, {PART_STRIDE}')
    A(f's_add_u32 {s(S_TMP)}, {s(S_TMP)}, {WS_PART}')
    for i in range(8):
        A(f's_add_u32 {s(S_PL+i)}, {s(S_TMP)}, {i*73728}')
    A(f's_mul_i32 {s(S_TMP+1)}, {s(S_H)}, 18432')
    A(f's_add_u32 {s(S_PST)}, {s(S_TMP)}, {s(S_TMP+1)}')
    A(f's_add_u32 {s(S_PST2)}, {s(S_PST)}, 4096')
    A(f's_mul_i32 {s(S_TMP)}, {s(S_L)}, {MEMB_STRIDE}')
    A(f's_add_u32 {s(S_MB0)}, {s(S_TMP)}, {WS_MEMB}')
    A(f's_add_u32 {s(S_MB1)}, {s(S_MB0)}, 9216')
    A(f's_add_u32 {s(S_MB0b)}, {s(S_MB0)}, 4096')
    A(f's_add_u32 {s(S_MB1b)}, {s(S_MB1)}, 4096')
    A(f's_add_u32 {s(S_MB0c)}, {s(S_MB0)}, 8192')
    A(f's_add_u32 {s(S_MB1c)}, {s(S_MB1)}, 8192')
    A(f's_mul_i32 {s(S_TMP)}, {s(S_L)}, {QKVX_STRIDE}')
    A(f's_mul_i32 {s(S_TMP+1)}, {s(S_H)}, 24576')
    A(f's_add_u32 {s(S_KX)}, {s(S_TMP)}, {s(S_TMP+1)}')
    A(f's_add_u32 {s(S_KX)}, {s(S_KX)}, {WS_QKVX}')
    A(f's_mul_i32 {s(S_TMP)}, {s(S_L)}, {KVM_STRIDE}')
    A(f's_lshl_b32 {s(S_TMP+1)}, {s(S_H)}, 13')
    A(f's_add_u32 {s(S_KVM)}, {s(S_TMP)}, {s(S_TMP+1)}')
    A(f's_lshl_b32 {s(S_TMP+1)}, {w}, 10')
    A(f's_add_u32 {s(S_KVM)}, {s(S_KVM)}, {s(S_TMP+1)}')
    A(f's_add_u32 {s(S_KVM)}, {s(S_KVM)}, {WS_KVM}')
    A(f's_lshl_b32 {s(S_TMP)}, {s(S_ROLE)}, 7')
    A(f's_lshl_b32 {s(S_TMP+1)}, {w}, 2')
    A(f's_add_u32 {s(S_FLAGOUT)}, {s(S_TMP)}, {s(S_TMP+1)}')
    A(f's_mul_i32 {s(S_TMP)}, {s(S_L)}, {R_B1[1]-R_B1[0]}')
    A(f's_add_u32 {s(S_TMP)}, {s(S_TMP)}, {s(S_H)}')
    A(f's_add_u32 {s(S_TMP)}, {s(S_TMP)}, {R_B1[0]}')
    A(f's_lshl_b32 {s(S_TMP)}, {s(S_TMP)}, 7')
    A(f's_add_u32 {s(S_FLAGIN)}, {s(S_TMP)}, {s(S_TMP+1)}')
    for sr, val in ((S_EX8, 0x00FF00FF00FF00FF), (S_EXM, 0x0000000000FF00FF), (S_EXP, 0x01FF01FF01FF01FF), (S_EXS, 0x000001FF000001FF)):
        A(f's_mov_b32 {s(sr)}, {hex(val & 0xffffffff)}')
        A(f's_mov_b32 {s(sr+1)}, {hex(val >> 32)}')
    load_ptr_srd(A, S_SRD, KA_MEM0, 8*576*2)
    for rnd in range(3):
        A(f'v_add_u32 v16, {256*rnd}, {v(TID)}')
        A(f'v_lshrrev_b32 v17, 4, v16')
        A(f'v_lshlrev_b32 v17, 5, v17')
        A(f'v_bfe_u32 v18, v16, 1, 3')
        A(f'v_mul_u32_u24 v18, 1152, v18')
        A(f'v_add_u32 v17, v17, v18')
        A(f'v_and_b32 v18, 1, v16')
        A(f'v_lshlrev_b32 v18, 4, v18')
        A(f'v_add_u32 v17, v17, v18')
        A(f'v_lshlrev_b32 v16, 4, v16')
        A(f'v_add_u32 v16, {L_MEM}, v16')
        if rnd == 2:
            A(f'v_cmp_gt_u32 vcc, 64, {v(TID)}')
            A(f's_and_saveexec_b64 {s(S_T0,2)}, vcc')
            lab = A.newlabel('skipm'); A(f's_cbranch_execz {lab}')
        A(f'buffer_load_dwordx4 v[20:23], v17, {s(S_SRD,4)}, 0 offen')
        A('s_waitcnt vmcnt(0)')
        A(f'ds_write_b128 v16, v[20:23]')
        if rnd == 2:
            A.label(lab)
            A(f's_mov_b64 exec, -1')
    A('s_waitcnt lgkmcnt(0)')
    A(f'v_mov_b32 {v(V_ZERO)}, 0')
    A(f'v_mov_b32 {v(V_SC)}, {hex(f32((128 ** -0.5) * 1.4426950408889634))}')

def kxvx_load(A):
    w = s(S_WAVE)
    A(f's_lshl_b32 {s(S_TMP)}, {w}, 10')
    A(f's_add_u32 {s(S_TMP)}, {s(S_TMP)}, {s(S_KX)}')
    A(f's_add_u32 {s(S_TMP+1)}, {s(S_TMP)}, 8192')
    A(f's_add_u32 {s(S_TMP+2)}, {s(S_TMP)}, {8192+4096}')
    A(f'buffer_load_dwordx4 {v(V_KX,4)}, {v(V_L16)}, {s(S_WS,4)}, {s(S_TMP+1)} offen')
    A(f'buffer_load_dwordx4 {v(V_KX+4,4)}, {v(V_L16)}, {s(S_WS,4)}, {s(S_TMP+2)} offen')
    A(f's_lshl_b32 {s(S_TMP)}, {w}, 11')
    A(f's_add_u32 {s(S_TMP)}, {s(S_TMP)}, {s(S_KX)}')
    A(f's_add_u32 {s(S_TMP+1)}, {s(S_TMP)}, 16384')
    A(f'buffer_load_dwordx4 {v(V_VX,4)}, {v(V_L16)}, {s(S_WS,4)}, {s(S_TMP+1)} offen')
    A(f'buffer_load_dwordx4 {v(V_VX+4,4)}, {v(V_L16)}, {s(S_WS,4)}, {s(S_TMP+1)} offen offset:1024')
    A(f's_add_u32 {s(S_KX)}, {s(S_KX)}, {32*24576}')

def stamp(A, cfg, idx):
    if not cfg.get('STAMPS'): return
    A(f's_memtime {s(S_T1,2)}')
    A('s_waitcnt lgkmcnt(0)')
    A(f's_mov_b32 {s(64+idx)}, {s(S_T1)}')

def chain_step(A, par, cfg, fail):
    tag = par ^ 1
    st = lambda f, sc1=False: f + (' sc1' if sc1 or cfg.get('SLOW') else '')
    SC = (128 ** -0.5) * 1.4426950408889634
    stamp(A, cfg, 0)
    tstamp(A, cfg, s(S_STEP), V_T, V_ZERO)
    A(f'v_mov_b32 {v(V_T)}, {s(S_STEP)}')
    for k in range(3):
        A(f'ds_read_b128 {v(V_RING+4*k,4)}, {v(V_MEMRD)} offset:{k*512}')
    A(f's_mov_b64 exec, 1')
    A(f'buffer_store_dword {v(V_T)}, {v(V_ZERO)}, {s(S_WS,4)}, {s(S_FLAGOUT)} offen sc1')
    if not cfg.get('NOB1'):
        A(f'buffer_load_dword {v(V_FLAG)}, {v(V_ZERO)}, {s(S_WS,4)}, {s(S_FLAGIN)} offen sc1')
    A(f's_mov_b64 exec, -1')
    aq0, aq1, ak0, ak1 = V_AQ, V_AQ+4, V_AQ+8, V_AQ+12
    for ks in range(18):
        slot = V_RING + 4*(ks % 3)
        A(f's_waitcnt lgkmcnt({min(2, 17-ks)})')
        c = lambda r: '0' if ks == 0 else v(r, 4)
        A(f'{MF} {v(aq0,4)}, {WQ(0,ks)}, {v(slot,4)}, {c(aq0)}')
        A(f'{MF} {v(aq1,4)}, {WQ(1,ks)}, {v(slot,4)}, {c(aq1)}')
        A(f'{MF} {v(ak0,4)}, {WK(0,ks)}, {v(slot,4)}, {c(ak0)}')
        A(f'{MF} {v(ak1,4)}, {WK(1,ks)}, {v(slot,4)}, {c(ak1)}')
        if ks + 3 < 18:
            A(f'ds_read_b128 {v(slot,4)}, {v(V_MEMRD)} offset:{(ks+3)*512}')
    stamp(A, cfg, 1)
    for k in range(3):
        A(f'ds_read_b128 {v(V_RING+4*k,4)}, {v(V_MEMRD)} offset:{k*512}')
    for i in range(2):
        A(f'v_cvt_pk_bf16_f32 {v(V_QF+i)}, {v(aq0+2*i)}, {v(aq0+2*i+1)}')
    for i in range(2):
        A(f'v_cvt_pk_bf16_f32 {v(V_QF+2+i)}, {v(aq1+2*i)}, {v(aq1+2*i+1)}')
    for i in range(2):
        A(f'v_cvt_pk_bf16_f32 {v(V_KF+i)}, {v(ak0+2*i)}, {v(ak0+2*i+1)}')
    for i in range(2):
        A(f'v_cvt_pk_bf16_f32 {v(V_KF+2+i)}, {v(ak1+2*i)}, {v(ak1+2*i+1)}')
    nout = 1 if cfg.get('NOB1') else 2
    A(f's_waitcnt vmcnt({nout})')
    A(f'{MF} {v(aq0,4)}, {v(V_KX,4)}, {v(V_QF,4)}, 0')
    A(f'{MF} {v(aq1,4)}, {v(V_KX+4,4)}, {v(V_QF,4)}, 0')
    A(f'{MF} {v(ak0,4)}, {v(V_KF,4)}, {v(V_QF,4)}, 0')
    A(f'buffer_store_dwordx4 {v(V_KF,4)}, {v(V_L16)}, {s(S_WS,4)}, {s(S_KVM)} offen sc1')
    vks = [0]
    def vm(n):
        for _ in range(n):
            ks = vks[0]
            if ks >= 18: return
            slot = V_RING + 4*(ks % 3)
            A(f's_waitcnt lgkmcnt({min(cfg_l[0], 17-ks) if cfg_l[0]==2 else cfg_l[0]})')
            c = lambda r: '0' if ks == 0 else v(r, 4)
            A(f'{MF} {v(V_AV,4)}, {v(slot,4)}, {WV(0,ks)}, {c(V_AV)}')
            A(f'{MF} {v(V_AV+4,4)}, {v(slot,4)}, {WV(1,ks)}, {c(V_AV+4)}')
            if ks + 3 < 18:
                A(f'ds_read_b128 {v(slot,4)}, {v(V_MEMRD)} offset:{(ks+3)*512}')
            vks[0] += 1
    cfg_l = [2]
    vm(1)
    A(f's_mov_b64 exec, {s(S_EX8,2)}')
    A(f'ds_write_b128 {v(V_SW)}, {v(aq0,4)}')
    A(f'ds_write_b128 {v(V_SW)}, {v(aq1,4)} offset:512')
    A(f's_mov_b64 exec, {s(S_EXM,2)}')
    A(f'ds_write_b128 {v(V_SW)}, {v(ak0,4)} offset:1024')
    A(f's_mov_b64 exec, -1')
    cfg_l[0] = 5; vm(1)
    cfg_l[0] = 5; vm(1)
    A('s_waitcnt lgkmcnt(2)')
    A('s_barrier')
    stamp(A, cfg, 2)
    XR = [V_AQ + 4*i for i in range(4)]
    MR = [V_QF, V_KF, V_KX, V_KX+4]
    for i in range(4):
        A(f'ds_read_b128 {v(XR[i],4)}, {v(V_SRX)} offset:{i*1280}')
        A(f'ds_read_b128 {v(MR[i],4)}, {v(V_SRM)} offset:{i*1280}')
    cfg_l[0] = 10; vm(1)
    cfg_l[0] = 10; vm(1)
    cfg_l[0] = 10; vm(1)
    A('s_waitcnt lgkmcnt(3)')
    stamp(A, cfg, 3)
    cfg_l[0] = 2
    x = XR[0]; m = MR[0]
    for r in range(4):
        A(f'v_add_f32 {v(x+r)}, {v(x+r)}, {v(XR[1]+r)}')
        A(f'v_add_f32 {v(XR[2]+r)}, {v(XR[2]+r)}, {v(XR[3]+r)}')
    for r in range(4):
        A(f'v_add_f32 {v(m+r)}, {v(m+r)}, {v(MR[1]+r)}')
        A(f'v_add_f32 {v(MR[2]+r)}, {v(MR[2]+r)}, {v(MR[3]+r)}')
    vm(1)
    for r in range(4):
        A(f'v_add_f32 {v(x+r)}, {v(x+r)}, {v(XR[2]+r)}')
        A(f'v_add_f32 {v(m+r)}, {v(m+r)}, {v(MR[2]+r)}')
    vm(1)
    T = V_T
    A(f'v_max3_f32 {v(T)}, {v(x)}, {v(x+1)}, {v(x+2)}')
    A(f'v_max3_f32 {v(T+1)}, {v(m)}, {v(m+1)}, {v(m+2)}')
    A(f'v_max3_f32 {v(T)}, {v(T)}, {v(x+3)}, {v(m+3)}')
    A(f'v_max_f32 {v(T)}, {v(T)}, {v(T+1)}')
    vm(1)
    A(f'v_max_f32_dpp {v(T)}, {v(T)}, {v(T)} row_ror:8 row_mask:0xf bank_mask:0xf')
    A(f'v_mov_b32 {v(T+1)}, {v(T)}')
    vm(1)
    A(f'v_permlane16_swap_b32 {v(T)}, {v(T+1)}')
    A(f'v_max_f32 {v(T)}, {v(T)}, {v(T+1)}')
    A(f'v_mov_b32 {v(T+1)}, {v(T)}')
    vm(1)
    A(f'v_permlane32_swap_b32 {v(T)}, {v(T+1)}')
    A(f'v_max_f32 {v(T)}, {v(T)}, {v(T+1)}')
    A(f'v_mul_f32 {v(T)}, {hex(f32(-SC))}, {v(T)}')
    A(f'v_add_f32 {v(T+1)}, -1.0, {v(T)}')
    vm(1)
    for r in range(4):
        A(f'v_fma_f32 {v(x+r)}, {v(x+r)}, {v(V_SC)}, {v(T)}')
        A(f'v_fma_f32 {v(m+r)}, {v(m+r)}, {v(V_SC)}, {v(T+1)}')
    vm(1)
    for r in range(4):
        A(f'v_exp_f32 {v(x+r)}, {v(x+r)}')
        A(f'v_exp_f32 {v(m+r)}, {v(m+r)}')
    vm(3)
    f = XR[1]; pm = XR[2]
    A(f'v_cvt_pk_bf16_f32 {v(f)}, {v(x)}, {v(x+1)}')
    A(f'v_cvt_pk_bf16_f32 {v(f+1)}, {v(x+2)}, {v(x+3)}')
    A(f'v_cvt_pk_bf16_f32 {v(f+2)}, {v(x)}, {v(x+1)}')
    A(f'v_cvt_pk_bf16_f32 {v(f+3)}, {v(x+2)}, {v(x+3)}')
    A(f'v_cvt_pk_bf16_f32 {v(pm)}, {v(m)}, {v(m+1)}')
    A(f'v_cvt_pk_bf16_f32 {v(pm+1)}, {v(m+2)}, {v(m+3)}')
    A(f'v_mov_b32_dpp {v(f+2)}, {v(f)} row_ror:8 row_mask:0xf bank_mask:0x3')
    A(f'v_mov_b32_dpp {v(f+3)}, {v(f+1)} row_ror:8 row_mask:0xf bank_mask:0x3')
    A(f'v_mov_b32_dpp {v(f)}, {v(f)} row_ror:8 row_mask:0xf bank_mask:0xc')
    A(f'v_mov_b32_dpp {v(f+1)}, {v(f+1)} row_ror:8 row_mask:0xf bank_mask:0xc')
    vm(18)
    stamp(A, cfg, 4)
    SUM = XR[3]
    A(f'v_add_f32 {v(SUM)}, {v(x)}, {v(x+1)}')
    A(f'v_add_f32 {v(SUM+1)}, {v(x+2)}, {v(x+3)}')
    A(f'v_add_f32 {v(SUM+2)}, {v(m)}, {v(m+1)}')
    A(f'v_add_f32 {v(SUM+3)}, {v(m+2)}, {v(m+3)}')
    vmf = MR[1]
    for i in range(4):
        A(f'v_cvt_pk_bf16_f32 {v(vmf+i)}, {v(V_AV+2*i)}, {v(V_AV+2*i+1)}')
    o0, o1 = MR[2], MR[3]
    A(f'{MF} {v(o0,4)}, {v(V_VX,4)}, {v(f,4)}, 0')
    A(f'{MF} {v(o1,4)}, {v(V_VX+4,4)}, {v(f,4)}, 0')
    A(f'{MF16} {v(o0,4)}, {v(vmf,2)}, {v(pm,2)}, {v(o0,4)}')
    A(f'{MF16} {v(o1,4)}, {v(vmf+2,2)}, {v(pm,2)}, {v(o1,4)}')
    A(f's_add_u32 {s(S_TMP)}, {s(S_KVM)}, 4096')
    A(f'buffer_store_dwordx4 {v(vmf,4)}, {v(V_L16)}, {s(S_WS,4)}, {s(S_TMP)} offen sc1')
    A(f's_add_u32 {s(S_KVM)}, {s(S_KVM)}, {32*8192}')
    A(f'v_add_f32 {v(SUM)}, {v(SUM)}, {v(SUM+1)}')
    A(f'v_add_f32 {v(SUM+2)}, {v(SUM+2)}, {v(SUM+3)}')
    A(f'v_add_f32_dpp {v(SUM)}, {v(SUM)}, {v(SUM)} row_ror:8 row_mask:0xf bank_mask:0xf')
    A(f'v_add_f32 {v(SUM)}, {v(SUM)}, {v(SUM+2)}')
    A(f'v_mov_b32 {v(SUM+1)}, {v(SUM)}')
    A(f'v_permlane16_swap_b32 {v(SUM)}, {v(SUM+1)}')
    A(f'v_add_f32 {v(SUM)}, {v(SUM)}, {v(SUM+1)}')
    A(f'v_mov_b32 {v(SUM+1)}, {v(SUM)}')
    A(f'v_permlane32_swap_b32 {v(SUM)}, {v(SUM+1)}')
    A(f'v_add_f32 {v(SUM)}, {v(SUM)}, {v(SUM+1)}')
    A(f'v_rcp_f32 {v(SUM)}, {v(SUM)}')
    for r in range(4):
        A(f'v_mul_f32 {v(o0+r)}, {v(o0+r)}, {v(SUM)}')
        A(f'v_mul_f32 {v(o1+r)}, {v(o1+r)}, {v(SUM)}')
    of = XR[0]
    A(f'v_cvt_pk_bf16_f32 {v(of)}, {v(o0)}, {v(o0+1)}')
    A(f'v_cvt_pk_bf16_f32 {v(of+1)}, {v(o0+2)}, {v(o0+3)}')
    A(f'v_cvt_pk_bf16_f32 {v(of+2)}, {v(o1)}, {v(o1+1)}')
    A(f'v_cvt_pk_bf16_f32 {v(of+3)}, {v(o1+2)}, {v(o1+3)}')
    A(f's_mov_b64 exec, {s(S_EX8,2)}')
    A(f'ds_write_b128 {v(V_OW)}, {v(of,4)}')
    A(f's_mov_b64 exec, -1')
    wo_seq = [(t, ks) for t in range(9) for ks in range(4)]
    def wo_read(i):
        t, ks = wo_seq[i]
        base = V_WO0 if ks < 2 else V_WO1
        A(f'ds_read_b128 {v(V_RING+4*(i%3),4)}, {v(base)} offset:{(ks%2)*36864 + t*1024}')
    for i in range(3): wo_read(i)
    if not cfg.get('NOB1'):
        lab_ok = A.newlabel('b1ok'); lab_re = A.newlabel('b1re')
        A('s_waitcnt vmcnt(2)')
        A(f's_add_u32 {s(S_TMP)}, {s(S_STEP)}, 2')
        A(f's_min_u32 {s(S_TMP)}, {s(S_TMP)}, 64')
        A(f's_mov_b64 exec, 1')
        A(f'v_cmp_gt_u32 vcc, {s(S_TMP)}, {v(V_FLAG)}')
        A(f's_cbranch_vccz {lab_ok}')
        A(f's_mov_b32 {s(S_SPIN)}, {SPIN_LIMIT}')
        A.label(lab_re)
        A(f'buffer_load_dword {v(V_FLAG)}, {v(V_ZERO)}, {s(S_WS,4)}, {s(S_FLAGIN)} offen sc1')
        A('s_waitcnt vmcnt(0)')
        A(f'v_cmp_gt_u32 vcc, {s(S_TMP)}, {v(V_FLAG)}')
        A(f's_cbranch_vccz {lab_ok}')
        spin_check(A, lab_re, fail)
        A.label(lab_ok)
        A(f's_mov_b64 exec, -1')
    skipk = A.newlabel('skipk')
    A(f's_cmp_eq_u32 {s(S_STEP)}, 63')
    A(f's_cbranch_scc1 {skipk}')
    kxvx_load(A)
    A.label(skipk)
    A('s_waitcnt lgkmcnt(3)')
    A('s_barrier')
    stamp(A, cfg, 5)
    OF = [V_AQ + 4*i for i in range(4)]
    for kk in range(4):
        A(f'ds_read_b128 {v(OF[kk],4)}, {v(V_OR)} offset:{kk*512}')
    ACC = [V_QF, V_KF, V_AV, V_AV+4]
    A(f's_mov_b64 exec, {s(S_EX8,2)}') if False else None
    nrd = 3
    def tag_store(t):
        acc = ACC[t % 4]
        if tag: A(f'v_or_b32 {v(acc)}, 1, {v(acc)}')
        else:   A(f'v_and_b32 {v(acc)}, -2, {v(acc)}')
        A(f's_mov_b64 exec, {s(S_EX8,2)}')
        if t < 8: A(st(f'buffer_store_dwordx4 {v(acc,4)}, {v(V_PST)}, {s(S_WS,4)}, {s(S_PST)} offen offset:{t*512}'))
        else: A(st(f'buffer_store_dwordx4 {v(acc,4)}, {v(V_PST)}, {s(S_WS,4)}, {s(S_PST2)} offen'))
        A(f's_mov_b64 exec, -1')
    for i, (t, ks) in enumerate(wo_seq):
        if i == 0: A('s_waitcnt lgkmcnt(3)')
        elif i == 1: A('s_waitcnt lgkmcnt(3)')
        elif i == 2: A('s_waitcnt lgkmcnt(3)')
        elif i == 3: A('s_waitcnt lgkmcnt(2)')
        else: A(f's_waitcnt lgkmcnt({min(2, 35-i)})')
        acc = ACC[t % 4]
        A(f'{MF} {v(acc,4)}, {v(V_RING+4*(i%3),4)}, {v(OF[ks],4)}, {"0" if ks==0 else v(acc,4)}')
        if i + 3 < 36: wo_read(i + 3)
        if ks == 3 and t >= 1: tag_store(t - 1)
    tag_store(8)
    stamp(A, cfg, 6)
    PB = [V_RING, V_RING+4, V_RING+8, V_AQ, V_AQ+4, V_AQ+8, V_AQ+12, V_QF]
    lp1 = A.newlabel('hop1')
    A(f's_mov_b32 {s(S_SPIN)}, {SPIN_LIMIT}')
    A(f's_mov_b64 exec, {s(S_EXP,2)}')
    A.label(lp1)
    for i in range(8):
        A(f'buffer_load_dwordx4 {v(PB[i],4)}, {v(V_PLD)}, {s(S_WS,4)}, {s(S_PL+i)} offen sc1')
    A('s_waitcnt vmcnt(0)')
    T = V_T
    if tag:
        A(f'v_and_b32 {v(T)}, {v(PB[0])}, {v(PB[1])}')
        A(f'v_and_b32 {v(T+1)}, {v(PB[2])}, {v(PB[3])}')
        A(f'v_and_b32 {v(T+2)}, {v(PB[4])}, {v(PB[5])}')
        A(f'v_and_b32 {v(T+3)}, {v(PB[6])}, {v(PB[7])}')
        A(f'v_and_b32 {v(T)}, {v(T)}, {v(T+1)}')
        A(f'v_and_b32 {v(T+2)}, {v(T+2)}, {v(T+3)}')
        A(f'v_and_b32 {v(T)}, {v(T)}, {v(T+2)}')
    else:
        A(f'v_or3_b32 {v(T)}, {v(PB[0])}, {v(PB[1])}, {v(PB[2])}')
        A(f'v_or3_b32 {v(T+1)}, {v(PB[3])}, {v(PB[4])}, {v(PB[5])}')
        A(f'v_or3_b32 {v(T)}, {v(T)}, {v(PB[6])}, {v(PB[7])}')
        A(f'v_or_b32 {v(T)}, {v(T)}, {v(T+1)}')
    A(f'v_and_b32 {v(T)}, 1, {v(T)}')
    A(f'v_cmp_ne_u32 vcc, {tag}, {v(T)}')
    lok = A.newlabel('h1ok')
    A(f's_cbranch_vccz {lok}')
    spin_check(A, lp1, fail)
    A.label(lok)
    stamp(A, cfg, 7)
    def padd(d, x_, y_):
        A(f'v_pk_add_f32 {v(d,2)}, {v(x_,2)}, {v(y_,2)}')
    for (d, o_) in ((0,1),(2,3),(4,5),(6,7),(0,2),(4,6),(0,4)):
        padd(PB[d], PB[d], PB[o_]); padd(PB[d]+2, PB[d]+2, PB[o_]+2)
    X = PB[0]
    A(f's_mov_b64 exec, -1')
    A(f'v_permlane32_swap_b32 {v(X)}, {v(X+2)}')
    A(f'v_permlane32_swap_b32 {v(X+1)}, {v(X+3)}')
    A(f'v_add_f32 {v(X)}, {v(X)}, {v(X+2)}')
    A(f'v_add_f32 {v(X+1)}, {v(X+1)}, {v(X+3)}')
    A(f'v_mov_b32 {v(X+2)}, {v(X)}')
    A(f'v_mov_b32 {v(X+3)}, {v(X+1)}')
    A(f'v_permlane16_swap_b32 {v(X)}, {v(X+2)}')
    A(f'v_permlane16_swap_b32 {v(X+1)}, {v(X+3)}')
    A(f'v_add_f32 {v(X)}, {v(X)}, {v(X+2)}')
    A(f'v_add_f32 {v(X+1)}, {v(X+1)}, {v(X+3)}')
    A(f'v_cvt_pk_bf16_f32 {v(X)}, {v(X)}, {v(X+1)}')
    A(f'v_mov_b32 {v(X+1)}, -1')
    new = [S_MB0, S_MB1][par ^ 1]; old = [S_MB0, S_MB1][par]
    A(f's_mov_b64 exec, {s(S_EXS,2)}')
    A(st(f'buffer_store_dword {v(X)}, {v(V_MST)}, {s(S_WS,4)}, {s(new)} offen'))
    A(st(f'buffer_store_dword {v(X+1)}, {v(V_MST)}, {s(S_WS,4)}, {s(old)} offen'))
    A(f's_mov_b64 exec, -1')
    stamp(A, cfg, 8)
    nb = [(S_MB0, S_MB0b, S_MB0c), (S_MB1, S_MB1b, S_MB1c)][par ^ 1]
    lp2 = A.newlabel('hop2')
    A(f's_mov_b32 {s(S_SPIN)}, {SPIN_LIMIT}')
    A.label(lp2)
    M0r, M1r, M2r = V_AQ, V_AQ+4, V_AQ+8
    A(f'buffer_load_dwordx4 {v(M0r,4)}, {v(V_T16)}, {s(S_WS,4)}, {s(nb[0])} offen sc1')
    A(f'buffer_load_dwordx4 {v(M1r,4)}, {v(V_T16)}, {s(S_WS,4)}, {s(nb[1])} offen sc1')
    A(f'buffer_load_dword {v(M2r)}, {v(V_T4)}, {s(S_WS,4)}, {s(nb[2])} offen sc1')
    A('s_waitcnt vmcnt(0)')
    A(f'v_max3_u32 {v(T)}, {v(M0r)}, {v(M0r+1)}, {v(M0r+2)}')
    A(f'v_max3_u32 {v(T+1)}, {v(M0r+3)}, {v(M1r)}, {v(M1r+1)}')
    A(f'v_max3_u32 {v(T+2)}, {v(M1r+2)}, {v(M1r+3)}, {v(M2r)}')
    A(f'v_max3_u32 {v(T)}, {v(T)}, {v(T+1)}, {v(T+2)}')
    A(f'v_cmp_eq_u32 vcc, -1, {v(T)}')
    lok2 = A.newlabel('h2ok')
    A(f's_cbranch_vccz {lok2}')
    spin_check(A, lp2, fail)
    A.label(lok2)
    A(f'v_add_u32 {v(T)}, {L_MEM}, {v(V_T16)}')
    A(f'v_add_u32 {v(T+1)}, {L_MEM+8192}, {v(V_T4)}')
    A(f'ds_write_b128 {v(T)}, {v(M0r,4)}')
    A(f'ds_write_b128 {v(T)}, {v(M1r,4)} offset:4096')
    A(f'ds_write_b32 {v(T+1)}, {v(M2r)}')
    A('s_waitcnt lgkmcnt(0)')
    A('s_barrier')
    stamp(A, cfg, 9)
    A(f's_add_u32 {s(S_STEP)}, {s(S_STEP)}, 1')

import struct
def f32(x): return struct.unpack('<I', struct.pack('<f', x))[0]

def chain_role(A, cfg, fail, done):
    chain_init(A, cfg)
    cfg['barrier_wait'](A)
    if not cfg.get('NOB1'):
        lab_re = A.newlabel('b1first'); lab_ok = A.newlabel('b1fok')
        A(f's_mov_b32 {s(S_SPIN)}, {SPIN_LIMIT}')
        A.label(lab_re)
        A(f'buffer_load_dword {v(V_FLAG)}, {v(V_ZERO)}, {s(S_WS,4)}, {s(S_FLAGIN)} offen sc1')
        A('s_waitcnt vmcnt(0)')
        A(f'v_cmp_gt_u32 vcc, 1, {v(V_FLAG)}')
        A(f's_cbranch_vccz {lab_ok}')
        spin_check(A, lab_re, fail)
        A.label(lab_ok)
    kxvx_load(A)
    A(f's_mov_b32 {s(S_STEP)}, 0')
    A('s_barrier')
    if cfg.get('STAMPS') or cfg.get('TOTAL'):
        A(f's_memtime {s(S_T0,2)}')
        A('s_waitcnt lgkmcnt(0)')
    loop = A.newlabel('chainloop')
    A.label(loop)
    chain_step(A, 0, cfg, fail)
    chain_step(A, 1, cfg, fail)
    A(f's_cmp_lt_u32 {s(S_STEP)}, 64')
    A(f's_cbranch_scc1 {loop}')
    tstamp(A, cfg, 64, V_T, V_ZERO)
    A(f'v_mov_b32 {v(V_T)}, {s(S_STEP)}')
    A(f's_mov_b64 exec, 1')
    A(f'buffer_store_dword {v(V_T)}, {v(V_ZERO)}, {s(S_WS,4)}, {s(S_FLAGOUT)} offen sc1')
    A(f's_mov_b64 exec, -1')
    if cfg.get('STAMPS') or cfg.get('TOTAL'):
        A(f's_memtime {s(S_T1,2)}')
        A('s_waitcnt lgkmcnt(0)')
        A(f's_sub_u32 {s(S_T1)}, {s(S_T1)}, {s(S_T0)}')
        sk = A.newlabel('nostamp')
        A(f's_or_b32 {s(S_TMP)}, {s(S_ROLE)}, {s(S_WAVE)}')
        A(f's_cmp_lg_u32 {s(S_TMP)}, 0')
        A(f's_cbranch_scc1 {sk}')
        A(f'v_mov_b32 v14, {s(S_T1)}')
        A(f'v_mov_b32 v15, 0')
        A(f'global_store_dword v15, v14, {s(S_DBG,2)} offset:64')
        for i in range(10 if cfg.get('STAMPS') else 0):
            A(f's_sub_u32 {s(S_TMP)}, {s(64+i)}, {s(64)}')
            A(f'v_mov_b32 v14, {s(S_TMP)}')
            A(f'global_store_dword v15, v14, {s(S_DBG,2)} offset:{68+4*i}')
        A.label(sk)
    A(f's_branch {done}')
```

```python
from asm import *
from common import *
from chain import (init_signal, init_defer, jitter, dstamp, S_KA, S_WG, S_WS, S_SRD, S_DBG, S_ROLE, S_WAVE, S_XCC, S_TMP, S_SPIN, S_PTR, S_MODE, MF, MF16,
                   srd_from_ptr, load_ptr_srd, spin_check, tstamp, fst, f32, S_SOFF, S_M0, S_TS)

SM = 'v_smfmac_f32_16x16x64_bf16'
L_MEM = 0
L_QK = 9216
L_O = 13312
L_KX = 15360
L_VX = L_KX + 8192
L_WO = 31744
L_STG = 16384

V_L16, V_L8, V_IDX, V_PLD, V_MST, V_QKW, V_OW, V_FLAG = range(8)
M = lambda k: 8 + 4*k
AQ0, AQ1, AK0, AK1, AV0 = 44, 48, 52, 56, 60
AV1 = AQ0
def WQ(t, ks): f = t*9 + ks; return a(8*f, 8)
def WK(t, ks):
    f = 18 + t*9 + ks
    return a(8*f, 8) if f < 32 else v(64 + 8*(f-32), 8)
def WV(t, ks): return v(96 + 72*t + 8*ks, 8)
def WOR(ks): return v(240 + 8*ks, 8)
def wsub(m, t, ks, i4):
    if m == 0: return a(8*(t*9+ks) + 2*i4, 2)
    if m == 1:
        f = 18 + t*9 + ks
        return a(8*f + 2*i4, 2) if f < 32 else v(64 + 8*(f-32) + 2*i4, 2)
    return v(96 + 72*t + 8*ks + 2*i4, 2)

S_H = 26; S_L = 27; S_STEP = 28
S_PL = 30
S_PST = 38; S_PST2 = 39
S_MSA = 40
S_MSB = 42
S_ML = 44
S_FLAGIN = 50; S_FLAGOUT = 51
S_KX = 52; S_KVM = 53
S_EXO = 54
S_EXS = 56
S_SC = 58
S_NSC = 60
S_HAS2 = 61
S_W1024 = 64; S_W256 = 65; S_VXO = 66; S_WBO = 67; S_KXM0 = 68; S_KVM2 = 69
S_T0 = 70
S_T1 = 72
S_MSK = 74
S_M1 = 76
S_ONE = 78
S_ST = 80

class LQ:
    def __init__(self, A): self.A = A; self.q = []
    def op(self, text, tag=None):
        self.A(text); self.q.append(tag if tag is not None else object())
    def wait(self, *tags):
        idx = [i for i, t in enumerate(self.q) if t in tags]
        if not idx: return
        i = max(idx)
        n = len(self.q) - 1 - i
        self.A(f's_waitcnt lgkmcnt({min(n, 15)})')
        keep = min(n, 15)
        self.q = self.q[len(self.q)-keep:] if keep else []
    def waitall(self):
        self.A('s_waitcnt lgkmcnt(0)'); self.q = []

def stamp(A, cfg, idx):
    if not cfg.get('STAMPS'): return
    A(f's_memtime {s(S_T1,2)}')
    A('s_waitcnt lgkmcnt(0)')
    A(f's_mov_b32 {s(S_ST+idx)}, {s(S_T1)}')

def chain_init(A, cfg):
    w = s(S_WAVE)
    init_defer(A, cfg, 'L_FAIL')
    TID, LN, COL, G = 63, 62, 61, 60
    A(f'v_mov_b32 {v(TID)}, v0')
    A(f'v_and_b32 {v(LN)}, 63, v0')
    A(f'v_and_b32 {v(COL)}, 15, {v(LN)}')
    A(f'v_lshrrev_b32 {v(G)}, 4, {v(LN)}')
    A(f'v_lshlrev_b32 v10, 1, {v(G)}')
    A(f'v_xor_b32 v10, v10, {v(COL)}')
    A(f'v_xor_b32 v11, 8, v10')
    A(f'v_lshlrev_b32 v10, 4, v10')
    A(f'v_lshlrev_b32 v11, 4, v11')
    A(f'v_lshlrev_b32 v12, 13, {v(G)}')
    A(f'v_add_u32 v8, v10, v12')
    A(f'v_add_u32 v9, v11, v12')
    A(f'v_lshlrev_b32 v12, 17, {v(G)}')
    A(f'v_add_u32 v26, v10, v12')
    A(f'v_add_u32 v27, v11, v12')
    A(f'v_lshrrev_b32 v10, 2, {v(COL)}')
    A(f'v_and_b32 v11, 3, {v(COL)}')
    A(f'v_and_b32 v12, 1, {v(G)}')
    A(f'v_lshlrev_b32 v12, 2, v12')
    A(f'v_or_b32 v12, v12, v10')
    A(f'v_lshlrev_b32 v12, 1, v12')
    A(f'v_lshrrev_b32 v13, 1, v11')
    A(f's_lshl_b32 {s(S_TMP)}, {w}, 2')
    A(f'v_add_u32 v13, {s(S_TMP)}, v13')
    A(f'v_and_b32 v11, 1, v11')
    A(f'v_lshlrev_b32 v11, 3, v11')
    A(f'v_lshlrev_b32 v14, 4, {v(G)}')
    A(f'v_add_u32 v14, v14, v10')
    A(f'v_lshlrev_b32 v14, 8, v14')
    A(f'v_add_u32 v14, v14, v11')
    A(f'v_xor_b32 v15, v13, v12')
    A(f'v_add_u32 v13, 2, v13')
    A(f'v_xor_b32 v16, v13, v12')
    A(f'v_lshlrev_b32 v15, 4, v15')
    A(f'v_lshlrev_b32 v16, 4, v16')
    A(f'v_add_u32 v15, v15, v14')
    A(f'v_add_u32 v16, v16, v14')
    BUF = [L_STG + 49152*b for b in range(3)]
    TR = lambda b, t: 20 + 2*b + t
    for b in range(3):
        A(f'v_add_u32 {v(TR(b,0))}, {BUF[b]}, v15')
        A(f'v_add_u32 {v(TR(b,1))}, {BUF[b]}, v16')
    KA = [KA_WQ, KA_WK, KA_WV]
    WSZ = 576*4096*2
    def issue_part(p):
        m, part = p // 3, p % 3
        load_ptr_srd(A, S_SRD, KA[m], WSZ)
        A(f's_lshl_b32 {s(S_T0)}, {s(S_H)}, 8')
        A(f's_lshl_b32 {s(S_M0)}, {w}, 10')
        A(f's_add_u32 {s(S_M0)}, {s(S_M0)}, {BUF[p % 3]}')
        for j in range(12):
            b = part*3 + (j >> 2)
            if b < 8:
                row = 144*(b >> 1) + 16 + 64*(b & 1) + 4*(j & 3)
                A(f's_lshl_b32 {s(S_SOFF)}, {w}, 13')
                vreg = 26 + (j & 1)
            else:
                row = 144*(j & 3)
                A(f's_lshl_b32 {s(S_SOFF)}, {w}, 15')
                vreg = 8 + (j & 1)
            A(f's_add_u32 {s(S_SOFF)}, {s(S_SOFF)}, {s(S_T0)}')
            if row: A(f's_add_u32 {s(S_SOFF)}, {s(S_SOFF)}, {row*8192}')
            A(f's_mov_b32 m0, {s(S_M0)}')
            A(f'buffer_load_dwordx4 {v(vreg)}, {s(S_SRD,4)}, {s(S_SOFF)} offen lds')
            if j < 11: A(f's_add_u32 {s(S_M0)}, {s(S_M0)}, 4096')
    def consume_part(p):
        m, part = p // 3, p % 3
        n = 0
        for t in range(2):
            for k in range(3):
                for i4 in range(4):
                    A(f'ds_read_b64_tr_b16 {wsub(m, t, part*3+k, i4)}, {v(TR(p % 3, t))} offset:{k*16384 + i4*1024}')
                    n += 1
                    if n % 8 == 0 and n < 24: A('s_waitcnt lgkmcnt(8)')
        A('s_waitcnt lgkmcnt(0)')
    def issue_wo(k):
        load_ptr_srd(A, S_SRD, KA_WO, 32*128*576*2)
        A(f's_mul_i32 {s(S_SOFF)}, {s(S_H)}, 147456')
        A(f's_lshl_b32 {s(S_M0)}, {w}, 10')
        A(f's_add_u32 {s(S_SOFF)}, {s(S_SOFF)}, {s(S_M0)}')
        if k: A(f's_add_u32 {s(S_SOFF)}, {s(S_SOFF)}, {k*36864}')
        A(f's_add_u32 {s(S_M0)}, {s(S_M0)}, {L_STG + k*36864}')
        for j in range(9):
            A(f's_mov_b32 m0, {s(S_M0)}')
            A(f'buffer_load_dwordx4 {v(V_L16)}, {s(S_SRD,4)}, {s(S_SOFF)} offen lds')
            if j < 8:
                A(f's_add_u32 {s(S_SOFF)}, {s(S_SOFF)}, 4096')
                A(f's_add_u32 {s(S_M0)}, {s(S_M0)}, 4096')
    A(f'v_lshlrev_b32 {v(V_L16)}, 4, {v(LN)}')
    A(f'v_lshlrev_b32 {v(V_L8)}, 3, {v(LN)}')
    for p in range(3): issue_part(p)
    pend = [12, 12, 12]
    for p in range(9):
        A(f's_waitcnt vmcnt({sum(pend[1:])})')
        pend = pend[1:]
        A('s_barrier')
        consume_part(p)
        A('s_barrier')
        if p + 3 < 9: issue_part(p + 3); pend.append(12)
        elif p == 6: issue_wo(0); pend.append(9)
        elif p == 7: issue_wo(1); pend.append(9)
        elif p == 8: issue_wo(2); issue_wo(3)
    A(f'v_lshrrev_b32 v10, 2, {v(COL)}')
    A(f'v_and_b32 v11, 3, {v(COL)}')
    A(f'v_lshlrev_b32 v12, 2, {v(G)}')
    A(f'v_add_u32 v12, v12, v10')
    A(f'v_mul_u32_u24 v12, 1152, v12')
    A(f'v_lshlrev_b32 v11, 3, v11')
    A(f'v_add_u32 v12, v12, v11')
    A(f's_mul_i32 {s(S_TMP)}, {w}, 288')
    A(f's_add_u32 {s(S_TMP)}, {s(S_TMP)}, {L_STG + 3*36864}')
    A(f'v_add_u32 v12, {s(S_TMP)}, v12')
    A(f's_lshl_b32 {s(S_WBO)}, {w}, 13')
    A(f's_add_u32 {s(S_WBO)}, {s(S_WBO)}, {L_WO}')
    A(f's_add_u32 {s(S_TMP)}, {s(S_WBO)}, {3*32768}')
    A(f'v_add_u32 v13, {s(S_TMP)}, {v(V_L16)}')
    A('s_waitcnt vmcnt(0)')
    A('s_barrier')
    init_signal(A, cfg, 20, 21)
    for k in (3, 2, 1, 0):
        for t in range(9):
            d = 240 + 4*k if t == 0 else 20 + 4*t
            A(f'ds_read_b64_tr_b16 {v(d,2)}, v12 offset:{t*32}')
            A(f'ds_read_b64_tr_b16 {v(d+2,2)}, v12 offset:{t*32 + 16*1152}')
        A('s_waitcnt lgkmcnt(0)')
        A('s_barrier')
        for t in range(1, 9):
            A(f'ds_write_b128 v13, {v(20+4*t,4)} offset:{(t-1)*1024}')
        if k:
            A(f'v_subrev_u32 v12, 36864, v12')
            A(f'v_subrev_u32 v13, 32768, v13')
        A('s_waitcnt lgkmcnt(0)')
    A(f'v_and_b32 v10, 2, {v(LN)}')
    A(f'v_cmp_eq_u32 vcc, 0, v10')
    A(f'v_mov_b32 v11, 0xeeeeeeee')
    A(f'v_mov_b32 v12, 0x44444444')
    A(f'v_cndmask_b32 {v(V_IDX)}, v11, v12, vcc')
    A(f's_lshl_b32 {s(S_W1024)}, {w}, 10')
    A(f's_lshl_b32 {s(S_W256)}, {w}, 8')
    A(f'v_lshlrev_b32 v10, 5, {v(COL)}')
    A(f'v_lshlrev_b32 v11, 3, {v(G)}')
    A(f'v_add_u32 v10, v10, v11')
    A(f's_add_u32 {s(S_TMP)}, {s(S_W1024)}, {L_QK}')
    A(f'v_add_u32 {v(V_QKW)}, {s(S_TMP)}, v10')
    A(f'v_lshrrev_b32 v10, 1, {v(G)}'); A(f'v_lshlrev_b32 v10, 8, v10')
    A(f'v_and_b32 v11, 1, {v(G)}'); A(f'v_lshlrev_b32 v11, 3, v11')
    A(f'v_add_u32 v10, v10, v11')
    A(f'v_lshlrev_b32 v11, 4, {v(COL)}')
    A(f'v_add_u32 v10, v10, v11')
    A(f's_lshl_b32 {s(S_TMP)}, {w}, 9')
    A(f's_add_u32 {s(S_TMP)}, {s(S_TMP)}, {L_O - 32}')
    A(f'v_add_u32 {v(V_OW)}, {s(S_TMP)}, v10')
    A(f'v_lshrrev_b32 v10, 3, {v(LN)}'); A(f'v_mul_u32_u24 v10, 9216, v10')
    A(f'v_and_b32 v11, 7, {v(LN)}'); A(f'v_lshlrev_b32 v12, 4, v11')
    A(f'v_add_u32 {v(V_PLD)}, v10, v12')
    A(f'v_bfe_u32 v12, v11, 1, 1'); A(f'v_lshlrev_b32 v10, 9, v12')
    A(f'v_bfe_u32 v12, {v(LN)}, 3, 1'); A(f'v_lshlrev_b32 v12, 5, v12'); A(f'v_add_u32 v10, v10, v12')
    A(f'v_bfe_u32 v12, {v(LN)}, 4, 1'); A(f'v_lshlrev_b32 v12, 4, v12'); A(f'v_add_u32 v10, v10, v12')
    A(f'v_and_b32 v12, 1, v11'); A(f'v_lshlrev_b32 v12, 2, v12'); A(f'v_add_u32 v10, v10, v12')
    A(f'v_lshrrev_b32 v12, 5, {v(LN)}'); A(f'v_lshlrev_b32 v12, 14, v12'); A(f'v_add_u32 v10, v10, v12')
    A(f'v_lshrrev_b32 v12, 2, v11')
    A(f's_cmp_eq_u32 {w}, 1')
    A(f's_cselect_b32 {s(S_TMP)}, 6, 3')
    A(f'v_lshlrev_b32 v12, {s(S_TMP)}, v12')
    A(f'v_add_u32 v10, v10, v12')
    A(f's_lshr_b32 {s(S_TMP)}, {s(S_H)}, 3'); A(f's_lshl_b32 {s(S_TMP)}, {s(S_TMP)}, 1')
    A(f's_and_b32 {s(S_TMP+1)}, {w}, 1'); A(f's_add_u32 {s(S_TMP)}, {s(S_TMP)}, {s(S_TMP+1)}')
    A(f's_lshl_b32 {s(S_TMP)}, {s(S_TMP)}, 10')
    A(f's_and_b32 {s(S_TMP+1)}, {s(S_H)}, 1'); A(f's_lshl_b32 {s(S_TMP+1)}, {s(S_TMP+1)}, 8'); A(f's_add_u32 {s(S_TMP)}, {s(S_TMP)}, {s(S_TMP+1)}')
    A(f's_bfe_u32 {s(S_TMP+1)}, {s(S_H)}, 0x20001'); A(f's_lshl_b32 {s(S_TMP+1)}, {s(S_TMP+1)}, 6'); A(f's_add_u32 {s(S_TMP)}, {s(S_TMP)}, {s(S_TMP+1)}')
    A(f's_bfe_u32 {s(S_TMP+1)}, {s(S_H)}, 0x10002'); A(f's_lshl_b32 {s(S_TMP+1)}, {s(S_TMP+1)}, 8')
    A(f's_and_b32 {s(S_TMP+2)}, {s(S_H)}, 1'); A(f's_lshl_b32 {s(S_TMP+2)}, {s(S_TMP+2)}, 7'); A(f's_add_u32 {s(S_TMP+1)}, {s(S_TMP+1)}, {s(S_TMP+2)}')
    A(f's_bfe_u32 {s(S_TMP+2)}, {s(S_H)}, 0x10001'); A(f's_lshl_b32 {s(S_TMP+2)}, {s(S_TMP+2)}, 3'); A(f's_add_u32 {s(S_TMP+1)}, {s(S_TMP+1)}, {s(S_TMP+2)}')
    A(f's_add_u32 {s(S_TMP+1)}, {s(S_TMP+1)}, 8192')
    A(f's_cmp_eq_u32 {w}, 1')
    A(f's_cselect_b32 {s(S_TMP)}, {s(S_TMP+1)}, {s(S_TMP)}')
    A(f'v_add_u32 {v(V_MST)}, {s(S_TMP)}, v10')
    A(f's_mul_i32 {s(S_TMP)}, {s(S_L)}, {PART_STRIDE}')
    A(f's_add_u32 {s(S_TMP)}, {s(S_TMP)}, {WS_PART}')
    A(f's_lshr_b32 {s(S_TMP+1)}, {s(S_H)}, 3'); A(f's_mul_i32 {s(S_TMP+1)}, {s(S_TMP+1)}, 2304')
    A(f's_and_b32 {s(S_TMP+2)}, {w}, 1'); A(f's_lshl_b32 {s(S_TMP+2)}, {s(S_TMP+2)}, 10'); A(f's_add_u32 {s(S_TMP+1)}, {s(S_TMP+1)}, {s(S_TMP+2)}')
    A(f's_and_b32 {s(S_TMP+2)}, {s(S_H)}, 7'); A(f's_lshl_b32 {s(S_TMP+2)}, {s(S_TMP+2)}, 7'); A(f's_add_u32 {s(S_TMP+1)}, {s(S_TMP+1)}, {s(S_TMP+2)}')
    A(f's_add_u32 {s(S_TMP+1)}, {s(S_TMP+1)}, 256')
    A(f's_bfe_u32 {s(S_PL)}, {s(S_H)}, 0x20001'); A(f's_mul_i32 {s(S_PL)}, {s(S_PL)}, 2304')
    A(f's_and_b32 {s(S_TMP+2)}, {s(S_H)}, 1'); A(f's_lshl_b32 {s(S_TMP+2)}, {s(S_TMP+2)}, 7'); A(f's_add_u32 {s(S_PL)}, {s(S_PL)}, {s(S_TMP+2)}')
    A(f's_cmp_eq_u32 {w}, 1')
    A(f's_cselect_b32 {s(S_TMP+1)}, {s(S_PL)}, {s(S_TMP+1)}')
    A(f's_add_u32 {s(S_TMP+1)}, {s(S_TMP+1)}, {s(S_TMP)}')
    for i in range(4): A(f's_add_u32 {s(S_PL+i)}, {s(S_TMP+1)}, {i*8*9216}')
    A(f's_mul_i32 {s(S_TMP+1)}, {s(S_H)}, 9216')
    A(f's_add_u32 {s(S_PST)}, {s(S_TMP)}, {s(S_TMP+1)}')
    A(f's_mul_i32 {s(S_TMP+1)}, {w}, 2304')
    A(f's_add_u32 {s(S_PST)}, {s(S_PST)}, {s(S_TMP+1)}')
    A(f's_cmp_lt_u32 {s(S_H)}, 8')
    A(f's_cselect_b32 {s(S_HAS2)}, 1, 2')
    A(f's_cmp_ge_u32 {w}, {s(S_HAS2)}')
    A(f's_cselect_b32 {s(S_HAS2)}, 1, 0')
    A(f's_mul_i32 {s(S_TMP)}, {s(S_L)}, {MEMB_STRIDE}')
    A(f's_add_u32 {s(S_MSA)}, {s(S_TMP)}, {WS_MEMB}')
    for par in range(2):
        A(f's_add_u32 {s(S_ML+3*par)}, {s(S_MSA)}, {s(S_W1024)}')
        if par: A(f's_add_u32 {s(S_ML+3*par)}, {s(S_ML+3*par)}, 0x4000')
        A(f's_add_u32 {s(S_ML+3*par+1)}, {s(S_ML+3*par)}, 4096')
        A(f's_add_u32 {s(S_ML+3*par+2)}, {s(S_MSA)}, {s(S_W256)}')
        A(f's_add_u32 {s(S_ML+3*par+2)}, {s(S_ML+3*par+2)}, {8192 + 0x4000*par}')
    A(f'v_xor_b32 {v(V_MST)}, 0x4000, {v(V_MST)}')
    A(f's_mul_i32 {s(S_TMP)}, {s(S_L)}, {QKVX_STRIDE}')
    A(f's_mul_i32 {s(S_TMP+1)}, {s(S_H)}, 24576')
    A(f's_add_u32 {s(S_KX)}, {s(S_TMP)}, {s(S_TMP+1)}')
    A(f's_lshl_b32 {s(S_TMP+1)}, {w}, 12')
    A(f's_add_u32 {s(S_KX)}, {s(S_KX)}, {s(S_TMP+1)}')
    A(f's_add_u32 {s(S_KX)}, {s(S_KX)}, {WS_QKVX + 8192}')
    A(f's_add_u32 {s(S_KXM0)}, {s(S_TMP+1)}, {L_KX}')
    A(f's_lshl_b32 {s(S_VXO)}, {w}, 11')
    A(f's_mul_i32 {s(S_TMP)}, {s(S_L)}, {KVM_STRIDE}')
    A(f's_lshl_b32 {s(S_TMP+1)}, {s(S_H)}, 13')
    A(f's_add_u32 {s(S_TMP)}, {s(S_TMP)}, {s(S_TMP+1)}')
    A(f's_add_u32 {s(S_TMP)}, {s(S_TMP)}, {WS_KVM}')
    A(f's_add_u32 {s(S_KVM)}, {s(S_TMP)}, {s(S_W1024)}')
    A(f's_lshl_b32 {s(S_TMP+1)}, {w}, 9')
    A(f's_add_u32 {s(S_KVM2)}, {s(S_TMP)}, {s(S_TMP+1)}')
    A(f's_add_u32 {s(S_KVM2)}, {s(S_KVM2)}, 4096')
    A(f's_lshl_b32 {s(S_TMP)}, {s(S_ROLE)}, 7')
    A(f's_lshl_b32 {s(S_TMP+1)}, {w}, 2')
    A(f's_add_u32 {s(S_FLAGOUT)}, {s(S_TMP)}, {s(S_TMP+1)}')
    A(f's_mul_i32 {s(S_TMP)}, {s(S_L)}, {R_B1[1]-R_B1[0]}')
    A(f's_add_u32 {s(S_TMP)}, {s(S_TMP)}, {s(S_H)}')
    A(f's_add_u32 {s(S_TMP)}, {s(S_TMP)}, {R_B1[0]}')
    A(f's_lshl_b32 {s(S_TMP)}, {s(S_TMP)}, 7')
    A(f's_mov_b32 {s(S_FLAGIN)}, {s(S_TMP)}')
    for sr, val in ((S_EXO, 0xCCCCCCCCCCCCCCCC), (S_EXS, 0x000000FF000000FF)):
        A(f's_mov_b32 {s(sr)}, {hex(val & 0xffffffff)}')
        A(f's_mov_b32 {s(sr+1)}, {hex(val >> 32)}')
    A(f's_mov_b32 {s(S_M1)}, 0x11111111'); A(f's_mov_b32 {s(S_M1+1)}, 0x11111111')
    A(f's_mov_b32 {s(S_ONE)}, 0x3f80')
    SC = (128 ** -0.5) * 1.4426950408889634
    A(f's_mov_b32 {s(S_SC)}, {hex(f32(SC))}'); A(f's_mov_b32 {s(S_SC+1)}, {hex(f32(SC))}')
    A(f's_mov_b32 {s(S_NSC)}, {hex(f32(-SC))}')
    load_ptr_srd(A, S_SRD, KA_MEM0, 8*576*2)
    A(f'v_lshrrev_b32 v10, 2, {v(TID)}')
    A(f'v_and_b32 v11, 15, v10')
    A(f'v_lshrrev_b32 v12, 4, v10')
    A(f'v_lshrrev_b32 v13, 2, v11'); A(f'v_lshlrev_b32 v13, 1, v13')
    A(f'v_and_b32 v14, 1, v11'); A(f'v_add_u32 v13, v13, v14')
    A(f'v_mul_u32_u24 v13, 1152, v13')
    A(f'v_bfe_u32 v15, v11, 1, 1')
    A(f'v_and_b32 v16, 1, {v(TID)}')
    A(f'v_lshrrev_b32 v17, 1, v12')
    A(f'v_bfe_u32 v18, {v(TID)}, 1, 1')
    A(f'v_and_b32 v19, 1, v12')
    A(f'v_lshlrev_b32 v29, 5, v15')
    for sh, r in ((0, 16), (1, 17), (2, 18), (3, 19)):
        A(f'v_lshlrev_b32 v30, {sh}, {v(r)}'); A(f'v_add_u32 v29, v29, v30')
    A(f'v_lshlrev_b32 v29, 1, v29'); A(f'v_add_u32 v29, v29, v13')
    A(f'v_lshlrev_b32 v30, 1, v19'); A(f'v_add_u32 v30, v30, v18'); A(f'v_mul_u32_u24 v30, 144, v30')
    for sh, r in ((1, 15), (2, 16), (3, 17)):
        A(f'v_lshlrev_b32 v31, {sh}, {v(r)}'); A(f'v_add_u32 v30, v30, v31')
    A(f'v_lshlrev_b32 v30, 1, v30'); A(f'v_add_u32 v30, v30, v13')
    for ks in range(8):
        base = 2*(144*(ks >> 1) + 16 + 64*(ks & 1))
        A(f'buffer_load_ushort {v(32+ks)}, v29, {s(S_SRD,4)}, 0 offen offset:{base}')
        A(f'buffer_load_ushort {v(40+ks)}, v29, {s(S_SRD,4)}, 0 offen offset:{base + 32}')
    A(f'buffer_load_dword v48, v30, {s(S_SRD,4)}, 0 offen')
    A(f'v_lshlrev_b32 v14, 2, {v(TID)}')
    A('s_waitcnt vmcnt(0)')
    for ks in range(8):
        A(f'v_lshl_or_b32 {v(32+ks)}, {v(40+ks)}, 16, {v(32+ks)}')
        A(f'ds_write_b32 v14, {v(32+ks)} offset:{L_MEM + ks*1024}')
    A(f'ds_write_b32 v14, v48 offset:{L_MEM + 8*1024}')
    A('s_waitcnt lgkmcnt(0)')

def kxvx_dma(A):
    A(f's_mov_b32 m0, {s(S_KXM0)}')
    for j in range(4):
        A(f'buffer_load_dwordx4 {v(V_L16)}, {s(S_WS,4)}, {s(S_KX)} offen offset:{j*1024} lds')
    A(f's_add_u32 {s(S_KX)}, {s(S_KX)}, {32*24576}')

def b1poll(A):
    A(f'v_lshrrev_b32 {v(V_FLAG)}, 2, {v(V_L16)}')
    A(f'buffer_load_dword {v(V_FLAG)}, {v(V_FLAG)}, {s(S_WS,4)}, {s(S_FLAGIN)} offen sc1')

def spin_dec(A, fail):
    A(f's_sub_u32 {s(S_SPIN)}, {s(S_SPIN)}, 1')
    A(f's_cbranch_scc1 {fail}')

ZB32 = [False]
def zero4(A, r):
    if ZB32[0]:
        for i in range(4): A(f'v_mov_b32 {v(r+i)}, 0')
    else:
        A(f'v_mov_b64 {v(r,2)}, 0'); A(f'v_mov_b64 {v(r+2,2)}, 0')

def chain_step(A, par, cfg, fail):
    tag = par ^ 1
    st = lambda f: f + (' sc1' if cfg.get('SLOW') else '')
    L = LQ(A)
    jitter(A)
    stamp(A, cfg, 0)
    for k in range(9):
        L.op(f'ds_read_b128 {v(M(k),4)}, {v(V_L16)} offset:{L_MEM + k*1024}', ('M', k))
    if not cfg.get('NOB1'):
        A(f's_mov_b64 exec, 15')
        b1poll(A)
        A(f's_mov_b64 exec, -1')
    def q(t, ks): A(f'{SM} {v([AQ0,AQ1][t],4)}, {v(M(ks),4)}, {WQ(t,ks)}, {v(V_IDX)}')
    def k_(t, ks): A(f'{SM} {v([AK0,AK1][t],4)}, {v(M(ks),4)}, {WK(t,ks)}, {v(V_IDX)}')
    def vv(t, ks): A(f'{SM} {v([AV0,AV1][t],4)}, {v(M(ks),4)}, {WV(t,ks)}, {v(V_IDX)}')
    for ks in range(7):
        L.wait(('M', ks))
        q(0, ks); k_(0, ks); q(1, ks); k_(1, ks)
    L.waitall()
    stamp(A, cfg, 1)
    q(0, 7); k_(0, 7); q(0, 8); k_(0, 8); q(1, 7); k_(1, 7)
    def post(t):
        aq, ak = [AQ0, AQ1][t], [AK0, AK1][t]
        for r in (ak, ak+1, aq, aq+1): A(f'v_add_f32 {v(r)}, {v(r)}, {v(r+2)}')
        A(f'v_cvt_pk_bf16_f32 {v(ak+2)}, {v(ak)}, {v(ak+1)}')
        A(f'v_cvt_pk_bf16_f32 {v(ak+3)}, {v(aq)}, {v(aq+1)}')
        L.op(f'ds_write_b64 {v(V_QKW)}, {v(ak+2,2)} offset:{t*512}')
    q(1, 8)
    post(0)
    k_(1, 8)
    zero4(A, AV1)
    vv(0, 0); vv(0, 1)
    post(1)
    vv(1, 0); vv(1, 1); vv(0, 2); vv(1, 2)
    L.waitall()
    A('s_barrier')
    stamp(A, cfg, 2)
    F = [AQ1, AK0, AK1, M(0)]
    def fread(c):
        L.op(f'ds_read_b64_tr_b16 {v(F[c],2)}, {v(V_L8)} offset:{L_QK + c*1024}', ('F', c, 0))
        L.op(f'ds_read_b64_tr_b16 {v(F[c]+2,2)}, {v(V_L8)} offset:{L_QK + c*1024 + 512}', ('F', c))
    KXR = {(0,0): M(1), (1,0): M(2), (0,1): M(3), (1,1): M(4), (0,2): M(5), (1,2): M(1), (0,3): M(2), (1,3): F[0]}
    def kxread(t, c):
        L.op(f'ds_read_b128 {v(KXR[(t,c)],4)}, {v(V_L16)} offset:{L_KX + (t*4+c)*1024}', ('KX', t, c))
    fread(0); kxread(0, 0); kxread(1, 0)
    vv(0, 3); fread(1)
    vv(1, 3); kxread(0, 1)
    vv(0, 4); fread(2)
    vv(1, 4); kxread(1, 1)
    vv(0, 5); fread(3)
    vv(1, 5); kxread(0, 2)
    for ks in (6, 7, 8): vv(0, ks); vv(1, ks)
    S0, S1, SMm = M(6), M(7), M(8)
    def smf(acc, areg, c):
        A(f'{MF} {v(acc,4)}, {v(areg,4)}, {v(F[c],4)}, {"0" if c == 0 else v(acc,4)}')
    stamp(A, cfg, 3)
    L.wait(('KX', 0, 0)); smf(S0, KXR[(0,0)], 0)
    L.wait(('KX', 1, 0)); smf(S1, KXR[(1,0)], 0)
    kxread(1, 2)
    smf(SMm, F[0], 0)
    kxread(0, 3)
    kxread(1, 3)
    L.wait(('KX', 0, 1)); smf(S0, KXR[(0,1)], 1)
    L.wait(('KX', 1, 1)); smf(S1, KXR[(1,1)], 1)
    smf(SMm, F[1], 1)
    VM = AV0 + 2
    for r in (AV0, AV0+1, AV1, AV1+1): A(f'v_add_f32 {v(r)}, {v(r)}, {v(r+2)}')
    L.wait(('KX', 0, 2)); smf(S0, KXR[(0,2)], 2)
    A(f'v_cvt_pk_bf16_f32 {v(VM)}, {v(AV0)}, {v(AV0+1)}')
    A(f'v_cvt_pk_bf16_f32 {v(VM+1)}, {v(AV1)}, {v(AV1+1)}')
    smf(SMm, F[2], 2)
    A(f'buffer_store_dwordx2 {v(VM,2)}, {v(V_L8)}, {s(S_WS,4)}, {s(S_KVM2)} offen sc1')
    L.wait(('KX', 1, 2)); smf(S1, KXR[(1,2)], 2)
    TA = AV1
    A(f'v_add_u32 {v(TA)}, {s(S_VXO)}, {v(V_L16)}')
    A(f'v_add_u32 {v(TA+1)}, {s(S_W1024)}, {v(V_L8)}')
    smf(SMm, F[3], 3)
    L.wait(('KX', 0, 3)); smf(S0, KXR[(0,3)], 3)
    L.wait(('KX', 1, 3)); smf(S1, KXR[(1,3)], 3)
    VX0, VX1, ONES, PX, PM, T = M(0), M(1), M(2), M(3), M(4), M(5)
    KMT = AK0
    L.op(f'ds_read_b128 {v(VX0,4)}, {v(TA)} offset:{L_VX}', 'VX0')
    L.op(f'ds_read_b128 {v(VX1,4)}, {v(TA)} offset:{L_VX + 1024}', 'VX1')
    L.op(f'ds_read_b64_tr_b16 {v(KMT,2)}, {v(TA+1)} offset:{L_QK}', 'KM0')
    L.op(f'ds_read_b64_tr_b16 {v(KMT+2,2)}, {v(TA+1)} offset:{L_QK + 512}', 'KM')
    for i in range(4): A(f'v_mov_b32 {v(ONES+i)}, 0x3f803f80')
    A(f'v_mov_b32 {v(PM+1)}, 0'); A(f'v_mov_b32 {v(PM+2)}, 0')
    stamp(A, cfg, 4)
    A(f'v_max3_f32 {v(T)}, {v(SMm)}, {v(SMm+1)}, {v(S0)}')
    A(f'v_max3_f32 {v(T+1)}, {v(S0+1)}, {v(S0+2)}, {v(S0+3)}')
    A(f'v_max3_f32 {v(T)}, {v(T)}, {v(S1)}, {v(S1+1)}')
    A(f'v_max3_f32 {v(T+1)}, {v(T+1)}, {v(S1+2)}, {v(S1+3)}')
    A(f'v_max_f32 {v(T)}, {v(T)}, {v(T+1)}')
    A(f'v_mov_b32 {v(T+1)}, {v(T)}')
    L.wait('KM')
    A(f'buffer_store_dwordx4 {v(KMT,4)}, {v(V_L16)}, {s(S_WS,4)}, {s(S_KVM)} offen sc1')
    A(f'v_permlane16_swap_b32 {v(T)}, {v(T+1)}')
    A(f'v_max_f32 {v(T)}, {v(T)}, {v(T+1)}')
    A(f'v_mov_b32 {v(T+1)}, {v(T)}')
    A(f's_add_u32 {s(S_KVM)}, {s(S_KVM)}, {32*8192}')
    A(f's_add_u32 {s(S_KVM2)}, {s(S_KVM2)}, {32*8192}')
    A(f'v_permlane32_swap_b32 {v(T)}, {v(T+1)}')
    A(f'v_max_f32 {v(T)}, {v(T)}, {v(T+1)}')
    A(f'v_mul_f32 {v(T)}, {s(S_NSC)}, {v(T)}')
    def pkfma(r): A(f'v_pk_fma_f32 {v(r,2)}, {v(r,2)}, {s(S_SC,2)}, {v(T,2)} op_sel_hi:[1,1,0]')
    pkfma(SMm); pkfma(S0); pkfma(S0+2); pkfma(S1); pkfma(S1+2)
    A(f'v_exp_f32 {v(SMm)}, {v(SMm)}'); A(f'v_exp_f32 {v(SMm+1)}, {v(SMm+1)}')
    A(f'v_exp_f32 {v(S0)}, {v(S0)}')
    A(f'v_cvt_pk_bf16_f32 {v(PM)}, {v(SMm)}, {v(SMm+1)}')
    A(f'v_exp_f32 {v(S0+1)}, {v(S0+1)}')
    A(f'v_mov_b32 {v(PM+3)}, {v(PM)}')
    A(f'v_exp_f32 {v(S0+2)}, {v(S0+2)}')
    O0, O1, SUM = AQ1, AK0, AK1
    A(f'{MF16} {v(SUM,4)}, {v(ONES,2)}, {v(PM,2)}, 0')
    A(f'v_exp_f32 {v(S0+3)}, {v(S0+3)}')
    A(f'{MF16} {v(O0,4)}, {v(VM,2)}, {v(PM,2)}, 0')
    A(f'v_exp_f32 {v(S1)}, {v(S1)}')
    A(f'v_cvt_pk_bf16_f32 {v(PX)}, {v(S0)}, {v(S0+1)}')
    A(f'{MF16} {v(O1,4)}, {v(VM,2)}, {v(PM+2,2)}, 0')
    A(f'v_exp_f32 {v(S1+1)}, {v(S1+1)}')
    A(f'v_cvt_pk_bf16_f32 {v(PX+1)}, {v(S0+2)}, {v(S0+3)}')
    A(f'v_exp_f32 {v(S1+2)}, {v(S1+2)}')
    A(f'v_exp_f32 {v(S1+3)}, {v(S1+3)}')
    A(f'v_cvt_pk_bf16_f32 {v(PX+2)}, {v(S1)}, {v(S1+1)}')
    A(f'v_cvt_pk_bf16_f32 {v(PX+3)}, {v(S1+2)}, {v(S1+3)}')
    L.wait('VX1')
    A(f'{MF} {v(SUM,4)}, {v(ONES,4)}, {v(PX,4)}, {v(SUM,4)}')
    A(f'{MF} {v(O0,4)}, {v(VX0,4)}, {v(PX,4)}, {v(O0,4)}')
    A(f'{MF} {v(O1,4)}, {v(VX1,4)}, {v(PX,4)}, {v(O1,4)}')
    WB0, WB1 = 46, 47
    A(f'v_add_u32 {v(WB0)}, {s(S_WBO)}, {v(V_L16)}')
    A(f'v_add_u32 {v(WB1)}, 0x10000, {v(WB0)}')
    A(f'v_rcp_f32 {v(SUM)}, {v(SUM)}')
    OFD = AV0
    A(f'v_pk_mul_f32 {v(O0,2)}, {v(O0,2)}, {v(SUM,2)} op_sel_hi:[1,0]')
    A(f'v_pk_mul_f32 {v(O0+2,2)}, {v(O0+2,2)}, {v(SUM,2)} op_sel_hi:[1,0]')
    A(f'v_pk_mul_f32 {v(O1,2)}, {v(O1,2)}, {v(SUM,2)} op_sel_hi:[1,0]')
    A(f'v_pk_mul_f32 {v(O1+2,2)}, {v(O1+2,2)}, {v(SUM,2)} op_sel_hi:[1,0]')
    A(f'v_cvt_pk_bf16_f32 {v(OFD)}, {v(O0)}, {v(O0+1)}')
    A(f'v_cvt_pk_bf16_f32 {v(OFD+1)}, {v(O1)}, {v(O1+1)}')
    A(f'v_cvt_pk_bf16_f32 {v(OFD+2)}, {v(O0+2)}, {v(O0+3)}')
    A(f'v_cvt_pk_bf16_f32 {v(OFD+3)}, {v(O1+2)}, {v(O1+3)}')
    A(f's_mov_b64 exec, {s(S_EXO,2)}')
    L.op(f'ds_write_b64 {v(V_OW)}, {v(OFD,2)}', 'ow0')
    L.op(f'ds_write_b64 {v(V_OW)}, {v(OFD+2,2)} offset:32', 'ow')
    A(f's_mov_b64 exec, -1')
    stamp(A, cfg, 5)
    NS = 4
    SL = lambda i: 8 + 8*i
    OF0, OF1 = 40, 56
    ACC = [48, 52]
    RT = 44
    X = 60
    def woread(f, hf=None):
        t = f//2 + 1; ks = f % 2
        wb = WB0 if ks == 0 else WB1
        L.op(f'ds_read_b128 {v(SL(f % NS),4)}, {v(wb)} offset:{(t-1)*1024}', ('W', f, 0))
        L.op(f'ds_read_b128 {v(SL(f % NS)+4,4)}, {v(wb)} offset:{32768 + (t-1)*1024}', ('W', f))
    for f in range(NS): woread(f)
    zero4(A, ACC[0]); zero4(A, ACC[1])
    L.wait('ow')
    A('s_barrier')
    stamp(A, cfg, 6)
    L.op(f'ds_read_b128 {v(OF0,4)}, {v(V_L16)} offset:{L_O}', 'OF0')
    L.op(f'ds_read_b128 {v(OF1,4)}, {v(V_L16)} offset:{L_O + 1024}', 'OF1')
    skipk = A.newlabel('skipk')
    A(f's_cmp_eq_u32 {s(S_STEP)}, 63')
    A(f's_cbranch_scc1 {skipk}')
    if not cfg.get('NOB1'):
        lab_ok = A.newlabel('b1ok'); lab_re = A.newlabel('b1re')
        A('s_waitcnt vmcnt(2)')
        A(f's_add_u32 {s(S_TMP)}, {s(S_STEP)}, 2')
        A(f's_mov_b64 exec, 15')
        A(f'v_cmp_gt_u32 vcc, {s(S_TMP)}, {v(V_FLAG)}')
        A(f's_cbranch_vccz {lab_ok}')
        A(f's_mov_b32 {s(S_SPIN)}, {SPIN_LIMIT}')
        A.label(lab_re)
        b1poll(A)
        A('s_waitcnt vmcnt(0)')
        A(f'v_cmp_gt_u32 vcc, {s(S_TMP)}, {v(V_FLAG)}')
        A(f's_cbranch_vccz {lab_ok}')
        spin_check(A, lab_re, fail)
        A.label(lab_ok)
        A(f's_mov_b64 exec, -1')
    if not cfg.get('NOKX'): kxvx_dma(A)
    A.label(skipk)
    def tile_out(t):
        acc = ACC[t % 2]; x = X + ((t - 1) % 4 if t else 0)
        A(f'v_add_f32 {v(RT)}, {v(acc)}, {v(acc+2)}')
        A(f'v_add_f32 {v(RT+1)}, {v(acc+1)}, {v(acc+3)}')
        if t + 2 < 9: zero4(A, acc)
        if t == 0: A(f'v_lshrrev_b32 {v(X+1)}, 2, {v(V_L16)}')
        A(f'v_cvt_pk_bf16_f32 {v(x)}, {v(RT)}, {v(RT+1)}')
        if t in (0, 1, 5):
            if not tag: A(f'v_add_u32 {v(RT)}, 0x10000, {v(RT)}')
            if t == 0: A(f's_mov_b64 exec, {s(S_M1,2)}')
            else: A('s_nop 0')
            if tag: A(f'v_or_b32_sdwa {v(x)}, {v(RT)}, 1 dst_sel:WORD_0 dst_unused:UNUSED_PRESERVE src0_sel:WORD_1 src1_sel:DWORD')
            else:   A(f'v_and_b32_sdwa {v(x)}, {v(RT)}, -2 dst_sel:WORD_0 dst_unused:UNUSED_PRESERVE src0_sel:WORD_1 src1_sel:DWORD')
            if t == 0: A(f's_mov_b64 exec, -1')
        if t == 0: A(st(f'buffer_store_dword {v(X)}, {v(X+1)}, {s(S_WS,4)}, {s(S_PST)} offen'))
        if t in (4, 8): A(st(f'buffer_store_dwordx4 {v(X,4)}, {v(V_L16)}, {s(S_WS,4)}, {s(S_PST)} offen offset:{256 if t == 4 else 1280}'))
    L.wait('OF0')
    A(f'{SM} {v(ACC[0],4)}, {v(OF0,4)}, {WOR(0)}, {v(V_IDX)}')
    L.wait('OF1')
    A(f'{SM} {v(ACC[0],4)}, {v(OF1,4)}, {WOR(1)}, {v(V_IDX)}')
    for f in range(16):
        t = f//2 + 1; ks = f % 2
        L.wait(('W', f))
        A(f'{SM} {v(ACC[t % 2],4)}, {v([OF0,OF1][ks],4)}, {v(SL(f % NS),8)}, {v(V_IDX)}')
        if f + NS < 16: woread(f + NS)
        if ks == 1: tile_out(t - 1)
    tile_out(8)
    jitter(A)
    stamp(A, cfg, 7)
    if cfg.get('PREWAIT1'): A('s_waitcnt vmcnt(0)')
    if cfg.get('PW1LATE'):
        pw = A.newlabel('pw1')
        A(f's_cmp_lg_u32 {s(S_WAVE)}, 3')
        A(f's_cbranch_scc1 {pw}')
        A('s_waitcnt vmcnt(0)')
        A.label(pw)
    stamp(A, cfg, 11)
    P = [8 + 4*i for i in range(4)]
    SEL, D, X0, HM, T = 24, 28, 32, 34, 35
    new = par ^ 1; old = par
    def publish_flag():
        A(f's_add_u32 {s(S_TMP)}, {s(S_STEP)}, 1')
        A(f'v_mov_b32 {v(T+1)}, {s(S_TMP)}')
        A(f's_mov_b64 exec, 1')
        A(f'buffer_store_dword {v(T+1)}, {v(V_L16)}, {s(S_WS,4)}, {s(S_FLAGOUT)} offen sc1')
        A(f's_mov_b64 exec, -1')
    noline = A.newlabel('h1none'); join = A.newlabel('h1join')
    A(f's_mov_b32 {s(S_SPIN)}, {SPIN_LIMIT}')
    A(f's_cmp_eq_u32 {s(S_HAS2)}, 0')
    A(f's_cbranch_scc1 {noline}')
    lp = A.newlabel('hop1'); lw = A.newlabel('h1w')
    def h1loads():
        for i in range(4):
            A(f'buffer_load_dwordx4 {v(P[i],4)}, {v(V_PLD)}, {s(S_WS,4)}, {s(S_PL+i)} offen sc1')
    h1loads()
    for r in (AQ0, AQ1, AK0, AK1, AV0): zero4(A, r)
    A(f'v_lshrrev_b32 {v(T)}, 2, {v(V_L16)}')
    A(f'v_and_b32 {v(T)}, 16, {v(T)}')
    A(f'v_lshlrev_b32 {v(T)}, {v(T)}, {s(S_ONE)}')
    A(f's_mov_b64 vcc, {s(S_M1,2)}')
    for r in range(4):
        A(f'v_cndmask_b32 {v(SEL+r)}, 0, {v(T)}, vcc')
        if r < 3: A(f's_lshl_b64 vcc, vcc, 1')
    A(f'v_bfe_i32 {v(HM)}, {v(V_L16)}, 9, 1')
    A(f's_branch {lw}')
    A.label(lp)
    if not cfg.get('NOMASK'): A(f's_mov_b64 exec, vcc')
    spin_dec(A, fail)
    h1loads()
    A.label(lw); A.flush()
    A('s_waitcnt vmcnt(0)')
    mf = lambda i: A(f'{MF} {v(D,4)}, {v(SEL,4)}, {v(P[i],4)}, {"0" if i == 0 else v(D,4)}')
    mf(0)
    if tag: A(f'v_bitop3_b32 {v(T)}, {v(P[0])}, {v(P[1])}, {v(P[2])} bitop3:0x80')
    else:   A(f'v_or3_b32 {v(T)}, {v(P[0])}, {v(P[1])}, {v(P[2])}')
    mf(1)
    if tag: A(f'v_bitop3_b32 {v(T)}, {v(T)}, {v(P[3])}, 1 bitop3:0x80')
    else:   A(f'v_bitop3_b32 {v(T)}, {v(T)}, {v(P[3])}, 1 bitop3:0xa8')
    mf(2)
    A(f'v_cmp_ne_u32 vcc, {tag}, {v(T)}')
    mf(3)
    if not cfg.get('X_NOCHK'): A(f's_cbranch_vccnz {lp}')
    A(f's_mov_b64 exec, -1')
    if cfg.get('STAMPS'): A(f's_sub_u32 {s(S_ST+14)}, {SPIN_LIMIT}, {s(S_SPIN)}')
    if cfg.get('CNT'):
        A(f's_sub_u32 {s(S_TMP)}, {SPIN_LIMIT}, {s(S_SPIN)}'); A(f's_add_u32 s92, s92, {s(S_TMP)}')
    stamp(A, cfg, 8)
    A(f'v_add_f32_dpp {v(X0)}, {v(D)}, {v(D)} row_ror:8 row_mask:0xf bank_mask:0x3')
    A(f'v_add_f32_dpp {v(X0+1)}, {v(D+1)}, {v(D+1)} row_ror:8 row_mask:0xf bank_mask:0x3')
    A(f'v_add_f32_dpp {v(X0)}, {v(D+2)}, {v(D+2)} row_ror:8 row_mask:0xf bank_mask:0xc')
    A(f'v_add_f32_dpp {v(X0+1)}, {v(D+3)}, {v(D+3)} row_ror:8 row_mask:0xf bank_mask:0xc')
    A(f'v_cvt_pk_bf16_f32 {v(X0)}, {v(X0)}, {v(X0+1)}')
    A(f'v_or_b32 {v(X0)}, {v(X0)}, {v(HM)}')
    A(st(f'buffer_store_dword {v(X0)}, {v(V_MST)}, {s(S_WS,4)}, {s(S_MSA)} offen'))
    A(f'v_xor_b32 {v(V_MST)}, 0x4000, {v(V_MST)}')
    A(f's_branch {join}')
    A.label(noline); A.flush()
    for r in (AQ0, AQ1, AK0, AK1, AV0): zero4(A, r)
    A.label(join); A.flush()
    jitter(A)
    if cfg.get('BAR2'): A('s_barrier')
    stamp(A, cfg, 9)
    if cfg.get('PREWAIT2'): A('s_waitcnt vmcnt(0)')
    stamp(A, cfg, 12)
    R0, R1, R2 = 8, 12, 16
    TA0, TA1 = 20, 21
    A(f'v_add_u32 {v(TA0)}, {s(S_W1024)}, {v(V_L16)}')
    A(f'v_add_u32 {v(TA1)}, {s(S_W256)}, {v(V_L16)}')
    A(f'v_mov_b64 {v(R2,2)}, 0'); A(f'v_mov_b64 {v(R2+2,2)}, 0')
    lp2 = A.newlabel('hop2'); lw2 = A.newlabel('h2w')
    A(f's_mov_b32 {s(S_SPIN)}, {SPIN_LIMIT}')
    def h2loads(first):
        A(f'buffer_load_dwordx4 {v(R0,4)}, {v(V_L16)}, {s(S_WS,4)}, {s(S_ML+3*new)} offen sc1')
        A(f'buffer_load_dwordx4 {v(R1,4)}, {v(V_L16)}, {s(S_WS,4)}, {s(S_ML+3*new+1)} offen sc1')
        if first: A(f's_mov_b64 exec, 0xffff')
        else: A(f's_and_b64 exec, exec, 0xffff')
        A(f'buffer_load_dwordx4 {v(R2,4)}, {v(V_L16)}, {s(S_WS,4)}, {s(S_ML+3*new+2)} offen sc1')
        if first or cfg.get('NOMASK'): A(f's_mov_b64 exec, -1')
        else: A(f's_mov_b64 exec, {s(S_MSK,2)}')
    h2loads(True)
    A(f's_branch {lw2}')
    A.label(lp2)
    if not cfg.get('NOMASK'):
        A(f's_mov_b64 exec, vcc')
        A(f's_mov_b64 {s(S_MSK,2)}, vcc')
    spin_dec(A, fail)
    h2loads(False)
    A.label(lw2)
    A('s_waitcnt vmcnt(0)')
    T = 22
    A(f'v_max3_u32 {v(T)}, {v(R0)}, {v(R0+1)}, {v(R0+2)}')
    A(f'v_max3_u32 {v(T+1)}, {v(R0+3)}, {v(R1)}, {v(R1+1)}')
    A(f'v_max3_u32 {v(T)}, {v(T)}, {v(R1+2)}, {v(R1+3)}')
    A(f'v_max3_u32 {v(T+1)}, {v(T+1)}, {v(R2)}, {v(R2+1)}')
    A(f'v_max3_u32 {v(T)}, {v(T)}, {v(R2+2)}, {v(R2+3)}')
    A(f'v_max_u32 {v(T)}, {v(T)}, {v(T+1)}')
    A(f'v_cmp_eq_u32 vcc, -1, {v(T)}')
    A(f's_cbranch_vccnz {lp2}')
    A(f's_mov_b64 exec, -1')
    if cfg.get('CNT'):
        A(f's_sub_u32 {s(S_TMP)}, {SPIN_LIMIT}, {s(S_SPIN)}'); A(f's_add_u32 s93, s93, {s(S_TMP)}')
    if cfg.get('STAMPS'):
        A(f's_sub_u32 {s(S_ST+15)}, {SPIN_LIMIT}, {s(S_SPIN)}')
        stamp(A, cfg, 13)
    if not cfg.get('FLAGEARLY'):
        T = 35; publish_flag()
    A(f'ds_write_b128 {v(TA0)}, {v(R0,4)} offset:{L_MEM}')
    A(f'ds_write_b128 {v(TA0)}, {v(R1,4)} offset:{L_MEM + 4096}')
    A(f's_mov_b64 exec, 0xffff')
    A(f'ds_write_b128 {v(TA1)}, {v(R2,4)} offset:{L_MEM + 8192}')
    A(f's_mov_b64 exec, -1')
    A(f's_add_u32 {s(S_STEP)}, {s(S_STEP)}, 1')
    tstamp(A, cfg, s(S_STEP), 24, V_L16)
    A('s_waitcnt lgkmcnt(0)')
    A('s_barrier')
    stamp(A, cfg, 10)

def chain_role(A, cfg, fail, done):
    A.smart = True
    ZB32[0] = bool(cfg.get('X_ZB32'))
    chain_init(A, cfg)
    cfg['barrier_wait_chain'](A)
    if not cfg.get('NOB1'):
        lab_re = A.newlabel('b1first'); lab_ok = A.newlabel('b1fok')
        A(f's_mov_b32 {s(S_SPIN)}, {SPIN_LIMIT}')
        A(f's_mov_b64 exec, 15')
        A.label(lab_re)
        b1poll(A)
        A('s_waitcnt vmcnt(0)')
        A(f'v_cmp_gt_u32 vcc, 1, {v(V_FLAG)}')
        A(f's_cbranch_vccz {lab_ok}')
        spin_check(A, lab_re, fail)
        A.label(lab_ok)
        A(f's_mov_b64 exec, -1')
    kxvx_dma(A)
    for r in (AQ0, AQ1, AK0, AK1, AV0): zero4(A, r)
    A(f's_mov_b32 {s(S_STEP)}, 0')
    tstamp(A, cfg, 0, 24, V_L16)
    dstamp(A, cfg, 1, 0, None, 24, 25); dstamp(A, cfg, 3, 32, None, 24, 25)
    dstamp(A, cfg, 0, 0, 94, 24, 25)
    A('s_waitcnt vmcnt(0)')
    A('s_barrier')
    if cfg.get('STAMPS') or cfg.get('TOTAL'):
        A(f's_memtime {s(S_T0,2)}')
        A('s_waitcnt lgkmcnt(0)')
    if cfg.get('CNT'): A('s_mov_b32 s92, 0'); A('s_mov_b32 s93, 0')
    loop = A.newlabel('chainloop')
    A.label(loop)
    chain_step(A, 0, cfg, fail)
    chain_step(A, 1, cfg, fail)
    A(f's_cmp_lt_u32 {s(S_STEP)}, 64')
    A(f's_cbranch_scc1 {loop}')
    if cfg.get('CNT'):
        A(f's_lshl_b32 {s(S_TMP)}, {s(S_ROLE)}, 9')
        A(f's_lshl_b32 {s(S_TMP+1)}, {s(S_WAVE)}, 3')
        A(f's_add_u32 {s(S_TMP)}, {s(S_TMP)}, {s(S_TMP+1)}')
        A(f's_add_u32 {s(S_TMP)}, {s(S_TMP)}, {hex(WS_TIME)}')
        A(f'v_mov_b32 v14, s92'); A(f'v_mov_b32 v15, s93'); A(f'v_mov_b32 v16, 0')
        A('s_mov_b64 exec, 1')
        A(f'buffer_store_dwordx2 v[14:15], v16, {s(S_WS,4)}, {s(S_TMP)} offen')
        A('s_mov_b64 exec, -1')
    if cfg.get('STAMPS') or cfg.get('TOTAL'):
        A(f's_memtime {s(S_T1,2)}')
        A('s_waitcnt lgkmcnt(0)')
        A(f's_sub_u32 {s(S_T1)}, {s(S_T1)}, {s(S_T0)}')
        sk = A.newlabel('nostamp')
        A(f's_lshl_b32 {s(S_TMP)}, {s(S_ROLE)}, 2')
        A(f's_or_b32 {s(S_TMP)}, {s(S_TMP)}, {s(S_WAVE)}')
        A(f's_cmp_lg_u32 {s(S_TMP)}, {cfg.get("WHO", 0)}')
        A(f's_cbranch_scc1 {sk}')
        A(f'v_mov_b32 v14, {s(S_T1)}')
        A(f'v_mov_b32 v15, 0')
        A(f'global_store_dword v15, v14, {s(S_DBG,2)} offset:64')
        for i in range(16 if cfg.get('STAMPS') else 0):
            if i < 14: A(f's_sub_u32 {s(S_TMP)}, {s(S_ST+i)}, {s(S_ST)}')
            else: A(f's_mov_b32 {s(S_TMP)}, {s(S_ST+i)}')
            A(f'v_mov_b32 v14, {s(S_TMP)}')
            A(f'global_store_dword v15, v14, {s(S_DBG,2)} offset:{68+4*i}')
        A.label(sk)
    A.smart = False
    A(f's_branch {done}')
```

```python
from asm import *
from common import *
from chain import *

S_IDX = 26
S_SEG = 28
S_PREF = 29
S_FOUT = 30
S_SRC = 31
S_BUFW = 32
S_BUFC = 33
S_DST = 34
S_DST2 = 35
S_DST3 = 36
S_TGT = 37
S_A = 38; S_B = 39; S_C = 40; S_D = 41
S_EXLO = 42
S_BSUM = 44
S_CSUM = 45
S_X = 46

def lane_setup(A):
    A('v_and_b32 v79, 63, v0')
    A('v_mov_b32 v75, v0')
    A('v_and_b32 v78, 15, v79')
    A('v_lshrrev_b32 v77, 4, v79')
    A('v_and_b32 v76, 7, v79')

def flagaddr(A, vdst, role0, n, vlane=79, vt=74):
    A(f'v_min_u32 {v(vdst)}, {n-1}, {v(vlane)}')
    A(f'v_lshrrev_b32 {v(vt)}, 2, {v(vdst)}')
    if isinstance(role0, int): A(f'v_add_u32 {v(vt)}, {role0}, {v(vt)}')
    else: A(f'v_add_u32 {v(vt)}, {role0}, {v(vt)}')
    A(f'v_lshlrev_b32 {v(vt)}, 7, {v(vt)}')
    A(f'v_and_b32 {v(vdst)}, 3, {v(vdst)}')
    A(f'v_lshlrev_b32 {v(vdst)}, 2, {v(vdst)}')
    A(f'v_add_u32 {v(vdst)}, {v(vdst)}, {v(vt)}')

def own_flag(A):
    A(f's_lshl_b32 {s(S_FOUT)}, {s(S_ROLE)}, 7')
    A(f's_lshl_b32 {s(S_TMP)}, {s(S_WAVE)}, 2')
    A(f's_add_u32 {s(S_FOUT)}, {s(S_FOUT)}, {s(S_TMP)}')

CFG = {}
SCOPE = [' sc1']
def set_scope(intra):
    SCOPE[0] = '' if (intra and not CFG.get('ALLSC1')) else ' sc1'
def publish(A, sval, vt, vzero, ts=True):
    if ts: tstamp(A, CFG, sval, vt, vzero)
    jitter(A)
    A(f'v_mov_b32 {v(vt)}, {sval}')
    A('s_mov_b64 exec, 1')
    A(f'buffer_store_dword {v(vt)}, {v(vzero)}, {s(S_WS,4)}, {s(S_FOUT)} offen' + SCOPE[0])
    A('s_mov_b64 exec, -1')

def poll_block(A, cfg, vaddr, starget, vt, fail):
    if cfg.get('NOWAIT'): return
    re_ = A.newlabel('pre'); ok = A.newlabel('pok')
    jitter(A)
    A(f's_mov_b32 {s(S_SPIN)}, {SPIN_LIMIT}')
    A.label(re_)
    A(f'buffer_load_dword {v(vt)}, {v(vaddr)}, {s(S_WS,4)}, 0 offen sc1')
    A('s_waitcnt vmcnt(0)')
    A(f'v_cmp_gt_u32 vcc, {starget}, {v(vt)}')
    A(f's_cbranch_vccz {ok}')
    spin_check(A, re_, fail)
    A.label(ok)

def poll_issue(A, cfg, vaddr, vt):
    if cfg.get('NOWAIT'): return
    A(f'buffer_load_dword {v(vt)}, {v(vaddr)}, {s(S_WS,4)}, 0 offen sc1')

def poll_check(A, cfg, vaddr, starget, vt, fail):
    if cfg.get('NOWAIT'): return
    ok = A.newlabel('pck')
    A(f'v_cmp_gt_u32 vcc, {starget}, {v(vt)}')
    A(f's_cbranch_vccz {ok}')
    poll_block(A, cfg, vaddr, starget, vt, fail)
    A.label(ok)

def ring(name):
    if CFG.get('NORING'): return 64
    return int(CFG.get('R_' + name, RINGS[name]))

def ring_off(A, sdst, sbase, sidx, R, stride):
    if R < 64: A(f's_and_b32 {s(sdst)}, {sidx}, {R-1}'); A(f's_mul_i32 {s(sdst)}, {s(sdst)}, {stride}')
    else: A(f's_mul_i32 {s(sdst)}, {sidx}, {stride}')
    if sbase is not None: A(f's_add_u32 {s(sdst)}, {s(sdst)}, {s(sbase)}')

def down_check(A, cfg, vaddr, vt, sseg, back, stmp, fail, odd=False):
    if cfg.get('NOWAIT') or back >= 63: return
    A(f's_sub_i32 {s(stmp)}, {sseg}, {back}')
    A(f's_max_i32 {s(stmp)}, {s(stmp)}, 0')
    if odd:
        A(f's_cmp_eq_u32 {sseg}, {back}')
        A(f's_cselect_b32 {s(stmp)}, 1, {s(stmp)}')
    poll_check(A, cfg, vaddr, s(stmp), vt, fail)

def pretouch(A, regions, nwaves, sgw, vl16, vdummy):
    for (sbase, size) in regions:
        lp = A.newlabel('pt')
        A(f's_lshl_b32 {s(S_TMP)}, {s(sgw)}, 10')
        A(f's_add_u32 {s(S_TMP)}, {s(S_TMP)}, {s(sbase)}')
        A(f's_add_u32 {s(S_TMP+1)}, {s(sbase)}, {size}')
        A.label(lp)
        A(f'buffer_load_dwordx4 {v(vdummy,4)}, {v(vl16)}, {s(S_WS,4)}, {s(S_TMP)} offen')
        A(f's_add_u32 {s(S_TMP)}, {s(S_TMP)}, {nwaves*1024}')
        A(f's_cmp_lt_u32 {s(S_TMP)}, {s(S_TMP+1)}')
        A(f's_cbranch_scc1 {lp}')
    A('s_waitcnt vmcnt(0)')

def wreg_lin(i, n, vbase):
    return a(i, n) if i < 256 else v(vbase + i - 256, n)

def block_loader(A, blocks, ka, size, vtr=70, per_round=36):
    w = s(S_WAVE)
    load_ptr_srd(A, S_SRD, ka, size)
    A(f'v_lshrrev_b32 v72, 2, v78')
    A(f'v_lshlrev_b32 v73, 2, v77')
    A(f'v_add_u32 v72, v72, v73')
    A(f'v_lshlrev_b32 v72, 5, v72')
    A(f'v_and_b32 v73, 3, v78')
    A(f'v_lshlrev_b32 v73, 3, v73')
    A(f'v_add_u32 v72, v72, v73')
    A(f's_mul_i32 {s(S_TMP)}, {w}, 36864')
    A(f'v_add_u32 {v(vtr)}, {s(S_TMP)}, v72')
    for r0 in range(0, len(blocks), per_round):
        rb = blocks[r0:r0+per_round]
        for i, b in enumerate(rb):
            A(f's_mul_i32 {s(S_M0)}, {w}, 36864')
            if i: A(f's_add_u32 {s(S_M0)}, {s(S_M0)}, {i*1024}')
            b['issue'](A)
        A('s_waitcnt vmcnt(0)')
        for i, b in enumerate(rb):
            for half in range(2):
                A(f'ds_read_b64_tr_b16 {b["dst"](half)}, {v(vtr)} offset:{i*1024 + half*512}')
            if i % 4 == 3: A('s_waitcnt lgkmcnt(8)')
        A('s_waitcnt lgkmcnt(0)')
    A('s_barrier')

def dma16(A, vaddr, soff):
    A(f's_mov_b32 m0, {s(S_M0)}')
    A(f'buffer_load_dwordx4 {v(vaddr)}, {s(S_SRD,4)}, {soff} offen lds')

def gemm_loop(A, cfg, P, fail):
    NT, NKS, D = P['NT'], P['NKS'], P.get('D', 3)
    W, ACC, RING = P['W'], P['ACC'], P['RING']
    VL16, VRD, VPOLL, VFLAG, VZERO, VT = P['VL16'], P['VRD'], P['VPOLL'], P['VFLAG'], P['VZERO'], P['VT']
    NF = 2*NKS; NFW = NF//4
    nst = P['nst']
    KMID = P.get('KMID', NKS//2)
    w = s(S_WAVE)
    A(f's_mul_i32 {s(S_TMP)}, {w}, {NFW*1024}')
    A(f's_add_u32 {s(S_SRC)}, {s(S_SRC)}, {s(S_TMP)}')
    A(f's_mov_b32 {s(S_BUFW)}, {s(S_TMP)}')
    A(f's_lshl_b32 {s(S_BSUM)}, {s(S_TMP)}, 1')
    A(f's_add_u32 {s(S_BSUM)}, {s(S_BSUM)}, {NF*1024}')
    A(f's_mov_b32 {s(S_BUFC)}, 0')
    A(f's_mov_b32 {s(S_SEG)}, 0')
    A(f's_mov_b32 {s(S_PREF)}, 0')
    S_SRCB, S_DSTB, S_NSRC, S_TD = 54, 55, 56, 57
    SR = P.get('src_ring', 64); DR = P.get('dst_ring', 64); DOWN = P.get('down')
    if SR < 64:
        A(f's_mov_b32 {s(S_SRCB)}, {s(S_SRC)}'); A(f's_mov_b32 {s(S_NSRC)}, 0')
    if DR < 64: A(f's_mov_b32 {s(S_DSTB)}, {s(S_DST)}')
    lsc = ' sc1' if SR < 64 else ''
    def dma():
        if SR < 64:
            ring_off(A, S_SRC, S_SRCB, s(S_NSRC), SR, P['src_stride'])
            A(f's_add_u32 {s(S_NSRC)}, {s(S_NSRC)}, 1')
        for j0 in range(0, NFW, 4):
            A(f's_add_u32 {s(S_TMP)}, {s(S_BUFW)}, {j0*1024}')
            A(f's_mov_b32 m0, {s(S_TMP)}')
            A(f's_add_u32 {s(S_TMP+1)}, {s(S_SRC)}, {j0*1024}')
            for j in range(j0, min(j0+4, NFW)):
                A(f'buffer_load_dwordx4 {v(VL16)}, {s(S_WS,4)}, {s(S_TMP+1)} offen offset:{(j-j0)*1024}{lsc} lds')
        if SR >= 64: A(f's_add_u32 {s(S_SRC)}, {s(S_SRC)}, {P["src_stride"]}')
        A(f's_sub_u32 {s(S_BUFW)}, {s(S_BSUM)}, {s(S_BUFW)}')
    loop = A.newlabel('gloop'); pre = A.newlabel('gpref'); go = A.newlabel('ggo')
    A.label(loop)
    A(f's_cmp_lg_u32 {s(S_PREF)}, 0')
    A(f's_cbranch_scc1 {pre}')
    A(f's_add_u32 {s(S_TGT)}, {s(S_SEG)}, 1')
    fst(A, cfg, 0, S_SEG)
    poll_block(A, cfg, VPOLL, s(S_TGT), VFLAG, fail)
    fst(A, cfg, 1, S_SEG)
    dma()
    A('s_waitcnt vmcnt(0)')
    A(f's_branch {go}')
    A.label(pre)
    A(f's_waitcnt vmcnt({nst})')
    A.label(go)
    fst(A, cfg, 2, S_SEG)
    A('s_barrier')
    fst(A, cfg, 3, S_SEG)
    A(f's_mov_b32 {s(S_PREF)}, 0')
    A(f'v_add_u32 {v(VRD)}, {s(S_BUFC)}, {v(VL16)}')
    A(f's_sub_u32 {s(S_BUFC)}, {NF*1024}, {s(S_BUFC)}')
    if not cfg.get('NOWAIT'):
        A(f'buffer_load_dword {v(VFLAG)}, {v(P.get("VPOLLN", VPOLL))}, {s(S_WS,4)}, 0 offen sc1')
        if DOWN and DR < 64: poll_issue(A, cfg, DOWN['VP'], DOWN['VF'])
    def rd(ks):
        for tt in range(2):
            A(f'ds_read_b128 {v(RING + (ks % D)*8 + tt*4, 4)}, {v(VRD)} offset:{(tt*NKS + ks)*1024}')
    for k in range(min(D, NKS)): rd(k)
    for ks in range(NKS):
        if ks == KMID:
            A('s_waitcnt vmcnt(0)')
            publish(A, s(S_SEG), VT, VZERO, ts=False)
            sk = A.newlabel('gnopf')
            A(f's_cmp_ge_u32 {s(S_SEG)}, 63')
            A(f's_cbranch_scc1 {sk}')
            if not cfg.get('NOWAIT'):
                A(f's_add_u32 {s(S_TGT)}, {s(S_SEG)}, 2')
                A(f'v_cmp_gt_u32 vcc, {s(S_TGT)}, {v(VFLAG)}')
                A(f's_cbranch_vccnz {sk}')
            dma()
            A(f's_mov_b32 {s(S_PREF)}, 1')
            A.label(sk)
        A(f's_waitcnt lgkmcnt({2*min(D-1, NKS-1-ks)})')
        for t in range(NT):
            for tt in range(2):
                fr = v(RING + (ks % D)*8 + tt*4, 4)
                c = '0' if ks == 0 else v(ACC(t, tt), 4)
                if P['swap'](t): A(f'{MF} {v(ACC(t,tt),4)}, {fr}, {W(t,ks)}, {c}')
                else: A(f'{MF} {v(ACC(t,tt),4)}, {W(t,ks)}, {fr}, {c}')
        if ks + D < NKS: rd(ks + D)
    tstamp(A, cfg, s(S_SEG), VT, VZERO)
    fst(A, cfg, 4, S_SEG)
    if DR < 64:
        down_check(A, cfg, DOWN['VP'], DOWN['VF'], s(S_SEG), DOWN['back'], S_TD, fail, odd=DOWN.get('odd', False))
        ring_off(A, S_DST, S_DSTB, s(S_SEG), DR, P['dst_stride'])
    jitter(A)
    P['epilogue'](A)
    fst(A, cfg, 5, S_SEG)
    sk2 = A.newlabel('gnopub')
    if 'VPOLLN' in P:
        A(f'v_xor_b32 {v(VPOLL)}, {s(P["SPX"])}, {v(VPOLL)}')
        A(f'v_xor_b32 {v(P["VPOLLN"])}, {s(P["SPX"])}, {v(P["VPOLLN"])}')
    A(f's_add_u32 {s(S_SEG)}, {s(S_SEG)}, 1')
    A(f's_cmp_lg_u32 {s(S_PREF)}, 0')
    A(f's_cbranch_scc1 {loop}')
    A('s_waitcnt vmcnt(0)')
    fst(A, cfg, 6, S_SEG, 33)
    publish(A, s(S_SEG), VT, VZERO, ts=False)
    A(f's_cmp_lt_u32 {s(S_SEG)}, 64')
    A(f's_cbranch_scc1 {loop}')

def cvt(A, d, x, y): A(f'v_cvt_pk_bf16_f32 {v(d)}, {v(x)}, {v(y)}')

def role_a1(A, cfg, fail, done):
    set_scope(True)
    w = s(S_WAVE)
    lane_setup(A)
    S_M, S_TAU = S_A, S_B
    A(f's_mul_i32 {s(S_M)}, {s(S_IDX)}, 43')
    A(f's_lshr_b32 {s(S_M)}, {s(S_M)}, 7')
    A(f's_mul_i32 {s(S_TMP)}, {s(S_M)}, 3')
    A(f's_sub_u32 {s(S_TMP)}, {s(S_IDX)}, {s(S_TMP)}')
    A(f's_mul_i32 {s(S_TAU)}, {s(S_TMP)}, 12')
    A(f's_mul_i32 {s(S_TMP)}, {w}, 3')
    A(f's_add_u32 {s(S_TAU)}, {s(S_TAU)}, {s(S_TMP)}')
    A('v_lshrrev_b32 v68, 1, v79'); A('v_mul_u32_u24 v68, 3456, v68')
    A('v_and_b32 v72, 1, v79'); A('v_lshlrev_b32 v72, 4, v72'); A('v_add_u32 v68, v68, v72')
    A('v_lshrrev_b32 v69, 3, v79'); A('v_mul_u32_u24 v69, 3456, v69')
    A('v_mul_u32_u24 v72, 36, v76'); A('v_add_u32 v69, v69, v72')
    blocks = []
    for t in range(3):
        for ks in range(18):
            def issue(A, t=t, ks=ks):
                if ks == 0:
                    A(f's_add_u32 {s(S_C)}, {s(S_TAU)}, {t}')
                    A(f's_mul_i32 {s(S_D)}, {s(S_M)}, 1152')
                    A(f's_mul_i32 {s(S_TMP)}, {s(S_C)}, 36')
                    A(f's_sub_u32 {s(S_TMP+1)}, {s(S_C)}, 32')
                    A(f's_mul_i32 {s(S_TMP+1)}, {s(S_TMP+1)}, 288')
                    A(f's_add_u32 {s(S_TMP+1)}, {s(S_TMP+1)}, 32')
                    A(f's_cmp_ge_u32 {s(S_C)}, 32')
                    A(f's_cselect_b32 {s(S_TMP)}, {s(S_TMP+1)}, {s(S_TMP)}')
                    A(f's_add_u32 {s(S_D)}, {s(S_D)}, {s(S_TMP)}')
                lo = A.newlabel('a1lo'); en = A.newlabel('a1en')
                A(f's_add_u32 {s(S_SOFF)}, {s(S_D)}, {ks*32*3456}')
                A(f's_cmp_ge_u32 {s(S_C)}, 32')
                A(f's_cbranch_scc1 {lo}')
                dma16(A, 68, s(S_SOFF))
                A(f's_branch {en}')
                A.label(lo)
                for q in range(4):
                    A(f's_mov_b32 m0, {s(S_M0)}')
                    A(f'buffer_load_dword v69, {s(S_SRD,4)}, {s(S_SOFF)} offen lds')
                    if q < 3:
                        A(f's_add_u32 {s(S_SOFF)}, {s(S_SOFF)}, {8*3456}')
                        A(f's_add_u32 {s(S_M0)}, {s(S_M0)}, 256')
                A.label(en)
            blocks.append(dict(issue=issue, dst=lambda half, t=t, ks=ks: a(t*72 + ks*4 + 2*half, 2)))
    block_loader(A, blocks, KA_WQKV, 576*3456, per_round=27)
    VL16, VRD, VPOLL, VFLAG, VZERO, VT, VL8 = 60, 61, 62, 63, 64, 65, 66
    A(f'v_lshlrev_b32 {v(VL16)}, 4, v79')
    A(f'v_lshlrev_b32 {v(VL8)}, 3, v79')
    A(f'v_mov_b32 {v(VZERO)}, 0')
    sel_layer(A, S_TMP+2, [R_R0, R_RB[0]])
    flagaddr(A, VPOLL, s(S_TMP+2), 16)
    VPOLLN, SPX = 67, S_X
    A(f's_lshl_b32 {s(SPX)}, {s(S_L)}, 9')
    A(f'v_xor_b32 {v(VPOLLN)}, {s(SPX)}, {v(VPOLL)}')
    VPD, VFD = 68, 69
    sel_layer(A, S_TMP+2, R_ATTA)
    flagaddr(A, VPD, s(S_TMP+2), 64)
    own_flag(A)
    sel_layer(A, S_SRC, WS_XNA)
    sel_layer(A, S_DST, WS_QKVA)
    A(f's_mul_i32 {s(S_TMP)}, {s(S_M)}, 36864')
    A(f's_add_u32 {s(S_DST)}, {s(S_DST)}, {s(S_TMP)}')
    A(f's_lshl_b32 {s(S_TMP)}, {s(S_TAU)}, 10')
    A(f's_add_u32 {s(S_DST)}, {s(S_DST)}, {s(S_TMP)}')
    cfg['barrier_wait'](A)
    ACC = lambda t, tt: t*8 + tt*4
    def epi(swap):
        def f(A):
            for t in range(3):
                b = t*8
                cvt(A, b, b, b+1); cvt(A, b+1, b+2, b+3); cvt(A, b+2, b+4, b+5); cvt(A, b+3, b+6, b+7)
                if swap:
                    A(f'buffer_store_dwordx4 {v(b,4)}, {v(VL16)}, {s(S_WS,4)}, {s(S_DST)} offen offset:{t*1024}' + SCOPE[0])
                else:
                    A(f'buffer_store_dwordx2 {v(b,2)}, {v(VL8)}, {s(S_WS,4)}, {s(S_DST)} offen offset:{t*1024}' + SCOPE[0])
                    A(f'buffer_store_dwordx2 {v(b+2,2)}, {v(VL8)}, {s(S_WS,4)}, {s(S_DST)} offen offset:{t*1024+512}' + SCOPE[0])
            A(f's_add_u32 {s(S_DST)}, {s(S_DST)}, {SEG_QKVA}')
        return f
    lv = A.newlabel('a1v')
    A(f's_cmp_eq_u32 {s(S_M)}, 2')
    A(f's_cbranch_scc1 {lv}')
    for swap in (False, True):
        if swap: A.label(lv); A.flush()
        P = dict(NT=3, NKS=18, D=3, W=lambda t, ks: a(t*72 + ks*4, 4), ACC=ACC, RING=24, VL16=VL16, VRD=VRD, VPOLL=VPOLL,
                 VFLAG=VFLAG, VZERO=VZERO, VT=VT, nst=(3 if swap else 6), swap=lambda t, sw=swap: sw, epilogue=epi(swap), src_stride=SEG_XN,
                 VPOLLN=VPOLLN, SPX=SPX, dst_ring=ring('QKVA'), dst_stride=SEG_QKVA, down=dict(VP=VPD, VF=VFD, back=ring('QKVA')-1))
        gemm_loop(A, cfg, P, fail)
        A(f's_branch {done}')

def sel_layer(A, sdst, vals):
    A(f's_mul_i32 {s(sdst)}, {s(S_L)}, {hex(vals[1]-vals[0])}')
    A(f's_add_u32 {s(sdst)}, {s(sdst)}, {hex(vals[0])}')

def part_store_addr(A, vdst):
    A(f'v_lshrrev_b32 v72, 3, v78'); A(f'v_mul_u32_u24 v72, 18432, v72')
    A(f'v_lshlrev_b32 v73, 7, v77'); A(f'v_add_u32 v72, v72, v73')
    A(f'v_lshlrev_b32 v73, 4, v76'); A(f'v_add_u32 {v(vdst)}, v72, v73')

def part_epilogue(NT, VPS, stride):
    def f(A):
        A(f's_add_u32 {s(S_DST2)}, {s(S_DST)}, 36864')
        for t in range(NT):
            for tt in range(2):
                A(f'buffer_store_dwordx4 {v(t*8+tt*4,4)}, {v(VPS)}, {s(S_WS,4)}, {s(S_DST2 if tt else S_DST)} offen offset:{t*512}' + SCOPE[0])
        A(f's_add_u32 {s(S_DST)}, {s(S_DST)}, {stride}')
    return f

def role_a3(A, cfg, fail, done):
    set_scope(True)
    w = s(S_WAVE)
    lane_setup(A)
    S_T0 = S_A
    A(f's_mul_i32 {s(S_T0)}, {s(S_IDX)}, 12')
    A(f's_mul_i32 {s(S_TMP)}, {w}, 3')
    A(f's_add_u32 {s(S_T0)}, {s(S_T0)}, {s(S_TMP)}')
    A(f's_lshl_b32 {s(S_B)}, {s(S_T0)}, 5')
    A('v_lshrrev_b32 v70, 1, v79')
    A('v_lshrrev_b32 v71, 4, v70')
    A('v_and_b32 v72, 15, v70')
    A('v_mul_u32_u24 v73, 18, v71'); A('v_add_u32 v73, v73, v72'); A('v_mul_u32_u24 v68, 1152, v73')
    A('v_mul_u32_u24 v73, 144, v71')
    A('v_lshrrev_b32 v71, 1, v72'); A('v_mul_u32_u24 v71, 18, v71'); A('v_add_u32 v73, v73, v71')
    A('v_and_b32 v71, 1, v72'); A('v_add_u32 v73, v73, v71'); A('v_add_u32 v73, 16, v73')
    A('v_mul_u32_u24 v69, 1152, v73')
    A('v_and_b32 v72, 1, v79'); A('v_lshlrev_b32 v72, 4, v72')
    A('v_add_u32 v68, v68, v72'); A('v_add_u32 v69, v69, v72')
    blocks = []
    for t in range(3):
        for ks in range(18):
            def issue(A, t=t, ks=ks):
                off = (ks*36*1152 if ks < 16 else (ks-16)*288*1152) + t*32
                A(f's_add_u32 {s(S_SOFF)}, {s(S_B)}, {off}')
                dma16(A, 68 if ks < 16 else 69, s(S_SOFF))
            blocks.append(dict(issue=issue, dst=lambda half, t=t, ks=ks: a(t*72 + ks*4 + 2*half, 2)))
    block_loader(A, blocks, KA_AWO, 576*1152, per_round=27)
    VL16, VRD, VPOLL, VFLAG, VZERO, VT, VPS = 60, 61, 62, 63, 64, 65, 66
    A(f'v_lshlrev_b32 {v(VL16)}, 4, v79')
    A(f'v_mov_b32 {v(VZERO)}, 0')
    sel_layer(A, S_TMP+2, R_ATTA)
    flagaddr(A, VPOLL, s(S_TMP+2), 64)
    VPD, VFD = 67, 68
    sel_layer(A, S_TMP+2, R_RA)
    flagaddr(A, VPD, s(S_TMP+2), 16)
    own_flag(A)
    part_store_addr(A, VPS)
    sel_layer(A, S_SRC, WS_OA)
    sel_layer(A, S_DST, WS_PA)
    A(f's_lshl_b32 {s(S_TMP)}, {s(S_T0)}, 9')
    A(f's_add_u32 {s(S_DST)}, {s(S_DST)}, {s(S_TMP)}')
    cfg['barrier_wait'](A)
    P = dict(NT=3, NKS=18, D=3, W=lambda t, ks: a(t*72 + ks*4, 4), ACC=lambda t, tt: t*8+tt*4, RING=24, VL16=VL16, VRD=VRD, VPOLL=VPOLL,
             VFLAG=VFLAG, VZERO=VZERO, VT=VT, nst=6, swap=lambda t: False, epilogue=part_epilogue(3, VPS, SEG_PA), src_stride=SEG_XN,
             src_ring=ring('OA'), dst_ring=ring('PA'), dst_stride=SEG_PA, down=dict(VP=VPD, VF=VFD, back=ring('PA')-1))
    gemm_loop(A, cfg, P, fail)
    A(f's_branch {done}')

def role_b3(A, cfg, fail, done):
    set_scope(True)
    w = s(S_WAVE)
    lane_setup(A)
    S_KQ, S_T0 = S_A, S_B
    A(f's_mul_i32 {s(S_KQ)}, {s(S_IDX)}, 43')
    A(f's_lshr_b32 {s(S_KQ)}, {s(S_KQ)}, 7')
    A(f's_mul_i32 {s(S_TMP)}, {s(S_KQ)}, 3')
    A(f's_sub_u32 {s(S_TMP)}, {s(S_IDX)}, {s(S_TMP)}')
    A(f's_mul_i32 {s(S_T0)}, {s(S_TMP)}, 12')
    A(f's_mul_i32 {s(S_TMP)}, {w}, 3')
    A(f's_add_u32 {s(S_T0)}, {s(S_T0)}, {s(S_TMP)}')
    A(f's_mul_i32 {s(S_C)}, {s(S_KQ)}, {1024*1152}')
    A(f's_lshl_b32 {s(S_TMP)}, {s(S_T0)}, 5')
    A(f's_add_u32 {s(S_C)}, {s(S_C)}, {s(S_TMP)}')
    A('v_lshrrev_b32 v68, 1, v79'); A('v_mul_u32_u24 v68, 1152, v68')
    A('v_and_b32 v72, 1, v79'); A('v_lshlrev_b32 v72, 4, v72'); A('v_add_u32 v68, v68, v72')
    WB = 128
    blocks = []
    for ks in range(32):
        for t in range(3):
            def issue(A, t=t, ks=ks):
                A(f's_add_u32 {s(S_SOFF)}, {s(S_C)}, {ks*32*1152 + t*32}')
                dma16(A, 68, s(S_SOFF))
            blocks.append(dict(issue=issue, dst=lambda half, t=t, ks=ks: wreg_lin(t*128 + ks*4 + 2*half, 2, WB)))
    block_loader(A, blocks, KA_WO, 4096*1152, per_round=32)
    VL16, VRD, VPOLL, VFLAG, VZERO, VT, VPS = 60, 61, 62, 63, 64, 65, 66
    A(f'v_lshlrev_b32 {v(VL16)}, 4, v79')
    A(f'v_mov_b32 {v(VZERO)}, 0')
    sel_layer(A, S_TMP+2, R_ATTB)
    A(f's_lshl_b32 {s(S_TMP)}, {s(S_KQ)}, 1')
    A(f's_add_u32 {s(S_TMP+2)}, {s(S_TMP+2)}, {s(S_TMP)}')
    flagaddr(A, VPOLL, s(S_TMP+2), 8)
    VPD, VFD = 67, 68
    sel_layer(A, S_TMP+2, R_RB)
    flagaddr(A, VPD, s(S_TMP+2), 32)
    own_flag(A)
    part_store_addr(A, VPS)
    sel_layer(A, S_SRC, WS_OB)
    A(f's_lshl_b32 {s(S_TMP)}, {s(S_KQ)}, 16')
    A(f's_add_u32 {s(S_SRC)}, {s(S_SRC)}, {s(S_TMP)}')
    sel_layer(A, S_DST, WS_PB)
    A(f's_mul_i32 {s(S_TMP)}, {s(S_KQ)}, 73728')
    A(f's_add_u32 {s(S_DST)}, {s(S_DST)}, {s(S_TMP)}')
    A(f's_lshl_b32 {s(S_TMP)}, {s(S_T0)}, 9')
    A(f's_add_u32 {s(S_DST)}, {s(S_DST)}, {s(S_TMP)}')
    cfg['barrier_wait'](A)
    P = dict(NT=3, NKS=32, D=3, W=lambda t, ks: wreg_lin(t*128 + ks*4, 4, WB), ACC=lambda t, tt: t*8+tt*4, RING=24, VL16=VL16, VRD=VRD, VPOLL=VPOLL,
             VFLAG=VFLAG, VZERO=VZERO, VT=VT, nst=6, swap=lambda t: False, epilogue=part_epilogue(3, VPS, SEG_PB), src_stride=SEG_OB, KMID=10,
             src_ring=ring('OB'), dst_ring=ring('PB'), dst_stride=SEG_PB, down=dict(VP=VPD, VF=VFD, back=ring('PB'), odd=True))
    gemm_loop(A, cfg, P, fail)
    A(f's_branch {done}')

def role_b1(A, cfg, fail, done):
    set_scope(False)
    w = s(S_WAVE)
    lane_setup(A)
    issue_half, consume_half = qkv_loader(A, True)
    issue_half(0); issue_half(1)
    for hf in range(6):
        A(f's_waitcnt vmcnt({18 if hf < 5 else 0})')
        A('s_barrier')
        consume_half(hf)
        A('s_barrier')
        if hf + 2 < 6: issue_half(hf + 2)
    VL16, VRD, VPOLL, VFLAG, VZERO, VT = 64, 65, 66, 67, 68, 69
    A(f'v_lshlrev_b32 {v(VL16)}, 4, v79')
    A(f'v_mov_b32 {v(VZERO)}, 0')
    sel_layer(A, S_TMP+2, R_RA)
    flagaddr(A, VPOLL, s(S_TMP+2), 16)
    own_flag(A)
    sel_layer(A, S_SRC, WS_XNB)
    A(f's_mul_i32 {s(S_DST)}, {s(S_L)}, {QKVX_STRIDE}')
    A(f's_mul_i32 {s(S_TMP)}, {s(S_IDX)}, 24576')
    A(f's_add_u32 {s(S_DST)}, {s(S_DST)}, {s(S_TMP)}')
    A(f's_lshl_b32 {s(S_TMP)}, {w}, 10')
    A(f's_add_u32 {s(S_DST)}, {s(S_DST)}, {s(S_TMP)}')
    A(f's_add_u32 {s(S_DST)}, {s(S_DST)}, {WS_QKVX}')
    cfg['barrier_wait'](A)
    def W(t, ks): return [WQ, WK, WV][t//2](t % 2, ks)
    def ACC(t, tt):
        m = t//2
        return (m*2 + tt)*8 + (t % 2)*4 if m < 2 else 32 + (t % 2)*8 + tt*4
    def epi(A):
        for m in range(2):
            for tt in range(2):
                b = (m*2+tt)*8
                cvt(A, b, b, b+1); cvt(A, b+1, b+2, b+3); cvt(A, b+2, b+4, b+5); cvt(A, b+3, b+6, b+7)
                A(f's_add_u32 {s(S_DST2)}, {s(S_DST)}, {m*8192 + tt*4096}')
                A(f'buffer_store_dwordx4 {v(b,4)}, {v(VL16)}, {s(S_WS,4)}, {s(S_DST2)} offen sc1')
        A(f's_lshl_b32 {s(S_TMP)}, {w}, 10')
        A(f's_add_u32 {s(S_DST2)}, {s(S_DST)}, {s(S_TMP)}')
        A(f's_add_u32 {s(S_DST2)}, {s(S_DST2)}, 16384')
        for t in range(2):
            b = 32 + t*8
            cvt(A, b, b, b+1); cvt(A, b+1, b+2, b+3); cvt(A, b+2, b+4, b+5); cvt(A, b+3, b+6, b+7)
            A(f'buffer_store_dwordx4 {v(b,4)}, {v(VL16)}, {s(S_WS,4)}, {s(S_DST2)} offen offset:{t*1024} sc1')
        A(f's_add_u32 {s(S_DST)}, {s(S_DST)}, {32*24576}')
    P = dict(NT=6, NKS=18, D=2, W=W, ACC=ACC, RING=48, VL16=VL16, VRD=VRD, VPOLL=VPOLL, VFLAG=VFLAG, VZERO=VZERO, VT=VT,
             nst=6, swap=lambda t: t >= 4, epilogue=epi, src_stride=SEG_XN, KMID=6)
    gemm_loop(A, cfg, P, fail)
    A(f's_branch {done}')
```

```python
from asm import *
from common import *

S_KA = 0
S_WG = 2
S_WS = 4
S_SRD = 8
S_DBG = 12
S_ROLE = 14
S_WAVE = 15
S_XCC = 16
S_TMP = 17
S_SPIN = 20
S_PTR = 22
S_MODE = 24

MF = 'v_mfma_f32_16x16x32_bf16'
MF16 = 'v_mfma_f32_16x16x16_bf16'

def srd_from_ptr(A, sdst, sptr, size):
    A(f's_mov_b32 {s(sdst)}, {s(sptr)}')
    A(f's_and_b32 {s(sdst+1)}, {s(sptr+1)}, 0xffff')
    A(f's_mov_b32 {s(sdst+2)}, {hex(size)}')
    A(f's_mov_b32 {s(sdst+3)}, 0x00020000')

def load_ptr_srd(A, sdst, ka_off, size):
    A(f's_load_dwordx2 {s(S_PTR,2)}, {s(S_KA,2)}, {ka_off}')
    A('s_waitcnt lgkmcnt(0)')
    srd_from_ptr(A, sdst, S_PTR, size)

L_WO = 0
L_MEM = 147456
L_S = L_MEM + 9216
L_O = L_S + 5120

V_MEMRD, V_WO0, V_WO1, V_SW, V_SRX, V_SRM, V_OW, V_OR, V_PST, V_PLD, V_MST, V_T16, V_T4, V_L16 = range(14)
V_KX = 14
V_VX = 22
V_AV = 30
V_RING = 38
V_AQ = 50
V_QF = 66
V_KF = 70
V_T = 74
V_FLAG = 77
V_ZERO = 78
V_SC = 79
def WQ(t, ks): return a(t*72 + ks*4, 4)
def WK(t, ks):
    i = 144 + t*72 + ks*4
    return a(i, 4) if i < 256 else v(80 + i - 256, 4)
def WV(t, ks): return v(112 + t*72 + ks*4, 4)
def wreg(m, t, ks, half):
    if m == 0: return a(t*72 + ks*4 + 2*half, 2)
    if m == 1:
        i = 144 + t*72 + ks*4 + 2*half
        return a(i, 2) if i < 256 else v(80 + i - 256, 2)
    return v(112 + t*72 + ks*4 + 2*half, 2)

S_H = 26; S_L = 27; S_STEP = 28
S_PL = 30
S_PST = 38
S_PST2 = 49
S_MB0 = 39; S_MB1 = 40
S_MB0b = 41; S_MB1b = 42
S_MB0c = 43; S_MB1c = 44
S_KX = 45
S_KVM = 46
S_FLAGIN = 47
S_FLAGOUT = 48
S_T0 = 50
S_T1 = 52
S_EX8 = 54
S_EXM = 56
S_EXP = 58
S_EXS = 60
S_SOFF = 62
S_M0 = 63

JIT = [0]
PSLEEP = [0]
def jitter(A):
    if not JIT[0]: return
    lp = A.newlabel('jit'); en = A.newlabel('jite')
    A('s_memtime s[96:97]')
    A('s_waitcnt lgkmcnt(0)')
    A('s_lshr_b32 s96, s96, 3')
    A(f's_and_b32 s96, s96, {JIT[0]}')
    A('s_cmp_lt_u32 s96, 8') if JIT[0] > 15 else None
    A(f's_cbranch_scc0 {en}') if JIT[0] > 15 else None
    A.label(lp)
    A('s_cmp_eq_u32 s96, 0')
    A(f's_cbranch_scc1 {en}')
    A('s_sleep 6')
    A('s_sub_u32 s96, s96, 1')
    A(f's_branch {lp}')
    A.label(en)

def spin_check(A, retry_label, fail_label):
    if PSLEEP[0]: A(f's_sleep {PSLEEP[0]}')
    A(f's_sub_u32 {s(S_SPIN)}, {s(S_SPIN)}, 1')
    A(f's_cmp_lg_u32 {s(S_SPIN)}, 0')
    A(f's_cbranch_scc1 {retry_label}')
    A(f's_branch {fail_label}')

def init_signal(A, cfg, va, vb):
    if cfg.get('NODEFER'): return
    sk = A.newlabel('isig')
    A(f's_or_b32 {s(S_TMP)}, {s(S_WAVE)}, {s(S_L)}')
    A(f's_cmp_lg_u32 {s(S_TMP)}, 0')
    A(f's_cbranch_scc1 {sk}')
    A(f'v_mov_b32 {v(va)}, 0'); A(f'v_mov_b32 {v(vb)}, 1')
    A('s_mov_b64 exec, 1')
    A(f'global_atomic_add {v(va)}, {v(vb)}, {s(S_DBG,2)} offset:{DBG_INIT0*4}')
    A('s_mov_b64 exec, -1')
    A.label(sk); A.flush()

def init_defer(A, cfg, fail, va=10, vb=11):
    if cfg.get('NODEFER'): return
    sk = A.newlabel('idef'); re_ = A.newlabel('idre'); ok = A.newlabel('idok')
    A(f's_cmp_eq_u32 {s(S_L)}, 0')
    A(f's_cbranch_scc1 {sk}')
    A(f's_cmp_lg_u32 {s(S_WAVE)}, 0')
    A(f's_cbranch_scc1 {ok}')
    A(f's_mov_b32 {s(S_SPIN)}, {SPIN_LIMIT}')
    A(f'v_mov_b32 {v(va)}, 0')
    A.label(re_)
    A(f'global_load_dword {v(vb)}, {v(va)}, {s(S_DBG,2)} offset:{DBG_INIT0*4} sc1')
    A('s_waitcnt vmcnt(0)')
    A(f'v_readfirstlane_b32 {s(S_TMP)}, {v(vb)}')
    A(f's_cmp_ge_u32 {s(S_TMP)}, {cfg.get("INITN", 64)}')
    A(f's_cbranch_scc1 {ok}')
    A('s_sleep 8')
    spin_check(A, re_, fail)
    A.label(ok); A.flush()
    A('s_barrier')
    A.label(sk); A.flush()

def qkv_loader(A, dord):
    w = s(S_WAVE)
    LN, COL, G, TOK = 79, 78, 77, 76
    A(f'v_lshlrev_b32 v16, 1, {v(G)}')
    A(f'v_xor_b32 v16, v16, {v(COL)}')
    A(f'v_xor_b32 v17, 8, v16')
    A(f'v_lshlrev_b32 v16, 4, v16')
    A(f'v_lshlrev_b32 v17, 4, v17')
    A(f'v_lshlrev_b32 v18, 13, {v(G)}')
    A(f'v_add_u32 v14, v16, v18')
    A(f'v_add_u32 v15, v17, v18')
    A(f'v_lshrrev_b32 v16, 2, {v(COL)}')
    A(f'v_and_b32 v17, 3, {v(COL)}')
    if dord: A(f'v_lshrrev_b32 v18, 1, {v(G)}')
    else: A(f'v_and_b32 v18, 1, {v(G)}')
    A(f'v_lshlrev_b32 v18, 2, v18')
    A(f'v_or_b32 v18, v18, v16')
    A(f'v_lshlrev_b32 v18, 1, v18')
    A(f'v_lshrrev_b32 v19, 1, v17')
    A(f's_lshl_b32 {s(S_TMP)}, {w}, 2')
    A(f'v_add_u32 v19, {s(S_TMP)}, v19')
    A(f'v_and_b32 v17, 1, v17')
    A(f'v_lshlrev_b32 v17, 3, v17')
    A(f'v_lshlrev_b32 v20, {2 if dord else 3}, {v(G)}')
    A(f'v_add_u32 v20, v20, v16')
    A(f'v_lshlrev_b32 v20, 8, v20')
    A(f'v_add_u32 v20, v20, v17')
    A(f'v_xor_b32 v21, v19, v18')
    A(f'v_add_u32 v19, 2, v19')
    A(f'v_xor_b32 v22, v19, v18')
    A(f'v_lshlrev_b32 v21, 4, v21')
    A(f'v_lshlrev_b32 v22, 4, v22')
    A(f'v_add_u32 v21, v21, v20')
    A(f'v_add_u32 v22, v22, v20')
    A(f'v_add_u32 v23, 0x10000, v21')
    A(f'v_add_u32 v24, 0x10000, v22')
    for r in (21, 22, 23, 24):
        A(f'v_add_u32 {v(r+4)}, 73728, {v(r)}')
    KA = [KA_WQ, KA_WK, KA_WV]
    WSZ = 576*4096*2
    def issue_half(hf):
        m, part = hf // 2, hf % 2
        buf = hf % 2
        load_ptr_srd(A, S_SRD, KA[m], WSZ)
        A(f's_lshl_b32 {s(S_SOFF)}, {s(S_H)}, 8')
        A(f's_lshl_b32 {s(S_TMP)}, {w}, 15')
        A(f's_add_u32 {s(S_SOFF)}, {s(S_SOFF)}, {s(S_TMP)}')
        if part: A(f's_add_u32 {s(S_SOFF)}, {s(S_SOFF)}, {288*8192}')
        A(f's_lshl_b32 {s(S_M0)}, {w}, 10')
        if buf: A(f's_add_u32 {s(S_M0)}, {s(S_M0)}, 73728')
        for j in range(18):
            A(f's_mov_b32 m0, {s(S_M0)}')
            A(f'buffer_load_dwordx4 v29, {s(S_SRD,4)}, {s(S_SOFF)} offen lds')
            if j < 17:
                A(f's_add_u32 {s(S_SOFF)}, {s(S_SOFF)}, {16*8192}')
                A(f's_add_u32 {s(S_M0)}, {s(S_M0)}, 4096')
    A(f's_and_b32 {s(S_TMP)}, {w}, 2')
    A(f's_cmp_eq_u32 {s(S_TMP)}, 0')
    A(f's_cselect_b64 vcc, -1, 0')
    A(f'v_cndmask_b32 v29, v15, v14, vcc')
    def consume_half(hf):
        m, part = hf // 2, hf % 2
        buf = hf % 2
        for t in range(2):
            for k in range(9):
                ks = part*9 + k
                for half in range(2):
                    base = (21 + t) if k < 8 else (23 + t)
                    if buf: base += 4
                    off = (k % 8)*8192 + half*(4096 if dord else 1024)
                    A(f'ds_read_b64_tr_b16 {wreg(m, t, ks, half)}, {v(base)} offset:{off}')
                if k % 4 == 3: A('s_waitcnt lgkmcnt(8)')
        A('s_waitcnt lgkmcnt(0)')
    return issue_half, consume_half

S_TS = 96
def tstamp(A, cfg, slot, vt, vzero):
    if not cfg.get('TIME'): return
    if cfg.get('LEAN') and not (isinstance(slot, int) and slot >= 100): return
    sk = A.newlabel('ts')
    A(f's_cmp_lg_u32 {s(S_WAVE)}, 0')
    A(f's_cbranch_scc1 {sk}')
    A(f's_memrealtime {s(S_TS,2)}')
    A(f's_lshl_b32 {s(S_TS+2)}, {s(S_ROLE)}, 9')
    A(f's_add_u32 {s(S_TS+2)}, {s(S_TS+2)}, {hex(WS_TIME)}')
    if isinstance(slot, int): A(f's_add_u32 {s(S_TS+2)}, {s(S_TS+2)}, {slot*4}')
    else:
        A(f's_lshl_b32 {s(S_TS+3)}, {slot}, 2')
        A(f's_add_u32 {s(S_TS+2)}, {s(S_TS+2)}, {s(S_TS+3)}')
    A('s_waitcnt lgkmcnt(0)')
    A(f'v_mov_b32 {v(vt)}, {s(S_TS)}')
    A('s_mov_b64 exec, 1')
    A(f'buffer_store_dword {v(vt)}, {v(vzero)}, {s(S_WS,4)}, {s(S_TS+2)} offen')
    A('s_mov_b64 exec, -1')
    A.label(sk)

def dstamp(A, cfg, slot, role, sreg=None, va=None, vb=None):
    if not cfg.get('DBGT'): return
    sk = A.newlabel('ds')
    A(f's_cmp_lg_u32 {s(S_ROLE)}, {role}'); A(f's_cbranch_scc1 {sk}')
    A(f's_cmp_lg_u32 {s(S_WAVE)}, 0'); A(f's_cbranch_scc1 {sk}')
    if sreg is None:
        A(f's_memrealtime {s(S_TS,2)}'); A('s_waitcnt lgkmcnt(0)'); sreg = S_TS
    A(f'v_mov_b32 {v(va)}, {s(sreg)}'); A(f'v_mov_b32 {v(vb)}, 0')
    A('s_mov_b64 exec, 1')
    A(f'global_store_dword {v(vb)}, {v(va)}, {s(S_DBG,2)} offset:{4*(slot+8)}')
    A('s_mov_b64 exec, -1')
    A.label(sk)

def fst(A, cfg, idx, sreg, val=32):
    if not cfg.get('FINE'): return
    sk = A.newlabel('fs')
    A(f's_cmp_lg_u32 {s(sreg)}, {val}')
    A(f's_cbranch_scc1 {sk}')
    A(f's_memrealtime {s(S_TS,2)}')
    A('s_waitcnt lgkmcnt(0)')
    A(f's_mov_b32 {s(80+idx)}, {s(S_TS)}')
    A.label(sk)

def chain_init(A, cfg):
    w = s(S_WAVE)
    LN, COL, G, TOK = 79, 78, 77, 76
    A(f'v_and_b32 {v(LN)}, 63, v0')
    A(f'v_mov_b32 {v(75)}, v0')
    A(f'v_and_b32 {v(COL)}, 15, {v(LN)}')
    A(f'v_lshrrev_b32 {v(G)}, 4, {v(LN)}')
    A(f'v_and_b32 {v(TOK)}, 7, {v(LN)}')
    TID = 75
    issue_half, consume_half = qkv_loader(A, False)
    def issue_wo(buf):
        load_ptr_srd(A, S_SRD, KA_WO, 32*128*576*2)
        A(f's_mul_i32 {s(S_SOFF)}, {s(S_H)}, 147456')
        A(f's_lshl_b32 {s(S_M0)}, {w}, 10')
        if buf: A(f's_add_u32 {s(S_M0)}, {s(S_M0)}, 73728')
        A(f's_add_u32 {s(S_SOFF)}, {s(S_SOFF)}, {s(S_M0)}')
        for j in range(18):
            A(f's_mov_b32 m0, {s(S_M0)}')
            A(f'buffer_load_dwordx4 {v(V_L16)}, {s(S_SRD,4)}, {s(S_SOFF)} offen lds')
            if j < 17:
                A(f's_add_u32 {s(S_SOFF)}, {s(S_SOFF)}, 4096')
                A(f's_add_u32 {s(S_M0)}, {s(S_M0)}, 4096')
    A(f'v_lshlrev_b32 {v(V_L16)}, 4, {v(LN)}')
    issue_half(0)
    issue_half(1)
    for hf in range(6):
        A('s_waitcnt vmcnt(18)')
        A('s_barrier')
        consume_half(hf)
        A('s_barrier')
        if hf + 2 < 6: issue_half(hf + 2)
        else: issue_wo(hf % 2)
    A(f'v_lshrrev_b32 v16, 2, {v(COL)}')
    A(f'v_and_b32 v17, 3, {v(COL)}')
    A(f'v_lshlrev_b32 v18, 2, {v(G)}')
    A(f'v_add_u32 v18, v18, v16')
    A(f'v_mul_u32_u24 v18, 1152, v18')
    A(f'v_lshlrev_b32 v17, 3, v17')
    A(f'v_add_u32 v18, v18, v17')
    A(f's_mul_i32 {s(S_TMP)}, {w}, 288')
    A(f'v_add_u32 v18, {s(S_TMP)}, v18')
    A(f's_mul_i32 {s(S_TMP)}, {w}, 9216')
    A(f'v_add_u32 {v(V_WO0)}, {s(S_TMP)}, {v(V_L16)}')
    A(f'v_add_u32 {v(V_WO1)}, {2*36864}, {v(V_WO0)}')
    A(f'v_mov_b32 v19, {v(V_WO0)}')
    for ks in range(4):
        if ks == 0: A('s_waitcnt vmcnt(18)'); A('s_barrier')
        if ks == 2: A('s_waitcnt vmcnt(0)'); A('s_barrier')
        for t in range(9):
            A(f'ds_read_b64_tr_b16 {v(30+4*t,2)}, v18 offset:{t*32}')
            A(f'ds_read_b64_tr_b16 {v(30+4*t+2,2)}, v18 offset:{t*32 + 16*1152}')
        A('s_waitcnt lgkmcnt(0)')
        A('s_barrier')
        for t in range(9):
            A(f'ds_write_b128 v19, {v(30+4*t,4)} offset:{t*1024}')
        if ks < 3:
            A(f'v_add_u32 v18, 36864, v18')
            A(f'v_add_u32 v19, 36864, v19')
        A('s_waitcnt lgkmcnt(0)')
    A(f'v_lshlrev_b32 v16, 7, {v(G)}')
    A(f'v_lshlrev_b32 v17, 4, {v(TOK)}')
    A(f'v_add_u32 v16, v16, v17')
    A(f's_mul_i32 {s(S_TMP)}, {w}, 1280')
    A(f's_add_u32 {s(S_TMP)}, {s(S_TMP)}, {L_S}')
    A(f'v_add_u32 {v(V_SW)}, {s(S_TMP)}, v16')
    A(f'v_lshrrev_b32 v18, 3, {v(COL)}')
    A(f'v_lshlrev_b32 v18, 9, v18')
    A(f'v_add_u32 v18, v18, v16')
    A(f'v_add_u32 {v(V_SRX)}, {L_S}, v18')
    A(f'v_and_b32 v18, 1, {v(G)}')
    A(f'v_lshlrev_b32 v18, 7, v18')
    A(f'v_add_u32 v18, v18, v17')
    A(f'v_add_u32 {v(V_SRM)}, {L_S+1024}, v18')
    A(f'v_add_u32 {v(V_OR)}, {L_O}, v16')
    A(f's_lshl_b32 {s(S_TMP)}, {w}, 9')
    A(f'v_add_u32 {v(V_OW)}, {s(S_TMP)}, {v(V_OR)}')
    A(f'v_lshrrev_b32 v16, 1, {v(G)}')
    A(f'v_lshlrev_b32 v16, 8, v16')
    A(f'v_lshlrev_b32 v17, 5, {v(TOK)}')
    A(f'v_add_u32 v16, v16, v17')
    A(f'v_and_b32 v17, 1, {v(G)}')
    A(f'v_lshlrev_b32 v17, 4, v17')
    A(f'v_add_u32 v16, v16, v17')
    A(f'v_add_u32 {v(V_MEMRD)}, {L_MEM}, v16')
    A(f'v_lshlrev_b32 v16, 2, {v(TOK)}')
    A(f'v_add_u32 v16, v16, {v(G)}')
    A(f'v_lshlrev_b32 v16, 4, v16')
    A(f's_mul_i32 {s(S_TMP)}, {w}, {288*16}')
    A(f'v_add_u32 {v(V_PST)}, {s(S_TMP)}, v16')
    A(f's_mul_i32 {s(S_TMP)}, {s(S_H)}, 36')
    A(f's_mul_i32 {s(S_TMP+1)}, {w}, 9')
    A(f's_add_u32 {s(S_TMP)}, {s(S_TMP)}, {s(S_TMP+1)}')
    A(f'v_add_u32 v16, {s(S_TMP)}, {v(COL)}')
    A(f'v_mul_u32_u24 v17, 18432, {v(G)}')
    A(f'v_lshlrev_b32 v18, 4, v16')
    A(f'v_add_u32 {v(V_PLD)}, v17, v18')
    A(f'v_lshlrev_b32 v16, 3, v16')
    A(f'v_lshrrev_b32 v17, 1, {v(G)}')
    A(f'v_lshlrev_b32 v17, 2, v17')
    A(f'v_add_u32 {v(V_MST)}, v16, v17')
    A(f'v_lshlrev_b32 {v(V_T16)}, 4, {v(TID)}')
    A(f'v_lshlrev_b32 {v(V_T4)}, 2, {v(TID)}')
    A(f's_mul_i32 {s(S_TMP)}, {s(S_L)}, {PART_STRIDE}')
    A(f's_add_u32 {s(S_TMP)}, {s(S_TMP)}, {WS_PART}')
    for i in range(8):
        A(f's_add_u32 {s(S_PL+i)}, {s(S_TMP)}, {i*73728}')
    A(f's_mul_i32 {s(S_TMP+1)}, {s(S_H)}, 18432')
    A(f's_add_u32 {s(S_PST)}, {s(S_TMP)}, {s(S_TMP+1)}')
    A(f's_add_u32 {s(S_PST2)}, {s(S_PST)}, 4096')
    A(f's_mul_i32 {s(S_TMP)}, {s(S_L)}, {MEMB_STRIDE}')
    A(f's_add_u32 {s(S_MB0)}, {s(S_TMP)}, {WS_MEMB}')
    A(f's_add_u32 {s(S_MB1)}, {s(S_MB0)}, 9216')
    A(f's_add_u32 {s(S_MB0b)}, {s(S_MB0)}, 4096')
    A(f's_add_u32 {s(S_MB1b)}, {s(S_MB1)}, 4096')
    A(f's_add_u32 {s(S_MB0c)}, {s(S_MB0)}, 8192')
    A(f's_add_u32 {s(S_MB1c)}, {s(S_MB1)}, 8192')
    A(f's_mul_i32 {s(S_TMP)}, {s(S_L)}, {QKVX_STRIDE}')
    A(f's_mul_i32 {s(S_TMP+1)}, {s(S_H)}, 24576')
    A(f's_add_u32 {s(S_KX)}, {s(S_TMP)}, {s(S_TMP+1)}')
    A(f's_add_u32 {s(S_KX)}, {s(S_KX)}, {WS_QKVX}')
    A(f's_mul_i32 {s(S_TMP)}, {s(S_L)}, {KVM_STRIDE}')
    A(f's_lshl_b32 {s(S_TMP+1)}, {s(S_H)}, 13')
    A(f's_add_u32 {s(S_KVM)}, {s(S_TMP)}, {s(S_TMP+1)}')
    A(f's_lshl_b32 {s(S_TMP+1)}, {w}, 10')
    A(f's_add_u32 {s(S_KVM)}, {s(S_KVM)}, {s(S_TMP+1)}')
    A(f's_add_u32 {s(S_KVM)}, {s(S_KVM)}, {WS_KVM}')
    A(f's_lshl_b32 {s(S_TMP)}, {s(S_ROLE)}, 7')
    A(f's_lshl_b32 {s(S_TMP+1)}, {w}, 2')
    A(f's_add_u32 {s(S_FLAGOUT)}, {s(S_TMP)}, {s(S_TMP+1)}')
    A(f's_mul_i32 {s(S_TMP)}, {s(S_L)}, {R_B1[1]-R_B1[0]}')
    A(f's_add_u32 {s(S_TMP)}, {s(S_TMP)}, {s(S_H)}')
    A(f's_add_u32 {s(S_TMP)}, {s(S_TMP)}, {R_B1[0]}')
    A(f's_lshl_b32 {s(S_TMP)}, {s(S_TMP)}, 7')
    A(f's_add_u32 {s(S_FLAGIN)}, {s(S_TMP)}, {s(S_TMP+1)}')
    for sr, val in ((S_EX8, 0x00FF00FF00FF00FF), (S_EXM, 0x0000000000FF00FF), (S_EXP, 0x01FF01FF01FF01FF), (S_EXS, 0x000001FF000001FF)):
        A(f's_mov_b32 {s(sr)}, {hex(val & 0xffffffff)}')
        A(f's_mov_b32 {s(sr+1)}, {hex(val >> 32)}')
    load_ptr_srd(A, S_SRD, KA_MEM0, 8*576*2)
    for rnd in range(3):
        A(f'v_add_u32 v16, {256*rnd}, {v(TID)}')
        A(f'v_lshrrev_b32 v17, 4, v16')
        A(f'v_lshlrev_b32 v17, 5, v17')
        A(f'v_bfe_u32 v18, v16, 1, 3')
        A(f'v_mul_u32_u24 v18, 1152, v18')
        A(f'v_add_u32 v17, v17, v18')
        A(f'v_and_b32 v18, 1, v16')
        A(f'v_lshlrev_b32 v18, 4, v18')
        A(f'v_add_u32 v17, v17, v18')
        A(f'v_lshlrev_b32 v16, 4, v16')
        A(f'v_add_u32 v16, {L_MEM}, v16')
        if rnd == 2:
            A(f'v_cmp_gt_u32 vcc, 64, {v(TID)}')
            A(f's_and_saveexec_b64 {s(S_T0,2)}, vcc')
            lab = A.newlabel('skipm'); A(f's_cbranch_execz {lab}')
        A(f'buffer_load_dwordx4 v[20:23], v17, {s(S_SRD,4)}, 0 offen')
        A('s_waitcnt vmcnt(0)')
        A(f'ds_write_b128 v16, v[20:23]')
        if rnd == 2:
            A.label(lab)
            A(f's_mov_b64 exec, -1')
    A('s_waitcnt lgkmcnt(0)')
    A(f'v_mov_b32 {v(V_ZERO)}, 0')
    A(f'v_mov_b32 {v(V_SC)}, {hex(f32((128 ** -0.5) * 1.4426950408889634))}')

def kxvx_load(A):
    w = s(S_WAVE)
    A(f's_lshl_b32 {s(S_TMP)}, {w}, 10')
    A(f's_add_u32 {s(S_TMP)}, {s(S_TMP)}, {s(S_KX)}')
    A(f's_add_u32 {s(S_TMP+1)}, {s(S_TMP)}, 8192')
    A(f's_add_u32 {s(S_TMP+2)}, {s(S_TMP)}, {8192+4096}')
    A(f'buffer_load_dwordx4 {v(V_KX,4)}, {v(V_L16)}, {s(S_WS,4)}, {s(S_TMP+1)} offen')
    A(f'buffer_load_dwordx4 {v(V_KX+4,4)}, {v(V_L16)}, {s(S_WS,4)}, {s(S_TMP+2)} offen')
    A(f's_lshl_b32 {s(S_TMP)}, {w}, 11')
    A(f's_add_u32 {s(S_TMP)}, {s(S_TMP)}, {s(S_KX)}')
    A(f's_add_u32 {s(S_TMP+1)}, {s(S_TMP)}, 16384')
    A(f'buffer_load_dwordx4 {v(V_VX,4)}, {v(V_L16)}, {s(S_WS,4)}, {s(S_TMP+1)} offen')
    A(f'buffer_load_dwordx4 {v(V_VX+4,4)}, {v(V_L16)}, {s(S_WS,4)}, {s(S_TMP+1)} offen offset:1024')
    A(f's_add_u32 {s(S_KX)}, {s(S_KX)}, {32*24576}')

def stamp(A, cfg, idx):
    if not cfg.get('STAMPS'): return
    A(f's_memtime {s(S_T1,2)}')
    A('s_waitcnt lgkmcnt(0)')
    A(f's_mov_b32 {s(64+idx)}, {s(S_T1)}')

def chain_step(A, par, cfg, fail):
    tag = par ^ 1
    st = lambda f, sc1=False: f + (' sc1' if sc1 or cfg.get('SLOW') else '')
    SC = (128 ** -0.5) * 1.4426950408889634
    stamp(A, cfg, 0)
    tstamp(A, cfg, s(S_STEP), V_T, V_ZERO)
    A(f'v_mov_b32 {v(V_T)}, {s(S_STEP)}')
    for k in range(3):
        A(f'ds_read_b128 {v(V_RING+4*k,4)}, {v(V_MEMRD)} offset:{k*512}')
    A(f's_mov_b64 exec, 1')
    A(f'buffer_store_dword {v(V_T)}, {v(V_ZERO)}, {s(S_WS,4)}, {s(S_FLAGOUT)} offen sc1')
    if not cfg.get('NOB1'):
        A(f'buffer_load_dword {v(V_FLAG)}, {v(V_ZERO)}, {s(S_WS,4)}, {s(S_FLAGIN)} offen sc1')
    A(f's_mov_b64 exec, -1')
    aq0, aq1, ak0, ak1 = V_AQ, V_AQ+4, V_AQ+8, V_AQ+12
    for ks in range(18):
        slot = V_RING + 4*(ks % 3)
        A(f's_waitcnt lgkmcnt({min(2, 17-ks)})')
        c = lambda r: '0' if ks == 0 else v(r, 4)
        A(f'{MF} {v(aq0,4)}, {WQ(0,ks)}, {v(slot,4)}, {c(aq0)}')
        A(f'{MF} {v(aq1,4)}, {WQ(1,ks)}, {v(slot,4)}, {c(aq1)}')
        A(f'{MF} {v(ak0,4)}, {WK(0,ks)}, {v(slot,4)}, {c(ak0)}')
        A(f'{MF} {v(ak1,4)}, {WK(1,ks)}, {v(slot,4)}, {c(ak1)}')
        if ks + 3 < 18:
            A(f'ds_read_b128 {v(slot,4)}, {v(V_MEMRD)} offset:{(ks+3)*512}')
    stamp(A, cfg, 1)
    for k in range(3):
        A(f'ds_read_b128 {v(V_RING+4*k,4)}, {v(V_MEMRD)} offset:{k*512}')
    for i in range(2):
        A(f'v_cvt_pk_bf16_f32 {v(V_QF+i)}, {v(aq0+2*i)}, {v(aq0+2*i+1)}')
    for i in range(2):
        A(f'v_cvt_pk_bf16_f32 {v(V_QF+2+i)}, {v(aq1+2*i)}, {v(aq1+2*i+1)}')
    for i in range(2):
        A(f'v_cvt_pk_bf16_f32 {v(V_KF+i)}, {v(ak0+2*i)}, {v(ak0+2*i+1)}')
    for i in range(2):
        A(f'v_cvt_pk_bf16_f32 {v(V_KF+2+i)}, {v(ak1+2*i)}, {v(ak1+2*i+1)}')
    nout = 1 if cfg.get('NOB1') else 2
    A(f's_waitcnt vmcnt({nout})')
    A(f'{MF} {v(aq0,4)}, {v(V_KX,4)}, {v(V_QF,4)}, 0')
    A(f'{MF} {v(aq1,4)}, {v(V_KX+4,4)}, {v(V_QF,4)}, 0')
    A(f'{MF} {v(ak0,4)}, {v(V_KF,4)}, {v(V_QF,4)}, 0')
    A(f'buffer_store_dwordx4 {v(V_KF,4)}, {v(V_L16)}, {s(S_WS,4)}, {s(S_KVM)} offen sc1')
    vks = [0]
    def vm(n):
        for _ in range(n):
            ks = vks[0]
            if ks >= 18: return
            slot = V_RING + 4*(ks % 3)
            A(f's_waitcnt lgkmcnt({min(cfg_l[0], 17-ks) if cfg_l[0]==2 else cfg_l[0]})')
            c = lambda r: '0' if ks == 0 else v(r, 4)
            A(f'{MF} {v(V_AV,4)}, {v(slot,4)}, {WV(0,ks)}, {c(V_AV)}')
            A(f'{MF} {v(V_AV+4,4)}, {v(slot,4)}, {WV(1,ks)}, {c(V_AV+4)}')
            if ks + 3 < 18:
                A(f'ds_read_b128 {v(slot,4)}, {v(V_MEMRD)} offset:{(ks+3)*512}')
            vks[0] += 1
    cfg_l = [2]
    vm(1)
    A(f's_mov_b64 exec, {s(S_EX8,2)}')
    A(f'ds_write_b128 {v(V_SW)}, {v(aq0,4)}')
    A(f'ds_write_b128 {v(V_SW)}, {v(aq1,4)} offset:512')
    A(f's_mov_b64 exec, {s(S_EXM,2)}')
    A(f'ds_write_b128 {v(V_SW)}, {v(ak0,4)} offset:1024')
    A(f's_mov_b64 exec, -1')
    cfg_l[0] = 5; vm(1)
    cfg_l[0] = 5; vm(1)
    A('s_waitcnt lgkmcnt(2)')
    A('s_barrier')
    stamp(A, cfg, 2)
    XR = [V_AQ + 4*i for i in range(4)]
    MR = [V_QF, V_KF, V_KX, V_KX+4]
    for i in range(4):
        A(f'ds_read_b128 {v(XR[i],4)}, {v(V_SRX)} offset:{i*1280}')
        A(f'ds_read_b128 {v(MR[i],4)}, {v(V_SRM)} offset:{i*1280}')
    cfg_l[0] = 10; vm(1)
    cfg_l[0] = 10; vm(1)
    cfg_l[0] = 10; vm(1)
    A('s_waitcnt lgkmcnt(3)')
    stamp(A, cfg, 3)
    cfg_l[0] = 2
    x = XR[0]; m = MR[0]
    for r in range(4):
        A(f'v_add_f32 {v(x+r)}, {v(x+r)}, {v(XR[1]+r)}')
        A(f'v_add_f32 {v(XR[2]+r)}, {v(XR[2]+r)}, {v(XR[3]+r)}')
    for r in range(4):
        A(f'v_add_f32 {v(m+r)}, {v(m+r)}, {v(MR[1]+r)}')
        A(f'v_add_f32 {v(MR[2]+r)}, {v(MR[2]+r)}, {v(MR[3]+r)}')
    vm(1)
    for r in range(4):
        A(f'v_add_f32 {v(x+r)}, {v(x+r)}, {v(XR[2]+r)}')
        A(f'v_add_f32 {v(m+r)}, {v(m+r)}, {v(MR[2]+r)}')
    vm(1)
    T = V_T
    A(f'v_max3_f32 {v(T)}, {v(x)}, {v(x+1)}, {v(x+2)}')
    A(f'v_max3_f32 {v(T+1)}, {v(m)}, {v(m+1)}, {v(m+2)}')
    A(f'v_max3_f32 {v(T)}, {v(T)}, {v(x+3)}, {v(m+3)}')
    A(f'v_max_f32 {v(T)}, {v(T)}, {v(T+1)}')
    vm(1)
    A(f'v_max_f32_dpp {v(T)}, {v(T)}, {v(T)} row_ror:8 row_mask:0xf bank_mask:0xf')
    A(f'v_mov_b32 {v(T+1)}, {v(T)}')
    vm(1)
    A(f'v_permlane16_swap_b32 {v(T)}, {v(T+1)}')
    A(f'v_max_f32 {v(T)}, {v(T)}, {v(T+1)}')
    A(f'v_mov_b32 {v(T+1)}, {v(T)}')
    vm(1)
    A(f'v_permlane32_swap_b32 {v(T)}, {v(T+1)}')
    A(f'v_max_f32 {v(T)}, {v(T)}, {v(T+1)}')
    A(f'v_mul_f32 {v(T)}, {hex(f32(-SC))}, {v(T)}')
    A(f'v_add_f32 {v(T+1)}, -1.0, {v(T)}')
    vm(1)
    for r in range(4):
        A(f'v_fma_f32 {v(x+r)}, {v(x+r)}, {v(V_SC)}, {v(T)}')
        A(f'v_fma_f32 {v(m+r)}, {v(m+r)}, {v(V_SC)}, {v(T+1)}')
    vm(1)
    for r in range(4):
        A(f'v_exp_f32 {v(x+r)}, {v(x+r)}')
        A(f'v_exp_f32 {v(m+r)}, {v(m+r)}')
    vm(3)
    f = XR[1]; pm = XR[2]
    A(f'v_cvt_pk_bf16_f32 {v(f)}, {v(x)}, {v(x+1)}')
    A(f'v_cvt_pk_bf16_f32 {v(f+1)}, {v(x+2)}, {v(x+3)}')
    A(f'v_cvt_pk_bf16_f32 {v(f+2)}, {v(x)}, {v(x+1)}')
    A(f'v_cvt_pk_bf16_f32 {v(f+3)}, {v(x+2)}, {v(x+3)}')
    A(f'v_cvt_pk_bf16_f32 {v(pm)}, {v(m)}, {v(m+1)}')
    A(f'v_cvt_pk_bf16_f32 {v(pm+1)}, {v(m+2)}, {v(m+3)}')
    A(f'v_mov_b32_dpp {v(f+2)}, {v(f)} row_ror:8 row_mask:0xf bank_mask:0x3')
    A(f'v_mov_b32_dpp {v(f+3)}, {v(f+1)} row_ror:8 row_mask:0xf bank_mask:0x3')
    A(f'v_mov_b32_dpp {v(f)}, {v(f)} row_ror:8 row_mask:0xf bank_mask:0xc')
    A(f'v_mov_b32_dpp {v(f+1)}, {v(f+1)} row_ror:8 row_mask:0xf bank_mask:0xc')
    vm(18)
    stamp(A, cfg, 4)
    SUM = XR[3]
    A(f'v_add_f32 {v(SUM)}, {v(x)}, {v(x+1)}')
    A(f'v_add_f32 {v(SUM+1)}, {v(x+2)}, {v(x+3)}')
    A(f'v_add_f32 {v(SUM+2)}, {v(m)}, {v(m+1)}')
    A(f'v_add_f32 {v(SUM+3)}, {v(m+2)}, {v(m+3)}')
    vmf = MR[1]
    for i in range(4):
        A(f'v_cvt_pk_bf16_f32 {v(vmf+i)}, {v(V_AV+2*i)}, {v(V_AV+2*i+1)}')
    o0, o1 = MR[2], MR[3]
    A(f'{MF} {v(o0,4)}, {v(V_VX,4)}, {v(f,4)}, 0')
    A(f'{MF} {v(o1,4)}, {v(V_VX+4,4)}, {v(f,4)}, 0')
    A(f'{MF16} {v(o0,4)}, {v(vmf,2)}, {v(pm,2)}, {v(o0,4)}')
    A(f'{MF16} {v(o1,4)}, {v(vmf+2,2)}, {v(pm,2)}, {v(o1,4)}')
    A(f's_add_u32 {s(S_TMP)}, {s(S_KVM)}, 4096')
    A(f'buffer_store_dwordx4 {v(vmf,4)}, {v(V_L16)}, {s(S_WS,4)}, {s(S_TMP)} offen sc1')
    A(f's_add_u32 {s(S_KVM)}, {s(S_KVM)}, {32*8192}')
    A(f'v_add_f32 {v(SUM)}, {v(SUM)}, {v(SUM+1)}')
    A(f'v_add_f32 {v(SUM+2)}, {v(SUM+2)}, {v(SUM+3)}')
    A(f'v_add_f32_dpp {v(SUM)}, {v(SUM)}, {v(SUM)} row_ror:8 row_mask:0xf bank_mask:0xf')
    A(f'v_add_f32 {v(SUM)}, {v(SUM)}, {v(SUM+2)}')
    A(f'v_mov_b32 {v(SUM+1)}, {v(SUM)}')
    A(f'v_permlane16_swap_b32 {v(SUM)}, {v(SUM+1)}')
    A(f'v_add_f32 {v(SUM)}, {v(SUM)}, {v(SUM+1)}')
    A(f'v_mov_b32 {v(SUM+1)}, {v(SUM)}')
    A(f'v_permlane32_swap_b32 {v(SUM)}, {v(SUM+1)}')
    A(f'v_add_f32 {v(SUM)}, {v(SUM)}, {v(SUM+1)}')
    A(f'v_rcp_f32 {v(SUM)}, {v(SUM)}')
    for r in range(4):
        A(f'v_mul_f32 {v(o0+r)}, {v(o0+r)}, {v(SUM)}')
        A(f'v_mul_f32 {v(o1+r)}, {v(o1+r)}, {v(SUM)}')
    of = XR[0]
    A(f'v_cvt_pk_bf16_f32 {v(of)}, {v(o0)}, {v(o0+1)}')
    A(f'v_cvt_pk_bf16_f32 {v(of+1)}, {v(o0+2)}, {v(o0+3)}')
    A(f'v_cvt_pk_bf16_f32 {v(of+2)}, {v(o1)}, {v(o1+1)}')
    A(f'v_cvt_pk_bf16_f32 {v(of+3)}, {v(o1+2)}, {v(o1+3)}')
    A(f's_mov_b64 exec, {s(S_EX8,2)}')
    A(f'ds_write_b128 {v(V_OW)}, {v(of,4)}')
    A(f's_mov_b64 exec, -1')
    wo_seq = [(t, ks) for t in range(9) for ks in range(4)]
    def wo_read(i):
        t, ks = wo_seq[i]
        base = V_WO0 if ks < 2 else V_WO1
        A(f'ds_read_b128 {v(V_RING+4*(i%3),4)}, {v(base)} offset:{(ks%2)*36864 + t*1024}')
    for i in range(3): wo_read(i)
    if not cfg.get('NOB1'):
        lab_ok = A.newlabel('b1ok'); lab_re = A.newlabel('b1re')
        A('s_waitcnt vmcnt(2)')
        A(f's_add_u32 {s(S_TMP)}, {s(S_STEP)}, 2')
        A(f's_min_u32 {s(S_TMP)}, {s(S_TMP)}, 64')
        A(f's_mov_b64 exec, 1')
        A(f'v_cmp_gt_u32 vcc, {s(S_TMP)}, {v(V_FLAG)}')
        A(f's_cbranch_vccz {lab_ok}')
        A(f's_mov_b32 {s(S_SPIN)}, {SPIN_LIMIT}')
        A.label(lab_re)
        A(f'buffer_load_dword {v(V_FLAG)}, {v(V_ZERO)}, {s(S_WS,4)}, {s(S_FLAGIN)} offen sc1')
        A('s_waitcnt vmcnt(0)')
        A(f'v_cmp_gt_u32 vcc, {s(S_TMP)}, {v(V_FLAG)}')
        A(f's_cbranch_vccz {lab_ok}')
        spin_check(A, lab_re, fail)
        A.label(lab_ok)
        A(f's_mov_b64 exec, -1')
    skipk = A.newlabel('skipk')
    A(f's_cmp_eq_u32 {s(S_STEP)}, 63')
    A(f's_cbranch_scc1 {skipk}')
    kxvx_load(A)
    A.label(skipk)
    A('s_waitcnt lgkmcnt(3)')
    A('s_barrier')
    stamp(A, cfg, 5)
    OF = [V_AQ + 4*i for i in range(4)]
    for kk in range(4):
        A(f'ds_read_b128 {v(OF[kk],4)}, {v(V_OR)} offset:{kk*512}')
    ACC = [V_QF, V_KF, V_AV, V_AV+4]
    A(f's_mov_b64 exec, {s(S_EX8,2)}') if False else None
    nrd = 3
    def tag_store(t):
        acc = ACC[t % 4]
        if tag: A(f'v_or_b32 {v(acc)}, 1, {v(acc)}')
        else:   A(f'v_and_b32 {v(acc)}, -2, {v(acc)}')
        A(f's_mov_b64 exec, {s(S_EX8,2)}')
        if t < 8: A(st(f'buffer_store_dwordx4 {v(acc,4)}, {v(V_PST)}, {s(S_WS,4)}, {s(S_PST)} offen offset:{t*512}'))
        else: A(st(f'buffer_store_dwordx4 {v(acc,4)}, {v(V_PST)}, {s(S_WS,4)}, {s(S_PST2)} offen'))
        A(f's_mov_b64 exec, -1')
    for i, (t, ks) in enumerate(wo_seq):
        if i == 0: A('s_waitcnt lgkmcnt(3)')
        elif i == 1: A('s_waitcnt lgkmcnt(3)')
        elif i == 2: A('s_waitcnt lgkmcnt(3)')
        elif i == 3: A('s_waitcnt lgkmcnt(2)')
        else: A(f's_waitcnt lgkmcnt({min(2, 35-i)})')
        acc = ACC[t % 4]
        A(f'{MF} {v(acc,4)}, {v(V_RING+4*(i%3),4)}, {v(OF[ks],4)}, {"0" if ks==0 else v(acc,4)}')
        if i + 3 < 36: wo_read(i + 3)
        if ks == 3 and t >= 1: tag_store(t - 1)
    tag_store(8)
    stamp(A, cfg, 6)
    PB = [V_RING, V_RING+4, V_RING+8, V_AQ, V_AQ+4, V_AQ+8, V_AQ+12, V_QF]
    lp1 = A.newlabel('hop1')
    A(f's_mov_b32 {s(S_SPIN)}, {SPIN_LIMIT}')
    A(f's_mov_b64 exec, {s(S_EXP,2)}')
    A.label(lp1)
    for i in range(8):
        A(f'buffer_load_dwordx4 {v(PB[i],4)}, {v(V_PLD)}, {s(S_WS,4)}, {s(S_PL+i)} offen sc1')
    A('s_waitcnt vmcnt(0)')
    T = V_T
    if tag:
        A(f'v_and_b32 {v(T)}, {v(PB[0])}, {v(PB[1])}')
        A(f'v_and_b32 {v(T+1)}, {v(PB[2])}, {v(PB[3])}')
        A(f'v_and_b32 {v(T+2)}, {v(PB[4])}, {v(PB[5])}')
        A(f'v_and_b32 {v(T+3)}, {v(PB[6])}, {v(PB[7])}')
        A(f'v_and_b32 {v(T)}, {v(T)}, {v(T+1)}')
        A(f'v_and_b32 {v(T+2)}, {v(T+2)}, {v(T+3)}')
        A(f'v_and_b32 {v(T)}, {v(T)}, {v(T+2)}')
    else:
        A(f'v_or3_b32 {v(T)}, {v(PB[0])}, {v(PB[1])}, {v(PB[2])}')
        A(f'v_or3_b32 {v(T+1)}, {v(PB[3])}, {v(PB[4])}, {v(PB[5])}')
        A(f'v_or3_b32 {v(T)}, {v(T)}, {v(PB[6])}, {v(PB[7])}')
        A(f'v_or_b32 {v(T)}, {v(T)}, {v(T+1)}')
    A(f'v_and_b32 {v(T)}, 1, {v(T)}')
    A(f'v_cmp_ne_u32 vcc, {tag}, {v(T)}')
    lok = A.newlabel('h1ok')
    A(f's_cbranch_vccz {lok}')
    spin_check(A, lp1, fail)
    A.label(lok)
    stamp(A, cfg, 7)
    def padd(d, x_, y_):
        A(f'v_pk_add_f32 {v(d,2)}, {v(x_,2)}, {v(y_,2)}')
    for (d, o_) in ((0,1),(2,3),(4,5),(6,7),(0,2),(4,6),(0,4)):
        padd(PB[d], PB[d], PB[o_]); padd(PB[d]+2, PB[d]+2, PB[o_]+2)
    X = PB[0]
    A(f's_mov_b64 exec, -1')
    A(f'v_permlane32_swap_b32 {v(X)}, {v(X+2)}')
    A(f'v_permlane32_swap_b32 {v(X+1)}, {v(X+3)}')
    A(f'v_add_f32 {v(X)}, {v(X)}, {v(X+2)}')
    A(f'v_add_f32 {v(X+1)}, {v(X+1)}, {v(X+3)}')
    A(f'v_mov_b32 {v(X+2)}, {v(X)}')
    A(f'v_mov_b32 {v(X+3)}, {v(X+1)}')
    A(f'v_permlane16_swap_b32 {v(X)}, {v(X+2)}')
    A(f'v_permlane16_swap_b32 {v(X+1)}, {v(X+3)}')
    A(f'v_add_f32 {v(X)}, {v(X)}, {v(X+2)}')
    A(f'v_add_f32 {v(X+1)}, {v(X+1)}, {v(X+3)}')
    A(f'v_cvt_pk_bf16_f32 {v(X)}, {v(X)}, {v(X+1)}')
    A(f'v_mov_b32 {v(X+1)}, -1')
    new = [S_MB0, S_MB1][par ^ 1]; old = [S_MB0, S_MB1][par]
    A(f's_mov_b64 exec, {s(S_EXS,2)}')
    A(st(f'buffer_store_dword {v(X)}, {v(V_MST)}, {s(S_WS,4)}, {s(new)} offen'))
    A(st(f'buffer_store_dword {v(X+1)}, {v(V_MST)}, {s(S_WS,4)}, {s(old)} offen'))
    A(f's_mov_b64 exec, -1')
    stamp(A, cfg, 8)
    nb = [(S_MB0, S_MB0b, S_MB0c), (S_MB1, S_MB1b, S_MB1c)][par ^ 1]
    lp2 = A.newlabel('hop2')
    A(f's_mov_b32 {s(S_SPIN)}, {SPIN_LIMIT}')
    A.label(lp2)
    M0r, M1r, M2r = V_AQ, V_AQ+4, V_AQ+8
    A(f'buffer_load_dwordx4 {v(M0r,4)}, {v(V_T16)}, {s(S_WS,4)}, {s(nb[0])} offen sc1')
    A(f'buffer_load_dwordx4 {v(M1r,4)}, {v(V_T16)}, {s(S_WS,4)}, {s(nb[1])} offen sc1')
    A(f'buffer_load_dword {v(M2r)}, {v(V_T4)}, {s(S_WS,4)}, {s(nb[2])} offen sc1')
    A('s_waitcnt vmcnt(0)')
    A(f'v_max3_u32 {v(T)}, {v(M0r)}, {v(M0r+1)}, {v(M0r+2)}')
    A(f'v_max3_u32 {v(T+1)}, {v(M0r+3)}, {v(M1r)}, {v(M1r+1)}')
    A(f'v_max3_u32 {v(T+2)}, {v(M1r+2)}, {v(M1r+3)}, {v(M2r)}')
    A(f'v_max3_u32 {v(T)}, {v(T)}, {v(T+1)}, {v(T+2)}')
    A(f'v_cmp_eq_u32 vcc, -1, {v(T)}')
    lok2 = A.newlabel('h2ok')
    A(f's_cbranch_vccz {lok2}')
    spin_check(A, lp2, fail)
    A.label(lok2)
    A(f'v_add_u32 {v(T)}, {L_MEM}, {v(V_T16)}')
    A(f'v_add_u32 {v(T+1)}, {L_MEM+8192}, {v(V_T4)}')
    A(f'ds_write_b128 {v(T)}, {v(M0r,4)}')
    A(f'ds_write_b128 {v(T)}, {v(M1r,4)} offset:4096')
    A(f'ds_write_b32 {v(T+1)}, {v(M2r)}')
    A('s_waitcnt lgkmcnt(0)')
    A('s_barrier')
    stamp(A, cfg, 9)
    A(f's_add_u32 {s(S_STEP)}, {s(S_STEP)}, 1')

import struct
def f32(x): return struct.unpack('<I', struct.pack('<f', x))[0]

def chain_role(A, cfg, fail, done):
    chain_init(A, cfg)
    cfg['barrier_wait'](A)
    if not cfg.get('NOB1'):
        lab_re = A.newlabel('b1first'); lab_ok = A.newlabel('b1fok')
        A(f's_mov_b32 {s(S_SPIN)}, {SPIN_LIMIT}')
        A.label(lab_re)
        A(f'buffer_load_dword {v(V_FLAG)}, {v(V_ZERO)}, {s(S_WS,4)}, {s(S_FLAGIN)} offen sc1')
        A('s_waitcnt vmcnt(0)')
        A(f'v_cmp_gt_u32 vcc, 1, {v(V_FLAG)}')
        A(f's_cbranch_vccz {lab_ok}')
        spin_check(A, lab_re, fail)
        A.label(lab_ok)
    kxvx_load(A)
    A(f's_mov_b32 {s(S_STEP)}, 0')
    A('s_barrier')
    if cfg.get('STAMPS') or cfg.get('TOTAL'):
        A(f's_memtime {s(S_T0,2)}')
        A('s_waitcnt lgkmcnt(0)')
    loop = A.newlabel('chainloop')
    A.label(loop)
    chain_step(A, 0, cfg, fail)
    chain_step(A, 1, cfg, fail)
    A(f's_cmp_lt_u32 {s(S_STEP)}, 64')
    A(f's_cbranch_scc1 {loop}')
    tstamp(A, cfg, 64, V_T, V_ZERO)
    A(f'v_mov_b32 {v(V_T)}, {s(S_STEP)}')
    A(f's_mov_b64 exec, 1')
    A(f'buffer_store_dword {v(V_T)}, {v(V_ZERO)}, {s(S_WS,4)}, {s(S_FLAGOUT)} offen sc1')
    A(f's_mov_b64 exec, -1')
    if cfg.get('STAMPS') or cfg.get('TOTAL'):
        A(f's_memtime {s(S_T1,2)}')
        A('s_waitcnt lgkmcnt(0)')
        A(f's_sub_u32 {s(S_T1)}, {s(S_T1)}, {s(S_T0)}')
        sk = A.newlabel('nostamp')
        A(f's_or_b32 {s(S_TMP)}, {s(S_ROLE)}, {s(S_WAVE)}')
        A(f's_cmp_lg_u32 {s(S_TMP)}, 0')
        A(f's_cbranch_scc1 {sk}')
        A(f'v_mov_b32 v14, {s(S_T1)}')
        A(f'v_mov_b32 v15, 0')
        A(f'global_store_dword v15, v14, {s(S_DBG,2)} offset:64')
        for i in range(10 if cfg.get('STAMPS') else 0):
            A(f's_sub_u32 {s(S_TMP)}, {s(64+i)}, {s(64)}')
            A(f'v_mov_b32 v14, {s(S_TMP)}')
            A(f'global_store_dword v15, v14, {s(S_DBG,2)} offset:{68+4*i}')
        A.label(sk)
    A(f's_branch {done}')
```

```python
from asm import *
from common import *
from chain import *

S_IDX = 26
S_SEG = 28
S_PREF = 29
S_FOUT = 30
S_SRC = 31
S_BUFW = 32
S_BUFC = 33
S_DST = 34
S_DST2 = 35
S_DST3 = 36
S_TGT = 37
S_A = 38; S_B = 39; S_C = 40; S_D = 41
S_EXLO = 42
S_BSUM = 44
S_CSUM = 45
S_X = 46

def lane_setup(A):
    A('v_and_b32 v79, 63, v0')
    A('v_mov_b32 v75, v0')
    A('v_and_b32 v78, 15, v79')
    A('v_lshrrev_b32 v77, 4, v79')
    A('v_and_b32 v76, 7, v79')

def flagaddr(A, vdst, role0, n, vlane=79, vt=74):
    A(f'v_min_u32 {v(vdst)}, {n-1}, {v(vlane)}')
    A(f'v_lshrrev_b32 {v(vt)}, 2, {v(vdst)}')
    if isinstance(role0, int): A(f'v_add_u32 {v(vt)}, {role0}, {v(vt)}')
    else: A(f'v_add_u32 {v(vt)}, {role0}, {v(vt)}')
    A(f'v_lshlrev_b32 {v(vt)}, 7, {v(vt)}')
    A(f'v_and_b32 {v(vdst)}, 3, {v(vdst)}')
    A(f'v_lshlrev_b32 {v(vdst)}, 2, {v(vdst)}')
    A(f'v_add_u32 {v(vdst)}, {v(vdst)}, {v(vt)}')

def own_flag(A):
    A(f's_lshl_b32 {s(S_FOUT)}, {s(S_ROLE)}, 7')
    A(f's_lshl_b32 {s(S_TMP)}, {s(S_WAVE)}, 2')
    A(f's_add_u32 {s(S_FOUT)}, {s(S_FOUT)}, {s(S_TMP)}')

CFG = {}
SCOPE = [' sc1']
def set_scope(intra):
    SCOPE[0] = '' if (intra and not CFG.get('ALLSC1')) else ' sc1'
def publish(A, sval, vt, vzero, ts=True):
    if ts: tstamp(A, CFG, sval, vt, vzero)
    jitter(A)
    A(f'v_mov_b32 {v(vt)}, {sval}')
    A('s_mov_b64 exec, 1')
    A(f'buffer_store_dword {v(vt)}, {v(vzero)}, {s(S_WS,4)}, {s(S_FOUT)} offen' + SCOPE[0])
    A('s_mov_b64 exec, -1')

def poll_block(A, cfg, vaddr, starget, vt, fail):
    if cfg.get('NOWAIT'): return
    re_ = A.newlabel('pre'); ok = A.newlabel('pok')
    jitter(A)
    A(f's_mov_b32 {s(S_SPIN)}, {SPIN_LIMIT}')
    A.label(re_)
    A(f'buffer_load_dword {v(vt)}, {v(vaddr)}, {s(S_WS,4)}, 0 offen sc1')
    A('s_waitcnt vmcnt(0)')
    A(f'v_cmp_gt_u32 vcc, {starget}, {v(vt)}')
    A(f's_cbranch_vccz {ok}')
    spin_check(A, re_, fail)
    A.label(ok)

def poll_issue(A, cfg, vaddr, vt):
    if cfg.get('NOWAIT'): return
    A(f'buffer_load_dword {v(vt)}, {v(vaddr)}, {s(S_WS,4)}, 0 offen sc1')

def poll_check(A, cfg, vaddr, starget, vt, fail):
    if cfg.get('NOWAIT'): return
    ok = A.newlabel('pck')
    A(f'v_cmp_gt_u32 vcc, {starget}, {v(vt)}')
    A(f's_cbranch_vccz {ok}')
    poll_block(A, cfg, vaddr, starget, vt, fail)
    A.label(ok)

def ring(name):
    if CFG.get('NORING'): return 64
    return int(CFG.get('R_' + name, RINGS[name]))

def ring_off(A, sdst, sbase, sidx, R, stride):
    if R < 64: A(f's_and_b32 {s(sdst)}, {sidx}, {R-1}'); A(f's_mul_i32 {s(sdst)}, {s(sdst)}, {stride}')
    else: A(f's_mul_i32 {s(sdst)}, {sidx}, {stride}')
    if sbase is not None: A(f's_add_u32 {s(sdst)}, {s(sdst)}, {s(sbase)}')

def down_check(A, cfg, vaddr, vt, sseg, back, stmp, fail, odd=False):
    if cfg.get('NOWAIT') or back >= 63: return
    A(f's_sub_i32 {s(stmp)}, {sseg}, {back}')
    A(f's_max_i32 {s(stmp)}, {s(stmp)}, 0')
    if odd:
        A(f's_cmp_eq_u32 {sseg}, {back}')
        A(f's_cselect_b32 {s(stmp)}, 1, {s(stmp)}')
    poll_check(A, cfg, vaddr, s(stmp), vt, fail)

def pretouch(A, regions, nwaves, sgw, vl16, vdummy):
    for (sbase, size) in regions:
        lp = A.newlabel('pt')
        A(f's_lshl_b32 {s(S_TMP)}, {s(sgw)}, 10')
        A(f's_add_u32 {s(S_TMP)}, {s(S_TMP)}, {s(sbase)}')
        A(f's_add_u32 {s(S_TMP+1)}, {s(sbase)}, {size}')
        A.label(lp)
        A(f'buffer_load_dwordx4 {v(vdummy,4)}, {v(vl16)}, {s(S_WS,4)}, {s(S_TMP)} offen')
        A(f's_add_u32 {s(S_TMP)}, {s(S_TMP)}, {nwaves*1024}')
        A(f's_cmp_lt_u32 {s(S_TMP)}, {s(S_TMP+1)}')
        A(f's_cbranch_scc1 {lp}')
    A('s_waitcnt vmcnt(0)')

def wreg_lin(i, n, vbase):
    return a(i, n) if i < 256 else v(vbase + i - 256, n)

def block_loader(A, blocks, ka, size, vtr=70, per_round=36):
    w = s(S_WAVE)
    load_ptr_srd(A, S_SRD, ka, size)
    A(f'v_lshrrev_b32 v72, 2, v78')
    A(f'v_lshlrev_b32 v73, 2, v77')
    A(f'v_add_u32 v72, v72, v73')
    A(f'v_lshlrev_b32 v72, 5, v72')
    A(f'v_and_b32 v73, 3, v78')
    A(f'v_lshlrev_b32 v73, 3, v73')
    A(f'v_add_u32 v72, v72, v73')
    A(f's_mul_i32 {s(S_TMP)}, {w}, 36864')
    A(f'v_add_u32 {v(vtr)}, {s(S_TMP)}, v72')
    for r0 in range(0, len(blocks), per_round):
        rb = blocks[r0:r0+per_round]
        for i, b in enumerate(rb):
            A(f's_mul_i32 {s(S_M0)}, {w}, 36864')
            if i: A(f's_add_u32 {s(S_M0)}, {s(S_M0)}, {i*1024}')
            b['issue'](A)
        A('s_waitcnt vmcnt(0)')
        for i, b in enumerate(rb):
            for half in range(2):
                A(f'ds_read_b64_tr_b16 {b["dst"](half)}, {v(vtr)} offset:{i*1024 + half*512}')
            if i % 4 == 3: A('s_waitcnt lgkmcnt(8)')
        A('s_waitcnt lgkmcnt(0)')
    A('s_barrier')

def dma16(A, vaddr, soff):
    A(f's_mov_b32 m0, {s(S_M0)}')
    A(f'buffer_load_dwordx4 {v(vaddr)}, {s(S_SRD,4)}, {soff} offen lds')

def gemm_loop(A, cfg, P, fail):
    NT, NKS, D = P['NT'], P['NKS'], P.get('D', 3)
    W, ACC, RING = P['W'], P['ACC'], P['RING']
    VL16, VRD, VPOLL, VFLAG, VZERO, VT = P['VL16'], P['VRD'], P['VPOLL'], P['VFLAG'], P['VZERO'], P['VT']
    NF = 2*NKS; NFW = NF//4
    nst = P['nst']
    KMID = P.get('KMID', NKS//2)
    w = s(S_WAVE)
    A(f's_mul_i32 {s(S_TMP)}, {w}, {NFW*1024}')
    A(f's_add_u32 {s(S_SRC)}, {s(S_SRC)}, {s(S_TMP)}')
    A(f's_mov_b32 {s(S_BUFW)}, {s(S_TMP)}')
    A(f's_lshl_b32 {s(S_BSUM)}, {s(S_TMP)}, 1')
    A(f's_add_u32 {s(S_BSUM)}, {s(S_BSUM)}, {NF*1024}')
    A(f's_mov_b32 {s(S_BUFC)}, 0')
    A(f's_mov_b32 {s(S_SEG)}, 0')
    A(f's_mov_b32 {s(S_PREF)}, 0')
    S_SRCB, S_DSTB, S_NSRC, S_TD = 54, 55, 56, 57
    SR = P.get('src_ring', 64); DR = P.get('dst_ring', 64); DOWN = P.get('down')
    if SR < 64:
        A(f's_mov_b32 {s(S_SRCB)}, {s(S_SRC)}'); A(f's_mov_b32 {s(S_NSRC)}, 0')
    if DR < 64: A(f's_mov_b32 {s(S_DSTB)}, {s(S_DST)}')
    lsc = ' sc1' if SR < 64 else ''
    def dma():
        if SR < 64:
            ring_off(A, S_SRC, S_SRCB, s(S_NSRC), SR, P['src_stride'])
            A(f's_add_u32 {s(S_NSRC)}, {s(S_NSRC)}, 1')
        for j0 in range(0, NFW, 4):
            A(f's_add_u32 {s(S_TMP)}, {s(S_BUFW)}, {j0*1024}')
            A(f's_mov_b32 m0, {s(S_TMP)}')
            A(f's_add_u32 {s(S_TMP+1)}, {s(S_SRC)}, {j0*1024}')
            for j in range(j0, min(j0+4, NFW)):
                A(f'buffer_load_dwordx4 {v(VL16)}, {s(S_WS,4)}, {s(S_TMP+1)} offen offset:{(j-j0)*1024}{lsc} lds')
        if SR >= 64: A(f's_add_u32 {s(S_SRC)}, {s(S_SRC)}, {P["src_stride"]}')
        A(f's_sub_u32 {s(S_BUFW)}, {s(S_BSUM)}, {s(S_BUFW)}')
    loop = A.newlabel('gloop'); pre = A.newlabel('gpref'); go = A.newlabel('ggo')
    A.label(loop)
    A(f's_cmp_lg_u32 {s(S_PREF)}, 0')
    A(f's_cbranch_scc1 {pre}')
    A(f's_add_u32 {s(S_TGT)}, {s(S_SEG)}, 1')
    fst(A, cfg, 0, S_SEG)
    poll_block(A, cfg, VPOLL, s(S_TGT), VFLAG, fail)
    fst(A, cfg, 1, S_SEG)
    dma()
    A('s_waitcnt vmcnt(0)')
    A(f's_branch {go}')
    A.label(pre)
    A(f's_waitcnt vmcnt({nst})')
    A.label(go)
    fst(A, cfg, 2, S_SEG)
    A('s_barrier')
    fst(A, cfg, 3, S_SEG)
    A(f's_mov_b32 {s(S_PREF)}, 0')
    A(f'v_add_u32 {v(VRD)}, {s(S_BUFC)}, {v(VL16)}')
    A(f's_sub_u32 {s(S_BUFC)}, {NF*1024}, {s(S_BUFC)}')
    if not cfg.get('NOWAIT'):
        A(f'buffer_load_dword {v(VFLAG)}, {v(P.get("VPOLLN", VPOLL))}, {s(S_WS,4)}, 0 offen sc1')
        if DOWN and DR < 64: poll_issue(A, cfg, DOWN['VP'], DOWN['VF'])
    def rd(ks):
        for tt in range(2):
            A(f'ds_read_b128 {v(RING + (ks % D)*8 + tt*4, 4)}, {v(VRD)} offset:{(tt*NKS + ks)*1024}')
    for k in range(min(D, NKS)): rd(k)
    for ks in range(NKS):
        if ks == KMID:
            A('s_waitcnt vmcnt(0)')
            publish(A, s(S_SEG), VT, VZERO, ts=False)
            sk = A.newlabel('gnopf')
            A(f's_cmp_ge_u32 {s(S_SEG)}, 63')
            A(f's_cbranch_scc1 {sk}')
            if not cfg.get('NOWAIT'):
                A(f's_add_u32 {s(S_TGT)}, {s(S_SEG)}, 2')
                A(f'v_cmp_gt_u32 vcc, {s(S_TGT)}, {v(VFLAG)}')
                A(f's_cbranch_vccnz {sk}')
            dma()
            A(f's_mov_b32 {s(S_PREF)}, 1')
            A.label(sk)
        A(f's_waitcnt lgkmcnt({2*min(D-1, NKS-1-ks)})')
        for t in range(NT):
            for tt in range(2):
                fr = v(RING + (ks % D)*8 + tt*4, 4)
                c = '0' if ks == 0 else v(ACC(t, tt), 4)
                if P['swap'](t): A(f'{MF} {v(ACC(t,tt),4)}, {fr}, {W(t,ks)}, {c}')
                else: A(f'{MF} {v(ACC(t,tt),4)}, {W(t,ks)}, {fr}, {c}')
        if ks + D < NKS: rd(ks + D)
    tstamp(A, cfg, s(S_SEG), VT, VZERO)
    fst(A, cfg, 4, S_SEG)
    if DR < 64:
        down_check(A, cfg, DOWN['VP'], DOWN['VF'], s(S_SEG), DOWN['back'], S_TD, fail, odd=DOWN.get('odd', False))
        ring_off(A, S_DST, S_DSTB, s(S_SEG), DR, P['dst_stride'])
    jitter(A)
    P['epilogue'](A)
    fst(A, cfg, 5, S_SEG)
    sk2 = A.newlabel('gnopub')
    if 'VPOLLN' in P:
        A(f'v_xor_b32 {v(VPOLL)}, {s(P["SPX"])}, {v(VPOLL)}')
        A(f'v_xor_b32 {v(P["VPOLLN"])}, {s(P["SPX"])}, {v(P["VPOLLN"])}')
    A(f's_add_u32 {s(S_SEG)}, {s(S_SEG)}, 1')
    A(f's_cmp_lg_u32 {s(S_PREF)}, 0')
    A(f's_cbranch_scc1 {loop}')
    A('s_waitcnt vmcnt(0)')
    fst(A, cfg, 6, S_SEG, 33)
    publish(A, s(S_SEG), VT, VZERO, ts=False)
    A(f's_cmp_lt_u32 {s(S_SEG)}, 64')
    A(f's_cbranch_scc1 {loop}')

def cvt(A, d, x, y): A(f'v_cvt_pk_bf16_f32 {v(d)}, {v(x)}, {v(y)}')

def role_a1(A, cfg, fail, done):
    set_scope(True)
    w = s(S_WAVE)
    lane_setup(A)
    S_M, S_TAU = S_A, S_B
    A(f's_mul_i32 {s(S_M)}, {s(S_IDX)}, 43')
    A(f's_lshr_b32 {s(S_M)}, {s(S_M)}, 7')
    A(f's_mul_i32 {s(S_TMP)}, {s(S_M)}, 3')
    A(f's_sub_u32 {s(S_TMP)}, {s(S_IDX)}, {s(S_TMP)}')
    A(f's_mul_i32 {s(S_TAU)}, {s(S_TMP)}, 12')
    A(f's_mul_i32 {s(S_TMP)}, {w}, 3')
    A(f's_add_u32 {s(S_TAU)}, {s(S_TAU)}, {s(S_TMP)}')
    A('v_lshrrev_b32 v68, 1, v79'); A('v_mul_u32_u24 v68, 3456, v68')
    A('v_and_b32 v72, 1, v79'); A('v_lshlrev_b32 v72, 4, v72'); A('v_add_u32 v68, v68, v72')
    A('v_lshrrev_b32 v69, 3, v79'); A('v_mul_u32_u24 v69, 3456, v69')
    A('v_mul_u32_u24 v72, 36, v76'); A('v_add_u32 v69, v69, v72')
    blocks = []
    S_DT, S_CT = 47, 50
    for t in range(3):
        A(f's_add_u32 {s(S_CT+t)}, {s(S_TAU)}, {t}')
        A(f's_mul_i32 {s(S_DT+t)}, {s(S_M)}, 1152')
        A(f's_mul_i32 {s(S_TMP)}, {s(S_CT+t)}, 36')
        A(f's_sub_u32 {s(S_TMP+1)}, {s(S_CT+t)}, 32')
        A(f's_mul_i32 {s(S_TMP+1)}, {s(S_TMP+1)}, 288')
        A(f's_add_u32 {s(S_TMP+1)}, {s(S_TMP+1)}, 32')
        A(f's_cmp_ge_u32 {s(S_CT+t)}, 32')
        A(f's_cselect_b32 {s(S_TMP)}, {s(S_TMP+1)}, {s(S_TMP)}')
        A(f's_add_u32 {s(S_DT+t)}, {s(S_DT+t)}, {s(S_TMP)}')
    order = [(t, ks) for t in range(3) for ks in range(18)] if cfg.get('TMAJOR') else [(t, ks) for ks in range(18) for t in range(3)]
    for (t, ks) in order:
        def issue(A, t=t, ks=ks):
            lo = A.newlabel('a1lo'); en = A.newlabel('a1en')
            A(f's_add_u32 {s(S_SOFF)}, {s(S_DT+t)}, {ks*32*3456}')
            A(f's_cmp_ge_u32 {s(S_CT+t)}, 32')
            A(f's_cbranch_scc1 {lo}')
            dma16(A, 68, s(S_SOFF))
            A(f's_branch {en}')
            A.label(lo)
            for q in range(4):
                A(f's_mov_b32 m0, {s(S_M0)}')
                A(f'buffer_load_dword v69, {s(S_SRD,4)}, {s(S_SOFF)} offen lds')
                if q < 3:
                    A(f's_add_u32 {s(S_SOFF)}, {s(S_SOFF)}, {8*3456}')
                    A(f's_add_u32 {s(S_M0)}, {s(S_M0)}, 256')
            A.label(en)
        blocks.append(dict(issue=issue, dst=lambda half, t=t, ks=ks: a(t*72 + ks*4 + 2*half, 2)))
    block_loader(A, blocks, KA_WQKV, 576*3456, per_round=27)
    VL16, VRD, VPOLL, VFLAG, VZERO, VT, VL8 = 60, 61, 62, 63, 64, 65, 66
    A(f'v_lshlrev_b32 {v(VL16)}, 4, v79')
    A(f'v_lshlrev_b32 {v(VL8)}, 3, v79')
    A(f'v_mov_b32 {v(VZERO)}, 0')
    sel_layer(A, S_TMP+2, [R_R0, R_RB[0]])
    flagaddr(A, VPOLL, s(S_TMP+2), 16)
    VPOLLN, SPX = 67, S_X
    A(f's_lshl_b32 {s(SPX)}, {s(S_L)}, 9')
    A(f'v_xor_b32 {v(VPOLLN)}, {s(SPX)}, {v(VPOLL)}')
    VPD, VFD = 68, 69
    sel_layer(A, S_TMP+2, R_ATTA)
    flagaddr(A, VPD, s(S_TMP+2), 64)
    own_flag(A)
    sel_layer(A, S_SRC, WS_XNA)
    sel_layer(A, S_DST, WS_QKVA)
    A(f's_mul_i32 {s(S_TMP)}, {s(S_M)}, 36864')
    A(f's_add_u32 {s(S_DST)}, {s(S_DST)}, {s(S_TMP)}')
    A(f's_lshl_b32 {s(S_TMP)}, {s(S_TAU)}, 10')
    A(f's_add_u32 {s(S_DST)}, {s(S_DST)}, {s(S_TMP)}')
    cfg['barrier_wait'](A)
    ACC = lambda t, tt: t*8 + tt*4
    def epi(swap):
        def f(A):
            for t in range(3):
                b = t*8
                cvt(A, b, b, b+1); cvt(A, b+1, b+2, b+3); cvt(A, b+2, b+4, b+5); cvt(A, b+3, b+6, b+7)
                if swap:
                    A(f'buffer_store_dwordx4 {v(b,4)}, {v(VL16)}, {s(S_WS,4)}, {s(S_DST)} offen offset:{t*1024}' + SCOPE[0])
                else:
                    A(f'buffer_store_dwordx2 {v(b,2)}, {v(VL8)}, {s(S_WS,4)}, {s(S_DST)} offen offset:{t*1024}' + SCOPE[0])
                    A(f'buffer_store_dwordx2 {v(b+2,2)}, {v(VL8)}, {s(S_WS,4)}, {s(S_DST)} offen offset:{t*1024+512}' + SCOPE[0])
            A(f's_add_u32 {s(S_DST)}, {s(S_DST)}, {SEG_QKVA}')
        return f
    lv = A.newlabel('a1v')
    A(f's_cmp_eq_u32 {s(S_M)}, 2')
    A(f's_cbranch_scc1 {lv}')
    for swap in (False, True):
        if swap: A.label(lv); A.flush()
        P = dict(NT=3, NKS=18, D=3, W=lambda t, ks: a(t*72 + ks*4, 4), ACC=ACC, RING=24, VL16=VL16, VRD=VRD, VPOLL=VPOLL,
                 VFLAG=VFLAG, VZERO=VZERO, VT=VT, nst=(3 if swap else 6), swap=lambda t, sw=swap: sw, epilogue=epi(swap), src_stride=SEG_XN,
                 VPOLLN=VPOLLN, SPX=SPX, dst_ring=ring('QKVA'), dst_stride=SEG_QKVA, down=dict(VP=VPD, VF=VFD, back=ring('QKVA')-1))
        gemm_loop(A, cfg, P, fail)
        A(f's_branch {done}')

def sel_layer(A, sdst, vals):
    A(f's_mul_i32 {s(sdst)}, {s(S_L)}, {hex(vals[1]-vals[0])}')
    A(f's_add_u32 {s(sdst)}, {s(sdst)}, {hex(vals[0])}')

def part_store_addr(A, vdst):
    A(f'v_lshrrev_b32 v72, 3, v78'); A(f'v_mul_u32_u24 v72, 18432, v72')
    A(f'v_lshlrev_b32 v73, 7, v77'); A(f'v_add_u32 v72, v72, v73')
    A(f'v_lshlrev_b32 v73, 4, v76'); A(f'v_add_u32 {v(vdst)}, v72, v73')

def part_epilogue(NT, VPS, stride):
    def f(A):
        A(f's_add_u32 {s(S_DST2)}, {s(S_DST)}, 36864')
        for t in range(NT):
            for tt in range(2):
                A(f'buffer_store_dwordx4 {v(t*8+tt*4,4)}, {v(VPS)}, {s(S_WS,4)}, {s(S_DST2 if tt else S_DST)} offen offset:{t*512}' + SCOPE[0])
        A(f's_add_u32 {s(S_DST)}, {s(S_DST)}, {stride}')
    return f

def role_a3(A, cfg, fail, done):
    set_scope(True)
    w = s(S_WAVE)
    lane_setup(A)
    S_T0 = S_A
    A(f's_mul_i32 {s(S_T0)}, {s(S_IDX)}, 12')
    A(f's_mul_i32 {s(S_TMP)}, {w}, 3')
    A(f's_add_u32 {s(S_T0)}, {s(S_T0)}, {s(S_TMP)}')
    A(f's_lshl_b32 {s(S_B)}, {s(S_T0)}, 5')
    A('v_lshrrev_b32 v70, 1, v79')
    A('v_lshrrev_b32 v71, 4, v70')
    A('v_and_b32 v72, 15, v70')
    A('v_mul_u32_u24 v73, 18, v71'); A('v_add_u32 v73, v73, v72'); A('v_mul_u32_u24 v68, 1152, v73')
    A('v_mul_u32_u24 v73, 144, v71')
    A('v_lshrrev_b32 v71, 1, v72'); A('v_mul_u32_u24 v71, 18, v71'); A('v_add_u32 v73, v73, v71')
    A('v_and_b32 v71, 1, v72'); A('v_add_u32 v73, v73, v71'); A('v_add_u32 v73, 16, v73')
    A('v_mul_u32_u24 v69, 1152, v73')
    A('v_and_b32 v72, 1, v79'); A('v_lshlrev_b32 v72, 4, v72')
    A('v_add_u32 v68, v68, v72'); A('v_add_u32 v69, v69, v72')
    blocks = []
    order = [(t, ks) for t in range(3) for ks in range(18)] if cfg.get('TMAJOR') else [(t, ks) for ks in range(18) for t in range(3)]
    for (t, ks) in order:
        def issue(A, t=t, ks=ks):
            off = (ks*36*1152 if ks < 16 else (ks-16)*288*1152) + t*32
            A(f's_add_u32 {s(S_SOFF)}, {s(S_B)}, {off}')
            dma16(A, 68 if ks < 16 else 69, s(S_SOFF))
        blocks.append(dict(issue=issue, dst=lambda half, t=t, ks=ks: a(t*72 + ks*4 + 2*half, 2)))
    block_loader(A, blocks, KA_AWO, 576*1152, per_round=27)
    VL16, VRD, VPOLL, VFLAG, VZERO, VT, VPS = 60, 61, 62, 63, 64, 65, 66
    A(f'v_lshlrev_b32 {v(VL16)}, 4, v79')
    A(f'v_mov_b32 {v(VZERO)}, 0')
    sel_layer(A, S_TMP+2, R_ATTA)
    flagaddr(A, VPOLL, s(S_TMP+2), 64)
    VPD, VFD = 67, 68
    sel_layer(A, S_TMP+2, R_RA)
    flagaddr(A, VPD, s(S_TMP+2), 16)
    own_flag(A)
    part_store_addr(A, VPS)
    sel_layer(A, S_SRC, WS_OA)
    sel_layer(A, S_DST, WS_PA)
    A(f's_lshl_b32 {s(S_TMP)}, {s(S_T0)}, 9')
    A(f's_add_u32 {s(S_DST)}, {s(S_DST)}, {s(S_TMP)}')
    cfg['barrier_wait'](A)
    P = dict(NT=3, NKS=18, D=3, W=lambda t, ks: a(t*72 + ks*4, 4), ACC=lambda t, tt: t*8+tt*4, RING=24, VL16=VL16, VRD=VRD, VPOLL=VPOLL,
             VFLAG=VFLAG, VZERO=VZERO, VT=VT, nst=6, swap=lambda t: False, epilogue=part_epilogue(3, VPS, SEG_PA), src_stride=SEG_XN,
             src_ring=ring('OA'), dst_ring=ring('PA'), dst_stride=SEG_PA, down=dict(VP=VPD, VF=VFD, back=ring('PA')-1))
    gemm_loop(A, cfg, P, fail)
    A(f's_branch {done}')

def role_b3(A, cfg, fail, done):
    set_scope(True)
    w = s(S_WAVE)
    lane_setup(A)
    init_defer(A, cfg, fail)
    S_KQ, S_T0 = S_A, S_B
    A(f's_mul_i32 {s(S_KQ)}, {s(S_IDX)}, 43')
    A(f's_lshr_b32 {s(S_KQ)}, {s(S_KQ)}, 7')
    A(f's_mul_i32 {s(S_TMP)}, {s(S_KQ)}, 3')
    A(f's_sub_u32 {s(S_TMP)}, {s(S_IDX)}, {s(S_TMP)}')
    A(f's_mul_i32 {s(S_T0)}, {s(S_TMP)}, 12')
    A(f's_mul_i32 {s(S_TMP)}, {w}, 3')
    A(f's_add_u32 {s(S_T0)}, {s(S_T0)}, {s(S_TMP)}')
    A(f's_mul_i32 {s(S_C)}, {s(S_KQ)}, {1024*1152}')
    A(f's_lshl_b32 {s(S_TMP)}, {s(S_T0)}, 5')
    A(f's_add_u32 {s(S_C)}, {s(S_C)}, {s(S_TMP)}')
    A('v_lshrrev_b32 v68, 1, v79'); A('v_mul_u32_u24 v68, 1152, v68')
    A('v_and_b32 v72, 1, v79'); A('v_lshlrev_b32 v72, 4, v72'); A('v_add_u32 v68, v68, v72')
    WB = 128
    blocks = []
    for ks in range(32):
        for t in range(3):
            def issue(A, t=t, ks=ks):
                A(f's_add_u32 {s(S_SOFF)}, {s(S_C)}, {ks*32*1152 + t*32}')
                dma16(A, 68, s(S_SOFF))
            blocks.append(dict(issue=issue, dst=lambda half, t=t, ks=ks: wreg_lin(t*128 + ks*4 + 2*half, 2, WB)))
    block_loader(A, blocks, KA_WO, 4096*1152, per_round=32)
    VL16, VRD, VPOLL, VFLAG, VZERO, VT, VPS = 60, 61, 62, 63, 64, 65, 66
    A(f'v_lshlrev_b32 {v(VL16)}, 4, v79')
    A(f'v_mov_b32 {v(VZERO)}, 0')
    sel_layer(A, S_TMP+2, R_ATTB)
    A(f's_lshl_b32 {s(S_TMP)}, {s(S_KQ)}, 1')
    A(f's_add_u32 {s(S_TMP+2)}, {s(S_TMP+2)}, {s(S_TMP)}')
    flagaddr(A, VPOLL, s(S_TMP+2), 8)
    VPD, VFD = 67, 68
    sel_layer(A, S_TMP+2, R_RB)
    flagaddr(A, VPD, s(S_TMP+2), 32)
    own_flag(A)
    part_store_addr(A, VPS)
    sel_layer(A, S_SRC, WS_OB)
    A(f's_lshl_b32 {s(S_TMP)}, {s(S_KQ)}, 16')
    A(f's_add_u32 {s(S_SRC)}, {s(S_SRC)}, {s(S_TMP)}')
    sel_layer(A, S_DST, WS_PB)
    A(f's_mul_i32 {s(S_TMP)}, {s(S_KQ)}, 73728')
    A(f's_add_u32 {s(S_DST)}, {s(S_DST)}, {s(S_TMP)}')
    A(f's_lshl_b32 {s(S_TMP)}, {s(S_T0)}, 9')
    A(f's_add_u32 {s(S_DST)}, {s(S_DST)}, {s(S_TMP)}')
    cfg['barrier_wait'](A)
    P = dict(NT=3, NKS=32, D=3, W=lambda t, ks: wreg_lin(t*128 + ks*4, 4, WB), ACC=lambda t, tt: t*8+tt*4, RING=24, VL16=VL16, VRD=VRD, VPOLL=VPOLL,
             VFLAG=VFLAG, VZERO=VZERO, VT=VT, nst=6, swap=lambda t: False, epilogue=part_epilogue(3, VPS, SEG_PB), src_stride=SEG_OB, KMID=10,
             src_ring=ring('OB'), dst_ring=ring('PB'), dst_stride=SEG_PB, down=dict(VP=VPD, VF=VFD, back=ring('PB'), odd=True))
    gemm_loop(A, cfg, P, fail)
    A(f's_branch {done}')

def role_b1(A, cfg, fail, done):
    set_scope(False)
    w = s(S_WAVE)
    lane_setup(A)
    if cfg.get('XH'): A(f's_xor_b32 {s(S_IDX)}, {s(S_IDX)}, {cfg["XH"]}')
    init_defer(A, cfg, fail)
    issue_half, consume_half = qkv_loader(A, True)
    issue_half(0); issue_half(1)
    for hf in range(6):
        A(f's_waitcnt vmcnt({18 if hf < 5 else 0})')
        A('s_barrier')
        consume_half(hf)
        A('s_barrier')
        if hf + 2 < 6: issue_half(hf + 2)
    init_signal(A, cfg, 64, 65)
    VL16, VRD, VPOLL, VFLAG, VZERO, VT = 64, 65, 66, 67, 68, 69
    A(f'v_lshlrev_b32 {v(VL16)}, 4, v79')
    A(f'v_mov_b32 {v(VZERO)}, 0')
    sel_layer(A, S_TMP+2, R_RA)
    flagaddr(A, VPOLL, s(S_TMP+2), 16)
    own_flag(A)
    sel_layer(A, S_SRC, WS_XNB)
    A(f's_mul_i32 {s(S_DST)}, {s(S_L)}, {QKVX_STRIDE}')
    A(f's_mul_i32 {s(S_TMP)}, {s(S_IDX)}, 24576')
    A(f's_add_u32 {s(S_DST)}, {s(S_DST)}, {s(S_TMP)}')
    A(f's_lshl_b32 {s(S_TMP)}, {w}, 10')
    A(f's_add_u32 {s(S_DST)}, {s(S_DST)}, {s(S_TMP)}')
    A(f's_add_u32 {s(S_DST)}, {s(S_DST)}, {WS_QKVX}')
    cfg['barrier_wait'](A)
    def W(t, ks): return [WQ, WK, WV][t//2](t % 2, ks)
    def ACC(t, tt):
        m = t//2
        return (m*2 + tt)*8 + (t % 2)*4 if m < 2 else 32 + (t % 2)*8 + tt*4
    def epi(A):
        for m in range(2):
            for tt in range(2):
                b = (m*2+tt)*8
                cvt(A, b, b, b+1); cvt(A, b+1, b+2, b+3); cvt(A, b+2, b+4, b+5); cvt(A, b+3, b+6, b+7)
                A(f's_add_u32 {s(S_DST2)}, {s(S_DST)}, {m*8192 + tt*4096}')
                A(f'buffer_store_dwordx4 {v(b,4)}, {v(VL16)}, {s(S_WS,4)}, {s(S_DST2)} offen sc1')
        A(f's_lshl_b32 {s(S_TMP)}, {w}, 10')
        A(f's_add_u32 {s(S_DST2)}, {s(S_DST)}, {s(S_TMP)}')
        A(f's_add_u32 {s(S_DST2)}, {s(S_DST2)}, 16384')
        for t in range(2):
            b = 32 + t*8
            cvt(A, b, b, b+1); cvt(A, b+1, b+2, b+3); cvt(A, b+2, b+4, b+5); cvt(A, b+3, b+6, b+7)
            A(f'buffer_store_dwordx4 {v(b,4)}, {v(VL16)}, {s(S_WS,4)}, {s(S_DST2)} offen offset:{t*1024} sc1')
        A(f's_add_u32 {s(S_DST)}, {s(S_DST)}, {32*24576}')
    P = dict(NT=6, NKS=18, D=2, W=W, ACC=ACC, RING=48, VL16=VL16, VRD=VRD, VPOLL=VPOLL, VFLAG=VFLAG, VZERO=VZERO, VT=VT,
             nst=6, swap=lambda t: t >= 4, epilogue=epi, src_stride=SEG_XN, KMID=6)
    gemm_loop(A, cfg, P, fail)
    A(f's_branch {done}')
```

```python
from roles import *

BIGNEG = 0xff7fffff

def xlane_sum(A, x, t, op='v_add_f32', ror8=True):
    if ror8: A(f'{op}_dpp {v(x)}, {v(x)}, {v(x)} row_ror:8 row_mask:0xf bank_mask:0xf')
    A(f'v_mov_b32 {v(t)}, {v(x)}')
    A(f'v_permlane16_swap_b32 {v(x)}, {v(t)}')
    A(f'{op} {v(x)}, {v(x)}, {v(t)}')
    A(f'v_mov_b32 {v(t)}, {v(x)}')
    A(f'v_permlane32_swap_b32 {v(x)}, {v(t)}')
    A(f'{op} {v(x)}, {v(x)}, {v(t)}')

def role_red(A, cfg, kind, l, fail, done):
    set_scope(False)
    w = s(S_WAVE)
    nparts = {'R0': 0, 'RA': 1, 'RB': 4}[kind]
    final = (kind == 'RB' and l == 1)
    ALT = 2 if kind == 'RB' else 1
    lane_setup(A)
    S_PAR = S_X + 1
    A(f's_lshr_b32 {s(S_PAR)}, {s(S_IDX)}, 2')
    A(f's_and_b32 {s(S_IDX)}, {s(S_IDX)}, 3')
    SX, SO = 48, 52
    S_XS, S_XD, S_PS, S_NS = S_A, S_B, S_C, S_D
    VXA, VPA, VNA, VPOLL, VFLAG, VZERO, VT, VST = 110, 111, 112, 113, 114, 115, 116, 117
    A('v_bfe_u32 v72, v79, 3, 2')
    A('v_lshrrev_b32 v73, 5, v79')
    A(f's_mul_i32 {s(S_TMP)}, {w}, 9')
    A(f'v_add_u32 v73, {s(S_TMP)}, v73')
    A(f'v_mul_u32_u24 {v(VXA)}, 1152, v76')
    A(f'v_lshlrev_b32 v74, 5, v73'); A(f'v_add_u32 {v(VXA)}, {v(VXA)}, v74')
    A(f'v_lshlrev_b32 v74, 3, v72'); A(f'v_add_u32 {v(VXA)}, {v(VXA)}, v74')
    A(f'v_lshlrev_b32 {v(VPA)}, 4, v79')
    A(f's_mul_i32 {s(S_TMP)}, {w}, 4608')
    A(f'v_add_u32 {v(VPA)}, {s(S_TMP)}, {v(VPA)}')
    A(f'v_lshrrev_b32 {v(VNA)}, 1, v73'); A(f'v_lshlrev_b32 {v(VNA)}, 10, {v(VNA)}')
    A(f'v_and_b32 v74, 1, v73'); A(f'v_lshlrev_b32 v74, 3, v74'); A(f'v_add_u32 {v(VNA)}, {v(VNA)}, v74')
    A(f'v_lshlrev_b32 v74, 4, v72'); A(f'v_add_u32 v74, v74, v76'); A(f'v_lshlrev_b32 v74, 4, v74')
    A(f'v_add_u32 {v(VNA)}, {v(VNA)}, v74')
    A(f's_and_b32 {s(S_TMP)}, {s(S_IDX)}, 1')
    A(f's_lshr_b32 {s(S_TMP+1)}, {s(S_IDX)}, 1')
    A(f's_lshl_b32 {s(S_TMP+2)}, {s(S_TMP)}, 7')
    A(f'v_add_u32 {v(VNA)}, {s(S_TMP+2)}, {v(VNA)}')
    A(f'v_lshlrev_b32 {v(VST)}, 3, v76')
    A(f'v_mov_b32 {v(VZERO)}, 0')
    A(f's_mul_i32 {s(S_XS)}, {s(S_IDX)}, {8*1152}')
    A(f's_mov_b32 {s(S_XD)}, {s(S_XS)}')
    A(f's_mul_i32 {s(S_PS)}, {s(S_IDX)}, 18432')
    A(f's_mul_i32 {s(S_NS)}, {s(S_TMP+1)}, 18432')
    XB = 2048*1152
    if kind == 'R0' or (kind == 'RA' and l == 0):
        A(f's_load_dwordx2 {s(S_PTR,2)}, {s(S_KA,2)}, {KA_AX}'); A('s_waitcnt lgkmcnt(0)')
        srd_from_ptr(A, SX, S_PTR, XB)
    else:
        for i in range(4): A(f's_mov_b32 {s(SX+i)}, {s(S_WS+i)}')
        A(f's_add_u32 {s(S_XS)}, {s(S_XS)}, {hex(WS_X2 if kind == "RA" else WS_X1[l])}')
    if final:
        A(f's_load_dwordx2 {s(S_PTR,2)}, {s(S_KA,2)}, {KA_OUT}'); A('s_waitcnt lgkmcnt(0)')
        srd_from_ptr(A, SO, S_PTR, XB)
    else:
        for i in range(4): A(f's_mov_b32 {s(SO+i)}, {s(S_WS+i)}')
        if kind != 'R0': A(f's_add_u32 {s(S_XD)}, {s(S_XD)}, {hex(WS_X1[l] if kind == "RA" else WS_X2)}')
    if nparts:
        A(f's_add_u32 {s(S_PS)}, {s(S_PS)}, {hex(WS_PA[l] if kind == "RA" else WS_PB[l])}')
        if kind == 'RA': flagaddr(A, VPOLL, R_A3[l], 12)
        else: flagaddr(A, VPOLL, R_B3[l], 48)
    if not final:
        A(f's_add_u32 {s(S_NS)}, {s(S_NS)}, {hex({"R0": WS_XNA[0], "RA": WS_XNB[l], "RB": WS_XNA[1]}[kind])}')
    own_flag(A)
    A(f's_mov_b32 {s(S_EXLO)}, -1'); A(f's_mov_b32 {s(S_EXLO+1)}, 0')
    if ALT == 2:
        for (r, st) in ((S_XS, SEG_X), (S_XD, SEG_X), (S_PS, SEG_PA if kind == "RA" else SEG_PB), (S_NS, SEG_XN)):
            A(f's_mul_i32 {s(S_TMP)}, {s(S_PAR)}, {st}'); A(f's_add_u32 {s(r)}, {s(r)}, {s(S_TMP)}')
    cfg['barrier_wait'](A)
    A(f's_mov_b32 {s(S_SEG)}, {s(S_PAR)}')
    A(f's_mov_b32 {s(S_X)}, 0')
    if nparts:
        A(f's_add_u32 {s(S_TGT)}, {s(S_SEG)}, 1')
        poll_block(A, cfg, VPOLL, s(S_TGT), VFLAG, fail)
    loop = A.newlabel('rloop')
    A.label(loop)
    fst(A, cfg, 1, S_SEG)
    XR = 20; PR = 128
    def masked(i, f):
        if i == 4: A(f's_mov_b64 exec, {s(S_EXLO,2)}')
        f()
        if i == 4: A('s_mov_b64 exec, -1')
    for i in range(5):
        masked(i, lambda: A(f'buffer_load_dwordx2 {v(XR+2*i,2)}, {v(VXA)}, {s(SX,4)}, {s(S_XS)} offen offset:{i*64}'))
    for p in range(nparts):
        A(f's_add_u32 {s(S_TMP)}, {s(S_PS)}, {p*73728}')
        A(f's_add_u32 {s(S_TMP+1)}, {s(S_TMP)}, 4096')
        for i in range(5):
            masked(i, lambda: A(f'buffer_load_dwordx4 {v(PR+p*20+i*4,4)}, {v(VPA)}, {s(S_WS,4)}, {s(S_TMP+1 if i == 4 else S_TMP)} offen offset:{(i%4)*1024}'))
    A('s_waitcnt vmcnt(0)')
    fst(A, cfg, 2, S_SEG)
    HI = 118
    if True:
        A(f'v_mov_b32 {v(HI)}, 0xffff0000')
    for i in range(5):
        X = 4*i
        def body():
            A(f'v_lshlrev_b32 {v(X)}, 16, {v(XR+2*i)}')
            A(f'v_and_b32 {v(X+1)}, {v(HI)}, {v(XR+2*i)}')
            A(f'v_lshlrev_b32 {v(X+2)}, 16, {v(XR+2*i+1)}')
            A(f'v_and_b32 {v(X+3)}, {v(HI)}, {v(XR+2*i+1)}')
            if nparts:
                y = PR + i*4
                if nparts == 4:
                    for (d, o) in ((0, 1), (2, 3), (0, 2)):
                        for hh in (0, 2):
                            A(f'v_pk_add_f32 {v(y+d*20+hh,2)}, {v(y+d*20+hh,2)}, {v(y+o*20+hh,2)}')
                cvt(A, y, y, y+1); cvt(A, y+1, y+2, y+3)
                A(f'v_lshlrev_b32 {v(y+4-4+2)}, 16, {v(y)}') if False else None
                A(f'v_and_b32 {v(y+2)}, {v(HI)}, {v(y)}')
                A(f'v_and_b32 {v(y+3)}, {v(HI)}, {v(y+1)}')
                A(f'v_lshlrev_b32 {v(y)}, 16, {v(y)}')
                A(f'v_lshlrev_b32 {v(y+1)}, 16, {v(y+1)}')
                A(f'v_add_f32 {v(X)}, {v(X)}, {v(y)}')
                A(f'v_add_f32 {v(X+1)}, {v(X+1)}, {v(y+2)}')
                A(f'v_add_f32 {v(X+2)}, {v(X+2)}, {v(y+1)}')
                A(f'v_add_f32 {v(X+3)}, {v(X+3)}, {v(y+3)}')
                cvt(A, XR+2*i, X, X+1); cvt(A, XR+2*i+1, X+2, X+3)
                A(f'buffer_store_dwordx2 {v(XR+2*i,2)}, {v(VXA)}, {s(SO,4)}, {s(S_XD)} offen offset:{i*64}' + ('' if final else ' sc1'))
                if not final:
                    A(f'v_lshlrev_b32 {v(X)}, 16, {v(XR+2*i)}')
                    A(f'v_and_b32 {v(X+1)}, {v(HI)}, {v(XR+2*i)}')
                    A(f'v_lshlrev_b32 {v(X+2)}, 16, {v(XR+2*i+1)}')
                    A(f'v_and_b32 {v(X+3)}, {v(HI)}, {v(XR+2*i+1)}')
        masked(i, body)
    if not final:
        SM, M2, T1 = 40, 41, 42
        A(f'v_pk_add_f32 {v(44,2)}, {v(0,2)}, {v(2,2)}')
        for i in range(1, 4):
            A(f'v_pk_add_f32 {v(44,2)}, {v(44,2)}, {v(4*i,2)}')
            A(f'v_pk_add_f32 {v(44,2)}, {v(44,2)}, {v(4*i+2,2)}')
        def b4():
            A(f'v_pk_add_f32 {v(44,2)}, {v(44,2)}, {v(16,2)}')
            A(f'v_pk_add_f32 {v(44,2)}, {v(44,2)}, {v(18,2)}')
        masked(4, b4)
        A(f'v_add_f32 {v(SM)}, v44, v45')
        xlane_sum(A, SM, T1)
        A(f'v_mul_f32 {v(SM)}, {hex(f32(1.0/144))}, {v(SM)}')
        A(f'v_mov_b32 {v(M2)}, 0')
        for i in range(5):
            def b5():
                for r in range(4):
                    A(f'v_sub_f32 {v(46)}, {v(4*i+r)}, {v(SM)}')
                    A(f'v_fmac_f32 {v(M2)}, v46, v46')
            masked(i, b5)
        xlane_sum(A, M2, T1)
        A(f's_lshl_b32 {s(S_TMP)}, {w}, 6')
        A(f's_add_u32 {s(S_TMP)}, {s(S_TMP)}, {s(S_X)}')
        A(f'v_add_u32 {v(T1)}, {s(S_TMP)}, {v(VST)}')
        A('s_mov_b64 exec, 0xff')
        A(f'ds_write_b64 {v(T1)}, {v(SM,2)}')
        A('s_mov_b64 exec, -1')
        A(f'v_add_u32 {v(T1)}, {s(S_X)}, {v(VST)}')
        A('s_waitcnt lgkmcnt(0)')
        fst(A, cfg, 3, S_SEG)
        A('s_barrier')
        fst(A, cfg, 4, S_SEG)
        for ww in range(4):
            A(f'ds_read_b64 {v(48+2*ww,2)}, {v(T1)} offset:{ww*64}')
        A(f's_xor_b32 {s(S_X)}, {s(S_X)}, 256')
        A('s_waitcnt lgkmcnt(0)')
        A('v_add_f32 v56, v48, v50'); A('v_add_f32 v57, v52, v54'); A('v_add_f32 v56, v56, v57')
        A('v_mul_f32 v56, 0.25, v56')
        A('v_add_f32 v57, v49, v51'); A('v_add_f32 v58, v53, v55'); A('v_add_f32 v57, v57, v58')
        A('v_mov_b32 v58, 0')
        for ww in range(4):
            A(f'v_sub_f32 v59, {v(48+2*ww)}, v56')
            A(f'v_fmac_f32 v58, v59, v59')
        A(f'v_fmac_f32 v57, {hex(f32(144.0))}, v58')
        A(f'v_mov_b32 v59, {hex(f32(1e-5))}')
        A(f'v_fmac_f32 v59, {hex(f32(1.0/576))}, v57')
        A('v_rsq_f32 v59, v59')
        A(f's_add_u32 {s(S_TMP+1)}, {s(S_NS)}, 4096')
        for i in range(5):
            def b6():
                X = 4*i
                for r in range(4):
                    A(f'v_sub_f32 {v(X+r)}, {v(X+r)}, v56')
                for r in range(4):
                    A(f'v_mul_f32 {v(X+r)}, {v(X+r)}, v59')
                cvt(A, X, X, X+1); cvt(A, X+1, X+2, X+3)
                A(f'buffer_store_dwordx2 {v(X,2)}, {v(VNA)}, {s(S_WS,4)}, {s(S_TMP+1 if i == 4 else S_NS)} offen offset:{(i%4)*1024} sc1')
            masked(i, b6)
    fst(A, cfg, 5, S_SEG)
    if nparts: poll_issue(A, cfg, VPOLL, VFLAG)
    A(f's_add_u32 {s(S_XS)}, {s(S_XS)}, {ALT*SEG_X}')
    A(f's_add_u32 {s(S_XD)}, {s(S_XD)}, {ALT*SEG_X}')
    A(f's_add_u32 {s(S_PS)}, {s(S_PS)}, {ALT*(SEG_PA if kind == "RA" else SEG_PB)}')
    A(f's_add_u32 {s(S_NS)}, {s(S_NS)}, {ALT*SEG_XN}')
    A(f's_add_u32 {s(S_TMP)}, {s(S_SEG)}, 1')
    A(f's_add_u32 {s(S_SEG)}, {s(S_SEG)}, {ALT}')
    A('s_waitcnt vmcnt(0)')
    fst(A, cfg, 6, S_SEG, 32+ALT)
    if not final: publish(A, s(S_TMP), VT, VZERO)
    elif cfg.get('TIME'): tstamp(A, CFG, s(S_TMP), VT, VZERO)
    A(f's_cmp_ge_u32 {s(S_SEG)}, 64')
    A(f's_cbranch_scc1 {done}')
    if nparts:
        A(f's_add_u32 {s(S_TGT)}, {s(S_SEG)}, 1')
        poll_check(A, cfg, VPOLL, s(S_TGT), VFLAG, fail)
    A(f's_branch {loop}')


def role_red2(A, cfg, kind, l, fail, done):
    set_scope(False)
    w = s(S_WAVE)
    nparts = {'R0': 0, 'RA': 1, 'RB': 4}[kind]
    final = (kind == 'RB' and l == 1)
    ALT = 2 if kind == 'RB' else 1
    xgate = not (kind == 'R0' or (kind == 'RA' and l == 0))
    lane_setup(A)
    S_PAR = S_X + 1; S_HAVE = S_X
    A(f's_lshr_b32 {s(S_PAR)}, {s(S_IDX)}, 2')
    A(f's_and_b32 {s(S_IDX)}, {s(S_IDX)}, 3')
    SX, SO = 48, 52
    S_PM = 56
    S_XS, S_XD, S_PS, S_NS = S_A, S_B, S_C, S_D
    VXA, VPA, VNW, VPOLL, VFLAG, VZERO, VT, VST, HI, VL16, VNG, VTG, VTOG, VP2, VF2 = range(96, 111)
    L_ST, L_XO, L_NO = 0, 1024, 10240
    A('v_bfe_u32 v72, v79, 3, 2')
    A('v_lshrrev_b32 v73, 5, v79')
    A(f'v_lshlrev_b32 {v(VNG)}, 10, v73')
    A(f'v_lshlrev_b32 v74, 8, v72'); A(f'v_add_u32 {v(VNG)}, {v(VNG)}, v74')
    A(f'v_lshlrev_b32 v74, 4, v76'); A(f'v_add_u32 {v(VNG)}, {v(VNG)}, v74')
    A(f's_mul_i32 {s(S_TMP)}, {w}, 9')
    A(f'v_add_u32 v73, {s(S_TMP)}, v73')
    A(f'v_mul_u32_u24 {v(VXA)}, 1152, v76')
    A(f'v_lshlrev_b32 v74, 5, v73'); A(f'v_add_u32 {v(VXA)}, {v(VXA)}, v74')
    A(f'v_lshlrev_b32 v74, 3, v72'); A(f'v_add_u32 {v(VXA)}, {v(VXA)}, v74')
    A(f'v_lshlrev_b32 {v(VL16)}, 4, v79')
    A(f's_mul_i32 {s(S_TMP)}, {w}, 4608')
    A(f'v_add_u32 {v(VPA)}, {s(S_TMP)}, {v(VL16)}')
    A(f'v_lshrrev_b32 {v(VNW)}, 1, v73'); A(f'v_lshlrev_b32 {v(VNW)}, 9, {v(VNW)}')
    A(f'v_and_b32 v74, 1, v73'); A(f'v_lshlrev_b32 v74, 3, v74'); A(f'v_add_u32 {v(VNW)}, {v(VNW)}, v74')
    A(f'v_lshlrev_b32 v74, 7, v72'); A(f'v_add_u32 {v(VNW)}, {v(VNW)}, v74')
    A(f'v_lshlrev_b32 v74, 4, v76'); A(f'v_add_u32 {v(VNW)}, {v(VNW)}, v74')
    A(f'v_add_u32 {v(VNW)}, {L_NO}, {v(VNW)}')
    A(f's_and_b32 {s(S_TMP)}, {s(S_IDX)}, 1')
    A(f's_lshr_b32 {s(S_TMP+1)}, {s(S_IDX)}, 1')
    A(f's_lshl_b32 {s(S_TMP+2)}, {s(S_TMP)}, 7')
    A(f'v_add_u32 {v(VNG)}, {s(S_TMP+2)}, {v(VNG)}')
    A(f'v_lshlrev_b32 {v(VST)}, 3, v76')
    A(f'v_mov_b32 {v(VZERO)}, 0')
    A(f'v_mov_b32 {v(HI)}, 0xffff0000')
    A(f's_mul_i32 {s(S_XS)}, {s(S_IDX)}, {8*1152}')
    A(f's_mov_b32 {s(S_XD)}, {s(S_XS)}')
    A(f's_mul_i32 {s(S_PS)}, {s(S_IDX)}, 18432')
    A(f's_mul_i32 {s(S_NS)}, {s(S_TMP+1)}, 18432')
    XB = 2048*1152
    if not xgate:
        A(f's_load_dwordx2 {s(S_PTR,2)}, {s(S_KA,2)}, {KA_AX}'); A('s_waitcnt lgkmcnt(0)')
        srd_from_ptr(A, SX, S_PTR, XB)
    else:
        for i in range(4): A(f's_mov_b32 {s(SX+i)}, {s(S_WS+i)}')
        A(f's_add_u32 {s(S_XS)}, {s(S_XS)}, {hex(WS_X2 if kind == "RA" else WS_X1[l])}')
    if final:
        A(f's_load_dwordx2 {s(S_PTR,2)}, {s(S_KA,2)}, {KA_OUT}'); A('s_waitcnt lgkmcnt(0)')
        srd_from_ptr(A, SO, S_PTR, XB)
    else:
        for i in range(4): A(f's_mov_b32 {s(SO+i)}, {s(S_WS+i)}')
        if kind != 'R0': A(f's_add_u32 {s(S_XD)}, {s(S_XD)}, {hex(WS_X1[l] if kind == "RA" else WS_X2)}')
    if nparts:
        A(f's_add_u32 {s(S_PS)}, {s(S_PS)}, {hex(WS_PA[l] if kind == "RA" else WS_PB[l])}')
        if kind == 'RA': flagaddr(A, VPOLL, R_A3[l], 12)
        else: flagaddr(A, VPOLL, R_B3[l], 48)
        A(f's_mov_b32 {s(S_PM)}, -1'); A(f's_mov_b32 {s(S_PM+1)}, 0xffff')
        if xgate:
            A(f'v_and_b32 v72, 15, v79')
            flagaddr(A, VP2, R_RB[0] if kind == 'RA' else R_RA[l], 16, vlane=72)
            if kind == 'RA': A(f'v_xor_b32 {v(VP2)}, 512, {v(VP2)}')
            A(f'v_cndmask_b32 {v(VPOLL)}, {v(VP2)}, {v(VPOLL)}, {s(S_PM,2)}')
            A(f'v_mov_b32 {v(VTOG)}, {512 if kind == "RA" else 0}')
            A(f'v_cndmask_b32 {v(VTOG)}, {v(VTOG)}, 0, {s(S_PM,2)}')
    if not final:
        A(f's_add_u32 {s(S_NS)}, {s(S_NS)}, {hex({"R0": WS_XNA[0], "RA": WS_XNB[l], "RB": WS_XNA[1]}[kind])}')
    own_flag(A)
    A(f's_mov_b32 {s(S_EXLO)}, -1'); A(f's_mov_b32 {s(S_EXLO+1)}, 0')
    if ALT == 2:
        for (r, st) in ((S_XS, SEG_X), (S_XD, SEG_X), (S_NS, SEG_XN)):
            A(f's_mul_i32 {s(S_TMP)}, {s(S_PAR)}, {st}'); A(f's_add_u32 {s(r)}, {s(r)}, {s(S_TMP)}')
    S_C0 = 60
    A(f's_lshl_b32 {s(S_C0)}, {w}, 10')
    A(f's_lshl_b32 {s(S_C0+1)}, {w}, 11')
    VRD = 111
    A(f'v_add_u32 {v(VRD)}, {s(S_C0)}, {v(VL16)}')
    XR = 20; XP = 30; PR = 128
    def masked(i, f):
        if i == 4: A(f's_mov_b64 exec, {s(S_EXLO,2)}')
        f()
        if i == 4: A('s_mov_b64 exec, -1')
    def xloads():
        for i in range(5):
            masked(i, lambda: A(f'buffer_load_dwordx2 {v(XP+2*i,2)}, {v(VXA)}, {s(SX,4)}, {s(S_XS)} offen offset:{i*64}'))
        A(f's_add_u32 {s(S_XS)}, {s(S_XS)}, {ALT*SEG_X}')
    def set_targets():
        A(f's_add_u32 {s(S_TGT)}, {s(S_SEG)}, 1')
        if xgate:
            A(f's_add_u32 {s(S_TMP+1)}, {s(S_SEG)}, {ALT+1}')
            A(f'v_mov_b32 {v(VTG)}, {s(S_TGT)}')
            A(f'v_mov_b32 {v(VT)}, {s(S_TMP+1)}')
            A(f'v_cndmask_b32 {v(VTG)}, {v(VT)}, {v(VTG)}, {s(S_PM,2)}')
    def pcheck():
        if cfg.get('NOWAIT'): return
        ok = A.newlabel('rok'); re_ = A.newlabel('rre')
        def test():
            if xgate:
                A(f'v_cmp_gt_u32 vcc, {v(VTG)}, {v(VFLAG)}')
                A(f's_and_b64 {s(58,2)}, vcc, {s(S_PM,2)}')
                A(f's_cbranch_scc0 {ok}')
            else:
                A(f'v_cmp_gt_u32 vcc, {s(S_TGT)}, {v(VFLAG)}')
                A(f's_cbranch_vccz {ok}')
        test()
        A(f's_mov_b32 {s(S_SPIN)}, {SPIN_LIMIT}')
        A.label(re_)
        A(f'buffer_load_dword {v(VFLAG)}, {v(VPOLL)}, {s(S_WS,4)}, 0 offen sc1')
        A('s_waitcnt vmcnt(0)')
        test()
        spin_check(A, re_, fail)
        A.label(ok)
    cfg['barrier_wait'](A)
    A(f's_mov_b32 {s(S_SEG)}, {s(S_PAR)}')
    A(f's_mov_b32 {s(S_HAVE)}, 0')
    if not xgate:
        xloads(); A(f's_mov_b32 {s(S_HAVE)}, 1')
    set_targets()
    if nparts:
        poll_issue(A, cfg, VPOLL, VFLAG)
        A('s_waitcnt vmcnt(0)')
        pcheck()
    else:
        A('s_waitcnt vmcnt(0)')
    loop = A.newlabel('rloop')
    A.label(loop); A.flush()
    fst(A, cfg, 1, S_SEG)
    if xgate:
        hv = A.newlabel('rhave')
        A(f's_cmp_lg_u32 {s(S_HAVE)}, 0')
        A(f's_cbranch_scc1 {hv}')
        if not cfg.get('NOWAIT'):
            re_ = A.newlabel('rxre'); ok = A.newlabel('rxok')
            A(f'v_xor_b32 {v(VP2)}, {v(VTOG)}, {v(VPOLL)}')
            A(f's_mov_b32 {s(S_SPIN)}, {SPIN_LIMIT}')
            A.label(re_)
            A(f'buffer_load_dword {v(VF2)}, {v(VP2)}, {s(S_WS,4)}, 0 offen sc1')
            A('s_waitcnt vmcnt(0)')
            A(f'v_cmp_gt_u32 vcc, {s(S_TGT)}, {v(VF2)}')
            A(f's_andn2_b64 {s(58,2)}, vcc, {s(S_PM,2)}')
            A(f's_cbranch_scc0 {ok}')
            spin_check(A, re_, fail)
            A.label(ok)
        xloads()
        A('s_waitcnt vmcnt(0)')
        A.label(hv); A.flush()
    for i in range(10): A(f'v_mov_b32 {v(XR+i)}, {v(XP+i)}')
    PRING = ring('PA' if kind == 'RA' else 'PB') if nparts else 64
    if nparts: ring_off(A, S_C0+3, S_PS, s(S_SEG), PRING, SEG_PA if kind == 'RA' else SEG_PB)
    psc = ' sc1' if PRING < 64 else ''
    for p in range(nparts):
        A(f's_add_u32 {s(S_TMP)}, {s(S_C0+3)}, {p*73728}')
        A(f's_add_u32 {s(S_TMP+1)}, {s(S_TMP)}, 4096')
        for i in range(5):
            masked(i, lambda: A(f'buffer_load_dwordx4 {v(PR+p*20+i*4,4)}, {v(VPA)}, {s(S_WS,4)}, {s(S_TMP+1 if i == 4 else S_TMP)} offen offset:{(i%4)*1024}{psc}'))
    nopf = A.newlabel('rnopf'); pfd = A.newlabel('rpfd')
    A(f's_mov_b32 {s(S_HAVE)}, 0')
    A(f's_cmp_ge_u32 {s(S_SEG)}, {64 - ALT}')
    A(f's_cbranch_scc1 {nopf}')
    if xgate and not cfg.get('NOWAIT'):
        A(f'v_cmp_gt_u32 vcc, {v(VTG)}, {v(VFLAG)}')
        A(f's_andn2_b64 {s(58,2)}, vcc, {s(S_PM,2)}')
        A(f's_cbranch_scc1 {nopf}')
    xloads()
    A(f's_mov_b32 {s(S_HAVE)}, 1')
    if nparts: A('s_waitcnt vmcnt(5)')
    A(f's_branch {pfd}')
    A.label(nopf); A.flush()
    if nparts: A('s_waitcnt vmcnt(0)')
    A.label(pfd); A.flush()
    fst(A, cfg, 2, S_SEG)
    if final: A('s_barrier')
    for i in range(5):
        X = 4*i
        def body():
            A(f'v_lshlrev_b32 {v(X)}, 16, {v(XR+2*i)}')
            A(f'v_and_b32 {v(X+1)}, {v(HI)}, {v(XR+2*i)}')
            A(f'v_lshlrev_b32 {v(X+2)}, 16, {v(XR+2*i+1)}')
            A(f'v_and_b32 {v(X+3)}, {v(HI)}, {v(XR+2*i+1)}')
            if nparts:
                y = PR + i*4
                if nparts == 4:
                    for (d, o) in ((0, 1), (2, 3), (0, 2)):
                        for hh in (0, 2):
                            A(f'v_pk_add_f32 {v(y+d*20+hh,2)}, {v(y+d*20+hh,2)}, {v(y+o*20+hh,2)}')
                cvt(A, y, y, y+1); cvt(A, y+1, y+2, y+3)
                A(f'v_and_b32 {v(y+2)}, {v(HI)}, {v(y)}')
                A(f'v_and_b32 {v(y+3)}, {v(HI)}, {v(y+1)}')
                A(f'v_lshlrev_b32 {v(y)}, 16, {v(y)}')
                A(f'v_lshlrev_b32 {v(y+1)}, 16, {v(y+1)}')
                A(f'v_add_f32 {v(X)}, {v(X)}, {v(y)}')
                A(f'v_add_f32 {v(X+1)}, {v(X+1)}, {v(y+2)}')
                A(f'v_add_f32 {v(X+2)}, {v(X+2)}, {v(y+1)}')
                A(f'v_add_f32 {v(X+3)}, {v(X+3)}, {v(y+3)}')
                cvt(A, XR+2*i, X, X+1); cvt(A, XR+2*i+1, X+2, X+3)
                A(f'ds_write_b64 {v(VXA)}, {v(XR+2*i,2)} offset:{L_XO + i*64}')
                if not final:
                    A(f'v_lshlrev_b32 {v(X)}, 16, {v(XR+2*i)}')
                    A(f'v_and_b32 {v(X+1)}, {v(HI)}, {v(XR+2*i)}')
                    A(f'v_lshlrev_b32 {v(X+2)}, 16, {v(XR+2*i+1)}')
                    A(f'v_and_b32 {v(X+3)}, {v(HI)}, {v(XR+2*i+1)}')
        masked(i, body)
    OC = 60
    def chunk_out(lbase, extra_wave, gv, gsrd, gs, gmul, scope):
        ex = A.newlabel('rex'); ex2 = A.newlabel('rex2')
        A(f'ds_read_b128 {v(OC,4)}, {v(VRD)} offset:{lbase}')
        A(f'ds_read_b128 {v(OC+4,4)}, {v(VRD)} offset:{lbase + 4096}')
        A(f's_add_u32 {s(S_TMP)}, {gs}, {s(S_C0 if gmul == 1024 else S_C0+1)}')
        A(f's_add_u32 {s(S_TMP+1)}, {s(S_TMP)}, {4*gmul}')
        A(f's_cmp_lg_u32 {w}, {extra_wave}')
        A(f's_cbranch_scc1 {ex}')
        A(f'ds_read_b128 {v(OC+8,4)}, {v(VL16)} offset:{lbase + 8192}')
        A(f's_add_u32 {s(S_TMP+2)}, {gs}, {8*gmul}')
        A('s_waitcnt lgkmcnt(0)')
        A(f'buffer_store_dwordx4 {v(OC+8,4)}, {v(gv)}, {s(gsrd,4)}, {s(S_TMP+2)} offen' + scope)
        A.label(ex); A.flush()
        A('s_waitcnt lgkmcnt(0)')
        A(f'buffer_store_dwordx4 {v(OC,4)}, {v(gv)}, {s(gsrd,4)}, {s(S_TMP)} offen' + scope)
        A(f'buffer_store_dwordx4 {v(OC+4,4)}, {v(gv)}, {s(gsrd,4)}, {s(S_TMP+1)} offen' + scope)
    if final:
        A('s_waitcnt lgkmcnt(0)')
        A('s_barrier')
        chunk_out(L_XO, 0, VL16, SO, s(S_XD), 1024, '')
    else:
        SM, M2, T1 = 40, 41, 42
        A(f'v_pk_add_f32 {v(44,2)}, {v(0,2)}, {v(2,2)}')
        for i in range(1, 4):
            A(f'v_pk_add_f32 {v(44,2)}, {v(44,2)}, {v(4*i,2)}')
            A(f'v_pk_add_f32 {v(44,2)}, {v(44,2)}, {v(4*i+2,2)}')
        def b4():
            A(f'v_pk_add_f32 {v(44,2)}, {v(44,2)}, {v(16,2)}')
            A(f'v_pk_add_f32 {v(44,2)}, {v(44,2)}, {v(18,2)}')
        masked(4, b4)
        A(f'v_add_f32 {v(SM)}, v44, v45')
        xlane_sum(A, SM, T1)
        A(f'v_mul_f32 {v(SM)}, {hex(f32(1.0/144))}, {v(SM)}')
        A(f'v_mov_b32 {v(M2)}, 0')
        for i in range(5):
            def b5():
                for r in range(4):
                    A(f'v_sub_f32 {v(46)}, {v(4*i+r)}, {v(SM)}')
                    A(f'v_fmac_f32 {v(M2)}, v46, v46')
            masked(i, b5)
        xlane_sum(A, M2, T1)
        A(f'v_add_u32 {v(T1)}, {s(S_C0)}, {v(VST)}') if False else None
        A(f's_lshl_b32 {s(S_TMP)}, {w}, 6')
        A(f'v_add_u32 {v(T1)}, {s(S_TMP)}, {v(VST)}')
        A('s_mov_b64 exec, 0xff')
        A(f'ds_write_b64 {v(T1)}, {v(SM,2)} offset:{L_ST}')
        A('s_mov_b64 exec, -1')
        A('s_waitcnt lgkmcnt(0)')
        fst(A, cfg, 3, S_SEG)
        A('s_barrier')
        fst(A, cfg, 4, S_SEG)
        for ww in range(4):
            A(f'ds_read_b64 {v(48+2*ww,2)}, {v(VST)} offset:{L_ST + ww*64}')
        if nparts: chunk_out(L_XO, 0, VL16, SO, s(S_XD), 1024, ' sc1')
        else: A('s_waitcnt lgkmcnt(0)')
        A('v_add_f32 v56, v48, v50'); A('v_add_f32 v57, v52, v54'); A('v_add_f32 v56, v56, v57')
        A('v_mul_f32 v56, 0.25, v56')
        A('v_add_f32 v57, v49, v51'); A('v_add_f32 v58, v53, v55'); A('v_add_f32 v57, v57, v58')
        A('v_mov_b32 v58, 0')
        for ww in range(4):
            A(f'v_sub_f32 v59, {v(48+2*ww)}, v56')
            A(f'v_fmac_f32 v58, v59, v59')
        A(f'v_fmac_f32 v57, {hex(f32(144.0))}, v58')
        A(f'v_mov_b32 v59, {hex(f32(1e-5))}')
        A(f'v_fmac_f32 v59, {hex(f32(1.0/576))}, v57')
        A('v_rsq_f32 v59, v59')
        for i in range(5):
            def b6():
                X = 4*i
                for r in range(4):
                    A(f'v_sub_f32 {v(X+r)}, {v(X+r)}, v56')
                for r in range(4):
                    A(f'v_mul_f32 {v(X+r)}, {v(X+r)}, v59')
                cvt(A, X, X, X+1); cvt(A, X+1, X+2, X+3)
                A(f'ds_write_b64 {v(VNW)}, {v(X,2)} offset:{i*512}')
            masked(i, b6)
        A('s_waitcnt lgkmcnt(0)')
        A('s_barrier')
        chunk_out(L_NO, 1, VNG, S_WS, s(S_NS), 2048, ' sc1')
    fst(A, cfg, 5, S_SEG)
    A(f's_add_u32 {s(S_XD)}, {s(S_XD)}, {ALT*SEG_X}')
    A(f's_add_u32 {s(S_NS)}, {s(S_NS)}, {ALT*SEG_XN}')
    A(f's_add_u32 {s(S_C0+2)}, {s(S_SEG)}, 1')
    A(f's_add_u32 {s(S_SEG)}, {s(S_SEG)}, {ALT}')
    if xgate: A(f'v_xor_b32 {v(VPOLL)}, {v(VTOG)}, {v(VPOLL)}')
    if nparts: poll_issue(A, cfg, VPOLL, VFLAG)
    set_targets()
    A('s_waitcnt vmcnt(0)')
    fst(A, cfg, 6, S_SEG, 32+ALT)
    publish(A, s(S_C0+2), VT, VZERO)
    A(f's_cmp_ge_u32 {s(S_SEG)}, 64')
    A(f's_cbranch_scc1 {done}')
    if nparts: pcheck()
    A(f's_branch {loop}')

def causal_masks(A, sbase, vt=72):
    A(f'v_lshlrev_b32 {v(vt)}, 2, v77')
    for r in range(4):
        A(f'v_add_u32 {v(vt+1)}, {r}, {v(vt)}')
        A(f'v_cmp_gt_u32 {s(sbase+2*r,2)}, {v(vt+1)}, v78')

def role_attb(A, cfg, fail, done):
    set_scope(True)
    w = s(S_WAVE)
    lane_setup(A)
    S_HH = S_A
    A(f's_lshl_b32 {s(S_HH)}, {s(S_IDX)}, 2')
    A(f's_add_u32 {s(S_HH)}, {s(S_HH)}, {w}')
    SMK = 46
    causal_masks(A, SMK)
    VL16, VP1, VP2, VFLAG, VZERO, VT, VSC, VNEG, VL8 = 220, 221, 222, 223, 224, 225, 226, 227, 228
    NEWKV = not cfg.get('OLDCHAIN')
    A(f'v_lshlrev_b32 {v(VL16)}, 4, v79')
    A(f'v_lshlrev_b32 {v(VL8)}, 3, v79')
    A(f'v_mov_b32 {v(VZERO)}, 0')
    A(f'v_mov_b32 {v(VSC)}, {hex(f32((128 ** -0.5) * 1.4426950408889634))}')
    A(f'v_mov_b32 {v(VNEG)}, {hex(BIGNEG)}')
    sel_layer(A, S_TMP+2, R_B1); A(f's_add_u32 {s(S_TMP+2)}, {s(S_TMP+2)}, {s(S_HH)}')
    flagaddr(A, VP1, s(S_TMP+2), 4)
    sel_layer(A, S_TMP+2, R_CHAIN); A(f's_add_u32 {s(S_TMP+2)}, {s(S_TMP+2)}, {s(S_HH)}')
    flagaddr(A, VP2, s(S_TMP+2), 4)
    VPD, VFD = 212, 213
    sel_layer(A, S_TMP+2, R_B3)
    A(f's_lshr_b32 {s(S_TMP)}, {s(S_IDX)}, 1'); A(f's_mul_i32 {s(S_TMP)}, {s(S_TMP)}, 3')
    A(f's_add_u32 {s(S_TMP+2)}, {s(S_TMP+2)}, {s(S_TMP)}')
    flagaddr(A, VPD, s(S_TMP+2), 12)
    own_flag(A)
    ROB = ring('OB')
    if ROB < 64:
        sel_layer(A, 60, WS_OB); sel_layer(A, 61, WS_PB)
        A(f's_lshl_b32 {s(62)}, {s(S_IDX)}, 2'); A(f's_add_u32 {s(62)}, {s(62)}, {w}')
    S_QX, S_KV, S_OB = S_B, S_C, S_D
    A(f's_mul_i32 {s(S_QX)}, {s(S_L)}, {QKVX_STRIDE}')
    A(f's_mul_i32 {s(S_TMP)}, {s(S_HH)}, 24576')
    A(f's_add_u32 {s(S_QX)}, {s(S_QX)}, {s(S_TMP)}')
    A(f's_add_u32 {s(S_QX)}, {s(S_QX)}, {WS_QKVX}')
    A(f's_mul_i32 {s(S_KV)}, {s(S_L)}, {KVM_STRIDE}')
    A(f's_lshl_b32 {s(S_TMP)}, {s(S_HH)}, 13')
    A(f's_add_u32 {s(S_KV)}, {s(S_KV)}, {s(S_TMP)}')
    A(f's_add_u32 {s(S_KV)}, {s(S_KV)}, {WS_KVM}')
    sel_layer(A, S_OB, WS_OB)
    A(f's_lshr_b32 {s(S_TMP)}, {s(S_HH)}, 3'); A(f's_lshl_b32 {s(S_TMP)}, {s(S_TMP)}, 16')
    A(f's_add_u32 {s(S_OB)}, {s(S_OB)}, {s(S_TMP)}')
    A(f's_and_b32 {s(S_TMP)}, {s(S_HH)}, 7'); A(f's_lshl_b32 {s(S_TMP)}, {s(S_TMP)}, 12')
    A(f's_add_u32 {s(S_OB)}, {s(S_OB)}, {s(S_TMP)}')
    cfg['barrier_wait'](A)
    if ROB < 64 and not cfg.get('SLOWV'): pretouch(A, [(60, ROB*SEG_OB), (61, ring('PB')*SEG_PB)], 32, 62, VL16, 0)
    A(f's_mov_b32 {s(S_SEG)}, 0')
    Q = lambda tt, kk: tt*16 + kk*4
    KX = lambda kt, kk: 32 + kt*16 + kk*4
    VX = lambda et: 64 + et*4
    KM = lambda kk: 96 + kk*4
    VM = lambda et: 112 + et*2
    S00, S01, S11, SM0, SM1 = 128, 132, 136, 140, 144
    O = lambda et, tt: 148 + ((tt*4 + et//2)*2 + (et & 1))*4
    XT = 0
    def qkvx_loads():
        for blk in range(6):
            A(f's_add_u32 {s(S_TMP)}, {s(S_QX)}, {blk*4096}')
            for j in range(4):
                A(f'buffer_load_dwordx4 {v((blk*4+j)*4,4)}, {v(VL16)}, {s(S_WS,4)}, {s(S_TMP)} offen offset:{j*1024}' + (' nt' if cfg.get('NTQ') else ''))
        A(f's_add_u32 {s(S_QX)}, {s(S_QX)}, {32*24576}')
    DP = 1 if (ROB < 64 and not cfg.get('NOWAIT')) else 0
    def kvm_loads():
        if DP: poll_issue(A, cfg, VPD, VFD)
        A(f's_add_u32 {s(S_TMP)}, {s(S_KV)}, 4096')
        for j in range(4): A(f'buffer_load_dwordx4 {v(KM(j),4)}, {v(VL16)}, {s(S_WS,4)}, {s(S_KV)} offen offset:{j*1024}')
        if NEWKV:
            for j in range(4): A(f'buffer_load_dwordx2 {v(112+2*j,2)}, {v(VL8)}, {s(S_WS,4)}, {s(S_TMP)} offen offset:{j*512}')
        else:
            for j in range(4): A(f'buffer_load_dwordx4 {v(112+4*j,4)}, {v(VL16)}, {s(S_WS,4)}, {s(S_TMP)} offen offset:{j*1024}')
        A(f's_add_u32 {s(S_KV)}, {s(S_KV)}, {32*8192}')
    qsc = ' nt' if cfg.get('NTQ') else ''
    def sx_mfma():
        for kk in range(4):
            for (acc, kt, tt) in ((S00, 0, 0), (S01, 0, 1), (S11, 1, 1)):
                A(f'{MF} {v(acc,4)}, {v(KX(kt,kk),4)}, {v(Q(tt,kk),4)}, {"0" if kk == 0 else v(acc,4)}')
    A(f's_mov_b32 {s(S_TGT)}, 1')
    poll_block(A, cfg, VP1, s(S_TGT), VFLAG, fail)
    qkvx_loads()
    A('s_waitcnt vmcnt(8)')
    slow = A.newlabel('bslow'); join = A.newlabel('bjoin'); loop = A.newlabel('bloop')
    A(f's_branch {slow}_2')
    A.label(loop); A.flush()
    fst(A, cfg, 0, S_SEG)
    if not cfg.get('NOWAIT'):
        A(f'v_cmp_gt_u32 vcc, {s(S_TGT)}, {v(VFLAG)}')
        A(f's_cbranch_vccnz {slow}')
    kvm_loads()
    A(f's_waitcnt vmcnt({8 + 8 + 1 + XT + DP})')
    sx_mfma()
    A('s_nop 7')
    A(f's_branch {join}')
    A.label(slow); A.flush()
    A(f's_waitcnt vmcnt({8 + 1 + XT})')
    A.label(slow + '_2'); A.flush()
    sx_mfma()
    poll_block(A, cfg, VP2, s(S_TGT), VFLAG, fail)
    kvm_loads()
    A.label(join); A.flush()
    fst(A, cfg, 3, S_SEG)
    for r in range(4):
        A(f'v_cndmask_b32 {v(S00+r)}, {v(S00+r)}, {v(VNEG)}, {s(SMK+2*r,2)}')
        A(f'v_cndmask_b32 {v(S11+r)}, {v(S11+r)}, {v(VNEG)}, {s(SMK+2*r,2)}')
    A('s_waitcnt vmcnt(4)')
    fst(A, cfg, 4, S_SEG)
    for kk in range(4):
        for (acc, tt) in ((SM0, 0), (SM1, 1)):
            A(f'{MF} {v(acc,4)}, {v(KM(kk),4)}, {v(Q(tt,kk),4)}, {"0" if kk == 0 else v(acc,4)}')
    MX = [230, 232]; T = 234; NM = [236, 237]; SUM = [238, 239]
    xs = [[S00], [S01, S11]]; ms = [SM0, SM1]
    NM_ = 2 if NEWKV else 4
    assert NEWKV
    allv = lambda tt: [x+r for x in xs[tt] for r in range(4)] + [ms[tt]+r for r in range(NM_)]
    for tt in range(2):
        vals = allv(tt)
        mx = MX[tt]
        A(f'v_max3_f32 {v(mx)}, {v(vals[0])}, {v(vals[1])}, {v(vals[2])}')
        rest = vals[3:]
        while len(rest) >= 2:
            A(f'v_max3_f32 {v(mx)}, {v(mx)}, {v(rest[0])}, {v(rest[1])}'); rest = rest[2:]
        if rest: A(f'v_max_f32 {v(mx)}, {v(mx)}, {v(rest[0])}')
    for tt in range(2):
        xlane_sum(A, MX[tt], T + tt, op='v_max_f32', ror8=False)
    for tt in range(2):
        A(f'v_mul_f32 {v(NM[tt])}, {hex(f32(-(128 ** -0.5) * 1.4426950408889634))}, {v(MX[tt])}')
    for tt in range(2):
        for x in allv(tt): A(f'v_fma_f32 {v(x)}, {v(x)}, {v(VSC)}, {v(NM[tt])}')
    for tt in range(2):
        for x in allv(tt): A(f'v_exp_f32 {v(x)}, {v(x)}')
    P0, P1, PM0, PM1 = 240, 244, 248, 252
    cvt(A, P0, S00, S00+1); cvt(A, P0+1, S00+2, S00+3)
    A(f'v_mov_b32 {v(P0+2)}, 0'); A(f'v_mov_b32 {v(P0+3)}, 0')
    cvt(A, P1, S01, S01+1); cvt(A, P1+1, S01+2, S01+3); cvt(A, P1+2, S11, S11+1); cvt(A, P1+3, S11+2, S11+3)
    for (pm, sm) in ((PM0, SM0), (PM1, SM1)):
        cvt(A, pm, sm, sm+1); A(f'v_mov_b32 {v(pm+1)}, 0'); A(f'v_mov_b32 {v(pm+2)}, 0'); A(f'v_mov_b32 {v(pm+3)}, {v(pm)}')
    for et in range(8):
        for tt in range(2):
            A(f'{MF} {v(O(et,tt),4)}, {v(VX(et),4)}, {v([P0,P1][tt],4)}, 0')
    for tt in range(2):
        vals = allv(tt)
        A(f'v_add_f32 {v(SUM[tt])}, {v(vals[0])}, {v(vals[1])}')
        for x in vals[2:]: A(f'v_add_f32 {v(SUM[tt])}, {v(SUM[tt])}, {v(x)}')
    A('s_waitcnt vmcnt(0)')
    for et in range(8):
        for tt in range(2):
            A(f'{MF16} {v(O(et,tt),4)}, {v(112 + 2*(et>>1),2)}, {v([PM0,PM1][tt] + 2*(et&1),2)}, {v(O(et,tt),4)}')
    for tt in range(2):
        xlane_sum(A, SUM[tt], T + tt, ror8=False)
    for tt in range(2): A(f'v_rcp_f32 {v(SUM[tt])}, {v(SUM[tt])}')
    if ROB < 64: down_check(A, cfg, VPD, VFD, s(S_SEG), ROB-1, 60, fail)
    jitter(A)
    ring_off(A, 61, S_OB, s(S_SEG), ROB, SEG_OB)
    for tt in range(2):
        A(f's_add_u32 {s(S_TMP)}, {s(61)}, {tt*32768}')
        for kk in range(4):
            b = O(2*kk, tt)
            for r in range(8): A(f'v_mul_f32 {v(b+r)}, {v(b+r)}, {v(SUM[tt])}')
            cvt(A, b, b, b+1); cvt(A, b+1, b+2, b+3); cvt(A, b+2, b+4, b+5); cvt(A, b+3, b+6, b+7)
            A(f'buffer_store_dwordx4 {v(b,4)}, {v(VL16)}, {s(S_WS,4)}, {s(S_TMP)} offen offset:{kk*1024}' + SCOPE[0])
    fst(A, cfg, 5, S_SEG)
    A(f's_add_u32 {s(S_SEG)}, {s(S_SEG)}, 1')
    last = A.newlabel('blast')
    A(f's_cmp_ge_u32 {s(S_SEG)}, 64')
    A(f's_cbranch_scc1 {last}')
    poll_issue(A, cfg, VP2, VFLAG)
    qkvx_loads()
    A('s_waitcnt vmcnt(24)')
    fst(A, cfg, 6, S_SEG, 33)
    publish(A, s(S_SEG), VT, VZERO)
    A(f's_add_u32 {s(S_TGT)}, {s(S_SEG)}, 1')
    A(f's_branch {loop}')
    A.label(last); A.flush()
    A('s_waitcnt vmcnt(0)')
    publish(A, s(S_SEG), VT, VZERO)
    A(f's_branch {done}')

NSLOT = 10
def role_atta(A, cfg, fail, done):
    set_scope(True)
    w = s(S_WAVE)
    lane_setup(A)
    if not cfg.get('NOWPT'):
        sk = A.newlabel('nowpt')
        if cfg.get('WPT', 'L0') == 'L0': A(f's_cmp_lg_u32 {s(S_L)}, 0'); A(f's_cbranch_scc1 {sk}')
        A('v_lshlrev_b32 v10, 4, v79')
        A(f's_lshl_b32 {s(S_A)}, {s(S_IDX)}, 2'); A(f's_add_u32 {s(S_A)}, {s(S_A)}, {w}'); A(f's_lshl_b32 {s(S_A)}, {s(S_A)}, 10')
        for ka, size in ((KA_WQKV, 576*3456), (KA_AWO, 576*1152)):
            load_ptr_srd(A, S_SRD, ka, size)
            for j in range(-(-size // 65536)):
                A(f's_add_u32 {s(S_B)}, {s(S_A)}, {j*65536}')
                A(f'buffer_load_dwordx4 v[112:115], v10, {s(S_SRD,4)}, {s(S_B)} offen')
        A.label(sk); A.flush()
    S_HH, S_TT, S_HD = S_A, S_B, S_C
    A(f's_lshr_b32 {s(S_HH)}, {w}, 1')
    A(f's_and_b32 {s(S_TT)}, {w}, 1')
    A(f's_lshl_b32 {s(S_HD)}, {s(S_IDX)}, 1')
    A(f's_add_u32 {s(S_HD)}, {s(S_HD)}, {s(S_HH)}')
    SMK = 46
    causal_masks(A, SMK)
    VKB, VVB, VL8, VL16, VPOLL, VFLAG, VZERO, VT, VNEG, MK2, MK3, VO1, VO2 = 150, 151, 152, 153, 154, 155, 156, 157, 158, 159, 160, 161, 162
    SCP, NMP = 164, 166
    A(f'v_lshlrev_b32 {v(VL8)}, 3, v79')
    A(f'v_lshlrev_b32 {v(VL16)}, 4, v79')
    A(f's_lshl_b32 {s(S_TMP)}, {s(S_HH)}, 12')
    A(f'v_add_u32 {v(VKB)}, {s(S_TMP)}, {v(VL8)}')
    A(f'v_add_u32 {v(VVB)}, {s(S_TMP)}, {v(VL16)}')
    A(f'v_mov_b32 {v(VZERO)}, 0')
    A(f'v_mov_b32 {v(VNEG)}, {hex(BIGNEG)}')
    SC = (18 ** -0.5) * 1.4426950408889634
    A(f'v_mov_b32 {v(SCP)}, {hex(f32(SC))}'); A(f'v_mov_b32 {v(SCP+1)}, {hex(f32(SC))}')
    for i in range(4): A(f'v_mov_b32 {v(128+i)}, 0x3f803f80')
    A(f's_and_b32 {s(S_TMP)}, {s(S_IDX)}, 3')
    A(f'v_cmp_eq_u32 vcc, {s(S_TMP)}, v77')
    A(f's_mov_b64 {s(54,2)}, vcc')
    A(f'v_cndmask_b32 {v(MK2)}, 0, -1, vcc')
    A(f'v_mov_b32 {v(MK3)}, {v(MK2)}')
    A(f's_cmp_eq_u32 {s(S_HH)}, 0')
    A(f's_cselect_b32 {s(S_TMP)}, -1, 0')
    A(f'v_and_b32 {v(MK2)}, {s(S_TMP)}, {v(MK2)}')
    A(f's_not_b32 {s(S_TMP)}, {s(S_TMP)}')
    A(f'v_and_b32 {v(MK3)}, {s(S_TMP)}, {v(MK3)}')
    A(f's_cselect_b64 {s(56,2)}, 0, -1') if False else None
    A(f's_cmp_eq_u32 {s(S_HH)}, 0')
    A(f's_cselect_b64 {s(56,2)}, 0, -1')
    A(f's_lshl_b32 {s(S_TMP)}, {s(S_HH)}, 3')
    A(f'v_add_u32 {v(VO1)}, {s(S_TMP)}, {v(VL16)}')
    A(f's_bfe_u32 {s(S_TMP)}, {s(S_HD)}, 0x10003')
    A(f's_lshl_b32 {s(S_TMP)}, {s(S_TMP)}, 3')
    A(f's_lshl_b32 {s(S_TMP+1)}, {s(S_HH)}, 2')
    A(f's_add_u32 {s(S_TMP)}, {s(S_TMP)}, {s(S_TMP+1)}')
    A(f'v_add_u32 {v(VO2)}, {s(S_TMP)}, {v(VL16)}')
    S_O1, S_O2, S_D1, S_D2, S_Q1, S_Q2, S_LD = 58, 59, 60, 61, 64, 65, 66
    sel_layer(A, S_O1, WS_OA)
    A(f's_mul_i32 {s(S_TMP)}, {s(S_TT)}, 18432')
    A(f's_add_u32 {s(S_O1)}, {s(S_O1)}, {s(S_TMP)}')
    A(f's_lshr_b32 {s(S_TMP)}, {s(S_HD)}, 4'); A(f's_add_u32 {s(S_TMP)}, {s(S_TMP)}, 16'); A(f's_lshl_b32 {s(S_TMP)}, {s(S_TMP)}, 10')
    A(f's_add_u32 {s(S_O2)}, {s(S_O1)}, {s(S_TMP)}')
    A(f's_lshr_b32 {s(S_TMP)}, {s(S_HD)}, 1'); A(f's_lshl_b32 {s(S_TMP)}, {s(S_TMP)}, 10')
    A(f's_add_u32 {s(S_O1)}, {s(S_O1)}, {s(S_TMP)}')
    sel_layer(A, S_Q1, WS_QKVA)
    A(f's_lshl_b32 {s(S_TMP)}, {s(S_HD)}, 10')
    A(f's_lshr_b32 {s(S_TMP+1)}, {s(S_HD)}, 3'); A(f's_add_u32 {s(S_TMP+1)}, {s(S_TMP+1)}, 32'); A(f's_lshl_b32 {s(S_TMP+1)}, {s(S_TMP+1)}, 10')
    A(f's_add_u32 {s(S_Q2)}, {s(S_Q1)}, {s(S_TMP+1)}')
    A(f's_add_u32 {s(S_Q1)}, {s(S_Q1)}, {s(S_TMP)}')
    A(f's_add_u32 {s(S_TMP)}, {s(S_TT)}, 1'); A(f's_mul_i32 {s(S_TMP)}, {s(S_TMP)}, 36864')
    A(f's_add_u32 {s(S_D1)}, {s(S_Q1)}, {s(S_TMP)}')
    A(f's_add_u32 {s(S_D2)}, {s(S_Q2)}, {s(S_TMP)}')
    A(f's_lshl_b32 {s(S_TMP)}, {s(S_TT)}, 9')
    A(f's_add_u32 {s(S_Q1)}, {s(S_Q1)}, {s(S_TMP)}')
    A(f's_add_u32 {s(S_Q2)}, {s(S_Q2)}, {s(S_TMP)}')
    A(f's_lshl_b32 {s(S_LD)}, {s(S_HH)}, 12')
    A(f's_lshl_b32 {s(S_TMP)}, {s(S_TT)}, 11')
    A(f's_add_u32 {s(S_LD)}, {s(S_LD)}, {s(S_TMP)}')
    sel_layer(A, S_TMP+2, R_A1)
    flagaddr(A, VPOLL, s(S_TMP+2), 36)
    VPD, VFD = 172, 173
    sel_layer(A, S_TMP+2, R_A3)
    flagaddr(A, VPD, s(S_TMP+2), 12)
    own_flag(A)
    RQ, RO = ring('QKVA'), ring('OA')
    S_OFQ, S_OFO = 77, 78
    if RQ < 64:
        sel_layer(A, 77, WS_QKVA); sel_layer(A, 78, WS_OA); sel_layer(A, 79, WS_PA)
        A(f's_lshl_b32 {s(67)}, {s(S_IDX)}, 2'); A(f's_add_u32 {s(67)}, {s(67)}, {w}')
    for i in range(4): A(f'v_mov_b32 {v(i)}, 0')
    A('v_lshlrev_b32 v4, 4, v75')
    A('v_add_u32 v5, 0x10000, v4')
    for i in range(NSLOT*8192//4096):
        A(f'ds_write_b128 {"v4" if i < 16 else "v5"}, v[0:3] offset:{(i % 16)*4096}')
    A('s_waitcnt lgkmcnt(0)')
    cfg['barrier_wait'](A)
    if RQ < 64 and not cfg.get('SLOWV'): pretouch(A, [(77, RQ*SEG_QKVA), (78, RO*SEG_XN), (79, ring('PA')*SEG_PA)], 64, 67, VL16, 112)
    A('s_barrier')
    S_SL = 68
    for m in range(9): A(f's_mov_b32 {s(S_SL+m)}, {((2+m) % NSLOT)*8192}')
    A(f's_mov_b32 {s(S_SEG)}, 0')
    l1 = A.newlabel('aatt1')
    A(f's_cmp_eq_u32 {s(S_TT)}, 1')
    A(f's_cbranch_scc1 {l1}')
    KR, VR, QF, OM, OL, OD, ONES = 72, 88, 112, 116, 120, 124, 128
    VK = lambda m: 132 + m
    VV = lambda m: 141 + m
    for tt in range(2):
        if tt: A.label(l1); A.flush()
        loop = A.newlabel('aloop')
        A(f's_add_u32 {s(S_TGT)}, {s(S_SEG)}, 1')
        poll_block(A, cfg, VPOLL, s(S_TGT), VFLAG, fail)
        A.label(loop)
        fst(A, cfg, 1, S_SEG)
        ring_off(A, S_OFQ, None, s(S_SEG), RQ, SEG_QKVA)
        ring_off(A, S_OFO, None, s(S_SEG), RO, SEG_XN)
        asc = ' sc1' if RQ < 64 else ''
        A(f's_add_u32 {s(S_TMP)}, {s(S_LD)}, {s(S_SL+8)}')
        A(f's_mov_b32 m0, {s(S_TMP)}')
        A(f's_add_u32 {s(S_TMP+1)}, {s(S_D1)}, {s(S_OFQ)}')
        A(f'buffer_load_dwordx4 {v(VL16)}, {s(S_WS,4)}, {s(S_TMP+1)} offen{asc} lds')
        A(f's_add_u32 {s(S_TMP)}, {s(S_TMP)}, 1024')
        A(f's_mov_b32 m0, {s(S_TMP)}')
        A(f's_add_u32 {s(S_TMP+1)}, {s(S_D2)}, {s(S_OFQ)}')
        A(f'buffer_load_dwordx4 {v(VL16)}, {s(S_WS,4)}, {s(S_TMP+1)} offen{asc} lds')
        A(f's_add_u32 {s(S_TMP+1)}, {s(S_Q1)}, {s(S_OFQ)}')
        A(f'buffer_load_dwordx2 {v(QF,2)}, {v(VL8)}, {s(S_WS,4)}, {s(S_TMP+1)} offen{asc}')
        A(f's_add_u32 {s(S_TMP+1)}, {s(S_Q2)}, {s(S_OFQ)}')
        A(f'buffer_load_dwordx2 {v(QF+2,2)}, {v(VL8)}, {s(S_WS,4)}, {s(S_TMP+1)} offen{asc}')
        if RO < 64: poll_issue(A, cfg, VPD, VFD)
        for m in range(9):
            A(f'v_add_u32 {v(VK(m))}, {s(S_SL+m)}, {v(VKB)}')
            A(f'v_add_u32 {v(VV(m))}, {s(S_SL+m)}, {v(VVB)}')
        A('s_waitcnt vmcnt(0)')
        fst(A, cfg, 2, S_SEG)
        A(f'v_and_b32 {v(QF+2)}, {v(MK2)}, {v(QF+2)}')
        A(f'v_and_b32 {v(QF+3)}, {v(MK3)}, {v(QF+3)}')
        A('s_barrier')
        fst(A, cfg, 3, S_SEG)
        tiles = list(range(tt, tt+17))
        def kread(i):
            j = tiles[i]
            A(f'ds_read2st64_b64 {v(KR+4*(i%4),4)}, {v(VK(j>>1))} offset0:{j&1} offset1:{2+(j&1)}')
        for i in range(4): kread(i)
        for i in range(17):
            A(f's_waitcnt lgkmcnt({min(3, 16-i)})')
            A(f'{MF} {v(4*tiles[i],4)}, {v(KR+4*(i%4),4)}, {v(QF,4)}, 0')
            if i + 4 < 17: kread(i+4)
        def vread(m):
            A(f'ds_read_b128 {v(VR+8*(m%3),4)}, {v(VV(m))} offset:2048')
            A(f'ds_read_b128 {v(VR+8*(m%3)+4,4)}, {v(VV(m))} offset:3072')
        for m in range(3): vread(m)
        jf, jl = tiles[0], tiles[-1]
        for r in range(4):
            A(f'v_cndmask_b32 {v(4*jf+r)}, {v(VNEG)}, {v(4*jf+r)}, {s(SMK+2*r,2)}')
        for r in range(4):
            A(f'v_cndmask_b32 {v(4*jl+r)}, {v(4*jl+r)}, {v(VNEG)}, {s(SMK+2*r,2)}')
        lok = A.newlabel('aval')
        A(f's_cmp_ge_u32 {s(S_SEG)}, 8')
        A(f's_cbranch_scc1 {lok}')
        for m in range(8):
            A(f's_cmp_ge_u32 {s(S_SEG)}, {8-m}')
            A(f's_cbranch_scc1 {lok}')
            for j in (2*m, 2*m+1):
                if j in tiles:
                    for r in range(4): A(f'v_mov_b32 {v(4*j+r)}, {v(VNEG)}')
        A.label(lok)
        A('s_nop 7')
        fst(A, cfg, 4, S_SEG)
        vals = [4*j+r for j in tiles for r in range(4)]
        MX, MX2, T = 168, 169, 170
        A(f'v_max3_f32 {v(MX)}, {v(vals[0])}, {v(vals[1])}, {v(vals[2])}')
        A(f'v_max3_f32 {v(MX2)}, {v(vals[3])}, {v(vals[4])}, {v(vals[5])}')
        rest = vals[6:]; k = 0
        while len(rest) >= 2:
            d = [MX, MX2][k % 2]; k += 1
            A(f'v_max3_f32 {v(d)}, {v(d)}, {v(rest[0])}, {v(rest[1])}'); rest = rest[2:]
        assert not rest
        A(f'v_max_f32 {v(MX)}, {v(MX)}, {v(MX2)}')
        xlane_sum(A, MX, T, op='v_max_f32', ror8=False)
        A(f'v_mul_f32 {v(NMP)}, {hex(f32(-SC))}, {v(MX)}')
        A(f'v_mov_b32 {v(NMP+1)}, {v(NMP)}')
        for m in range(9):
            for j in (2*m, 2*m+1):
                if j in tiles:
                    for r in (0, 2): A(f'v_pk_fma_f32 {v(4*j+r,2)}, {v(4*j+r,2)}, {v(SCP,2)}, {v(NMP,2)}')
            for j in (2*m, 2*m+1):
                if j in tiles:
                    for r in range(4): A(f'v_exp_f32 {v(4*j+r)}, {v(4*j+r)}')
            b = 8*m
            if 2*m in tiles: cvt(A, b, b, b+1); cvt(A, b+1, b+2, b+3)
            else: A(f'v_mov_b32 {v(b)}, 0'); A(f'v_mov_b32 {v(b+1)}, 0')
            if 2*m+1 in tiles: cvt(A, b+2, b+4, b+5); cvt(A, b+3, b+6, b+7)
            else: A(f'v_mov_b32 {v(b+2)}, 0'); A(f'v_mov_b32 {v(b+3)}, 0')
            A(f's_waitcnt lgkmcnt({2*min(2, 8-m)})')
            c = lambda r: '0' if m == 0 else v(r, 4)
            A(f'{MF} {v(OM,4)}, {v(VR+8*(m%3),4)}, {v(b,4)}, {c(OM)}')
            A(f'{MF} {v(OL,4)}, {v(VR+8*(m%3)+4,4)}, {v(b,4)}, {c(OL)}')
            A(f'{MF} {v(OD,4)}, {v(ONES,4)}, {v(b,4)}, {c(OD)}')
            if m + 3 < 9: vread(m+3)
        A(f'v_rcp_f32 {v(T)}, {v(OD)}')
        for r in range(4):
            A(f'v_mul_f32 {v(OM+r)}, {v(OM+r)}, {v(T)}')
            A(f'v_mul_f32 {v(OL+r)}, {v(OL+r)}, {v(T)}')
        cvt(A, OM, OM, OM+1); cvt(A, OM+1, OM+2, OM+3)
        cvt(A, OL, OL, OL+1); cvt(A, OL+1, OL+2, OL+3)
        A(f'v_cndmask_b32 {v(OL)}, {v(OL)}, {v(OL+1)}, {s(56,2)}')
        if RO < 64: down_check(A, cfg, VPD, VFD, s(S_SEG), RO-1, S_OFQ, fail)
        jitter(A)
        A(f's_add_u32 {s(S_TMP)}, {s(S_O1)}, {s(S_OFO)}')
        A(f's_add_u32 {s(S_TMP+1)}, {s(S_O2)}, {s(S_OFO)}')
        A(f'buffer_store_dwordx2 {v(OM,2)}, {v(VO1)}, {s(S_WS,4)}, {s(S_TMP)} offen' + SCOPE[0])
        A(f's_mov_b64 exec, {s(54,2)}')
        A(f'buffer_store_dword {v(OL)}, {v(VO2)}, {s(S_WS,4)}, {s(S_TMP+1)} offen' + SCOPE[0])
        A('s_mov_b64 exec, -1')
        fst(A, cfg, 5, S_SEG)
        poll_issue(A, cfg, VPOLL, VFLAG)
        for m in range(9):
            A(f's_add_u32 {s(S_SL+m)}, {s(S_SL+m)}, 8192')
            A(f's_cmp_eq_u32 {s(S_SL+m)}, {NSLOT*8192}')
            A(f's_cselect_b32 {s(S_SL+m)}, 0, {s(S_SL+m)}')
        A(f's_add_u32 {s(S_SEG)}, {s(S_SEG)}, 1')
        A('s_waitcnt vmcnt(0)')
        fst(A, cfg, 6, S_SEG, 33)
        publish(A, s(S_SEG), VT, VZERO)
        A(f's_cmp_ge_u32 {s(S_SEG)}, 64')
        A(f's_cbranch_scc1 {done}')
        A(f's_add_u32 {s(S_TGT)}, {s(S_SEG)}, 1')
        poll_check(A, cfg, VPOLL, s(S_TGT), VFLAG, fail)
        A(f's_branch {loop}')
```

```python
import sys
from asm import *
from common import *
from chain import *
from roles import *
from roles2 import *
import chain2, chain3

def barrier_arrive(A):
    A('s_waitcnt vmcnt(0)')
    A('s_barrier')
    skip = A.newlabel('gbskip')
    A(f's_cmp_lg_u32 {s(S_WAVE)}, 0')
    A(f's_cbranch_scc1 {skip}')
    A(f's_lshl_b32 {s(S_TMP)}, {s(S_XCC)}, 2')
    A(f'v_mov_b32 v2, {s(S_TMP)}')
    A(f'v_mov_b32 v3, 1')
    A(f's_mov_b64 exec, 1')
    A(f'global_atomic_add v2, v3, {s(S_DBG,2)} offset:{DBG_ARRIVE*4}')
    A(f's_mov_b64 exec, -1')
    A.label(skip)

def ctr_addr(A, va, vt):
    A(f'v_lshrrev_b32 {v(vt)}, 2, {v(va)}')
    A(f'v_mul_u32_u24 {v(vt)}, {128 - 16}, {v(vt)}')
    A(f'v_lshlrev_b32 {v(va)}, 2, {v(va)}')
    A(f'v_add_u32 {v(va)}, {v(va)}, {v(vt)}')

TWIN = {}
def norm(lines):
    import re
    return [re.sub(r'\.[A-Za-z0-9]+_\d+', '.L', x) for x in lines]

def barrier_wait(A, vl='v79', sh=0, va=72, vb=73, vz=74):
    re_ = A.newlabel('gbre'); ok = A.newlabel('gbok')
    A(f'v_mov_b32 {v(vz)}, 0')
    tstamp(A, CFG, 100, va, vz)
    A(f's_mov_b32 {s(S_SPIN)}, {SPIN_LIMIT}')
    if sh: A(f'v_lshrrev_b32 {v(va)}, {sh}, {vl}'); A(f'v_and_b32 {v(va)}, 7, {v(va)}')
    else: A(f'v_and_b32 {v(va)}, 7, {vl}')
    ctr_addr(A, va, vb)
    A.label(re_)
    A(f'global_load_dword {v(vb)}, {v(va)}, {s(S_DBG,2)} offset:{DBG_ARRIVE*4} sc1')
    A('s_waitcnt vmcnt(0)')
    A(f'v_readlane_b32 {s(S_TMP)}, {v(vb)}, 0')
    for i in range(1, 8):
        A(f'v_readlane_b32 {s(S_TMP+1)}, {v(vb)}, {i}')
        A(f's_add_u32 {s(S_TMP)}, {s(S_TMP)}, {s(S_TMP+1)}')
    A(f's_cmp_ge_u32 {s(S_TMP)}, 256')
    A(f's_cbranch_scc1 {ok}')
    spin_check(A, re_, 'L_FAIL')
    A.label(ok)
    tstamp(A, CFG, 101, va, vz)
    tw = TWIN.get('cur')
    if tw:
        name, slow = tw
        if not slow:
            A(f'v_cmp_ne_u32 vcc, 32, {v(vb)}')
            TWIN['pre'] = norm(A.lines[TWIN['start']:])
            A(f's_cbranch_vccnz {name}')
        else:
            A(f'v_cmp_ne_u32 vcc, 32, {v(vb)}')
            m = norm(A.unmute())
            assert m == TWIN['pre'], 'twin prefix differs'
            A.label(name); A.flush()

def build(cfg):
    A = Asm()
    CFG.clear(); CFG.update(cfg)
    JIT[0] = int(cfg.get('JITTER', 0))
    PSLEEP[0] = int(cfg.get('PSLEEP', 0))
    A.raw(open('cdna_kernels/' + KNAME + '.s.ref').read().split('; Override launch')[0].rstrip('\n'))
    A.raw('; Override launch geometry by editing the next line (default: block=256,')
    A.raw('; @launch grid=(256,1,1) block=(256,1,1) lds=163840')
    A.raw('.amdgcn_target "amdgcn-amd-amdhsa--gfx950"')
    A.raw('.text')
    A.raw(f'.globl {KNAME}_kernel')
    A.raw('.p2align 8')
    A.raw(f'.type {KNAME}_kernel,@function')
    A.raw(f'{KNAME}_kernel:')
    A(f's_cmp_ge_u32 {s(S_WG)}, 256')
    A('s_cbranch_scc1 L_END')
    A(f's_load_dwordx2 {s(S_PTR,2)}, {s(S_KA,2)}, {KA_WS}')
    A(f's_load_dwordx2 {s(S_DBG,2)}, {s(S_KA,2)}, {KA_DBG}')
    if cfg.get('DBGT'): A('s_memrealtime s[94:95]')
    A(f's_getreg_b32 {s(S_XCC)}, hwreg(HW_REG_XCC_ID, 0, 4)')
    A(f'v_lshrrev_b32 v1, 6, v0')
    A(f'v_readfirstlane_b32 {s(S_WAVE)}, v1')
    A('s_waitcnt lgkmcnt(0)')
    srd_from_ptr(A, S_WS, S_PTR, WS_SIZE)
    A(f's_and_b32 {s(S_XCC)}, {s(S_XCC)}, 7')
    if cfg.get('FAKEXCC') == 1: A(f's_lshr_b32 {s(S_XCC)}, {s(S_WG)}, 4'); A(f's_min_u32 {s(S_XCC)}, {s(S_XCC)}, 7')
    if cfg.get('FAKEXCC') == 2: A(f's_cmp_eq_u32 {s(S_WG)}, 0'); A(f's_cselect_b32 {s(S_TMP)}, 1, 0'); A(f's_xor_b32 {s(S_XCC)}, {s(S_XCC)}, {s(S_TMP)}')
    sk = A.newlabel('tk')
    A(f's_lshr_b32 {s(S_TMP)}, {s(S_XCC)}, 2'); A(f's_mul_i32 {s(S_TMP)}, {s(S_TMP)}, {128 - 16}')
    A(f's_lshl_b32 {s(S_TMP+1)}, {s(S_XCC)}, 2'); A(f's_add_u32 {s(S_TMP)}, {s(S_TMP)}, {s(S_TMP+1)}')
    A(f'v_mov_b32 v8, {s(S_TMP)}')
    A(f'v_mov_b32 v9, 1')
    A(f's_cmp_lg_u32 {s(S_WAVE)}, 0')
    A(f's_cbranch_scc1 {sk}')
    A(f's_mov_b64 exec, 1')
    A(f'global_atomic_add v10, v8, v9, {s(S_DBG,2)} offset:{DBG_TICKET*4} sc0')
    A(f's_mov_b64 exec, -1')
    A.label(sk); A.flush()
    A(f's_cmp_ge_u32 {s(S_WG)}, {CLEAR_ONES_WG}')
    A(f's_cselect_b32 {s(S_TMP)}, -1, 0')
    for i in range(4): A(f'v_mov_b32 {v(4+i)}, {s(S_TMP)}')
    A(f's_lshl_b32 {s(S_TMP+1)}, {s(S_WG)}, 13')
    A(f'v_lshlrev_b32 v2, 4, v0')
    A(f'buffer_store_dwordx4 v[4:7], v2, {s(S_WS,4)}, {s(S_TMP+1)} offen sc1')
    A(f's_add_u32 {s(S_TMP+1)}, {s(S_TMP+1)}, 4096')
    A(f'buffer_store_dwordx4 v[4:7], v2, {s(S_WS,4)}, {s(S_TMP+1)} offen sc1')
    sk = A.newlabel('tk2')
    A(f's_cmp_lg_u32 {s(S_WAVE)}, 0')
    A(f's_cbranch_scc1 {sk}')
    A('s_waitcnt vmcnt(2)')
    A(f'v_mov_b32 v5, 0')
    A(f's_mov_b64 exec, 1')
    A(f'ds_write_b32 v5, v10')
    A(f's_mov_b64 exec, -1')
    A.label(sk); A.flush()
    A('s_waitcnt vmcnt(0) lgkmcnt(0)')
    A('s_barrier')
    sk = A.newlabel('tk3')
    A(f's_cmp_lg_u32 {s(S_WAVE)}, 0')
    A(f's_cbranch_scc1 {sk}')
    A(f's_mov_b64 exec, 1')
    A(f'global_atomic_add v8, v9, {s(S_DBG,2)} offset:{DBG_ARRIVE*4}')
    A(f's_mov_b64 exec, -1')
    A.label(sk); A.flush()
    A(f'v_mov_b32 v5, 0')
    A(f'ds_read_b32 v4, v5')
    A('s_waitcnt lgkmcnt(0)')
    A(f'v_readfirstlane_b32 {s(S_ROLE)}, v4')
    A('s_barrier')
    A(f's_cmp_ge_u32 {s(S_ROLE)}, 32')
    A('s_cbranch_scc1 L_OVER')
    A(f's_lshl_b32 {s(S_TMP)}, {s(S_XCC)}, 5')
    A(f's_add_u32 {s(S_ROLE)}, {s(S_ROLE)}, {s(S_TMP)}')
    A.label('L_HAVEROLE'); A.flush()
    cfg['barrier_wait'] = barrier_wait
    cfg['barrier_wait_chain'] = lambda A: barrier_wait(A, 'v0', 4, 8, 9, 10)
    A('v_mov_b32 v74, 0')
    tstamp(A, CFG, 102, 72, 74)
    DONE = 'L_DUMP' if cfg.get('FINE') else 'L_ENDT' if cfg.get('DBGT') else 'L_END'
    only = cfg.get('ONLY')
    T = []
    def add(name, r0, n, l, fn):
        if only is not None and name not in only.split(','): return
        T.append((name, r0, n, l, fn))
    for l in range(2):
        add('chain', R_CHAIN[l], 32, l, 'chain'); add('b1', R_B1[l], 32, l, 'b1')
        add('a1', R_A1[l], N_A1, l, 'a1'); add('atta', R_ATTA[l], N_ATTA, l, 'atta'); add('a3', R_A3[l], N_A3, l, 'a3')
        add('attb', R_ATTB[l], N_ATTB, l, 'attb'); add('b3', R_B3[l], N_B3, l, 'b3')
        add('ra', R_RA[l], 4, l, f'ra{l}'); add('rb', R_RB[l], N_RB, l, f'rb{l}')
    add('r0', R_R0, 4, 0, 'r0')
    for (name, r0, n, l, fn) in T:
        nx = A.newlabel('disp')
        A(f's_sub_u32 {s(S_IDX)}, {s(S_ROLE)}, {r0}')
        A(f's_cmp_ge_u32 {s(S_IDX)}, {n}')
        A(f's_cbranch_scc1 {nx}')
        A(f's_mov_b32 {s(S_L)}, {l}')
        if cfg.get('L1DELAY') and l == 1 and name in ('chain', 'b1', 'a1', 'a3', 'b3'):
            for _ in range(cfg['L1DELAY']): A('s_sleep 127')
        if cfg.get('L0DELAY') and l == 0 and name in ('b3',):
            for _ in range(cfg['L0DELAY']): A('s_sleep 127')
        A(f's_branch L_{fn.upper()}')
        A.label(nx)
    A('s_branch L_END')
    role_red = role_red2 if not cfg.get('OLDRED') else globals()['role_red']
    fns = {'chain': lambda: (chain_role if cfg.get('OLDCHAIN') else chain2.chain_role if cfg.get('CHAIN2') else chain3.chain_role)(A, cfg, 'L_FAIL', DONE), 'b1': lambda: role_b1(A, cfg, 'L_FAIL', DONE),
           'a1': lambda: role_a1(A, cfg, 'L_FAIL', DONE), 'atta': lambda: role_atta(A, cfg, 'L_FAIL', DONE),
           'a3': lambda: role_a3(A, cfg, 'L_FAIL', DONE), 'attb': lambda: role_attb(A, cfg, 'L_FAIL', DONE),
           'b3': lambda: role_b3(A, cfg, 'L_FAIL', DONE),
           'ra0': lambda: role_red(A, cfg, 'RA', 0, 'L_FAIL', DONE), 'ra1': lambda: role_red(A, cfg, 'RA', 1, 'L_FAIL', DONE),
           'rb0': lambda: role_red(A, cfg, 'RB', 0, 'L_FAIL', DONE), 'rb1': lambda: role_red(A, cfg, 'RB', 1, 'L_FAIL', DONE),
           'r0': lambda: role_red(A, cfg, 'R0', 0, 'L_FAIL', DONE)}
    seen = []
    for (name, r0, n, l, fn) in T:
        if fn in seen: continue
        seen.append(fn)
        A.raw('.p2align 6')
        A.label(f'L_{fn.upper()}')
        A.flush()
        twin = fn in ('chain', 'a1', 'atta', 'a3', 'attb', 'b3') and not cfg.get('NOTWIN')
        TWIN.clear()
        if twin: TWIN.update(cur=(f'L_{fn.upper()}_DEV', False), start=len(A.lines))
        fns[fn]()
        if twin:
            keys = ('ALLSC1', 'SLOW', 'SLOWV')
            old_ = {k: cfg.get(k) for k in keys}
            for k in keys: cfg[k] = 1; CFG[k] = 1
            TWIN['cur'] = (f'L_{fn.upper()}_DEV', True)
            A.mute(); A.flush()
            fns[fn]()
            assert A.saved is None
            for k in keys:
                for d in (cfg, CFG):
                    if old_[k] is None: d.pop(k, None)
                    else: d[k] = old_[k]
        TWIN.clear()
    if cfg.get('FINE'):
        A.label('L_DUMP'); A.flush()
        A('v_mov_b32 v1, 0')
        for i in range(12):
            A(f's_mov_b32 {s(S_TS)}, {s(80+i)}')
            sk = A.newlabel('dmp')
            A(f's_cmp_lg_u32 {s(S_WAVE)}, 0'); A(f's_cbranch_scc1 {sk}')
            A(f's_lshl_b32 {s(S_TS+2)}, {s(S_ROLE)}, 9')
            A(f's_add_u32 {s(S_TS+2)}, {s(S_TS+2)}, {hex(WS_TIME + (110+i)*4)}')
            A(f'v_mov_b32 v2, {s(S_TS)}')
            A('s_mov_b64 exec, 1')
            A(f'buffer_store_dword v2, v1, {s(S_WS,4)}, {s(S_TS+2)} offen')
            A.label(sk)
        A('s_branch L_END')
    A.label('L_OVER'); A.flush()
    A(f's_mov_b32 {s(S_SPIN)}, {SPIN_LIMIT}')
    A('v_and_b32 v2, 7, v0')
    ctr_addr(A, 2, 3)
    ore = A.newlabel('ovre'); ook = A.newlabel('ovok')
    A.label(ore)
    A(f'global_load_dword v3, v2, {s(S_DBG,2)} offset:{DBG_ARRIVE*4} sc1')
    A('s_waitcnt vmcnt(0)')
    A(f'v_readlane_b32 {s(S_TMP)}, v3, 0')
    for i in range(1, 8):
        A(f'v_readlane_b32 {s(S_TMP+1)}, v3, {i}')
        A(f's_add_u32 {s(S_TMP)}, {s(S_TMP)}, {s(S_TMP+1)}')
    A(f's_cmp_ge_u32 {s(S_TMP)}, 256')
    A(f's_cbranch_scc1 {ook}')
    spin_check(A, ore, 'L_FAIL')
    A.label(ook); A.flush()
    A(f's_sub_u32 {s(S_ROLE)}, {s(S_ROLE)}, 32')
    for j in range(7):
        A(f'v_readlane_b32 {s(S_TMP)}, v3, {j}')
        A(f's_max_u32 {s(S_TMP)}, {s(S_TMP)}, 32')
        A(f's_sub_u32 {s(S_TMP)}, {s(S_TMP)}, 32')
        A(f's_cmp_gt_u32 {s(S_XCC)}, {j}')
        A(f's_cselect_b32 {s(S_TMP)}, {s(S_TMP)}, 0')
        A(f's_add_u32 {s(S_ROLE)}, {s(S_ROLE)}, {s(S_TMP)}')
    for j in range(8):
        nx = A.newlabel('ovn')
        A(f'v_readlane_b32 {s(S_TMP)}, v3, {j}')
        A(f's_min_u32 {s(S_TMP)}, {s(S_TMP)}, 32')
        A(f's_sub_u32 {s(S_TMP+1)}, 32, {s(S_TMP)}')
        A(f's_cmp_ge_u32 {s(S_ROLE)}, {s(S_TMP+1)}')
        A(f's_cbranch_scc1 {nx}')
        A(f's_add_u32 {s(S_ROLE)}, {s(S_ROLE)}, {s(S_TMP)}')
        A(f's_add_u32 {s(S_ROLE)}, {s(S_ROLE)}, {32*j}')
        A('s_branch L_HAVEROLE')
        A.label(nx)
        A(f's_sub_u32 {s(S_ROLE)}, {s(S_ROLE)}, {s(S_TMP+1)}')
    A.label('L_FAIL')
    A.flush()
    A(f's_mov_b64 exec, 1')
    A(f'v_mov_b32 v1, 0')
    A(f'v_mov_b32 v2, 0xdead0000')
    A(f'v_or_b32 v2, {s(S_ROLE)}, v2')
    A(f'global_store_dword v1, v2, {s(S_DBG,2)} offset:160')
    A.label('L_END')
    A('s_endpgm')
    A.label('L_ENDT'); A.flush()
    dstamp(A, cfg, 5, 248, None, 10, 11)
    dstamp(A, cfg, 2, 0, None, 10, 11)
    dstamp(A, cfg, 4, 32, None, 10, 11)
    dstamp(A, cfg, 6, 244, None, 10, 11)
    A('s_endpgm')
    A.raw('.section .rodata,"a"')
    A.raw('.p2align 6')
    A.raw(f'.amdhsa_kernel {KNAME}_kernel')
    A.raw('  .amdhsa_next_free_vgpr 512')
    A.raw('  .amdhsa_next_free_sgpr 102')
    A.raw('  .amdhsa_accum_offset 256')
    A.raw('  .amdhsa_group_segment_fixed_size 0')
    A.raw('  .amdhsa_kernarg_size 104')
    A.raw('  .amdhsa_user_sgpr_count 2')
    A.raw('  .amdhsa_user_sgpr_kernarg_segment_ptr 1')
    A.raw('  .amdhsa_system_sgpr_workgroup_id_x 1')
    A.raw('.end_amdhsa_kernel')
    return A

if __name__ == '__main__':
    out = sys.argv[1]
    cfg = {}
    for kv in sys.argv[2:]:
        k, _, val = kv.partition('=')
        cfg[k] = (int(val) if val.lstrip('-').isdigit() else val) if val else 1
    if not cfg.get('RAW'):
        for k in ('PREWAIT1', 'PREWAIT2', 'BAR2', 'NTQ'): cfg.setdefault(k, 1)
    A = build(cfg)
    open(out, 'w').write(A.text())
    print('instrs', A.nins)
```

```python
from asm import *
from common import *
from chain import (init_signal, init_defer, jitter, dstamp, S_KA, S_WG, S_WS, S_SRD, S_DBG, S_ROLE, S_WAVE, S_XCC, S_TMP, S_SPIN, S_PTR, S_MODE, MF, MF16,
                   srd_from_ptr, load_ptr_srd, spin_check, tstamp, fst, f32, S_SOFF, S_M0, S_TS)

SM = 'v_smfmac_f32_16x16x64_bf16'
L_MEM = 0
L_QK = 9216
L_O = 13312
L_KX = 15360
L_VX = L_KX + 8192
L_WO = 31744
L_DUMMY = L_WO + 131072
L_STG = 16384

V_L16, V_L8, V_IDX, V_PLD, V_MST, V_QKW, V_OW, V_FLAG = range(8)
M = lambda k: 8 + 4*k
AQ0, AQ1, AK0, AK1, AV0 = 44, 48, 52, 56, 60
AV1 = AQ0
def WQ(t, ks): f = t*9 + ks; return a(8*f, 8)
def WK(t, ks):
    f = 18 + t*9 + ks
    return a(8*f, 8) if f < 32 else v(64 + 8*(f-32), 8)
def WV(t, ks): return v(96 + 72*t + 8*ks, 8)
def WOR(ks): return v(240 + 8*ks, 8)
def wsub(m, t, ks, i4):
    if m == 0: return a(8*(t*9+ks) + 2*i4, 2)
    if m == 1:
        f = 18 + t*9 + ks
        return a(8*f + 2*i4, 2) if f < 32 else v(64 + 8*(f-32) + 2*i4, 2)
    return v(96 + 72*t + 8*ks + 2*i4, 2)

S_H = 26; S_L = 27; S_STEP = 28
S_PL = 30
S_PST = 38; S_PST2 = 39
S_MSA = 40
S_MSB = 42
S_ML = 44
S_FLAGIN = 50; S_FLAGOUT = 51
S_KX = 52; S_KVM = 53
S_EXO = 54
S_EXS = 56
S_SC = 58
S_NSC = 60
S_HAS2 = 61
S_W1024 = 64; S_W256 = 65; S_VXO = 66; S_WBO = 67; S_KXM0 = 68; S_KVM2 = 69
S_T0 = 70
S_T1 = 72
S_MSK = 74
S_M1 = 76
S_ONE = 78
S_ST = 80

class LQ:
    def __init__(self, A): self.A = A; self.q = []
    def op(self, text, tag=None):
        self.A(text); self.q.append(tag if tag is not None else object())
    def wait(self, *tags):
        idx = [i for i, t in enumerate(self.q) if t in tags]
        if not idx: return
        i = max(idx)
        n = len(self.q) - 1 - i
        self.A(f's_waitcnt lgkmcnt({min(n, 15)})')
        keep = min(n, 15)
        self.q = self.q[len(self.q)-keep:] if keep else []
    def waitall(self):
        self.A('s_waitcnt lgkmcnt(0)'); self.q = []

def stamp(A, cfg, idx):
    if not cfg.get('STAMPS'): return
    A(f's_memtime {s(S_T1,2)}')
    A('s_waitcnt lgkmcnt(0)')
    A(f's_mov_b32 {s(S_ST+idx)}, {s(S_T1)}')

def chain_init(A, cfg):
    w = s(S_WAVE)
    init_defer(A, cfg, 'L_FAIL')
    TID, LN, COL, G = 63, 62, 61, 60
    A(f'v_mov_b32 {v(TID)}, v0')
    A(f'v_and_b32 {v(LN)}, 63, v0')
    A(f'v_and_b32 {v(COL)}, 15, {v(LN)}')
    A(f'v_lshrrev_b32 {v(G)}, 4, {v(LN)}')
    A(f'v_lshlrev_b32 v10, 1, {v(G)}')
    A(f'v_xor_b32 v10, v10, {v(COL)}')
    A(f'v_xor_b32 v11, 8, v10')
    A(f'v_lshlrev_b32 v10, 4, v10')
    A(f'v_lshlrev_b32 v11, 4, v11')
    A(f'v_lshlrev_b32 v12, 13, {v(G)}')
    A(f'v_add_u32 v8, v10, v12')
    A(f'v_add_u32 v9, v11, v12')
    A(f'v_lshlrev_b32 v12, 17, {v(G)}')
    A(f'v_add_u32 v26, v10, v12')
    A(f'v_add_u32 v27, v11, v12')
    A(f'v_lshrrev_b32 v10, 2, {v(COL)}')
    A(f'v_and_b32 v11, 3, {v(COL)}')
    A(f'v_and_b32 v12, 1, {v(G)}')
    A(f'v_lshlrev_b32 v12, 2, v12')
    A(f'v_or_b32 v12, v12, v10')
    A(f'v_lshlrev_b32 v12, 1, v12')
    A(f'v_lshrrev_b32 v13, 1, v11')
    A(f's_lshl_b32 {s(S_TMP)}, {w}, 2')
    A(f'v_add_u32 v13, {s(S_TMP)}, v13')
    A(f'v_and_b32 v11, 1, v11')
    A(f'v_lshlrev_b32 v11, 3, v11')
    A(f'v_lshlrev_b32 v14, 4, {v(G)}')
    A(f'v_add_u32 v14, v14, v10')
    A(f'v_lshlrev_b32 v14, 8, v14')
    A(f'v_add_u32 v14, v14, v11')
    A(f'v_xor_b32 v15, v13, v12')
    A(f'v_add_u32 v13, 2, v13')
    A(f'v_xor_b32 v16, v13, v12')
    A(f'v_lshlrev_b32 v15, 4, v15')
    A(f'v_lshlrev_b32 v16, 4, v16')
    A(f'v_add_u32 v15, v15, v14')
    A(f'v_add_u32 v16, v16, v14')
    BUF = [L_STG + 49152*b for b in range(3)]
    TR = lambda b, t: 20 + 2*b + t
    for b in range(3):
        A(f'v_add_u32 {v(TR(b,0))}, {BUF[b]}, v15')
        A(f'v_add_u32 {v(TR(b,1))}, {BUF[b]}, v16')
    KA = [KA_WQ, KA_WK, KA_WV]
    WSZ = 576*4096*2
    def issue_part(p):
        m, part = p // 3, p % 3
        load_ptr_srd(A, S_SRD, KA[m], WSZ)
        A(f's_lshl_b32 {s(S_T0)}, {s(S_H)}, 8')
        A(f's_lshl_b32 {s(S_M0)}, {w}, 10')
        A(f's_add_u32 {s(S_M0)}, {s(S_M0)}, {BUF[p % 3]}')
        for j in range(12):
            b = part*3 + (j >> 2)
            if b < 8:
                row = 144*(b >> 1) + 16 + 64*(b & 1) + 4*(j & 3)
                A(f's_lshl_b32 {s(S_SOFF)}, {w}, 13')
                vreg = 26 + (j & 1)
            else:
                row = 144*(j & 3)
                A(f's_lshl_b32 {s(S_SOFF)}, {w}, 15')
                vreg = 8 + (j & 1)
            A(f's_add_u32 {s(S_SOFF)}, {s(S_SOFF)}, {s(S_T0)}')
            if row: A(f's_add_u32 {s(S_SOFF)}, {s(S_SOFF)}, {row*8192}')
            A(f's_mov_b32 m0, {s(S_M0)}')
            A(f'buffer_load_dwordx4 {v(vreg)}, {s(S_SRD,4)}, {s(S_SOFF)} offen lds')
            if j < 11: A(f's_add_u32 {s(S_M0)}, {s(S_M0)}, 4096')
    def consume_part(p):
        m, part = p // 3, p % 3
        n = 0
        for t in range(2):
            for k in range(3):
                for i4 in range(4):
                    A(f'ds_read_b64_tr_b16 {wsub(m, t, part*3+k, i4)}, {v(TR(p % 3, t))} offset:{k*16384 + i4*1024}')
                    n += 1
                    if n % 8 == 0 and n < 24: A('s_waitcnt lgkmcnt(8)')
        A('s_waitcnt lgkmcnt(0)')
    def issue_wo(k):
        load_ptr_srd(A, S_SRD, KA_WO, 32*128*576*2)
        A(f's_mul_i32 {s(S_SOFF)}, {s(S_H)}, 147456')
        A(f's_lshl_b32 {s(S_M0)}, {w}, 10')
        A(f's_add_u32 {s(S_SOFF)}, {s(S_SOFF)}, {s(S_M0)}')
        if k: A(f's_add_u32 {s(S_SOFF)}, {s(S_SOFF)}, {k*36864}')
        A(f's_add_u32 {s(S_M0)}, {s(S_M0)}, {L_STG + k*36864}')
        for j in range(9):
            A(f's_mov_b32 m0, {s(S_M0)}')
            A(f'buffer_load_dwordx4 {v(V_L16)}, {s(S_SRD,4)}, {s(S_SOFF)} offen lds')
            if j < 8:
                A(f's_add_u32 {s(S_SOFF)}, {s(S_SOFF)}, 4096')
                A(f's_add_u32 {s(S_M0)}, {s(S_M0)}, 4096')
    A(f'v_lshlrev_b32 {v(V_L16)}, 4, {v(LN)}')
    A(f'v_lshlrev_b32 {v(V_L8)}, 3, {v(LN)}')
    for p in range(3): issue_part(p)
    pend = [12, 12, 12]
    for p in range(9):
        A(f's_waitcnt vmcnt({sum(pend[1:])})')
        pend = pend[1:]
        A('s_barrier')
        consume_part(p)
        A('s_barrier')
        if p + 3 < 9: issue_part(p + 3); pend.append(12)
        elif p == 6: issue_wo(0); pend.append(9)
        elif p == 7: issue_wo(1); pend.append(9)
        elif p == 8: issue_wo(2); issue_wo(3)
    A(f'v_lshrrev_b32 v10, 2, {v(COL)}')
    A(f'v_and_b32 v11, 3, {v(COL)}')
    A(f'v_lshlrev_b32 v12, 2, {v(G)}')
    A(f'v_add_u32 v12, v12, v10')
    A(f'v_mul_u32_u24 v12, 1152, v12')
    A(f'v_lshlrev_b32 v11, 3, v11')
    A(f'v_add_u32 v12, v12, v11')
    A(f's_mul_i32 {s(S_TMP)}, {w}, 288')
    A(f's_add_u32 {s(S_TMP)}, {s(S_TMP)}, {L_STG + 3*36864}')
    A(f'v_add_u32 v12, {s(S_TMP)}, v12')
    A(f's_lshl_b32 {s(S_WBO)}, {w}, 13')
    A(f's_add_u32 {s(S_WBO)}, {s(S_WBO)}, {L_WO}')
    A(f's_add_u32 {s(S_TMP)}, {s(S_WBO)}, {3*32768}')
    A(f'v_add_u32 v13, {s(S_TMP)}, {v(V_L16)}')
    A('s_waitcnt vmcnt(0)')
    A('s_barrier')
    init_signal(A, cfg, 20, 21)
    for k in (3, 2, 1, 0):
        for t in range(9):
            d = 240 + 4*k if t == 0 else 20 + 4*t
            A(f'ds_read_b64_tr_b16 {v(d,2)}, v12 offset:{t*32}')
            A(f'ds_read_b64_tr_b16 {v(d+2,2)}, v12 offset:{t*32 + 16*1152}')
        A('s_waitcnt lgkmcnt(0)')
        A('s_barrier')
        for t in range(1, 9):
            A(f'ds_write_b128 v13, {v(20+4*t,4)} offset:{(t-1)*1024}')
        if k:
            A(f'v_subrev_u32 v12, 36864, v12')
            A(f'v_subrev_u32 v13, 32768, v13')
        A('s_waitcnt lgkmcnt(0)')
    A(f'v_and_b32 v10, 2, {v(LN)}')
    A(f'v_cmp_eq_u32 vcc, 0, v10')
    A(f'v_mov_b32 v11, 0xeeeeeeee')
    A(f'v_mov_b32 v12, 0x44444444')
    A(f'v_cndmask_b32 {v(V_IDX)}, v11, v12, vcc')
    A(f's_lshl_b32 {s(S_W1024)}, {w}, 10')
    A(f's_lshl_b32 {s(S_W256)}, {w}, 8')
    A(f'v_lshlrev_b32 v10, 5, {v(COL)}')
    A(f'v_lshlrev_b32 v11, 3, {v(G)}')
    A(f'v_add_u32 v10, v10, v11')
    A(f's_add_u32 {s(S_TMP)}, {s(S_W1024)}, {L_QK}')
    A(f'v_add_u32 {v(V_QKW)}, {s(S_TMP)}, v10')
    A(f'v_lshrrev_b32 v10, 1, {v(G)}'); A(f'v_lshlrev_b32 v10, 8, v10')
    A(f'v_and_b32 v11, 1, {v(G)}'); A(f'v_lshlrev_b32 v11, 3, v11')
    A(f'v_add_u32 v10, v10, v11')
    A(f'v_lshlrev_b32 v11, 4, {v(COL)}')
    A(f'v_add_u32 v10, v10, v11')
    A(f's_lshl_b32 {s(S_TMP)}, {w}, 9')
    A(f's_add_u32 {s(S_TMP)}, {s(S_TMP)}, {L_O - 32}')
    A(f'v_add_u32 {v(V_OW)}, {s(S_TMP)}, v10')
    A(f'v_lshrrev_b32 v10, 3, {v(LN)}'); A(f'v_mul_u32_u24 v10, 9216, v10')
    A(f'v_and_b32 v11, 7, {v(LN)}'); A(f'v_lshlrev_b32 v12, 4, v11')
    A(f'v_add_u32 {v(V_PLD)}, v10, v12')
    A(f'v_bfe_u32 v12, v11, 1, 1'); A(f'v_lshlrev_b32 v10, 9, v12')
    A(f'v_bfe_u32 v12, {v(LN)}, 3, 1'); A(f'v_lshlrev_b32 v12, 5, v12'); A(f'v_add_u32 v10, v10, v12')
    A(f'v_bfe_u32 v12, {v(LN)}, 4, 1'); A(f'v_lshlrev_b32 v12, 4, v12'); A(f'v_add_u32 v10, v10, v12')
    A(f'v_and_b32 v12, 1, v11'); A(f'v_lshlrev_b32 v12, 2, v12'); A(f'v_add_u32 v10, v10, v12')
    A(f'v_lshrrev_b32 v12, 5, {v(LN)}'); A(f'v_lshlrev_b32 v12, 14, v12'); A(f'v_add_u32 v10, v10, v12')
    A(f'v_lshrrev_b32 v12, 2, v11')
    A(f's_cmp_eq_u32 {w}, 1')
    A(f's_cselect_b32 {s(S_TMP)}, 6, 3')
    A(f'v_lshlrev_b32 v12, {s(S_TMP)}, v12')
    A(f'v_add_u32 v10, v10, v12')
    A(f's_lshr_b32 {s(S_TMP)}, {s(S_H)}, 3'); A(f's_lshl_b32 {s(S_TMP)}, {s(S_TMP)}, 1')
    A(f's_and_b32 {s(S_TMP+1)}, {w}, 1'); A(f's_add_u32 {s(S_TMP)}, {s(S_TMP)}, {s(S_TMP+1)}')
    A(f's_lshl_b32 {s(S_TMP)}, {s(S_TMP)}, 10')
    A(f's_and_b32 {s(S_TMP+1)}, {s(S_H)}, 1'); A(f's_lshl_b32 {s(S_TMP+1)}, {s(S_TMP+1)}, 8'); A(f's_add_u32 {s(S_TMP)}, {s(S_TMP)}, {s(S_TMP+1)}')
    A(f's_bfe_u32 {s(S_TMP+1)}, {s(S_H)}, 0x20001'); A(f's_lshl_b32 {s(S_TMP+1)}, {s(S_TMP+1)}, 6'); A(f's_add_u32 {s(S_TMP)}, {s(S_TMP)}, {s(S_TMP+1)}')
    A(f's_bfe_u32 {s(S_TMP+1)}, {s(S_H)}, 0x10002'); A(f's_lshl_b32 {s(S_TMP+1)}, {s(S_TMP+1)}, 8')
    A(f's_and_b32 {s(S_TMP+2)}, {s(S_H)}, 1'); A(f's_lshl_b32 {s(S_TMP+2)}, {s(S_TMP+2)}, 7'); A(f's_add_u32 {s(S_TMP+1)}, {s(S_TMP+1)}, {s(S_TMP+2)}')
    A(f's_bfe_u32 {s(S_TMP+2)}, {s(S_H)}, 0x10001'); A(f's_lshl_b32 {s(S_TMP+2)}, {s(S_TMP+2)}, 3'); A(f's_add_u32 {s(S_TMP+1)}, {s(S_TMP+1)}, {s(S_TMP+2)}')
    A(f's_add_u32 {s(S_TMP+1)}, {s(S_TMP+1)}, 8192')
    A(f's_cmp_eq_u32 {w}, 1')
    A(f's_cselect_b32 {s(S_TMP)}, {s(S_TMP+1)}, {s(S_TMP)}')
    A(f'v_add_u32 {v(V_MST)}, {s(S_TMP)}, v10')
    A(f's_mul_i32 {s(S_TMP)}, {s(S_L)}, {PART_STRIDE}')
    A(f's_add_u32 {s(S_TMP)}, {s(S_TMP)}, {WS_PART}')
    A(f's_lshr_b32 {s(S_TMP+1)}, {s(S_H)}, 3'); A(f's_mul_i32 {s(S_TMP+1)}, {s(S_TMP+1)}, 2304')
    A(f's_and_b32 {s(S_TMP+2)}, {w}, 1'); A(f's_lshl_b32 {s(S_TMP+2)}, {s(S_TMP+2)}, 10'); A(f's_add_u32 {s(S_TMP+1)}, {s(S_TMP+1)}, {s(S_TMP+2)}')
    A(f's_and_b32 {s(S_TMP+2)}, {s(S_H)}, 7'); A(f's_lshl_b32 {s(S_TMP+2)}, {s(S_TMP+2)}, 7'); A(f's_add_u32 {s(S_TMP+1)}, {s(S_TMP+1)}, {s(S_TMP+2)}')
    A(f's_add_u32 {s(S_TMP+1)}, {s(S_TMP+1)}, 256')
    A(f's_bfe_u32 {s(S_PL)}, {s(S_H)}, 0x20001'); A(f's_mul_i32 {s(S_PL)}, {s(S_PL)}, 2304')
    A(f's_and_b32 {s(S_TMP+2)}, {s(S_H)}, 1'); A(f's_lshl_b32 {s(S_TMP+2)}, {s(S_TMP+2)}, 7'); A(f's_add_u32 {s(S_PL)}, {s(S_PL)}, {s(S_TMP+2)}')
    A(f's_cmp_eq_u32 {w}, 1')
    A(f's_cselect_b32 {s(S_TMP+1)}, {s(S_PL)}, {s(S_TMP+1)}')
    A(f's_add_u32 {s(S_TMP+1)}, {s(S_TMP+1)}, {s(S_TMP)}')
    for i in range(4): A(f's_add_u32 {s(S_PL+i)}, {s(S_TMP+1)}, {i*8*9216}')
    A(f's_mul_i32 {s(S_TMP+1)}, {s(S_H)}, 9216')
    A(f's_add_u32 {s(S_PST)}, {s(S_TMP)}, {s(S_TMP+1)}')
    A(f's_mul_i32 {s(S_TMP+1)}, {w}, 2304')
    A(f's_add_u32 {s(S_PST)}, {s(S_PST)}, {s(S_TMP+1)}')
    A(f's_cmp_lt_u32 {s(S_H)}, 8')
    A(f's_cselect_b32 {s(S_HAS2)}, 1, 2')
    A(f's_cmp_ge_u32 {w}, {s(S_HAS2)}')
    A(f's_cselect_b32 {s(S_HAS2)}, 1, 0')
    A(f's_mul_i32 {s(S_TMP)}, {s(S_L)}, {MEMB_STRIDE}')
    A(f's_add_u32 {s(S_MSA)}, {s(S_TMP)}, {WS_MEMB}')
    for par in range(2):
        A(f's_add_u32 {s(S_ML+3*par)}, {s(S_MSA)}, {s(S_W1024)}')
        if par: A(f's_add_u32 {s(S_ML+3*par)}, {s(S_ML+3*par)}, 0x4000')
        A(f's_add_u32 {s(S_ML+3*par+1)}, {s(S_ML+3*par)}, 4096')
        A(f's_add_u32 {s(S_ML+3*par+2)}, {s(S_MSA)}, {s(S_W256)}')
        A(f's_add_u32 {s(S_ML+3*par+2)}, {s(S_ML+3*par+2)}, {8192 + 0x4000*par}')
    A(f'v_xor_b32 {v(V_MST)}, 0x4000, {v(V_MST)}')
    A(f's_mul_i32 {s(S_TMP)}, {s(S_L)}, {QKVX_STRIDE}')
    A(f's_mul_i32 {s(S_TMP+1)}, {s(S_H)}, 24576')
    A(f's_add_u32 {s(S_KX)}, {s(S_TMP)}, {s(S_TMP+1)}')
    A(f's_lshl_b32 {s(S_TMP+1)}, {w}, 12')
    A(f's_add_u32 {s(S_KX)}, {s(S_KX)}, {s(S_TMP+1)}')
    A(f's_add_u32 {s(S_KX)}, {s(S_KX)}, {WS_QKVX + 8192}')
    A(f's_add_u32 {s(S_KXM0)}, {s(S_TMP+1)}, {L_KX}')
    A(f's_lshl_b32 {s(S_VXO)}, {w}, 11')
    A(f's_mul_i32 {s(S_TMP)}, {s(S_L)}, {KVM_STRIDE}')
    A(f's_lshl_b32 {s(S_TMP+1)}, {s(S_H)}, 13')
    A(f's_add_u32 {s(S_TMP)}, {s(S_TMP)}, {s(S_TMP+1)}')
    A(f's_add_u32 {s(S_TMP)}, {s(S_TMP)}, {WS_KVM}')
    A(f's_add_u32 {s(S_KVM)}, {s(S_TMP)}, {s(S_W1024)}')
    A(f's_lshl_b32 {s(S_TMP+1)}, {w}, 9')
    A(f's_add_u32 {s(S_KVM2)}, {s(S_TMP)}, {s(S_TMP+1)}')
    A(f's_add_u32 {s(S_KVM2)}, {s(S_KVM2)}, 4096')
    A(f's_lshl_b32 {s(S_TMP)}, {s(S_ROLE)}, 7')
    A(f's_lshl_b32 {s(S_TMP+1)}, {w}, 2')
    A(f's_add_u32 {s(S_FLAGOUT)}, {s(S_TMP)}, {s(S_TMP+1)}')
    A(f's_mul_i32 {s(S_TMP)}, {s(S_L)}, {R_B1[1]-R_B1[0]}')
    A(f's_add_u32 {s(S_TMP)}, {s(S_TMP)}, {s(S_H)}')
    A(f's_add_u32 {s(S_TMP)}, {s(S_TMP)}, {R_B1[0]}')
    A(f's_lshl_b32 {s(S_TMP)}, {s(S_TMP)}, 7')
    A(f's_mov_b32 {s(S_FLAGIN)}, {s(S_TMP)}')
    for sr, val in ((S_EXO, 0xCCCCCCCCCCCCCCCC), (S_EXS, 0x000000FF000000FF)):
        A(f's_mov_b32 {s(sr)}, {hex(val & 0xffffffff)}')
        A(f's_mov_b32 {s(sr+1)}, {hex(val >> 32)}')
    A(f's_mov_b32 {s(S_M1)}, 0x11111111'); A(f's_mov_b32 {s(S_M1+1)}, 0x11111111')
    A(f's_mov_b32 {s(S_ONE)}, 0x3f80')
    SC = (128 ** -0.5) * 1.4426950408889634
    A(f's_mov_b32 {s(S_SC)}, {hex(f32(SC))}'); A(f's_mov_b32 {s(S_SC+1)}, {hex(f32(SC))}')
    A(f's_mov_b32 {s(S_NSC)}, {hex(f32(-SC))}')
    load_ptr_srd(A, S_SRD, KA_MEM0, 8*576*2)
    A(f'v_lshrrev_b32 v10, 2, {v(TID)}')
    A(f'v_and_b32 v11, 15, v10')
    A(f'v_lshrrev_b32 v12, 4, v10')
    A(f'v_lshrrev_b32 v13, 2, v11'); A(f'v_lshlrev_b32 v13, 1, v13')
    A(f'v_and_b32 v14, 1, v11'); A(f'v_add_u32 v13, v13, v14')
    A(f'v_mul_u32_u24 v13, 1152, v13')
    A(f'v_bfe_u32 v15, v11, 1, 1')
    A(f'v_and_b32 v16, 1, {v(TID)}')
    A(f'v_lshrrev_b32 v17, 1, v12')
    A(f'v_bfe_u32 v18, {v(TID)}, 1, 1')
    A(f'v_and_b32 v19, 1, v12')
    A(f'v_lshlrev_b32 v29, 5, v15')
    for sh, r in ((0, 16), (1, 17), (2, 18), (3, 19)):
        A(f'v_lshlrev_b32 v30, {sh}, {v(r)}'); A(f'v_add_u32 v29, v29, v30')
    A(f'v_lshlrev_b32 v29, 1, v29'); A(f'v_add_u32 v29, v29, v13')
    A(f'v_lshlrev_b32 v30, 1, v19'); A(f'v_add_u32 v30, v30, v18'); A(f'v_mul_u32_u24 v30, 144, v30')
    for sh, r in ((1, 15), (2, 16), (3, 17)):
        A(f'v_lshlrev_b32 v31, {sh}, {v(r)}'); A(f'v_add_u32 v30, v30, v31')
    A(f'v_lshlrev_b32 v30, 1, v30'); A(f'v_add_u32 v30, v30, v13')
    for ks in range(8):
        base = 2*(144*(ks >> 1) + 16 + 64*(ks & 1))
        A(f'buffer_load_ushort {v(32+ks)}, v29, {s(S_SRD,4)}, 0 offen offset:{base}')
        A(f'buffer_load_ushort {v(40+ks)}, v29, {s(S_SRD,4)}, 0 offen offset:{base + 32}')
    A(f'buffer_load_dword v48, v30, {s(S_SRD,4)}, 0 offen')
    A(f'v_lshlrev_b32 v14, 2, {v(TID)}')
    A('s_waitcnt vmcnt(0)')
    for ks in range(8):
        A(f'v_lshl_or_b32 {v(32+ks)}, {v(40+ks)}, 16, {v(32+ks)}')
        A(f'ds_write_b32 v14, {v(32+ks)} offset:{L_MEM + ks*1024}')
    A(f'ds_write_b32 v14, v48 offset:{L_MEM + 8*1024}')
    A('s_waitcnt lgkmcnt(0)')

def kxvx_dma(A):
    A(f's_mov_b32 m0, {s(S_KXM0)}')
    for j in range(4):
        A(f'buffer_load_dwordx4 {v(V_L16)}, {s(S_WS,4)}, {s(S_KX)} offen offset:{j*1024} lds')
    if not KXSAME[0]: A(f's_add_u32 {s(S_KX)}, {s(S_KX)}, {32*24576}')
KXSAME = [0]

def b1poll(A):
    A(f'v_lshrrev_b32 {v(V_FLAG)}, 2, {v(V_L16)}')
    A(f'buffer_load_dword {v(V_FLAG)}, {v(V_FLAG)}, {s(S_WS,4)}, {s(S_FLAGIN)} offen sc1')

def spin_dec(A, fail):
    A(f's_sub_u32 {s(S_SPIN)}, {s(S_SPIN)}, 1')
    A(f's_cbranch_scc1 {fail}')

ZB32 = [False]
def zero4(A, r):
    if ZB32[0]:
        for i in range(4): A(f'v_mov_b32 {v(r+i)}, 0')
    else:
        A(f'v_mov_b64 {v(r,2)}, 0'); A(f'v_mov_b64 {v(r+2,2)}, 0')

def chain_step(A, par, cfg, fail):
    tag = par ^ 1
    st = lambda f: f + (' sc1' if cfg.get('SLOW') else '')
    L = LQ(A)
    jitter(A)
    stamp(A, cfg, 0)
    for k in range(9):
        L.op(f'ds_read_b128 {v(M(k),4)}, {v(V_L16)} offset:{L_MEM + k*1024}', ('M', k))
    KW0 = bool(cfg.get('KXW0'))
    if not cfg.get('NOB1') and not (KW0 and cfg.get('KXLATEPOLL')):
        if KW0:
            skp = A.newlabel('b1w0')
            A(f's_cmp_lg_u32 {s(S_WAVE)}, 0'); A(f's_cbranch_scc1 {skp}')
        A(f's_mov_b64 exec, 15')
        if cfg.get('TOUCH'):
            nt = A.newlabel('notouch')
            A(f's_add_u32 {s(S_TMP)}, {s(S_STEP)}, 2')
            A(f'v_cmp_gt_u32 vcc, {s(S_TMP)}, {v(V_FLAG)}')
            if not cfg.get('TOUCHALL'): A(f's_cbranch_vccnz {nt}')
            A(f's_mov_b64 exec, -1')
            A(f'v_lshlrev_b32 {v(V_FLAG)}, 2, {v(V_L16)}')
            A(f's_mov_b32 m0, {L_DUMMY}')
            A(f'buffer_load_dword {v(V_FLAG)}, {s(S_WS,4)}, {s(S_KX)} offen lds')
            A(f's_mov_b64 exec, 15')
            A.label(nt); A.flush()
        b1poll(A)
        A(f's_mov_b64 exec, -1')
        if KW0: A.label(skp); A.flush()
    def q(t, ks): A(f'{SM} {v([AQ0,AQ1][t],4)}, {v(M(ks),4)}, {WQ(t,ks)}, {v(V_IDX)}')
    def k_(t, ks): A(f'{SM} {v([AK0,AK1][t],4)}, {v(M(ks),4)}, {WK(t,ks)}, {v(V_IDX)}')
    def vv(t, ks): A(f'{SM} {v([AV0,AV1][t],4)}, {v(M(ks),4)}, {WV(t,ks)}, {v(V_IDX)}')
    for ks in range(7):
        L.wait(('M', ks))
        q(0, ks); k_(0, ks); q(1, ks); k_(1, ks)
    L.waitall()
    stamp(A, cfg, 1)
    q(0, 7); k_(0, 7); q(0, 8); k_(0, 8); q(1, 7); k_(1, 7)
    def post(t):
        aq, ak = [AQ0, AQ1][t], [AK0, AK1][t]
        for r in (ak, ak+1, aq, aq+1): A(f'v_add_f32 {v(r)}, {v(r)}, {v(r+2)}')
        A(f'v_cvt_pk_bf16_f32 {v(ak+2)}, {v(ak)}, {v(ak+1)}')
        A(f'v_cvt_pk_bf16_f32 {v(ak+3)}, {v(aq)}, {v(aq+1)}')
        L.op(f'ds_write_b64 {v(V_QKW)}, {v(ak+2,2)} offset:{t*512}')
    q(1, 8)
    post(0)
    k_(1, 8)
    zero4(A, AV1)
    vv(0, 0); vv(0, 1)
    post(1)
    vv(1, 0); vv(1, 1); vv(0, 2); vv(1, 2)
    L.waitall()
    A('s_barrier')
    stamp(A, cfg, 2)
    F = [AQ1, AK0, AK1, M(0)]
    def fread(c):
        L.op(f'ds_read_b64_tr_b16 {v(F[c],2)}, {v(V_L8)} offset:{L_QK + c*1024}', ('F', c, 0))
        L.op(f'ds_read_b64_tr_b16 {v(F[c]+2,2)}, {v(V_L8)} offset:{L_QK + c*1024 + 512}', ('F', c))
    KXR = {(0,0): M(1), (1,0): M(2), (0,1): M(3), (1,1): M(4), (0,2): M(5), (1,2): M(1), (0,3): M(2), (1,3): F[0]}
    def kxread(t, c):
        L.op(f'ds_read_b128 {v(KXR[(t,c)],4)}, {v(V_L16)} offset:{L_KX + (t*4+c)*1024}', ('KX', t, c))
    fread(0); kxread(0, 0); kxread(1, 0)
    vv(0, 3); fread(1)
    vv(1, 3); kxread(0, 1)
    vv(0, 4); fread(2)
    vv(1, 4); kxread(1, 1)
    vv(0, 5); fread(3)
    vv(1, 5); kxread(0, 2)
    for ks in (6, 7, 8): vv(0, ks); vv(1, ks)
    S0, S1, SMm = M(6), M(7), M(8)
    def smf(acc, areg, c):
        A(f'{MF} {v(acc,4)}, {v(areg,4)}, {v(F[c],4)}, {"0" if c == 0 else v(acc,4)}')
    stamp(A, cfg, 3)
    L.wait(('KX', 0, 0)); smf(S0, KXR[(0,0)], 0)
    L.wait(('KX', 1, 0)); smf(S1, KXR[(1,0)], 0)
    kxread(1, 2)
    smf(SMm, F[0], 0)
    kxread(0, 3)
    kxread(1, 3)
    L.wait(('KX', 0, 1)); smf(S0, KXR[(0,1)], 1)
    L.wait(('KX', 1, 1)); smf(S1, KXR[(1,1)], 1)
    smf(SMm, F[1], 1)
    VM = AV0 + 2
    for r in (AV0, AV0+1, AV1, AV1+1): A(f'v_add_f32 {v(r)}, {v(r)}, {v(r+2)}')
    L.wait(('KX', 0, 2)); smf(S0, KXR[(0,2)], 2)
    A(f'v_cvt_pk_bf16_f32 {v(VM)}, {v(AV0)}, {v(AV0+1)}')
    A(f'v_cvt_pk_bf16_f32 {v(VM+1)}, {v(AV1)}, {v(AV1+1)}')
    smf(SMm, F[2], 2)
    A(f'buffer_store_dwordx2 {v(VM,2)}, {v(V_L8)}, {s(S_WS,4)}, {s(S_KVM2)} offen sc1')
    L.wait(('KX', 1, 2)); smf(S1, KXR[(1,2)], 2)
    TA = AV1
    A(f'v_add_u32 {v(TA)}, {s(S_VXO)}, {v(V_L16)}')
    A(f'v_add_u32 {v(TA+1)}, {s(S_W1024)}, {v(V_L8)}')
    smf(SMm, F[3], 3)
    L.wait(('KX', 0, 3)); smf(S0, KXR[(0,3)], 3)
    L.wait(('KX', 1, 3)); smf(S1, KXR[(1,3)], 3)
    VX0, VX1, ONES, PX, PM, T = M(0), M(1), M(2), M(3), M(4), M(5)
    KMT = AK0
    L.op(f'ds_read_b128 {v(VX0,4)}, {v(TA)} offset:{L_VX}', 'VX0')
    L.op(f'ds_read_b128 {v(VX1,4)}, {v(TA)} offset:{L_VX + 1024}', 'VX1')
    L.op(f'ds_read_b64_tr_b16 {v(KMT,2)}, {v(TA+1)} offset:{L_QK}', 'KM0')
    L.op(f'ds_read_b64_tr_b16 {v(KMT+2,2)}, {v(TA+1)} offset:{L_QK + 512}', 'KM')
    for i in range(4): A(f'v_mov_b32 {v(ONES+i)}, 0x3f803f80')
    A(f'v_mov_b32 {v(PM+1)}, 0'); A(f'v_mov_b32 {v(PM+2)}, 0')
    stamp(A, cfg, 4)
    A(f'v_max3_f32 {v(T)}, {v(SMm)}, {v(SMm+1)}, {v(S0)}')
    A(f'v_max3_f32 {v(T+1)}, {v(S0+1)}, {v(S0+2)}, {v(S0+3)}')
    A(f'v_max3_f32 {v(T)}, {v(T)}, {v(S1)}, {v(S1+1)}')
    A(f'v_max3_f32 {v(T+1)}, {v(T+1)}, {v(S1+2)}, {v(S1+3)}')
    A(f'v_max_f32 {v(T)}, {v(T)}, {v(T+1)}')
    A(f'v_mov_b32 {v(T+1)}, {v(T)}')
    L.wait('KM')
    A(f'buffer_store_dwordx4 {v(KMT,4)}, {v(V_L16)}, {s(S_WS,4)}, {s(S_KVM)} offen sc1')
    A(f'v_permlane16_swap_b32 {v(T)}, {v(T+1)}')
    A(f'v_max_f32 {v(T)}, {v(T)}, {v(T+1)}')
    A(f'v_mov_b32 {v(T+1)}, {v(T)}')
    A(f's_add_u32 {s(S_KVM)}, {s(S_KVM)}, {32*8192}')
    A(f's_add_u32 {s(S_KVM2)}, {s(S_KVM2)}, {32*8192}')
    A(f'v_permlane32_swap_b32 {v(T)}, {v(T+1)}')
    A(f'v_max_f32 {v(T)}, {v(T)}, {v(T+1)}')
    A(f'v_mul_f32 {v(T)}, {s(S_NSC)}, {v(T)}')
    def pkfma(r): A(f'v_pk_fma_f32 {v(r,2)}, {v(r,2)}, {s(S_SC,2)}, {v(T,2)} op_sel_hi:[1,1,0]')
    pkfma(SMm); pkfma(S0); pkfma(S0+2); pkfma(S1); pkfma(S1+2)
    A(f'v_exp_f32 {v(SMm)}, {v(SMm)}'); A(f'v_exp_f32 {v(SMm+1)}, {v(SMm+1)}')
    A(f'v_exp_f32 {v(S0)}, {v(S0)}')
    A(f'v_cvt_pk_bf16_f32 {v(PM)}, {v(SMm)}, {v(SMm+1)}')
    A(f'v_exp_f32 {v(S0+1)}, {v(S0+1)}')
    A(f'v_mov_b32 {v(PM+3)}, {v(PM)}')
    A(f'v_exp_f32 {v(S0+2)}, {v(S0+2)}')
    O0, O1, SUM = AQ1, AK0, AK1
    A(f'{MF16} {v(SUM,4)}, {v(ONES,2)}, {v(PM,2)}, 0')
    A(f'v_exp_f32 {v(S0+3)}, {v(S0+3)}')
    A(f'{MF16} {v(O0,4)}, {v(VM,2)}, {v(PM,2)}, 0')
    A(f'v_exp_f32 {v(S1)}, {v(S1)}')
    A(f'v_cvt_pk_bf16_f32 {v(PX)}, {v(S0)}, {v(S0+1)}')
    A(f'{MF16} {v(O1,4)}, {v(VM,2)}, {v(PM+2,2)}, 0')
    A(f'v_exp_f32 {v(S1+1)}, {v(S1+1)}')
    A(f'v_cvt_pk_bf16_f32 {v(PX+1)}, {v(S0+2)}, {v(S0+3)}')
    A(f'v_exp_f32 {v(S1+2)}, {v(S1+2)}')
    A(f'v_exp_f32 {v(S1+3)}, {v(S1+3)}')
    A(f'v_cvt_pk_bf16_f32 {v(PX+2)}, {v(S1)}, {v(S1+1)}')
    A(f'v_cvt_pk_bf16_f32 {v(PX+3)}, {v(S1+2)}, {v(S1+3)}')
    L.wait('VX1')
    A(f'{MF} {v(SUM,4)}, {v(ONES,4)}, {v(PX,4)}, {v(SUM,4)}')
    A(f'{MF} {v(O0,4)}, {v(VX0,4)}, {v(PX,4)}, {v(O0,4)}')
    A(f'{MF} {v(O1,4)}, {v(VX1,4)}, {v(PX,4)}, {v(O1,4)}')
    WB0, WB1 = 46, 47
    A(f'v_add_u32 {v(WB0)}, {s(S_WBO)}, {v(V_L16)}')
    A(f'v_add_u32 {v(WB1)}, 0x10000, {v(WB0)}')
    A(f'v_rcp_f32 {v(SUM)}, {v(SUM)}')
    OFD = AV0
    A(f'v_pk_mul_f32 {v(O0,2)}, {v(O0,2)}, {v(SUM,2)} op_sel_hi:[1,0]')
    A(f'v_pk_mul_f32 {v(O0+2,2)}, {v(O0+2,2)}, {v(SUM,2)} op_sel_hi:[1,0]')
    A(f'v_pk_mul_f32 {v(O1,2)}, {v(O1,2)}, {v(SUM,2)} op_sel_hi:[1,0]')
    A(f'v_pk_mul_f32 {v(O1+2,2)}, {v(O1+2,2)}, {v(SUM,2)} op_sel_hi:[1,0]')
    A(f'v_cvt_pk_bf16_f32 {v(OFD)}, {v(O0)}, {v(O0+1)}')
    A(f'v_cvt_pk_bf16_f32 {v(OFD+1)}, {v(O1)}, {v(O1+1)}')
    A(f'v_cvt_pk_bf16_f32 {v(OFD+2)}, {v(O0+2)}, {v(O0+3)}')
    A(f'v_cvt_pk_bf16_f32 {v(OFD+3)}, {v(O1+2)}, {v(O1+3)}')
    A(f's_mov_b64 exec, {s(S_EXO,2)}')
    L.op(f'ds_write_b64 {v(V_OW)}, {v(OFD,2)}', 'ow0')
    L.op(f'ds_write_b64 {v(V_OW)}, {v(OFD+2,2)} offset:32', 'ow')
    A(f's_mov_b64 exec, -1')
    stamp(A, cfg, 5)
    NS = 4
    SL = lambda i: 8 + 8*i
    OF0, OF1 = 40, 56
    ACC = [48, 52]
    RT = 44
    X = 60
    def woread(f, hf=None):
        t = f//2 + 1; ks = f % 2
        wb = WB0 if ks == 0 else WB1
        L.op(f'ds_read_b128 {v(SL(f % NS),4)}, {v(wb)} offset:{(t-1)*1024}', ('W', f, 0))
        L.op(f'ds_read_b128 {v(SL(f % NS)+4,4)}, {v(wb)} offset:{32768 + (t-1)*1024}', ('W', f))
    for f in range(NS): woread(f)
    zero4(A, ACC[0]); zero4(A, ACC[1])
    L.wait('ow')
    A('s_barrier')
    stamp(A, cfg, 6)
    L.op(f'ds_read_b128 {v(OF0,4)}, {v(V_L16)} offset:{L_O}', 'OF0')
    L.op(f'ds_read_b128 {v(OF1,4)}, {v(V_L16)} offset:{L_O + 1024}', 'OF1')
    def b1check(nout):
        lab_ok = A.newlabel('b1ok'); lab_re = A.newlabel('b1re')
        late = KW0 and cfg.get('KXLATEPOLL')
        A(f's_add_u32 {s(S_TMP)}, {s(S_STEP)}, 2')
        A(f's_mov_b64 exec, 15')
        if not late:
            A(f's_waitcnt vmcnt({nout})')
            A(f'v_cmp_gt_u32 vcc, {s(S_TMP)}, {v(V_FLAG)}')
            A(f's_cbranch_vccz {lab_ok}')
        A(f's_mov_b32 {s(S_SPIN)}, {SPIN_LIMIT}')
        A.label(lab_re)
        b1poll(A)
        A('s_waitcnt vmcnt(0)')
        A(f'v_cmp_gt_u32 vcc, {s(S_TMP)}, {v(V_FLAG)}')
        A(f's_cbranch_vccz {lab_ok}')
        spin_check(A, lab_re, fail)
        A.label(lab_ok)
        A(f's_mov_b64 exec, -1')
    if not KW0:
        skipk = A.newlabel('skipk')
        A(f's_cmp_eq_u32 {s(S_STEP)}, 63')
        A(f's_cbranch_scc1 {skipk}')
        if not cfg.get('NOB1'): b1check(2)
        if not cfg.get('NOKX'): kxvx_dma(A)
        A.label(skipk)
    def tile_out(t):
        acc = ACC[t % 2]; x = X + ((t - 1) % 4 if t else 0)
        A(f'v_add_f32 {v(RT)}, {v(acc)}, {v(acc+2)}')
        A(f'v_add_f32 {v(RT+1)}, {v(acc+1)}, {v(acc+3)}')
        if t + 2 < 9: zero4(A, acc)
        if t == 0: A(f'v_lshrrev_b32 {v(X+1)}, 2, {v(V_L16)}')
        A(f'v_cvt_pk_bf16_f32 {v(x)}, {v(RT)}, {v(RT+1)}')
        if t in (0, 1, 5):
            if not tag: A(f'v_add_u32 {v(RT)}, 0x10000, {v(RT)}')
            if t == 0: A(f's_mov_b64 exec, {s(S_M1,2)}')
            else: A('s_nop 0')
            if tag: A(f'v_or_b32_sdwa {v(x)}, {v(RT)}, 1 dst_sel:WORD_0 dst_unused:UNUSED_PRESERVE src0_sel:WORD_1 src1_sel:DWORD')
            else:   A(f'v_and_b32_sdwa {v(x)}, {v(RT)}, -2 dst_sel:WORD_0 dst_unused:UNUSED_PRESERVE src0_sel:WORD_1 src1_sel:DWORD')
            if t == 0: A(f's_mov_b64 exec, -1')
        if t == 0: A(st(f'buffer_store_dword {v(X)}, {v(X+1)}, {s(S_WS,4)}, {s(S_PST)} offen'))
        if t in (4, 8): A(st(f'buffer_store_dwordx4 {v(X,4)}, {v(V_L16)}, {s(S_WS,4)}, {s(S_PST)} offen offset:{256 if t == 4 else 1280}'))
    L.wait('OF0')
    A(f'{SM} {v(ACC[0],4)}, {v(OF0,4)}, {WOR(0)}, {v(V_IDX)}')
    L.wait('OF1')
    A(f'{SM} {v(ACC[0],4)}, {v(OF1,4)}, {WOR(1)}, {v(V_IDX)}')
    for f in range(16):
        t = f//2 + 1; ks = f % 2
        L.wait(('W', f))
        A(f'{SM} {v(ACC[t % 2],4)}, {v([OF0,OF1][ks],4)}, {v(SL(f % NS),8)}, {v(V_IDX)}')
        if f + NS < 16: woread(f + NS)
        if ks == 1: tile_out(t - 1)
    tile_out(8)
    jitter(A)
    stamp(A, cfg, 7)
    if cfg.get('PREWAIT1') and not KW0: A('s_waitcnt vmcnt(0)')
    if cfg.get('PW1LATE'):
        pw = A.newlabel('pw1')
        A(f's_cmp_lg_u32 {s(S_WAVE)}, 3')
        A(f's_cbranch_scc1 {pw}')
        A('s_waitcnt vmcnt(0)')
        A.label(pw)
    stamp(A, cfg, 11)
    P = [8 + 4*i for i in range(4)]
    SEL, D, X0, HM, T = 24, 28, 32, 34, 35
    new = par ^ 1; old = par
    def publish_flag():
        A(f's_add_u32 {s(S_TMP)}, {s(S_STEP)}, 1')
        A(f'v_mov_b32 {v(T+1)}, {s(S_TMP)}')
        A(f's_mov_b64 exec, 1')
        A(f'buffer_store_dword {v(T+1)}, {v(V_L16)}, {s(S_WS,4)}, {s(S_FLAGOUT)} offen sc1')
        A(f's_mov_b64 exec, -1')
    noline = A.newlabel('h1none'); join = A.newlabel('h1join')
    A(f's_mov_b32 {s(S_SPIN)}, {SPIN_LIMIT}')
    A(f's_cmp_eq_u32 {s(S_HAS2)}, 0')
    A(f's_cbranch_scc1 {noline}')
    if cfg.get('PREWAIT1') and KW0: A('s_waitcnt vmcnt(0)')
    lp = A.newlabel('hop1'); lw = A.newlabel('h1w')
    def h1loads():
        for i in range(4):
            A(f'buffer_load_dwordx4 {v(P[i],4)}, {v(V_PLD)}, {s(S_WS,4)}, {s(S_PL+i)} offen sc1')
    h1loads()
    for r in (AQ0, AQ1, AK0, AK1, AV0): zero4(A, r)
    A(f'v_lshrrev_b32 {v(T)}, 2, {v(V_L16)}')
    A(f'v_and_b32 {v(T)}, 16, {v(T)}')
    A(f'v_lshlrev_b32 {v(T)}, {v(T)}, {s(S_ONE)}')
    A(f's_mov_b64 vcc, {s(S_M1,2)}')
    for r in range(4):
        A(f'v_cndmask_b32 {v(SEL+r)}, 0, {v(T)}, vcc')
        if r < 3: A(f's_lshl_b64 vcc, vcc, 1')
    A(f'v_bfe_i32 {v(HM)}, {v(V_L16)}, 9, 1')
    A(f's_branch {lw}')
    A.label(lp)
    if not cfg.get('NOMASK'): A(f's_mov_b64 exec, vcc')
    spin_dec(A, fail)
    h1loads()
    A.label(lw); A.flush()
    A('s_waitcnt vmcnt(0)')
    mf = lambda i: A(f'{MF} {v(D,4)}, {v(SEL,4)}, {v(P[i],4)}, {"0" if i == 0 else v(D,4)}')
    mf(0)
    if tag: A(f'v_bitop3_b32 {v(T)}, {v(P[0])}, {v(P[1])}, {v(P[2])} bitop3:0x80')
    else:   A(f'v_or3_b32 {v(T)}, {v(P[0])}, {v(P[1])}, {v(P[2])}')
    mf(1)
    if tag: A(f'v_bitop3_b32 {v(T)}, {v(T)}, {v(P[3])}, 1 bitop3:0x80')
    else:   A(f'v_bitop3_b32 {v(T)}, {v(T)}, {v(P[3])}, 1 bitop3:0xa8')
    mf(2)
    A(f'v_cmp_ne_u32 vcc, {tag}, {v(T)}')
    mf(3)
    if not cfg.get('X_NOCHK'): A(f's_cbranch_vccnz {lp}')
    A(f's_mov_b64 exec, -1')
    if cfg.get('STAMPS'): A(f's_sub_u32 {s(S_ST+14)}, {SPIN_LIMIT}, {s(S_SPIN)}')
    if cfg.get('CNT'):
        A(f's_sub_u32 {s(S_TMP)}, {SPIN_LIMIT}, {s(S_SPIN)}'); A(f's_add_u32 s92, s92, {s(S_TMP)}')
    stamp(A, cfg, 8)
    A(f'v_add_f32_dpp {v(X0)}, {v(D)}, {v(D)} row_ror:8 row_mask:0xf bank_mask:0x3')
    A(f'v_add_f32_dpp {v(X0+1)}, {v(D+1)}, {v(D+1)} row_ror:8 row_mask:0xf bank_mask:0x3')
    A(f'v_add_f32_dpp {v(X0)}, {v(D+2)}, {v(D+2)} row_ror:8 row_mask:0xf bank_mask:0xc')
    A(f'v_add_f32_dpp {v(X0+1)}, {v(D+3)}, {v(D+3)} row_ror:8 row_mask:0xf bank_mask:0xc')
    A(f'v_cvt_pk_bf16_f32 {v(X0)}, {v(X0)}, {v(X0+1)}')
    A(f'v_or_b32 {v(X0)}, {v(X0)}, {v(HM)}')
    A(st(f'buffer_store_dword {v(X0)}, {v(V_MST)}, {s(S_WS,4)}, {s(S_MSA)} offen'))
    A(f'v_xor_b32 {v(V_MST)}, 0x4000, {v(V_MST)}')
    if KW0:
        jitter(A)
        A('s_barrier')
        A('s_waitcnt vmcnt(0)')
    A(f's_branch {join}')
    A.label(noline); A.flush()
    for r in (AQ0, AQ1, AK0, AK1, AV0): zero4(A, r)
    if KW0:
        skd = A.newlabel('skd')
        A(f's_cmp_lg_u32 {s(S_WAVE)}, 0'); A(f's_cbranch_scc1 {skd}')
        A(f's_cmp_eq_u32 {s(S_STEP)}, 63'); A(f's_cbranch_scc1 {skd}')
        if not cfg.get('NOB1'): b1check(5)
        if not cfg.get('NOKX'):
            for g in range(4):
                A(f's_mov_b32 m0, {L_KX + g*4096}')
                if g: A(f's_add_u32 {s(S_TMP)}, {s(S_KX)}, {g*4096}')
                for j in range(4):
                    A(f'buffer_load_dwordx4 {v(V_L16)}, {s(S_WS,4)}, {s(S_TMP if g else S_KX)} offen offset:{j*1024} lds')
            A(f's_add_u32 {s(S_KX)}, {s(S_KX)}, {32*24576}')
        A.label(skd); A.flush()
        jitter(A)
        A('s_barrier')
    A.label(join); A.flush()
    if not KW0:
        jitter(A)
        if cfg.get('BAR2'): A('s_barrier')
    stamp(A, cfg, 9)
    if cfg.get('PREWAIT2') and not KW0: A('s_waitcnt vmcnt(0)')
    stamp(A, cfg, 12)
    R0, R1, R2 = 8, 12, 16
    TA0, TA1 = 20, 21
    A(f'v_add_u32 {v(TA0)}, {s(S_W1024)}, {v(V_L16)}')
    A(f'v_add_u32 {v(TA1)}, {s(S_W256)}, {v(V_L16)}')
    A(f'v_mov_b64 {v(R2,2)}, 0'); A(f'v_mov_b64 {v(R2+2,2)}, 0')
    lp2 = A.newlabel('hop2'); lw2 = A.newlabel('h2w')
    A(f's_mov_b32 {s(S_SPIN)}, {SPIN_LIMIT}')
    def h2loads(first):
        A(f'buffer_load_dwordx4 {v(R0,4)}, {v(V_L16)}, {s(S_WS,4)}, {s(S_ML+3*new)} offen sc1')
        A(f'buffer_load_dwordx4 {v(R1,4)}, {v(V_L16)}, {s(S_WS,4)}, {s(S_ML+3*new+1)} offen sc1')
        if first: A(f's_mov_b64 exec, 0xffff')
        else: A(f's_and_b64 exec, exec, 0xffff')
        A(f'buffer_load_dwordx4 {v(R2,4)}, {v(V_L16)}, {s(S_WS,4)}, {s(S_ML+3*new+2)} offen sc1')
        if first or cfg.get('NOMASK'): A(f's_mov_b64 exec, -1')
        else: A(f's_mov_b64 exec, {s(S_MSK,2)}')
    h2loads(True)
    A(f's_branch {lw2}')
    A.label(lp2)
    if not cfg.get('NOMASK'):
        A(f's_mov_b64 exec, vcc')
        A(f's_mov_b64 {s(S_MSK,2)}, vcc')
    spin_dec(A, fail)
    h2loads(False)
    A.label(lw2)
    A('s_waitcnt vmcnt(0)')
    T = 22
    A(f'v_max3_u32 {v(T)}, {v(R0)}, {v(R0+1)}, {v(R0+2)}')
    A(f'v_max3_u32 {v(T+1)}, {v(R0+3)}, {v(R1)}, {v(R1+1)}')
    A(f'v_max3_u32 {v(T)}, {v(T)}, {v(R1+2)}, {v(R1+3)}')
    A(f'v_max3_u32 {v(T+1)}, {v(T+1)}, {v(R2)}, {v(R2+1)}')
    A(f'v_max3_u32 {v(T)}, {v(T)}, {v(R2+2)}, {v(R2+3)}')
    A(f'v_max_u32 {v(T)}, {v(T)}, {v(T+1)}')
    A(f'v_cmp_eq_u32 vcc, -1, {v(T)}')
    A(f's_cbranch_vccnz {lp2}')
    A(f's_mov_b64 exec, -1')
    if cfg.get('CNT'):
        A(f's_sub_u32 {s(S_TMP)}, {SPIN_LIMIT}, {s(S_SPIN)}'); A(f's_add_u32 s93, s93, {s(S_TMP)}')
    if cfg.get('STAMPS'):
        A(f's_sub_u32 {s(S_ST+15)}, {SPIN_LIMIT}, {s(S_SPIN)}')
        stamp(A, cfg, 13)
    if not cfg.get('FLAGEARLY'):
        T = 35; publish_flag()
    A(f'ds_write_b128 {v(TA0)}, {v(R0,4)} offset:{L_MEM}')
    A(f'ds_write_b128 {v(TA0)}, {v(R1,4)} offset:{L_MEM + 4096}')
    A(f's_mov_b64 exec, 0xffff')
    A(f'ds_write_b128 {v(TA1)}, {v(R2,4)} offset:{L_MEM + 8192}')
    A(f's_mov_b64 exec, -1')
    A(f's_add_u32 {s(S_STEP)}, {s(S_STEP)}, 1')
    tstamp(A, cfg, s(S_STEP), 24, V_L16)
    A('s_waitcnt lgkmcnt(0)')
    A('s_barrier')
    stamp(A, cfg, 10)

def chain_role(A, cfg, fail, done):
    A.smart = True
    ZB32[0] = bool(cfg.get('X_ZB32')); KXSAME[0] = cfg.get('KXSAME')
    chain_init(A, cfg)
    cfg['barrier_wait_chain'](A)
    if not cfg.get('NOB1'):
        lab_re = A.newlabel('b1first'); lab_ok = A.newlabel('b1fok')
        A(f's_mov_b32 {s(S_SPIN)}, {SPIN_LIMIT}')
        A(f's_mov_b64 exec, 15')
        A.label(lab_re)
        b1poll(A)
        A('s_waitcnt vmcnt(0)')
        A(f'v_cmp_gt_u32 vcc, 1, {v(V_FLAG)}')
        A(f's_cbranch_vccz {lab_ok}')
        spin_check(A, lab_re, fail)
        A.label(lab_ok)
        A(f's_mov_b64 exec, -1')
    kxvx_dma(A)
    for r in (AQ0, AQ1, AK0, AK1, AV0): zero4(A, r)
    A(f's_mov_b32 {s(S_STEP)}, 0')
    tstamp(A, cfg, 0, 24, V_L16)
    dstamp(A, cfg, 1, 0, None, 24, 25); dstamp(A, cfg, 3, 32, None, 24, 25)
    dstamp(A, cfg, 0, 0, 94, 24, 25)
    A('s_waitcnt vmcnt(0)')
    A('s_barrier')
    if cfg.get('STAMPS') or cfg.get('TOTAL'):
        A(f's_memtime {s(S_T0,2)}')
        A('s_waitcnt lgkmcnt(0)')
    if cfg.get('CNT'): A('s_mov_b32 s92, 0'); A('s_mov_b32 s93, 0')
    loop = A.newlabel('chainloop')
    A.label(loop)
    chain_step(A, 0, cfg, fail)
    chain_step(A, 1, cfg, fail)
    A(f's_cmp_lt_u32 {s(S_STEP)}, 64')
    A(f's_cbranch_scc1 {loop}')
    if cfg.get('CNT'):
        A(f's_lshl_b32 {s(S_TMP)}, {s(S_ROLE)}, 9')
        A(f's_lshl_b32 {s(S_TMP+1)}, {s(S_WAVE)}, 3')
        A(f's_add_u32 {s(S_TMP)}, {s(S_TMP)}, {s(S_TMP+1)}')
        A(f's_add_u32 {s(S_TMP)}, {s(S_TMP)}, {hex(WS_TIME)}')
        A(f'v_mov_b32 v14, s92'); A(f'v_mov_b32 v15, s93'); A(f'v_mov_b32 v16, 0')
        A('s_mov_b64 exec, 1')
        A(f'buffer_store_dwordx2 v[14:15], v16, {s(S_WS,4)}, {s(S_TMP)} offen')
        A('s_mov_b64 exec, -1')
    if cfg.get('STAMPS') or cfg.get('TOTAL'):
        A(f's_memtime {s(S_T1,2)}')
        A('s_waitcnt lgkmcnt(0)')
        A(f's_sub_u32 {s(S_T1)}, {s(S_T1)}, {s(S_T0)}')
        sk = A.newlabel('nostamp')
        A(f's_lshl_b32 {s(S_TMP)}, {s(S_ROLE)}, 2')
        A(f's_or_b32 {s(S_TMP)}, {s(S_TMP)}, {s(S_WAVE)}')
        A(f's_cmp_lg_u32 {s(S_TMP)}, {cfg.get("WHO", 0)}')
        A(f's_cbranch_scc1 {sk}')
        A(f'v_mov_b32 v14, {s(S_T1)}')
        A(f'v_mov_b32 v15, 0')
        A(f'global_store_dword v15, v14, {s(S_DBG,2)} offset:64')
        for i in range(16 if cfg.get('STAMPS') else 0):
            if i < 14: A(f's_sub_u32 {s(S_TMP)}, {s(S_ST+i)}, {s(S_ST)}')
            else: A(f's_mov_b32 {s(S_TMP)}, {s(S_ST+i)}')
            A(f'v_mov_b32 v14, {s(S_TMP)}')
            A(f'global_store_dword v15, v14, {s(S_DBG,2)} offset:{68+4*i}')
        A.label(sk)
    A.smart = False
    A(f's_branch {done}')
```

```python
from asm import *
from common import *
from chain import *

S_IDX = 26
S_SEG = 28
S_PREF = 29
S_FOUT = 30
S_SRC = 31
S_BUFW = 32
S_BUFC = 33
S_DST = 34
S_DST2 = 35
S_DST3 = 36
S_TGT = 37
S_A = 38; S_B = 39; S_C = 40; S_D = 41
S_EXLO = 42
S_BSUM = 44
S_CSUM = 45
S_X = 46

def lane_setup(A):
    A('v_and_b32 v79, 63, v0')
    A('v_mov_b32 v75, v0')
    A('v_and_b32 v78, 15, v79')
    A('v_lshrrev_b32 v77, 4, v79')
    A('v_and_b32 v76, 7, v79')

def flagaddr(A, vdst, role0, n, vlane=79, vt=74):
    A(f'v_min_u32 {v(vdst)}, {n-1}, {v(vlane)}')
    A(f'v_lshrrev_b32 {v(vt)}, 2, {v(vdst)}')
    if isinstance(role0, int): A(f'v_add_u32 {v(vt)}, {role0}, {v(vt)}')
    else: A(f'v_add_u32 {v(vt)}, {role0}, {v(vt)}')
    A(f'v_lshlrev_b32 {v(vt)}, 7, {v(vt)}')
    A(f'v_and_b32 {v(vdst)}, 3, {v(vdst)}')
    A(f'v_lshlrev_b32 {v(vdst)}, 2, {v(vdst)}')
    A(f'v_add_u32 {v(vdst)}, {v(vdst)}, {v(vt)}')

def own_flag(A):
    A(f's_lshl_b32 {s(S_FOUT)}, {s(S_ROLE)}, 7')
    A(f's_lshl_b32 {s(S_TMP)}, {s(S_WAVE)}, 2')
    A(f's_add_u32 {s(S_FOUT)}, {s(S_FOUT)}, {s(S_TMP)}')

CFG = {}
SCOPE = [' sc1']
def set_scope(intra):
    SCOPE[0] = '' if (intra and not CFG.get('ALLSC1')) else ' sc1'
def publish(A, sval, vt, vzero, ts=True):
    if ts: tstamp(A, CFG, sval, vt, vzero)
    jitter(A)
    A(f'v_mov_b32 {v(vt)}, {sval}')
    A('s_mov_b64 exec, 1')
    A(f'buffer_store_dword {v(vt)}, {v(vzero)}, {s(S_WS,4)}, {s(S_FOUT)} offen' + SCOPE[0])
    A('s_mov_b64 exec, -1')

def poll_block(A, cfg, vaddr, starget, vt, fail):
    if cfg.get('NOWAIT'): return
    re_ = A.newlabel('pre'); ok = A.newlabel('pok')
    jitter(A)
    A(f's_mov_b32 {s(S_SPIN)}, {SPIN_LIMIT}')
    A.label(re_)
    A(f'buffer_load_dword {v(vt)}, {v(vaddr)}, {s(S_WS,4)}, 0 offen sc1')
    A('s_waitcnt vmcnt(0)')
    A(f'v_cmp_gt_u32 vcc, {starget}, {v(vt)}')
    A(f's_cbranch_vccz {ok}')
    spin_check(A, re_, fail)
    A.label(ok)

def poll_issue(A, cfg, vaddr, vt):
    if cfg.get('NOWAIT'): return
    A(f'buffer_load_dword {v(vt)}, {v(vaddr)}, {s(S_WS,4)}, 0 offen sc1')

def poll_check(A, cfg, vaddr, starget, vt, fail):
    if cfg.get('NOWAIT'): return
    ok = A.newlabel('pck')
    A(f'v_cmp_gt_u32 vcc, {starget}, {v(vt)}')
    A(f's_cbranch_vccz {ok}')
    poll_block(A, cfg, vaddr, starget, vt, fail)
    A.label(ok)

def ring(name):
    if CFG.get('NORING'): return 64
    return int(CFG.get('R_' + name, RINGS[name]))

def ring_off(A, sdst, sbase, sidx, R, stride):
    if R < 64: A(f's_and_b32 {s(sdst)}, {sidx}, {R-1}'); A(f's_mul_i32 {s(sdst)}, {s(sdst)}, {stride}')
    else: A(f's_mul_i32 {s(sdst)}, {sidx}, {stride}')
    if sbase is not None: A(f's_add_u32 {s(sdst)}, {s(sdst)}, {s(sbase)}')

def down_check(A, cfg, vaddr, vt, sseg, back, stmp, fail, odd=False):
    if cfg.get('NOWAIT') or back >= 63: return
    A(f's_sub_i32 {s(stmp)}, {sseg}, {back}')
    A(f's_max_i32 {s(stmp)}, {s(stmp)}, 0')
    if odd:
        A(f's_cmp_eq_u32 {sseg}, {back}')
        A(f's_cselect_b32 {s(stmp)}, 1, {s(stmp)}')
    poll_check(A, cfg, vaddr, s(stmp), vt, fail)

def pretouch(A, regions, nwaves, sgw, vl16, vdummy):
    for (sbase, size) in regions:
        lp = A.newlabel('pt')
        A(f's_lshl_b32 {s(S_TMP)}, {s(sgw)}, 10')
        A(f's_add_u32 {s(S_TMP)}, {s(S_TMP)}, {s(sbase)}')
        A(f's_add_u32 {s(S_TMP+1)}, {s(sbase)}, {size}')
        A.label(lp)
        A(f'buffer_load_dwordx4 {v(vdummy,4)}, {v(vl16)}, {s(S_WS,4)}, {s(S_TMP)} offen')
        A(f's_add_u32 {s(S_TMP)}, {s(S_TMP)}, {nwaves*1024}')
        A(f's_cmp_lt_u32 {s(S_TMP)}, {s(S_TMP+1)}')
        A(f's_cbranch_scc1 {lp}')
    A('s_waitcnt vmcnt(0)')

def wreg_lin(i, n, vbase):
    return a(i, n) if i < 256 else v(vbase + i - 256, n)

def block_loader(A, blocks, ka, size, vtr=70, per_round=36):
    w = s(S_WAVE)
    load_ptr_srd(A, S_SRD, ka, size)
    A(f'v_lshrrev_b32 v72, 2, v78')
    A(f'v_lshlrev_b32 v73, 2, v77')
    A(f'v_add_u32 v72, v72, v73')
    A(f'v_lshlrev_b32 v72, 5, v72')
    A(f'v_and_b32 v73, 3, v78')
    A(f'v_lshlrev_b32 v73, 3, v73')
    A(f'v_add_u32 v72, v72, v73')
    A(f's_mul_i32 {s(S_TMP)}, {w}, 36864')
    A(f'v_add_u32 {v(vtr)}, {s(S_TMP)}, v72')
    for r0 in range(0, len(blocks), per_round):
        rb = blocks[r0:r0+per_round]
        for i, b in enumerate(rb):
            A(f's_mul_i32 {s(S_M0)}, {w}, 36864')
            if i: A(f's_add_u32 {s(S_M0)}, {s(S_M0)}, {i*1024}')
            b['issue'](A)
        A('s_waitcnt vmcnt(0)')
        for i, b in enumerate(rb):
            for half in range(2):
                A(f'ds_read_b64_tr_b16 {b["dst"](half)}, {v(vtr)} offset:{i*1024 + half*512}')
            if i % 4 == 3: A('s_waitcnt lgkmcnt(8)')
        A('s_waitcnt lgkmcnt(0)')
    A('s_barrier')

def dma16(A, vaddr, soff):
    A(f's_mov_b32 m0, {s(S_M0)}')
    A(f'buffer_load_dwordx4 {v(vaddr)}, {s(S_SRD,4)}, {soff} offen lds')

def gemm_loop(A, cfg, P, fail):
    NT, NKS, D = P['NT'], P['NKS'], P.get('D', 3)
    W, ACC, RING = P['W'], P['ACC'], P['RING']
    VL16, VRD, VPOLL, VFLAG, VZERO, VT = P['VL16'], P['VRD'], P['VPOLL'], P['VFLAG'], P['VZERO'], P['VT']
    NF = 2*NKS; NFW = NF//4
    nst = P['nst']
    KMID = P.get('KMID', NKS//2)
    w = s(S_WAVE)
    A(f's_mul_i32 {s(S_TMP)}, {w}, {NFW*1024}')
    A(f's_add_u32 {s(S_SRC)}, {s(S_SRC)}, {s(S_TMP)}')
    A(f's_mov_b32 {s(S_BUFW)}, {s(S_TMP)}')
    A(f's_lshl_b32 {s(S_BSUM)}, {s(S_TMP)}, 1')
    A(f's_add_u32 {s(S_BSUM)}, {s(S_BSUM)}, {NF*1024}')
    A(f's_mov_b32 {s(S_BUFC)}, 0')
    A(f's_mov_b32 {s(S_SEG)}, 0')
    A(f's_mov_b32 {s(S_PREF)}, 0')
    S_SRCB, S_DSTB, S_NSRC, S_TD = 54, 55, 56, 57
    SR = P.get('src_ring', 64); DR = P.get('dst_ring', 64); DOWN = P.get('down')
    if SR < 64:
        A(f's_mov_b32 {s(S_SRCB)}, {s(S_SRC)}'); A(f's_mov_b32 {s(S_NSRC)}, 0')
    if DR < 64: A(f's_mov_b32 {s(S_DSTB)}, {s(S_DST)}')
    lsc = ' sc1' if SR < 64 else ''
    def dma_steps():
        st = []
        for j in range(NFW):
            def f(j=j):
                if j == 0 and SR < 64:
                    ring_off(A, S_SRC, S_SRCB, s(S_NSRC), SR, P['src_stride'])
                    A(f's_add_u32 {s(S_NSRC)}, {s(S_NSRC)}, 1')
                j0 = j - j % 4
                if j == j0:
                    A(f's_add_u32 {s(S_TMP)}, {s(S_BUFW)}, {j0*1024}')
                    A(f's_mov_b32 m0, {s(S_TMP)}')
                    A(f's_add_u32 {s(S_TMP+1)}, {s(S_SRC)}, {j0*1024}')
                A(f'buffer_load_dwordx4 {v(VL16)}, {s(S_WS,4)}, {s(S_TMP+1)} offen offset:{(j-j0)*1024}{lsc} lds')
                if j == NFW - 1:
                    if SR >= 64: A(f's_add_u32 {s(S_SRC)}, {s(S_SRC)}, {P["src_stride"]}')
                    A(f's_sub_u32 {s(S_BUFW)}, {s(S_BSUM)}, {s(S_BUFW)}')
            st.append(f)
        return st
    def dma():
        for f in dma_steps(): f()
    loop = A.newlabel('gloop'); pre = A.newlabel('gpref'); go = A.newlabel('ggo')
    A.label(loop)
    A(f's_cmp_lg_u32 {s(S_PREF)}, 0')
    A(f's_cbranch_scc1 {pre}')
    A(f's_add_u32 {s(S_TGT)}, {s(S_SEG)}, 1')
    fst(A, cfg, 0, S_SEG)
    poll_block(A, cfg, VPOLL, s(S_TGT), VFLAG, fail)
    fst(A, cfg, 1, S_SEG)
    dma()
    A('s_waitcnt vmcnt(0)')
    A(f's_branch {go}')
    A.label(pre)
    A(f's_waitcnt vmcnt({nst})')
    A.label(go)
    fst(A, cfg, 2, S_SEG)
    A('s_barrier')
    fst(A, cfg, 3, S_SEG)
    A(f's_mov_b32 {s(S_PREF)}, 0')
    A(f'v_add_u32 {v(VRD)}, {s(S_BUFC)}, {v(VL16)}')
    A(f's_sub_u32 {s(S_BUFC)}, {NF*1024}, {s(S_BUFC)}')
    if not cfg.get('NOWAIT'):
        A(f'buffer_load_dword {v(VFLAG)}, {v(P.get("VPOLLN", VPOLL))}, {s(S_WS,4)}, 0 offen sc1')
        if DOWN and DR < 64: poll_issue(A, cfg, DOWN['VP'], DOWN['VF'])
    def rd(ks):
        for tt in range(2):
            A(f'ds_read_b128 {v(RING + (ks % D)*8 + tt*4, 4)}, {v(VRD)} offset:{(tt*NKS + ks)*1024}')
    for k in range(min(D, NKS)): rd(k)
    ILV = P.get('ILV') and not cfg.get('NOILV')
    EB = P.get('epi_blocks') if not cfg.get('NOEB') else None
    def mf(t, tt, ks):
        fr = v(RING + (ks % D)*8 + tt*4, 4)
        c = '0' if ks == 0 else v(ACC(t, tt), 4)
        if P['swap'](t): A(f'{MF} {v(ACC(t,tt),4)}, {fr}, {W(t,ks)}, {c}')
        else: A(f'{MF} {v(ACC(t,tt),4)}, {W(t,ks)}, {fr}, {c}')
    def ksblock(ks, extra=None):
        A(f's_waitcnt lgkmcnt({2*min(D-1, NKS-1-ks)})')
        for t in range(NT):
            for tt in range(2):
                mf(t, tt, ks)
                if extra: extra.pop(0)()
        if ks + D < NKS: rd(ks + D)
    NILV = -(-NFW // (2*NT)) if ILV else 0
    K2 = [] if cfg.get('NOK2') else list(P.get('K2', []))
    if cfg.get('K2_' + P['name']) is not None: K2 = [int(x) for x in str(cfg['K2_' + P['name']]).split('.') if x != 'n']
    FINAL = not cfg.get('NOWAIT') and not cfg.get('NOFINAL') and P['name'] not in str(cfg.get('NOFIN', '')).split('.')
    if cfg.get('KM_' + P['name']) is not None: KMID = int(cfg['KM_' + P['name']])
    ks = 0
    while ks < NKS:
        if ks == KMID or (ks in K2 and not cfg.get('NOWAIT')):
            first = ks == KMID
            more = (FINAL or any(k > ks for k in K2)) and not cfg.get('NOWAIT')
            sk = A.newlabel('gnopf'); skn = sk
            if first:
                A('s_waitcnt vmcnt(0)')
                publish(A, s(S_SEG), VT, VZERO, ts=False)
                A(f's_cmp_ge_u32 {s(S_SEG)}, 63')
                A(f's_cbranch_scc1 {sk}')
            else:
                A(f's_cmp_lg_u32 {s(S_PREF)}, 0')
                A(f's_cbranch_scc1 {sk}')
                A(f's_cmp_ge_u32 {s(S_SEG)}, 63')
                A(f's_cbranch_scc1 {sk}')
                A('s_waitcnt vmcnt(0)')
            if more: skn = A.newlabel('gnopf2')
            if not cfg.get('NOWAIT'):
                A(f's_add_u32 {s(S_TGT)}, {s(S_SEG)}, 2')
                A(f'v_cmp_gt_u32 vcc, {s(S_TGT)}, {v(VFLAG)}')
                A(f's_cbranch_vccnz {skn}')
            def again():
                if more:
                    A.label(skn)
                    A(f'buffer_load_dword {v(VFLAG)}, {v(P.get("VPOLLN", VPOLL))}, {s(S_WS,4)}, 0 offen sc1')
            if ILV:
                st = dma_steps()
                st += [lambda: None]*(NILV*2*NT - len(st))
                A(f's_mov_b32 {s(S_PREF)}, 1')
                h0 = list(A.hist)
                for k in range(NILV): ksblock(ks + k, st)
                aft = A.newlabel('gaft')
                A(f's_branch {aft}')
                A.hist = h0
                again()
                A.label(sk)
                for k in range(NILV): ksblock(ks + k)
                A.label(aft)
                assert not any(ks < k < ks + NILV for k in K2 + [KMID]) and (not EB or ks + NILV <= NKS - 2)
                ks += NILV
                continue
            dma()
            A(f's_mov_b32 {s(S_PREF)}, 1')
            if more:
                A(f's_branch {sk}')
                again()
            A.label(sk)
        if EB and ks == NKS - 2:
            assert ks % D != (ks + 1) % D and DR >= 64
            jitter(A)
            nb = len(EB); lead = int(cfg.get('EBLEAD', 3))
            seq = [('a', b) for b in range(lead + 1)]
            for b in range(nb):
                seq.append(('b', b))
                if b + lead + 1 < nb: seq.append(('a', b + lead + 1))
            A(f's_waitcnt lgkmcnt(2)')
            firstb = True; pend = []
            for (ph, b) in seq:
                if ph == 'b' and firstb: A('s_waitcnt lgkmcnt(0)'); firstb = False
                for i, (t, tt) in enumerate(EB[b]['tiles']):
                    mf(t, tt, ks + (ph == 'b'))
                    for _ in range(3 if i == 0 else 2):
                        if pend and pend[0][0] <= 0: pend.pop(0)[1]()
                pend = [(d - 1, f) for (d, f) in pend]
                if ph == 'b': pend += [(int(cfg.get('EBDELAY', 0)), f) for f in EB[b]['ops']]
            for (d, f) in pend: f()
            break
        ksblock(ks)
        ks += 1
    tstamp(A, cfg, s(S_SEG), VT, VZERO)
    fst(A, cfg, 4, S_SEG)
    if DR < 64:
        down_check(A, cfg, DOWN['VP'], DOWN['VF'], s(S_SEG), DOWN['back'], S_TD, fail, odd=DOWN.get('odd', False))
        ring_off(A, S_DST, S_DSTB, s(S_SEG), DR, P['dst_stride'])
    if not EB:
        jitter(A)
        P['epilogue'](A)
    fst(A, cfg, 5, S_SEG)
    sk2 = A.newlabel('gnopub')
    if 'VPOLLN' in P:
        A(f'v_xor_b32 {v(VPOLL)}, {s(P["SPX"])}, {v(VPOLL)}')
        A(f'v_xor_b32 {v(P["VPOLLN"])}, {s(P["SPX"])}, {v(P["VPOLLN"])}')
    A(f's_add_u32 {s(S_SEG)}, {s(S_SEG)}, 1')
    A(f's_cmp_lg_u32 {s(S_PREF)}, 0')
    A(f's_cbranch_scc1 {loop}')
    if FINAL:
        nofin = A.newlabel('gnofin')
        A(f's_cmp_ge_u32 {s(S_SEG)}, 64')
        A(f's_cbranch_scc1 {nofin}')
        A(f's_waitcnt vmcnt({nst})')
        A(f's_add_u32 {s(S_TGT)}, {s(S_SEG)}, 1')
        A(f'v_cmp_gt_u32 vcc, {s(S_TGT)}, {v(VFLAG)}')
        A(f's_cbranch_vccnz {nofin}')
        dma()
        A(f's_waitcnt vmcnt({NFW})')
        publish(A, s(S_SEG), VT, VZERO, ts=False)
        A('s_waitcnt vmcnt(1)')
        A(f's_branch {go}')
        A.label(nofin)
    A('s_waitcnt vmcnt(0)')
    fst(A, cfg, 6, S_SEG, 33)
    publish(A, s(S_SEG), VT, VZERO, ts=False)
    A(f's_cmp_lt_u32 {s(S_SEG)}, 64')
    A(f's_cbranch_scc1 {loop}')

def cvt(A, d, x, y): A(f'v_cvt_pk_bf16_f32 {v(d)}, {v(x)}, {v(y)}')

def role_a1(A, cfg, fail, done):
    set_scope(True)
    w = s(S_WAVE)
    lane_setup(A)
    S_M, S_TAU = S_A, S_B
    A(f's_mul_i32 {s(S_M)}, {s(S_IDX)}, 43')
    A(f's_lshr_b32 {s(S_M)}, {s(S_M)}, 7')
    A(f's_mul_i32 {s(S_TMP)}, {s(S_M)}, 3')
    A(f's_sub_u32 {s(S_TMP)}, {s(S_IDX)}, {s(S_TMP)}')
    A(f's_mul_i32 {s(S_TAU)}, {s(S_TMP)}, 12')
    A(f's_mul_i32 {s(S_TMP)}, {w}, 3')
    A(f's_add_u32 {s(S_TAU)}, {s(S_TAU)}, {s(S_TMP)}')
    A('v_lshrrev_b32 v68, 1, v79'); A('v_mul_u32_u24 v68, 3456, v68')
    A('v_and_b32 v72, 1, v79'); A('v_lshlrev_b32 v72, 4, v72'); A('v_add_u32 v68, v68, v72')
    A('v_lshrrev_b32 v69, 3, v79'); A('v_mul_u32_u24 v69, 3456, v69')
    A('v_mul_u32_u24 v72, 36, v76'); A('v_add_u32 v69, v69, v72')
    blocks = []
    S_DT, S_CT = 47, 50
    for t in range(3):
        A(f's_add_u32 {s(S_CT+t)}, {s(S_TAU)}, {t}')
        A(f's_mul_i32 {s(S_DT+t)}, {s(S_M)}, 1152')
        A(f's_mul_i32 {s(S_TMP)}, {s(S_CT+t)}, 36')
        A(f's_sub_u32 {s(S_TMP+1)}, {s(S_CT+t)}, 32')
        A(f's_mul_i32 {s(S_TMP+1)}, {s(S_TMP+1)}, 288')
        A(f's_add_u32 {s(S_TMP+1)}, {s(S_TMP+1)}, 32')
        A(f's_cmp_ge_u32 {s(S_CT+t)}, 32')
        A(f's_cselect_b32 {s(S_TMP)}, {s(S_TMP+1)}, {s(S_TMP)}')
        A(f's_add_u32 {s(S_DT+t)}, {s(S_DT+t)}, {s(S_TMP)}')
    order = [(t, ks) for t in range(3) for ks in range(18)] if cfg.get('TMAJOR') else [(t, ks) for ks in range(18) for t in range(3)]
    for (t, ks) in order:
        def issue(A, t=t, ks=ks):
            lo = A.newlabel('a1lo'); en = A.newlabel('a1en')
            A(f's_add_u32 {s(S_SOFF)}, {s(S_DT+t)}, {ks*32*3456}')
            A(f's_cmp_ge_u32 {s(S_CT+t)}, 32')
            A(f's_cbranch_scc1 {lo}')
            dma16(A, 68, s(S_SOFF))
            A(f's_branch {en}')
            A.label(lo)
            for q in range(4):
                A(f's_mov_b32 m0, {s(S_M0)}')
                A(f'buffer_load_dword v69, {s(S_SRD,4)}, {s(S_SOFF)} offen lds')
                if q < 3:
                    A(f's_add_u32 {s(S_SOFF)}, {s(S_SOFF)}, {8*3456}')
                    A(f's_add_u32 {s(S_M0)}, {s(S_M0)}, 256')
            A.label(en)
        blocks.append(dict(issue=issue, dst=lambda half, t=t, ks=ks: a(t*72 + ks*4 + 2*half, 2)))
    block_loader(A, blocks, KA_WQKV, 576*3456, per_round=27)
    VL16, VRD, VPOLL, VFLAG, VZERO, VT, VL8 = 60, 61, 62, 63, 64, 65, 66
    A(f'v_lshlrev_b32 {v(VL16)}, 4, v79')
    A(f'v_lshlrev_b32 {v(VL8)}, 3, v79')
    A(f'v_mov_b32 {v(VZERO)}, 0')
    sel_layer(A, S_TMP+2, [R_R0, R_RB[0]])
    flagaddr(A, VPOLL, s(S_TMP+2), 16)
    VPOLLN, SPX = 67, S_X
    A(f's_lshl_b32 {s(SPX)}, {s(S_L)}, 9')
    A(f'v_xor_b32 {v(VPOLLN)}, {s(SPX)}, {v(VPOLL)}')
    VPD, VFD = 68, 69
    sel_layer(A, S_TMP+2, R_ATTA)
    flagaddr(A, VPD, s(S_TMP+2), 64)
    own_flag(A)
    sel_layer(A, S_SRC, WS_XNA)
    sel_layer(A, S_DST, WS_QKVA)
    A(f's_mul_i32 {s(S_TMP)}, {s(S_M)}, 36864')
    A(f's_add_u32 {s(S_DST)}, {s(S_DST)}, {s(S_TMP)}')
    A(f's_lshl_b32 {s(S_TMP)}, {s(S_TAU)}, 10')
    A(f's_add_u32 {s(S_DST)}, {s(S_DST)}, {s(S_TMP)}')
    cfg['barrier_wait'](A)
    ACC = lambda t, tt: t*8 + tt*4
    def epi(swap):
        def f(A):
            for t in range(3):
                b = t*8
                cvt(A, b, b, b+1); cvt(A, b+1, b+2, b+3); cvt(A, b+2, b+4, b+5); cvt(A, b+3, b+6, b+7)
                if swap:
                    A(f'buffer_store_dwordx4 {v(b,4)}, {v(VL16)}, {s(S_WS,4)}, {s(S_DST)} offen offset:{t*1024}' + SCOPE[0])
                else:
                    A(f'buffer_store_dwordx2 {v(b,2)}, {v(VL8)}, {s(S_WS,4)}, {s(S_DST)} offen offset:{t*1024}' + SCOPE[0])
                    A(f'buffer_store_dwordx2 {v(b+2,2)}, {v(VL8)}, {s(S_WS,4)}, {s(S_DST)} offen offset:{t*1024+512}' + SCOPE[0])
            A(f's_add_u32 {s(S_DST)}, {s(S_DST)}, {SEG_QKVA}')
        return f
    lv = A.newlabel('a1v')
    A(f's_cmp_eq_u32 {s(S_M)}, 2')
    A(f's_cbranch_scc1 {lv}')
    for swap in (False, True):
        if swap: A.label(lv); A.flush()
        P = dict(name='A1', ILV=not cfg.get('NOILVALL'), K2=[], NT=3, NKS=18, D=3, W=lambda t, ks: a(t*72 + ks*4, 4), ACC=ACC, RING=24, VL16=VL16, VRD=VRD, VPOLL=VPOLL,
                 VFLAG=VFLAG, VZERO=VZERO, VT=VT, nst=(3 if swap else 6), swap=lambda t, sw=swap: sw, epilogue=epi(swap), src_stride=SEG_XN,
                 VPOLLN=VPOLLN, SPX=SPX, dst_ring=ring('QKVA'), dst_stride=SEG_QKVA, down=dict(VP=VPD, VF=VFD, back=ring('QKVA')-1))
        gemm_loop(A, cfg, P, fail)
        A(f's_branch {done}')

def sel_layer(A, sdst, vals):
    A(f's_mul_i32 {s(sdst)}, {s(S_L)}, {hex(vals[1]-vals[0])}')
    A(f's_add_u32 {s(sdst)}, {s(sdst)}, {hex(vals[0])}')

def part_store_addr(A, vdst):
    A(f'v_lshrrev_b32 v72, 3, v78'); A(f'v_mul_u32_u24 v72, 18432, v72')
    A(f'v_lshlrev_b32 v73, 7, v77'); A(f'v_add_u32 v72, v72, v73')
    A(f'v_lshlrev_b32 v73, 4, v76'); A(f'v_add_u32 {v(vdst)}, v72, v73')

def part_epilogue(NT, VPS, stride):
    def f(A):
        A(f's_add_u32 {s(S_DST2)}, {s(S_DST)}, 36864')
        for t in range(NT):
            for tt in range(2):
                A(f'buffer_store_dwordx4 {v(t*8+tt*4,4)}, {v(VPS)}, {s(S_WS,4)}, {s(S_DST2 if tt else S_DST)} offen offset:{t*512}' + SCOPE[0])
        A(f's_add_u32 {s(S_DST)}, {s(S_DST)}, {stride}')
    return f

def role_a3(A, cfg, fail, done):
    set_scope(True)
    w = s(S_WAVE)
    lane_setup(A)
    S_T0 = S_A
    A(f's_mul_i32 {s(S_T0)}, {s(S_IDX)}, 12')
    A(f's_mul_i32 {s(S_TMP)}, {w}, 3')
    A(f's_add_u32 {s(S_T0)}, {s(S_T0)}, {s(S_TMP)}')
    A(f's_lshl_b32 {s(S_B)}, {s(S_T0)}, 5')
    A('v_lshrrev_b32 v70, 1, v79')
    A('v_lshrrev_b32 v71, 4, v70')
    A('v_and_b32 v72, 15, v70')
    A('v_mul_u32_u24 v73, 18, v71'); A('v_add_u32 v73, v73, v72'); A('v_mul_u32_u24 v68, 1152, v73')
    A('v_mul_u32_u24 v73, 144, v71')
    A('v_lshrrev_b32 v71, 1, v72'); A('v_mul_u32_u24 v71, 18, v71'); A('v_add_u32 v73, v73, v71')
    A('v_and_b32 v71, 1, v72'); A('v_add_u32 v73, v73, v71'); A('v_add_u32 v73, 16, v73')
    A('v_mul_u32_u24 v69, 1152, v73')
    A('v_and_b32 v72, 1, v79'); A('v_lshlrev_b32 v72, 4, v72')
    A('v_add_u32 v68, v68, v72'); A('v_add_u32 v69, v69, v72')
    blocks = []
    order = [(t, ks) for t in range(3) for ks in range(18)] if cfg.get('TMAJOR') else [(t, ks) for ks in range(18) for t in range(3)]
    for (t, ks) in order:
        def issue(A, t=t, ks=ks):
            off = (ks*36*1152 if ks < 16 else (ks-16)*288*1152) + t*32
            A(f's_add_u32 {s(S_SOFF)}, {s(S_B)}, {off}')
            dma16(A, 68 if ks < 16 else 69, s(S_SOFF))
        blocks.append(dict(issue=issue, dst=lambda half, t=t, ks=ks: a(t*72 + ks*4 + 2*half, 2)))
    block_loader(A, blocks, KA_AWO, 576*1152, per_round=27)
    VL16, VRD, VPOLL, VFLAG, VZERO, VT, VPS = 60, 61, 62, 63, 64, 65, 66
    A(f'v_lshlrev_b32 {v(VL16)}, 4, v79')
    A(f'v_mov_b32 {v(VZERO)}, 0')
    sel_layer(A, S_TMP+2, R_ATTA)
    flagaddr(A, VPOLL, s(S_TMP+2), 64)
    VPD, VFD = 67, 68
    sel_layer(A, S_TMP+2, R_RA)
    flagaddr(A, VPD, s(S_TMP+2), 16)
    own_flag(A)
    part_store_addr(A, VPS)
    sel_layer(A, S_SRC, WS_OA)
    sel_layer(A, S_DST, WS_PA)
    A(f's_lshl_b32 {s(S_TMP)}, {s(S_T0)}, 9')
    A(f's_add_u32 {s(S_DST)}, {s(S_DST)}, {s(S_TMP)}')
    cfg['barrier_wait'](A)
    P = dict(name='A3', ILV=not cfg.get('NOILVALL'), K2=[13], NT=3, NKS=18, D=3, W=lambda t, ks: a(t*72 + ks*4, 4), ACC=lambda t, tt: t*8+tt*4, RING=24, VL16=VL16, VRD=VRD, VPOLL=VPOLL,
             VFLAG=VFLAG, VZERO=VZERO, VT=VT, nst=6, swap=lambda t: False, epilogue=part_epilogue(3, VPS, SEG_PA), src_stride=SEG_XN,
             src_ring=ring('OA'), dst_ring=ring('PA'), dst_stride=SEG_PA, down=dict(VP=VPD, VF=VFD, back=ring('PA')-1))
    gemm_loop(A, cfg, P, fail)
    A(f's_branch {done}')

def role_b3(A, cfg, fail, done):
    set_scope(True)
    w = s(S_WAVE)
    lane_setup(A)
    init_defer(A, cfg, fail)
    S_KQ, S_T0 = S_A, S_B
    A(f's_mul_i32 {s(S_KQ)}, {s(S_IDX)}, 43')
    A(f's_lshr_b32 {s(S_KQ)}, {s(S_KQ)}, 7')
    A(f's_mul_i32 {s(S_TMP)}, {s(S_KQ)}, 3')
    A(f's_sub_u32 {s(S_TMP)}, {s(S_IDX)}, {s(S_TMP)}')
    A(f's_mul_i32 {s(S_T0)}, {s(S_TMP)}, 12')
    A(f's_mul_i32 {s(S_TMP)}, {w}, 3')
    A(f's_add_u32 {s(S_T0)}, {s(S_T0)}, {s(S_TMP)}')
    A(f's_mul_i32 {s(S_C)}, {s(S_KQ)}, {1024*1152}')
    A(f's_lshl_b32 {s(S_TMP)}, {s(S_T0)}, 5')
    A(f's_add_u32 {s(S_C)}, {s(S_C)}, {s(S_TMP)}')
    A('v_lshrrev_b32 v68, 1, v79'); A('v_mul_u32_u24 v68, 1152, v68')
    A('v_and_b32 v72, 1, v79'); A('v_lshlrev_b32 v72, 4, v72'); A('v_add_u32 v68, v68, v72')
    WB = 128
    blocks = []
    for ks in range(32):
        for t in range(3):
            def issue(A, t=t, ks=ks):
                A(f's_add_u32 {s(S_SOFF)}, {s(S_C)}, {ks*32*1152 + t*32}')
                dma16(A, 68, s(S_SOFF))
            blocks.append(dict(issue=issue, dst=lambda half, t=t, ks=ks: wreg_lin(t*128 + ks*4 + 2*half, 2, WB)))
    block_loader(A, blocks, KA_WO, 4096*1152, per_round=32)
    VL16, VRD, VPOLL, VFLAG, VZERO, VT, VPS = 60, 61, 62, 63, 64, 65, 66
    A(f'v_lshlrev_b32 {v(VL16)}, 4, v79')
    A(f'v_mov_b32 {v(VZERO)}, 0')
    sel_layer(A, S_TMP+2, R_ATTB)
    A(f's_lshl_b32 {s(S_TMP)}, {s(S_KQ)}, 1')
    A(f's_add_u32 {s(S_TMP+2)}, {s(S_TMP+2)}, {s(S_TMP)}')
    flagaddr(A, VPOLL, s(S_TMP+2), 8)
    VPD, VFD = 67, 68
    sel_layer(A, S_TMP+2, R_RB)
    flagaddr(A, VPD, s(S_TMP+2), 32)
    own_flag(A)
    part_store_addr(A, VPS)
    sel_layer(A, S_SRC, WS_OB)
    A(f's_lshl_b32 {s(S_TMP)}, {s(S_KQ)}, 16')
    A(f's_add_u32 {s(S_SRC)}, {s(S_SRC)}, {s(S_TMP)}')
    sel_layer(A, S_DST, WS_PB)
    A(f's_mul_i32 {s(S_TMP)}, {s(S_KQ)}, 73728')
    A(f's_add_u32 {s(S_DST)}, {s(S_DST)}, {s(S_TMP)}')
    A(f's_lshl_b32 {s(S_TMP)}, {s(S_T0)}, 9')
    A(f's_add_u32 {s(S_DST)}, {s(S_DST)}, {s(S_TMP)}')
    cfg['barrier_wait'](A)
    P = dict(name='B3', ILV=not cfg.get('NOILVALL'), K2=[17, 24], NT=3, NKS=32, D=3, W=lambda t, ks: wreg_lin(t*128 + ks*4, 4, WB), ACC=lambda t, tt: t*8+tt*4, RING=24, VL16=VL16, VRD=VRD, VPOLL=VPOLL,
             VFLAG=VFLAG, VZERO=VZERO, VT=VT, nst=6, swap=lambda t: False, epilogue=part_epilogue(3, VPS, SEG_PB), src_stride=SEG_OB, KMID=10,
             src_ring=ring('OB'), dst_ring=ring('PB'), dst_stride=SEG_PB, down=dict(VP=VPD, VF=VFD, back=ring('PB'), odd=True))
    gemm_loop(A, cfg, P, fail)
    A(f's_branch {done}')

def role_b1(A, cfg, fail, done):
    set_scope(False)
    w = s(S_WAVE)
    lane_setup(A)
    if cfg.get('XH'): A(f's_xor_b32 {s(S_IDX)}, {s(S_IDX)}, {cfg["XH"]}')
    init_defer(A, cfg, fail)
    issue_half, consume_half = qkv_loader(A, True)
    issue_half(0); issue_half(1)
    for hf in range(6):
        A(f's_waitcnt vmcnt({18 if hf < 5 else 0})')
        A('s_barrier')
        consume_half(hf)
        A('s_barrier')
        if hf + 2 < 6: issue_half(hf + 2)
    init_signal(A, cfg, 64, 65)
    if cfg.get('DBGI'): dstamp(A, cfg, 9, 64, None, 64, 65); dstamp(A, cfg, 10, 96, None, 64, 65)
    VL16, VRD, VPOLL, VFLAG, VZERO, VT = 64, 65, 66, 67, 68, 69
    A(f'v_lshlrev_b32 {v(VL16)}, 4, v79')
    A(f'v_mov_b32 {v(VZERO)}, 0')
    sel_layer(A, S_TMP+2, R_RA)
    flagaddr(A, VPOLL, s(S_TMP+2), 16)
    own_flag(A)
    sel_layer(A, S_SRC, WS_XNB)
    A(f's_mul_i32 {s(S_DST)}, {s(S_L)}, {QKVX_STRIDE}')
    A(f's_mul_i32 {s(S_TMP)}, {s(S_IDX)}, 24576')
    A(f's_add_u32 {s(S_DST)}, {s(S_DST)}, {s(S_TMP)}')
    A(f's_lshl_b32 {s(S_TMP)}, {w}, 10')
    A(f's_add_u32 {s(S_DST)}, {s(S_DST)}, {s(S_TMP)}')
    A(f's_add_u32 {s(S_DST)}, {s(S_DST)}, {WS_QKVX}')
    cfg['barrier_wait'](A)
    def W(t, ks): return [WQ, WK, WV][t//2](t % 2, ks)
    def ACC(t, tt):
        m = t//2
        return (m*2 + tt)*8 + (t % 2)*4 if m < 2 else 32 + (t % 2)*8 + tt*4
    def epi(A):
        for m in range(2):
            for tt in range(2):
                b = (m*2+tt)*8
                cvt(A, b, b, b+1); cvt(A, b+1, b+2, b+3); cvt(A, b+2, b+4, b+5); cvt(A, b+3, b+6, b+7)
                A(f's_add_u32 {s(S_DST2)}, {s(S_DST)}, {m*8192 + tt*4096}')
                A(f'buffer_store_dwordx4 {v(b,4)}, {v(VL16)}, {s(S_WS,4)}, {s(S_DST2)} offen sc1')
        A(f's_lshl_b32 {s(S_TMP)}, {w}, 10')
        A(f's_add_u32 {s(S_DST2)}, {s(S_DST)}, {s(S_TMP)}')
        A(f's_add_u32 {s(S_DST2)}, {s(S_DST2)}, 16384')
        for t in range(2):
            b = 32 + t*8
            cvt(A, b, b, b+1); cvt(A, b+1, b+2, b+3); cvt(A, b+2, b+4, b+5); cvt(A, b+3, b+6, b+7)
            A(f'buffer_store_dwordx4 {v(b,4)}, {v(VL16)}, {s(S_WS,4)}, {s(S_DST2)} offen offset:{t*1024} sc1')
        A(f's_add_u32 {s(S_DST)}, {s(S_DST)}, {32*24576}')
    EB = []
    for m in range(2):
        for tt in range(2):
            b = (m*2+tt)*8
            ops = [lambda b=b, i=i: cvt(A, b+i, b+2*i, b+2*i+1) for i in range(4)]
            def stq(b=b, m=m, tt=tt):
                A(f's_add_u32 {s(S_DST2)}, {s(S_DST)}, {m*8192 + tt*4096}')
                A(f'buffer_store_dwordx4 {v(b,4)}, {v(VL16)}, {s(S_WS,4)}, {s(S_DST2)} offen sc1')
            EB.append(dict(tiles=[(2*m, tt), (2*m+1, tt)], ops=ops + [stq]))
    for t in range(2):
        b = 32 + t*8
        ops = [lambda b=b, i=i: cvt(A, b+i, b+2*i, b+2*i+1) for i in range(4)]
        def stv(b=b, t=t):
            if t == 0:
                A(f's_lshl_b32 {s(S_TMP)}, {w}, 10')
                A(f's_add_u32 {s(S_DST2)}, {s(S_DST)}, {s(S_TMP)}')
                A(f's_add_u32 {s(S_DST2)}, {s(S_DST2)}, 16384')
            A(f'buffer_store_dwordx4 {v(b,4)}, {v(VL16)}, {s(S_WS,4)}, {s(S_DST2)} offen offset:{t*1024} sc1')
            if t == 1: A(f's_add_u32 {s(S_DST)}, {s(S_DST)}, {32*24576}')
        EB.append(dict(tiles=[(4+t, 0), (4+t, 1)], ops=ops + [stv]))
    P = dict(name='B1', ILV=True, K2=[9, 13], epi_blocks=EB, NT=6, NKS=18, D=2, W=W, ACC=ACC, RING=48, VL16=VL16, VRD=VRD, VPOLL=VPOLL, VFLAG=VFLAG, VZERO=VZERO, VT=VT,
             nst=6, swap=lambda t: t >= 4, epilogue=epi, src_stride=SEG_XN, KMID=6)
    gemm_loop(A, cfg, P, fail)
    A(f's_branch {done}')
```

```python
import sys
from asm import *
from common import *
from chain import *
from roles import *
from roles2 import *
import chain2, chain3

def barrier_arrive(A):
    A('s_waitcnt vmcnt(0)')
    A('s_barrier')
    skip = A.newlabel('gbskip')
    A(f's_cmp_lg_u32 {s(S_WAVE)}, 0')
    A(f's_cbranch_scc1 {skip}')
    A(f's_lshl_b32 {s(S_TMP)}, {s(S_XCC)}, 2')
    A(f'v_mov_b32 v2, {s(S_TMP)}')
    A(f'v_mov_b32 v3, 1')
    A(f's_mov_b64 exec, 1')
    A(f'global_atomic_add v2, v3, {s(S_DBG,2)} offset:{DBG_ARRIVE*4}')
    A(f's_mov_b64 exec, -1')
    A.label(skip)

def ctr_addr(A, va, vt):
    A(f'v_lshrrev_b32 {v(vt)}, 2, {v(va)}')
    A(f'v_mul_u32_u24 {v(vt)}, {128 - 16}, {v(vt)}')
    A(f'v_lshlrev_b32 {v(va)}, 2, {v(va)}')
    A(f'v_add_u32 {v(va)}, {v(va)}, {v(vt)}')

TWIN = {}
def norm(lines):
    import re
    return [re.sub(r'\.[A-Za-z0-9]+_\d+', '.L', x) for x in lines]

def barrier_wait(A, vl='v79', sh=0, va=72, vb=73, vz=74):
    re_ = A.newlabel('gbre'); ok = A.newlabel('gbok')
    A(f'v_mov_b32 {v(vz)}, 0')
    tstamp(A, CFG, 100, va, vz)
    A(f's_mov_b32 {s(S_SPIN)}, {SPIN_LIMIT}')
    if sh: A(f'v_lshrrev_b32 {v(va)}, {sh}, {vl}'); A(f'v_and_b32 {v(va)}, 7, {v(va)}')
    else: A(f'v_and_b32 {v(va)}, 7, {vl}')
    ctr_addr(A, va, vb)
    A.label(re_)
    A(f'global_load_dword {v(vb)}, {v(va)}, {s(S_DBG,2)} offset:{DBG_ARRIVE*4} sc1')
    A('s_waitcnt vmcnt(0)')
    A(f'v_readlane_b32 {s(S_TMP)}, {v(vb)}, 0')
    for i in range(1, 8):
        A(f'v_readlane_b32 {s(S_TMP+1)}, {v(vb)}, {i}')
        A(f's_add_u32 {s(S_TMP)}, {s(S_TMP)}, {s(S_TMP+1)}')
    A(f's_cmp_ge_u32 {s(S_TMP)}, 256')
    A(f's_cbranch_scc1 {ok}')
    spin_check(A, re_, 'L_FAIL')
    A.label(ok)
    tstamp(A, CFG, 101, va, vz)
    tw = TWIN.get('cur')
    if tw:
        name, slow = tw
        if not slow:
            A(f'v_cmp_ne_u32 vcc, 32, {v(vb)}')
            TWIN['pre'] = norm(A.lines[TWIN['start']:])
            A(f's_cbranch_vccnz {name}')
        else:
            A(f'v_cmp_ne_u32 vcc, 32, {v(vb)}')
            m = norm(A.unmute())
            assert m == TWIN['pre'], 'twin prefix differs'
            A.label(name); A.flush()

def build(cfg):
    A = Asm()
    CFG.clear(); CFG.update(cfg)
    JIT[0] = int(cfg.get('JITTER', 0))
    PSLEEP[0] = int(cfg.get('PSLEEP', 0))
    A.raw(open('cdna_kernels/' + KNAME + '.s.ref').read().split('; Override launch')[0].rstrip('\n'))
    A.raw('; Override launch geometry by editing the next line (default: block=256,')
    A.raw('; @launch grid=(256,1,1) block=(256,1,1) lds=163840')
    A.raw('.amdgcn_target "amdgcn-amd-amdhsa--gfx950"')
    A.raw('.text')
    A.raw(f'.globl {KNAME}_kernel')
    A.raw('.p2align 8')
    A.raw(f'.type {KNAME}_kernel,@function')
    A.raw(f'{KNAME}_kernel:')
    A(f's_cmp_ge_u32 {s(S_WG)}, 256')
    A('s_cbranch_scc1 L_END')
    A(f's_load_dwordx2 {s(S_PTR,2)}, {s(S_KA,2)}, {KA_WS}')
    A(f's_load_dwordx2 {s(S_DBG,2)}, {s(S_KA,2)}, {KA_DBG}')
    if cfg.get('DBGT'): A('s_memrealtime s[94:95]')
    A(f's_getreg_b32 {s(S_XCC)}, hwreg(HW_REG_XCC_ID, 0, 4)')
    A(f'v_lshrrev_b32 v1, 6, v0')
    A(f'v_readfirstlane_b32 {s(S_WAVE)}, v1')
    A('s_waitcnt lgkmcnt(0)')
    srd_from_ptr(A, S_WS, S_PTR, WS_SIZE)
    A(f's_and_b32 {s(S_XCC)}, {s(S_XCC)}, 7')
    if cfg.get('FAKEXCC') == 1: A(f's_lshr_b32 {s(S_XCC)}, {s(S_WG)}, 4'); A(f's_min_u32 {s(S_XCC)}, {s(S_XCC)}, 7')
    if cfg.get('FAKEXCC') == 2: A(f's_cmp_eq_u32 {s(S_WG)}, 0'); A(f's_cselect_b32 {s(S_TMP)}, 1, 0'); A(f's_xor_b32 {s(S_XCC)}, {s(S_XCC)}, {s(S_TMP)}')
    sk = A.newlabel('tk')
    A(f's_lshr_b32 {s(S_TMP)}, {s(S_XCC)}, 2'); A(f's_mul_i32 {s(S_TMP)}, {s(S_TMP)}, {128 - 16}')
    A(f's_lshl_b32 {s(S_TMP+1)}, {s(S_XCC)}, 2'); A(f's_add_u32 {s(S_TMP)}, {s(S_TMP)}, {s(S_TMP+1)}')
    A(f'v_mov_b32 v8, {s(S_TMP)}')
    A(f'v_mov_b32 v9, 1')
    A(f's_cmp_lg_u32 {s(S_WAVE)}, 0')
    A(f's_cbranch_scc1 {sk}')
    A(f's_mov_b64 exec, 1')
    A(f'global_atomic_add v10, v8, v9, {s(S_DBG,2)} offset:{DBG_TICKET*4} sc0')
    A(f's_mov_b64 exec, -1')
    A.label(sk); A.flush()
    A(f's_cmp_ge_u32 {s(S_WG)}, {CLEAR_ONES_WG}')
    A(f's_cselect_b32 {s(S_TMP)}, -1, 0')
    for i in range(4): A(f'v_mov_b32 {v(4+i)}, {s(S_TMP)}')
    A(f's_lshl_b32 {s(S_TMP+1)}, {s(S_WG)}, 13')
    A(f'v_lshlrev_b32 v2, 4, v0')
    A(f'buffer_store_dwordx4 v[4:7], v2, {s(S_WS,4)}, {s(S_TMP+1)} offen sc1')
    A(f's_add_u32 {s(S_TMP+1)}, {s(S_TMP+1)}, 4096')
    A(f'buffer_store_dwordx4 v[4:7], v2, {s(S_WS,4)}, {s(S_TMP+1)} offen sc1')
    sk = A.newlabel('tk2')
    A(f's_cmp_lg_u32 {s(S_WAVE)}, 0')
    A(f's_cbranch_scc1 {sk}')
    A('s_waitcnt vmcnt(2)')
    A(f'v_mov_b32 v5, 0')
    A(f's_mov_b64 exec, 1')
    A(f'ds_write_b32 v5, v10')
    A(f's_mov_b64 exec, -1')
    A.label(sk); A.flush()
    A('s_waitcnt vmcnt(0) lgkmcnt(0)')
    A('s_barrier')
    sk = A.newlabel('tk3')
    A(f's_cmp_lg_u32 {s(S_WAVE)}, 0')
    A(f's_cbranch_scc1 {sk}')
    A(f's_mov_b64 exec, 1')
    A(f'global_atomic_add v8, v9, {s(S_DBG,2)} offset:{DBG_ARRIVE*4}')
    A(f's_mov_b64 exec, -1')
    A.label(sk); A.flush()
    A(f'v_mov_b32 v5, 0')
    A(f'ds_read_b32 v4, v5')
    A('s_waitcnt lgkmcnt(0)')
    A(f'v_readfirstlane_b32 {s(S_ROLE)}, v4')
    A('s_barrier')
    A(f's_cmp_ge_u32 {s(S_ROLE)}, 32')
    A('s_cbranch_scc1 L_OVER')
    A(f's_lshl_b32 {s(S_TMP)}, {s(S_XCC)}, 5')
    A(f's_add_u32 {s(S_ROLE)}, {s(S_ROLE)}, {s(S_TMP)}')
    A.label('L_HAVEROLE'); A.flush()
    cfg['barrier_wait'] = barrier_wait
    cfg['barrier_wait_chain'] = lambda A: barrier_wait(A, 'v0', 4, 8, 9, 10)
    A('v_mov_b32 v74, 0')
    tstamp(A, CFG, 102, 72, 74)
    DONE = 'L_DUMP' if cfg.get('FINE') else 'L_ENDT' if cfg.get('DBGT') else 'L_END'
    only = cfg.get('ONLY')
    T = []
    def add(name, r0, n, l, fn):
        if only is not None and name not in only.split(','): return
        T.append((name, r0, n, l, fn))
    for l in range(2):
        add('chain', R_CHAIN[l], 32, l, 'chain'); add('b1', R_B1[l], 32, l, 'b1')
        add('a1', R_A1[l], N_A1, l, 'a1'); add('atta', R_ATTA[l], N_ATTA, l, 'atta'); add('a3', R_A3[l], N_A3, l, 'a3')
        add('attb', R_ATTB[l], N_ATTB, l, 'attb'); add('b3', R_B3[l], N_B3, l, 'b3')
        add('ra', R_RA[l], 4, l, f'ra{l}'); add('rb', R_RB[l], N_RB, l, f'rb{l}')
    add('r0', R_R0, 4, 0, 'r0')
    for (name, r0, n, l, fn) in T:
        nx = A.newlabel('disp')
        A(f's_sub_u32 {s(S_IDX)}, {s(S_ROLE)}, {r0}')
        A(f's_cmp_ge_u32 {s(S_IDX)}, {n}')
        A(f's_cbranch_scc1 {nx}')
        A(f's_mov_b32 {s(S_L)}, {l}')
        if cfg.get('L1DELAY') and l == 1 and name in ('chain', 'b1', 'a1', 'a3', 'b3'):
            for _ in range(cfg['L1DELAY']): A('s_sleep 127')
        if cfg.get('L0DELAY') and l == 0 and name in ('b3',):
            for _ in range(cfg['L0DELAY']): A('s_sleep 127')
        A(f's_branch L_{fn.upper()}')
        A.label(nx)
    A('s_branch L_END')
    role_red = role_red2 if not cfg.get('OLDRED') else globals()['role_red']
    fns = {'chain': lambda: (chain_role if cfg.get('OLDCHAIN') else chain2.chain_role if cfg.get('CHAIN2') else chain3.chain_role)(A, cfg, 'L_FAIL', DONE), 'b1': lambda: role_b1(A, cfg, 'L_FAIL', DONE),
           'a1': lambda: role_a1(A, cfg, 'L_FAIL', DONE), 'atta': lambda: role_atta(A, cfg, 'L_FAIL', DONE),
           'a3': lambda: role_a3(A, cfg, 'L_FAIL', DONE), 'attb': lambda: role_attb(A, cfg, 'L_FAIL', DONE),
           'b3': lambda: role_b3(A, cfg, 'L_FAIL', DONE),
           'ra0': lambda: role_red(A, cfg, 'RA', 0, 'L_FAIL', DONE), 'ra1': lambda: role_red(A, cfg, 'RA', 1, 'L_FAIL', DONE),
           'rb0': lambda: role_red(A, cfg, 'RB', 0, 'L_FAIL', DONE), 'rb1': lambda: role_red(A, cfg, 'RB', 1, 'L_FAIL', DONE),
           'r0': lambda: role_red(A, cfg, 'R0', 0, 'L_FAIL', DONE)}
    seen = []
    for (name, r0, n, l, fn) in T:
        if fn in seen: continue
        seen.append(fn)
        A.raw('.p2align 6')
        A.label(f'L_{fn.upper()}')
        A.flush()
        twin = fn in ('chain', 'a1', 'atta', 'a3', 'attb', 'b3') and not cfg.get('NOTWIN')
        TWIN.clear()
        if twin: TWIN.update(cur=(f'L_{fn.upper()}_DEV', False), start=len(A.lines))
        fns[fn]()
        if twin:
            keys = ('ALLSC1', 'SLOW', 'SLOWV')
            old_ = {k: cfg.get(k) for k in keys}
            for k in keys: cfg[k] = 1; CFG[k] = 1
            TWIN['cur'] = (f'L_{fn.upper()}_DEV', True)
            A.mute(); A.flush()
            fns[fn]()
            assert A.saved is None
            for k in keys:
                for d in (cfg, CFG):
                    if old_[k] is None: d.pop(k, None)
                    else: d[k] = old_[k]
        TWIN.clear()
    if cfg.get('FINE'):
        A.label('L_DUMP'); A.flush()
        A('v_mov_b32 v1, 0')
        for i in range(12):
            A(f's_mov_b32 {s(S_TS)}, {s(80+i)}')
            sk = A.newlabel('dmp')
            A(f's_cmp_lg_u32 {s(S_WAVE)}, 0'); A(f's_cbranch_scc1 {sk}')
            A(f's_lshl_b32 {s(S_TS+2)}, {s(S_ROLE)}, 9')
            A(f's_add_u32 {s(S_TS+2)}, {s(S_TS+2)}, {hex(WS_TIME + (110+i)*4)}')
            A(f'v_mov_b32 v2, {s(S_TS)}')
            A('s_mov_b64 exec, 1')
            A(f'buffer_store_dword v2, v1, {s(S_WS,4)}, {s(S_TS+2)} offen')
            A.label(sk)
        A('s_branch L_END')
    A.label('L_OVER'); A.flush()
    A(f's_mov_b32 {s(S_SPIN)}, {SPIN_LIMIT}')
    A('v_and_b32 v2, 7, v0')
    ctr_addr(A, 2, 3)
    ore = A.newlabel('ovre'); ook = A.newlabel('ovok')
    A.label(ore)
    A(f'global_load_dword v3, v2, {s(S_DBG,2)} offset:{DBG_ARRIVE*4} sc1')
    A('s_waitcnt vmcnt(0)')
    A(f'v_readlane_b32 {s(S_TMP)}, v3, 0')
    for i in range(1, 8):
        A(f'v_readlane_b32 {s(S_TMP+1)}, v3, {i}')
        A(f's_add_u32 {s(S_TMP)}, {s(S_TMP)}, {s(S_TMP+1)}')
    A(f's_cmp_ge_u32 {s(S_TMP)}, 256')
    A(f's_cbranch_scc1 {ook}')
    spin_check(A, ore, 'L_FAIL')
    A.label(ook); A.flush()
    A(f's_sub_u32 {s(S_ROLE)}, {s(S_ROLE)}, 32')
    for j in range(7):
        A(f'v_readlane_b32 {s(S_TMP)}, v3, {j}')
        A(f's_max_u32 {s(S_TMP)}, {s(S_TMP)}, 32')
        A(f's_sub_u32 {s(S_TMP)}, {s(S_TMP)}, 32')
        A(f's_cmp_gt_u32 {s(S_XCC)}, {j}')
        A(f's_cselect_b32 {s(S_TMP)}, {s(S_TMP)}, 0')
        A(f's_add_u32 {s(S_ROLE)}, {s(S_ROLE)}, {s(S_TMP)}')
    for j in range(8):
        nx = A.newlabel('ovn')
        A(f'v_readlane_b32 {s(S_TMP)}, v3, {j}')
        A(f's_min_u32 {s(S_TMP)}, {s(S_TMP)}, 32')
        A(f's_sub_u32 {s(S_TMP+1)}, 32, {s(S_TMP)}')
        A(f's_cmp_ge_u32 {s(S_ROLE)}, {s(S_TMP+1)}')
        A(f's_cbranch_scc1 {nx}')
        A(f's_add_u32 {s(S_ROLE)}, {s(S_ROLE)}, {s(S_TMP)}')
        A(f's_add_u32 {s(S_ROLE)}, {s(S_ROLE)}, {32*j}')
        A('s_branch L_HAVEROLE')
        A.label(nx)
        A(f's_sub_u32 {s(S_ROLE)}, {s(S_ROLE)}, {s(S_TMP+1)}')
    A.label('L_FAIL')
    A.flush()
    A(f's_mov_b64 exec, 1')
    A(f'v_mov_b32 v1, 0')
    A(f'v_mov_b32 v2, 0xdead0000')
    A(f'v_or_b32 v2, {s(S_ROLE)}, v2')
    A(f'global_store_dword v1, v2, {s(S_DBG,2)} offset:160')
    A.label('L_END')
    A('s_endpgm')
    A.label('L_ENDT'); A.flush()
    dstamp(A, cfg, 5, 248, None, 10, 11)
    dstamp(A, cfg, 2, 0, None, 10, 11)
    dstamp(A, cfg, 4, 32, None, 10, 11)
    dstamp(A, cfg, 6, 244, None, 10, 11)
    dstamp(A, cfg, 7, 64, None, 10, 11)
    dstamp(A, cfg, 8, 96, None, 10, 11)
    dstamp(A, cfg, 9, 128, None, 10, 11)
    dstamp(A, cfg, 10, 192, None, 10, 11)
    A('s_endpgm')
    A.raw('.section .rodata,"a"')
    A.raw('.p2align 6')
    A.raw(f'.amdhsa_kernel {KNAME}_kernel')
    A.raw('  .amdhsa_next_free_vgpr 512')
    A.raw('  .amdhsa_next_free_sgpr 102')
    A.raw('  .amdhsa_accum_offset 256')
    A.raw('  .amdhsa_group_segment_fixed_size 0')
    A.raw('  .amdhsa_kernarg_size 104')
    A.raw('  .amdhsa_user_sgpr_count 2')
    A.raw('  .amdhsa_user_sgpr_kernarg_segment_ptr 1')
    A.raw('  .amdhsa_system_sgpr_workgroup_id_x 1')
    A.raw('.end_amdhsa_kernel')
    return A

if __name__ == '__main__':
    out = sys.argv[1]
    cfg = {}
    for kv in sys.argv[2:]:
        k, _, val = kv.partition('=')
        cfg[k] = (int(val) if val.lstrip('-').isdigit() else val) if val else 1
    if not cfg.get('RAW'):
        for k in ('PREWAIT1', 'PREWAIT2', 'BAR2', 'NTQ'): cfg.setdefault(k, 1)
    A = build(cfg)
    open(out, 'w').write(A.text())
    print('instrs', A.nins)
```

```python
from asm import *
from common import *
from chain import (init_signal, init_defer, jitter, dstamp, S_KA, S_WG, S_WS, S_SRD, S_DBG, S_ROLE, S_WAVE, S_XCC, S_TMP, S_SPIN, S_PTR, S_MODE, MF, MF16,
                   srd_from_ptr, load_ptr_srd, spin_check, tstamp, fst, f32, S_SOFF, S_M0, S_TS)

SM = 'v_smfmac_f32_16x16x64_bf16'
L_MEM = 0
L_QK = 9216
L_O = 13312
L_KX = 15360
L_VX = L_KX + 8192
L_WO = 31744
L_DUMMY = L_WO + 131072
L_STG = 16384

V_L16, V_L8, V_IDX, V_PLD, V_MST, V_QKW, V_OW, V_FLAG = range(8)
M = lambda k: 8 + 4*k
AQ0, AQ1, AK0, AK1, AV0 = 44, 48, 52, 56, 60
AV1 = AQ0
def WQ(t, ks): f = t*9 + ks; return a(8*f, 8)
def WK(t, ks):
    f = 18 + t*9 + ks
    return a(8*f, 8) if f < 32 else v(64 + 8*(f-32), 8)
def WV(t, ks): return v(96 + 72*t + 8*ks, 8)
def WOR(ks): return v(240 + 8*ks, 8)
def wsub(m, t, ks, i4):
    if m == 0: return a(8*(t*9+ks) + 2*i4, 2)
    if m == 1:
        f = 18 + t*9 + ks
        return a(8*f + 2*i4, 2) if f < 32 else v(64 + 8*(f-32) + 2*i4, 2)
    return v(96 + 72*t + 8*ks + 2*i4, 2)

S_H = 26; S_L = 27; S_STEP = 28
S_PL = 30
S_PST = 38; S_PST2 = 39
S_MSA = 40
S_MSB = 42
S_ML = 44
S_FLAGIN = 50; S_FLAGOUT = 51
S_KX = 52; S_KVM = 53
S_EXO = 54
S_EXS = 56
S_SC = 58
S_NSC = 60
S_HAS2 = 61
S_W1024 = 64; S_W256 = 65; S_VXO = 66; S_WBO = 67; S_KXM0 = 68; S_KVM2 = 69
S_T0 = 70
S_T1 = 72
S_MSK = 74
S_M1 = 76
S_ONE = 78
S_PEND = 99
S_ST = 80

class LQ:
    def __init__(self, A): self.A = A; self.q = []
    def op(self, text, tag=None):
        self.A(text); self.q.append(tag if tag is not None else object())
    def wait(self, *tags):
        idx = [i for i, t in enumerate(self.q) if t in tags]
        if not idx: return
        i = max(idx)
        n = len(self.q) - 1 - i
        self.A(f's_waitcnt lgkmcnt({min(n, 15)})')
        keep = min(n, 15)
        self.q = self.q[len(self.q)-keep:] if keep else []
    def waitall(self):
        self.A('s_waitcnt lgkmcnt(0)'); self.q = []

def stamp(A, cfg, idx):
    if not cfg.get('STAMPS'): return
    A(f's_memtime {s(S_T1,2)}')
    A('s_waitcnt lgkmcnt(0)')
    A(f's_mov_b32 {s(S_ST+idx)}, {s(S_T1)}')

def chain_init(A, cfg):
    w = s(S_WAVE)
    init_defer(A, cfg, 'L_FAIL')
    TID, LN, COL, G = 63, 62, 61, 60
    A(f'v_mov_b32 {v(TID)}, v0')
    A(f'v_and_b32 {v(LN)}, 63, v0')
    A(f'v_and_b32 {v(COL)}, 15, {v(LN)}')
    A(f'v_lshrrev_b32 {v(G)}, 4, {v(LN)}')
    A(f'v_lshlrev_b32 v10, 1, {v(G)}')
    A(f'v_xor_b32 v10, v10, {v(COL)}')
    A(f'v_xor_b32 v11, 8, v10')
    A(f'v_lshlrev_b32 v10, 4, v10')
    A(f'v_lshlrev_b32 v11, 4, v11')
    A(f'v_lshlrev_b32 v12, 13, {v(G)}')
    A(f'v_add_u32 v8, v10, v12')
    A(f'v_add_u32 v9, v11, v12')
    A(f'v_lshlrev_b32 v12, 17, {v(G)}')
    A(f'v_add_u32 v26, v10, v12')
    A(f'v_add_u32 v27, v11, v12')
    A(f'v_lshrrev_b32 v10, 2, {v(COL)}')
    A(f'v_and_b32 v11, 3, {v(COL)}')
    A(f'v_and_b32 v12, 1, {v(G)}')
    A(f'v_lshlrev_b32 v12, 2, v12')
    A(f'v_or_b32 v12, v12, v10')
    A(f'v_lshlrev_b32 v12, 1, v12')
    A(f'v_lshrrev_b32 v13, 1, v11')
    A(f's_lshl_b32 {s(S_TMP)}, {w}, 2')
    A(f'v_add_u32 v13, {s(S_TMP)}, v13')
    A(f'v_and_b32 v11, 1, v11')
    A(f'v_lshlrev_b32 v11, 3, v11')
    A(f'v_lshlrev_b32 v14, 4, {v(G)}')
    A(f'v_add_u32 v14, v14, v10')
    A(f'v_lshlrev_b32 v14, 8, v14')
    A(f'v_add_u32 v14, v14, v11')
    A(f'v_xor_b32 v15, v13, v12')
    A(f'v_add_u32 v13, 2, v13')
    A(f'v_xor_b32 v16, v13, v12')
    A(f'v_lshlrev_b32 v15, 4, v15')
    A(f'v_lshlrev_b32 v16, 4, v16')
    A(f'v_add_u32 v15, v15, v14')
    A(f'v_add_u32 v16, v16, v14')
    BUF = [L_STG + 49152*b for b in range(3)]
    TR = lambda b, t: 20 + 2*b + t
    for b in range(3):
        A(f'v_add_u32 {v(TR(b,0))}, {BUF[b]}, v15')
        A(f'v_add_u32 {v(TR(b,1))}, {BUF[b]}, v16')
    KA = [KA_WQ, KA_WK, KA_WV]
    WSZ = 576*4096*2
    def issue_part(p):
        m, part = p // 3, p % 3
        load_ptr_srd(A, S_SRD, KA[m], WSZ)
        A(f's_lshl_b32 {s(S_T0)}, {s(S_H)}, 8')
        A(f's_lshl_b32 {s(S_M0)}, {w}, 10')
        A(f's_add_u32 {s(S_M0)}, {s(S_M0)}, {BUF[p % 3]}')
        for j in range(12):
            b = part*3 + (j >> 2)
            if b < 8:
                row = 144*(b >> 1) + 16 + 64*(b & 1) + 4*(j & 3)
                A(f's_lshl_b32 {s(S_SOFF)}, {w}, 13')
                vreg = 26 + (j & 1)
            else:
                row = 144*(j & 3)
                A(f's_lshl_b32 {s(S_SOFF)}, {w}, 15')
                vreg = 8 + (j & 1)
            A(f's_add_u32 {s(S_SOFF)}, {s(S_SOFF)}, {s(S_T0)}')
            if row: A(f's_add_u32 {s(S_SOFF)}, {s(S_SOFF)}, {row*8192}')
            A(f's_mov_b32 m0, {s(S_M0)}')
            A(f'buffer_load_dwordx4 {v(vreg)}, {s(S_SRD,4)}, {s(S_SOFF)} offen lds')
            if j < 11: A(f's_add_u32 {s(S_M0)}, {s(S_M0)}, 4096')
    def consume_part(p):
        m, part = p // 3, p % 3
        n = 0
        for t in range(2):
            for k in range(3):
                for i4 in range(4):
                    A(f'ds_read_b64_tr_b16 {wsub(m, t, part*3+k, i4)}, {v(TR(p % 3, t))} offset:{k*16384 + i4*1024}')
                    n += 1
                    if n % 8 == 0 and n < 24: A('s_waitcnt lgkmcnt(8)')
        A('s_waitcnt lgkmcnt(0)')
    def issue_wo(k):
        load_ptr_srd(A, S_SRD, KA_WO, 32*128*576*2)
        A(f's_mul_i32 {s(S_SOFF)}, {s(S_H)}, 147456')
        A(f's_lshl_b32 {s(S_M0)}, {w}, 10')
        A(f's_add_u32 {s(S_SOFF)}, {s(S_SOFF)}, {s(S_M0)}')
        if k: A(f's_add_u32 {s(S_SOFF)}, {s(S_SOFF)}, {k*36864}')
        A(f's_add_u32 {s(S_M0)}, {s(S_M0)}, {L_STG + k*36864}')
        for j in range(9):
            A(f's_mov_b32 m0, {s(S_M0)}')
            A(f'buffer_load_dwordx4 {v(V_L16)}, {s(S_SRD,4)}, {s(S_SOFF)} offen lds')
            if j < 8:
                A(f's_add_u32 {s(S_SOFF)}, {s(S_SOFF)}, 4096')
                A(f's_add_u32 {s(S_M0)}, {s(S_M0)}, 4096')
    A(f'v_lshlrev_b32 {v(V_L16)}, 4, {v(LN)}')
    A(f'v_lshlrev_b32 {v(V_L8)}, 3, {v(LN)}')
    for p in range(3): issue_part(p)
    pend = [12, 12, 12]
    for p in range(9):
        A(f's_waitcnt vmcnt({sum(pend[1:])})')
        pend = pend[1:]
        A('s_barrier')
        consume_part(p)
        A('s_barrier')
        if p + 3 < 9: issue_part(p + 3); pend.append(12)
        elif p == 6: issue_wo(0); pend.append(9)
        elif p == 7: issue_wo(1); pend.append(9)
        elif p == 8: issue_wo(2); issue_wo(3)
    A(f'v_lshrrev_b32 v10, 2, {v(COL)}')
    A(f'v_and_b32 v11, 3, {v(COL)}')
    A(f'v_lshlrev_b32 v12, 2, {v(G)}')
    A(f'v_add_u32 v12, v12, v10')
    A(f'v_mul_u32_u24 v12, 1152, v12')
    A(f'v_lshlrev_b32 v11, 3, v11')
    A(f'v_add_u32 v12, v12, v11')
    A(f's_mul_i32 {s(S_TMP)}, {w}, 288')
    A(f's_add_u32 {s(S_TMP)}, {s(S_TMP)}, {L_STG + 3*36864}')
    A(f'v_add_u32 v12, {s(S_TMP)}, v12')
    A(f's_lshl_b32 {s(S_WBO)}, {w}, 13')
    A(f's_add_u32 {s(S_WBO)}, {s(S_WBO)}, {L_WO}')
    A(f's_add_u32 {s(S_TMP)}, {s(S_WBO)}, {3*32768}')
    A(f'v_add_u32 v13, {s(S_TMP)}, {v(V_L16)}')
    A('s_waitcnt vmcnt(0)')
    A('s_barrier')
    init_signal(A, cfg, 20, 21)
    for k in (3, 2, 1, 0):
        for t in range(9):
            d = 240 + 4*k if t == 0 else 20 + 4*t
            A(f'ds_read_b64_tr_b16 {v(d,2)}, v12 offset:{t*32}')
            A(f'ds_read_b64_tr_b16 {v(d+2,2)}, v12 offset:{t*32 + 16*1152}')
        A('s_waitcnt lgkmcnt(0)')
        A('s_barrier')
        for t in range(1, 9):
            A(f'ds_write_b128 v13, {v(20+4*t,4)} offset:{(t-1)*1024}')
        if k:
            A(f'v_subrev_u32 v12, 36864, v12')
            A(f'v_subrev_u32 v13, 32768, v13')
        A('s_waitcnt lgkmcnt(0)')
    A(f'v_and_b32 v10, 2, {v(LN)}')
    A(f'v_cmp_eq_u32 vcc, 0, v10')
    A(f'v_mov_b32 v11, 0xeeeeeeee')
    A(f'v_mov_b32 v12, 0x44444444')
    A(f'v_cndmask_b32 {v(V_IDX)}, v11, v12, vcc')
    A(f's_lshl_b32 {s(S_W1024)}, {w}, 10')
    A(f's_lshl_b32 {s(S_W256)}, {w}, 8')
    A(f'v_lshlrev_b32 v10, 5, {v(COL)}')
    A(f'v_lshlrev_b32 v11, 3, {v(G)}')
    A(f'v_add_u32 v10, v10, v11')
    A(f's_add_u32 {s(S_TMP)}, {s(S_W1024)}, {L_QK}')
    A(f'v_add_u32 {v(V_QKW)}, {s(S_TMP)}, v10')
    A(f'v_lshrrev_b32 v10, 1, {v(G)}'); A(f'v_lshlrev_b32 v10, 8, v10')
    A(f'v_and_b32 v11, 1, {v(G)}'); A(f'v_lshlrev_b32 v11, 3, v11')
    A(f'v_add_u32 v10, v10, v11')
    A(f'v_lshlrev_b32 v11, 4, {v(COL)}')
    A(f'v_add_u32 v10, v10, v11')
    A(f's_lshl_b32 {s(S_TMP)}, {w}, 9')
    A(f's_add_u32 {s(S_TMP)}, {s(S_TMP)}, {L_O - 32}')
    A(f'v_add_u32 {v(V_OW)}, {s(S_TMP)}, v10')
    A(f'v_lshrrev_b32 v10, 3, {v(LN)}'); A(f'v_mul_u32_u24 v10, 9216, v10')
    A(f'v_and_b32 v11, 7, {v(LN)}'); A(f'v_lshlrev_b32 v12, 4, v11')
    A(f'v_add_u32 {v(V_PLD)}, v10, v12')
    A(f'v_bfe_u32 v12, v11, 1, 1'); A(f'v_lshlrev_b32 v10, 9, v12')
    A(f'v_bfe_u32 v12, {v(LN)}, 3, 1'); A(f'v_lshlrev_b32 v12, 5, v12'); A(f'v_add_u32 v10, v10, v12')
    A(f'v_bfe_u32 v12, {v(LN)}, 4, 1'); A(f'v_lshlrev_b32 v12, 4, v12'); A(f'v_add_u32 v10, v10, v12')
    A(f'v_and_b32 v12, 1, v11'); A(f'v_lshlrev_b32 v12, 2, v12'); A(f'v_add_u32 v10, v10, v12')
    A(f'v_lshrrev_b32 v12, 5, {v(LN)}'); A(f'v_lshlrev_b32 v12, 14, v12'); A(f'v_add_u32 v10, v10, v12')
    A(f'v_lshrrev_b32 v12, 2, v11')
    A(f's_cmp_eq_u32 {w}, 1')
    A(f's_cselect_b32 {s(S_TMP)}, 6, 3')
    A(f'v_lshlrev_b32 v12, {s(S_TMP)}, v12')
    A(f'v_add_u32 v10, v10, v12')
    A(f's_lshr_b32 {s(S_TMP)}, {s(S_H)}, 3'); A(f's_lshl_b32 {s(S_TMP)}, {s(S_TMP)}, 1')
    A(f's_and_b32 {s(S_TMP+1)}, {w}, 1'); A(f's_add_u32 {s(S_TMP)}, {s(S_TMP)}, {s(S_TMP+1)}')
    A(f's_lshl_b32 {s(S_TMP)}, {s(S_TMP)}, 10')
    A(f's_and_b32 {s(S_TMP+1)}, {s(S_H)}, 1'); A(f's_lshl_b32 {s(S_TMP+1)}, {s(S_TMP+1)}, 8'); A(f's_add_u32 {s(S_TMP)}, {s(S_TMP)}, {s(S_TMP+1)}')
    A(f's_bfe_u32 {s(S_TMP+1)}, {s(S_H)}, 0x20001'); A(f's_lshl_b32 {s(S_TMP+1)}, {s(S_TMP+1)}, 6'); A(f's_add_u32 {s(S_TMP)}, {s(S_TMP)}, {s(S_TMP+1)}')
    A(f's_bfe_u32 {s(S_TMP+1)}, {s(S_H)}, 0x10002'); A(f's_lshl_b32 {s(S_TMP+1)}, {s(S_TMP+1)}, 8')
    A(f's_and_b32 {s(S_TMP+2)}, {s(S_H)}, 1'); A(f's_lshl_b32 {s(S_TMP+2)}, {s(S_TMP+2)}, 7'); A(f's_add_u32 {s(S_TMP+1)}, {s(S_TMP+1)}, {s(S_TMP+2)}')
    A(f's_bfe_u32 {s(S_TMP+2)}, {s(S_H)}, 0x10001'); A(f's_lshl_b32 {s(S_TMP+2)}, {s(S_TMP+2)}, 3'); A(f's_add_u32 {s(S_TMP+1)}, {s(S_TMP+1)}, {s(S_TMP+2)}')
    A(f's_add_u32 {s(S_TMP+1)}, {s(S_TMP+1)}, 8192')
    A(f's_cmp_eq_u32 {w}, 1')
    A(f's_cselect_b32 {s(S_TMP)}, {s(S_TMP+1)}, {s(S_TMP)}')
    A(f'v_add_u32 {v(V_MST)}, {s(S_TMP)}, v10')
    A(f's_mul_i32 {s(S_TMP)}, {s(S_L)}, {PART_STRIDE}')
    A(f's_add_u32 {s(S_TMP)}, {s(S_TMP)}, {WS_PART}')
    A(f's_lshr_b32 {s(S_TMP+1)}, {s(S_H)}, 3'); A(f's_mul_i32 {s(S_TMP+1)}, {s(S_TMP+1)}, 2304')
    A(f's_and_b32 {s(S_TMP+2)}, {w}, 1'); A(f's_lshl_b32 {s(S_TMP+2)}, {s(S_TMP+2)}, 10'); A(f's_add_u32 {s(S_TMP+1)}, {s(S_TMP+1)}, {s(S_TMP+2)}')
    A(f's_and_b32 {s(S_TMP+2)}, {s(S_H)}, 7'); A(f's_lshl_b32 {s(S_TMP+2)}, {s(S_TMP+2)}, 7'); A(f's_add_u32 {s(S_TMP+1)}, {s(S_TMP+1)}, {s(S_TMP+2)}')
    A(f's_add_u32 {s(S_TMP+1)}, {s(S_TMP+1)}, 256')
    A(f's_bfe_u32 {s(S_PL)}, {s(S_H)}, 0x20001'); A(f's_mul_i32 {s(S_PL)}, {s(S_PL)}, 2304')
    A(f's_and_b32 {s(S_TMP+2)}, {s(S_H)}, 1'); A(f's_lshl_b32 {s(S_TMP+2)}, {s(S_TMP+2)}, 7'); A(f's_add_u32 {s(S_PL)}, {s(S_PL)}, {s(S_TMP+2)}')
    A(f's_cmp_eq_u32 {w}, 1')
    A(f's_cselect_b32 {s(S_TMP+1)}, {s(S_PL)}, {s(S_TMP+1)}')
    A(f's_add_u32 {s(S_TMP+1)}, {s(S_TMP+1)}, {s(S_TMP)}')
    for i in range(4): A(f's_add_u32 {s(S_PL+i)}, {s(S_TMP+1)}, {i*8*9216}')
    A(f's_mul_i32 {s(S_TMP+1)}, {s(S_H)}, 9216')
    A(f's_add_u32 {s(S_PST)}, {s(S_TMP)}, {s(S_TMP+1)}')
    A(f's_mul_i32 {s(S_TMP+1)}, {w}, 2304')
    A(f's_add_u32 {s(S_PST)}, {s(S_PST)}, {s(S_TMP+1)}')
    A(f's_cmp_lt_u32 {s(S_H)}, 8')
    A(f's_cselect_b32 {s(S_HAS2)}, 1, 2')
    A(f's_cmp_ge_u32 {w}, {s(S_HAS2)}')
    A(f's_cselect_b32 {s(S_HAS2)}, 1, 0')
    A(f's_mul_i32 {s(S_TMP)}, {s(S_L)}, {MEMB_STRIDE}')
    A(f's_add_u32 {s(S_MSA)}, {s(S_TMP)}, {WS_MEMB}')
    for par in range(2):
        A(f's_add_u32 {s(S_ML+3*par)}, {s(S_MSA)}, {s(S_W1024)}')
        if par: A(f's_add_u32 {s(S_ML+3*par)}, {s(S_ML+3*par)}, 0x4000')
        A(f's_add_u32 {s(S_ML+3*par+1)}, {s(S_ML+3*par)}, 4096')
        A(f's_add_u32 {s(S_ML+3*par+2)}, {s(S_MSA)}, {s(S_W256)}')
        A(f's_add_u32 {s(S_ML+3*par+2)}, {s(S_ML+3*par+2)}, {8192 + 0x4000*par}')
    A(f'v_xor_b32 {v(V_MST)}, 0x4000, {v(V_MST)}')
    A(f's_mul_i32 {s(S_TMP)}, {s(S_L)}, {QKVX_STRIDE}')
    A(f's_mul_i32 {s(S_TMP+1)}, {s(S_H)}, 24576')
    A(f's_add_u32 {s(S_KX)}, {s(S_TMP)}, {s(S_TMP+1)}')
    A(f's_lshl_b32 {s(S_TMP+1)}, {w}, 12')
    A(f's_add_u32 {s(S_KX)}, {s(S_KX)}, {s(S_TMP+1)}')
    A(f's_add_u32 {s(S_KX)}, {s(S_KX)}, {WS_QKVX + 8192}')
    A(f's_add_u32 {s(S_KXM0)}, {s(S_TMP+1)}, {L_KX}')
    A(f's_lshl_b32 {s(S_VXO)}, {w}, 11')
    A(f's_mul_i32 {s(S_TMP)}, {s(S_L)}, {KVM_STRIDE}')
    A(f's_lshl_b32 {s(S_TMP+1)}, {s(S_H)}, 13')
    A(f's_add_u32 {s(S_TMP)}, {s(S_TMP)}, {s(S_TMP+1)}')
    A(f's_add_u32 {s(S_TMP)}, {s(S_TMP)}, {WS_KVM}')
    A(f's_add_u32 {s(S_KVM)}, {s(S_TMP)}, {s(S_W1024)}')
    A(f's_lshl_b32 {s(S_TMP+1)}, {w}, 9')
    A(f's_add_u32 {s(S_KVM2)}, {s(S_TMP)}, {s(S_TMP+1)}')
    A(f's_add_u32 {s(S_KVM2)}, {s(S_KVM2)}, 4096')
    A(f's_lshl_b32 {s(S_TMP)}, {s(S_ROLE)}, 7')
    A(f's_lshl_b32 {s(S_TMP+1)}, {w}, 2')
    A(f's_add_u32 {s(S_FLAGOUT)}, {s(S_TMP)}, {s(S_TMP+1)}')
    A(f's_mul_i32 {s(S_TMP)}, {s(S_L)}, {R_B1[1]-R_B1[0]}')
    A(f's_add_u32 {s(S_TMP)}, {s(S_TMP)}, {s(S_H)}')
    A(f's_add_u32 {s(S_TMP)}, {s(S_TMP)}, {R_B1[0]}')
    A(f's_lshl_b32 {s(S_TMP)}, {s(S_TMP)}, 7')
    A(f's_mov_b32 {s(S_FLAGIN)}, {s(S_TMP)}')
    for sr, val in ((S_EXO, 0xCCCCCCCCCCCCCCCC), (S_EXS, 0x000000FF000000FF)):
        A(f's_mov_b32 {s(sr)}, {hex(val & 0xffffffff)}')
        A(f's_mov_b32 {s(sr+1)}, {hex(val >> 32)}')
    A(f's_mov_b32 {s(S_M1)}, 0x11111111'); A(f's_mov_b32 {s(S_M1+1)}, 0x11111111')
    A(f's_mov_b32 {s(S_ONE)}, 0x3f80')
    SC = (128 ** -0.5) * 1.4426950408889634
    A(f's_mov_b32 {s(S_SC)}, {hex(f32(SC))}'); A(f's_mov_b32 {s(S_SC+1)}, {hex(f32(SC))}')
    A(f's_mov_b32 {s(S_NSC)}, {hex(f32(-SC))}')
    load_ptr_srd(A, S_SRD, KA_MEM0, 8*576*2)
    A(f'v_lshrrev_b32 v10, 2, {v(TID)}')
    A(f'v_and_b32 v11, 15, v10')
    A(f'v_lshrrev_b32 v12, 4, v10')
    A(f'v_lshrrev_b32 v13, 2, v11'); A(f'v_lshlrev_b32 v13, 1, v13')
    A(f'v_and_b32 v14, 1, v11'); A(f'v_add_u32 v13, v13, v14')
    A(f'v_mul_u32_u24 v13, 1152, v13')
    A(f'v_bfe_u32 v15, v11, 1, 1')
    A(f'v_and_b32 v16, 1, {v(TID)}')
    A(f'v_lshrrev_b32 v17, 1, v12')
    A(f'v_bfe_u32 v18, {v(TID)}, 1, 1')
    A(f'v_and_b32 v19, 1, v12')
    A(f'v_lshlrev_b32 v29, 5, v15')
    for sh, r in ((0, 16), (1, 17), (2, 18), (3, 19)):
        A(f'v_lshlrev_b32 v30, {sh}, {v(r)}'); A(f'v_add_u32 v29, v29, v30')
    A(f'v_lshlrev_b32 v29, 1, v29'); A(f'v_add_u32 v29, v29, v13')
    A(f'v_lshlrev_b32 v30, 1, v19'); A(f'v_add_u32 v30, v30, v18'); A(f'v_mul_u32_u24 v30, 144, v30')
    for sh, r in ((1, 15), (2, 16), (3, 17)):
        A(f'v_lshlrev_b32 v31, {sh}, {v(r)}'); A(f'v_add_u32 v30, v30, v31')
    A(f'v_lshlrev_b32 v30, 1, v30'); A(f'v_add_u32 v30, v30, v13')
    for ks in range(8):
        base = 2*(144*(ks >> 1) + 16 + 64*(ks & 1))
        A(f'buffer_load_ushort {v(32+ks)}, v29, {s(S_SRD,4)}, 0 offen offset:{base}')
        A(f'buffer_load_ushort {v(40+ks)}, v29, {s(S_SRD,4)}, 0 offen offset:{base + 32}')
    A(f'buffer_load_dword v48, v30, {s(S_SRD,4)}, 0 offen')
    A(f'v_lshlrev_b32 v14, 2, {v(TID)}')
    A('s_waitcnt vmcnt(0)')
    for ks in range(8):
        A(f'v_lshl_or_b32 {v(32+ks)}, {v(40+ks)}, 16, {v(32+ks)}')
        A(f'ds_write_b32 v14, {v(32+ks)} offset:{L_MEM + ks*1024}')
    A(f'ds_write_b32 v14, v48 offset:{L_MEM + 8*1024}')
    A('s_waitcnt lgkmcnt(0)')

def kxvx_dma(A):
    A(f's_mov_b32 m0, {s(S_KXM0)}')
    for j in range(4):
        A(f'buffer_load_dwordx4 {v(V_L16)}, {s(S_WS,4)}, {s(S_KX)} offen offset:{j*1024} lds')
    if not KXSAME[0]: A(f's_add_u32 {s(S_KX)}, {s(S_KX)}, {32*24576}')
KXSAME = [0]

def b1poll(A):
    A(f'v_lshrrev_b32 {v(V_FLAG)}, 2, {v(V_L16)}')
    A(f'buffer_load_dword {v(V_FLAG)}, {v(V_FLAG)}, {s(S_WS,4)}, {s(S_FLAGIN)} offen sc1')

def spin_dec(A, fail):
    A(f's_sub_u32 {s(S_SPIN)}, {s(S_SPIN)}, 1')
    A(f's_cbranch_scc1 {fail}')

ZB32 = [False]
def zero4(A, r):
    if ZB32[0]:
        for i in range(4): A(f'v_mov_b32 {v(r+i)}, 0')
    else:
        A(f'v_mov_b64 {v(r,2)}, 0'); A(f'v_mov_b64 {v(r+2,2)}, 0')

LASTL = [None]
def chain_step(A, par, cfg, fail):
    tag = par ^ 1
    st = lambda f: f + (' sc1' if cfg.get('SLOW') else '')
    L = LQ(A)
    jitter(A)
    stamp(A, cfg, 0)
    for k in range(9):
        L.op(f'ds_read_b128 {v(M(k),4)}, {v(V_L16)} offset:{L_MEM + k*1024}', ('M', k))
    KW0 = bool(cfg.get('KXW0'))
    NBK = bool(cfg.get('NBK_BROKEN')) and not (KW0 or cfg.get('NOB1') or cfg.get('NOKX') or cfg.get('FLAGMID'))
    if not cfg.get('NOB1') and not (KW0 and cfg.get('KXLATEPOLL')):
        if KW0:
            skp = A.newlabel('b1w0')
            A(f's_cmp_lg_u32 {s(S_WAVE)}, 0'); A(f's_cbranch_scc1 {skp}')
        A(f's_mov_b64 exec, 15')
        if cfg.get('TOUCH'):
            nt = A.newlabel('notouch')
            A(f's_add_u32 {s(S_TMP)}, {s(S_STEP)}, 2')
            A(f'v_cmp_gt_u32 vcc, {s(S_TMP)}, {v(V_FLAG)}')
            if not cfg.get('TOUCHALL'): A(f's_cbranch_vccnz {nt}')
            A(f's_mov_b64 exec, -1')
            A(f'v_lshlrev_b32 {v(V_FLAG)}, 2, {v(V_L16)}')
            A(f's_mov_b32 m0, {L_DUMMY}')
            A(f'buffer_load_dword {v(V_FLAG)}, {s(S_WS,4)}, {s(S_KX)} offen lds')
            A(f's_mov_b64 exec, 15')
            A.label(nt); A.flush()
        b1poll(A)
        A(f's_mov_b64 exec, -1')
        if KW0: A.label(skp); A.flush()
    def q(t, ks): A(f'{SM} {v([AQ0,AQ1][t],4)}, {v(M(ks),4)}, {WQ(t,ks)}, {v(V_IDX)}')
    def k_(t, ks): A(f'{SM} {v([AK0,AK1][t],4)}, {v(M(ks),4)}, {WK(t,ks)}, {v(V_IDX)}')
    def vv(t, ks): A(f'{SM} {v([AV0,AV1][t],4)}, {v(M(ks),4)}, {WV(t,ks)}, {v(V_IDX)}')
    for ks in range(7):
        L.wait(('M', ks))
        q(0, ks); k_(0, ks); q(1, ks); k_(1, ks)
    L.waitall()
    stamp(A, cfg, 1)
    q(0, 7); k_(0, 7); q(0, 8); k_(0, 8); q(1, 7); k_(1, 7)
    def post(t):
        aq, ak = [AQ0, AQ1][t], [AK0, AK1][t]
        for r in (ak, ak+1, aq, aq+1): A(f'v_add_f32 {v(r)}, {v(r)}, {v(r+2)}')
        A(f'v_cvt_pk_bf16_f32 {v(ak+2)}, {v(ak)}, {v(ak+1)}')
        A(f'v_cvt_pk_bf16_f32 {v(ak+3)}, {v(aq)}, {v(aq+1)}')
        L.op(f'ds_write_b64 {v(V_QKW)}, {v(ak+2,2)} offset:{t*512}')
    q(1, 8)
    post(0)
    k_(1, 8)
    zero4(A, AV1)
    vv(0, 0); vv(0, 1)
    post(1)
    vv(1, 0); vv(1, 1); vv(0, 2); vv(1, 2)
    L.waitall()
    A('s_barrier')
    stamp(A, cfg, 2)
    F = [AQ1, AK0, AK1, M(0)]
    def fread(c):
        L.op(f'ds_read_b64_tr_b16 {v(F[c],2)}, {v(V_L8)} offset:{L_QK + c*1024}', ('F', c, 0))
        L.op(f'ds_read_b64_tr_b16 {v(F[c]+2,2)}, {v(V_L8)} offset:{L_QK + c*1024 + 512}', ('F', c))
    KXR = {(0,0): M(1), (1,0): M(2), (0,1): M(3), (1,1): M(4), (0,2): M(5), (1,2): M(1), (0,3): M(2), (1,3): F[0]}
    def kxread(t, c):
        L.op(f'ds_read_b128 {v(KXR[(t,c)],4)}, {v(V_L16)} offset:{L_KX + (t*4+c)*1024}', ('KX', t, c))
    fread(0); kxread(0, 0); kxread(1, 0)
    vv(0, 3); fread(1)
    vv(1, 3); kxread(0, 1)
    vv(0, 4); fread(2)
    vv(1, 4); kxread(1, 1)
    vv(0, 5); fread(3)
    vv(1, 5); kxread(0, 2)
    for ks in (6, 7, 8): vv(0, ks); vv(1, ks)
    S0, S1, SMm = M(6), M(7), M(8)
    def smf(acc, areg, c):
        A(f'{MF} {v(acc,4)}, {v(areg,4)}, {v(F[c],4)}, {"0" if c == 0 else v(acc,4)}')
    stamp(A, cfg, 3)
    L.wait(('KX', 0, 0)); smf(S0, KXR[(0,0)], 0)
    L.wait(('KX', 1, 0)); smf(S1, KXR[(1,0)], 0)
    kxread(1, 2)
    smf(SMm, F[0], 0)
    kxread(0, 3)
    kxread(1, 3)
    L.wait(('KX', 0, 1)); smf(S0, KXR[(0,1)], 1)
    L.wait(('KX', 1, 1)); smf(S1, KXR[(1,1)], 1)
    smf(SMm, F[1], 1)
    VM = AV0 + 2
    for r in (AV0, AV0+1, AV1, AV1+1): A(f'v_add_f32 {v(r)}, {v(r)}, {v(r+2)}')
    L.wait(('KX', 0, 2)); smf(S0, KXR[(0,2)], 2)
    A(f'v_cvt_pk_bf16_f32 {v(VM)}, {v(AV0)}, {v(AV0+1)}')
    A(f'v_cvt_pk_bf16_f32 {v(VM+1)}, {v(AV1)}, {v(AV1+1)}')
    smf(SMm, F[2], 2)
    A(f'buffer_store_dwordx2 {v(VM,2)}, {v(V_L8)}, {s(S_WS,4)}, {s(S_KVM2)} offen sc1')
    L.wait(('KX', 1, 2)); smf(S1, KXR[(1,2)], 2)
    TA = AV1
    A(f'v_add_u32 {v(TA)}, {s(S_VXO)}, {v(V_L16)}')
    A(f'v_add_u32 {v(TA+1)}, {s(S_W1024)}, {v(V_L8)}')
    smf(SMm, F[3], 3)
    L.wait(('KX', 0, 3)); smf(S0, KXR[(0,3)], 3)
    L.wait(('KX', 1, 3)); smf(S1, KXR[(1,3)], 3)
    VX0, VX1, ONES, PX, PM, T = M(0), M(1), M(2), M(3), M(4), M(5)
    KMT = AK0
    L.op(f'ds_read_b128 {v(VX0,4)}, {v(TA)} offset:{L_VX}', 'VX0')
    L.op(f'ds_read_b128 {v(VX1,4)}, {v(TA)} offset:{L_VX + 1024}', 'VX1')
    L.op(f'ds_read_b64_tr_b16 {v(KMT,2)}, {v(TA+1)} offset:{L_QK}', 'KM0')
    L.op(f'ds_read_b64_tr_b16 {v(KMT+2,2)}, {v(TA+1)} offset:{L_QK + 512}', 'KM')
    for i in range(4): A(f'v_mov_b32 {v(ONES+i)}, 0x3f803f80')
    A(f'v_mov_b32 {v(PM+1)}, 0'); A(f'v_mov_b32 {v(PM+2)}, 0')
    stamp(A, cfg, 4)
    A(f'v_max3_f32 {v(T)}, {v(SMm)}, {v(SMm+1)}, {v(S0)}')
    A(f'v_max3_f32 {v(T+1)}, {v(S0+1)}, {v(S0+2)}, {v(S0+3)}')
    A(f'v_max3_f32 {v(T)}, {v(T)}, {v(S1)}, {v(S1+1)}')
    A(f'v_max3_f32 {v(T+1)}, {v(T+1)}, {v(S1+2)}, {v(S1+3)}')
    A(f'v_max_f32 {v(T)}, {v(T)}, {v(T+1)}')
    A(f'v_mov_b32 {v(T+1)}, {v(T)}')
    L.wait('KM')
    A(f'buffer_store_dwordx4 {v(KMT,4)}, {v(V_L16)}, {s(S_WS,4)}, {s(S_KVM)} offen sc1')
    if par == 1 and not cfg.get('NOLAST'):
        A(f's_cmp_eq_u32 {s(S_STEP)}, 63')
        A(f's_cbranch_scc1 {LASTL[0]}')
    A(f'v_permlane16_swap_b32 {v(T)}, {v(T+1)}')
    A(f'v_max_f32 {v(T)}, {v(T)}, {v(T+1)}')
    A(f'v_mov_b32 {v(T+1)}, {v(T)}')
    A(f's_add_u32 {s(S_KVM)}, {s(S_KVM)}, {32*8192}')
    A(f's_add_u32 {s(S_KVM2)}, {s(S_KVM2)}, {32*8192}')
    A(f'v_permlane32_swap_b32 {v(T)}, {v(T+1)}')
    A(f'v_max_f32 {v(T)}, {v(T)}, {v(T+1)}')
    A(f'v_mul_f32 {v(T)}, {s(S_NSC)}, {v(T)}')
    def pkfma(r): A(f'v_pk_fma_f32 {v(r,2)}, {v(r,2)}, {s(S_SC,2)}, {v(T,2)} op_sel_hi:[1,1,0]')
    pkfma(SMm); pkfma(S0); pkfma(S0+2); pkfma(S1); pkfma(S1+2)
    A(f'v_exp_f32 {v(SMm)}, {v(SMm)}'); A(f'v_exp_f32 {v(SMm+1)}, {v(SMm+1)}')
    A(f'v_exp_f32 {v(S0)}, {v(S0)}')
    A(f'v_cvt_pk_bf16_f32 {v(PM)}, {v(SMm)}, {v(SMm+1)}')
    A(f'v_exp_f32 {v(S0+1)}, {v(S0+1)}')
    A(f'v_mov_b32 {v(PM+3)}, {v(PM)}')
    A(f'v_exp_f32 {v(S0+2)}, {v(S0+2)}')
    O0, O1, SUM = AQ1, AK0, AK1
    A(f'{MF16} {v(SUM,4)}, {v(ONES,2)}, {v(PM,2)}, 0')
    A(f'v_exp_f32 {v(S0+3)}, {v(S0+3)}')
    A(f'{MF16} {v(O0,4)}, {v(VM,2)}, {v(PM,2)}, 0')
    A(f'v_exp_f32 {v(S1)}, {v(S1)}')
    A(f'v_cvt_pk_bf16_f32 {v(PX)}, {v(S0)}, {v(S0+1)}')
    A(f'{MF16} {v(O1,4)}, {v(VM,2)}, {v(PM+2,2)}, 0')
    A(f'v_exp_f32 {v(S1+1)}, {v(S1+1)}')
    A(f'v_cvt_pk_bf16_f32 {v(PX+1)}, {v(S0+2)}, {v(S0+3)}')
    A(f'v_exp_f32 {v(S1+2)}, {v(S1+2)}')
    A(f'v_exp_f32 {v(S1+3)}, {v(S1+3)}')
    A(f'v_cvt_pk_bf16_f32 {v(PX+2)}, {v(S1)}, {v(S1+1)}')
    A(f'v_cvt_pk_bf16_f32 {v(PX+3)}, {v(S1+2)}, {v(S1+3)}')
    L.wait('VX1')
    A(f'{MF} {v(SUM,4)}, {v(ONES,4)}, {v(PX,4)}, {v(SUM,4)}')
    A(f'{MF} {v(O0,4)}, {v(VX0,4)}, {v(PX,4)}, {v(O0,4)}')
    A(f'{MF} {v(O1,4)}, {v(VX1,4)}, {v(PX,4)}, {v(O1,4)}')
    WB0, WB1 = 46, 47
    A(f'v_add_u32 {v(WB0)}, {s(S_WBO)}, {v(V_L16)}')
    A(f'v_add_u32 {v(WB1)}, 0x10000, {v(WB0)}')
    A(f'v_rcp_f32 {v(SUM)}, {v(SUM)}')
    OFD = AV0
    A(f'v_pk_mul_f32 {v(O0,2)}, {v(O0,2)}, {v(SUM,2)} op_sel_hi:[1,0]')
    A(f'v_pk_mul_f32 {v(O0+2,2)}, {v(O0+2,2)}, {v(SUM,2)} op_sel_hi:[1,0]')
    A(f'v_pk_mul_f32 {v(O1,2)}, {v(O1,2)}, {v(SUM,2)} op_sel_hi:[1,0]')
    A(f'v_pk_mul_f32 {v(O1+2,2)}, {v(O1+2,2)}, {v(SUM,2)} op_sel_hi:[1,0]')
    A(f'v_cvt_pk_bf16_f32 {v(OFD)}, {v(O0)}, {v(O0+1)}')
    A(f'v_cvt_pk_bf16_f32 {v(OFD+1)}, {v(O1)}, {v(O1+1)}')
    A(f'v_cvt_pk_bf16_f32 {v(OFD+2)}, {v(O0+2)}, {v(O0+3)}')
    A(f'v_cvt_pk_bf16_f32 {v(OFD+3)}, {v(O1+2)}, {v(O1+3)}')
    A(f's_mov_b64 exec, {s(S_EXO,2)}')
    L.op(f'ds_write_b64 {v(V_OW)}, {v(OFD,2)}', 'ow0')
    L.op(f'ds_write_b64 {v(V_OW)}, {v(OFD+2,2)} offset:32', 'ow')
    A(f's_mov_b64 exec, -1')
    stamp(A, cfg, 5)
    NS = 4
    SL = lambda i: 8 + 8*i
    OF0, OF1 = 40, 56
    ACC = [48, 52]
    RT = 44
    X = 60
    def woread(f, hf=None):
        t = f//2 + 1; ks = f % 2
        wb = WB0 if ks == 0 else WB1
        L.op(f'ds_read_b128 {v(SL(f % NS),4)}, {v(wb)} offset:{(t-1)*1024}', ('W', f, 0))
        L.op(f'ds_read_b128 {v(SL(f % NS)+4,4)}, {v(wb)} offset:{32768 + (t-1)*1024}', ('W', f))
    for f in range(NS): woread(f)
    zero4(A, ACC[0]); zero4(A, ACC[1])
    L.wait('ow')
    A('s_barrier')
    stamp(A, cfg, 6)
    L.op(f'ds_read_b128 {v(OF0,4)}, {v(V_L16)} offset:{L_O}', 'OF0')
    L.op(f'ds_read_b128 {v(OF1,4)}, {v(V_L16)} offset:{L_O + 1024}', 'OF1')
    def b1check(nout):
        lab_ok = A.newlabel('b1ok'); lab_re = A.newlabel('b1re')
        late = KW0 and cfg.get('KXLATEPOLL')
        A(f's_add_u32 {s(S_TMP)}, {s(S_STEP)}, 2')
        A(f's_mov_b64 exec, 15')
        if not late:
            A(f's_waitcnt vmcnt({nout})')
            A(f'v_cmp_gt_u32 vcc, {s(S_TMP)}, {v(V_FLAG)}')
            A(f's_cbranch_vccz {lab_ok}')
        A(f's_mov_b32 {s(S_SPIN)}, {SPIN_LIMIT}')
        A.label(lab_re)
        b1poll(A)
        A('s_waitcnt vmcnt(0)')
        A(f'v_cmp_gt_u32 vcc, {s(S_TMP)}, {v(V_FLAG)}')
        A(f's_cbranch_vccz {lab_ok}')
        spin_check(A, lab_re, fail)
        A.label(lab_ok)
        A(f's_mov_b64 exec, -1')
    if not KW0:
        skipk = A.newlabel('skipk')
        A(f's_cmp_eq_u32 {s(S_STEP)}, 63')
        A(f's_cbranch_scc1 {skipk}')
        if NBK:
            okl = A.newlabel('nbkok')
            A(f's_add_u32 {s(S_TMP)}, {s(S_STEP)}, 2')
            A(f's_mov_b64 exec, 15')
            A(f's_waitcnt vmcnt(2)')
            A(f'v_cmp_gt_u32 vcc, {s(S_TMP)}, {v(V_FLAG)}')
            A(f's_cbranch_vccz {okl}')
            A(f's_mov_b32 {s(S_PEND)}, 1')
            if cfg.get('TIMECH'):
                A(f's_lshl_b64 s[92:93], 1, {s(S_STEP)}'); A('s_or_b64 s[100:101], s[100:101], s[92:93]')
            b1poll(A)
            A(f's_mov_b64 exec, -1')
            A(f's_branch {skipk}')
            A.label(okl); A.flush()
            A(f's_mov_b64 exec, -1')
            kxvx_dma(A)
        else:
            if not cfg.get('NOB1'): b1check(2)
            if not cfg.get('NOKX'): kxvx_dma(A)
        A.label(skipk)
    def tile_out(t):
        acc = ACC[t % 2]; x = X + ((t - 1) % 4 if t else 0)
        A(f'v_add_f32 {v(RT)}, {v(acc)}, {v(acc+2)}')
        A(f'v_add_f32 {v(RT+1)}, {v(acc+1)}, {v(acc+3)}')
        if t + 2 < 9: zero4(A, acc)
        if t == 0: A(f'v_lshrrev_b32 {v(X+1)}, 2, {v(V_L16)}')
        A(f'v_cvt_pk_bf16_f32 {v(x)}, {v(RT)}, {v(RT+1)}')
        if t in (0, 1, 5):
            if not tag: A(f'v_add_u32 {v(RT)}, 0x10000, {v(RT)}')
            if t == 0: A(f's_mov_b64 exec, {s(S_M1,2)}')
            else: A('s_nop 0')
            if tag: A(f'v_or_b32_sdwa {v(x)}, {v(RT)}, 1 dst_sel:WORD_0 dst_unused:UNUSED_PRESERVE src0_sel:WORD_1 src1_sel:DWORD')
            else:   A(f'v_and_b32_sdwa {v(x)}, {v(RT)}, -2 dst_sel:WORD_0 dst_unused:UNUSED_PRESERVE src0_sel:WORD_1 src1_sel:DWORD')
            if t == 0: A(f's_mov_b64 exec, -1')
        if t == 0: A(st(f'buffer_store_dword {v(X)}, {v(X+1)}, {s(S_WS,4)}, {s(S_PST)} offen'))
        if t in (4, 8): A(st(f'buffer_store_dwordx4 {v(X,4)}, {v(V_L16)}, {s(S_WS,4)}, {s(S_PST)} offen offset:{256 if t == 4 else 1280}'))
    L.wait('OF0')
    A(f'{SM} {v(ACC[0],4)}, {v(OF0,4)}, {WOR(0)}, {v(V_IDX)}')
    L.wait('OF1')
    A(f'{SM} {v(ACC[0],4)}, {v(OF1,4)}, {WOR(1)}, {v(V_IDX)}')
    for f in range(16):
        t = f//2 + 1; ks = f % 2
        L.wait(('W', f))
        A(f'{SM} {v(ACC[t % 2],4)}, {v([OF0,OF1][ks],4)}, {v(SL(f % NS),8)}, {v(V_IDX)}')
        if f + NS < 16: woread(f + NS)
        if ks == 1: tile_out(t - 1)
    tile_out(8)
    jitter(A)
    stamp(A, cfg, 7)
    if cfg.get('PREWAIT1') and not KW0: A('s_waitcnt vmcnt(0)')
    if NBK:
        assert cfg.get('PREWAIT1') and cfg.get('PREWAIT2')
        np_ = A.newlabel('nbk1')
        A(f's_cmp_eq_u32 {s(S_PEND)}, 0'); A(f's_cbranch_scc1 {np_}')
        A(f's_add_u32 {s(S_TMP)}, {s(S_STEP)}, 2')
        A(f's_mov_b64 exec, 15')
        A(f'v_cmp_gt_u32 vcc, {s(S_TMP)}, {v(V_FLAG)}')
        A(f's_mov_b64 exec, -1')
        A(f's_cbranch_vccnz {np_}')
        A(f's_mov_b32 {s(S_PEND)}, 0')
        kxvx_dma(A)
        A.label(np_); A.flush()
    if cfg.get('PW1LATE'):
        pw = A.newlabel('pw1')
        A(f's_cmp_lg_u32 {s(S_WAVE)}, 3')
        A(f's_cbranch_scc1 {pw}')
        A('s_waitcnt vmcnt(0)')
        A.label(pw)
    stamp(A, cfg, 11)
    P = [8 + 4*i for i in range(4)]
    SEL, D, X0, HM, T = 24, 28, 32, 34, 35
    new = par ^ 1; old = par
    def publish_flag():
        A(f's_add_u32 {s(S_TMP)}, {s(S_STEP)}, 1')
        A(f'v_mov_b32 {v(T+1)}, {s(S_TMP)}')
        A(f's_mov_b64 exec, 1')
        A(f'buffer_store_dword {v(T+1)}, {v(V_L16)}, {s(S_WS,4)}, {s(S_FLAGOUT)} offen sc1')
        A(f's_mov_b64 exec, -1')
    noline = A.newlabel('h1none'); join = A.newlabel('h1join')
    A(f's_mov_b32 {s(S_SPIN)}, {SPIN_LIMIT}')
    A(f's_cmp_eq_u32 {s(S_HAS2)}, 0')
    A(f's_cbranch_scc1 {noline}')
    if cfg.get('PREWAIT1') and KW0: A('s_waitcnt vmcnt(0)')
    lp = A.newlabel('hop1'); lw = A.newlabel('h1w')
    def h1loads():
        for i in range(4):
            A(f'buffer_load_dwordx4 {v(P[i],4)}, {v(V_PLD)}, {s(S_WS,4)}, {s(S_PL+i)} offen sc1')
    h1loads()
    for r in (AQ0, AQ1, AK0, AK1, AV0): zero4(A, r)
    A(f'v_lshrrev_b32 {v(T)}, 2, {v(V_L16)}')
    A(f'v_and_b32 {v(T)}, 16, {v(T)}')
    A(f'v_lshlrev_b32 {v(T)}, {v(T)}, {s(S_ONE)}')
    A(f's_mov_b64 vcc, {s(S_M1,2)}')
    for r in range(4):
        A(f'v_cndmask_b32 {v(SEL+r)}, 0, {v(T)}, vcc')
        if r < 3: A(f's_lshl_b64 vcc, vcc, 1')
    A(f'v_bfe_i32 {v(HM)}, {v(V_L16)}, 9, 1')
    A(f's_branch {lw}')
    A.label(lp)
    if not cfg.get('NOMASK'): A(f's_mov_b64 exec, vcc')
    spin_dec(A, fail)
    h1loads()
    A.label(lw); A.flush()
    A('s_waitcnt vmcnt(0)')
    mf = lambda i: A(f'{MF} {v(D,4)}, {v(SEL,4)}, {v(P[i],4)}, {"0" if i == 0 else v(D,4)}')
    mf(0)
    if tag: A(f'v_bitop3_b32 {v(T)}, {v(P[0])}, {v(P[1])}, {v(P[2])} bitop3:0x80')
    else:   A(f'v_or3_b32 {v(T)}, {v(P[0])}, {v(P[1])}, {v(P[2])}')
    mf(1)
    if tag: A(f'v_bitop3_b32 {v(T)}, {v(T)}, {v(P[3])}, 1 bitop3:0x80')
    else:   A(f'v_bitop3_b32 {v(T)}, {v(T)}, {v(P[3])}, 1 bitop3:0xa8')
    mf(2)
    A(f'v_cmp_ne_u32 vcc, {tag}, {v(T)}')
    mf(3)
    if not cfg.get('X_NOCHK'): A(f's_cbranch_vccnz {lp}')
    A(f's_mov_b64 exec, -1')
    if cfg.get('STAMPS'): A(f's_sub_u32 {s(S_ST+14)}, {SPIN_LIMIT}, {s(S_SPIN)}')
    if cfg.get('CNT'):
        A(f's_sub_u32 {s(S_TMP)}, {SPIN_LIMIT}, {s(S_SPIN)}'); A(f's_add_u32 s92, s92, {s(S_TMP)}')
    stamp(A, cfg, 8)
    A(f'v_add_f32_dpp {v(X0)}, {v(D)}, {v(D)} row_ror:8 row_mask:0xf bank_mask:0x3')
    A(f'v_add_f32_dpp {v(X0+1)}, {v(D+1)}, {v(D+1)} row_ror:8 row_mask:0xf bank_mask:0x3')
    A(f'v_add_f32_dpp {v(X0)}, {v(D+2)}, {v(D+2)} row_ror:8 row_mask:0xf bank_mask:0xc')
    A(f'v_add_f32_dpp {v(X0+1)}, {v(D+3)}, {v(D+3)} row_ror:8 row_mask:0xf bank_mask:0xc')
    A(f'v_cvt_pk_bf16_f32 {v(X0)}, {v(X0)}, {v(X0+1)}')
    A(f'v_or_b32 {v(X0)}, {v(X0)}, {v(HM)}')
    A(st(f'buffer_store_dword {v(X0)}, {v(V_MST)}, {s(S_WS,4)}, {s(S_MSA)} offen'))
    A(f'v_xor_b32 {v(V_MST)}, 0x4000, {v(V_MST)}')
    if cfg.get('FLAGMID'):
        publish_flag()
        jitter(A); A('s_barrier'); A('s_waitcnt vmcnt(1)')
    if KW0:
        jitter(A)
        A('s_barrier')
        A('s_waitcnt vmcnt(0)')
    A(f's_branch {join}')
    A.label(noline); A.flush()
    if cfg.get('FLAGMID'): publish_flag()
    for r in (AQ0, AQ1, AK0, AK1, AV0): zero4(A, r)
    if cfg.get('FLAGMID'): jitter(A); A('s_barrier')
    if KW0:
        skd = A.newlabel('skd')
        A(f's_cmp_lg_u32 {s(S_WAVE)}, 0'); A(f's_cbranch_scc1 {skd}')
        A(f's_cmp_eq_u32 {s(S_STEP)}, 63'); A(f's_cbranch_scc1 {skd}')
        if not cfg.get('NOB1'): b1check(5)
        if not cfg.get('NOKX'):
            for g in range(4):
                A(f's_mov_b32 m0, {L_KX + g*4096}')
                if g: A(f's_add_u32 {s(S_TMP)}, {s(S_KX)}, {g*4096}')
                for j in range(4):
                    A(f'buffer_load_dwordx4 {v(V_L16)}, {s(S_WS,4)}, {s(S_TMP if g else S_KX)} offen offset:{j*1024} lds')
            A(f's_add_u32 {s(S_KX)}, {s(S_KX)}, {32*24576}')
        A.label(skd); A.flush()
        jitter(A)
        A('s_barrier')
    A.label(join); A.flush()
    if not KW0 and not cfg.get('FLAGMID'):
        jitter(A)
        if cfg.get('BAR2'): A('s_barrier')
    stamp(A, cfg, 9)
    if cfg.get('PREWAIT2') and not KW0 and not cfg.get('FLAGMID'): A('s_waitcnt vmcnt(0)')
    stamp(A, cfg, 12)
    R0, R1, R2 = 8, 12, 16
    TA0, TA1 = 20, 21
    A(f'v_add_u32 {v(TA0)}, {s(S_W1024)}, {v(V_L16)}')
    A(f'v_add_u32 {v(TA1)}, {s(S_W256)}, {v(V_L16)}')
    A(f'v_mov_b64 {v(R2,2)}, 0'); A(f'v_mov_b64 {v(R2+2,2)}, 0')
    lp2 = A.newlabel('hop2'); lw2 = A.newlabel('h2w')
    A(f's_mov_b32 {s(S_SPIN)}, {SPIN_LIMIT}')
    def h2loads(first):
        A(f'buffer_load_dwordx4 {v(R0,4)}, {v(V_L16)}, {s(S_WS,4)}, {s(S_ML+3*new)} offen sc1')
        A(f'buffer_load_dwordx4 {v(R1,4)}, {v(V_L16)}, {s(S_WS,4)}, {s(S_ML+3*new+1)} offen sc1')
        if first: A(f's_mov_b64 exec, 0xffff')
        else: A(f's_and_b64 exec, exec, 0xffff')
        A(f'buffer_load_dwordx4 {v(R2,4)}, {v(V_L16)}, {s(S_WS,4)}, {s(S_ML+3*new+2)} offen sc1')
        if first or cfg.get('NOMASK'): A(f's_mov_b64 exec, -1')
        else: A(f's_mov_b64 exec, {s(S_MSK,2)}')
    h2loads(True)
    A(f's_branch {lw2}')
    A.label(lp2)
    if not cfg.get('NOMASK'):
        A(f's_mov_b64 exec, vcc')
        A(f's_mov_b64 {s(S_MSK,2)}, vcc')
    spin_dec(A, fail)
    h2loads(False)
    A.label(lw2)
    A('s_waitcnt vmcnt(0)')
    T = 22
    A(f'v_max3_u32 {v(T)}, {v(R0)}, {v(R0+1)}, {v(R0+2)}')
    A(f'v_max3_u32 {v(T+1)}, {v(R0+3)}, {v(R1)}, {v(R1+1)}')
    A(f'v_max3_u32 {v(T)}, {v(T)}, {v(R1+2)}, {v(R1+3)}')
    A(f'v_max3_u32 {v(T+1)}, {v(T+1)}, {v(R2)}, {v(R2+1)}')
    A(f'v_max3_u32 {v(T)}, {v(T)}, {v(R2+2)}, {v(R2+3)}')
    A(f'v_max_u32 {v(T)}, {v(T)}, {v(T+1)}')
    A(f'v_cmp_eq_u32 vcc, -1, {v(T)}')
    A(f's_cbranch_vccnz {lp2}')
    A(f's_mov_b64 exec, -1')
    if cfg.get('CNT'):
        A(f's_sub_u32 {s(S_TMP)}, {SPIN_LIMIT}, {s(S_SPIN)}'); A(f's_add_u32 s93, s93, {s(S_TMP)}')
    if cfg.get('STAMPS'):
        A(f's_sub_u32 {s(S_ST+15)}, {SPIN_LIMIT}, {s(S_SPIN)}')
        stamp(A, cfg, 13)
    if not cfg.get('FLAGEARLY') and not cfg.get('FLAGMID'):
        T = 35; publish_flag()
    A(f'ds_write_b128 {v(TA0)}, {v(R0,4)} offset:{L_MEM}')
    A(f'ds_write_b128 {v(TA0)}, {v(R1,4)} offset:{L_MEM + 4096}')
    A(f's_mov_b64 exec, 0xffff')
    A(f'ds_write_b128 {v(TA1)}, {v(R2,4)} offset:{L_MEM + 8192}')
    A(f's_mov_b64 exec, -1')
    A(f's_add_u32 {s(S_STEP)}, {s(S_STEP)}, 1')
    if NBK:
        np_ = A.newlabel('nbk2'); rel = A.newlabel('nbk2r'); okl = A.newlabel('nbk2o')
        A(f's_cmp_eq_u32 {s(S_PEND)}, 0'); A(f's_cbranch_scc1 {np_}')
        A(f's_add_u32 {s(S_TMP)}, {s(S_STEP)}, 1')
        A(f's_mov_b32 {s(S_SPIN)}, {SPIN_LIMIT}')
        A(f's_mov_b64 exec, 15')
        A.label(rel); A.flush()
        b1poll(A)
        A('s_waitcnt vmcnt(0)')
        A(f'v_cmp_gt_u32 vcc, {s(S_TMP)}, {v(V_FLAG)}')
        A(f's_cbranch_vccz {okl}')
        spin_check(A, rel, fail)
        A.label(okl); A.flush()
        A(f's_mov_b64 exec, -1')
        A(f's_mov_b32 {s(S_PEND)}, 0')
        kxvx_dma(A)
        A('s_waitcnt vmcnt(0)')
        A.label(np_); A.flush()
    tstamp(A, cfg, s(S_STEP), 24, V_L16)
    A('s_waitcnt lgkmcnt(0)')
    A('s_barrier')
    stamp(A, cfg, 10)

def chain_role(A, cfg, fail, done):
    if cfg.get('TIMECH'):
        chain_role_(A, cfg, fail, done)
    else: chain_role_(A, cfg, fail, done)

def chain_role_(A, cfg, fail, done):
    A.smart = True
    ZB32[0] = bool(cfg.get('X_ZB32')); KXSAME[0] = cfg.get('KXSAME')
    chain_init(A, cfg)
    if cfg.get('DBGI'): dstamp(A, cfg, 7, 0, None, 24, 25); dstamp(A, cfg, 8, 32, None, 24, 25)
    cfg['barrier_wait_chain'](A)
    if not cfg.get('NOB1'):
        lab_re = A.newlabel('b1first'); lab_ok = A.newlabel('b1fok')
        A(f's_mov_b32 {s(S_SPIN)}, {SPIN_LIMIT}')
        A(f's_mov_b64 exec, 15')
        A.label(lab_re)
        b1poll(A)
        A('s_waitcnt vmcnt(0)')
        A(f'v_cmp_gt_u32 vcc, 1, {v(V_FLAG)}')
        A(f's_cbranch_vccz {lab_ok}')
        spin_check(A, lab_re, fail)
        A.label(lab_ok)
        A(f's_mov_b64 exec, -1')
    kxvx_dma(A)
    for r in (AQ0, AQ1, AK0, AK1, AV0): zero4(A, r)
    A(f's_mov_b32 {s(S_STEP)}, 0')
    if cfg.get('NBK_BROKEN'): A(f's_mov_b32 {s(S_PEND)}, 0')
    if cfg.get('TIMECH'): A('s_mov_b64 s[100:101], 0')
    tstamp(A, cfg, 0, 24, V_L16)
    dstamp(A, cfg, 1, 0, None, 24, 25); dstamp(A, cfg, 3, 32, None, 24, 25)
    dstamp(A, cfg, 0, 0, 94, 24, 25)
    A('s_waitcnt vmcnt(0)')
    A('s_barrier')
    if cfg.get('STAMPS') or cfg.get('TOTAL'):
        A(f's_memtime {s(S_T0,2)}')
        A('s_waitcnt lgkmcnt(0)')
    if cfg.get('CNT'): A('s_mov_b32 s92, 0'); A('s_mov_b32 s93, 0')
    loop = A.newlabel('chainloop')
    LASTL[0] = A.newlabel('chainlast')
    A.label(loop)
    chain_step(A, 0, cfg, fail)
    chain_step(A, 1, cfg, fail)
    A(f's_cmp_lt_u32 {s(S_STEP)}, 64')
    A(f's_cbranch_scc1 {loop}')
    if not cfg.get('NOLAST'):
        A.label(LASTL[0]); A.flush()
        A('s_waitcnt vmcnt(0)')
        A(f'v_mov_b32 v14, 64')
        A(f's_mov_b64 exec, 1')
        A(f'buffer_store_dword v14, {v(V_L16)}, {s(S_WS,4)}, {s(S_FLAGOUT)} offen sc1')
        A(f's_mov_b64 exec, -1')
        if cfg.get('TIME'): A(f's_mov_b32 {s(S_STEP)}, 64'); tstamp(A, cfg, s(S_STEP), 24, V_L16)
        if cfg.get('TIMECH'):
            sk = A.newlabel('tch')
            A(f's_cmp_lg_u32 {s(S_WAVE)}, 0'); A(f's_cbranch_scc1 {sk}')
            A(f's_lshl_b32 {s(S_TMP)}, {s(S_ROLE)}, 9'); A(f's_add_u32 {s(S_TMP)}, {s(S_TMP)}, {hex(WS_TIME + 110*4)}')
            A('v_mov_b32 v14, s100'); A('v_mov_b32 v15, s101'); A('v_mov_b32 v16, 0')
            A('s_mov_b64 exec, 1')
            A(f'buffer_store_dwordx2 v[14:15], v16, {s(S_WS,4)}, {s(S_TMP)} offen')
            A('s_mov_b64 exec, -1')
            A.label(sk); A.flush()
    if cfg.get('CNT'):
        A(f's_lshl_b32 {s(S_TMP)}, {s(S_ROLE)}, 9')
        A(f's_lshl_b32 {s(S_TMP+1)}, {s(S_WAVE)}, 3')
        A(f's_add_u32 {s(S_TMP)}, {s(S_TMP)}, {s(S_TMP+1)}')
        A(f's_add_u32 {s(S_TMP)}, {s(S_TMP)}, {hex(WS_TIME)}')
        A(f'v_mov_b32 v14, s92'); A(f'v_mov_b32 v15, s93'); A(f'v_mov_b32 v16, 0')
        A('s_mov_b64 exec, 1')
        A(f'buffer_store_dwordx2 v[14:15], v16, {s(S_WS,4)}, {s(S_TMP)} offen')
        A('s_mov_b64 exec, -1')
    if cfg.get('STAMPS') or cfg.get('TOTAL'):
        A(f's_memtime {s(S_T1,2)}')
        A('s_waitcnt lgkmcnt(0)')
        A(f's_sub_u32 {s(S_T1)}, {s(S_T1)}, {s(S_T0)}')
        sk = A.newlabel('nostamp')
        A(f's_lshl_b32 {s(S_TMP)}, {s(S_ROLE)}, 2')
        A(f's_or_b32 {s(S_TMP)}, {s(S_TMP)}, {s(S_WAVE)}')
        A(f's_cmp_lg_u32 {s(S_TMP)}, {cfg.get("WHO", 0)}')
        A(f's_cbranch_scc1 {sk}')
        A(f'v_mov_b32 v14, {s(S_T1)}')
        A(f'v_mov_b32 v15, 0')
        A(f'global_store_dword v15, v14, {s(S_DBG,2)} offset:64')
        for i in range(16 if cfg.get('STAMPS') else 0):
            if i < 14: A(f's_sub_u32 {s(S_TMP)}, {s(S_ST+i)}, {s(S_ST)}')
            else: A(f's_mov_b32 {s(S_TMP)}, {s(S_ST+i)}')
            A(f'v_mov_b32 v14, {s(S_TMP)}')
            A(f'global_store_dword v15, v14, {s(S_DBG,2)} offset:{68+4*i}')
        A.label(sk)
    A.smart = False
    A(f's_branch {done}')
```

```python
from roles import *

BIGNEG = 0xff7fffff

def xlane_sum(A, x, t, op='v_add_f32', ror8=True):
    if ror8: A(f'{op}_dpp {v(x)}, {v(x)}, {v(x)} row_ror:8 row_mask:0xf bank_mask:0xf')
    A(f'v_mov_b32 {v(t)}, {v(x)}')
    A(f'v_permlane16_swap_b32 {v(x)}, {v(t)}')
    A(f'{op} {v(x)}, {v(x)}, {v(t)}')
    A(f'v_mov_b32 {v(t)}, {v(x)}')
    A(f'v_permlane32_swap_b32 {v(x)}, {v(t)}')
    A(f'{op} {v(x)}, {v(x)}, {v(t)}')

def role_red(A, cfg, kind, l, fail, done):
    set_scope(False)
    w = s(S_WAVE)
    nparts = {'R0': 0, 'RA': 1, 'RB': 4}[kind]
    final = (kind == 'RB' and l == 1)
    ALT = 2 if kind == 'RB' else 1
    lane_setup(A)
    S_PAR = S_X + 1
    A(f's_lshr_b32 {s(S_PAR)}, {s(S_IDX)}, 2')
    A(f's_and_b32 {s(S_IDX)}, {s(S_IDX)}, 3')
    SX, SO = 48, 52
    S_XS, S_XD, S_PS, S_NS = S_A, S_B, S_C, S_D
    VXA, VPA, VNA, VPOLL, VFLAG, VZERO, VT, VST = 110, 111, 112, 113, 114, 115, 116, 117
    A('v_bfe_u32 v72, v79, 3, 2')
    A('v_lshrrev_b32 v73, 5, v79')
    A(f's_mul_i32 {s(S_TMP)}, {w}, 9')
    A(f'v_add_u32 v73, {s(S_TMP)}, v73')
    A(f'v_mul_u32_u24 {v(VXA)}, 1152, v76')
    A(f'v_lshlrev_b32 v74, 5, v73'); A(f'v_add_u32 {v(VXA)}, {v(VXA)}, v74')
    A(f'v_lshlrev_b32 v74, 3, v72'); A(f'v_add_u32 {v(VXA)}, {v(VXA)}, v74')
    A(f'v_lshlrev_b32 {v(VPA)}, 4, v79')
    A(f's_mul_i32 {s(S_TMP)}, {w}, 4608')
    A(f'v_add_u32 {v(VPA)}, {s(S_TMP)}, {v(VPA)}')
    A(f'v_lshrrev_b32 {v(VNA)}, 1, v73'); A(f'v_lshlrev_b32 {v(VNA)}, 10, {v(VNA)}')
    A(f'v_and_b32 v74, 1, v73'); A(f'v_lshlrev_b32 v74, 3, v74'); A(f'v_add_u32 {v(VNA)}, {v(VNA)}, v74')
    A(f'v_lshlrev_b32 v74, 4, v72'); A(f'v_add_u32 v74, v74, v76'); A(f'v_lshlrev_b32 v74, 4, v74')
    A(f'v_add_u32 {v(VNA)}, {v(VNA)}, v74')
    A(f's_and_b32 {s(S_TMP)}, {s(S_IDX)}, 1')
    A(f's_lshr_b32 {s(S_TMP+1)}, {s(S_IDX)}, 1')
    A(f's_lshl_b32 {s(S_TMP+2)}, {s(S_TMP)}, 7')
    A(f'v_add_u32 {v(VNA)}, {s(S_TMP+2)}, {v(VNA)}')
    A(f'v_lshlrev_b32 {v(VST)}, 3, v76')
    A(f'v_mov_b32 {v(VZERO)}, 0')
    A(f's_mul_i32 {s(S_XS)}, {s(S_IDX)}, {8*1152}')
    A(f's_mov_b32 {s(S_XD)}, {s(S_XS)}')
    A(f's_mul_i32 {s(S_PS)}, {s(S_IDX)}, 18432')
    A(f's_mul_i32 {s(S_NS)}, {s(S_TMP+1)}, 18432')
    XB = 2048*1152
    if kind == 'R0' or (kind == 'RA' and l == 0):
        A(f's_load_dwordx2 {s(S_PTR,2)}, {s(S_KA,2)}, {KA_AX}'); A('s_waitcnt lgkmcnt(0)')
        srd_from_ptr(A, SX, S_PTR, XB)
    else:
        for i in range(4): A(f's_mov_b32 {s(SX+i)}, {s(S_WS+i)}')
        A(f's_add_u32 {s(S_XS)}, {s(S_XS)}, {hex(WS_X2 if kind == "RA" else WS_X1[l])}')
    if final:
        A(f's_load_dwordx2 {s(S_PTR,2)}, {s(S_KA,2)}, {KA_OUT}'); A('s_waitcnt lgkmcnt(0)')
        srd_from_ptr(A, SO, S_PTR, XB)
    else:
        for i in range(4): A(f's_mov_b32 {s(SO+i)}, {s(S_WS+i)}')
        if kind != 'R0': A(f's_add_u32 {s(S_XD)}, {s(S_XD)}, {hex(WS_X1[l] if kind == "RA" else WS_X2)}')
    if nparts:
        A(f's_add_u32 {s(S_PS)}, {s(S_PS)}, {hex(WS_PA[l] if kind == "RA" else WS_PB[l])}')
        if kind == 'RA': flagaddr(A, VPOLL, R_A3[l], 12)
        else: flagaddr(A, VPOLL, R_B3[l], 48)
    if not final:
        A(f's_add_u32 {s(S_NS)}, {s(S_NS)}, {hex({"R0": WS_XNA[0], "RA": WS_XNB[l], "RB": WS_XNA[1]}[kind])}')
    own_flag(A)
    A(f's_mov_b32 {s(S_EXLO)}, -1'); A(f's_mov_b32 {s(S_EXLO+1)}, 0')
    if ALT == 2:
        for (r, st) in ((S_XS, SEG_X), (S_XD, SEG_X), (S_PS, SEG_PA if kind == "RA" else SEG_PB), (S_NS, SEG_XN)):
            A(f's_mul_i32 {s(S_TMP)}, {s(S_PAR)}, {st}'); A(f's_add_u32 {s(r)}, {s(r)}, {s(S_TMP)}')
    cfg['barrier_wait'](A)
    A(f's_mov_b32 {s(S_SEG)}, {s(S_PAR)}')
    A(f's_mov_b32 {s(S_X)}, 0')
    if nparts:
        A(f's_add_u32 {s(S_TGT)}, {s(S_SEG)}, 1')
        poll_block(A, cfg, VPOLL, s(S_TGT), VFLAG, fail)
    loop = A.newlabel('rloop')
    A.label(loop)
    fst(A, cfg, 1, S_SEG)
    XR = 20; PR = 128
    def masked(i, f):
        if i == 4: A(f's_mov_b64 exec, {s(S_EXLO,2)}')
        f()
        if i == 4: A('s_mov_b64 exec, -1')
    for i in range(5):
        masked(i, lambda: A(f'buffer_load_dwordx2 {v(XR+2*i,2)}, {v(VXA)}, {s(SX,4)}, {s(S_XS)} offen offset:{i*64}'))
    for p in range(nparts):
        A(f's_add_u32 {s(S_TMP)}, {s(S_PS)}, {p*73728}')
        A(f's_add_u32 {s(S_TMP+1)}, {s(S_TMP)}, 4096')
        for i in range(5):
            masked(i, lambda: A(f'buffer_load_dwordx4 {v(PR+p*20+i*4,4)}, {v(VPA)}, {s(S_WS,4)}, {s(S_TMP+1 if i == 4 else S_TMP)} offen offset:{(i%4)*1024}'))
    A('s_waitcnt vmcnt(0)')
    fst(A, cfg, 2, S_SEG)
    HI = 118
    if True:
        A(f'v_mov_b32 {v(HI)}, 0xffff0000')
    for i in range(5):
        X = 4*i
        def body():
            A(f'v_lshlrev_b32 {v(X)}, 16, {v(XR+2*i)}')
            A(f'v_and_b32 {v(X+1)}, {v(HI)}, {v(XR+2*i)}')
            A(f'v_lshlrev_b32 {v(X+2)}, 16, {v(XR+2*i+1)}')
            A(f'v_and_b32 {v(X+3)}, {v(HI)}, {v(XR+2*i+1)}')
            if nparts:
                y = PR + i*4
                if nparts == 4:
                    for (d, o) in ((0, 1), (2, 3), (0, 2)):
                        for hh in (0, 2):
                            A(f'v_pk_add_f32 {v(y+d*20+hh,2)}, {v(y+d*20+hh,2)}, {v(y+o*20+hh,2)}')
                cvt(A, y, y, y+1); cvt(A, y+1, y+2, y+3)
                A(f'v_lshlrev_b32 {v(y+4-4+2)}, 16, {v(y)}') if False else None
                A(f'v_and_b32 {v(y+2)}, {v(HI)}, {v(y)}')
                A(f'v_and_b32 {v(y+3)}, {v(HI)}, {v(y+1)}')
                A(f'v_lshlrev_b32 {v(y)}, 16, {v(y)}')
                A(f'v_lshlrev_b32 {v(y+1)}, 16, {v(y+1)}')
                A(f'v_add_f32 {v(X)}, {v(X)}, {v(y)}')
                A(f'v_add_f32 {v(X+1)}, {v(X+1)}, {v(y+2)}')
                A(f'v_add_f32 {v(X+2)}, {v(X+2)}, {v(y+1)}')
                A(f'v_add_f32 {v(X+3)}, {v(X+3)}, {v(y+3)}')
                cvt(A, XR+2*i, X, X+1); cvt(A, XR+2*i+1, X+2, X+3)
                A(f'buffer_store_dwordx2 {v(XR+2*i,2)}, {v(VXA)}, {s(SO,4)}, {s(S_XD)} offen offset:{i*64}' + ('' if final else ' sc1'))
                if not final:
                    A(f'v_lshlrev_b32 {v(X)}, 16, {v(XR+2*i)}')
                    A(f'v_and_b32 {v(X+1)}, {v(HI)}, {v(XR+2*i)}')
                    A(f'v_lshlrev_b32 {v(X+2)}, 16, {v(XR+2*i+1)}')
                    A(f'v_and_b32 {v(X+3)}, {v(HI)}, {v(XR+2*i+1)}')
        masked(i, body)
    if not final:
        SM, M2, T1 = 40, 41, 42
        A(f'v_pk_add_f32 {v(44,2)}, {v(0,2)}, {v(2,2)}')
        for i in range(1, 4):
            A(f'v_pk_add_f32 {v(44,2)}, {v(44,2)}, {v(4*i,2)}')
            A(f'v_pk_add_f32 {v(44,2)}, {v(44,2)}, {v(4*i+2,2)}')
        def b4():
            A(f'v_pk_add_f32 {v(44,2)}, {v(44,2)}, {v(16,2)}')
            A(f'v_pk_add_f32 {v(44,2)}, {v(44,2)}, {v(18,2)}')
        masked(4, b4)
        A(f'v_add_f32 {v(SM)}, v44, v45')
        xlane_sum(A, SM, T1)
        A(f'v_mul_f32 {v(SM)}, {hex(f32(1.0/144))}, {v(SM)}')
        A(f'v_mov_b32 {v(M2)}, 0')
        for i in range(5):
            def b5():
                for r in range(4):
                    A(f'v_sub_f32 {v(46)}, {v(4*i+r)}, {v(SM)}')
                    A(f'v_fmac_f32 {v(M2)}, v46, v46')
            masked(i, b5)
        xlane_sum(A, M2, T1)
        A(f's_lshl_b32 {s(S_TMP)}, {w}, 6')
        A(f's_add_u32 {s(S_TMP)}, {s(S_TMP)}, {s(S_X)}')
        A(f'v_add_u32 {v(T1)}, {s(S_TMP)}, {v(VST)}')
        A('s_mov_b64 exec, 0xff')
        A(f'ds_write_b64 {v(T1)}, {v(SM,2)}')
        A('s_mov_b64 exec, -1')
        A(f'v_add_u32 {v(T1)}, {s(S_X)}, {v(VST)}')
        A('s_waitcnt lgkmcnt(0)')
        fst(A, cfg, 3, S_SEG)
        A('s_barrier')
        fst(A, cfg, 4, S_SEG)
        for ww in range(4):
            A(f'ds_read_b64 {v(48+2*ww,2)}, {v(T1)} offset:{ww*64}')
        A(f's_xor_b32 {s(S_X)}, {s(S_X)}, 256')
        A('s_waitcnt lgkmcnt(0)')
        A('v_add_f32 v56, v48, v50'); A('v_add_f32 v57, v52, v54'); A('v_add_f32 v56, v56, v57')
        A('v_mul_f32 v56, 0.25, v56')
        A('v_add_f32 v57, v49, v51'); A('v_add_f32 v58, v53, v55'); A('v_add_f32 v57, v57, v58')
        A('v_mov_b32 v58, 0')
        for ww in range(4):
            A(f'v_sub_f32 v59, {v(48+2*ww)}, v56')
            A(f'v_fmac_f32 v58, v59, v59')
        A(f'v_fmac_f32 v57, {hex(f32(144.0))}, v58')
        A(f'v_mov_b32 v59, {hex(f32(1e-5))}')
        A(f'v_fmac_f32 v59, {hex(f32(1.0/576))}, v57')
        A('v_rsq_f32 v59, v59')
        A(f's_add_u32 {s(S_TMP+1)}, {s(S_NS)}, 4096')
        for i in range(5):
            def b6():
                X = 4*i
                for r in range(4):
                    A(f'v_sub_f32 {v(X+r)}, {v(X+r)}, v56')
                for r in range(4):
                    A(f'v_mul_f32 {v(X+r)}, {v(X+r)}, v59')
                cvt(A, X, X, X+1); cvt(A, X+1, X+2, X+3)
                A(f'buffer_store_dwordx2 {v(X,2)}, {v(VNA)}, {s(S_WS,4)}, {s(S_TMP+1 if i == 4 else S_NS)} offen offset:{(i%4)*1024} sc1')
            masked(i, b6)
    fst(A, cfg, 5, S_SEG)
    if nparts: poll_issue(A, cfg, VPOLL, VFLAG)
    A(f's_add_u32 {s(S_XS)}, {s(S_XS)}, {ALT*SEG_X}')
    A(f's_add_u32 {s(S_XD)}, {s(S_XD)}, {ALT*SEG_X}')
    A(f's_add_u32 {s(S_PS)}, {s(S_PS)}, {ALT*(SEG_PA if kind == "RA" else SEG_PB)}')
    A(f's_add_u32 {s(S_NS)}, {s(S_NS)}, {ALT*SEG_XN}')
    A(f's_add_u32 {s(S_TMP)}, {s(S_SEG)}, 1')
    A(f's_add_u32 {s(S_SEG)}, {s(S_SEG)}, {ALT}')
    A('s_waitcnt vmcnt(0)')
    fst(A, cfg, 6, S_SEG, 32+ALT)
    if not final: publish(A, s(S_TMP), VT, VZERO)
    elif cfg.get('TIME'): tstamp(A, CFG, s(S_TMP), VT, VZERO)
    A(f's_cmp_ge_u32 {s(S_SEG)}, 64')
    A(f's_cbranch_scc1 {done}')
    if nparts:
        A(f's_add_u32 {s(S_TGT)}, {s(S_SEG)}, 1')
        poll_check(A, cfg, VPOLL, s(S_TGT), VFLAG, fail)
    A(f's_branch {loop}')


def role_red2(A, cfg, kind, l, fail, done):
    set_scope(False)
    w = s(S_WAVE)
    nparts = {'R0': 0, 'RA': 1, 'RB': 4}[kind]
    final = (kind == 'RB' and l == 1)
    ALT = 2 if kind == 'RB' else 1
    xgate = not (kind == 'R0' or (kind == 'RA' and l == 0))
    lane_setup(A)
    S_PAR = S_X + 1; S_HAVE = S_X
    A(f's_lshr_b32 {s(S_PAR)}, {s(S_IDX)}, 2')
    A(f's_and_b32 {s(S_IDX)}, {s(S_IDX)}, 3')
    SX, SO = 48, 52
    S_PM = 56
    S_XS, S_XD, S_PS, S_NS = S_A, S_B, S_C, S_D
    VXA, VPA, VNW, VPOLL, VFLAG, VZERO, VT, VST, HI, VL16, VNG, VTG, VTOG, VP2, VF2 = range(96, 111)
    L_ST, L_XO, L_NO = 0, 1024, 10240
    A('v_bfe_u32 v72, v79, 3, 2')
    A('v_lshrrev_b32 v73, 5, v79')
    A(f'v_lshlrev_b32 {v(VNG)}, 10, v73')
    A(f'v_lshlrev_b32 v74, 8, v72'); A(f'v_add_u32 {v(VNG)}, {v(VNG)}, v74')
    A(f'v_lshlrev_b32 v74, 4, v76'); A(f'v_add_u32 {v(VNG)}, {v(VNG)}, v74')
    A(f's_mul_i32 {s(S_TMP)}, {w}, 9')
    A(f'v_add_u32 v73, {s(S_TMP)}, v73')
    A(f'v_mul_u32_u24 {v(VXA)}, 1152, v76')
    A(f'v_lshlrev_b32 v74, 5, v73'); A(f'v_add_u32 {v(VXA)}, {v(VXA)}, v74')
    A(f'v_lshlrev_b32 v74, 3, v72'); A(f'v_add_u32 {v(VXA)}, {v(VXA)}, v74')
    A(f'v_lshlrev_b32 {v(VL16)}, 4, v79')
    A(f's_mul_i32 {s(S_TMP)}, {w}, 4608')
    A(f'v_add_u32 {v(VPA)}, {s(S_TMP)}, {v(VL16)}')
    A(f'v_lshrrev_b32 {v(VNW)}, 1, v73'); A(f'v_lshlrev_b32 {v(VNW)}, 9, {v(VNW)}')
    A(f'v_and_b32 v74, 1, v73'); A(f'v_lshlrev_b32 v74, 3, v74'); A(f'v_add_u32 {v(VNW)}, {v(VNW)}, v74')
    A(f'v_lshlrev_b32 v74, 7, v72'); A(f'v_add_u32 {v(VNW)}, {v(VNW)}, v74')
    A(f'v_lshlrev_b32 v74, 4, v76'); A(f'v_add_u32 {v(VNW)}, {v(VNW)}, v74')
    A(f'v_add_u32 {v(VNW)}, {L_NO}, {v(VNW)}')
    A(f's_and_b32 {s(S_TMP)}, {s(S_IDX)}, 1')
    A(f's_lshr_b32 {s(S_TMP+1)}, {s(S_IDX)}, 1')
    A(f's_lshl_b32 {s(S_TMP+2)}, {s(S_TMP)}, 7')
    A(f'v_add_u32 {v(VNG)}, {s(S_TMP+2)}, {v(VNG)}')
    A(f'v_lshlrev_b32 {v(VST)}, 3, v76')
    A(f'v_mov_b32 {v(VZERO)}, 0')
    A(f'v_mov_b32 {v(HI)}, 0xffff0000')
    A(f's_mul_i32 {s(S_XS)}, {s(S_IDX)}, {8*1152}')
    A(f's_mov_b32 {s(S_XD)}, {s(S_XS)}')
    A(f's_mul_i32 {s(S_PS)}, {s(S_IDX)}, 18432')
    A(f's_mul_i32 {s(S_NS)}, {s(S_TMP+1)}, 18432')
    XB = 2048*1152
    if not xgate:
        A(f's_load_dwordx2 {s(S_PTR,2)}, {s(S_KA,2)}, {KA_AX}'); A('s_waitcnt lgkmcnt(0)')
        srd_from_ptr(A, SX, S_PTR, XB)
    else:
        for i in range(4): A(f's_mov_b32 {s(SX+i)}, {s(S_WS+i)}')
        A(f's_add_u32 {s(S_XS)}, {s(S_XS)}, {hex(WS_X2 if kind == "RA" else WS_X1[l])}')
    if final:
        A(f's_load_dwordx2 {s(S_PTR,2)}, {s(S_KA,2)}, {KA_OUT}'); A('s_waitcnt lgkmcnt(0)')
        srd_from_ptr(A, SO, S_PTR, XB)
    else:
        for i in range(4): A(f's_mov_b32 {s(SO+i)}, {s(S_WS+i)}')
        if kind != 'R0': A(f's_add_u32 {s(S_XD)}, {s(S_XD)}, {hex(WS_X1[l] if kind == "RA" else WS_X2)}')
    if nparts:
        A(f's_add_u32 {s(S_PS)}, {s(S_PS)}, {hex(WS_PA[l] if kind == "RA" else WS_PB[l])}')
        if kind == 'RA': flagaddr(A, VPOLL, R_A3[l], 12)
        else: flagaddr(A, VPOLL, R_B3[l], 48)
        A(f's_mov_b32 {s(S_PM)}, -1'); A(f's_mov_b32 {s(S_PM+1)}, 0xffff')
        if xgate:
            A(f'v_and_b32 v72, 15, v79')
            flagaddr(A, VP2, R_RB[0] if kind == 'RA' else R_RA[l], 16, vlane=72)
            if kind == 'RA': A(f'v_xor_b32 {v(VP2)}, 512, {v(VP2)}')
            A(f'v_cndmask_b32 {v(VPOLL)}, {v(VP2)}, {v(VPOLL)}, {s(S_PM,2)}')
            A(f'v_mov_b32 {v(VTOG)}, {512 if kind == "RA" else 0}')
            A(f'v_cndmask_b32 {v(VTOG)}, {v(VTOG)}, 0, {s(S_PM,2)}')
    if not final:
        A(f's_add_u32 {s(S_NS)}, {s(S_NS)}, {hex({"R0": WS_XNA[0], "RA": WS_XNB[l], "RB": WS_XNA[1]}[kind])}')
    own_flag(A)
    A(f's_mov_b32 {s(S_EXLO)}, -1'); A(f's_mov_b32 {s(S_EXLO+1)}, 0')
    if ALT == 2:
        for (r, st) in ((S_XS, SEG_X), (S_XD, SEG_X), (S_NS, SEG_XN)):
            A(f's_mul_i32 {s(S_TMP)}, {s(S_PAR)}, {st}'); A(f's_add_u32 {s(r)}, {s(r)}, {s(S_TMP)}')
    S_C0 = 60
    A(f's_lshl_b32 {s(S_C0)}, {w}, 10')
    A(f's_lshl_b32 {s(S_C0+1)}, {w}, 11')
    VRD = 111
    A(f'v_add_u32 {v(VRD)}, {s(S_C0)}, {v(VL16)}')
    XR = 20; XP = 30; PR = 128
    def masked(i, f):
        if i == 4: A(f's_mov_b64 exec, {s(S_EXLO,2)}')
        f()
        if i == 4: A('s_mov_b64 exec, -1')
    def xloads():
        for i in range(5):
            masked(i, lambda: A(f'buffer_load_dwordx2 {v(XP+2*i,2)}, {v(VXA)}, {s(SX,4)}, {s(S_XS)} offen offset:{i*64}'))
        A(f's_add_u32 {s(S_XS)}, {s(S_XS)}, {ALT*SEG_X}')
    def set_targets():
        A(f's_add_u32 {s(S_TGT)}, {s(S_SEG)}, 1')
        if xgate:
            A(f's_add_u32 {s(S_TMP+1)}, {s(S_SEG)}, {ALT+1}')
            A(f'v_mov_b32 {v(VTG)}, {s(S_TGT)}')
            A(f'v_mov_b32 {v(VT)}, {s(S_TMP+1)}')
            A(f'v_cndmask_b32 {v(VTG)}, {v(VT)}, {v(VTG)}, {s(S_PM,2)}')
    def pcheck():
        if cfg.get('NOWAIT'): return
        ok = A.newlabel('rok'); re_ = A.newlabel('rre')
        def test():
            if xgate:
                A(f'v_cmp_gt_u32 vcc, {v(VTG)}, {v(VFLAG)}')
                A(f's_and_b64 {s(58,2)}, vcc, {s(S_PM,2)}')
                A(f's_cbranch_scc0 {ok}')
            else:
                A(f'v_cmp_gt_u32 vcc, {s(S_TGT)}, {v(VFLAG)}')
                A(f's_cbranch_vccz {ok}')
        test()
        A(f's_mov_b32 {s(S_SPIN)}, {SPIN_LIMIT}')
        A.label(re_)
        A(f'buffer_load_dword {v(VFLAG)}, {v(VPOLL)}, {s(S_WS,4)}, 0 offen sc1')
        A('s_waitcnt vmcnt(0)')
        test()
        spin_check(A, re_, fail)
        A.label(ok)
    cfg['barrier_wait'](A)
    A(f's_mov_b32 {s(S_SEG)}, {s(S_PAR)}')
    A(f's_mov_b32 {s(S_HAVE)}, 0')
    if not xgate:
        xloads(); A(f's_mov_b32 {s(S_HAVE)}, 1')
    set_targets()
    if nparts:
        poll_issue(A, cfg, VPOLL, VFLAG)
        A('s_waitcnt vmcnt(0)')
        pcheck()
    else:
        A('s_waitcnt vmcnt(0)')
    loop = A.newlabel('rloop')
    A.label(loop); A.flush()
    fst(A, cfg, 1, S_SEG)
    if xgate:
        hv = A.newlabel('rhave')
        A(f's_cmp_lg_u32 {s(S_HAVE)}, 0')
        A(f's_cbranch_scc1 {hv}')
        if not cfg.get('NOWAIT'):
            re_ = A.newlabel('rxre'); ok = A.newlabel('rxok')
            A(f'v_xor_b32 {v(VP2)}, {v(VTOG)}, {v(VPOLL)}')
            A(f's_mov_b32 {s(S_SPIN)}, {SPIN_LIMIT}')
            A.label(re_)
            A(f'buffer_load_dword {v(VF2)}, {v(VP2)}, {s(S_WS,4)}, 0 offen sc1')
            A('s_waitcnt vmcnt(0)')
            A(f'v_cmp_gt_u32 vcc, {s(S_TGT)}, {v(VF2)}')
            A(f's_andn2_b64 {s(58,2)}, vcc, {s(S_PM,2)}')
            A(f's_cbranch_scc0 {ok}')
            spin_check(A, re_, fail)
            A.label(ok)
        xloads()
        A('s_waitcnt vmcnt(0)')
        A.label(hv); A.flush()
    for i in range(10): A(f'v_mov_b32 {v(XR+i)}, {v(XP+i)}')
    PRING = ring('PA' if kind == 'RA' else 'PB') if nparts else 64
    if nparts: ring_off(A, S_C0+3, S_PS, s(S_SEG), PRING, SEG_PA if kind == 'RA' else SEG_PB)
    psc = ' sc1' if PRING < 64 else ''
    for p in range(nparts):
        A(f's_add_u32 {s(S_TMP)}, {s(S_C0+3)}, {p*73728}')
        A(f's_add_u32 {s(S_TMP+1)}, {s(S_TMP)}, 4096')
        for i in range(5):
            masked(i, lambda: A(f'buffer_load_dwordx4 {v(PR+p*20+i*4,4)}, {v(VPA)}, {s(S_WS,4)}, {s(S_TMP+1 if i == 4 else S_TMP)} offen offset:{(i%4)*1024}{psc}'))
    nopf = A.newlabel('rnopf'); pfd = A.newlabel('rpfd')
    A(f's_mov_b32 {s(S_HAVE)}, 0')
    A(f's_cmp_ge_u32 {s(S_SEG)}, {64 - ALT}')
    A(f's_cbranch_scc1 {nopf}')
    if xgate and not cfg.get('NOWAIT'):
        A(f'v_cmp_gt_u32 vcc, {v(VTG)}, {v(VFLAG)}')
        A(f's_andn2_b64 {s(58,2)}, vcc, {s(S_PM,2)}')
        A(f's_cbranch_scc1 {nopf}')
    xloads()
    A(f's_mov_b32 {s(S_HAVE)}, 1')
    if nparts: A('s_waitcnt vmcnt(5)')
    A(f's_branch {pfd}')
    A.label(nopf); A.flush()
    if nparts: A('s_waitcnt vmcnt(0)')
    A.label(pfd); A.flush()
    fst(A, cfg, 2, S_SEG)
    if final: A('s_barrier')
    for i in range(5):
        X = 4*i
        def body():
            A(f'v_lshlrev_b32 {v(X)}, 16, {v(XR+2*i)}')
            A(f'v_and_b32 {v(X+1)}, {v(HI)}, {v(XR+2*i)}')
            A(f'v_lshlrev_b32 {v(X+2)}, 16, {v(XR+2*i+1)}')
            A(f'v_and_b32 {v(X+3)}, {v(HI)}, {v(XR+2*i+1)}')
            if nparts:
                y = PR + i*4
                if nparts == 4:
                    for (d, o) in ((0, 1), (2, 3), (0, 2)):
                        for hh in (0, 2):
                            A(f'v_pk_add_f32 {v(y+d*20+hh,2)}, {v(y+d*20+hh,2)}, {v(y+o*20+hh,2)}')
                cvt(A, y, y, y+1); cvt(A, y+1, y+2, y+3)
                A(f'v_and_b32 {v(y+2)}, {v(HI)}, {v(y)}')
                A(f'v_and_b32 {v(y+3)}, {v(HI)}, {v(y+1)}')
                A(f'v_lshlrev_b32 {v(y)}, 16, {v(y)}')
                A(f'v_lshlrev_b32 {v(y+1)}, 16, {v(y+1)}')
                A(f'v_add_f32 {v(X)}, {v(X)}, {v(y)}')
                A(f'v_add_f32 {v(X+1)}, {v(X+1)}, {v(y+2)}')
                A(f'v_add_f32 {v(X+2)}, {v(X+2)}, {v(y+1)}')
                A(f'v_add_f32 {v(X+3)}, {v(X+3)}, {v(y+3)}')
                cvt(A, XR+2*i, X, X+1); cvt(A, XR+2*i+1, X+2, X+3)
                A(f'ds_write_b64 {v(VXA)}, {v(XR+2*i,2)} offset:{L_XO + i*64}')
                if not final:
                    A(f'v_lshlrev_b32 {v(X)}, 16, {v(XR+2*i)}')
                    A(f'v_and_b32 {v(X+1)}, {v(HI)}, {v(XR+2*i)}')
                    A(f'v_lshlrev_b32 {v(X+2)}, 16, {v(XR+2*i+1)}')
                    A(f'v_and_b32 {v(X+3)}, {v(HI)}, {v(XR+2*i+1)}')
        masked(i, body)
    OC = 60
    def chunk_out(lbase, extra_wave, gv, gsrd, gs, gmul, scope):
        ex = A.newlabel('rex'); ex2 = A.newlabel('rex2')
        A(f'ds_read_b128 {v(OC,4)}, {v(VRD)} offset:{lbase}')
        A(f'ds_read_b128 {v(OC+4,4)}, {v(VRD)} offset:{lbase + 4096}')
        A(f's_add_u32 {s(S_TMP)}, {gs}, {s(S_C0 if gmul == 1024 else S_C0+1)}')
        A(f's_add_u32 {s(S_TMP+1)}, {s(S_TMP)}, {4*gmul}')
        A(f's_cmp_lg_u32 {w}, {extra_wave}')
        A(f's_cbranch_scc1 {ex}')
        A(f'ds_read_b128 {v(OC+8,4)}, {v(VL16)} offset:{lbase + 8192}')
        A(f's_add_u32 {s(S_TMP+2)}, {gs}, {8*gmul}')
        A('s_waitcnt lgkmcnt(0)')
        A(f'buffer_store_dwordx4 {v(OC+8,4)}, {v(gv)}, {s(gsrd,4)}, {s(S_TMP+2)} offen' + scope)
        A.label(ex); A.flush()
        A('s_waitcnt lgkmcnt(0)')
        A(f'buffer_store_dwordx4 {v(OC,4)}, {v(gv)}, {s(gsrd,4)}, {s(S_TMP)} offen' + scope)
        A(f'buffer_store_dwordx4 {v(OC+4,4)}, {v(gv)}, {s(gsrd,4)}, {s(S_TMP+1)} offen' + scope)
    if final:
        A('s_waitcnt lgkmcnt(0)')
        A('s_barrier')
        chunk_out(L_XO, 0, VL16, SO, s(S_XD), 1024, '')
    else:
        SM, M2, T1 = 40, 41, 42
        A(f'v_pk_add_f32 {v(44,2)}, {v(0,2)}, {v(2,2)}')
        for i in range(1, 4):
            A(f'v_pk_add_f32 {v(44,2)}, {v(44,2)}, {v(4*i,2)}')
            A(f'v_pk_add_f32 {v(44,2)}, {v(44,2)}, {v(4*i+2,2)}')
        def b4():
            A(f'v_pk_add_f32 {v(44,2)}, {v(44,2)}, {v(16,2)}')
            A(f'v_pk_add_f32 {v(44,2)}, {v(44,2)}, {v(18,2)}')
        masked(4, b4)
        A(f'v_add_f32 {v(SM)}, v44, v45')
        xlane_sum(A, SM, T1)
        A(f'v_mul_f32 {v(SM)}, {hex(f32(1.0/144))}, {v(SM)}')
        A(f'v_mov_b32 {v(M2)}, 0')
        for i in range(5):
            def b5():
                for r in range(4):
                    A(f'v_sub_f32 {v(46)}, {v(4*i+r)}, {v(SM)}')
                    A(f'v_fmac_f32 {v(M2)}, v46, v46')
            masked(i, b5)
        xlane_sum(A, M2, T1)
        A(f'v_add_u32 {v(T1)}, {s(S_C0)}, {v(VST)}') if False else None
        A(f's_lshl_b32 {s(S_TMP)}, {w}, 6')
        A(f'v_add_u32 {v(T1)}, {s(S_TMP)}, {v(VST)}')
        A('s_mov_b64 exec, 0xff')
        A(f'ds_write_b64 {v(T1)}, {v(SM,2)} offset:{L_ST}')
        A('s_mov_b64 exec, -1')
        A('s_waitcnt lgkmcnt(0)')
        fst(A, cfg, 3, S_SEG)
        A('s_barrier')
        fst(A, cfg, 4, S_SEG)
        for ww in range(4):
            A(f'ds_read_b64 {v(48+2*ww,2)}, {v(VST)} offset:{L_ST + ww*64}')
        if nparts: chunk_out(L_XO, 0, VL16, SO, s(S_XD), 1024, ' sc1')
        else: A('s_waitcnt lgkmcnt(0)')
        A('v_add_f32 v56, v48, v50'); A('v_add_f32 v57, v52, v54'); A('v_add_f32 v56, v56, v57')
        A('v_mul_f32 v56, 0.25, v56')
        A('v_add_f32 v57, v49, v51'); A('v_add_f32 v58, v53, v55'); A('v_add_f32 v57, v57, v58')
        A('v_mov_b32 v58, 0')
        for ww in range(4):
            A(f'v_sub_f32 v59, {v(48+2*ww)}, v56')
            A(f'v_fmac_f32 v58, v59, v59')
        A(f'v_fmac_f32 v57, {hex(f32(144.0))}, v58')
        A(f'v_mov_b32 v59, {hex(f32(1e-5))}')
        A(f'v_fmac_f32 v59, {hex(f32(1.0/576))}, v57')
        A('v_rsq_f32 v59, v59')
        for i in range(5):
            def b6():
                X = 4*i
                for r in range(4):
                    A(f'v_sub_f32 {v(X+r)}, {v(X+r)}, v56')
                for r in range(4):
                    A(f'v_mul_f32 {v(X+r)}, {v(X+r)}, v59')
                cvt(A, X, X, X+1); cvt(A, X+1, X+2, X+3)
                A(f'ds_write_b64 {v(VNW)}, {v(X,2)} offset:{i*512}')
            masked(i, b6)
        A('s_waitcnt lgkmcnt(0)')
        A('s_barrier')
        chunk_out(L_NO, 1, VNG, S_WS, s(S_NS), 2048, ' sc1')
    fst(A, cfg, 5, S_SEG)
    A(f's_add_u32 {s(S_XD)}, {s(S_XD)}, {ALT*SEG_X}')
    A(f's_add_u32 {s(S_NS)}, {s(S_NS)}, {ALT*SEG_XN}')
    A(f's_add_u32 {s(S_C0+2)}, {s(S_SEG)}, 1')
    A(f's_add_u32 {s(S_SEG)}, {s(S_SEG)}, {ALT}')
    if xgate: A(f'v_xor_b32 {v(VPOLL)}, {v(VTOG)}, {v(VPOLL)}')
    if nparts: poll_issue(A, cfg, VPOLL, VFLAG)
    set_targets()
    A('s_waitcnt vmcnt(0)')
    fst(A, cfg, 6, S_SEG, 32+ALT)
    publish(A, s(S_C0+2), VT, VZERO)
    A(f's_cmp_ge_u32 {s(S_SEG)}, 64')
    A(f's_cbranch_scc1 {done}')
    if nparts: pcheck()
    A(f's_branch {loop}')

def causal_masks(A, sbase, vt=72):
    A(f'v_lshlrev_b32 {v(vt)}, 2, v77')
    for r in range(4):
        A(f'v_add_u32 {v(vt+1)}, {r}, {v(vt)}')
        A(f'v_cmp_gt_u32 {s(sbase+2*r,2)}, {v(vt+1)}, v78')

def role_attb(A, cfg, fail, done):
    set_scope(True)
    w = s(S_WAVE)
    lane_setup(A)
    S_HH = S_A
    A(f's_lshl_b32 {s(S_HH)}, {s(S_IDX)}, 2')
    A(f's_add_u32 {s(S_HH)}, {s(S_HH)}, {w}')
    SMK = 46
    causal_masks(A, SMK)
    VL16, VP1, VP2, VFLAG, VZERO, VT, VSC, VNEG, VL8 = 220, 221, 222, 223, 224, 225, 226, 227, 228
    NEWKV = not cfg.get('OLDCHAIN')
    A(f'v_lshlrev_b32 {v(VL16)}, 4, v79')
    A(f'v_lshlrev_b32 {v(VL8)}, 3, v79')
    A(f'v_mov_b32 {v(VZERO)}, 0')
    A(f'v_mov_b32 {v(VSC)}, {hex(f32((128 ** -0.5) * 1.4426950408889634))}')
    A(f'v_mov_b32 {v(VNEG)}, {hex(BIGNEG)}')
    sel_layer(A, S_TMP+2, R_B1); A(f's_add_u32 {s(S_TMP+2)}, {s(S_TMP+2)}, {s(S_HH)}')
    flagaddr(A, VP1, s(S_TMP+2), 4)
    sel_layer(A, S_TMP+2, R_CHAIN); A(f's_add_u32 {s(S_TMP+2)}, {s(S_TMP+2)}, {s(S_HH)}')
    flagaddr(A, VP2, s(S_TMP+2), 4)
    VPD, VFD = 212, 213
    sel_layer(A, S_TMP+2, R_B3)
    A(f's_lshr_b32 {s(S_TMP)}, {s(S_IDX)}, 1'); A(f's_mul_i32 {s(S_TMP)}, {s(S_TMP)}, 3')
    A(f's_add_u32 {s(S_TMP+2)}, {s(S_TMP+2)}, {s(S_TMP)}')
    flagaddr(A, VPD, s(S_TMP+2), 12)
    own_flag(A)
    ROB = ring('OB')
    if ROB < 64:
        sel_layer(A, 60, WS_OB); sel_layer(A, 61, WS_PB)
        A(f's_lshl_b32 {s(62)}, {s(S_IDX)}, 2'); A(f's_add_u32 {s(62)}, {s(62)}, {w}')
    S_QX, S_KV, S_OB = S_B, S_C, S_D
    A(f's_mul_i32 {s(S_QX)}, {s(S_L)}, {QKVX_STRIDE}')
    A(f's_mul_i32 {s(S_TMP)}, {s(S_HH)}, 24576')
    A(f's_add_u32 {s(S_QX)}, {s(S_QX)}, {s(S_TMP)}')
    A(f's_add_u32 {s(S_QX)}, {s(S_QX)}, {WS_QKVX}')
    A(f's_mul_i32 {s(S_KV)}, {s(S_L)}, {KVM_STRIDE}')
    A(f's_lshl_b32 {s(S_TMP)}, {s(S_HH)}, 13')
    A(f's_add_u32 {s(S_KV)}, {s(S_KV)}, {s(S_TMP)}')
    A(f's_add_u32 {s(S_KV)}, {s(S_KV)}, {WS_KVM}')
    sel_layer(A, S_OB, WS_OB)
    A(f's_lshr_b32 {s(S_TMP)}, {s(S_HH)}, 3'); A(f's_lshl_b32 {s(S_TMP)}, {s(S_TMP)}, 16')
    A(f's_add_u32 {s(S_OB)}, {s(S_OB)}, {s(S_TMP)}')
    A(f's_and_b32 {s(S_TMP)}, {s(S_HH)}, 7'); A(f's_lshl_b32 {s(S_TMP)}, {s(S_TMP)}, 12')
    A(f's_add_u32 {s(S_OB)}, {s(S_OB)}, {s(S_TMP)}')
    cfg['barrier_wait'](A)
    if ROB < 64 and not cfg.get('SLOWV'): pretouch(A, [(60, ROB*SEG_OB), (61, ring('PB')*SEG_PB)], 32, 62, VL16, 0)
    A(f's_mov_b32 {s(S_SEG)}, 0')
    Q = lambda tt, kk: tt*16 + kk*4
    KX = lambda kt, kk: 32 + kt*16 + kk*4
    VX = lambda et: 64 + et*4
    KM = lambda kk: 96 + kk*4
    VM = lambda et: 112 + et*2
    S00, S01, S11, SM0, SM1 = 128, 132, 136, 140, 144
    O = lambda et, tt: 148 + ((tt*4 + et//2)*2 + (et & 1))*4
    XT = 0
    def qkvx_loads():
        for blk in range(6):
            A(f's_add_u32 {s(S_TMP)}, {s(S_QX)}, {blk*4096}')
            for j in range(4):
                A(f'buffer_load_dwordx4 {v((blk*4+j)*4,4)}, {v(VL16)}, {s(S_WS,4)}, {s(S_TMP)} offen offset:{j*1024}' + (' nt' if cfg.get('NTQ') else ''))
        A(f's_add_u32 {s(S_QX)}, {s(S_QX)}, {32*24576}')
    DP = 1 if (ROB < 64 and not cfg.get('NOWAIT')) else 0
    def kvm_loads():
        if DP: poll_issue(A, cfg, VPD, VFD)
        A(f's_add_u32 {s(S_TMP)}, {s(S_KV)}, 4096')
        for j in range(4): A(f'buffer_load_dwordx4 {v(KM(j),4)}, {v(VL16)}, {s(S_WS,4)}, {s(S_KV)} offen offset:{j*1024}')
        if NEWKV:
            for j in range(4): A(f'buffer_load_dwordx2 {v(112+2*j,2)}, {v(VL8)}, {s(S_WS,4)}, {s(S_TMP)} offen offset:{j*512}')
        else:
            for j in range(4): A(f'buffer_load_dwordx4 {v(112+4*j,4)}, {v(VL16)}, {s(S_WS,4)}, {s(S_TMP)} offen offset:{j*1024}')
        A(f's_add_u32 {s(S_KV)}, {s(S_KV)}, {32*8192}')
    qsc = ' nt' if cfg.get('NTQ') else ''
    def sx_mfma():
        for kk in range(4):
            for (acc, kt, tt) in ((S00, 0, 0), (S01, 0, 1), (S11, 1, 1)):
                A(f'{MF} {v(acc,4)}, {v(KX(kt,kk),4)}, {v(Q(tt,kk),4)}, {"0" if kk == 0 else v(acc,4)}')
    A(f's_mov_b32 {s(S_TGT)}, 1')
    poll_block(A, cfg, VP1, s(S_TGT), VFLAG, fail)
    qkvx_loads()
    A('s_waitcnt vmcnt(8)')
    slow = A.newlabel('bslow'); join = A.newlabel('bjoin'); loop = A.newlabel('bloop')
    A(f's_branch {slow}_2')
    A.label(loop); A.flush()
    fst(A, cfg, 0, S_SEG)
    if not cfg.get('NOWAIT'):
        A(f'v_cmp_gt_u32 vcc, {s(S_TGT)}, {v(VFLAG)}')
        A(f's_cbranch_vccnz {slow}')
    kvm_loads()
    A(f's_waitcnt vmcnt({8 + 8 + 1 + XT + DP})')
    sx_mfma()
    A('s_nop 7')
    A(f's_branch {join}')
    A.label(slow); A.flush()
    A(f's_waitcnt vmcnt({8 + 1 + XT})')
    A.label(slow + '_2'); A.flush()
    sx_mfma()
    poll_block(A, cfg, VP2, s(S_TGT), VFLAG, fail)
    kvm_loads()
    A.label(join); A.flush()
    fst(A, cfg, 3, S_SEG)
    for r in range(4):
        A(f'v_cndmask_b32 {v(S00+r)}, {v(S00+r)}, {v(VNEG)}, {s(SMK+2*r,2)}')
        A(f'v_cndmask_b32 {v(S11+r)}, {v(S11+r)}, {v(VNEG)}, {s(SMK+2*r,2)}')
    A('s_waitcnt vmcnt(4)')
    fst(A, cfg, 4, S_SEG)
    for kk in range(4):
        for (acc, tt) in ((SM0, 0), (SM1, 1)):
            A(f'{MF} {v(acc,4)}, {v(KM(kk),4)}, {v(Q(tt,kk),4)}, {"0" if kk == 0 else v(acc,4)}')
    MX = [230, 232]; T = 234; NM = [236, 237]; SUM = [238, 239]
    xs = [[S00], [S01, S11]]; ms = [SM0, SM1]
    NM_ = 2 if NEWKV else 4
    assert NEWKV
    allv = lambda tt: [x+r for x in xs[tt] for r in range(4)] + [ms[tt]+r for r in range(NM_)]
    for tt in range(2):
        vals = allv(tt)
        mx = MX[tt]
        A(f'v_max3_f32 {v(mx)}, {v(vals[0])}, {v(vals[1])}, {v(vals[2])}')
        rest = vals[3:]
        while len(rest) >= 2:
            A(f'v_max3_f32 {v(mx)}, {v(mx)}, {v(rest[0])}, {v(rest[1])}'); rest = rest[2:]
        if rest: A(f'v_max_f32 {v(mx)}, {v(mx)}, {v(rest[0])}')
    for tt in range(2):
        xlane_sum(A, MX[tt], T + tt, op='v_max_f32', ror8=False)
    for tt in range(2):
        A(f'v_mul_f32 {v(NM[tt])}, {hex(f32(-(128 ** -0.5) * 1.4426950408889634))}, {v(MX[tt])}')
    for tt in range(2):
        for x in allv(tt): A(f'v_fma_f32 {v(x)}, {v(x)}, {v(VSC)}, {v(NM[tt])}')
    for tt in range(2):
        for x in allv(tt): A(f'v_exp_f32 {v(x)}, {v(x)}')
    P0, P1, PM0, PM1 = 240, 244, 248, 252
    cvt(A, P0, S00, S00+1); cvt(A, P0+1, S00+2, S00+3)
    A(f'v_mov_b32 {v(P0+2)}, 0'); A(f'v_mov_b32 {v(P0+3)}, 0')
    cvt(A, P1, S01, S01+1); cvt(A, P1+1, S01+2, S01+3); cvt(A, P1+2, S11, S11+1); cvt(A, P1+3, S11+2, S11+3)
    for (pm, sm) in ((PM0, SM0), (PM1, SM1)):
        cvt(A, pm, sm, sm+1); A(f'v_mov_b32 {v(pm+1)}, 0'); A(f'v_mov_b32 {v(pm+2)}, 0'); A(f'v_mov_b32 {v(pm+3)}, {v(pm)}')
    for et in range(8):
        for tt in range(2):
            A(f'{MF} {v(O(et,tt),4)}, {v(VX(et),4)}, {v([P0,P1][tt],4)}, 0')
    for tt in range(2):
        vals = allv(tt)
        A(f'v_add_f32 {v(SUM[tt])}, {v(vals[0])}, {v(vals[1])}')
        for x in vals[2:]: A(f'v_add_f32 {v(SUM[tt])}, {v(SUM[tt])}, {v(x)}')
    A('s_waitcnt vmcnt(0)')
    for et in range(8):
        for tt in range(2):
            A(f'{MF16} {v(O(et,tt),4)}, {v(112 + 2*(et>>1),2)}, {v([PM0,PM1][tt] + 2*(et&1),2)}, {v(O(et,tt),4)}')
    for tt in range(2):
        xlane_sum(A, SUM[tt], T + tt, ror8=False)
    for tt in range(2): A(f'v_rcp_f32 {v(SUM[tt])}, {v(SUM[tt])}')
    if ROB < 64: down_check(A, cfg, VPD, VFD, s(S_SEG), ROB-1, 60, fail)
    jitter(A)
    ring_off(A, 61, S_OB, s(S_SEG), ROB, SEG_OB)
    for tt in range(2):
        A(f's_add_u32 {s(S_TMP)}, {s(61)}, {tt*32768}')
        for kk in range(4):
            b = O(2*kk, tt)
            for r in range(8): A(f'v_mul_f32 {v(b+r)}, {v(b+r)}, {v(SUM[tt])}')
            cvt(A, b, b, b+1); cvt(A, b+1, b+2, b+3); cvt(A, b+2, b+4, b+5); cvt(A, b+3, b+6, b+7)
            A(f'buffer_store_dwordx4 {v(b,4)}, {v(VL16)}, {s(S_WS,4)}, {s(S_TMP)} offen offset:{kk*1024}' + SCOPE[0])
    fst(A, cfg, 5, S_SEG)
    A(f's_add_u32 {s(S_SEG)}, {s(S_SEG)}, 1')
    last = A.newlabel('blast')
    A(f's_cmp_ge_u32 {s(S_SEG)}, 64')
    A(f's_cbranch_scc1 {last}')
    poll_issue(A, cfg, VP2, VFLAG)
    qkvx_loads()
    A('s_waitcnt vmcnt(24)')
    fst(A, cfg, 6, S_SEG, 33)
    publish(A, s(S_SEG), VT, VZERO)
    A(f's_add_u32 {s(S_TGT)}, {s(S_SEG)}, 1')
    A(f's_branch {loop}')
    A.label(last); A.flush()
    A('s_waitcnt vmcnt(0)')
    publish(A, s(S_SEG), VT, VZERO)
    A(f's_branch {done}')

NSLOT = 10
def role_atta(A, cfg, fail, done):
    set_scope(True)
    w = s(S_WAVE)
    lane_setup(A)
    if not cfg.get('NOWPT'):
        sk = A.newlabel('nowpt')
        if cfg.get('WPT', 'L0') == 'L0': A(f's_cmp_lg_u32 {s(S_L)}, 0'); A(f's_cbranch_scc1 {sk}')
        A('v_lshlrev_b32 v10, 4, v79')
        A(f's_lshl_b32 {s(S_A)}, {s(S_IDX)}, 2'); A(f's_add_u32 {s(S_A)}, {s(S_A)}, {w}'); A(f's_lshl_b32 {s(S_A)}, {s(S_A)}, 10')
        for ka, size in ((KA_WQKV, 576*3456), (KA_AWO, 576*1152)):
            load_ptr_srd(A, S_SRD, ka, size)
            for j in range(-(-size // 65536)):
                A(f's_add_u32 {s(S_B)}, {s(S_A)}, {j*65536}')
                A(f'buffer_load_dwordx4 v[112:115], v10, {s(S_SRD,4)}, {s(S_B)} offen')
        A.label(sk); A.flush()
    S_HH, S_TT, S_HD = S_A, S_B, S_C
    A(f's_lshr_b32 {s(S_HH)}, {w}, 1')
    A(f's_and_b32 {s(S_TT)}, {w}, 1')
    A(f's_lshl_b32 {s(S_HD)}, {s(S_IDX)}, 1')
    A(f's_add_u32 {s(S_HD)}, {s(S_HD)}, {s(S_HH)}')
    SMK = 46
    causal_masks(A, SMK)
    VKB, VVB, VL8, VL16, VPOLL, VFLAG, VZERO, VT, VNEG, MK2, MK3, VO1, VO2 = 150, 151, 152, 153, 154, 155, 156, 157, 158, 159, 160, 161, 162
    SCP, NMP = 164, 166
    A(f'v_lshlrev_b32 {v(VL8)}, 3, v79')
    A(f'v_lshlrev_b32 {v(VL16)}, 4, v79')
    A(f's_lshl_b32 {s(S_TMP)}, {s(S_HH)}, 12')
    A(f'v_add_u32 {v(VKB)}, {s(S_TMP)}, {v(VL8)}')
    A(f'v_add_u32 {v(VVB)}, {s(S_TMP)}, {v(VL16)}')
    A(f'v_mov_b32 {v(VZERO)}, 0')
    A(f'v_mov_b32 {v(VNEG)}, {hex(BIGNEG)}')
    SC = (18 ** -0.5) * 1.4426950408889634
    A(f'v_mov_b32 {v(SCP)}, {hex(f32(SC))}'); A(f'v_mov_b32 {v(SCP+1)}, {hex(f32(SC))}')
    for i in range(4): A(f'v_mov_b32 {v(128+i)}, 0x3f803f80')
    A(f's_and_b32 {s(S_TMP)}, {s(S_IDX)}, 3')
    A(f'v_cmp_eq_u32 vcc, {s(S_TMP)}, v77')
    A(f's_mov_b64 {s(54,2)}, vcc')
    A(f'v_cndmask_b32 {v(MK2)}, 0, -1, vcc')
    A(f'v_mov_b32 {v(MK3)}, {v(MK2)}')
    A(f's_cmp_eq_u32 {s(S_HH)}, 0')
    A(f's_cselect_b32 {s(S_TMP)}, -1, 0')
    A(f'v_and_b32 {v(MK2)}, {s(S_TMP)}, {v(MK2)}')
    A(f's_not_b32 {s(S_TMP)}, {s(S_TMP)}')
    A(f'v_and_b32 {v(MK3)}, {s(S_TMP)}, {v(MK3)}')
    A(f's_cselect_b64 {s(56,2)}, 0, -1') if False else None
    A(f's_cmp_eq_u32 {s(S_HH)}, 0')
    A(f's_cselect_b64 {s(56,2)}, 0, -1')
    A(f's_lshl_b32 {s(S_TMP)}, {s(S_HH)}, 3')
    A(f'v_add_u32 {v(VO1)}, {s(S_TMP)}, {v(VL16)}')
    A(f's_bfe_u32 {s(S_TMP)}, {s(S_HD)}, 0x10003')
    A(f's_lshl_b32 {s(S_TMP)}, {s(S_TMP)}, 3')
    A(f's_lshl_b32 {s(S_TMP+1)}, {s(S_HH)}, 2')
    A(f's_add_u32 {s(S_TMP)}, {s(S_TMP)}, {s(S_TMP+1)}')
    A(f'v_add_u32 {v(VO2)}, {s(S_TMP)}, {v(VL16)}')
    S_O1, S_O2, S_D1, S_D2, S_Q1, S_Q2, S_LD = 58, 59, 60, 61, 64, 65, 66
    sel_layer(A, S_O1, WS_OA)
    A(f's_mul_i32 {s(S_TMP)}, {s(S_TT)}, 18432')
    A(f's_add_u32 {s(S_O1)}, {s(S_O1)}, {s(S_TMP)}')
    A(f's_lshr_b32 {s(S_TMP)}, {s(S_HD)}, 4'); A(f's_add_u32 {s(S_TMP)}, {s(S_TMP)}, 16'); A(f's_lshl_b32 {s(S_TMP)}, {s(S_TMP)}, 10')
    A(f's_add_u32 {s(S_O2)}, {s(S_O1)}, {s(S_TMP)}')
    A(f's_lshr_b32 {s(S_TMP)}, {s(S_HD)}, 1'); A(f's_lshl_b32 {s(S_TMP)}, {s(S_TMP)}, 10')
    A(f's_add_u32 {s(S_O1)}, {s(S_O1)}, {s(S_TMP)}')
    sel_layer(A, S_Q1, WS_QKVA)
    A(f's_lshl_b32 {s(S_TMP)}, {s(S_HD)}, 10')
    A(f's_lshr_b32 {s(S_TMP+1)}, {s(S_HD)}, 3'); A(f's_add_u32 {s(S_TMP+1)}, {s(S_TMP+1)}, 32'); A(f's_lshl_b32 {s(S_TMP+1)}, {s(S_TMP+1)}, 10')
    A(f's_add_u32 {s(S_Q2)}, {s(S_Q1)}, {s(S_TMP+1)}')
    A(f's_add_u32 {s(S_Q1)}, {s(S_Q1)}, {s(S_TMP)}')
    A(f's_add_u32 {s(S_TMP)}, {s(S_TT)}, 1'); A(f's_mul_i32 {s(S_TMP)}, {s(S_TMP)}, 36864')
    A(f's_add_u32 {s(S_D1)}, {s(S_Q1)}, {s(S_TMP)}')
    A(f's_add_u32 {s(S_D2)}, {s(S_Q2)}, {s(S_TMP)}')
    A(f's_lshl_b32 {s(S_TMP)}, {s(S_TT)}, 9')
    A(f's_add_u32 {s(S_Q1)}, {s(S_Q1)}, {s(S_TMP)}')
    A(f's_add_u32 {s(S_Q2)}, {s(S_Q2)}, {s(S_TMP)}')
    A(f's_lshl_b32 {s(S_LD)}, {s(S_HH)}, 12')
    A(f's_lshl_b32 {s(S_TMP)}, {s(S_TT)}, 11')
    A(f's_add_u32 {s(S_LD)}, {s(S_LD)}, {s(S_TMP)}')
    sel_layer(A, S_TMP+2, R_A1)
    flagaddr(A, VPOLL, s(S_TMP+2), 36)
    VPD, VFD = 172, 173
    sel_layer(A, S_TMP+2, R_A3)
    flagaddr(A, VPD, s(S_TMP+2), 12)
    own_flag(A)
    RQ, RO = ring('QKVA'), ring('OA')
    S_OFQ, S_OFO = 77, 78
    if RQ < 64:
        sel_layer(A, 77, WS_QKVA); sel_layer(A, 78, WS_OA); sel_layer(A, 79, WS_PA)
        A(f's_lshl_b32 {s(67)}, {s(S_IDX)}, 2'); A(f's_add_u32 {s(67)}, {s(67)}, {w}')
    for i in range(4): A(f'v_mov_b32 {v(i)}, 0')
    A('v_lshlrev_b32 v4, 4, v75')
    A('v_add_u32 v5, 0x10000, v4')
    for i in range(NSLOT*8192//4096):
        A(f'ds_write_b128 {"v4" if i < 16 else "v5"}, v[0:3] offset:{(i % 16)*4096}')
    A('s_waitcnt lgkmcnt(0)')
    cfg['barrier_wait'](A)
    if RQ < 64 and not cfg.get('SLOWV'): pretouch(A, [(77, RQ*SEG_QKVA), (78, RO*SEG_XN), (79, ring('PA')*SEG_PA)], 64, 67, VL16, 112)
    A('s_barrier')
    S_SL = 68
    for m in range(9): A(f's_mov_b32 {s(S_SL+m)}, {((2+m) % NSLOT)*8192}')
    A(f's_mov_b32 {s(S_SEG)}, 0')
    l1 = A.newlabel('aatt1')
    A(f's_cmp_eq_u32 {s(S_TT)}, 1')
    A(f's_cbranch_scc1 {l1}')
    KR, VR, QF, OM, OL, OD, ONES = 72, 88, 112, 116, 120, 124, 128
    VK = lambda m: 132 + m
    VV = lambda m: 141 + m
    for tt in range(2):
        if tt: A.label(l1); A.flush()
        loop = A.newlabel('aloop')
        A(f's_add_u32 {s(S_TGT)}, {s(S_SEG)}, 1')
        poll_block(A, cfg, VPOLL, s(S_TGT), VFLAG, fail)
        A.label(loop)
        fst(A, cfg, 1, S_SEG)
        ring_off(A, S_OFQ, None, s(S_SEG), RQ, SEG_QKVA)
        ring_off(A, S_OFO, None, s(S_SEG), RO, SEG_XN)
        asc = ' sc1' if RQ < 64 else ''
        A(f's_add_u32 {s(S_TMP)}, {s(S_LD)}, {s(S_SL+8)}')
        A(f's_mov_b32 m0, {s(S_TMP)}')
        A(f's_add_u32 {s(S_TMP+1)}, {s(S_D1)}, {s(S_OFQ)}')
        A(f'buffer_load_dwordx4 {v(VL16)}, {s(S_WS,4)}, {s(S_TMP+1)} offen{asc} lds')
        A(f's_add_u32 {s(S_TMP)}, {s(S_TMP)}, 1024')
        A(f's_mov_b32 m0, {s(S_TMP)}')
        A(f's_add_u32 {s(S_TMP+1)}, {s(S_D2)}, {s(S_OFQ)}')
        A(f'buffer_load_dwordx4 {v(VL16)}, {s(S_WS,4)}, {s(S_TMP+1)} offen{asc} lds')
        A(f's_add_u32 {s(S_TMP+1)}, {s(S_Q1)}, {s(S_OFQ)}')
        A(f'buffer_load_dwordx2 {v(QF,2)}, {v(VL8)}, {s(S_WS,4)}, {s(S_TMP+1)} offen{asc}')
        A(f's_add_u32 {s(S_TMP+1)}, {s(S_Q2)}, {s(S_OFQ)}')
        A(f'buffer_load_dwordx2 {v(QF+2,2)}, {v(VL8)}, {s(S_WS,4)}, {s(S_TMP+1)} offen{asc}')
        if RO < 64: poll_issue(A, cfg, VPD, VFD)
        for m in range(9):
            A(f'v_add_u32 {v(VK(m))}, {s(S_SL+m)}, {v(VKB)}')
            A(f'v_add_u32 {v(VV(m))}, {s(S_SL+m)}, {v(VVB)}')
        A('s_waitcnt vmcnt(0)')
        fst(A, cfg, 2, S_SEG)
        A(f'v_and_b32 {v(QF+2)}, {v(MK2)}, {v(QF+2)}')
        A(f'v_and_b32 {v(QF+3)}, {v(MK3)}, {v(QF+3)}')
        A('s_barrier')
        fst(A, cfg, 3, S_SEG)
        tiles = list(range(tt, tt+17))
        def kread(i):
            j = tiles[i]
            A(f'ds_read2st64_b64 {v(KR+4*(i%4),4)}, {v(VK(j>>1))} offset0:{j&1} offset1:{2+(j&1)}')
        EARLY = not cfg.get('NOEARLY')
        def vread(m):
            A(f'ds_read_b128 {v(VR+8*(m%3),4)}, {v(VV(m))} offset:2048')
            A(f'ds_read_b128 {v(VR+8*(m%3)+4,4)}, {v(VV(m))} offset:3072')
        kent = {}
        if EARLY:
            knorm = A.newlabel('aknorm')
            A(f's_cmp_ge_u32 {s(S_SEG)}, 8'); A(f's_cbranch_scc1 {knorm}')
            for sg in range(8):
                i0 = max(0, 2*(8 - sg) - tt)
                nx = A.newlabel('aknx')
                kent.setdefault(i0, A.newlabel('akent'))
                if sg < 7: A(f's_cmp_lg_u32 {s(S_SEG)}, {sg}'); A(f's_cbranch_scc1 {nx}')
                for i in range(i0, min(i0 + 4, 17)): kread(i)
                A(f's_branch {kent[i0]}')
                A.label(nx); A.flush()
            A.label(knorm); A.flush()
        for i in range(4): kread(i)
        for i in range(17):
            if i in kent: A.label(kent[i])
            A(f's_waitcnt lgkmcnt({min(3, 16-i)})')
            A(f'{MF} {v(4*tiles[i],4)}, {v(KR+4*(i%4),4)}, {v(QF,4)}, 0')
            if i + 4 < 17: kread(i+4)
        if EARLY:
            vnorm = A.newlabel('avnorm'); vjoin = A.newlabel('avjoin')
            A(f's_cmp_ge_u32 {s(S_SEG)}, 8'); A(f's_cbranch_scc1 {vnorm}')
            for r in (OM, OL, OD):
                for q in range(4): A(f'v_mov_b32 {v(r+q)}, 0')
            for sg in range(8):
                nx = A.newlabel('avnx')
                if sg < 7: A(f's_cmp_lg_u32 {s(S_SEG)}, {sg}'); A(f's_cbranch_scc1 {nx}')
                for m in range(8 - sg, min(8 - sg + 3, 9)): vread(m)
                A(f's_branch {vjoin}')
                A.label(nx); A.flush()
            A.label(vnorm); A.flush()
            for m in range(3): vread(m)
            A.label(vjoin); A.flush()
        else:
            for m in range(3): vread(m)
        jf, jl = tiles[0], tiles[-1]
        for r in range(4):
            A(f'v_cndmask_b32 {v(4*jf+r)}, {v(VNEG)}, {v(4*jf+r)}, {s(SMK+2*r,2)}')
        for r in range(4):
            A(f'v_cndmask_b32 {v(4*jl+r)}, {v(4*jl+r)}, {v(VNEG)}, {s(SMK+2*r,2)}')
        lok = A.newlabel('aval')
        A(f's_cmp_ge_u32 {s(S_SEG)}, 8')
        A(f's_cbranch_scc1 {lok}')
        for m in range(8):
            A(f's_cmp_ge_u32 {s(S_SEG)}, {8-m}')
            A(f's_cbranch_scc1 {lok}')
            for j in (2*m, 2*m+1):
                if j in tiles:
                    for r in range(4): A(f'v_mov_b32 {v(4*j+r)}, {v(VNEG)}')
        A.label(lok)
        A('s_nop 7')
        fst(A, cfg, 4, S_SEG)
        vals = [4*j+r for j in tiles for r in range(4)]
        MX, MX2, T = 168, 169, 170
        A(f'v_max3_f32 {v(MX)}, {v(vals[0])}, {v(vals[1])}, {v(vals[2])}')
        A(f'v_max3_f32 {v(MX2)}, {v(vals[3])}, {v(vals[4])}, {v(vals[5])}')
        rest = vals[6:]; k = 0
        while len(rest) >= 2:
            d = [MX, MX2][k % 2]; k += 1
            A(f'v_max3_f32 {v(d)}, {v(d)}, {v(rest[0])}, {v(rest[1])}'); rest = rest[2:]
        assert not rest
        A(f'v_max_f32 {v(MX)}, {v(MX)}, {v(MX2)}')
        xlane_sum(A, MX, T, op='v_max_f32', ror8=False)
        A(f'v_mul_f32 {v(NMP)}, {hex(f32(-SC))}, {v(MX)}')
        A(f'v_mov_b32 {v(NMP+1)}, {v(NMP)}')
        ment = {}
        if EARLY:
            mnorm = A.newlabel('amnorm')
            A(f's_cmp_ge_u32 {s(S_SEG)}, 8'); A(f's_cbranch_scc1 {mnorm}')
            for sg in range(8):
                ment[8 - sg] = A.newlabel('ament')
                if sg < 7: A(f's_cmp_eq_u32 {s(S_SEG)}, {sg}'); A(f's_cbranch_scc1 {ment[8 - sg]}')
                else: A(f's_branch {ment[8 - sg]}')
            A.label(mnorm); A.flush()
        for m in range(9):
            if m in ment: A.label(ment[m]); A.flush()
            for j in (2*m, 2*m+1):
                if j in tiles:
                    for r in (0, 2): A(f'v_pk_fma_f32 {v(4*j+r,2)}, {v(4*j+r,2)}, {v(SCP,2)}, {v(NMP,2)}')
            for j in (2*m, 2*m+1):
                if j in tiles:
                    for r in range(4): A(f'v_exp_f32 {v(4*j+r)}, {v(4*j+r)}')
            b = 8*m
            if 2*m in tiles: cvt(A, b, b, b+1); cvt(A, b+1, b+2, b+3)
            else: A(f'v_mov_b32 {v(b)}, 0'); A(f'v_mov_b32 {v(b+1)}, 0')
            if 2*m+1 in tiles: cvt(A, b+2, b+4, b+5); cvt(A, b+3, b+6, b+7)
            else: A(f'v_mov_b32 {v(b+2)}, 0'); A(f'v_mov_b32 {v(b+3)}, 0')
            A(f's_waitcnt lgkmcnt({2*min(2, 8-m)})')
            c = lambda r: '0' if m == 0 else v(r, 4)
            A(f'{MF} {v(OM,4)}, {v(VR+8*(m%3),4)}, {v(b,4)}, {c(OM)}')
            A(f'{MF} {v(OL,4)}, {v(VR+8*(m%3)+4,4)}, {v(b,4)}, {c(OL)}')
            A(f'{MF} {v(OD,4)}, {v(ONES,4)}, {v(b,4)}, {c(OD)}')
            if m + 3 < 9: vread(m+3)
        A(f'v_rcp_f32 {v(T)}, {v(OD)}')
        for r in range(4):
            A(f'v_mul_f32 {v(OM+r)}, {v(OM+r)}, {v(T)}')
            A(f'v_mul_f32 {v(OL+r)}, {v(OL+r)}, {v(T)}')
        cvt(A, OM, OM, OM+1); cvt(A, OM+1, OM+2, OM+3)
        cvt(A, OL, OL, OL+1); cvt(A, OL+1, OL+2, OL+3)
        A(f'v_cndmask_b32 {v(OL)}, {v(OL)}, {v(OL+1)}, {s(56,2)}')
        if RO < 64: down_check(A, cfg, VPD, VFD, s(S_SEG), RO-1, S_OFQ, fail)
        jitter(A)
        A(f's_add_u32 {s(S_TMP)}, {s(S_O1)}, {s(S_OFO)}')
        A(f's_add_u32 {s(S_TMP+1)}, {s(S_O2)}, {s(S_OFO)}')
        A(f'buffer_store_dwordx2 {v(OM,2)}, {v(VO1)}, {s(S_WS,4)}, {s(S_TMP)} offen' + SCOPE[0])
        A(f's_mov_b64 exec, {s(54,2)}')
        A(f'buffer_store_dword {v(OL)}, {v(VO2)}, {s(S_WS,4)}, {s(S_TMP+1)} offen' + SCOPE[0])
        A('s_mov_b64 exec, -1')
        fst(A, cfg, 5, S_SEG)
        poll_issue(A, cfg, VPOLL, VFLAG)
        for m in range(9):
            A(f's_add_u32 {s(S_SL+m)}, {s(S_SL+m)}, 8192')
            A(f's_cmp_eq_u32 {s(S_SL+m)}, {NSLOT*8192}')
            A(f's_cselect_b32 {s(S_SL+m)}, 0, {s(S_SL+m)}')
        A(f's_add_u32 {s(S_SEG)}, {s(S_SEG)}, 1')
        A('s_waitcnt vmcnt(0)')
        fst(A, cfg, 6, S_SEG, 33)
        publish(A, s(S_SEG), VT, VZERO)
        A(f's_cmp_ge_u32 {s(S_SEG)}, 64')
        A(f's_cbranch_scc1 {done}')
        A(f's_add_u32 {s(S_TGT)}, {s(S_SEG)}, 1')
        poll_check(A, cfg, VPOLL, s(S_TGT), VFLAG, fail)
        A(f's_branch {loop}')
```

```python
import sys
from asm import *
from common import *
from chain import *
from roles import *
from roles2 import *
import chain2, chain3

def barrier_arrive(A):
    A('s_waitcnt vmcnt(0)')
    A('s_barrier')
    skip = A.newlabel('gbskip')
    A(f's_cmp_lg_u32 {s(S_WAVE)}, 0')
    A(f's_cbranch_scc1 {skip}')
    A(f's_lshl_b32 {s(S_TMP)}, {s(S_XCC)}, 2')
    A(f'v_mov_b32 v2, {s(S_TMP)}')
    A(f'v_mov_b32 v3, 1')
    A(f's_mov_b64 exec, 1')
    A(f'global_atomic_add v2, v3, {s(S_DBG,2)} offset:{DBG_ARRIVE*4}')
    A(f's_mov_b64 exec, -1')
    A.label(skip)

def ctr_addr(A, va, vt):
    A(f'v_lshrrev_b32 {v(vt)}, 2, {v(va)}')
    A(f'v_mul_u32_u24 {v(vt)}, {128 - 16}, {v(vt)}')
    A(f'v_lshlrev_b32 {v(va)}, 2, {v(va)}')
    A(f'v_add_u32 {v(va)}, {v(va)}, {v(vt)}')

TWIN = {}
CT_A1_DST = 100
def norm(lines):
    import re
    return [re.sub(r'\.[A-Za-z0-9]+_\d+', '.L', x) for x in lines]

def code_touch(A, lane, sh, vaddr, vdst, l0, l1, n, back):
    lp = A.newlabel('ct')
    A(f's_getpc_b64 {s(S_TMP+1,2)}')
    A.label(lp); A.flush()
    if back: A(f's_sub_u32 {s(S_TMP+1)}, {s(S_TMP+1)}, {lp}-{l0}'); A(f's_subb_u32 {s(S_TMP+2)}, {s(S_TMP+2)}, 0')
    else: A(f's_add_u32 {s(S_TMP+1)}, {s(S_TMP+1)}, {l0}-{lp}'); A(f's_addc_u32 {s(S_TMP+2)}, {s(S_TMP+2)}, 0')
    for j in range(n):
        if sh: A(f'v_lshrrev_b32 {v(vaddr)}, {sh}, {lane}'); A(f'v_lshlrev_b32 {v(vaddr)}, 7, {v(vaddr)}')
        else: A(f'v_lshlrev_b32 {v(vaddr)}, 7, {lane}')
        A(f's_lshl_b32 {s(S_TMP)}, {s(S_WAVE)}, 13')
        if j: A(f's_add_u32 {s(S_TMP)}, {s(S_TMP)}, {j*32768}')
        A(f'v_add_u32 {v(vaddr)}, {s(S_TMP)}, {v(vaddr)}')
        A(f's_mov_b32 {s(S_TMP)}, {l1}-{l0}-4')
        A(f'v_min_u32 {v(vaddr)}, {s(S_TMP)}, {v(vaddr)}')
        A(f'global_load_dword {v(vdst)}, {v(vaddr)}, {s(S_TMP+1,2)}')

def barrier_wait(A, vl='v79', sh=0, va=72, vb=73, vz=74):
    re_ = A.newlabel('gbre'); ok = A.newlabel('gbok')
    A(f'v_mov_b32 {v(vz)}, 0')
    tstamp(A, CFG, 100, va, vz)
    A(f's_mov_b32 {s(S_SPIN)}, {SPIN_LIMIT}')
    if sh: A(f'v_lshrrev_b32 {v(va)}, {sh}, {vl}'); A(f'v_and_b32 {v(va)}, 7, {v(va)}')
    else: A(f'v_and_b32 {v(va)}, 7, {vl}')
    ctr_addr(A, va, vb)
    for (l0, l1, n, back, l1only) in CFG.get('_touch', []):
        sk = A.newlabel('ctsk')
        if l1only: A(f's_cmp_eq_u32 {s(S_L)}, 0'); A(f's_cbranch_scc1 {sk}')
        code_touch(A, vl, sh, vz, vb, l0, l1, n, back)
        A(f'v_mov_b32 {v(vz)}, 0')
        if l1only: A.label(sk); A.flush()
    A.label(re_)
    A(f'global_load_dword {v(vb)}, {v(va)}, {s(S_DBG,2)} offset:{DBG_ARRIVE*4} sc1')
    A('s_waitcnt vmcnt(0)')
    A(f'v_readlane_b32 {s(S_TMP)}, {v(vb)}, 0')
    for i in range(1, 8):
        A(f'v_readlane_b32 {s(S_TMP+1)}, {v(vb)}, {i}')
        A(f's_add_u32 {s(S_TMP)}, {s(S_TMP)}, {s(S_TMP+1)}')
    A(f's_cmp_ge_u32 {s(S_TMP)}, 256')
    A(f's_cbranch_scc1 {ok}')
    spin_check(A, re_, 'L_FAIL')
    A.label(ok)
    tstamp(A, CFG, 101, va, vz)
    tw = TWIN.get('cur')
    if tw:
        name, slow = tw
        if not slow:
            A(f'v_cmp_ne_u32 vcc, 32, {v(vb)}')
            TWIN['pre'] = norm(A.lines[TWIN['start']:])
            A(f's_cbranch_vccnz {name}')
        else:
            A(f'v_cmp_ne_u32 vcc, 32, {v(vb)}')
            m = norm(A.unmute())
            assert m == TWIN['pre'], 'twin prefix differs'
            A.label(name); A.flush()

def build(cfg):
    A = Asm()
    CFG.clear(); CFG.update(cfg)
    JIT[0] = int(cfg.get('JITTER', 0))
    PSLEEP[0] = int(cfg.get('PSLEEP', 0))
    A.raw(open('cdna_kernels/' + KNAME + '.s.ref').read().split('; Override launch')[0].rstrip('\n'))
    A.raw('; Override launch geometry by editing the next line (default: block=256,')
    A.raw('; @launch grid=(256,1,1) block=(256,1,1) lds=163840')
    A.raw('.amdgcn_target "amdgcn-amd-amdhsa--gfx950"')
    A.raw('.text')
    A.raw(f'.globl {KNAME}_kernel')
    A.raw('.p2align 8')
    A.raw(f'.type {KNAME}_kernel,@function')
    A.raw(f'{KNAME}_kernel:')
    A(f's_cmp_ge_u32 {s(S_WG)}, 256')
    A('s_cbranch_scc1 L_END')
    A(f's_load_dwordx2 {s(S_PTR,2)}, {s(S_KA,2)}, {KA_WS}')
    A(f's_load_dwordx2 {s(S_DBG,2)}, {s(S_KA,2)}, {KA_DBG}')
    ET = bool(cfg.get('ET'))
    if ET:
        A(f's_load_dwordx2 s[28:29], {s(S_KA,2)}, {KA_WQ}')
        A(f's_load_dwordx2 s[30:31], {s(S_KA,2)}, {KA_WQKV}')
    if cfg.get('DBGT'): A('s_memrealtime s[94:95]')
    A(f's_getreg_b32 {s(S_XCC)}, hwreg(HW_REG_XCC_ID, 0, 4)')
    A(f'v_lshrrev_b32 v1, 6, v0')
    A(f'v_readfirstlane_b32 {s(S_WAVE)}, v1')
    A('s_waitcnt lgkmcnt(0)')
    srd_from_ptr(A, S_WS, S_PTR, WS_SIZE)
    A(f's_and_b32 {s(S_XCC)}, {s(S_XCC)}, 7')
    if cfg.get('FAKEXCC') == 1: A(f's_lshr_b32 {s(S_XCC)}, {s(S_WG)}, 4'); A(f's_min_u32 {s(S_XCC)}, {s(S_XCC)}, 7')
    if cfg.get('FAKEXCC') == 2: A(f's_cmp_eq_u32 {s(S_WG)}, 0'); A(f's_cselect_b32 {s(S_TMP)}, 1, 0'); A(f's_xor_b32 {s(S_XCC)}, {s(S_XCC)}, {s(S_TMP)}')
    sk = A.newlabel('tk')
    A(f's_lshr_b32 {s(S_TMP)}, {s(S_XCC)}, 2'); A(f's_mul_i32 {s(S_TMP)}, {s(S_TMP)}, {128 - 16}')
    A(f's_lshl_b32 {s(S_TMP+1)}, {s(S_XCC)}, 2'); A(f's_add_u32 {s(S_TMP)}, {s(S_TMP)}, {s(S_TMP+1)}')
    A(f'v_mov_b32 v8, {s(S_TMP)}')
    A(f'v_mov_b32 v9, 1')
    A(f's_cmp_lg_u32 {s(S_WAVE)}, 0')
    A(f's_cbranch_scc1 {sk}')
    A(f's_mov_b64 exec, 1')
    A(f'global_atomic_add v10, v8, v9, {s(S_DBG,2)} offset:{DBG_TICKET*4} sc0')
    A(f's_mov_b64 exec, -1')
    A.label(sk); A.flush()
    A(f's_cmp_ge_u32 {s(S_WG)}, {CLEAR_ONES_WG}')
    A(f's_cselect_b32 {s(S_TMP)}, -1, 0')
    for i in range(4): A(f'v_mov_b32 {v(4+i)}, {s(S_TMP)}')
    A(f's_lshl_b32 {s(S_TMP+1)}, {s(S_WG)}, 13')
    A(f'v_lshlrev_b32 v2, 4, v0')
    A(f'buffer_store_dwordx4 v[4:7], v2, {s(S_WS,4)}, {s(S_TMP+1)} offen sc1')
    A(f's_add_u32 {s(S_TMP+1)}, {s(S_TMP+1)}, 4096')
    A(f'buffer_store_dwordx4 v[4:7], v2, {s(S_WS,4)}, {s(S_TMP+1)} offen sc1')
    NET = int(cfg.get('NET', 2)) if ET else 0
    if ET:
        la = A.newlabel('eta'); lj = A.newlabel('etj')
        A(f's_lshr_b32 {s(S_TMP)}, {s(S_WG)}, 3'); A(f's_lshl_b32 {s(S_TMP)}, {s(S_TMP)}, 2'); A(f's_add_u32 {s(S_TMP)}, {s(S_TMP)}, {s(S_WAVE)}')
        A(f's_mul_i32 {s(S_TMP)}, {s(S_TMP)}, {NET*8192}')
        A('v_and_b32 v3, 63, v0'); A('v_lshlrev_b32 v3, 7, v3')
        A(f's_mov_b32 m0, {163840 - 256}')
        A(f's_cmp_eq_u32 {s(S_XCC)}, 4')
        A(f's_cbranch_scc1 {la}')
        A(f's_and_b32 {s(S_TMP+1)}, {s(S_XCC)}, 5')
        A(f's_cmp_eq_u32 {s(S_TMP+1)}, 0')
        A(f's_cselect_b32 {s(S_TMP+1)}, {NET*8192*128}, 0')
        srd_from_ptr(A, S_SRD, 28, 0)
        A(f's_mov_b32 {s(S_SRD+2)}, {s(S_TMP+1)}')
        for j in range(NET): A(f'buffer_load_dword v3, {s(S_SRD,4)}, {s(S_TMP if j == 0 else S_TMP+2)} offen lds'); A(f's_add_u32 {s(S_TMP+2)}, {s(S_TMP if j == 0 else S_TMP+2)}, 8192')
        A(f's_branch {lj}')
        A.label(la); A.flush()
        srd_from_ptr(A, S_SRD, 30, 576*3456)
        for j in range(NET): A(f'buffer_load_dword v3, {s(S_SRD,4)}, {s(S_TMP if j == 0 else S_TMP+2)} offen lds'); A(f's_add_u32 {s(S_TMP+2)}, {s(S_TMP if j == 0 else S_TMP+2)}, 8192')
        A.label(lj); A.flush()
    sk = A.newlabel('tk2')
    A(f's_cmp_lg_u32 {s(S_WAVE)}, 0')
    A(f's_cbranch_scc1 {sk}')
    A(f's_waitcnt vmcnt({2 + NET})')
    A(f'v_mov_b32 v5, 0')
    A(f's_mov_b64 exec, 1')
    A(f'ds_write_b32 v5, v10')
    A(f's_mov_b64 exec, -1')
    A.label(sk); A.flush()
    A(f's_waitcnt vmcnt({NET}) lgkmcnt(0)')
    A('s_barrier')
    sk = A.newlabel('tk3')
    A(f's_cmp_lg_u32 {s(S_WAVE)}, 0')
    A(f's_cbranch_scc1 {sk}')
    A(f's_mov_b64 exec, 1')
    A(f'global_atomic_add v8, v9, {s(S_DBG,2)} offset:{DBG_ARRIVE*4}')
    A(f's_mov_b64 exec, -1')
    A.label(sk); A.flush()
    A(f'v_mov_b32 v5, 0')
    A(f'ds_read_b32 v4, v5')
    A('s_waitcnt lgkmcnt(0)')
    A(f'v_readfirstlane_b32 {s(S_ROLE)}, v4')
    A('s_barrier')
    A(f's_cmp_ge_u32 {s(S_ROLE)}, 32')
    A('s_cbranch_scc1 L_OVER')
    A(f's_lshl_b32 {s(S_TMP)}, {s(S_XCC)}, 5')
    A(f's_add_u32 {s(S_ROLE)}, {s(S_ROLE)}, {s(S_TMP)}')
    A.label('L_HAVEROLE'); A.flush()
    cfg['barrier_wait'] = barrier_wait
    cfg['barrier_wait_chain'] = lambda A: barrier_wait(A, 'v0', 4, 8, 9, 10)
    A('v_mov_b32 v74, 0')
    tstamp(A, CFG, 102, 72, 74)
    DONE = 'L_DUMP' if cfg.get('FINE') else 'L_ENDT' if cfg.get('DBGT') else 'L_END'
    only = cfg.get('ONLY')
    T = []
    def add(name, r0, n, l, fn):
        if only is not None and name not in only.split(','): return
        T.append((name, r0, n, l, fn))
    for l in range(2):
        add('chain', R_CHAIN[l], 32, l, 'chain'); add('b1', R_B1[l], 32, l, 'b1')
        add('a1', R_A1[l], N_A1, l, 'a1'); add('atta', R_ATTA[l], N_ATTA, l, 'atta'); add('a3', R_A3[l], N_A3, l, 'a3')
        add('attb', R_ATTB[l], N_ATTB, l, 'attb'); add('b3', R_B3[l], N_B3, l, 'b3')
        add('ra', R_RA[l], 4, l, f'ra{l}'); add('rb', R_RB[l], N_RB, l, f'rb{l}')
    add('r0', R_R0, 4, 0, 'r0')
    for (name, r0, n, l, fn) in T:
        nx = A.newlabel('disp')
        A(f's_sub_u32 {s(S_IDX)}, {s(S_ROLE)}, {r0}')
        A(f's_cmp_ge_u32 {s(S_IDX)}, {n}')
        A(f's_cbranch_scc1 {nx}')
        A(f's_mov_b32 {s(S_L)}, {l}')
        if cfg.get('L1DELAY') and l == 1 and name in ('chain', 'b1', 'a1', 'a3', 'b3'):
            for _ in range(cfg['L1DELAY']): A('s_sleep 127')
        if cfg.get('L0DELAY') and l == 0 and name in ('b3',):
            for _ in range(cfg['L0DELAY']): A('s_sleep 127')
        A(f's_branch L_{fn.upper()}')
        A.label(nx)
    A('s_branch L_END')
    role_red = role_red2 if not cfg.get('OLDRED') else globals()['role_red']
    fns = {'chain': lambda: (chain_role if cfg.get('OLDCHAIN') else chain2.chain_role if cfg.get('CHAIN2') else chain3.chain_role)(A, cfg, 'L_FAIL', DONE), 'b1': lambda: role_b1(A, cfg, 'L_FAIL', DONE),
           'a1': lambda: role_a1(A, cfg, 'L_FAIL', DONE), 'atta': lambda: role_atta(A, cfg, 'L_FAIL', DONE),
           'a3': lambda: role_a3(A, cfg, 'L_FAIL', DONE), 'attb': lambda: role_attb(A, cfg, 'L_FAIL', DONE),
           'b3': lambda: role_b3(A, cfg, 'L_FAIL', DONE),
           'ra0': lambda: role_red(A, cfg, 'RA', 0, 'L_FAIL', DONE), 'ra1': lambda: role_red(A, cfg, 'RA', 1, 'L_FAIL', DONE),
           'rb0': lambda: role_red(A, cfg, 'RB', 0, 'L_FAIL', DONE), 'rb1': lambda: role_red(A, cfg, 'RB', 1, 'L_FAIL', DONE),
           'r0': lambda: role_red(A, cfg, 'R0', 0, 'L_FAIL', DONE)}
    seen = []
    for (name, r0, n, l, fn) in T:
        if fn in seen: continue
        seen.append(fn)
        A.raw('.p2align 6')
        A.label(f'L_{fn.upper()}')
        A.flush()
        twin = fn in ('chain', 'a1', 'atta', 'a3', 'attb', 'b3') and not cfg.get('NOTWIN')
        TWIN.clear()
        CFG['_touch'] = []
        if not cfg.get('NOCT'):
            U = fn.upper(); own = (f'L_{U}', f'L_{U}_CE', 1, True, False)
            skipct = str(cfg.get('CTSKIP', '')).split('.')
            if fn == 'a1':
                if 'a1' not in skipct:
                    A('v_and_b32 v1, 63, v0')
                    code_touch(A, 'v1', 0, 2, CT_A1_DST, 'L_A1', 'L_A1_CE', 1, True)
                CFG['_touch'] = [('L_A1', 'L_A3_CE', 2, True, True), ('L_RA1', 'L_RA1_CE', 1, False, True)]
            elif fn == 'b3':
                CFG['_touch'] = [('L_ATTB', 'L_B3_CE', 1, True, False), ('L_RB0', 'L_RB1_CE', 1, False, False)]
            elif fn not in skipct: CFG['_touch'] = [own]
        if twin: TWIN.update(cur=(f'L_{fn.upper()}_DEV', False), start=len(A.lines))
        fns[fn]()
        A.label(f'L_{fn.upper()}_CE'); A.flush()
        if twin:
            keys = ('ALLSC1', 'SLOW', 'SLOWV')
            old_ = {k: cfg.get(k) for k in keys}
            for k in keys: cfg[k] = 1; CFG[k] = 1
            TWIN['cur'] = (f'L_{fn.upper()}_DEV', True)
            A.mute(); A.flush()
            fns[fn]()
            assert A.saved is None
            for k in keys:
                for d in (cfg, CFG):
                    if old_[k] is None: d.pop(k, None)
                    else: d[k] = old_[k]
        TWIN.clear()
    if cfg.get('FINE'):
        A.label('L_DUMP'); A.flush()
        A('v_mov_b32 v1, 0')
        for i in range(12):
            A(f's_mov_b32 {s(S_TS)}, {s(80+i)}')
            sk = A.newlabel('dmp')
            A(f's_cmp_lg_u32 {s(S_WAVE)}, 0'); A(f's_cbranch_scc1 {sk}')
            A(f's_lshl_b32 {s(S_TS+2)}, {s(S_ROLE)}, 9')
            A(f's_add_u32 {s(S_TS+2)}, {s(S_TS+2)}, {hex(WS_TIME + (110+i)*4)}')
            A(f'v_mov_b32 v2, {s(S_TS)}')
            A('s_mov_b64 exec, 1')
            A(f'buffer_store_dword v2, v1, {s(S_WS,4)}, {s(S_TS+2)} offen')
            A.label(sk)
        A('s_branch L_END')
    A.label('L_OVER'); A.flush()
    A(f's_mov_b32 {s(S_SPIN)}, {SPIN_LIMIT}')
    A('v_and_b32 v2, 7, v0')
    ctr_addr(A, 2, 3)
    ore = A.newlabel('ovre'); ook = A.newlabel('ovok')
    A.label(ore)
    A(f'global_load_dword v3, v2, {s(S_DBG,2)} offset:{DBG_ARRIVE*4} sc1')
    A('s_waitcnt vmcnt(0)')
    A(f'v_readlane_b32 {s(S_TMP)}, v3, 0')
    for i in range(1, 8):
        A(f'v_readlane_b32 {s(S_TMP+1)}, v3, {i}')
        A(f's_add_u32 {s(S_TMP)}, {s(S_TMP)}, {s(S_TMP+1)}')
    A(f's_cmp_ge_u32 {s(S_TMP)}, 256')
    A(f's_cbranch_scc1 {ook}')
    spin_check(A, ore, 'L_FAIL')
    A.label(ook); A.flush()
    A(f's_sub_u32 {s(S_ROLE)}, {s(S_ROLE)}, 32')
    for j in range(7):
        A(f'v_readlane_b32 {s(S_TMP)}, v3, {j}')
        A(f's_max_u32 {s(S_TMP)}, {s(S_TMP)}, 32')
        A(f's_sub_u32 {s(S_TMP)}, {s(S_TMP)}, 32')
        A(f's_cmp_gt_u32 {s(S_XCC)}, {j}')
        A(f's_cselect_b32 {s(S_TMP)}, {s(S_TMP)}, 0')
        A(f's_add_u32 {s(S_ROLE)}, {s(S_ROLE)}, {s(S_TMP)}')
    for j in range(8):
        nx = A.newlabel('ovn')
        A(f'v_readlane_b32 {s(S_TMP)}, v3, {j}')
        A(f's_min_u32 {s(S_TMP)}, {s(S_TMP)}, 32')
        A(f's_sub_u32 {s(S_TMP+1)}, 32, {s(S_TMP)}')
        A(f's_cmp_ge_u32 {s(S_ROLE)}, {s(S_TMP+1)}')
        A(f's_cbranch_scc1 {nx}')
        A(f's_add_u32 {s(S_ROLE)}, {s(S_ROLE)}, {s(S_TMP)}')
        A(f's_add_u32 {s(S_ROLE)}, {s(S_ROLE)}, {32*j}')
        A('s_branch L_HAVEROLE')
        A.label(nx)
        A(f's_sub_u32 {s(S_ROLE)}, {s(S_ROLE)}, {s(S_TMP+1)}')
    A.label('L_FAIL')
    A.flush()
    A(f's_mov_b64 exec, 1')
    A(f'v_mov_b32 v1, 0')
    A(f'v_mov_b32 v2, 0xdead0000')
    A(f'v_or_b32 v2, {s(S_ROLE)}, v2')
    A(f'global_store_dword v1, v2, {s(S_DBG,2)} offset:160')
    A.label('L_END')
    A('s_endpgm')
    A.label('L_ENDT'); A.flush()
    dstamp(A, cfg, 5, 248, None, 10, 11)
    dstamp(A, cfg, 2, 0, None, 10, 11)
    dstamp(A, cfg, 4, 32, None, 10, 11)
    dstamp(A, cfg, 6, 244, None, 10, 11)
    if not cfg.get('DBGI'):
        dstamp(A, cfg, 7, 64, None, 10, 11)
        dstamp(A, cfg, 8, 96, None, 10, 11)
        dstamp(A, cfg, 9, 128, None, 10, 11)
        dstamp(A, cfg, 10, 192, None, 10, 11)
    A('s_endpgm')
    A.raw('.section .rodata,"a"')
    A.raw('.p2align 6')
    A.raw(f'.amdhsa_kernel {KNAME}_kernel')
    A.raw('  .amdhsa_next_free_vgpr 512')
    A.raw('  .amdhsa_next_free_sgpr 102')
    A.raw('  .amdhsa_accum_offset 256')
    A.raw('  .amdhsa_group_segment_fixed_size 0')
    A.raw('  .amdhsa_kernarg_size 104')
    A.raw('  .amdhsa_user_sgpr_count 2')
    A.raw('  .amdhsa_user_sgpr_kernarg_segment_ptr 1')
    A.raw('  .amdhsa_system_sgpr_workgroup_id_x 1')
    A.raw('.end_amdhsa_kernel')
    return A

if __name__ == '__main__':
    out = sys.argv[1]
    cfg = {}
    for kv in sys.argv[2:]:
        k, _, val = kv.partition('=')
        cfg[k] = (int(val) if val.lstrip('-').isdigit() else val) if val else 1
    if not cfg.get('RAW'):
        for k in ('PREWAIT1', 'PREWAIT2', 'BAR2', 'NTQ'): cfg.setdefault(k, 1)
    A = build(cfg)
    open(out, 'w').write(A.text())
    print('instrs', A.nins)
```

```python
import sys
from asm import *
from common import *
from chain import *
from roles import *
from roles2 import *
import chain2, chain3

def barrier_arrive(A):
    A('s_waitcnt vmcnt(0)')
    A('s_barrier')
    skip = A.newlabel('gbskip')
    A(f's_cmp_lg_u32 {s(S_WAVE)}, 0')
    A(f's_cbranch_scc1 {skip}')
    A(f's_lshl_b32 {s(S_TMP)}, {s(S_XCC)}, 2')
    A(f'v_mov_b32 v2, {s(S_TMP)}')
    A(f'v_mov_b32 v3, 1')
    A(f's_mov_b64 exec, 1')
    A(f'global_atomic_add v2, v3, {s(S_DBG,2)} offset:{DBG_ARRIVE*4}')
    A(f's_mov_b64 exec, -1')
    A.label(skip)

def ctr_addr(A, va, vt):
    A(f'v_lshrrev_b32 {v(vt)}, 2, {v(va)}')
    A(f'v_mul_u32_u24 {v(vt)}, {128 - 16}, {v(vt)}')
    A(f'v_lshlrev_b32 {v(va)}, 2, {v(va)}')
    A(f'v_add_u32 {v(va)}, {v(va)}, {v(vt)}')

TWIN = {}
CT_A1_DST = 100
def norm(lines):
    import re
    return [re.sub(r'\.[A-Za-z0-9]+_\d+', '.L', x) for x in lines]

def code_touch(A, lane, sh, vaddr, vdst, l0, l1, n, back):
    lp = A.newlabel('ct')
    A(f's_getpc_b64 {s(S_TMP+1,2)}')
    A.label(lp); A.flush()
    if back: A(f's_sub_u32 {s(S_TMP+1)}, {s(S_TMP+1)}, {lp}-{l0}'); A(f's_subb_u32 {s(S_TMP+2)}, {s(S_TMP+2)}, 0')
    else: A(f's_add_u32 {s(S_TMP+1)}, {s(S_TMP+1)}, {l0}-{lp}'); A(f's_addc_u32 {s(S_TMP+2)}, {s(S_TMP+2)}, 0')
    for j in range(n):
        if sh: A(f'v_lshrrev_b32 {v(vaddr)}, {sh}, {lane}'); A(f'v_lshlrev_b32 {v(vaddr)}, 7, {v(vaddr)}')
        else: A(f'v_lshlrev_b32 {v(vaddr)}, 7, {lane}')
        A(f's_lshl_b32 {s(S_TMP)}, {s(S_WAVE)}, 13')
        if j: A(f's_add_u32 {s(S_TMP)}, {s(S_TMP)}, {j*32768}')
        A(f'v_add_u32 {v(vaddr)}, {s(S_TMP)}, {v(vaddr)}')
        A(f's_mov_b32 {s(S_TMP)}, {l1}-{l0}-4')
        A(f'v_min_u32 {v(vaddr)}, {s(S_TMP)}, {v(vaddr)}')
        A(f'global_load_dword {v(vdst)}, {v(vaddr)}, {s(S_TMP+1,2)}')

def barrier_wait(A, vl='v79', sh=0, va=72, vb=73, vz=74):
    re_ = A.newlabel('gbre'); ok = A.newlabel('gbok')
    A(f'v_mov_b32 {v(vz)}, 0')
    tstamp(A, CFG, 100, va, vz)
    A(f's_mov_b32 {s(S_SPIN)}, {SPIN_LIMIT}')
    if sh: A(f'v_lshrrev_b32 {v(va)}, {sh}, {vl}'); A(f'v_and_b32 {v(va)}, 7, {v(va)}')
    else: A(f'v_and_b32 {v(va)}, 7, {vl}')
    ctr_addr(A, va, vb)
    for (l0, l1, n, back, l1only) in CFG.get('_touch', []):
        sk = A.newlabel('ctsk')
        if l1only: A(f's_cmp_eq_u32 {s(S_L)}, 0'); A(f's_cbranch_scc1 {sk}')
        code_touch(A, vl, sh, vz, vb, l0, l1, n, back)
        A(f'v_mov_b32 {v(vz)}, 0')
        if l1only: A.label(sk); A.flush()
    A.label(re_)
    A(f'global_load_dword {v(vb)}, {v(va)}, {s(S_DBG,2)} offset:{DBG_ARRIVE*4} sc1')
    A('s_waitcnt vmcnt(0)')
    A(f'v_readlane_b32 {s(S_TMP)}, {v(vb)}, 0')
    for i in range(1, 8):
        A(f'v_readlane_b32 {s(S_TMP+1)}, {v(vb)}, {i}')
        A(f's_add_u32 {s(S_TMP)}, {s(S_TMP)}, {s(S_TMP+1)}')
    A(f's_cmp_ge_u32 {s(S_TMP)}, 256')
    A(f's_cbranch_scc1 {ok}')
    spin_check(A, re_, 'L_FAIL')
    A.label(ok)
    tstamp(A, CFG, 101, va, vz)
    tw = TWIN.get('cur')
    if tw:
        name, slow = tw
        if not slow:
            A(f'v_cmp_ne_u32 vcc, 32, {v(vb)}')
            TWIN['pre'] = norm(A.lines[TWIN['start']:])
            A(f's_cbranch_vccnz {name}')
        else:
            A(f'v_cmp_ne_u32 vcc, 32, {v(vb)}')
            m = norm(A.unmute())
            assert m == TWIN['pre'], 'twin prefix differs'
            A.label(name); A.flush()

def build(cfg):
    A = Asm()
    CFG.clear(); CFG.update(cfg)
    JIT[0] = int(cfg.get('JITTER', 0))
    PSLEEP[0] = int(cfg.get('PSLEEP', 0))
    A.raw(open('cdna_kernels/' + KNAME + '.s.ref').read().split('; Override launch')[0].rstrip('\n'))
    A.raw('; Override launch geometry by editing the next line (default: block=256,')
    A.raw('; @launch grid=(256,1,1) block=(256,1,1) lds=163840')
    A.raw('.amdgcn_target "amdgcn-amd-amdhsa--gfx950"')
    A.raw('.text')
    A.raw(f'.globl {KNAME}_kernel')
    A.raw('.p2align 8')
    A.raw(f'.type {KNAME}_kernel,@function')
    A.raw(f'{KNAME}_kernel:')
    A(f's_cmp_ge_u32 {s(S_WG)}, 256')
    A('s_cbranch_scc1 L_END')
    A(f's_load_dwordx2 {s(S_PTR,2)}, {s(S_KA,2)}, {KA_WS}')
    A(f's_load_dwordx2 {s(S_DBG,2)}, {s(S_KA,2)}, {KA_DBG}')
    ET = bool(cfg.get('ET'))
    if ET:
        A(f's_load_dwordx2 s[28:29], {s(S_KA,2)}, {KA_WQ}')
        A(f's_load_dwordx2 s[30:31], {s(S_KA,2)}, {KA_WQKV}')
    if cfg.get('DBGT'): A('s_memrealtime s[94:95]')
    if cfg.get('CT0'):
        lp = A.newlabel('ct0')
        A('s_getpc_b64 s[28:29]')
        A.label(lp); A.flush()
        A(f's_sub_u32 s28, s28, {lp}-{KNAME}_kernel'); A('s_subb_u32 s29, s29, 0')
        A(f's_lshr_b32 s30, {s(S_WG)}, 3'); A('s_lshl_b32 s30, s30, 12')
        A('v_lshrrev_b32 v12, 6, v0'); A('v_lshlrev_b32 v12, 10, v12')
        A('v_and_b32 v11, 7, v0'); A('v_lshlrev_b32 v11, 7, v11')
        A('v_add3_u32 v12, v12, v11, s30')
        A(f's_mov_b32 s30, L_END-{KNAME}_kernel')
        A('v_min_u32 v12, s30, v12')
        A('global_load_dword v11, v12, s[28:29]')
    A(f's_getreg_b32 {s(S_XCC)}, hwreg(HW_REG_XCC_ID, 0, 4)')
    A(f'v_lshrrev_b32 v1, 6, v0')
    A(f'v_readfirstlane_b32 {s(S_WAVE)}, v1')
    A('s_waitcnt lgkmcnt(0)')
    srd_from_ptr(A, S_WS, S_PTR, WS_SIZE)
    A(f's_and_b32 {s(S_XCC)}, {s(S_XCC)}, 7')
    if cfg.get('FAKEXCC') == 1: A(f's_lshr_b32 {s(S_XCC)}, {s(S_WG)}, 4'); A(f's_min_u32 {s(S_XCC)}, {s(S_XCC)}, 7')
    if cfg.get('FAKEXCC') == 2: A(f's_cmp_eq_u32 {s(S_WG)}, 0'); A(f's_cselect_b32 {s(S_TMP)}, 1, 0'); A(f's_xor_b32 {s(S_XCC)}, {s(S_XCC)}, {s(S_TMP)}')
    sk = A.newlabel('tk')
    A(f's_lshr_b32 {s(S_TMP)}, {s(S_XCC)}, 2'); A(f's_mul_i32 {s(S_TMP)}, {s(S_TMP)}, {128 - 16}')
    A(f's_lshl_b32 {s(S_TMP+1)}, {s(S_XCC)}, 2'); A(f's_add_u32 {s(S_TMP)}, {s(S_TMP)}, {s(S_TMP+1)}')
    A(f'v_mov_b32 v8, {s(S_TMP)}')
    A(f'v_mov_b32 v9, 1')
    A(f's_cmp_lg_u32 {s(S_WAVE)}, 0')
    A(f's_cbranch_scc1 {sk}')
    A(f's_mov_b64 exec, 1')
    A(f'global_atomic_add v10, v8, v9, {s(S_DBG,2)} offset:{DBG_TICKET*4} sc0')
    A(f's_mov_b64 exec, -1')
    A.label(sk); A.flush()
    A(f's_cmp_ge_u32 {s(S_WG)}, {CLEAR_ONES_WG}')
    A(f's_cselect_b32 {s(S_TMP)}, -1, 0')
    for i in range(4): A(f'v_mov_b32 {v(4+i)}, {s(S_TMP)}')
    A(f's_lshl_b32 {s(S_TMP+1)}, {s(S_WG)}, 13')
    A(f'v_lshlrev_b32 v2, 4, v0')
    A(f'buffer_store_dwordx4 v[4:7], v2, {s(S_WS,4)}, {s(S_TMP+1)} offen sc1')
    A(f's_add_u32 {s(S_TMP+1)}, {s(S_TMP+1)}, 4096')
    A(f'buffer_store_dwordx4 v[4:7], v2, {s(S_WS,4)}, {s(S_TMP+1)} offen sc1')
    NET = int(cfg.get('NET', 2)) if ET else 0
    if ET:
        la = A.newlabel('eta'); lj = A.newlabel('etj')
        A(f's_lshr_b32 {s(S_TMP)}, {s(S_WG)}, 3'); A(f's_lshl_b32 {s(S_TMP)}, {s(S_TMP)}, 2'); A(f's_add_u32 {s(S_TMP)}, {s(S_TMP)}, {s(S_WAVE)}')
        A(f's_mul_i32 {s(S_TMP)}, {s(S_TMP)}, {NET*8192}')
        A('v_and_b32 v3, 63, v0'); A('v_lshlrev_b32 v3, 7, v3')
        A(f's_mov_b32 m0, {163840 - 256}')
        A(f's_cmp_eq_u32 {s(S_XCC)}, 4')
        A(f's_cbranch_scc1 {la}')
        A(f's_and_b32 {s(S_TMP+1)}, {s(S_XCC)}, 5')
        A(f's_cmp_eq_u32 {s(S_TMP+1)}, 0')
        A(f's_cselect_b32 {s(S_TMP+1)}, {NET*8192*128}, 0')
        srd_from_ptr(A, S_SRD, 28, 0)
        A(f's_mov_b32 {s(S_SRD+2)}, {s(S_TMP+1)}')
        for j in range(NET): A(f'buffer_load_dword v3, {s(S_SRD,4)}, {s(S_TMP if j == 0 else S_TMP+2)} offen lds'); A(f's_add_u32 {s(S_TMP+2)}, {s(S_TMP if j == 0 else S_TMP+2)}, 8192')
        A(f's_branch {lj}')
        A.label(la); A.flush()
        srd_from_ptr(A, S_SRD, 30, 576*3456)
        for j in range(NET): A(f'buffer_load_dword v3, {s(S_SRD,4)}, {s(S_TMP if j == 0 else S_TMP+2)} offen lds'); A(f's_add_u32 {s(S_TMP+2)}, {s(S_TMP if j == 0 else S_TMP+2)}, 8192')
        A.label(lj); A.flush()
    sk = A.newlabel('tk2')
    A(f's_cmp_lg_u32 {s(S_WAVE)}, 0')
    A(f's_cbranch_scc1 {sk}')
    A(f's_waitcnt vmcnt({2 + NET})')
    A(f'v_mov_b32 v5, 0')
    A(f's_mov_b64 exec, 1')
    A(f'ds_write_b32 v5, v10')
    A(f's_mov_b64 exec, -1')
    A.label(sk); A.flush()
    A(f's_waitcnt vmcnt({NET}) lgkmcnt(0)')
    A('s_barrier')
    sk = A.newlabel('tk3')
    A(f's_cmp_lg_u32 {s(S_WAVE)}, 0')
    A(f's_cbranch_scc1 {sk}')
    A(f's_mov_b64 exec, 1')
    A(f'global_atomic_add v8, v9, {s(S_DBG,2)} offset:{DBG_ARRIVE*4}')
    A(f's_mov_b64 exec, -1')
    A.label(sk); A.flush()
    A(f'v_mov_b32 v5, 0')
    A(f'ds_read_b32 v4, v5')
    A('s_waitcnt lgkmcnt(0)')
    A(f'v_readfirstlane_b32 {s(S_ROLE)}, v4')
    A('s_barrier')
    A(f's_cmp_ge_u32 {s(S_ROLE)}, 32')
    A('s_cbranch_scc1 L_OVER')
    A(f's_lshl_b32 {s(S_TMP)}, {s(S_XCC)}, 5')
    A(f's_add_u32 {s(S_ROLE)}, {s(S_ROLE)}, {s(S_TMP)}')
    A.label('L_HAVEROLE'); A.flush()
    cfg['barrier_wait'] = barrier_wait
    cfg['barrier_wait_chain'] = lambda A: barrier_wait(A, 'v0', 4, 8, 9, 10)
    A('v_mov_b32 v74, 0')
    tstamp(A, CFG, 102, 72, 74)
    DONE = 'L_DUMP' if cfg.get('FINE') else 'L_ENDT' if cfg.get('DBGT') else 'L_END'
    only = cfg.get('ONLY')
    T = []
    def add(name, r0, n, l, fn):
        if only is not None and name not in only.split(','): return
        T.append((name, r0, n, l, fn))
    for l in range(2):
        add('chain', R_CHAIN[l], 32, l, 'chain'); add('b1', R_B1[l], 32, l, 'b1')
        add('a1', R_A1[l], N_A1, l, 'a1'); add('atta', R_ATTA[l], N_ATTA, l, 'atta'); add('a3', R_A3[l], N_A3, l, 'a3')
        add('attb', R_ATTB[l], N_ATTB, l, 'attb'); add('b3', R_B3[l], N_B3, l, 'b3')
        add('ra', R_RA[l], 4, l, f'ra{l}'); add('rb', R_RB[l], N_RB, l, f'rb{l}')
    add('r0', R_R0, 4, 0, 'r0')
    for (name, r0, n, l, fn) in T:
        nx = A.newlabel('disp')
        A(f's_sub_u32 {s(S_IDX)}, {s(S_ROLE)}, {r0}')
        A(f's_cmp_ge_u32 {s(S_IDX)}, {n}')
        A(f's_cbranch_scc1 {nx}')
        A(f's_mov_b32 {s(S_L)}, {l}')
        if cfg.get('L1DELAY') and l == 1 and name in ('chain', 'b1', 'a1', 'a3', 'b3'):
            for _ in range(cfg['L1DELAY']): A('s_sleep 127')
        if cfg.get('L0DELAY') and l == 0 and name in ('b3',):
            for _ in range(cfg['L0DELAY']): A('s_sleep 127')
        A(f's_branch L_{fn.upper()}')
        A.label(nx)
    A('s_branch L_END')
    role_red = role_red2 if not cfg.get('OLDRED') else globals()['role_red']
    fns = {'chain': lambda: (chain_role if cfg.get('OLDCHAIN') else chain2.chain_role if cfg.get('CHAIN2') else chain3.chain_role)(A, cfg, 'L_FAIL', DONE), 'b1': lambda: role_b1(A, cfg, 'L_FAIL', DONE),
           'a1': lambda: role_a1(A, cfg, 'L_FAIL', DONE), 'atta': lambda: role_atta(A, cfg, 'L_FAIL', DONE),
           'a3': lambda: role_a3(A, cfg, 'L_FAIL', DONE), 'attb': lambda: role_attb(A, cfg, 'L_FAIL', DONE),
           'b3': lambda: role_b3(A, cfg, 'L_FAIL', DONE),
           'ra0': lambda: role_red(A, cfg, 'RA', 0, 'L_FAIL', DONE), 'ra1': lambda: role_red(A, cfg, 'RA', 1, 'L_FAIL', DONE),
           'rb0': lambda: role_red(A, cfg, 'RB', 0, 'L_FAIL', DONE), 'rb1': lambda: role_red(A, cfg, 'RB', 1, 'L_FAIL', DONE),
           'r0': lambda: role_red(A, cfg, 'R0', 0, 'L_FAIL', DONE)}
    seen = []
    for (name, r0, n, l, fn) in T:
        if fn in seen: continue
        seen.append(fn)
        A.raw('.p2align 6')
        A.label(f'L_{fn.upper()}')
        A.flush()
        twin = fn in ('chain', 'a1', 'atta', 'a3', 'attb', 'b3') and not cfg.get('NOTWIN')
        TWIN.clear()
        CFG['_touch'] = []
        if not cfg.get('NOCT'):
            U = fn.upper(); own = (f'L_{U}', f'L_{U}_CE', 1, True, False)
            skipct = str(cfg.get('CTSKIP', '')).split('.')
            if fn == 'a1':
                if 'a1' not in skipct:
                    A('v_and_b32 v1, 63, v0')
                    code_touch(A, 'v1', 0, 2, CT_A1_DST, 'L_A1', 'L_A1_CE', 1, True)
                CFG['_touch'] = [('L_A1', 'L_A3_CE', 2, True, True), ('L_RA1', 'L_RA1_CE', 1, False, True)]
            elif fn == 'b3':
                CFG['_touch'] = [('L_ATTB', 'L_B3_CE', 1, True, False), ('L_RB0', 'L_RB1_CE', 1, False, False)]
            elif fn not in skipct: CFG['_touch'] = [own]
        if twin: TWIN.update(cur=(f'L_{fn.upper()}_DEV', False), start=len(A.lines))
        fns[fn]()
        A.label(f'L_{fn.upper()}_CE'); A.flush()
        if twin:
            keys = ('ALLSC1', 'SLOW', 'SLOWV')
            old_ = {k: cfg.get(k) for k in keys}
            for k in keys: cfg[k] = 1; CFG[k] = 1
            TWIN['cur'] = (f'L_{fn.upper()}_DEV', True)
            A.mute(); A.flush()
            fns[fn]()
            assert A.saved is None
            for k in keys:
                for d in (cfg, CFG):
                    if old_[k] is None: d.pop(k, None)
                    else: d[k] = old_[k]
        TWIN.clear()
    if cfg.get('FINE'):
        A.label('L_DUMP'); A.flush()
        A('v_mov_b32 v1, 0')
        for i in range(12):
            A(f's_mov_b32 {s(S_TS)}, {s(80+i)}')
            sk = A.newlabel('dmp')
            A(f's_cmp_lg_u32 {s(S_WAVE)}, 0'); A(f's_cbranch_scc1 {sk}')
            A(f's_lshl_b32 {s(S_TS+2)}, {s(S_ROLE)}, 9')
            A(f's_add_u32 {s(S_TS+2)}, {s(S_TS+2)}, {hex(WS_TIME + (110+i)*4)}')
            A(f'v_mov_b32 v2, {s(S_TS)}')
            A('s_mov_b64 exec, 1')
            A(f'buffer_store_dword v2, v1, {s(S_WS,4)}, {s(S_TS+2)} offen')
            A.label(sk)
        A('s_branch L_END')
    A.label('L_OVER'); A.flush()
    A(f's_mov_b32 {s(S_SPIN)}, {SPIN_LIMIT}')
    A('v_and_b32 v2, 7, v0')
    ctr_addr(A, 2, 3)
    ore = A.newlabel('ovre'); ook = A.newlabel('ovok')
    A.label(ore)
    A(f'global_load_dword v3, v2, {s(S_DBG,2)} offset:{DBG_ARRIVE*4} sc1')
    A('s_waitcnt vmcnt(0)')
    A(f'v_readlane_b32 {s(S_TMP)}, v3, 0')
    for i in range(1, 8):
        A(f'v_readlane_b32 {s(S_TMP+1)}, v3, {i}')
        A(f's_add_u32 {s(S_TMP)}, {s(S_TMP)}, {s(S_TMP+1)}')
    A(f's_cmp_ge_u32 {s(S_TMP)}, 256')
    A(f's_cbranch_scc1 {ook}')
    spin_check(A, ore, 'L_FAIL')
    A.label(ook); A.flush()
    A(f's_sub_u32 {s(S_ROLE)}, {s(S_ROLE)}, 32')
    for j in range(7):
        A(f'v_readlane_b32 {s(S_TMP)}, v3, {j}')
        A(f's_max_u32 {s(S_TMP)}, {s(S_TMP)}, 32')
        A(f's_sub_u32 {s(S_TMP)}, {s(S_TMP)}, 32')
        A(f's_cmp_gt_u32 {s(S_XCC)}, {j}')
        A(f's_cselect_b32 {s(S_TMP)}, {s(S_TMP)}, 0')
        A(f's_add_u32 {s(S_ROLE)}, {s(S_ROLE)}, {s(S_TMP)}')
    for j in range(8):
        nx = A.newlabel('ovn')
        A(f'v_readlane_b32 {s(S_TMP)}, v3, {j}')
        A(f's_min_u32 {s(S_TMP)}, {s(S_TMP)}, 32')
        A(f's_sub_u32 {s(S_TMP+1)}, 32, {s(S_TMP)}')
        A(f's_cmp_ge_u32 {s(S_ROLE)}, {s(S_TMP+1)}')
        A(f's_cbranch_scc1 {nx}')
        A(f's_add_u32 {s(S_ROLE)}, {s(S_ROLE)}, {s(S_TMP)}')
        A(f's_add_u32 {s(S_ROLE)}, {s(S_ROLE)}, {32*j}')
        A('s_branch L_HAVEROLE')
        A.label(nx)
        A(f's_sub_u32 {s(S_ROLE)}, {s(S_ROLE)}, {s(S_TMP+1)}')
    A.label('L_FAIL')
    A.flush()
    A(f's_mov_b64 exec, 1')
    A(f'v_mov_b32 v1, 0')
    A(f'v_mov_b32 v2, 0xdead0000')
    A(f'v_or_b32 v2, {s(S_ROLE)}, v2')
    A(f'global_store_dword v1, v2, {s(S_DBG,2)} offset:160')
    A.label('L_END')
    A('s_endpgm')
    A.label('L_ENDT'); A.flush()
    dstamp(A, cfg, 5, 248, None, 10, 11)
    dstamp(A, cfg, 2, 0, None, 10, 11)
    dstamp(A, cfg, 4, 32, None, 10, 11)
    dstamp(A, cfg, 6, 244, None, 10, 11)
    if not cfg.get('DBGI'):
        dstamp(A, cfg, 7, 64, None, 10, 11)
        dstamp(A, cfg, 8, 96, None, 10, 11)
        dstamp(A, cfg, 9, 128, None, 10, 11)
        dstamp(A, cfg, 10, 192, None, 10, 11)
    A('s_endpgm')
    A.raw('.section .rodata,"a"')
    A.raw('.p2align 6')
    A.raw(f'.amdhsa_kernel {KNAME}_kernel')
    A.raw('  .amdhsa_next_free_vgpr 512')
    A.raw('  .amdhsa_next_free_sgpr 102')
    A.raw('  .amdhsa_accum_offset 256')
    A.raw('  .amdhsa_group_segment_fixed_size 0')
    A.raw('  .amdhsa_kernarg_size 104')
    A.raw('  .amdhsa_user_sgpr_count 2')
    A.raw('  .amdhsa_user_sgpr_kernarg_segment_ptr 1')
    A.raw('  .amdhsa_system_sgpr_workgroup_id_x 1')
    A.raw('.end_amdhsa_kernel')
    return A

if __name__ == '__main__':
    out = sys.argv[1]
    cfg = {}
    for kv in sys.argv[2:]:
        k, _, val = kv.partition('=')
        cfg[k] = (int(val) if val.lstrip('-').isdigit() else val) if val else 1
    if not cfg.get('RAW'):
        for k in ('PREWAIT1', 'PREWAIT2', 'BAR2', 'NTQ'): cfg.setdefault(k, 1)
    A = build(cfg)
    open(out, 'w').write(A.text())
    print('instrs', A.nins)
```
